```python
import torch

def _softmax(x, axis=-1):
    return torch.softmax(x, dim=axis)
def _gelu(x):
    return torch.nn.functional.gelu(x, approximate="tanh")
def _silu(x):
    return torch.nn.functional.silu(x)
def _sigmoid(x):
    return torch.sigmoid(x)
def _layernorm(x, axis=-1, eps=1e-5):
    m = x.mean(dim=axis, keepdim=True)
    v = x.var(dim=axis, keepdim=True, unbiased=False)
    return (x - m) / torch.sqrt(v + eps)
def _scatter_add(tgt, idx, src, axis=0):
    return tgt.clone().index_add_(axis, idx, src)
def _segment_sum(src, seg, n):
    out = torch.zeros((n,) + src.shape[1:], dtype=src.dtype)
    return out.index_add_(0, seg, src)
def _pad(x, pw):
    flat = tuple(v for pair in reversed(pw) for v in pair)
    return torch.nn.functional.pad(x, flat)

kernel_name = 'parallel_sum__linear_attn_block__glu_gated_swiglu__prompt'

def setup_inputs():

    _w = (lambda a: (lambda t: t.to(torch.bfloat16) if t.is_floating_point() else t)(torch.as_tensor(a)))
    def _A_setup():
        B, S, D = 1, 2048, 576
        return {
            "x": _w((lambda *s: torch.randn(*s, dtype=torch.bfloat16) * 0.05)(B, S, D)),
            "wqkv": _w((lambda *s: torch.randn(*s, dtype=torch.bfloat16) * 0.05)(D, 3 * D)),
            "wo": _w((lambda *s: torch.randn(*s, dtype=torch.bfloat16) * 0.05)(D, D)),
        }
    _A_in = _A_setup()

    def _B_setup():
        B, S, D, F = 1, 2048, 576, 4608
        return {
            "x": _w((lambda *s: torch.randn(*s, dtype=torch.bfloat16) * 0.05)(B, S, D)),
            "w1": _w((lambda *s: torch.randn(*s, dtype=torch.bfloat16) * 0.2)(D, F) * (2.0 / D) ** 0.5),
            "w3": _w((lambda *s: torch.randn(*s, dtype=torch.bfloat16) * 0.2)(D, F) * (2.0 / D) ** 0.5),
            "w2": _w((lambda *s: torch.randn(*s, dtype=torch.bfloat16) * 0.2)(F, D) * (2.0 / F) ** 0.5),
        }
    _B_in = _B_setup()

    return {
        "A_x": _A_in["x"],
        "A_wqkv": _A_in["wqkv"],
        "A_wo": _A_in["wo"],
        "B_x": _B_in["x"],
        "B_w1": _B_in["w1"],
        "B_w3": _B_in["w3"],
        "B_w2": _B_in["w2"],
    }

def reference(A_x, A_wqkv, A_wo, B_x, B_w1, B_w3, B_w2):
    def _A_ref(x, wqkv, wo):
        B, S, D = x.shape
        H = 32; Dh = D // H
        qkv = (lambda x, *d: x.permute(*d))((x @ wqkv).reshape(B, S, 3, H, Dh), 2, 0, 3, 1, 4)
        q, k, v = qkv[0], qkv[1], qkv[2]
        phi = lambda t: torch.where(t > 0, t + 1, torch.exp(t)) + 1e-6
        pq, pk = phi(q), phi(k)
        kv = torch.einsum("bhsd,bhse->bhde", pk, v)
        z = torch.einsum("bhsd->bhd", pk)
        num = torch.einsum("bhqd,bhde->bhqe", pq, kv)
        den = torch.einsum("bhqd,bhd->bhq", pq, z)[..., None] + 1e-6
        o = num / den
        return (lambda x, *d: x.permute(*d))(o, 0, 2, 1, 3).reshape(B, S, D) @ wo

    def _B_ref(x, w1, w3, w2):
        gate = torch.einsum("bsd,df->bsf", x, w1)
        up = torch.einsum("bsd,df->bsf", x, w3)
        h = _silu(gate) * up
        out = torch.einsum("bsf,fd->bsd", h, w2)
        return out

    x = A_x
    xn = _layernorm(x, axis=-1)
    return x + _A_ref(xn, A_wqkv, A_wo) + _B_ref(xn, B_w1, B_w3, B_w2)
```

```python
class Asm:
    def __init__(self):
        self.lines = []
        self.uid = 0
        self.vm = []
        self.lg = []
        self.n = 0
    def __call__(self, s):
        for l in s.strip("\n").split("\n"):
            l = l.strip()
            if not l:
                continue
            if l.endswith(":"):
                self.lines.append(l)
            else:
                self.lines.append("    " + l)
                self.n += 1
    def raw(self, s):
        self.lines.append(s)
    def cm(self, s):
        self.lines.append("    ; " + s)
    def label(self, name):
        self.lines.append(name + ":")
    def newlabel(self, base="L"):
        self.uid += 1
        return "%s_%d" % (base, self.uid)
    def text(self):
        return "\n".join(self.lines) + "\n"
    def vmem(self, s, tag=None):
        self(s); self.vm.append(tag)
        assert len(self.vm) <= 63, "vmcnt overflow"
    def lds(self, s, tag=None):
        self(s); self.lg.append(tag)
    def _need(self, q, pred):
        last = -1
        for i, t in enumerate(q):
            if pred(t): last = i
        return last
    def wait_vm(self, pred):
        last = self._need(self.vm, pred)
        if last < 0: return False
        n = len(self.vm) - 1 - last
        self("s_waitcnt vmcnt(%d)" % n)
        self.vm = self.vm[last + 1:]
        return True
    def wait_lg(self, pred):
        last = self._need(self.lg, pred)
        if last < 0: return False
        n = len(self.lg) - 1 - last
        if n > 15:
            n = 15; last = len(self.lg) - 1 - n
        self("s_waitcnt lgkmcnt(%d)" % n)
        self.lg = self.lg[last + 1:]
        return True
    def wait_all(self):
        self("s_waitcnt vmcnt(0) lgkmcnt(0)")
        self.vm = []; self.lg = []
    def vm0(self):
        self("s_waitcnt vmcnt(0)"); self.vm = []
    def lg0(self):
        self("s_waitcnt lgkmcnt(0)"); self.lg = []

def R(kind, base, n=1):
    if n == 1: return "%s%d" % (kind, base)
    return "%s[%d:%d]" % (kind, base, base + n - 1)
def V(b, n=1): return R("v", b, n)
def A(b, n=1): return R("a", b, n)
def S(b, n=1): return R("s", b, n)

def kernel_begin(a, name):
    a.raw(".globl %s" % name)
    a.raw(".p2align 8")
    a.raw(".type %s,@function" % name)
    a.raw("%s:" % name)

def kernel_desc(name, nvgpr, accum, nsgpr=102):
    return "\n".join([".p2align 6",
         ".amdhsa_kernel %s" % name,
         "  .amdhsa_next_free_vgpr %d" % nvgpr,
         "  .amdhsa_next_free_sgpr %d" % nsgpr,
         "  .amdhsa_accum_offset %d" % accum,
         "  .amdhsa_group_segment_fixed_size 0",
         "  .amdhsa_kernarg_size 80",
         "  .amdhsa_user_sgpr_count 2",
         "  .amdhsa_user_sgpr_kernarg_segment_ptr 1",
         "  .amdhsa_system_sgpr_workgroup_id_x 1",
         ".end_amdhsa_kernel"]) + "\n"

def srd(a, d, base, nbytes, bias=0):
    if bias:
        a("s_sub_u32 s%d, s%d, %d" % (d, base, bias))
        a("s_subb_u32 s%d, s%d, 0" % (d + 1, base + 1))
        a("s_and_b32 s%d, s%d, 0xffff" % (d + 1, d + 1))
    else:
        a("s_mov_b32 s%d, s%d" % (d, base))
        a("s_and_b32 s%d, s%d, 0xffff" % (d + 1, base + 1))
    a("s_mov_b32 s%d, 0x%x" % (d + 2, nbytes + bias))
    a("s_mov_b32 s%d, 0x20000" % (d + 3))

import struct
def f32(x):
    return "0x%08x" % struct.unpack("<I", struct.pack("<f", x))[0]
```

```python
import sys, math
from lib import *

LOG2E = 1.4426950408889634
XN_OFF = 0
KSTRIDE = 131072
H_OFF = 18 * KSTRIDE
KVP_OFF = H_OFF + 164 * KSTRIDE
PART_OFF = KVP_OFF + 8 * 8 * 4 * 6 * 1024
PSL = 18 * KSTRIDE
WS_BYTES = 268435456
OOB = 0x7f000000

sX, sWQKV, sWO, sW1, sW3, sW2, sOUT, sDBG, sWS = 4, 6, 8, 12, 14, 16, 18, 20, 22
rWS, rWA, rWB, rX, rOUT, rDBG = 24, 28, 32, 36, 40, 44
sWAVE = 48
MF = "v_mfma_f32_16x16x32_bf16"

def prologue(a, ngrid):
    a("s_cmp_ge_u32 s2, %d" % ngrid)
    a("s_cbranch_scc1 %s" % a.endlabel)
    a("s_load_dwordx16 s[4:19], s[0:1], 0")
    a("s_load_dwordx4 s[20:23], s[0:1], 64")

def k0_ln(a):
    vL, vG, vN, vT, vO, vS = 40, 41, 42, 43, 44, 45
    a("v_and_b32 v%d, 63, v0" % vL)
    a("v_lshrrev_b32 v%d, 6, v0" % vT)
    a("v_lshrrev_b32 v%d, 3, v%d" % (vG, vL))
    a("v_readfirstlane_b32 s%d, v%d" % (sWAVE, vT))
    a("v_and_b32 v%d, 7, v%d" % (vN, vL))
    a("s_lshl_b32 s50, s2, 3")
    a("v_add_u32 v%d, s50, v%d" % (vT, vN))
    a("v_mul_u32_u24 v%d, 1152, v%d" % (vO, vT))
    a("v_mov_b32 v46, v%d" % vO)
    a("v_lshrrev_b32 v%d, 2, v%d" % (vT, vG))
    a("v_lshl_add_u32 v%d, v%d, 6, v%d" % (vO, vT, vO))
    a("v_and_b32 v47, 3, v%d" % vG)
    a("v_lshl_add_u32 v%d, v47, 3, v%d" % (vO, vO))
    a("s_mul_i32 s51, s%d, 384" % sWAVE)
    a("v_lshlrev_b32 v%d, 17, v%d" % (vS, vT))
    a("v_lshl_add_u32 v%d, v47, 8, v%d" % (vS, vS))
    a("v_lshl_add_u32 v%d, v%d, 4, v%d" % (vS, vN, vS))
    a("s_lshr_b32 s52, s2, 1")
    a("s_lshl_b32 s52, s52, 10")
    a("s_and_b32 s53, s2, 1")
    a("s_lshl_b32 s53, s53, 7")
    a("s_add_u32 s52, s52, s53")
    a("v_add_u32 v%d, s52, v%d" % (vS, vS))
    a("s_mul_i32 s54, s%d, %d" % (sWAVE, 6 * KSTRIDE))
    a("s_waitcnt lgkmcnt(0)")
    srd(a, rX, sX, 2048 * 1152)
    srd(a, rWS, sWS, WS_BYTES)
    skip1 = a.newlabel("Lk0a")
    a("s_cmp_ge_u32 s%d, 3" % sWAVE)
    a("s_cbranch_scc1 %s" % skip1)
    a("buffer_load_ushort v48, v46, s[%d:%d], 0 offen" % (rX, rX + 3))
    for i in range(3):
        a("buffer_load_dwordx2 v[%d:%d], v%d, s[%d:%d], s51 offen offset:%d" % (4 * i, 4 * i + 1, vO, rX, rX + 3, 128 * i))
        a("buffer_load_dwordx2 v[%d:%d], v%d, s[%d:%d], s51 offen offset:%d" % (4 * i + 2, 4 * i + 3, vO, rX, rX + 3, 128 * i + 32))
    a("s_waitcnt vmcnt(0)")
    a("v_lshlrev_b32 v48, 16, v48")
    for r in range(12):
        a("v_lshlrev_b32 v%d, 16, v%d" % (12 + 2 * r, r))
        a("v_and_b32 v%d, 0xffff0000, v%d" % (13 + 2 * r, r))
    for r in range(24):
        a("v_sub_f32 v%d, v%d, v48" % (12 + r, 12 + r))
    a("v_add_f32 v50, v12, v13")
    a("v_mul_f32 v51, v12, v12")
    a("v_add_f32 v52, v14, v15")
    a("v_mul_f32 v53, v13, v13")
    a("v_fmac_f32 v51, v14, v14")
    a("v_fmac_f32 v53, v15, v15")
    for r in range(4, 24, 2):
        a("v_add_f32 v50, v50, v%d" % (12 + r))
        a("v_fmac_f32 v51, v%d, v%d" % (12 + r, 12 + r))
        a("v_add_f32 v52, v52, v%d" % (13 + r))
        a("v_fmac_f32 v53, v%d, v%d" % (13 + r, 13 + r))
    a("v_add_f32 v50, v50, v52")
    a("v_add_f32 v51, v51, v53")
    a("s_nop 1")
    a("v_add_f32_dpp v50, v50, v50 row_ror:8 row_mask:0xf bank_mask:0xf")
    a("v_add_f32_dpp v51, v51, v51 row_ror:8 row_mask:0xf bank_mask:0xf")
    for sw in ("v_permlane16_swap_b32", "v_permlane32_swap_b32"):
        a("v_mov_b32 v52, v50")
        a("v_mov_b32 v53, v51")
        a("s_nop 1")
        a("%s v50, v52" % sw)
        a("%s v51, v53" % sw)
        a("s_nop 1")
        a("v_add_f32 v50, v50, v52")
        a("v_add_f32 v51, v51, v53")
    a("s_lshl_b32 s53, s%d, 6" % sWAVE)
    a("v_lshlrev_b32 v54, 3, v%d" % vN)
    a("v_add_u32 v55, s53, v54")
    a("ds_write_b64 v55, v[50:51]")
    a("s_waitcnt lgkmcnt(0)")
    a.label(skip1)
    a("s_barrier")
    skip2 = a.newlabel("Lk0b")
    a("s_cmp_ge_u32 s%d, 3" % sWAVE)
    a("s_cbranch_scc1 %s" % skip2)
    a("ds_read_b64 v[56:57], v54")
    a("ds_read_b64 v[58:59], v54 offset:64")
    a("ds_read_b64 v[60:61], v54 offset:128")
    a("s_waitcnt lgkmcnt(0)")
    a("v_add_f32 v50, v56, v58")
    a("v_add_f32 v51, v57, v59")
    a("v_add_f32 v50, v50, v60")
    a("v_add_f32 v51, v51, v61")
    a("v_mul_f32 v50, %s, v50" % f32(1.0 / 576))
    a("v_mul_f32 v51, %s, v51" % f32(1.0 / 576))
    a("v_fma_f32 v51, -v50, v50, v51")
    a("v_max_f32 v51, 0, v51")
    a("v_add_f32 v50, v50, v48")
    a("v_cvt_pk_bf16_f32 v52, v50, v51")
    a("v_lshlrev_b32 v50, 16, v52")
    a("v_and_b32 v51, 0xffff0000, v52")
    a("v_add_f32 v51, %s, v51" % f32(1e-5))
    a("v_cvt_pk_bf16_f32 v51, v51, v51")
    a("v_and_b32 v51, 0xffff0000, v51")
    a("v_sqrt_f32 v51, v51")
    a("v_sub_f32 v50, v50, v48")
    a("v_cvt_pk_bf16_f32 v51, v51, v51")
    a("v_and_b32 v51, 0xffff0000, v51")
    a("v_rcp_f32 v51, v51")
    a("s_nop 0")
    a("v_mul_f32 v51, %s, v51" % f32(LOG2E))
    a("v_mul_f32 v50, v50, v51")
    for r in range(24):
        a("v_fma_f32 v%d, v%d, v51, -v50" % (12 + r, 12 + r))
    for r in range(12):
        a("v_cvt_pk_bf16_f32 v%d, v%d, v%d" % (r, 12 + 2 * r, 13 + 2 * r))
    for i in range(3):
        a("buffer_store_dwordx4 v[%d:%d], v%d, s[%d:%d], s54 offen" % (4 * i, 4 * i + 3, vS, rWS, rWS + 3))
        if i < 2: a("s_add_u32 s54, s54, %d" % (2 * KSTRIDE))
    a.label(skip2)

def lane_fields(a, vL, vq, vrow, vc):
    a("v_lshrrev_b32 v%d, 4, v%d" % (vq, vL))
    a("v_bfe_u32 v%d, v%d, 2, 3" % (vrow, vL))
    a("v_and_b32 v%d, 3, v%d" % (vc, vL))

def dma_lane_off(a, vD, vL, t0, t1, rowbytes):
    a("v_lshrrev_b32 v%d, 3, v%d" % (t0, vL))
    a("v_and_b32 v%d, 6, v%d" % (t1, t0))
    a("v_xor_b32 v%d, v%d, v%d" % (t1, t1, vL))
    a("v_and_b32 v%d, 7, v%d" % (t1, t1))
    a("s_lshl_b32 s49, s%d, 3" % sWAVE)
    a("v_add_u32 v%d, s49, v%d" % (t0, t0))
    a("v_mul_u32_u24 v%d, %d, v%d" % (t0, rowbytes, t0))
    a("v_lshl_add_u32 v%d, v%d, 4, v%d" % (vD, t1, t0))

class Sched:
    def __init__(self, a, budget=2):
        self.a = a
        self.epi = []
        self.budget = budget
    def slot(self, mfmas, must, quota):
        a = self.a
        items = list(must)
        q = quota
        while q > 0 and self.epi:
            c, fn = self.epi.pop(0)
            items.append((c, fn)); q -= c
        total = sum(c for c, _ in items)
        n = len(mfmas)
        done = 0
        k = 0
        for g, m in enumerate(mfmas):
            a(m)
            target = total * (g + 1) / n
            while k < len(items) and (done + items[k][0] / 2.0 <= target or g == n - 1):
                items[k][1](); done += items[k][0]; k += 1
    def epi_cost(self):
        return sum(c for c, _ in self.epi)
    def flush(self):
        for c, fn in self.epi: fn()
        self.epi = []

def k1_mlp(a):
    WF, RA, vD, vX, vL, TMP, HS = 128, 160, 172, 173, 174, 176, 208
    def xr(kk, tt):
        i = kk * 4 + tt
        return A(4 * i, 4) if i < 64 else V(224 + 4 * (i - 64), 4)
    def acc(P, ti, tt): return 64 * P + 16 * ti + 4 * tt
    t0, t1, t2, t3 = TMP, TMP + 1, TMP + 2, TMP + 3
    srd(a, rWA, sW1, 576 * 9216)
    srd(a, rWB, sW3, 576 * 9216, bias=1024)
    dma_lane_off(a, vD, vL, t0, t1, 9216)
    a("s_mul_i32 s52, s51, 384")
    a("v_add_u32 v%d, s52, v%d" % (vD, vD))
    a("s_lshl_b32 s53, s%d, 11" % sWAVE)
    a("s_lshl_b32 s52, s50, 14")
    a("s_lshl_b32 s49, s%d, 12" % sWAVE)
    a("s_add_u32 s52, s52, s49")
    a("v_lshl_add_u32 v%d, v%d, 4, s52" % (vX, vL))
    def x_issue(kk):
        fns = [(1, lambda: a("s_mov_b32 s54, %d" % (XN_OFF + kk * KSTRIDE)))]
        for tt in range(4):
            fns.append((1, lambda tt=tt: a.vmem("buffer_load_dwordx4 %s, v%d, s[%d:%d], s54 offen offset:%d" % (xr(kk, tt), vX, rWS, rWS + 3, tt * 1024), ("x", kk))))
        return fns
    def dma_issue(L, kk):
        return [(1, lambda: a("s_add_u32 m0, s53, %d" % (kk * 8192))),
                (1, lambda: a("s_mov_b32 s55, %d" % (kk * 32 * 9216 + L * 128))),
                (1, lambda: a.vmem("buffer_load_dwordx4 v%d, s[%d:%d], s55 offen lds" % (vD, rWA, rWA + 3), ("w", L, kk))),
                (1, lambda: a.vmem("buffer_load_dwordx4 v%d, s[%d:%d], s55 offen offset:1024 lds" % (vD, rWB, rWB + 3), ("w", L, kk)))]
    AH = 9
    for kk in range(AH):
        for c, fn in x_issue(kk) + dma_issue(0, kk): fn()
    lane_fields(a, vL, t0, t1, t2)
    a("v_lshrrev_b32 v%d, 1, v%d" % (t0, t0))
    a("v_lshlrev_b32 v%d, 11, v%d" % (t0, t0))
    a("v_lshl_add_u32 v%d, v%d, 7, v%d" % (t0, t1, t0))
    a("v_lshl_add_u32 v%d, v%d, 3, v%d" % (t0, t2, t0))
    a("v_lshrrev_b32 v%d, 1, v%d" % (t1, t1))
    for u in range(4):
        a("v_xor_b32 v%d, %d, v%d" % (t2, u, t1))
        a("v_lshl_add_u32 v%d, v%d, 5, v%d" % (RA + u, t2, t0))
        a("v_add_u32 v%d, 49152, v%d" % (RA + 4 + u, RA + u))
        a("v_add_u32 v%d, 98304, v%d" % (RA + 8 + u, RA + u))
    a("s_mov_b32 s56, %s" % f32(LOG2E * LOG2E))
    a("s_mul_i32 s57, s51, %d" % (6 * KSTRIDE))
    a("s_add_u32 s57, s57, %d" % H_OFF)
    SPLIT = 12
    seq = []
    for kk in range(SPLIT): seq += [(0, 0, kk), (0, 1, kk)]
    seq += [(0, 0, kk) for kk in range(SPLIT, 18)] + [(0, 1, kk) for kk in range(SPLIT, 18)]
    for L in (1, 2):
        for P in (0, 1): seq += [(L, P, kk) for kk in range(18)]
    NH = len(seq)
    slots = [(L, P, kk, ti) for (L, P, kk) in seq for ti in (0, 2, 1, 3)]
    def read_fns(s):
        L, P, kk, ti = slots[s]
        u, mat = 2 * P + (ti & 1), ti >> 1
        r = WF + 4 * (s % 8)
        return [(1, lambda rd=rd: a.lds("ds_read_b64_tr_b16 v[%d:%d], v%d offset:%d" % (r + 2 * rd, r + 2 * rd + 1, RA + 4 * (kk // 6) + u, (kk % 6) * 8192 + rd * 4096 + mat * 1024), s)) for rd in range(2)]
    def epilogue(L, P):
        q = []
        q.append((1, lambda: a("s_add_u32 s58, s57, %d" % ((2 * L + P) * KSTRIDE))))
        n = 0
        for tt in range(4):
            for half in range(2):
                g, u = acc(P, half, tt), acc(P, 2 + half, tt)
                t = TMP + 4 * (n % 2); n += 1
                for i in range(4): q.append((2, lambda i=i, t=t, g=g: a("v_exp_f32_e64 v%d, -v%d" % (t + i, g + i))))
                for i in range(4): q.append((1, lambda i=i, u=u, g=g: a("v_mul_f32 v%d, v%d, v%d" % (u + i, g + i, u + i))))
                for i in range(4): q.append((1, lambda i=i, t=t: a("v_fma_f32 v%d, v%d, s56, s56" % (t + i, t + i))))
                for i in range(4): q.append((2, lambda i=i, t=t: a("v_rcp_f32 v%d, v%d" % (t + i, t + i))))
                for i in range(4): q.append((1, lambda i=i, t=t, u=u: a("v_mul_f32 v%d, v%d, v%d" % (t + i, t + i, u + i))))
                for i in range(2): q.append((1, lambda i=i, t=t, tt=tt, half=half: a("v_cvt_pk_bf16_f32 v%d, v%d, v%d" % (HS + 4 * tt + 2 * half + i, t + 2 * i, t + 2 * i + 1))))
            q.append((1, lambda tt=tt: a.vmem("buffer_store_dwordx4 v[%d:%d], v%d, s[%d:%d], s58 offen offset:%d" % (HS + 4 * tt, HS + 4 * tt + 3, vX, rWS, rWS + 3, tt * 1024), ("h", L, P))))
        return q
    first_use = {}
    last_use = {}
    for n, (L, P, kk) in enumerate(seq):
        first_use.setdefault((L, kk), n); last_use[(L, kk)] = n
    lastP = {}
    firstP = {}
    for n, (L, P, kk) in enumerate(seq):
        lastP[(L, P)] = n; firstP.setdefault((L, P), n)
    visible = set()
    released = set()
    pend = [(0, kk) for kk in range(AH, 18)] + [(L, kk) for L in (1, 2) for kk in range(18)]
    S_ = Sched(a)
    a.wait_vm(lambda t: t == ("w", 0, 0))
    a("s_barrier")
    visible.add((0, 0))
    for s in range(4):
        for c, fn in read_fns(s): fn()
    deadline = None
    extra = []
    for n, (L, P, kk) in enumerate(seq):
        pre = []
        if n % 2 == 1:
            need = [(seq[m][0], seq[m][2]) for m in (n + 1, n + 2) if m < NH]
            need = [x for x in need if x not in visible]
            rel = [x for x, lu in last_use.items() if lu < n and x not in released and x[0] < 2]
            if need or rel:
                def bar(need=need):
                    a.wait_vm(lambda t: t is not None and t[0] == "w" and (t[1], t[2]) in need)
                    a("s_barrier")
                pre.append((2, bar))
                visible.update(need); released.update(rel)
        if pend:
            pl, pk = pend[0]
            if pl == 0:
                if n % 2 == 0:
                    extra += x_issue(pk) + dma_issue(0, pk); pend.pop(0)
            elif (pl - 1, pk) in released:
                extra += dma_issue(pl, pk); pend.pop(0)
        for ti_i in range(4):
            s = 4 * n + ti_i
            ti = slots[s][3]
            if ti_i % 2 == 0:
                a.wait_lg(lambda t: t is not None and t <= s + 1)
            must = []
            if ti_i == 0: must += pre
            if s + 4 < len(slots):
                nl, np_, nk, _ = slots[s + 4]
                assert (nl, nk) in visible, (n, nl, nk)
                must += read_fns(s + 4)
            take = (len(extra) + (3 - ti_i)) // (4 - ti_i)
            must += extra[:take]; extra = extra[take:]
            quota = 0
            if S_.epi:
                left = deadline - s
                quota = math.ceil(S_.epi_cost() / max(left, 1))
            w = WF + 4 * (s % 8)
            mf = []
            for tt in range(4):
                d = acc(P, ti, tt)
                c = "0" if kk == 0 else V(d, 4)
                mf.append("%s %s, %s, %s, %s" % (MF, V(d, 4), V(w, 4), xr(kk, tt), c))
            if kk == 0 and ti_i == 0:
                assert not any(True for _ in S_.epi if S_.epiP == P), "epilogue not finished"
            S_.slot(mf, must, quota)
            if ti_i == 1 and n > 0:
                pL, pP, pk_ = seq[n - 1]
                if lastP[(pL, pP)] == n - 1:
                    assert not S_.epi
                    S_.epi = epilogue(pL, pP); S_.epiP = pP
                    deadline = 4 * firstP[(pL + 1, pP)] - 1 if pL < 2 else 4 * NH
    assert not S_.epi and not pend
    a("s_nop 7")
    S_.epi = epilogue(2, 1)
    S_.flush()

C0 = [0, 4, 9, 13]
def k1_attn(a):
    RA, VO, vX, vL = 224, 242, 248, 249
    t0, t1, t2, t3, t4 = 250, 251, 252, 253, 254
    XR = 6
    def xr(kk, tt): return A(32 + 16 * (kk % XR) + 4 * tt, 4)
    def acc(T, tt): return 16 * T + 4 * tt
    a("v_mov_b32 v%d, v174" % vL)
    srd(a, rWA, sWQKV, 576 * 3456, bias=2048)
    srd(a, rDBG, sDBG, 256)
    dma_lane_off(a, t2, vL, t0, t1, 3456)
    a("s_lshl_b32 s52, s51, 7")
    a("v_add_u32 v%d, s52, v%d" % (t2, t2))
    for idx in range(6):
        a("v_add_u32 v%d, %d, v%d" % (VO + idx, (idx >> 1) * 1152 + (idx & 1) * 128 + 2048 - (idx % 3) * 1024, t2))
    a("s_mul_i32 s53, s%d, 6144" % sWAVE)
    a("s_lshl_b32 s52, s50, 14")
    a("s_lshl_b32 s49, s%d, 12" % sWAVE)
    a("s_add_u32 s52, s52, s49")
    a("v_lshl_add_u32 v%d, v%d, 4, s52" % (vX, vL))
    def x_issue(kk):
        fns = [(1, lambda: a("s_mov_b32 s54, %d" % (XN_OFF + kk * KSTRIDE)))]
        for tt in range(4):
            fns.append((1, lambda tt=tt: a.vmem("buffer_load_dwordx4 %s, v%d, s[%d:%d], s54 offen offset:%d" % (xr(kk, tt), vX, rWS, rWS + 3, tt * 1024), ("x", kk))))
        return fns
    def dma_issue(kk):
        fns = [(1, lambda: a("s_mov_b32 s55, %d" % (kk * 32 * 3456)))]
        for idx in range(6):
            if idx % 3 == 0:
                fns.append((1, lambda idx=idx: a("s_add_u32 m0, s53, %d\ns_nop 0" % ((kk % 6) * 24576 + (idx // 3) * 3072))))
            fns.append((1, lambda idx=idx: a.vmem("buffer_load_dwordx4 v%d, s[%d:%d], s55 offen offset:%d lds" % (VO + idx, rWA, rWA + 3, (idx % 3) * 1024), ("w", kk))))
        return fns
    AH = 5
    for kk in range(AH):
        for c, fn in x_issue(kk) + dma_issue(kk): fn()
    lane_fields(a, vL, t0, t1, t2)
    a("v_lshrrev_b32 v%d, 1, v%d" % (t0, t0))
    a("v_mul_u32_u24 v%d, 6144, v%d" % (t0, t0))
    a("v_lshl_add_u32 v%d, v%d, 7, v%d" % (t0, t1, t0))
    a("v_lshrrev_b32 v%d, 1, v%d" % (t1, t1))
    a("s_lshl_b32 s52, s51, 1")
    for p in range(6):
        r = RA + p
        if p < 4:
            a("v_add_u32 v%d, %d, v%d" % (t3, C0[p], t2))
        elif p == 4:
            a("v_lshrrev_b32 v%d, 1, v%d" % (t3, t2))
            a("v_lshl_add_u32 v%d, v%d, 2, v%d" % (t3, t2, t3))
            a("v_add_u32 v%d, 4, v%d" % (t3, t3))
        else:
            a("v_and_b32 v%d, 1, v%d" % (t3, t2))
            a("v_mul_u32_u24 v%d, 9, v%d" % (t3, t3))
            a("v_add_u32 v%d, 8, v%d" % (t3, t3))
        a("v_add_u32 v%d, s52, v%d" % (t3, t3))
        a("v_lshrrev_b32 v%d, 4, v%d" % (t4, t3))
        a("v_lshl_add_u32 v%d, v%d, 10, v%d" % (r, t4, t0))
        a("v_bfe_u32 v%d, v%d, 2, 2" % (t4, t3))
        a("v_xor_b32 v%d, v%d, v%d" % (t4, t4, t1))
        a("v_lshl_add_u32 v%d, v%d, 5, v%d" % (r, t4, r))
        a("v_and_b32 v%d, 3, v%d" % (t4, t3))
        a("v_lshl_add_u32 v%d, v%d, 3, v%d" % (r, t4, r))
        if p == 5:
            a("v_lshrrev_b32 v%d, 1, v%d" % (t4, t2))
            a("v_lshl_add_u32 v%d, v%d, 11, v%d" % (r, t4, r))
        a("v_add_u32 v%d, 49152, v%d" % (r + 6, r))
        a("v_add_u32 v%d, 98304, v%d" % (r + 12, r))
    TL = [(0, 0), (1, 0), (2, 0), (3, 0), (4, 0)] + [(p, 1) for p in range(4)] + [(p, 2) for p in range(4)] + [(5, 1)]
    slots = [(kk, T) for kk in range(18) for T in range(14)]
    def read_fns(s):
        kk, T = slots[s]
        p, win = TL[T]
        r = 4 * (s % 8)
        sl = kk % 6
        return [(1, lambda rd=rd: a.lds("ds_read_b64_tr_b16 a[%d:%d], v%d offset:%d" % (r + 2 * rd, r + 2 * rd + 1, RA + 6 * (sl // 2) + p, (sl % 2) * 24576 + rd * 12288 + win * 2048), s)) for rd in range(2)]
    S_ = Sched(a)
    a.wait_vm(lambda t: t == ("w", 0))
    a("s_barrier")
    for s in range(4):
        for c, fn in read_fns(s): fn()
    extra = []
    for s, (kk, T) in enumerate(slots):
        if s % 2 == 0:
            a.wait_lg(lambda t: t is not None and t <= s + 1)
        must = []
        if T == 10 - 1 and kk < 17:
            def bar(kk=kk):
                a.wait_vm(lambda t: t == ("w", kk + 1))
                a("s_barrier")
            must.append((2, bar))
            if kk + AH < 18: extra += x_issue(kk + AH) + dma_issue(kk + AH)
        if s + 4 < len(slots): must += read_fns(s + 4)
        take = min(len(extra), 2)
        must += extra[:take]; extra = extra[take:]
        mf = []
        for tt in range(4):
            d = acc(T, tt)
            c = "0" if kk == 0 else V(d, 4)
            mf.append("%s %s, %s, %s, %s" % (MF, V(d, 4), A(4 * (s % 8), 4), xr(kk, tt), c))
        S_.slot(mf, must, 0)
    assert not extra
    RS = 296
    vq, vn, vI0, vI1 = 224, 225, 226, 227
    T8 = 232
    a("s_barrier")
    a("v_lshrrev_b32 v%d, 4, v%d" % (vq, vL))
    a("v_and_b32 v%d, 15, v%d" % (vn, vL))
    a("s_lshl_b32 s52, s%d, 6" % sWAVE)
    a("v_add_u32 v%d, s52, v%d" % (t0, vn))
    a("v_mul_u32_u24 v%d, %d, v%d" % (t0, RS, t0))
    a("v_lshl_add_u32 v%d, v%d, 3, v%d" % (vI0, vq, t0))
    a("v_mul_u32_u24 v%d, 72, v%d" % (t1, vq))
    a("v_add3_u32 v%d, v%d, v%d, 64" % (vI1, t0, t1))
    a("s_mov_b32 s56, %s" % f32(1.0 / LOG2E))
    a("v_mov_b32 v228, %s" % f32(1e-6))
    a("v_cmp_gt_u32 s[60:61], 2, v%d" % vq)
    def phi4(r, t, keep=None):
        for i in range(4): a("v_exp_f32_e64 v%d, v%d clamp" % (t + i, r + i))
        for i in range(4): a("v_fma_f32 v%d, v%d, s56, v228" % (t + 4 + i, r + i))
        for i in range(4): a("v_max_f32 v%d, v%d, v228" % (t + 4 + i, t + 4 + i))
        if keep is None:
            for i in range(4): a("v_add_f32 v%d, v%d, v%d" % (r + i, t + i, t + 4 + i))
        else:
            for i in range(4): a("v_add_f32 v%d, v%d, v%d" % (t + i, t + i, t + 4 + i))
            for i in range(4): a("v_cndmask_b32 v%d, v%d, v%d, %s" % (r + i, r + i, t + i, keep))
    def pack2(dst, r):
        a("v_cvt_pk_bf16_f32 v%d, v%d, v%d" % (dst, r, r + 1))
        a("v_cvt_pk_bf16_f32 v%d, v%d, v%d" % (dst + 1, r + 2, r + 3))
    for T in list(range(9, 13)) + list(range(5, 9)) + [13]:
        for tt in range(4):
            r = acc(T, tt)
            if 5 <= T < 9: phi4(r, T8)
            elif T == 13: phi4(r, T8, keep="s[60:61]")
            pack2(r, r)
            if T == 13: a("ds_write_b64 v%d, v[%d:%d] offset:%d" % (vI1, r, r + 1, tt * 16 * RS))
            else:
                off = C0[(T - 5) % 4] * 8 + (144 if T >= 9 else 0)
                a("ds_write_b64 v%d, v[%d:%d] offset:%d" % (vI0, r, r + 1, tt * 16 * RS + off))
    vM, vLf = 229, 230
    a("v_bfe_u32 v%d, v%d, 2, 4" % (t0, vL))
    a("v_mul_u32_u24 v%d, %d, v%d" % (t0, RS, t0))
    a("v_and_b32 v%d, 3, v%d" % (t2, vL))
    a("s_lshl_b32 s52, s%d, 2" % sWAVE)
    a("s_lshr_b32 s49, s%d, 1" % sWAVE)
    a("s_add_u32 s52, s52, s49")
    a("v_add_u32 v%d, s52, v%d" % (t3, t2))
    a("v_lshl_add_u32 v%d, v%d, 3, v%d" % (vM, t3, t0))
    a("v_lshrrev_b32 v%d, 1, v%d" % (t3, t2))
    a("v_lshl_add_u32 v%d, v%d, 2, v%d" % (t3, t2, t3))
    a("v_add_u32 v%d, 4, v%d" % (t3, t3))
    a("v_lshl_add_u32 v%d, v%d, 3, v%d" % (vLf, t3, t0))
    ONES = 232
    for i in range(4): a("v_mov_b32 v%d, 0x3f803f80" % (ONES + i))
    a("s_waitcnt lgkmcnt(0)")
    a("s_barrier")
    KC = 80
    FR = 104
    for half in range(2):
        for k4 in range(4):
            for f, (base, off) in enumerate([(vM, 0), (vLf, 0), (vM, 144), (vLf, 144)]):
                for rd in range(2):
                    r = FR + 16 * k4 + 4 * f + 2 * rd
                    a.lds("ds_read_b64_tr_b16 v[%d:%d], v%d offset:%d" % (r, r + 1, base, (32 * k4 + 16 * rd) * RS + off), k4)
        if half == 0:
            a("v_add_u32 v%d, %d, v%d" % (vM, 128 * RS, vM))
            a("v_add_u32 v%d, %d, v%d" % (vLf, 128 * RS, vLf))
        for k4 in range(4):
            a.wait_lg(lambda t: t == k4)
            b = FR + 16 * k4
            for ci, (fa, fb) in enumerate([(b, b + 8), (b + 4, b + 8), (b, b + 12), (b + 4, b + 12), (b, ONES), (b + 4, ONES)]):
                d = KC + 4 * ci
                c = "0" if (half == 0 and k4 == 0) else V(d, 4)
                a("%s %s, %s, %s, %s" % (MF, V(d, 4), V(fa, 4), V(fb, 4), c))
    a("s_lshl_b32 s52, s51, 5")
    a("s_add_u32 s52, s52, s%d" % sWAVE)
    a("s_mul_i32 s57, s52, 6144")
    a("s_add_u32 s57, s57, %d" % KVP_OFF)
    a("s_mul_i32 s52, s50, 24576")
    a("s_add_u32 s58, s57, s52")
    a("s_add_u32 s59, s58, 3072")
    a("v_lshlrev_b32 v%d, 4, v%d" % (t0, vL))
    a("s_nop 4")
    for ci in range(6):
        a("buffer_store_dwordx4 %s, v%d, s[%d:%d], s%d offen offset:%d sc0 sc1" % (V(KC + 4 * ci, 4), t0, rWS, rWS + 3, 58 + ci // 3, (ci % 3) * 1024))
    a("s_waitcnt vmcnt(0)")
    a("s_barrier")
    l1 = a.newlabel("Lsig")
    a("s_cmp_lg_u32 s%d, 0" % sWAVE)
    a("s_cbranch_scc1 %s" % l1)
    a("s_lshl_b32 s52, s51, 2")
    a("v_mov_b32 v%d, 1" % t1)
    a("s_mov_b64 exec, 1")
    a("buffer_atomic_add v%d, off, s[%d:%d], s52 sc1" % (t1, rDBG, rDBG + 3))
    a("s_mov_b64 exec, -1")
    a.label(l1)
    QF = 104
    for tt in range(4):
        for T in range(5):
            phi4(acc(T, tt), T8)
        for h in range(4):
            pack2(QF + 16 * tt + 4 * h, acc(h, tt))
            pack2(QF + 16 * tt + 4 * h + 2, acc(4, tt))
    MO = 232
    a("s_and_b32 s52, s%d, 1" % sWAVE)
    a("s_lshl_b32 s49, s52, 1")
    a("v_mov_b32 v%d, 0x%x" % (t1, OOB))
    a("v_cmp_le_u32 s[62:63], s49, v%d" % vn)
    a("v_cmp_eq_u32 s[64:65], s%d, v%d" % (sWAVE, vq))
    a("v_lshrrev_b32 v%d, 2, v%d" % (t2, vn))
    a("v_cmp_eq_u32 s[66:67], s%d, v%d" % (sWAVE, t2))
    a("v_and_b32 v%d, 3, v%d" % (t2, vn))
    a("s_add_u32 s49, s49, 2")
    a("v_cmp_gt_u32 s[68:69], s49, v%d" % t2)
    a("v_cmp_eq_u32 s[70:71], s%d, v%d" % (sWAVE, t2))
    a("s_and_b64 s[66:67], s[66:67], s[68:69]")
    a("s_and_b64 s[72:73], s[62:63], s[64:65]")
    a("s_and_b64 s[74:75], s[66:67], s[64:65]")
    a("s_and_b64 s[76:77], s[70:71], s[64:65]")
    a("s_nop 1")
    for ci, m in enumerate([62, 72, 66, 74, 70, 76]):
        a("v_cndmask_b32 v%d, v%d, v%d, s[%d:%d]" % (MO + ci, t1, t0, m, m + 1))
    for ci in range(3, 6):
        pass
    vm0, vm3 = 238, 239
    a("v_cmp_le_u32 s[62:63], s52, v%d" % vq)
    a("s_sub_u32 s49, 0, s52")
    a("v_mov_b32 v%d, s49" % vm3)
    a("v_cndmask_b32 v%d, 0, -1, s[62:63]" % vm0)
    lp = a.newlabel("Lpoll")
    a("s_lshl_b32 s52, s51, 2")
    a("s_mov_b32 s53, 20000")
    a.label(lp)
    a("buffer_load_dword v%d, off, s[%d:%d], s52 sc0 sc1" % (t2, rDBG, rDBG + 3))
    a("s_waitcnt vmcnt(0)")
    a("v_readfirstlane_b32 s49, v%d" % t2)
    a("s_cmp_ge_u32 s49, 8")
    ld = a.newlabel("Lgo")
    a("s_cbranch_scc1 %s" % ld)
    a("s_sleep 4")
    a("s_sub_u32 s53, s53, 1")
    a("s_cmp_lg_u32 s53, 0")
    a("s_cbranch_scc1 %s" % lp)
    a.label(ld)
    bufs = [0, 24, 48, 72, 168, 192]
    def ldp(i, base):
        a("s_add_u32 s58, s57, %d" % (i * 24576))
        a("s_add_u32 s59, s58, 3072")
        for ci in range(6):
            a.vmem("buffer_load_dwordx4 %s, v%d, s[%d:%d], s%d offen offset:%d sc0 sc1" % (V(base + 4 * ci, 4), MO + ci, rWS, rWS + 3, 58 + ci // 3, (ci % 3) * 1024), i)
    for i in range(6): ldp(i, bufs[i])
    for i in range(1, 8):
        a.wait_vm(lambda t: t == i)
        b = bufs[i] if i < 6 else bufs[i - 5]
        for r in range(24): a("v_add_f32 v%d, v%d, v%d" % (r, r, b + r))
        if i + 5 < 8: ldp(i + 5, bufs[i])
    for f in range(3):
        pack2(24 + 4 * f, 8 * f)
        pack2(24 + 4 * f + 2, 8 * f + 4)
        a("v_and_b32 v%d, v%d, v%d" % (24 + 4 * f, 24 + 4 * f, vm0))
        a("v_and_b32 v%d, v%d, v%d" % (24 + 4 * f + 3, 24 + 4 * f + 3, vm3))
    a("s_mul_i32 s52, s%d, 3072" % sWAVE)
    a("v_add_u32 v%d, 0x14000, v%d" % (t0, t0))
    a("v_add_u32 v%d, s52, v%d" % (t1, t0))
    for f in range(3):
        a("ds_write_b128 v%d, %s offset:%d" % (t1, V(24 + 4 * f, 4), f * 1024))
    a("s_waitcnt lgkmcnt(0)")
    a("s_barrier")
    AF = 168
    for i in range(12):
        a("ds_read_b128 %s, v%d offset:%d" % (V(AF + 4 * i, 4), t0, i * 1024))
    a("s_lshl_b32 s52, s51, 1")
    a("s_add_u32 s52, s52, 144")
    a("s_mul_i32 s58, s52, %d" % KSTRIDE)
    a("s_add_u32 s58, s58, %d" % H_OFF)
    a("s_add_u32 s59, s58, %d" % KSTRIDE)
    a("s_lshr_b32 s52, s51, 1")
    a("s_add_u32 s52, s52, 160")
    a("s_mul_i32 s57, s52, %d" % KSTRIDE)
    a("s_and_b32 s52, s51, 1")
    a("s_lshl_b32 s52, s52, 3")
    a("s_add_u32 s57, s57, s52")
    a("s_add_u32 s57, s57, %d" % H_OFF)
    a("s_mov_b32 s56, %s" % f32(LOG2E))
    a("v_mov_b32 v228, %s" % f32(1e-6 * LOG2E))
    a("v_cmp_eq_u32 s[62:63], 1, v%d" % vq)
    a("v_cmp_eq_u32 s[64:65], 2, v%d" % vq)
    a("v_cmp_eq_u32 s[66:67], 3, v%d" % vq)
    a("s_waitcnt lgkmcnt(0)")
    for tt in range(4):
        o = 24 * tt
        for h in range(4):
            qf = V(QF + 16 * tt + 4 * h, 4)
            a("%s %s, %s, %s, 0" % (MF, V(o + 4 * h, 4), V(AF + 12 * h, 4), qf))
            a("%s %s, %s, %s, %s" % (MF, V(o + 16, 4), V(AF + 12 * h + 4, 4), qf, "0" if h == 0 else V(o + 16, 4)))
            a("%s %s, %s, %s, %s" % (MF, V(o + 20, 4), V(AF + 12 * h + 8, 4), qf, "0" if h == 0 else V(o + 20, 4)))
    a("s_nop 7")
    for tt in range(4):
        o = 24 * tt
        for h in range(4): a("v_fma_f32 v%d, v%d, s56, v228" % (o + 20 + h, o + 20 + h))
        for h in range(4): a("v_rcp_f32 v%d, v%d" % (o + 20 + h, o + 20 + h))
        a("s_nop 0")
        a("v_cndmask_b32 v%d, v%d, v%d, s[62:63]" % (T8 + 8, o + 20, o + 21))
        a("v_cndmask_b32 v%d, v%d, v%d, s[64:65]" % (T8 + 8, T8 + 8, o + 22))
        a("v_cndmask_b32 v%d, v%d, v%d, s[66:67]" % (T8 + 8, T8 + 8, o + 23))
        for h in range(4):
            for i in range(4): a("v_mul_f32 v%d, v%d, v%d" % (o + 4 * h + i, o + 4 * h + i, o + 20 + h))
        for i in range(4): a("v_mul_f32 v%d, v%d, v%d" % (o + 16 + i, o + 16 + i, T8 + 8))
        pack2(o, o); pack2(o + 2, o + 4)
        pack2(o + 4, o + 8); pack2(o + 6, o + 12)
        pack2(o + 8, o + 16)
        a("buffer_store_dwordx4 %s, v%d, s[%d:%d], s58 offen offset:%d" % (V(o, 4), vX, rWS, rWS + 3, tt * 1024))
        a("buffer_store_dwordx4 %s, v%d, s[%d:%d], s59 offen offset:%d" % (V(o + 4, 4), vX, rWS, rWS + 3, tt * 1024))
        a("buffer_store_dwordx2 %s, v%d, s[%d:%d], s57 offen offset:%d" % (V(o + 8, 2), vX, rWS, rWS + 3, tt * 1024))

def k1(a):
    a("v_and_b32 v174, 63, v0")
    a("v_lshrrev_b32 v175, 6, v0")
    a("s_and_b32 s51, s2, 7")
    a("v_readfirstlane_b32 s%d, v175" % sWAVE)
    a("s_bfe_u32 s50, s2, 0x30003")
    a("s_lshr_b32 s52, s2, 6")
    a("s_waitcnt lgkmcnt(0)")
    srd(a, rWS, sWS, WS_BYTES)
    a("s_cmp_eq_u32 s52, 3")
    a("s_cbranch_scc1 L_attn")
    a("s_mul_i32 s51, s51, 3")
    a("s_add_u32 s51, s51, s52")
    k1_mlp(a)
    a("s_endpgm")
    a.vm = []; a.lg = []
    a.label("L_attn")
    k1_attn(a)

def k2(a):
    WF, RA, VO, VS, vX, vL = 192, 224, 236, 239, 242, 243
    t0, t1, t2, t3 = 244, 245, 246, 247
    def hr(st, tt): return A(16 * (st % 16) + 4 * tt, 4)
    def acc(ct_, tt): return 16 * ct_ + 4 * tt
    a("v_and_b32 v%d, 63, v0" % vL)
    a("v_lshrrev_b32 v%d, 6, v0" % t0)
    a("s_and_b32 s49, s2, 7")
    a("v_readfirstlane_b32 s%d, v%d" % (sWAVE, t0))
    a("s_lshr_b32 s52, s2, 3")
    a("s_cmp_ge_u32 s52, 30")
    a("s_cbranch_scc1 %s" % a.endlabel)
    a("s_mul_i32 s49, s49, 30")
    a("s_add_u32 s49, s49, s52")
    a("s_mul_i32 s62, s49, 2731")
    a("s_lshr_b32 s62, s62, 16")
    a("s_mul_i32 s52, s62, 24")
    a("s_sub_u32 s49, s49, s52")
    a("s_and_b32 s50, s49, 7")
    a("s_lshr_b32 s51, s49, 3")
    a("s_waitcnt lgkmcnt(0)")
    srd(a, rWS, sWS, WS_BYTES)
    a("s_cmp_eq_u32 s62, 9")
    a("s_cselect_b32 s52, s%d, s%d" % (sWO, sW2))
    a("s_cselect_b32 s53, s%d, s%d" % (sWO + 1, sW2 + 1))
    a("s_mov_b32 s%d, %d" % (rWA + 2, 4608 * 1152 + 2048))
    a("s_cmov_b32 s%d, %d" % (rWA + 2, 576 * 1152 + 2048))
    a("s_mov_b32 s63, %d" % (32 * 1152))
    a("s_cmov_b32 s63, %d" % (36 * 1152))
    a("s_cselect_b32 s64, 0, 0x%x" % OOB)
    a("s_cselect_b32 s65, 0, s62")
    a("s_sub_u32 s%d, s52, 2048" % rWA)
    a("s_subb_u32 s%d, s53, 0" % (rWA + 1))
    a("s_and_b32 s%d, s%d, 0xffff" % (rWA + 1, rWA + 1))
    a("s_mov_b32 s%d, 0x20000" % (rWA + 3))
    a("s_mul_i32 s55, s65, %d" % (512 * 1152))
    dma_lane_off(a, t2, vL, t0, t1, 1152)
    a("s_mul_i32 s52, s51, 384")
    a("v_add_u32 v%d, s52, v%d" % (t2, t2))
    for ln in range(3):
        a("v_add_u32 v%d, %d, v%d" % (VO + ln, ln * 128 + 2048 - ln * 1024, t2))
    a("v_lshrrev_b32 v%d, 3, v%d" % (t0, vL))
    a("v_add_u32 v%d, s49, v%d" % (t0, t0))
    a("v_lshrrev_b32 v%d, 4, v%d" % (t1, t0))
    a("v_mul_u32_u24 v%d, 72, v%d" % (t1, t1))
    a("v_bfe_u32 v%d, v%d, 2, 2" % (t3, t0))
    a("v_lshl_add_u32 v%d, v%d, 4, v%d" % (t1, t3, t1))
    a("v_lshrrev_b32 v%d, 1, v%d" % (t3, t3))
    a("v_lshl_add_u32 v%d, v%d, 2, v%d" % (t1, t3, t1))
    a("v_and_b32 v%d, 3, v%d" % (t3, t0))
    a("v_add3_u32 v%d, v%d, v%d, 16" % (t1, t1, t3))
    a("v_sub_u32 v%d, v%d, v%d" % (t1, t1, t0))
    a("v_mul_u32_u24 v%d, 1152, v%d" % (t1, t1))
    for ln in range(3):
        a("v_add_u32 v%d, v%d, v%d" % (VS + ln, VO + ln, t1))
    a("s_mul_i32 s53, s%d, 3072" % sWAVE)
    a("s_lshl_b32 s52, s50, 14")
    a("s_lshl_b32 s49, s%d, 12" % sWAVE)
    a("s_add_u32 s52, s52, s49")
    a("v_lshl_add_u32 v%d, v%d, 4, s52" % (vX, vL))
    a("s_mul_i32 s54, s62, %d" % (16 * KSTRIDE))
    a("s_add_u32 s54, s54, %d" % H_OFF)
    def h_issue(st):
        fns = []
        if st == 16: fns.append((1, lambda: a("s_add_u32 s54, s54, s64")))
        for tt in range(4):
            fns.append((1, lambda tt=tt: a.vmem("buffer_load_dwordx4 %s, v%d, s[%d:%d], s54 offen offset:%d" % (hr(st, tt), vX, rWS, rWS + 3, tt * 1024), ("h", st))))
        fns.append((1, lambda: a("s_add_u32 s54, s54, %d" % KSTRIDE)))
        return fns
    def dma_issue(st):
        fns = [(1, lambda: a("s_add_u32 m0, s53, %d" % ((st % 12) * 12288)))]
        if st >= 16: fns.append((1, lambda: a("s_add_u32 s55, s64, %d" % ((st - 16) * 144 * 1152))))
        else: fns.append((1, lambda: a("s_nop 0")))
        vo = VS if st >= 16 else VO
        for ln in range(3):
            fns.append((1, lambda ln=ln: a.vmem("buffer_load_dwordx4 v%d, s[%d:%d], s55 offen offset:%d lds" % (vo + ln, rWA, rWA + 3, ln * 1024), ("w", st))))
        if st < 16: fns.append((1, lambda: a("s_add_u32 s55, s55, s63")))
        return fns
    AH = 8
    for st in range(AH):
        for c, fn in h_issue(st) + dma_issue(st): fn()
    lane_fields(a, vL, t0, t1, t2)
    a("v_lshrrev_b32 v%d, 1, v%d" % (t0, t0))
    a("v_mul_u32_u24 v%d, 3072, v%d" % (t0, t0))
    a("v_lshl_add_u32 v%d, v%d, 7, v%d" % (t0, t1, t0))
    a("v_lshl_add_u32 v%d, v%d, 3, v%d" % (t0, t2, t0))
    a("v_lshrrev_b32 v%d, 1, v%d" % (t1, t1))
    for u in range(4):
        a("v_xor_b32 v%d, %d, v%d" % (t2, u, t1))
        a("v_lshl_add_u32 v%d, v%d, 5, v%d" % (RA + u, t2, t0))
        a("v_add_u32 v%d, 49152, v%d" % (RA + 4 + u, RA + u))
        a("v_add_u32 v%d, 98304, v%d" % (RA + 8 + u, RA + u))
    slots = [(st, c) for st in range(20) for c in range(12)]
    def read_fns(s):
        st, c = slots[s]
        r = WF + 4 * (s % 8)
        sl = st % 12
        return [(1, lambda rd=rd: a.lds("ds_read_b64_tr_b16 v[%d:%d], v%d offset:%d" % (r + 2 * rd, r + 2 * rd + 1, RA + 4 * (sl // 4) + (c & 3), (sl % 4) * 12288 + rd * 6144 + (c >> 2) * 1024), s)) for rd in range(2)]
    S_ = Sched(a)
    a.wait_vm(lambda t: t == ("w", 0))
    a("s_barrier")
    for s in range(4):
        for c, fn in read_fns(s): fn()
    extra = []
    for s, (st, c) in enumerate(slots):
        if st == 16 and c == 0:
            a("s_cmp_lg_u32 s62, 9")
            a("s_cbranch_scc1 L_k2_epi")
        if s % 2 == 0:
            a.wait_lg(lambda t: t is not None and t <= s + 1)
        must = []
        if c == 7 and st < 19:
            def bar(st=st):
                a.wait_vm(lambda t: t == ("w", st + 1))
                a("s_barrier")
            must.append((2, bar))
            if st + AH < 20: extra += h_issue(st + AH) + dma_issue(st + AH)
        if s + 4 < len(slots): must += read_fns(s + 4)
        take = min(len(extra), 2)
        must += extra[:take]; extra = extra[take:]
        mf = []
        for tt in range(4):
            d = acc(c, tt)
            cc = "0" if st == 0 else V(d, 4)
            mf.append("%s %s, %s, %s, %s" % (MF, V(d, 4), V(WF + 4 * (s % 8), 4), hr(st, tt), cc))
        S_.slot(mf, must, 0)
    a.label("L_k2_epi")
    a("s_mul_i32 s52, s62, 3")
    a("s_add_u32 s52, s52, s51")
    a("s_mul_i32 s54, s52, %d" % (6 * KSTRIDE))
    a("s_add_u32 s54, s54, %d" % PART_OFF)
    a("s_nop 4")
    for cp in range(6):
        for tt in range(4):
            r0, r1 = acc(2 * cp, tt), acc(2 * cp + 1, tt)
            a("v_cvt_pk_bf16_f32 v%d, v%d, v%d" % (r0, r0, r0 + 1))
            a("v_cvt_pk_bf16_f32 v%d, v%d, v%d" % (r0 + 1, r0 + 2, r0 + 3))
            a("v_cvt_pk_bf16_f32 v%d, v%d, v%d" % (r0 + 2, r1, r1 + 1))
            a("v_cvt_pk_bf16_f32 v%d, v%d, v%d" % (r0 + 3, r1 + 2, r1 + 3))
            a("buffer_store_dwordx4 %s, v%d, s[%d:%d], s54 offen offset:%d" % (V(r0, 4), vX, rWS, rWS + 3, tt * 1024))
        if cp < 5: a("s_add_u32 s54, s54, %d" % KSTRIDE)

def k3(a):
    a("v_and_b32 v60, 63, v0")
    a("v_lshrrev_b32 v61, 6, v0")
    a("s_lshl_b32 s50, s2, 2")
    a("v_readfirstlane_b32 s%d, v61" % sWAVE)
    a("v_lshlrev_b32 v62, 4, v60")
    a("s_nop 2")
    a("s_add_u32 s50, s50, s%d" % sWAVE)
    a("s_lshl_b32 s54, s50, 10")
    a("s_add_u32 s54, s54, %d" % PART_OFF)
    a("s_and_b32 s51, s50, 127")
    a("s_lshr_b32 s52, s50, 7")
    a("s_mul_i32 s51, s51, %d" % (16 * 1152))
    a("s_lshl_b32 s52, s52, 6")
    a("s_add_u32 s51, s51, s52")
    a("v_and_b32 v63, 15, v60")
    a("v_mul_u32_u24 v63, 1152, v63")
    a("v_lshrrev_b32 v61, 4, v60")
    a("v_lshl_add_u32 v63, v61, 3, v63")
    a("s_waitcnt lgkmcnt(0)")
    srd(a, rWS, sWS, WS_BYTES)
    srd(a, rX, sX, 2048 * 1152)
    srd(a, rOUT, sOUT, 2048 * 1152)
    a.vmem("buffer_load_dwordx2 v[40:41], v63, s[%d:%d], s51 offen" % (rX, rX + 3), 10)
    a.vmem("buffer_load_dwordx2 v[42:43], v63, s[%d:%d], s51 offen offset:32" % (rX, rX + 3), 10)
    for r in range(10):
        a.vmem("buffer_load_dwordx4 %s, v62, s[%d:%d], s54 offen" % (V(4 * r, 4), rWS, rWS + 3), r)
        if r < 9: a("s_add_u32 s54, s54, %d" % PSL)
    a.wait_vm(lambda t: t == 10)
    for i in range(4):
        a("v_lshlrev_b32 v%d, 16, v%d" % (44 + 2 * i, 40 + i))
        a("v_and_b32 v%d, 0xffff0000, v%d" % (45 + 2 * i, 40 + i))
    for r in range(10):
        a.wait_vm(lambda t: t == r)
        for i in range(4):
            a("v_lshlrev_b32 v52, 16, v%d" % (4 * r + i))
            a("v_and_b32 v53, 0xffff0000, v%d" % (4 * r + i))
            a("v_add_f32 v%d, v%d, v52" % (44 + 2 * i, 44 + 2 * i))
            a("v_add_f32 v%d, v%d, v53" % (45 + 2 * i, 45 + 2 * i))
    for i in range(4):
        a("v_cvt_pk_bf16_f32 v%d, v%d, v%d" % (40 + i, 44 + 2 * i, 45 + 2 * i))
    a("buffer_store_dwordx2 v[40:41], v63, s[%d:%d], s51 offen" % (rOUT, rOUT + 3))
    a("buffer_store_dwordx2 v[42:43], v63, s[%d:%d], s51 offen offset:32" % (rOUT, rOUT + 3))

def build():
    a = Asm()
    ks = [("ln_kernel", k0_ln, 256, 1024, 64, 64), ("up_kernel", k1, 256, 147456, 512, 256),
          ("down_kernel", k2, 256, 147456, 512, 256), ("sum_kernel", k3, 576, 0, 64, 64)]
    for name, fn, grid, lds, nv, acc in ks:
        a.raw("; @launch kernel=%s grid=(%d,1,1) block=(256,1,1) lds=%d" % (name, grid, lds))
    a.raw('.amdgcn_target "amdgcn-amd-amdhsa--gfx950"')
    a.raw(".text")
    for name, fn, grid, lds, nv, acc in ks:
        kernel_begin(a, name)
        a.endlabel = "L_end_" + name
        a.vm = []; a.lg = []
        prologue(a, grid)
        fn(a)
        a.label(a.endlabel)
        a("s_endpgm")
    a.raw('.section .rodata,"a"')
    for name, fn, grid, lds, nv, acc in ks:
        a.raw(kernel_desc(name, nv, acc))
    return a.text()

if __name__ == "__main__":
    out = sys.argv[1] if len(sys.argv) > 1 else "parallel_sum__linear_attn_block__glu_gated_swiglu__prompt.s"
    open(out, "w").write(build())
```

```python
class Asm:
    def __init__(self):
        self.lines = []
        self.uid = 0
        self.vm = []
        self.lg = []
        self.n = 0
        self.cnt = {}
    def __call__(self, s):
        for l in s.strip("\n").split("\n"):
            l = l.strip()
            if not l:
                continue
            if l.endswith(":"):
                self.lines.append(l)
            else:
                if l.endswith(" lds") and self.lines and self.lines[-1].strip().startswith("s_add_u32 m0,"):
                    self.lines.append("    s_nop 0")
                self.lines.append("    " + l)
                self.n += 1
    def raw(self, s):
        self.lines.append(s)
    def cm(self, s):
        self.lines.append("    ; " + s)
    def label(self, name):
        self.lines.append(name + ":")
    def newlabel(self, base="L"):
        self.uid += 1
        return "%s_%d" % (base, self.uid)
    def text(self):
        return "\n".join(self.lines) + "\n"
    def vmem(self, s, tag=None):
        self(s); self.vm.append(tag); self.cnt[tag] = self.cnt.get(tag, 0) + 1
        assert len(self.vm) <= 63, "vmcnt overflow"
    def lds(self, s, tag=None):
        self(s); self.lg.append(tag); self.cnt[tag] = self.cnt.get(tag, 0) + 1
    def expect(self, tag, n):
        assert self.cnt.get(tag, 0) == n, ("not emitted yet", tag, self.cnt.get(tag, 0), n)
    def _need(self, q, pred):
        last = -1
        for i, t in enumerate(q):
            if pred(t): last = i
        return last
    def wait_vm(self, pred):
        last = self._need(self.vm, pred)
        if last < 0: return False
        n = len(self.vm) - 1 - last
        self("s_waitcnt vmcnt(%d)" % n)
        self.vm = self.vm[last + 1:]
        return True
    def wait_lg(self, pred):
        last = self._need(self.lg, pred)
        if last < 0: return False
        n = len(self.lg) - 1 - last
        if n > 15:
            n = 15; last = len(self.lg) - 1 - n
        self("s_waitcnt lgkmcnt(%d)" % n)
        self.lg = self.lg[last + 1:]
        return True
    def wait_all(self):
        self("s_waitcnt vmcnt(0) lgkmcnt(0)")
        self.vm = []; self.lg = []
    def vm0(self):
        self("s_waitcnt vmcnt(0)"); self.vm = []
    def lg0(self):
        self("s_waitcnt lgkmcnt(0)"); self.lg = []

def R(kind, base, n=1):
    if n == 1: return "%s%d" % (kind, base)
    return "%s[%d:%d]" % (kind, base, base + n - 1)
def V(b, n=1): return R("v", b, n)
def A(b, n=1): return R("a", b, n)
def S(b, n=1): return R("s", b, n)

def kernel_begin(a, name):
    a.raw(".globl %s" % name)
    a.raw(".p2align 8")
    a.raw(".type %s,@function" % name)
    a.raw("%s:" % name)

def kernel_desc(name, nvgpr, accum, nsgpr=102):
    return "\n".join([".p2align 6",
         ".amdhsa_kernel %s" % name,
         "  .amdhsa_next_free_vgpr %d" % nvgpr,
         "  .amdhsa_next_free_sgpr %d" % nsgpr,
         "  .amdhsa_accum_offset %d" % accum,
         "  .amdhsa_group_segment_fixed_size 0",
         "  .amdhsa_kernarg_size 80",
         "  .amdhsa_user_sgpr_count 2",
         "  .amdhsa_user_sgpr_kernarg_segment_ptr 1",
         "  .amdhsa_system_sgpr_workgroup_id_x 1",
         ".end_amdhsa_kernel"]) + "\n"

def srd(a, d, base, nbytes, bias=0):
    if bias:
        a("s_sub_u32 s%d, s%d, %d" % (d, base, bias))
        a("s_subb_u32 s%d, s%d, 0" % (d + 1, base + 1))
        a("s_and_b32 s%d, s%d, 0xffff" % (d + 1, d + 1))
    else:
        a("s_mov_b32 s%d, s%d" % (d, base))
        a("s_and_b32 s%d, s%d, 0xffff" % (d + 1, base + 1))
    a("s_mov_b32 s%d, 0x%x" % (d + 2, nbytes + bias))
    a("s_mov_b32 s%d, 0x20000" % (d + 3))

import struct
def f32(x):
    return "0x%08x" % struct.unpack("<I", struct.pack("<f", x))[0]
```

```python
import sys, math
from lib import *

NAME = "parallel_sum__linear_attn_block__glu_gated_swiglu__prompt_kernel"
LOG2E = 1.4426950408889634
KSTRIDE = 131072
H_OFF = 18 * KSTRIDE
KVP_OFF = H_OFF + 164 * KSTRIDE
PART_OFF = KVP_OFF + 8 * 8 * 4 * 6 * 1024
PSL = 18 * KSTRIDE
FLG_OFF = PART_OFF + 10 * PSL
ST_OFF = 0
CS_OFF = 0x10000
WS_BYTES = 268435456
OOB = 0x7f000000
LDS_BYTES = 163840
SC = "sc0 sc1"
def FL(line): return FLG_OFF + 128 * line
FH, FKV, FO, FP, FC = 16, 56, 64, 72, 96

sX, sWQKV, sWO, sW1, sW3, sW2, sOUT, sDBG, sWS = 4, 6, 8, 12, 14, 16, 18, 20, 22
rWS, rWA, rX, rW2, rWO = 24, 28, 36, 40, 44
sWAVE, sI, sXG, sC, sTOK = 48, 50, 51, 78, 79
sFI = 80
sXo, sWo, sXL, sOne2, sCSB, sFC, sROT = 32, 33, 34, 35, 82, 83, 81
MF = "v_mfma_f32_16x16x32_bf16"
MF16 = "v_mfma_f32_16x16x16_bf16"
WSR = "s[%d:%d]" % (rWS, rWS + 3)
XR = "s[%d:%d]" % (rX, rX + 3)
ONE2 = 0x3f803f80

VERB = False
class Cfg:
    stamp = False
    mapping = 0
    split = 12
    kseq = 6
    sset = 0
    swave = 0
    pf = 1
    rotc = 0
    vmrate = 85
    epirate = 4.0
    age = 8
    sbase = 0
    sstep = 2
    exb = 9
    edl = 36
    late = 0
    relper = 4
    pfat = -2
CFG = Cfg()

def stamp(a, i, sset=0):
    if CFG.stamp and (sset == CFG.sset or i in (3, 15)):
        a("s_memrealtime s[100:101]")
        a.lg0()
        a("s_mov_b32 s%d, s100" % (84 + i))
def stamp_out(a):
    if not CFG.stamp: return
    a("s_waitcnt vmcnt(0)")
    stamp(a, 15)
    l = a.newlabel("Lst")
    a("s_cmp_lg_u32 s%d, %d" % (sWAVE, CFG.swave))
    a("s_cbranch_scc1 %s" % l)
    a("s_lshl_b32 s3, s2, 6")
    a("s_add_u32 s3, s3, 0xF000000")
    a("v_mov_b32 v1, s3")
    a("s_mov_b64 exec, 1")
    for i in range(8):
        a("v_mov_b32 v2, s%d" % (84 + 2 * i))
        a("v_mov_b32 v3, s%d" % (85 + 2 * i))
        a("global_store_dwordx2 v1, v[2:3], s[%d:%d] offset:%d" % (sWS, sWS + 1, i * 8))
    a.label(l)

vL, vX, vFS, vFP, vTK, vPL = 174, 175, 216, 217, 218, 219

NOPS = {"w": 2, "x": 8, "xr": 16, "csa": 2, "cs": 1, "h": 4, "w2": 2, "h2": 4, "part": 4, "ex": 8, "o": 12, "stf": 4}
def chk(a, tag, **over):
    k = tag if isinstance(tag, str) else tag[0]
    a.expect(tag, over.get(k, NOPS.get(k, 1)))
def wvm(a, tags, **over):
    for t in tags: chk(a, t, **over)
    a.wait_vm(lambda t: t in tags)
def wlg(a, tags):
    for t in tags: chk(a, t)
    a.wait_lg(lambda t: t in tags)

def I(a, s, c=1):
    def fn(): a(s)
    fn.code = s
    return (c, fn)
def Q(a, code):
    out = []; ls = [l.strip() for l in code.split("\n") if l.strip()]
    i = 0
    while i < len(ls):
        grp = [ls[i]]
        if ls[i].startswith(("s_cmp", "s_bitcmp")):
            while i + 1 < len(ls) and ls[i + 1].startswith(("s_cmov", "s_cselect")):
                i += 1; grp.append(ls[i])
        out.append(I(a, "\n".join(grp), len(grp)))
        i += 1
    return out
def VM(a, fmt, tag=None):
    def fn(): a.vmem(fmt() if callable(fmt) else fmt, tag)
    fn.vm = True
    return (1, fn)
def run(fns):
    for c, fn in fns: fn()

def signal(a, soff_code, tag=None):
    return [I(a, soff_code),
            (1, lambda: a.vmem("buffer_store_dword v%d, v%d, %s, s49 offen %s" % (vTK, vFS, WSR, SC), tag))]

LATER = []
NSLOW = []
def slow_path(a, body, name):
    ls, lb, lp = a.newlabel("Lslow"), a.newlabel("Lback"), a.newlabel("Lspin")
    a("s_cbranch_scc1 %s" % ls)
    a.label(lb)
    b = Asm()
    b.label(ls)
    b("s_mov_b32 s59, 40000")
    if CFG.stamp:
        NSLOW.append(name)
        b("s_or_b32 s85, s85, 0x%x" % (1 << (len(NSLOW) - 1)))
    b.label(lp)
    b("s_sleep 1")
    body(b)
    b("s_cbranch_scc0 %s" % lb)
    b("s_sub_u32 s59, s59, 1")
    b("s_cmp_lg_u32 s59, 0")
    b("s_cbranch_scc1 %s" % lp)
    b("s_branch %s" % lb)
    LATER.extend(b.lines)
def poll_issue(a, soff_code, tag, dst=None):
    return [I(a, soff_code),
            (1, lambda: a.vmem("buffer_load_dword v%d, v%d, %s, s49 offen %s" % (dst or vPL, vFP, WSR, SC), tag))]
def poll_check(a, soff_code, tag, mask, dst=None):
    def f1():
        wvm(a, [tag])
        a("v_cmp_eq_u32 vcc, s%d, v%d" % (sTOK, dst or vPL))
    def f2():
        d = dst or vPL
        a("s_andn2_b32 s61, %s, vcc_lo" % mask)
        def body(b):
            b(soff_code)
            b("buffer_load_dword v%d, v%d, %s, s49 offen %s" % (d, vFP, WSR, SC))
            b("s_waitcnt vmcnt(0)")
            b("v_cmp_eq_u32 vcc, s%d, v%d" % (sTOK, d))
            b("s_andn2_b32 s61, %s, vcc_lo" % mask)
        slow_path(a, body, str(tag))
    return [(2, f1), (2, f2)]
def poll_now(a, soff_code, mask):
    tag = ("poll", a.newlabel())
    run(poll_issue(a, soff_code, tag))
    run(poll_check(a, soff_code, tag, mask))

def stats_load(a):
    a("s_lshl_b32 s52, s2, 2")
    a("s_add_u32 s52, s52, s%d" % sWAVE)
    a("v_lshrrev_b32 v40, 5, v%d" % vL)
    a("v_lshl_add_u32 v40, s52, 1, v40")
    a("v_mul_u32_u24 v41, 1152, v40")
    a("v_and_b32 v42, 31, v%d" % vL)
    a("v_lshl_add_u32 v43, v42, 4, v41")
    a("v_cmp_gt_u32 s[60:61], 8, v42")
    a("v_mov_b32 v45, 0x%x" % OOB)
    a.vmem("buffer_load_ushort v46, v41, %s, 0 offen" % XR, "ln")
    a.vmem("buffer_load_dwordx4 v[0:3], v43, %s, 0 offen" % XR, "ln")
    a("v_cndmask_b32 v44, v45, v43, s[60:61]")
    a.vmem("buffer_load_dwordx4 v[4:7], v43, %s, 0 offen offset:512" % XR, "ln")
    a.vmem("buffer_load_dwordx4 v[8:11], v44, %s, 0 offen offset:1024" % XR, "ln")
    a("v_cmp_eq_u32 vcc, 0, v42")
    a("v_cndmask_b32 v47, 0, -1, s[60:61]")
    a("v_lshlrev_b32 v40, 4, v40")
    a("v_cndmask_b32 v40, v45, v40, vcc")
def stats_compute(a):
    a.wait_vm(lambda t: t == "ln")
    a("v_lshlrev_b32 v46, 16, v46")
    a("v_and_b32 v47, v47, v46")
    D = 12
    for r in range(12):
        a("v_lshlrev_b32 v%d, 16, v%d" % (D + 2 * r, r))
        a("v_and_b32 v%d, 0xffff0000, v%d" % (D + 1 + 2 * r, r))
    for r in range(24):
        a("v_sub_f32 v%d, v%d, v%d" % (D + r, D + r, 46 if r < 16 else 47))
    a("v_pk_mul_f32 v[2:3], v[12:13], v[12:13]")
    a("v_pk_add_f32 v[0:1], v[12:13], v[14:15]")
    a("v_pk_fma_f32 v[2:3], v[14:15], v[14:15], v[2:3]")
    for r in range(4, 24, 2):
        a("v_pk_add_f32 v[0:1], v[0:1], v[%d:%d]" % (D + r, D + r + 1))
        a("v_pk_fma_f32 v[2:3], v[%d:%d], v[%d:%d], v[2:3]" % (D + r, D + r + 1, D + r, D + r + 1))
    a("v_add_f32 v0, v0, v1")
    a("v_add_f32 v1, v2, v3")
    for ror in (1, 2, 4, 8):
        a("s_nop 1")
        a("v_add_f32_dpp v0, v0, v0 row_ror:%d row_mask:0xf bank_mask:0xf" % ror)
        a("v_add_f32_dpp v1, v1, v1 row_ror:%d row_mask:0xf bank_mask:0xf" % ror)
    a("v_mov_b32 v2, v0")
    a("v_mov_b32 v3, v1")
    a("s_waitcnt lgkmcnt(0)")
    a("s_add_u32 s%d, s%d, 1" % (sTOK, sTOK))
    a("v_permlane16_swap_b32 v0, v2")
    a("v_permlane16_swap_b32 v1, v3")
    a("v_mov_b32 v%d, s%d" % (vTK, sTOK))
    a("s_mov_b32 s49, %d" % ST_OFF)
    a("v_add_f32 v0, v0, v2")
    a("v_add_f32 v1, v1, v3")
    a("v_mul_f32 v0, %s, v0" % f32(1.0 / 576))
    a("v_mul_f32 v1, %s, v1" % f32(1.0 / 576))
    a("v_fma_f32 v1, -v0, v0, v1")
    a("v_max_f32 v1, 0, v1")
    a("v_add_f32 v0, v0, v46")
    a("v_cvt_pk_bf16_f32 v1, v1, v1")
    a("v_cvt_pk_bf16_f32 v4, -v0, -v0")
    a("v_and_b32 v1, 0xffff0000, v1")
    a("v_add_f32 v1, %s, v1" % f32(1e-5))
    a("v_cvt_pk_bf16_f32 v1, v1, v1")
    a("v_and_b32 v1, 0xffff0000, v1")
    a("v_sqrt_f32 v1, v1")
    a("v_mov_b32 v5, s%d" % sTOK)
    a("v_mov_b32 v7, s%d" % sTOK)
    a("v_cvt_pk_bf16_f32 v1, v1, v1")
    a("v_and_b32 v6, 0xffff0000, v1")
    a.vmem("buffer_store_dwordx4 v[4:7], v40, %s, s49 offen %s" % (WSR, SC), "st")

def lane_fields(a, vq, vrow, vc):
    a("v_lshrrev_b32 v%d, 4, v%d" % (vq, vL))
    a("v_bfe_u32 v%d, v%d, 2, 3" % (vrow, vL))
    a("v_and_b32 v%d, 3, v%d" % (vc, vL))

def dma_lane_off(a, vD, t0, t1, rowbytes):
    return [I(a, "v_lshrrev_b32 v%d, 3, v%d" % (t0, vL)),
            I(a, "v_and_b32 v%d, 6, v%d" % (t1, t0)),
            I(a, "v_xor_b32 v%d, v%d, v%d" % (t1, t1, vL)),
            I(a, "v_and_b32 v%d, 7, v%d" % (t1, t1)),
            I(a, "v_mul_u32_u24 v%d, %d, v%d" % (t0, rowbytes, t0)),
            I(a, "v_lshl_add_u32 v%d, v%d, 4, v%d" % (vD, t1, t0))]

RA = 160
def tr_addrs(a, t0, t1, t2):
    lane_fields(a, t0, t1, t2)
    a("v_lshrrev_b32 v%d, 1, v%d" % (t0, t0))
    a("v_lshlrev_b32 v%d, 10, v%d" % (t0, t0))
    a("v_lshl_add_u32 v%d, v%d, 7, v%d" % (t0, t1, t0))
    a("v_lshl_add_u32 v%d, v%d, 3, v%d" % (t0, t2, t0))
    a("v_lshrrev_b32 v%d, 1, v%d" % (t1, t1))
    for u in range(4):
        a("v_xor_b32 v%d, %d, v%d" % (t2, u, t1))
        a("v_lshl_add_u32 v%d, v%d, 5, v%d" % (RA + u, t2, t0))
        a("v_add_u32 v%d, 0x10000, v%d" % (RA + 4 + u, RA + u))
        a("v_add_u32 v%d, 0x20000, v%d" % (RA + 8 + u, RA + u))

class XStage:
    def __init__(self, a, XO, XA, base, R, reg):
        self.a, self.XO, self.XA, self.base, self.R, self.reg = a, XO, XA, base, R, reg
    def setup_dma(self, t0, t1):
        a = self.a
        a("v_lshrrev_b32 v%d, 3, v%d" % (t0, vL))
        a("v_lshrrev_b32 v%d, 1, v%d" % (t1, t0))
        a("v_xor_b32 v%d, v%d, v%d" % (t1, t1, vL))
        a("v_and_b32 v%d, 7, v%d" % (t1, t1))
        a("s_lshl_b32 s52, s%d, 8" % sI)
        a("s_lshl_b32 s49, s%d, 6" % sWAVE)
        a("s_add_u32 s52, s52, s49")
        a("v_add_u32 v%d, s52, v%d" % (t0, t0))
        a("v_mul_u32_u24 v%d, 1152, v%d" % (t0, t0))
        a("v_lshl_add_u32 v%d, v%d, 4, v%d" % (self.XO, t1, t0))
        a("v_xor_b32 v%d, 64, v%d" % (self.XO + 1, self.XO))
        a("v_add_u32 v%d, %d, v%d" % (self.XO + 2, 2 * (8 * 1152 - 1024), self.XO))
        a("v_add_u32 v%d, %d, v%d" % (self.XO + 3, 3 * (8 * 1152 - 1024), self.XO + 1))
        a("v_add_u32 v%d, %d, v%d" % (self.XO + 1, 8 * 1152 - 1024, self.XO + 1))
        a("s_mul_i32 s%d, s%d, %d" % (sXL, sWAVE, self.R * 8192))
        a("s_add_u32 s%d, s%d, %d" % (sXL, sXL, self.base))
        a("s_lshl_b32 s%d, s%d, 7" % (sXo, sROT))
    def setup_read(self, t0, t1, t2):
        a = self.a
        a("v_and_b32 v%d, 15, v%d" % (t0, vL))
        a("v_lshrrev_b32 v%d, 1, v%d" % (t1, t0))
        a("v_lshrrev_b32 v%d, 5, v%d" % (t2, vL))
        a("v_xor_b32 v%d, v%d, v%d" % (t1, t1, t2))
        a("v_lshlrev_b32 v%d, 7, v%d" % (t0, t0))
        a("v_lshl_add_u32 v%d, v%d, 4, v%d" % (t0, t1, t0))
        a("v_bfe_u32 v%d, v%d, 4, 1" % (t2, vL))
        a("v_lshl_add_u32 v%d, v%d, 3, v%d" % (t0, t2, t0))
        a("v_add_u32 v%d, s%d, v%d" % (self.XA, sXL, t0))
        for k in range(1, 4):
            a("v_xor_b32 v%d, %d, v%d" % (self.XA + k, 32 * k, self.XA))
    def dma(self, p):
        a = self.a
        fns = []
        if p >= self.R: fns.append((1, lambda: wlg(a, [("xr", p - self.R)])))
        for hf in range(2):
            fns.append(I(a, "s_add_u32 m0, s%d, %d" % (sXL, (p % self.R) * 8192 + hf * 4096)))
            fns.append(I(a, "s_add_u32 s54, s%d, %d" % (sXo, hf * 32 * 1152)))
            for b in range(4):
                fns.append(VM(a, "buffer_load_dwordx4 v%d, %s, s54 offen offset:%d lds" % (self.XO + b, XR, b * 1024), ("x", p)))
        fns.append(I(a, "s_add_u32 s%d, s%d, 128\ns_cmp_ge_u32 s%d, 1152\ns_cmov_b32 s%d, 0" % (sXo, sXo, sXo, sXo), 3))
        return fns
    def job(self, p):
        return ("x", lambda: p < self.R or self.a.cnt.get(("xr", p - self.R), 0) == 16, lambda: self.dma(p))
    def reads(self, p):
        a = self.a
        fns = [(1, lambda: wvm(a, [("x", p)]))]
        for e in range(2):
            for tt in range(4):
                for h in range(2):
                    k, b = self.reg(2 * p + e, tt)
                    fns.append((1, lambda k=k, b=b, e=e, tt=tt, h=h: a.lds("ds_read_b64 %s, v%d offset:%d" % (R(k, b + 2 * h, 2), self.XA + 2 * e + h, (p % self.R) * 8192 + tt * 2048), ("xr", p))))
        return fns

class Stream:
    def __init__(self, a, kind, base):
        self.a, self.kind, self.base = a, kind, base
        self.slots = []; self.ring = []
        self.nring = 0
        self.next_rd = 0
        self.epi = []; self.deadline = 0; self.epiP = None
        self.extra = []
        self.vmacc = 1.0; self.vmrate = CFG.vmrate / 100.0
        self.jobs = []; self.mem = []
        self.pos = 0
    def refill(self):
        if self.mem: return
        blocked = set()
        for j, (cl, ready, make) in enumerate(self.jobs):
            if cl in blocked: continue
            if len(self.a.vm) <= 50 and ready():
                self.mem = make(); self.jobs.pop(j); return
            blocked.add(cl)
    def head(self, q):
        if q and "\n" in getattr(q[0][1], "code", "") and not getattr(q[0][1], "atom", False):
            parts = Q(self.a, q[0][1].code)
            for c, f in parts: f.atom = True
            q[0:1] = parts
        return q[0] if q else None
    def add(self, rd, mf):
        self.slots.append((rd, mf))
        self.ring.append(self.nring if rd else None)
        if rd: self.nring += 1
    def cur_ring(self, s):
        while s < len(self.slots) and self.ring[s] is None: s += 1
        return self.ring[s] if s < len(self.slots) else self.nring
    def read_limit(self, s):
        r = self.cur_ring(s)
        return (r & ~3) + 3 + min(2 * ((r & 3) + 1), 4)
    def pending_reads(self, lim):
        out = []
        while self.next_rd < len(self.slots):
            n = self.next_rd
            if self.ring[n] is None: self.next_rd += 1; continue
            if self.ring[n] > lim: break
            out += self.slots[n][0](self.kind, self.base + 4 * (self.ring[n] % 8), ("f", self.ring[n]))
            self.next_rd += 1
        return out
    def prime(self): run(self.pending_reads(self.cur_ring(self.pos) | 3))
    def epi_cost(self): return sum(c for c, _ in self.epi)
    def emit(self, pre=(), push=0):
        a = self.a
        s = self.pos
        rd, mf = self.slots[s]
        r = self.ring[s]
        if r is not None and ("f", r) in a.lg:
            a.wait_lg(lambda t: t is not None and t[0] == "f" and t[1] <= (r | 3))
        must = list(pre) + self.pending_reads(self.read_limit(s))
        mfmas = mf(R(self.kind, self.base + 4 * (r % 8), 4) if r is not None else None)
        n = len(mfmas)
        nr = self.ring[s + 1] if s + 1 < len(self.slots) else None
        caps = [2] * n
        if nr is not None and nr % 4 == 0: caps[-1] -= 1
        force = 0
        if self.epi:
            left = max(self.deadline - s, 1)
            force = self.epi_cost() - int((left - 1) * CFG.epirate) if n == 4 or left == 1 else 0
            if left * CFG.epirate < self.epi_cost(): force = math.ceil(self.epi_cost() / left) if n == 4 or left == 1 else 0
        self.vmacc = min(self.vmacc + (self.vmrate if n == 4 else 0), 2.0)
        mpush = 0
        if force > 0 and n == 4:
            if self.extra: push = max(push, 2)
            self.refill() if not pre else None
            if self.mem and self.vmacc >= 1: mpush = 2
        over = max(0, sum(c for c, _ in must) + max(force, 0) + push + mpush - sum(caps))
        for g in range(over): caps[g % n] += 1
        for g, m in enumerate(mfmas):
            a(m)
            cap = caps[g]
            while True:
                if must:
                    if must[0][0] <= cap or g == n - 1 or cap == caps[g]:
                        c, f = must.pop(0); f(); cap -= c; continue
                cands = []
                if n == 4 and push > 0: cands.append("extra")
                if n == 4 and mpush > 0: cands.append("mem")
                if force > 0 and self.epi: cands.append("epi")
                if n == 4: cands += ["mem", "extra", "epi"]
                done = False
                for q in cands:
                    if q == "mem":
                        if must or pre and g == 0: continue
                        self.refill()
                    if q == "extra" and (must or (pre and g == 0)): continue
                    lst = getattr(self, q)
                    h = self.head(lst)
                    if h is None: continue
                    vm = getattr(h[1], "vm", False)
                    if q == "mem" and vm and self.vmacc < 1: continue
                    if h[0] <= cap or (h[0] > 2 and cap == caps[g]) or (q == "epi" and force > 0 and g == n - 1):
                        lst.pop(0); h[1](); cap -= h[0]
                        if vm: self.vmacc -= 1
                        if q == "epi": force -= h[0]
                        if q == "extra": push -= h[0]
                        if q == "mem": mpush -= h[0]
                        done = True; break
                if not done: break
        self.pos += 1

def tr_read(a, off_fn, u):
    def rd(kind, reg, tag):
        off = off_fn()
        return [(1, lambda h=h: a.lds("ds_read_b64_tr_b16 %s, v%d offset:%d" % (R(kind, reg + 2 * h, 2), RA + 4 * (off >> 16) + u, (off & 0xffff) + h * 2048), tag)) for h in range(2)]
    return rd

WF = 128
HRING = 10
GORDER = [2, 1, 0]
def acc2(c, tt):
    g, k = c >> 2, c & 3
    if k >= 2: return ("a", 160 + 32 * g + 16 * (k - 2) + 4 * tt)
    return ("v", (32 * g if g < 2 else 224) + 16 * k + 4 * tt)
def hr(st, tt): return A(16 * (st % HRING) + 4 * tt, 4)
sPX = 56
vEW, vER = 195, 196

class P2:
    def __init__(self, a, steps, VO, VS, VX):
        self.a = a; self.steps = steps; self.VO = VO; self.VS = VS; self.VX = VX
        self.loc = {}
        self.free = []
        self.visible = set()
        self.cur = 0
        self.swapped = False
        NS, K = len(steps), CFG.kseq
        self.order = [(st, c) for st in range(NS - K) for c in range(12)]
        self.seq0 = len(self.order)
        for g in GORDER:
            self.order += [(st, c) for st in range(NS - K, NS) for c in range(4 * g, 4 * g + 4)]
        self.units = []
        for st, c in self.order:
            if (st, c >> 2) not in self.units: self.units.append((st, c >> 2))
    def setup_s(self):
        a = self.a
        srd(a, rW2, sW2, 4608 * 1152)
        srd(a, rWO, sWO, 576 * 1152)
        a("s_lshl_b32 s66, s%d, 11" % sWAVE)
    def setup_vo(self, t0, t1, half_code):
        a = self.a
        return dma_lane_off(a, self.VO, t0, t1, 1152) + Q(a, """s_mul_i32 s52, s68, 384
            s_and_b32 s60, s{W}, 1
            s_mul_i32 s60, s60, {R16}
            s_add_u32 s52, s52, s60
            v_add_u32 v{VO}, s52, v{VO}
            v_add_u32 v{VO1}, {D}, v{VO}
            {HALF}
            s_lshl1_add_u32 s52, s{I}, s52
            s_and_b32 s60, s{W}, 1
            s_lshl1_add_u32 s52, s52, s60
            s_lshl_b32 s52, s52, 12
            v_lshl_add_u32 v{VX}, v{L}, 4, s52""".format(W=sWAVE, R16=16 * 1152, VO=self.VO, VO1=self.VO + 1, D=8 * 1152 - 1024, HALF=half_code, I=sI, VX=self.VX, L=vL))
    def setup_special(self, t0, t1, t3):
        a = self.a
        for k in range(2):
            a("s_and_b32 s49, s%d, 1" % sWAVE)
            a("s_lshl_b32 s49, s49, 4")
            a("v_lshrrev_b32 v%d, 3, v%d" % (t0, vL))
            a("v_add3_u32 v%d, s49, v%d, %d" % (t0, t0, 8 * k))
            a("v_lshrrev_b32 v%d, 4, v%d" % (t1, t0))
            a("v_mul_u32_u24 v%d, 72, v%d" % (t1, t1))
            a("v_bfe_u32 v%d, v%d, 2, 2" % (t3, t0))
            a("v_lshl_add_u32 v%d, v%d, 4, v%d" % (t1, t3, t1))
            a("v_lshrrev_b32 v%d, 1, v%d" % (t3, t3))
            a("v_lshl_add_u32 v%d, v%d, 2, v%d" % (t1, t3, t1))
            a("v_and_b32 v%d, 3, v%d" % (t3, t0))
            a("v_add3_u32 v%d, v%d, v%d, 16" % (t1, t1, t3))
            a("v_sub_u32 v%d, v%d, v%d" % (t1, t1, t0))
            a("v_mul_u32_u24 v%d, 1152, v%d" % (t1, t1))
            a("v_add_u32 v%d, v%d, v%d" % (self.VS + k, self.VO + k, t1))
    def h_issue(self, st):
        a = self.a
        pl, row, kind = self.steps[st]
        fns = [I(a, "s_add_u32 s54, s%d, %d" % (62 if kind == "w2" else 64, pl * KSTRIDE))]
        for tt in range(4):
            fns.append(VM(a, "buffer_load_dwordx4 %s, v%d, %s, s54 offen offset:%d %s" % (hr(st, tt), self.VX, WSR, tt * 1024, SC), ("h2", st)))
        return fns
    def dma_issue(self, st, ln):
        a = self.a
        pl, row, kind = self.steps[st]
        r = rW2 if kind == "w2" else rWO
        vo = self.VS if kind == "wos" else self.VO
        sl = self.free.pop(0)
        self.loc[(st, ln)] = sl
        return [I(a, "s_add_u32 m0, s66, %d" % (sl * 8192)),
                I(a, "s_add_u32 s55, s%d, %d" % (63 if kind == "w2" else 65, row * 1152 + ln * 128)),
                VM(a, "buffer_load_dwordx4 v%d, s[%d:%d], s55 offen lds" % (vo, r, r + 3), ("w2", st, ln)),
                VM(a, "buffer_load_dwordx4 v%d, s[%d:%d], s55 offen offset:1024 lds" % (vo + 1, r, r + 3), ("w2", st, ln))]
    def jobs(self, first, w_ok, h_ok):
        out = []; hs = set(range(first))
        for st, ln in self.units:
            if st < first: continue
            if st not in hs:
                hs.add(st)
                out.append(("h2", lambda st=st: st - HRING < self.cur and h_ok(st), lambda st=st: self.h_issue(st)))
            out.append(("w2", lambda st=st: len(self.free) > self.reserve and w_ok(st), lambda st=st, ln=ln: self.dma_issue(st, ln)))
        return out
    reserve = 0
    def add_slots(self, S_):
        a = self.a
        self.s0 = len(S_.slots)
        fixed = set()
        for st, c in self.order:
            def rd(kind, reg, tag, st=st, c=c):
                assert (st, c >> 2) in self.visible, (st, c)
                off = self.loc[(st, c >> 2)] * 8192
                ra = RA + 4 * (off >> 16) + (c & 3)
                out = []
                if ra not in fixed:
                    fixed.add(ra); out.append(I(a, "v_xor_b32 v%d, s%d, v%d" % (ra, sPX, ra)))
                return out + tr_read(a, lambda: off, c & 3)(kind, reg, tag)
            def mf(w, st=st, c=c):
                return ["%s %s, %s, %s, %s" % (MF, R(*acc2(c, tt), 4), w, hr(st, tt), "0" if st == 0 else R(*acc2(c, tt), 4)) for tt in range(4)]
            S_.add(rd, mf)
    def exchange(self, g, slots):
        a = self.a
        send = []; fin = []
        def adj(q, reg, cur, want):
            if cur[0] != want: q.append(I(a, "v_add_u32 v%d, 0x%x, v%d" % (reg, (want - cur[0]) & 0xffffffff, reg))); cur[0] = want
        slots = sorted(slots)
        for k in range(8):
            off = slots[k >> 1] * 8192 + (k & 1) * 4096
            adj(send, vEW, self.ew, off & ~0xffff)
            send.append((3, lambda k=k, off=off: a.lds("ds_write_b128 v%d, %s offset:%d" % (vEW, R(*acc2(4 * g + 2 + (k & 1), k >> 1), 4), off & 0xffff), ("ex", g))))
            adj(fin, vER, self.er, off & ~0xffff)
            fin.append((1, lambda k=k, off=off: a.lds("ds_read_b128 %s, v%d offset:%d" % (V(64 + 4 * k, 4), vER, off & 0xffff), ("er", g, k >> 1))))
        fin.append(I(a, "s_add_u32 s58, s67, %d" % (2 * g * KSTRIDE)))
        for tt in range(4):
            r0, r1 = acc2(4 * g, tt)[1], acc2(4 * g + 1, tt)[1]
            fin.append((1, lambda tt=tt: a.wait_lg(lambda t: t == ("er", g, tt))))
            for i in range(4): fin.append(I(a, "v_add_f32 v%d, v%d, v%d" % (r0 + i, r0 + i, 64 + 8 * tt + i)))
            for i in range(4): fin.append(I(a, "v_add_f32 v%d, v%d, v%d" % (r1 + i, r1 + i, 68 + 8 * tt + i)))
            for d, s0 in ((r0, r0), (r0 + 1, r0 + 2), (r0 + 2, r1), (r0 + 3, r1 + 2)):
                fin.append(I(a, "v_cvt_pk_bf16_f32 v%d, v%d, v%d" % (d, s0, s0 + 1)))
            fin.append(VM(a, "buffer_store_dwordx4 %s, v%d, %s, s58 offen offset:%d %s" % (V(r0, 4), self.VX, WSR, tt * 1024, SC), ("part", g)))
        return send, fin
    def main(self, S_, hooks, dead0):
        a = self.a
        NS, K = len(self.steps), CFG.kseq
        PL = 4 * K
        seen = set()
        self.ew = [0]; self.er = [0]
        def psig(k): return signal(a, "s_add_u32 s49, s69, %d" % (128 * (FP + 8 * k)))
        poff = "s_add_u32 s49, s%d, %d" % (sFI, 128 * FP)
        bars = [s for s, (st, c) in enumerate(self.order) if s < self.seq0 and c == 7]
        for ps in range(3): bars += [self.seq0 + ps * PL + x for x in (2, CFG.exb, PL - 9)]
        last = {}
        for s, (st, c) in enumerate(self.order): last[(st, c >> 2)] = s
        freed = set()
        pend_fin = None
        for s, (st, c) in enumerate(self.order):
            if st not in seen:
                seen.add(st)
                self.cur = st
                if VERB: a.cm("HS p2 step %d" % st)
                if st < 11: stamp(a, 4 + st, 3)
                wvm(a, [("h2", st)])
                if st in (0, 8): stamp(a, 10 + st // 8)
            pre = []
            r = s - self.seq0
            if s in bars:
                nxt = min([b for b in bars if b > s] + [len(self.order)])
                lim = S_.read_limit(self.s0 + nxt - 1) - S_.ring[self.s0]
                need = []
                for st2, c2 in self.order[:lim + 1]:
                    u = (st2, c2 >> 2)
                    if u not in self.visible and u not in need: need.append(u)
                hk = hooks.get(st, {}) if r < 0 else {}
                tags = [("w2",) + u for u in need] + hk.get("bar", [])
                lg = []
                aft = list(hk.get("after", []))
                dead = [u for u in last if last[u] < s and u not in freed]
                newfree = [self.loc[u] for u in dead] + (dead0 if s == bars[0] else [])
                if r >= PL and r % PL == 2:
                    g = GORDER[r // PL - 1]
                    assert not S_.epi
                    newfree = self.free + newfree; self.free = []
                    self.scratch = newfree[:4]; newfree = newfree[4:]
                    send, pend_fin = self.exchange(g, self.scratch)
                    S_.epi = send; S_.deadline = S_.pos + CFG.exb - 3
                if r >= PL and r % PL == CFG.exb:
                    assert not S_.epi
                    lg.append(("ex", GORDER[r // PL - 1]))
                    S_.epi = [(2, lambda: None)] + pend_fin; S_.deadline = S_.pos + PL - CFG.exb - 2
                if r == 2 * PL + CFG.exb:
                    tags.append(("part", GORDER[0])); aft += psig(0)
                if tags or lg or aft or (newfree and S_.jobs) or (r >= PL and r % PL == 2):
                    def bar(tags=tags, lg=lg):
                        wlg(a, lg); wvm(a, tags)
                        a("s_barrier")
                    pre.append((2, bar))
                    self.visible.update(need); freed.update(dead); self.free += newfree
                    S_.extra += aft
            if r == 4: S_.extra += fin_setup(a)
            S_.emit(pre)
        assert not S_.extra and not S_.epi and not S_.jobs and not S_.mem
        stamp(a, 12)
        send, fin = self.exchange(GORDER[2], self.free[:4])
        run(poll_issue(a, poff, "plp"))
        a("s_nop 3")
        run(send)
        wlg(a, [("ex", GORDER[2])])
        a("s_barrier")
        run(fin)
        wvm(a, [("part", GORDER[1])])
        a("s_barrier")
        run(psig(1))
        run(poll_check(a, poff, "plp", "s73"))
        fin_loads(a, 0)
        wvm(a, [("part", GORDER[2])])
        a("s_barrier")
        run(psig(2))
        stamp(a, 13)

NSL = 5
PB = [96, 116, 32]
XB, SUM = 144, 224
vFA, vFB = 192, 193
def fin_setup(a):
    code = """s_lshl_b32 s52, s{XG}, 2
    s_add_u32 s52, s52, s{C}
    s_lshr_b32 s73, s52, 1
    s_lshl_b32 s74, s{I}, 4
    s_add_u32 s73, s73, s74
    s_and_b32 s52, s52, 1
    s_mul_i32 s74, s{W}, 6
    s_add_u32 s52, s52, s74
    s_lshl_b32 s74, s52, 17
    s_lshl_b32 s75, s73, 10
    s_add_u32 s74, s74, s75
    s_add_u32 s74, s74, {PART}
    s_mul_i32 s75, s73, {ROW}
    s_lshl_b32 s52, s52, 6
    s_add_u32 s75, s75, s52
    v_lshlrev_b32 v{FA}, 4, v{L}
    v_and_b32 v{FB}, 15, v{L}
    v_mul_u32_u24 v{FB}, 1152, v{FB}
    v_lshrrev_b32 v194, 4, v{L}
    v_lshl_add_u32 v{FB}, v194, 3, v{FB}
    s_lshr_b32 s52, s{XG}, 2
    s_mul_i32 s52, s52, 3
    s_lshl_b32 s73, 0x071c71c7, s52
    s_lshl_b32 s52, s{W}, 10
    v_add_u32 v{EW}, s52, v{FA}
    v_xor_b32 v{ER}, 0x800, v{EW}
    s_mov_b32 s76, 0x3f80
    s_mov_b32 s77, 0x3f800000""".format(EW=vEW, ER=vER, XG=sXG, C=sC, I=sI, W=sWAVE, PART=PART_OFF, ROW=16 * 1152, FA=vFA, FB=vFB, L=vL)
    q = [I(a, l) for l in code.split("\n")]
    q.append(I(a, "s_cmp_eq_u32 s%d, 3\ns_cmov_b32 s74, 0x%x\ns_cmov_b32 s75, 0x%x" % (sWAVE, OOB, OOB), 3))
    q.append((4, lambda: srd(a, rWA, sOUT, 2048 * 1152)))
    return q
def fin_loads(a, k):
    g = GORDER[k]
    a.vmem("buffer_load_dwordx2 %s, v%d, %s, s75 offen offset:%d" % (V(XB + 4 * k, 2), vFB, XR, 128 * g), ("x3", k))
    a.vmem("buffer_load_dwordx2 %s, v%d, %s, s75 offen offset:%d" % (V(XB + 4 * k + 2, 2), vFB, XR, 128 * g + 32), ("x3", k))
    a("s_add_u32 s58, s74, %d" % (2 * g * KSTRIDE))
    for r in range(NSL):
        a.vmem("buffer_load_dwordx4 %s, v%d, %s, s58 offen %s" % (V(PB[k] + 4 * r, 4), vFA, WSR, SC), ("p", k, r))
        if r < NSL - 1: a("s_add_u32 s58, s58, %d" % PSL)
def fin_sum(a, k):
    g = GORDER[k]
    OR = "s[%d:%d]" % (rWA, rWA + 3)
    a.wait_vm(lambda t: t == ("x3", k))
    for i in range(4):
        a("v_lshlrev_b32 v%d, 16, v%d" % (SUM + 8 * k + 2 * i, XB + 4 * k + i))
        a("v_and_b32 v%d, 0xffff0000, v%d" % (SUM + 8 * k + 2 * i + 1, XB + 4 * k + i))
    for r in range(NSL):
        a.wait_vm(lambda t: t == ("p", k, r))
        for i in range(4):
            p = PB[k] + 4 * r + i
            s_ = SUM + 8 * k + 2 * i
            a("v_dot2_f32_bf16 v%d, v%d, s76, v%d" % (s_, p, s_))
            a("v_dot2_f32_bf16 v%d, v%d, s77, v%d" % (s_ + 1, p, s_ + 1))
    a("s_nop 2")
    for i in range(4):
        a("v_cvt_pk_bf16_f32 v%d, v%d, v%d" % (XB + 4 * k + i, SUM + 8 * k + 2 * i, SUM + 8 * k + 2 * i + 1))
    a.vmem("buffer_store_dwordx2 %s, v%d, %s, s75 offen offset:%d" % (V(XB + 4 * k, 2), vFB, OR, 128 * g))
    a.vmem("buffer_store_dwordx2 %s, v%d, %s, s75 offen offset:%d" % (V(XB + 4 * k + 2, 2), vFB, OR, 128 * g + 32))

def hilo(a, v, t0, t1):
    return [I(a, "v_cvt_pk_bf16_f32 v%d, v%d, v%d" % (t0, v, v)),
            I(a, "v_and_b32 v%d, 0xffff0000, v%d" % (t0, t0)),
            I(a, "v_sub_f32 v%d, v%d, v%d" % (t1, v, t0)),
            I(a, "v_cvt_pk_bf16_f32 v%d, v%d, v%d" % (v, t0, t1))]

def stats_fetch(a, kind, base, vaddr):
    fns = [I(a, "s_mov_b32 s49, %d" % ST_OFF)]
    for tt in range(4):
        fns.append((1, lambda tt=tt: a.vmem("buffer_load_dwordx4 %s, v%d, %s, s49 offen offset:%d %s" % (R(kind, base + 4 * tt, 4), vaddr, WSR, 256 * tt, SC), "stf")))
    return fns
def stats_check(a, kind, base, vaddr, t0):
    code = []
    for n, r in enumerate([base + 4 * tt + k for tt in range(4) for k in (1, 3)]):
        if kind == "a":
            code.append("v_accvgpr_read_b32 v%d, a%d" % (t0, r)); r = t0
        if n == 0: code.append("v_cmp_eq_u32 s[60:61], s%d, v%d" % (sTOK, r))
        else: code += ["v_cmp_eq_u32 vcc, s%d, v%d" % (sTOK, r), "s_and_b64 s[60:61], s[60:61], vcc"]
    def last():
        a("s_cmp_lg_u64 s[60:61], -1")
        def body(b):
            b("s_mov_b32 s49, %d" % ST_OFF)
            for tt in range(4):
                b("buffer_load_dwordx4 %s, v%d, %s, s49 offen offset:%d %s" % (R(kind, base + 4 * tt, 4), vaddr, WSR, 256 * tt, SC))
            b("s_waitcnt vmcnt(0)")
            b("\n".join(code))
            b("s_cmp_lg_u64 s[60:61], -1")
        slow_path(a, body, "stats")
    return [(1, lambda: wvm(a, ["stf"]))] + [I(a, c) for c in code] + [(2, last)]
def stats_addr(a, dst):
    return [I(a, "v_and_b32 v%d, 15, v%d" % (dst, vL)),
            I(a, "s_lshl_b32 s52, s%d, 12\ns_lshl_b32 s60, s%d, 10\ns_add_u32 s52, s52, s60\nv_lshl_add_u32 v%d, v%d, 4, s52" % (sI, sWAVE, dst, dst), 4)]

def path_mlp(a):
    vD, TMP, HS, ONES, CSA, ST = 172, 176, 184, 188, 192, 200
    vCSR, vCSW, vCSL, vP2 = 220, 221, 222, 223
    def xreg(kk, tt):
        i = kk * 4 + tt
        return ("a", 4 * i) if i < 64 else ("v", 224 + 4 * (i - 64))
    def xr(kk, tt): return R(*xreg(kk, tt), 4)
    def acc(P, ti, tt): return 64 * P + 16 * ti + 4 * tt
    t0, t1, t2, t3 = 64, 65, 66, 67
    XS = XStage(a, TMP, TMP + 4, 8 * 8192, 3, xreg)
    WLIM = 576 * 9216
    loc = {}
    WT = [sWo, 4, 5, 6, 7, 10, 11, 20, 21]
    issued_at = {}; now = [0]
    free = list(range(8))
    def dma_issue(L, kk):
        sl = free.pop(0); loc[(L, kk)] = sl
        fns = [I(a, "s_add_u32 m0, s53, %d" % (sl * 8192)),
               I(a, "s_add_u32 s55, s%d, %d" % (WT[kk >> 1], (kk & 1) * 32 * 9216 + L * 128)),
               VM(a, "buffer_load_dwordx4 v%d, s[%d:%d], s55 offen lds" % (vD, rWA, rWA + 3), ("w", L, kk)),
               VM(a, "buffer_load_dwordx4 v%d, s[%d:%d], s55 offen offset:1024 lds" % (vD + 1, rWA, rWA + 3), ("w", L, kk))]
        if kk & 1 and L == 0 and kk < 17:
            o, n_ = WT[kk >> 1], WT[(kk >> 1) + 1]
            fns.append(I(a, "s_add_u32 s%d, s%d, %d\ns_cmp_ge_u32 s%d, %d\ns_cmov_b32 s%d, 0" % (n_, o, 64 * 9216, n_, WLIM, n_), 3))
        issued_at[(L, kk)] = now[0]
        return fns
    XS.setup_dma(t0, t1)
    run(XS.dma(0))
    a("s_cmp_ge_u32 s%d, 2" % sWAVE)
    a("s_cselect_b32 s%d, s%d, s%d" % (rWA, sW3, sW1))
    a("s_cselect_b32 s%d, s%d, s%d" % (rWA + 1, sW3 + 1, sW1 + 1))
    a("s_and_b32 s%d, s%d, 0xffff" % (rWA + 1, rWA + 1))
    a("s_mov_b32 s%d, %d" % (rWA + 2, WLIM))
    a("s_mov_b32 s%d, 0x20000" % (rWA + 3))
    a("s_mul_i32 s70, s%d, 3" % sXG)
    a("s_add_u32 s70, s70, s%d" % sC)
    run(dma_lane_off(a, vD, t0, t1, 9216))
    a("s_mul_i32 s52, s70, 384")
    a("s_and_b32 s49, s%d, 1" % sWAVE)
    a("s_mul_i32 s49, s49, %d" % (16 * 9216))
    a("s_add_u32 s52, s52, s49")
    a("v_add_u32 v%d, s52, v%d" % (vD, vD))
    a("v_add_u32 v%d, %d, v%d" % (vD + 1, 8 * 9216 - 1024, vD))
    a("s_lshl_b32 s53, s%d, 11" % sWAVE)
    a("s_mul_i32 s%d, s%d, %d" % (sWo, sROT, 64 * 9216))
    for kk in range(4): run(dma_issue(0, kk))
    code_prefetch(a)
    run(XS.dma(1))
    pf12 = []
    if CFG.pf:
        u0, u1 = HS, HS + 1
        pf12 = [I(a, "v_mov_b32 v%d, 0x%x" % (u0, OOB)),
                I(a, "s_and_b32 s52, s%d, 1\ns_lshl_b32 s52, s52, 7\ns_mul_i32 s60, s70, 384\ns_add_u32 s52, s52, s60\ns_mul_i32 s60, s%d, %d\ns_add_u32 s52, s52, s60\nv_mul_u32_u24 v%d, 9216, v%d"
                  % (sWAVE, sI, 72 * 9216, u1, vL), 7),
                VM(a, "buffer_load_dword v%d, v%d, s[%d:%d], s52 offen offset:128" % (vPL, u1, rWA, rWA + 3)),
                I(a, "v_cmp_gt_u32 vcc, 8, v%d\ns_add_u32 s52, s52, %d\ns_nop 0\nv_cndmask_b32 v%d, v%d, v%d, vcc" % (vL, 64 * 9216, u1, u0, u1), 4),
                VM(a, "buffer_load_dword v%d, v%d, s[%d:%d], s52 offen offset:128" % (vPL, u1, rWA, rWA + 3))]
        if CFG.pfat == -1: run(pf12)
    stamp(a, 4, 1)
    rel = [7, 12, 13, 2, 8, 14, 3, 9, 15, 4, 10, 16, 5, 11, 17]
    p2 = P2(a, [(r, 32 * r, "w2") for r in rel] + [(0, 0, "wo"), (1, 36, "wo")], vD, None, vCSR)
    XS.setup_read(t0, t1, t2)
    tr_addrs(a, t0, t1, t2)
    a("v_xor_b32 v%d, s%d, v%d" % (t2, sWAVE, t1))
    a("v_lshl_add_u32 v%d, v%d, 5, v%d" % (vCSR, t2, t0))
    stats_compute(a)
    stamp(a, 5, 1)
    run(XS.reads(0))
    a("s_mov_b32 s68, s%d" % sC)
    p2.setup_s()
    a("s_lshr_b32 s60, s%d, 1" % sWAVE)
    a("s_mul_i32 s%d, s60, 4160" % sPX)
    a("s_and_b32 s49, s%d, 6" % sXG)
    a("s_add_u32 s49, s49, s60")
    a("s_mul_i32 s62, s49, %d" % (18 * KSTRIDE))
    a("s_add_u32 s62, s62, %d" % H_OFF)
    a("s_mul_i32 s63, s49, %d" % (576 * 1152))
    a("s_mul_i32 s64, s49, %d" % (2 * KSTRIDE))
    a("s_add_u32 s64, s64, %d" % (H_OFF + 144 * KSTRIDE))
    a("s_mul_i32 s65, s49, %d" % (72 * 1152))
    a("s_mul_i32 s57, s70, %d" % (6 * KSTRIDE))
    a("s_add_u32 s57, s57, %d" % H_OFF)
    a("s_lshr_b32 s52, s%d, 1" % sXG)
    a("s_mul_i32 s52, s52, 3")
    a("s_add_u32 s52, s52, s%d" % sC)
    a("s_mul_i32 s52, s52, 6")
    a("s_add_u32 s52, s52, s60")
    a("s_lshl_b32 s67, s52, 17")
    a("s_add_u32 s67, s67, %d" % PART_OFF)
    a("s_lshl2_add_u32 s69, s70, s%d" % sFI)
    a("s_mul_i32 s52, s49, 3")
    a("s_lshl_b32 s71, 7, s52")
    a("s_lshl_b32 s72, 1, s49")
    a("s_mul_i32 s%d, s70, 12288" % sCSB)
    a("s_add_u32 s%d, s%d, %d" % (sCSB, sCSB, CS_OFF))
    a("s_lshl_b32 s%d, s70, 7" % sFC)
    a("s_add_u32 s%d, s%d, 0x%x" % (sFC, sFC, FL(FC)))
    a.wait_vm(lambda t: t == ("w", 0, 1))
    a("s_barrier")
    late = []
    L_ = lambda s, c=1: late.append(I(a, s, c))
    u0, u1 = CSA, CSA + 1
    L_("v_and_b32 v%d, 15, v%d" % (u0, vL))
    L_("v_lshlrev_b32 v%d, 5, v%d" % (u0, u0))
    L_("v_lshrrev_b32 v%d, 4, v%d" % (u1, vL))
    L_("v_lshl_add_u32 v%d, v%d, 9, v%d" % (vCSL, u1, u0))
    L_("v_lshl_add_u32 v%d, v%d, 4, v%d" % (vCSW, u1, u0))
    L_("s_lshr_b32 s52, s%d, 1\ns_lshl_b32 s52, s52, 11\ns_and_b32 s60, s%d, 1\ns_lshl_b32 s60, s60, 3\ns_add_u32 s52, s52, s60\n"
       "s_lshr_b32 s60, s%d, 1\ns_lshl_b32 s60, s60, 9\ns_add_u32 s52, s52, s60\ns_and_b32 s60, s%d, 1\ns_lshl2_add_u32 s52, s60, s52\n"
       "v_add_u32 v%d, s52, v%d" % (sWAVE, sWAVE, sI, sI, vCSW, vCSW), 11)
    L_("v_cmp_gt_u32 vcc, 32, v%d\nv_mov_b32 v%d, 0x%x\ns_nop 0\nv_cndmask_b32 v%d, v%d, v%d, vcc" % (vL, u0, OOB, vCSW, u0, vCSW), 4)
    L_("s_cmp_eq_u32 s%d, 7\ns_cselect_b32 s%d, 0x%x, 0" % (sI, sOne2, ONE2), 2)
    SPLIT = CFG.split
    seq = []
    for kk in range(SPLIT): seq += [("mm", 0, 0, kk), ("mm", 0, 1, kk)]
    seq += [("mm", 0, 0, kk) for kk in range(SPLIT, 18)] + [("mm", 0, 1, kk) for kk in range(SPLIT, 18)]
    for L in (1, 2):
        for P in (0, 1): seq += [("mm", L, P, kk) for kk in range(18)]
    def after(key, new): seq.insert(seq.index(key) + 1, new)
    after(("mm", 0, 1, 1), ("cs", 0))
    after(("mm", 0, 0, 13), ("corr", 0, 0))
    after(("mm", 0, 1, 13), ("corr", 0, 1))
    after(("corr", 0, 1), ("cs", 1))
    after(("mm", 1, 0, 17), ("corr", 1, 0))
    after(("mm", 1, 1, 6), ("corr", 1, 1))
    after(("mm", 1, 1, 8), ("cs", 2))
    after(("mm", 2, 0, 16), ("corr", 2, 0))
    after(("mm", 2, 1, 6), ("corr", 2, 1))
    NH = len(seq)
    idx = {k: n for n, k in enumerate(seq)}
    visible = set([(0, 0), (0, 1)])
    S_ = Stream(a, "v", WF)
    first_slot = []
    csr = [0]
    def slabs_of(e):
        if e[0] == "mm": return [(e[1], e[3])]
        if e[0] == "cs": return [(e[1], k) for k in range(4)]
        return []
    for e in seq:
        first_slot.append(len(S_.slots))
        if e[0] == "mm":
            _, L, P, kk = e
            for ti in (0, 2, 1, 3):
                def off(L=L, kk=kk, ti=ti):
                    assert (L, kk) in visible, (L, kk)
                    return loc[(L, kk)] * 8192 + (ti >> 1) * 4096
                def mf(w, P=P, ti=ti, kk=kk):
                    return ["%s %s, %s, %s, %s" % (MF, V(acc(P, ti, tt), 4), w, xr(kk, tt), "0" if kk == 0 else V(acc(P, ti, tt), 4)) for tt in range(4)]
                S_.add(tr_read(a, off, 2 * P + (ti & 1)), mf)
        elif e[0] == "corr":
            _, L, P = e
            for ti in range(4):
                S_.add(None, lambda w, P=P, ti=ti: ["%s %s, %s, %s, %s" % (MF16, V(acc(P, ti, tt), 4), V(CSA + 2 * ti, 2), V(ST + 4 * tt, 2), V(acc(P, ti, tt), 4)) for tt in range(4)])
        else:
            L = e[1]
            for k in range(4):
                for mat in range(2):
                    def rd(kind, reg, tag, L=L, k=k, mat=mat):
                        assert (L, k) in visible
                        out = []
                        if mat == 0:
                            d = loc[(L, k)] * 8192 - csr[0]; csr[0] += d
                            if d: out.append(I(a, "v_add_u32 v%d, 0x%x, v%d" % (vCSR, d & 0xffffffff, vCSR)))
                        return out + [(1, lambda h=h: a.lds("ds_read_b64_tr_b16 %s, v%d offset:%d" % (V(reg + 2 * h, 2), vCSR, mat * 4096 + h * 2048), tag)) for h in range(2)]
                    def mf(w, k=k, mat=mat):
                        pre = ""
                        if mat == 0 and k in (0, 2):
                            pre = "".join("v_mov_b32 v%d, %s\n" % (ONES + i, "0x%x" % ONE2 if k == 0 else "s%d" % sOne2) for i in range(4)) + "s_nop 1\n"
                        return [pre + "%s %s, %s, %s, %s" % (MF, V(CSA + 4 * mat, 4), V(ONES, 4), w, "0" if k == 0 else V(CSA + 4 * mat, 4))]
                    S_.add(rd, mf)
    first_slot.append(len(S_.slots))
    p2.add_slots(S_)
    def epilogue(L, P):
        q = [I(a, "s_add_u32 s58, s57, %d" % ((2 * L + P) * KSTRIDE))]
        n = 0
        for tt in range(4):
            rs, cc = ST + 4 * tt + 2, ST + 4 * tt + 3
            for half in range(2):
                g, u = acc(P, half, tt), acc(P, 2 + half, tt)
                t = TMP + 4 * (n % 2); n += 1
                for i in range(4): q.append(I(a, "v_mul_f32 v%d, v%d, v%d" % (t + i, g + i, rs)))
                for i in range(4): q.append(I(a, "v_exp_f32 v%d, v%d" % (t + i, t + i), 2))
                for i in range(4): q.append(I(a, "v_mul_f32 v%d, v%d, v%d" % (u + i, g + i, u + i)))
                for i in range(4): q.append(I(a, "v_fma_f32 v%d, v%d, v%d, v%d" % (t + i, t + i, cc, cc)))
                for i in range(4): q.append(I(a, "v_rcp_f32 v%d, v%d" % (t + i, t + i), 2))
                for i in range(4): q.append(I(a, "v_mul_f32 v%d, v%d, v%d" % (t + i, t + i, u + i)))
                for i in range(2): q.append(I(a, "v_cvt_pk_bf16_f32 v%d, v%d, v%d" % (HS + 2 * half + i, t + 2 * i, t + 2 * i + 1)))
            q.append((1, lambda tt=tt: a.vmem("buffer_store_dwordx4 %s, v%d, %s, s58 offen offset:%d %s" % (V(HS, 4), vX, WSR, tt * 1024, SC), ("h", L, P))))
        return q
    last_use = {}
    for n, e in enumerate(seq):
        for sl in slabs_of(e): last_use[sl] = n
    lastP = {}
    for n, e in enumerate(seq):
        if e[0] != "cs": lastP[e[1:3]] = n
    marks = set()
    def mark(m): return (0, lambda: marks.add(m))
    released = set()
    def hsig(stage): return signal(a, "s_add_u32 s49, s69, %d" % (128 * (FH + 8 * stage)))
    def hoff(stage): return "s_add_u32 s49, s%d, %d" % (sFI, 128 * (FH + 8 * stage))
    coff = "s_mov_b32 s49, s%d" % sFC
    def csa_load(L, P):
        return [I(a, "s_add_u32 s49, s%d, %d" % (sCSB, L * 4096 + P * 2048))] + \
               [(1, lambda k=k: a.vmem("buffer_load_dwordx4 %s, v%d, %s, s49 offen offset:%d %s" % (V(CSA + 4 * k, 4), vCSL, WSR, 16 * k, SC), ("csa", L, P))) for k in range(2)]
    def cs_publish(L):
        return [I(a, "s_mov_b32 vcc_lo, 0xffff0000\ns_mov_b32 vcc_hi, 0\nv_cndmask_b32 v%d, v%d, v%d, vcc" % (CSA, CSA, CSA + 4), 3)] + hilo(a, CSA, CSA + 1, CSA + 2) + \
               [I(a, "s_add_u32 s49, s%d, %d" % (sCSB, L * 4096)),
                (1, lambda: a.vmem("buffer_store_dword v%d, v%d, %s, s49 offen %s" % (CSA, vCSW, WSR, SC), ("cs", L)))]
    ev = {}
    bar_tags = {}
    def at(n, fns): ev.setdefault(n, []).extend(fns)
    def sig_after(n, tag, fns):
        n |= 1
        bar_tags.setdefault(n, ([], []))
        bar_tags[n][0].append(tag); bar_tags[n][1].extend(fns)
    at(0, late + [mark("late")])
    if CFG.pf and CFG.pfat >= 0: at(CFG.pfat, pf12)
    for L in range(3):
        n = idx[("cs", L)]
        at(n + 2, cs_publish(L))
        sig_after(n + 4, ("cs", L), signal(a, "s_lshl2_add_u32 s49, s%d, s%d\ns_add_u32 s49, s49, %d" % (sI, sFC, 32 * L)))
        c0 = idx[("corr", L, 0)]
        at(c0 - 11, poll_issue(a, coff, ("plc", L)))
        at(c0 - 7, poll_check(a, coff, ("plc", L), "0x%x" % (0xff << (8 * L))) + csa_load(L, 0))
        at(c0 + 1, csa_load(L, 1))
    c0 = idx[("corr", 0, 0)]
    at(c0 - 12, stats_addr(a, vP2) + stats_fetch(a, "v", ST, vP2))
    fx = stats_check(a, "v", ST, vP2, None)
    for tt in range(4):
        b = ST + 4 * tt
        fx += [I(a, "v_mov_b32 v%d, v%d" % (b + 1, b)), I(a, "v_mul_f32 v%d, v%d, v%d" % (b + 3, b + 2, b + 2)), I(a, "v_rcp_f32 v%d, v%d" % (b + 2, b + 2), 2)]
    for tt in range(4): fx.append(I(a, "v_mul_f32 v%d, %s, v%d" % (ST + 4 * tt + 2, f32(-LOG2E), ST + 4 * tt + 2)))
    at(c0 - 5, fx + [mark("stats")])
    xread_at = {1: 1, 2: 6, 3: 10, 4: 14, 5: 17, 6: 20, 7: 23, 8: 26}
    for p, n in xread_at.items():
        at(n, XS.reads(p))
    mm = lambda L, P, kk: idx[("mm", L, P, kk)]
    sig_after(mm(1, 1, 3), ("h", 0, 1), hsig(0))
    sig_after(mm(2, 0, 3), ("h", 1, 0), hsig(1))
    sig_after(mm(2, 1, 3), ("h", 1, 1), hsig(2))
    at(mm(2, 0, 11), poll_issue(a, hoff(1), "pl1", vP2))
    at(mm(2, 0, 17), poll_check(a, hoff(1), "pl1", "s71", vP2) + [mark("h1")])
    at(NH - 3, poll_issue(a, hoff(2), "pl2"))
    at(mm(2, 0, 5), p2.setup_vo(vCSR, vCSW, "s_and_b32 s52, s%d, 1" % sXG) + [mark("vo")])
    if CFG.pf:
        pf = Q(a, """s_and_b32 s52, s{W}, 1
            s_mul_i32 s52, s52, 36
            s_mul_i32 s60, s{I}, 72
            s_add_u32 s52, s52, s60
            v_mul_u32_u24 v{P}, 43, v{L}
            v_lshrrev_b32 v{P}, 7, v{P}
            v_mul_u32_u24 v{T}, 3, v{P}
            v_sub_u32 v{T}, v{L}, v{T}
            v_add_u32 v{P}, s52, v{P}
            v_mul_u32_u24 v{P}, 1152, v{P}
            v_lshl_add_u32 v{P}, v{T}, 7, v{P}
            s_mul_i32 s52, s68, 384
            s_add_u32 s52, s52, s63""".format(W=sWAVE, I=sI, P=vP2, L=vL, T=vPL))
        pf += [VM(a, "buffer_load_dword v%d, v%d, s[%d:%d], s52 offen" % (vPL, vP2, rW2, rW2 + 3)),
               I(a, "s_add_u32 s52, s52, %d" % (18 * 1152)),
               VM(a, "buffer_load_dword v%d, v%d, s[%d:%d], s52 offen" % (vPL, vP2, rW2, rW2 + 3))]
        at(mm(1, 0, 1), pf)
    def wjob(L, kk):
        def make():
            if VERB: print("hs", now[0], seq[now[0]], "issue W", (L, kk), file=sys.stderr)
            return dma_issue(L, kk)
        return ("w", lambda: len(free) > 0, make)
    for p in range(2, 9): S_.jobs += [XS.job(p), wjob(0, 2 * p), wjob(0, 2 * p + 1)]
    S_.jobs += [wjob(L, kk) for L in (1, 2) for kk in range(18)]
    hmark = lambda st: "h1" if st < 6 else ("h2" if st < 9 else ("h3" if st < 12 else ("h4" if st < 15 else "o")))
    S_.jobs += p2.jobs(0, lambda st: "vo" in marks,
                       lambda st: hmark(st) in marks and now[0] > mm(2, 1, min(st, 9)))
    xdead = {}
    S_.prime()
    for n, e in enumerate(seq):
        pre = []
        now[0] = n
        if VERB: a.cm("HS %d %s" % (n, e))
        if n >= CFG.sbase and (n - CFG.sbase) % CFG.sstep == 0 and (n - CFG.sbase) // CFG.sstep < 11: stamp(a, 4 + (n - CFG.sbase) // CFG.sstep, 2)
        if e[0] == "mm" and e[1] == 0 and e[2] == 0 and e[3] % 2 == 0:
            wlg(a, [("xr", e[3] // 2)])
        if e[0] == "cs": assert "late" in marks
        if e[0] == "corr": assert "stats" in marks
        if n == mm(2, 0, 5): assert a.cnt.get(("w", 2, 17)) == 2
        if e[0] == "corr": wvm(a, [("csa", e[1], e[2])])
        if e[0] == "mm" and e[3] == 0 and (e[1] > 0 or e[2] == 0): stamp(a, 3 if e[1] == 0 else 3 + 2 * e[1] + e[2])
        if e == ("mm", 0, 0, 9): stamp(a, 4)
        if n % 2 == 1:
            rmax = S_.read_limit(first_slot[min(n + 2, NH)] - 1)
            need = []
            for m in range(n, NH):
                if S_.cur_ring(first_slot[m]) <= rmax:
                    need += [x for x in slabs_of(seq[m]) if x not in visible and x not in need]
            rel_ = [x for x, lu in last_use.items() if lu < n and x not in released]
            tags, aft = bar_tags.pop(n, ([], []))
            tags = list(tags)
            if S_.cur_ring(first_slot[NH]) <= rmax and not p2.visible:
                tags += [("w2", 0, k_) for k_ in range(3)]; p2.visible.update((0, k_) for k_ in range(3))
            xrel = [p for p, m in xread_at.items() if p >= 6 and m + 3 <= n and p not in xdead]
            want_space = S_.jobs and S_.jobs[0][0] in ("w", "w2", "x") or any(j[0] in ("w", "w2") for j in S_.jobs[:3])
            if rel_ and not (need or tags or xrel) and (not want_space or (n > 40 and len(rel_) < CFG.relper)): rel_ = []
            if need or rel_ or tags or xrel:
                need += [x for x, t_ in issued_at.items() if x not in visible and x not in need and t_ + CFG.age <= n]
                for x in need: assert x in loc, ("slab not issued", n, x)
                def bar(need=need, tags=tags, xrel=xrel):
                    wlg(a, [("xr", p) for p in xrel])
                    wvm(a, [("w",) + x for x in need] + tags)
                    a("s_barrier")
                pre.append((2, bar))
                visible.update(need); released.update(rel_)
                for x in rel_: free.append(loc[x])
                for p in xrel:
                    xdead[p] = 1
                    free.extend(8 + 3 * w + p % 3 for w in range(4))
            S_.extra += aft
        S_.extra += ev.pop(n, [])
        if (2, 17) in loc:
            while free:
                p2.free.append(free.pop(0))
        ns = first_slot[n + 1] - first_slot[n]
        for k in range(ns):
            if e[0] == "mm" and e[3] == 0 and k == 0:
                assert not (S_.epi and S_.epiP == e[2]), "epilogue not finished"
            S_.emit(pre if k == 0 else (), 2 if len(S_.extra) > 12 else 0)
            if k == 1 and n > 0:
                pe = seq[n - 1]
                if pe[0] != "cs" and lastP[pe[1:3]] == n - 1:
                    assert not S_.epi
                    S_.epi = epilogue(pe[1], pe[2]); S_.epiP = pe[2]
                    S_.deadline = first_slot[mm(pe[1] + 1, pe[2], 0)] - 1 if pe[1] < 2 else first_slot[NH] - 1
    assert not S_.epi and not ev and not bar_tags, (ev.keys(), bar_tags.keys())
    now[0] = NH
    if VERB: print("; left for phase 2:", [j[0] for j in S_.jobs], "extra", len(S_.extra), file=sys.stderr)
    stamp(a, 9)
    S_.epi = [(8, lambda: None), (8, lambda: None)] + epilogue(2, 1)
    S_.deadline = S_.pos + CFG.edl
    ooff = "s_add_u32 s49, s%d, %d" % (sFI, 128 * FO)
    hooks = {}
    def add(st, key, v): hooks.setdefault(st, {}).setdefault(key, []).extend(v)
    add(0, "bar", [("h", 2, 0)]); add(0, "after", hsig(3))
    add(0, "after", poll_check(a, hoff(2), "pl2", "s71") + [mark("h2")])
    add(2, "after", poll_issue(a, hoff(3), "pl3"))
    add(3, "bar", [("h", 2, 1)]); add(3, "after", hsig(4))
    add(4, "after", poll_check(a, hoff(3), "pl3", "s71") + [mark("h3")])
    add(5, "after", poll_issue(a, hoff(4), "pl4"))
    add(5, "after", poll_issue(a, ooff, "plo", vP2))
    add(7 - CFG.late, "after", poll_check(a, hoff(4), "pl4", "s71") + [mark("h4")] + poll_check(a, ooff, "plo", "s72", vP2) + [mark("o")])
    dead0 = [loc[x] for x in last_use if x not in released]
    p2.main(S_, hooks, dead0)

C0 = [0, 4, 9, 13]
def path_attn(a):
    global vL, vX, vFS, vFP, vTK, vPL
    keep = (vL, vX, vFS, vFP, vTK, vPL)
    a.cnt = {}
    RB, VO, XO, XA = 224, 230, 236, 240
    vCS0, vCS1, vCSW, vP2, u0, u1 = 250, 251, 252, 253, 254, 255
    aONE, aCS, aST, aCSA, aX = 32, 36, 52, 68, 96
    t0, t1, t2, t3, t4 = 64, 65, 66, 67, 68
    new = (244, 245, 246, 247, 248, 249)
    for o_, n_ in zip(keep[:4], new[:4]): a("v_mov_b32 v%d, v%d" % (n_, o_))
    vL, vX, vFS, vFP, vTK, vPL = new
    def xreg(kk, tt): return ("a", aX + 16 * (kk % 10) + 4 * tt)
    def xr(kk, tt): return R(*xreg(kk, tt), 4)
    def acc(T, tt): return 16 * T + 4 * tt
    XS = XStage(a, XO, XA, 98304, 2, xreg)
    WLIM = 576 * 3456
    def dma_issue(kk):
        fns = [I(a, "s_add_u32 s55, s%d, %d" % (sWo, (kk & 1) * 32 * 3456))]
        for idx in range(6):
            if idx % 3 == 0:
                fns.append(I(a, "s_add_u32 m0, s53, %d" % ((kk % 4) * 24576 + (idx // 3) * 3072)))
            fns.append(VM(a, "buffer_load_dwordx4 v%d, s[%d:%d], s55 offen offset:%d lds" % (VO + idx, rWA, rWA + 3, (idx % 3) * 1024), ("w", kk)))
        if kk & 1: fns.append(I(a, "s_add_u32 s%d, s%d, %d\ns_cmp_ge_u32 s%d, %d\ns_cmov_b32 s%d, 0" % (sWo, sWo, 64 * 3456, sWo, WLIM, sWo), 3))
        return fns
    XS.setup_dma(t0, t1)
    run(XS.dma(0))
    srd(a, rWA, sWQKV, WLIM, bias=2048)
    run(dma_lane_off(a, t2, t0, t1, 3456))
    for idx in range(6):
        a("s_mul_i32 s52, s%d, 6" % sWAVE)
        a("s_add_u32 s52, s52, %d" % idx)
        a("s_and_b32 s49, s52, 3")
        a("s_mul_i32 s49, s49, %d" % (8 * 3456))
        a("s_bfe_u32 s60, s52, 0x10002")
        a("s_add_u32 s60, s60, s%d" % sXG)
        a("s_lshl_b32 s60, s60, 7")
        a("s_add_u32 s49, s49, s60")
        a("s_lshr_b32 s60, s52, 3")
        a("s_mul_i32 s60, s60, 1152")
        a("s_add_u32 s49, s49, s60")
        a("s_add_u32 s49, s49, %d" % (2048 - (idx % 3) * 1024))
        a("v_add_u32 v%d, s49, v%d" % (VO + idx, t2))
    a("s_mul_i32 s53, s%d, 6144" % sWAVE)
    a("s_mul_i32 s%d, s%d, %d" % (sWo, sROT, 64 * 3456))
    run(dma_issue(0)); run(dma_issue(1))
    code_prefetch(a)
    run(XS.dma(1))
    stamp(a, 4, 1)
    XS.setup_read(t0, t1, t2)
    lane_fields(a, t0, t1, t2)
    a("v_lshrrev_b32 v%d, 1, v%d" % (t0, t0))
    a("v_lshlrev_b32 v%d, 10, v%d" % (t0, t0))
    a("v_lshl_add_u32 v%d, v%d, 7, v%d" % (t0, t1, t0))
    a("v_lshrrev_b32 v%d, 1, v%d" % (t1, t1))
    a("s_lshl_b32 s52, s%d, 1" % sXG)
    for p in range(6):
        r = RB + p
        if p < 4:
            a("v_add_u32 v%d, %d, v%d" % (t3, C0[p], t2))
        elif p == 4:
            a("v_lshrrev_b32 v%d, 1, v%d" % (t3, t2))
            a("v_lshl_add_u32 v%d, v%d, 2, v%d" % (t3, t2, t3))
            a("v_add_u32 v%d, 4, v%d" % (t3, t3))
        else:
            a("v_and_b32 v%d, 1, v%d" % (t3, t2))
            a("v_mul_u32_u24 v%d, 9, v%d" % (t3, t3))
            a("v_add_u32 v%d, 8, v%d" % (t3, t3))
        a("v_add_u32 v%d, s52, v%d" % (t3, t3))
        a("v_lshrrev_b32 v%d, 4, v%d" % (t4, t3))
        a("v_lshl_add_u32 v%d, v%d, 12, v%d" % (r, t4, t0))
        a("v_bfe_u32 v%d, v%d, 2, 2" % (t4, t3))
        a("v_xor_b32 v%d, v%d, v%d" % (t4, t4, t1))
        a("v_lshl_add_u32 v%d, v%d, 5, v%d" % (r, t4, r))
        a("v_and_b32 v%d, 3, v%d" % (t4, t3))
        a("v_lshl_add_u32 v%d, v%d, 3, v%d" % (r, t4, r))
        if p == 5:
            a("v_lshrrev_b32 v%d, 1, v%d" % (t4, t2))
            a("v_add_u32 v%d, 1, v%d" % (t4, t4))
            a("v_lshl_add_u32 v%d, v%d, 13, v%d" % (r, t4, r))
    a("s_bitcmp1_b32 s%d, 0" % sWAVE)
    a("s_cselect_b64 vcc, -1, 0")
    a("v_cndmask_b32 v%d, v%d, v%d, vcc" % (t3, RB, RB + 1))
    a("v_cndmask_b32 v%d, v%d, v%d, vcc" % (t4, RB + 2, RB + 3))
    a("v_cndmask_b32 v%d, v%d, v%d, vcc" % (vCS1, RB + 4, RB + 5))
    a("s_bitcmp1_b32 s%d, 1" % sWAVE)
    a("s_cselect_b64 vcc, -1, 0")
    a("v_cndmask_b32 v%d, v%d, v%d, vcc" % (vCS0, t3, t4))
    a("v_mov_b32 v%d, 0x%x" % (t3, ONE2))
    for i in range(4): a("v_accvgpr_write_b32 a%d, v%d" % (aONE + i, t3))
    stats_compute(a)
    stamp(a, 5, 1)
    run(XS.reads(0))
    steps = [(18 * x_ + P, 32 * (18 * x_ + P), "w2") for x_ in range(4) for P in (0, 1, 6)] + [(0, 0, "wos"), (1, 144, "wos")]
    p2 = P2(a, steps, 220, 197, 222)
    a("s_cmp_ge_u32 s%d, 3" % sXG)
    a("s_cselect_b32 s4, 1, 0")
    a("s_mul_i32 s52, s4, 3")
    a("s_sub_u32 s68, s%d, s52" % sXG)
    a("s_lshr_b32 s70, s%d, 1" % sWAVE)
    p2.setup_s()
    a("s_mul_i32 s62, s70, %d" % (72 * KSTRIDE))
    a("s_add_u32 s62, s62, %d" % H_OFF)
    a("s_mul_i32 s63, s70, %d" % (2304 * 1152))
    a("s_mul_i32 s64, s70, %d" % (2 * KSTRIDE))
    a("s_add_u32 s64, s64, %d" % (H_OFF + 160 * KSTRIDE))
    a("s_mul_i32 s65, s70, %d" % (288 * 1152))
    a("s_add_u32 s52, s68, 12")
    a("s_mul_i32 s52, s52, 6")
    a("s_add_u32 s52, s52, s70")
    a("s_lshl_b32 s67, s52, 17")
    a("s_add_u32 s67, s67, %d" % PART_OFF)
    a("s_add_u32 s52, s%d, 24" % sXG)
    a("s_lshl2_add_u32 s69, s52, s%d" % sFI)
    a("s_lshl_b32 s%d, s52, 7" % sFC)
    a("s_add_u32 s%d, s%d, 0x%x" % (sFC, sFC, FL(FC)))
    a("s_mul_i32 s52, s70, 12")
    a("s_lshl_b32 s71, 0x6db, s52")
    a("s_lshl_b32 s52, s70, 2")
    a("s_lshl_b32 s72, 15, s52")
    a("s_cmp_ge_u32 s%d, 6" % sXG)
    a("s_cmov_b32 s62, 0x%x" % OOB)
    a("s_cmov_b32 s63, 0x%x" % OOB)
    a("s_cmov_b32 s71, 0")
    a("s_lshl_b32 s%d, s%d, 13" % (sCSB, sXG))
    a("s_add_u32 s%d, s%d, %d" % (sCSB, sCSB, CS_OFF + 24 * 12288))
    a("s_cmp_eq_u32 s%d, 7" % sI)
    a("s_cselect_b32 s%d, 0x%x, 0" % (sOne2, ONE2))
    wvm(a, [("w", 0)], w=6)
    a("s_barrier")
    TL = [(0, 0), (1, 0), (2, 0), (3, 0), (4, 0)] + [(p, 1) for p in range(4)] + [(p, 2) for p in range(4)] + [(5, 0)]
    S_ = Stream(a, "a", 0)
    visible = set([0])
    cur = [0] * 6
    csr = [0]
    info = []
    for kk in range(18):
        for T in range(14):
            def rd(kind, reg, tag, kk=kk, T=T):
                assert kk in visible
                p, win = TL[T]
                want = ((kk % 4) // 2) * 49152
                out = []
                if cur[p] != want:
                    out.append(I(a, "v_add_u32 v%d, 0x%x, v%d" % (RB + p, (want - cur[p]) & 0xffffffff, RB + p))); cur[p] = want
                return out + [(1, lambda h=h: a.lds("ds_read_b64_tr_b16 %s, v%d offset:%d" % (A(reg + 2 * h, 2), RB + p, (kk % 2) * 24576 + win * 8192 + h * 2048), tag)) for h in range(2)]
            def mf(w, kk=kk, T=T):
                return ["%s %s, %s, %s, %s" % (MF, V(acc(T, tt), 4), w, xr(kk, tt), "0" if kk == 0 else V(acc(T, tt), 4)) for tt in range(4)]
            S_.add(rd, mf); info.append((kk, T))
            if kk < 4 and T in (1, 3, 5, 7):
                k = T // 2
                def rd(kind, reg, tag, kk=kk, k=k):
                    out = []
                    if k == 0 and kk > 0:
                        out += [I(a, "v_add_u32 v%d, 24576, v%d" % (vCS0, vCS0)), I(a, "v_add_u32 v%d, 24576, v%d" % (vCS1, vCS1))]
                    return out + [(1, lambda h=h: a.lds("ds_read_b64_tr_b16 %s, v%d offset:%d" % (A(reg + 2 * h, 2), vCS0 if k < 3 else vCS1, (k * 8192 if k < 3 else 0) + h * 2048), tag)) for h in range(2)]
                def mf(w, kk=kk, k=k):
                    pre = ""
                    if kk == 2 and k == 0:
                        pre = "v_mov_b32 v%d, s%d\n" % (u0, sOne2) + "".join("v_accvgpr_write_b32 a%d, v%d\n" % (aONE + i, u0) for i in range(4)) + "s_nop 1\n"
                    return [pre + "%s %s, %s, %s, %s" % (MF, A(aCS + 4 * k, 4), A(aONE, 4), w, "0" if kk == 0 else A(aCS + 4 * k, 4))]
                S_.add(rd, mf); info.append((kk, -1))
    for T in list(range(9, 13)) + list(range(5, 9)) + [13] + list(range(5)):
        S_.add(None, lambda w, T=T: ["%s %s, %s, %s, %s" % (MF16, V(acc(T, tt), 4), A(aCSA + 2 * T, 2), A(aST + 4 * tt, 2), V(acc(T, tt), 4)) for tt in range(4)])
        info.append((18, T))
    ev = {}; bt = {}
    def at(kk, fns): ev.setdefault(kk, []).extend(fns)
    w_ = [I(a, "v_lshrrev_b32 v%d, 4, v%d" % (u0, vL)),
          I(a, "v_mul_u32_u24 v%d, 9, v%d\nv_add_u32 v%d, 1, v%d\nv_lshrrev_b32 v%d, 1, v%d\nv_add_u32 v%d, s%d, v%d" % (vCSW, u0, vCSW, vCSW, vCSW, vCSW, vCSW, sWAVE, vCSW), 4),
          I(a, "s_mul_i32 s52, s%d, 9\ns_add_u32 s52, s52, 4\ns_cmp_ge_u32 s%d, 2\ns_cmov_b32 s52, 0x%x\nv_mov_b32 v%d, s52\nv_cmp_eq_u32 vcc, 3, v%d\ns_nop 1\nv_cndmask_b32 v%d, v%d, v%d, vcc"
            % (sWAVE, sWAVE, OOB >> 3, u1, u0, vCSW, vCSW, u1), 8),
          I(a, "v_and_b32 v%d, 15, v%d\nv_lshlrev_b32 v%d, 7, v%d\nv_lshl_add_u32 v%d, v%d, 3, v%d" % (u0, vL, u0, u0, vCSW, vCSW, u0), 3),
          I(a, "s_lshr_b32 s52, s%d, 1\ns_lshl_b32 s52, s52, 11\ns_and_b32 s60, s%d, 1\ns_lshl2_add_u32 s52, s60, s52\nv_add_u32 v%d, s52, v%d" % (sI, sI, vCSW, vCSW), 5)]
    marks = set()
    at(0, w_ + [(0, lambda: marks.add(1))])
    pub = [I(a, "v_accvgpr_read_b32 v%d, a%d" % (u0, aCS))]
    for k, (lo, hi) in enumerate([("0xffff0000", "0"), ("0", "0xffff"), ("0", "0xffff0000")]):
        pub.append(I(a, "v_accvgpr_read_b32 v%d, a%d\ns_mov_b32 vcc_lo, %s\ns_mov_b32 vcc_hi, %s\nv_cndmask_b32 v%d, v%d, v%d, vcc" % (u1, aCS + 4 * (k + 1), lo, hi, u0, u0, u1), 4))
    pub += hilo(a, u0, u1, vCS0)
    pub.append((1, lambda: a.vmem("buffer_store_dword v%d, v%d, %s, s%d offen %s" % (u0, vCSW, WSR, sCSB, SC), ("cs", 0))))
    at(3, pub)
    bt[5] = ([("cs", 0)], signal(a, "s_lshl2_add_u32 s49, s%d, s%d" % (sI, sFC)))
    coff = "s_mov_b32 s49, s%d" % sFC
    at(10, poll_issue(a, coff, "plc") + stats_addr(a, vCS0) + stats_fetch(a, "a", aST, vCS0))
    ld = poll_check(a, coff, "plc", "0xff") + [I(a, "v_lshlrev_b32 v%d, 7, v%d" % (u0, vL))]
    for k in range(7):
        ld.append((1, lambda k=k: a.vmem("buffer_load_dwordx4 %s, v%d, %s, s%d offen offset:%d %s" % (A(aCSA + 4 * k, 4), u0, WSR, sCSB, 16 * k, SC), ("csa", 0))))
    ld += stats_check(a, "a", aST, vCS0, u1)
    for tt in range(4): ld.append(I(a, "v_accvgpr_mov_b32 a%d, a%d" % (aST + 4 * tt + 1, aST + 4 * tt)))
    at(13, ld)
    if CFG.pf:
        pf = Q(a, """s_and_b32 s52, s{I}, 1
            s_mul_i32 s52, s52, 48
            v_add_u32 v{P}, s52, v{L}
            v_lshrrev_b32 v{T}, 6, v{P}
            v_lshl_add_u32 v{P}, v{T}, 7, v{P}
            v_mul_u32_u24 v{P}, 1152, v{P}
            s_lshr_b32 s52, s{I}, 1
            s_mul_i32 s52, s52, {G}
            s_mul_i32 s60, s68, 384
            s_add_u32 s52, s52, s60
            s_add_u32 s52, s52, s63
            s_and_b32 s60, s{W}, 1
            s_lshl_b32 s60, s60, 7
            s_add_u32 s60, s60, s52""".format(I=sI, P=vP2, L=vL, T=u1, G=576 * 1152, W=sWAVE))
        pf += [VM(a, "buffer_load_dword a%d, v%d, s[%d:%d], s60 offen" % (aONE, vP2, rW2, rW2 + 3)),
               VM(a, "buffer_load_dword a%d, v%d, s[%d:%d], s52 offen offset:256" % (aONE, vP2, rW2, rW2 + 3))]
        at(15, pf)
    S_.prime()
    wjob = lambda kk: ("w", lambda: kk - 2 in visible, lambda: dma_issue(kk))
    S_.jobs += [wjob(2), wjob(3)]
    for p in range(2, 9): S_.jobs += [XS.job(p), wjob(2 * p), wjob(2 * p + 1)]
    for s, (kk, T) in enumerate(info):
        pre = []
        if T == 0 and kk < 18 and kk % 2 == 0: wlg(a, [("xr", kk // 2)])
        if s == 0: stamp(a, 3)
        if kk == 2: assert marks
        if kk == 18 and T == 9:
            assert not S_.extra
            wvm(a, [("csa", 0)], csa=7)
        if T == 9 and kk < 17:
            tags, aft = bt.pop(kk, ([], []))
            def bar(kk=kk, tags=tags):
                wvm(a, [("w", kk + 1)] + tags, w=6)
                a("s_barrier")
            pre.append((2, bar))
            visible.add(kk + 1)
            S_.extra += aft
            if kk % 2 == 0 and kk // 2 + 1 < 9:
                p = kk // 2 + 1
                S_.extra += XS.reads(p)
            S_.extra += ev.pop(kk, [])
        S_.emit(pre)
    assert not S_.extra and not ev and not S_.jobs and not S_.mem
    RS = 296
    vq, vn, vI0, vI1 = 224, 225, 226, 227
    T8 = 232
    t0, t1, t2, t3 = 242, 243, 254, 255
    SCL = 250
    a("s_barrier")
    stamp(a, 2)
    for tt in range(4): a("v_accvgpr_read_b32 v%d, a%d" % (SCL + tt, aST + 4 * tt + 2))
    a("v_lshrrev_b32 v%d, 4, v%d" % (vq, vL))
    a("v_and_b32 v%d, 15, v%d" % (vn, vL))
    for tt in range(4): a("v_rcp_f32 v%d, v%d" % (SCL + tt, SCL + tt))
    a("s_lshl_b32 s52, s%d, 6" % sWAVE)
    a("v_add_u32 v%d, s52, v%d" % (t0, vn))
    a("v_mul_u32_u24 v%d, %d, v%d" % (t0, RS, t0))
    a("v_lshl_add_u32 v%d, v%d, 3, v%d" % (vI0, vq, t0))
    a("v_mul_u32_u24 v%d, 72, v%d" % (t1, vq))
    a("v_add3_u32 v%d, v%d, v%d, 64" % (vI1, t0, t1))
    for tt in range(4): a("v_mul_f32 v%d, %s, v%d" % (SCL + tt, f32(LOG2E), SCL + tt))
    a("s_mov_b32 s56, %s" % f32(1.0 / LOG2E))
    a("s_mov_b32 s57, s56")
    a("v_mov_b32 v228, %s" % f32(1e-6 * LOG2E))
    a("v_cmp_gt_u32 s[32:33], 2, v%d" % vq)
    def scale4(r, tt):
        b, o = SCL + (tt & 2), tt & 1
        for i in (0, 2): a("v_pk_mul_f32 v[%d:%d], v[%d:%d], v[%d:%d] op_sel:[0,%d] op_sel_hi:[1,%d]" % (r + i, r + i + 1, r + i, r + i + 1, b, b + 1, o, o))
    def phi4(r, t, keepm=None):
        for i in range(4): a("v_exp_f32_e64 v%d, v%d clamp" % (t + i, r + i))
        for i in range(4): a("v_max_f32 v%d, v%d, v228" % (t + 4 + i, r + i))
        d = r if keepm is None else t
        for i in range(0, 4, 2): a("v_pk_fma_f32 v[%d:%d], v[%d:%d], s[56:57], v[%d:%d]" % (d + i, d + i + 1, t + 4 + i, t + 5 + i, t + i, t + i + 1))
        if keepm is not None:
            for i in range(4): a("v_cndmask_b32 v%d, v%d, v%d, %s" % (r + i, r + i, t + i, keepm))
    def pack2(dst, r):
        a("v_cvt_pk_bf16_f32 v%d, v%d, v%d" % (dst, r, r + 1))
        a("v_cvt_pk_bf16_f32 v%d, v%d, v%d" % (dst + 1, r + 2, r + 3))
    for T in list(range(9, 13)) + list(range(5, 9)) + [13]:
        for tt in range(4):
            r = acc(T, tt)
            scale4(r, tt)
            if 5 <= T < 9: phi4(r, T8)
            elif T == 13: phi4(r, T8, keepm="s[32:33]")
            pack2(r, r)
            if T == 13: a("ds_write_b64 v%d, v[%d:%d] offset:%d" % (vI1, r, r + 1, tt * 16 * RS))
            else:
                off = C0[(T - 5) % 4] * 8 + (144 if T >= 9 else 0)
                a("ds_write_b64 v%d, v[%d:%d] offset:%d" % (vI0, r, r + 1, tt * 16 * RS + off))
    vM, vLf = 229, 230
    a("v_bfe_u32 v%d, v%d, 2, 4" % (t0, vL))
    a("v_mul_u32_u24 v%d, %d, v%d" % (t0, RS, t0))
    a("v_and_b32 v%d, 3, v%d" % (t2, vL))
    a("s_lshl_b32 s52, s%d, 2" % sWAVE)
    a("s_lshr_b32 s49, s%d, 1" % sWAVE)
    a("s_add_u32 s52, s52, s49")
    a("v_add_u32 v%d, s52, v%d" % (t3, t2))
    a("v_lshl_add_u32 v%d, v%d, 3, v%d" % (vM, t3, t0))
    a("v_lshrrev_b32 v%d, 1, v%d" % (t3, t2))
    a("v_lshl_add_u32 v%d, v%d, 2, v%d" % (t3, t2, t3))
    a("v_add_u32 v%d, 4, v%d" % (t3, t3))
    a("v_lshl_add_u32 v%d, v%d, 3, v%d" % (vLf, t3, t0))
    ONES = 232
    for i in range(4): a("v_mov_b32 v%d, 0x%x" % (ONES + i, ONE2))
    a.lg0()
    a("s_barrier")
    KC = 80
    FR = 104
    for half in range(2):
        for k4 in range(4):
            for f, (base, off) in enumerate([(vM, 0), (vLf, 0), (vM, 144), (vLf, 144)]):
                for rd in range(2):
                    r = FR + 16 * k4 + 4 * f + 2 * rd
                    a.lds("ds_read_b64_tr_b16 v[%d:%d], v%d offset:%d" % (r, r + 1, base, (32 * k4 + 16 * rd) * RS + off), k4)
        if half == 0:
            a("v_add_u32 v%d, %d, v%d" % (vM, 128 * RS, vM))
            a("v_add_u32 v%d, %d, v%d" % (vLf, 128 * RS, vLf))
        for k4 in range(4):
            a.wait_lg(lambda t: t == k4)
            b = FR + 16 * k4
            for ci, (fa, fb) in enumerate([(b, b + 8), (b + 4, b + 8), (b, b + 12), (b + 4, b + 12), (b, ONES), (b + 4, ONES)]):
                d = KC + 4 * ci
                c = "0" if (half == 0 and k4 == 0) else V(d, 4)
                a("%s %s, %s, %s, %s" % (MF, V(d, 4), V(fa, 4), V(fb, 4), c))
    a("s_lshl_b32 s52, s%d, 5" % sXG)
    a("s_add_u32 s52, s52, s%d" % sWAVE)
    a("s_mul_i32 s3, s52, 6144")
    a("s_add_u32 s3, s3, %d" % KVP_OFF)
    a("s_mul_i32 s52, s%d, 24576" % sI)
    a("s_add_u32 s58, s3, s52")
    a("s_add_u32 s59, s58, 3072")
    a("v_lshlrev_b32 v%d, 4, v%d" % (t0, vL))
    a("s_lshl_b32 s81, s%d, 7" % sXG)
    a("s_add_u32 s81, s81, %d" % FL(FKV))
    a("s_nop 2")
    for ci in range(6):
        a.vmem("buffer_store_dwordx4 %s, v%d, %s, s%d offen offset:%d %s" % (V(KC + 4 * ci, 4), t0, WSR, 58 + ci // 3, (ci % 3) * 1024, SC), "kvp")
    QF = 104
    def qphi(tt):
        for T in range(5):
            scale4(acc(T, tt), tt)
            phi4(acc(T, tt), T8)
        for h in range(4):
            pack2(QF + 16 * tt + 4 * h, acc(h, tt))
            pack2(QF + 16 * tt + 4 * h + 2, acc(4, tt))
    qphi(0); qphi(1)
    a.vm0()
    a("s_barrier")
    run(signal(a, "s_lshl2_add_u32 s49, s%d, s81" % sI))
    qphi(2); qphi(3)
    MO = 232
    a("s_and_b32 s52, s%d, 1" % sWAVE)
    a("s_lshl_b32 s49, s52, 1")
    a("v_mov_b32 v%d, 0x%x" % (t1, OOB))
    a("v_cmp_le_u32 s[32:33], s49, v%d" % vn)
    a("v_cmp_eq_u32 s[34:35], s%d, v%d" % (sWAVE, vq))
    a("v_lshrrev_b32 v%d, 2, v%d" % (t2, vn))
    a("v_cmp_eq_u32 s[10:11], s%d, v%d" % (sWAVE, t2))
    a("v_and_b32 v%d, 3, v%d" % (t2, vn))
    a("s_add_u32 s49, s49, 2")
    a("v_cmp_gt_u32 vcc, s49, v%d" % t2)
    a("v_cmp_eq_u32 s[20:21], s%d, v%d" % (sWAVE, t2))
    a("s_and_b64 s[10:11], s[10:11], vcc")
    a("s_nop 1")
    for ci, m in enumerate([32, 10, 20]):
        a("v_cndmask_b32 v%d, v%d, v%d, s[%d:%d]" % (MO + 2 * ci, t1, t0, m, m + 1))
        a("v_cndmask_b32 v%d, v%d, v%d, s[34:35]" % (MO + 2 * ci + 1, t1, MO + 2 * ci))
    vm0, vm3 = 238, 239
    a("v_cmp_le_u32 s[32:33], s52, v%d" % vq)
    a("s_sub_u32 s49, 0, s52")
    a("v_mov_b32 v%d, s49" % vm3)
    a("v_cndmask_b32 v%d, 0, -1, s[32:33]" % vm0)
    run(p2.setup_vo(240, 241, "s_mov_b32 s52, s4"))
    h0off = "s_add_u32 s49, s%d, %d" % (sFI, 128 * FH)
    run(poll_issue(a, h0off, "pl0", 255))
    poll_now(a, "s_mov_b32 s49, s81", "0xff")
    stamp(a, 5)
    p2.free = list(range(18))
    bufs = [0, 24, 48, 72, 168, 192]
    def ldp(i, base):
        a("s_add_u32 s58, s3, %d" % (i * 24576))
        a("s_add_u32 s59, s58, 3072")
        for ci in range(6):
            a.vmem("buffer_load_dwordx4 %s, v%d, %s, s%d offen offset:%d %s" % (V(base + 4 * ci, 4), MO + ci, WSR, 58 + ci // 3, (ci % 3) * 1024, SC), ("kv", i))
    for i in range(6): ldp(i, bufs[i])
    for i in range(1, 8):
        a.wait_vm(lambda t: t == ("kv", i))
        b = bufs[i] if i < 6 else bufs[i - 5]
        for r in range(0, 24, 2): a("v_pk_add_f32 v[%d:%d], v[%d:%d], v[%d:%d]" % (r, r + 1, r, r + 1, b + r, b + r + 1))
        if i + 5 < 8: ldp(i + 5, bufs[i])
        if i == 2: run(poll_check(a, h0off, "pl0", "s71", 255))
        if 2 <= i < 6: run(p2.dma_issue(i - 2, 0) + p2.dma_issue(i - 2, 1) + p2.dma_issue(i - 2, 2) + p2.h_issue(i - 2))
    for f in range(3):
        pack2(24 + 4 * f, 8 * f)
        pack2(24 + 4 * f + 2, 8 * f + 4)
        a("v_and_b32 v%d, v%d, v%d" % (24 + 4 * f, 24 + 4 * f, vm0))
        a("v_and_b32 v%d, v%d, v%d" % (24 + 4 * f + 3, 24 + 4 * f + 3, vm3))
    a("s_mul_i32 s52, s%d, 3072" % sWAVE)
    a("v_add_u32 v%d, 0x25000, v%d" % (t0, t0))
    a("v_add_u32 v%d, s52, v%d" % (t1, t0))
    for f in range(3):
        a("ds_write_b128 v%d, %s offset:%d" % (t1, V(24 + 4 * f, 4), f * 1024))
    a("s_waitcnt lgkmcnt(0)")
    a("s_barrier")
    AF = 168
    for i in range(12):
        a("ds_read_b128 %s, v%d offset:%d" % (V(AF + 4 * i, 4), t0, i * 1024))
    a("s_lshl_b32 s52, s%d, 1" % sXG)
    a("s_add_u32 s52, s52, 144")
    a("s_mul_i32 s58, s52, %d" % KSTRIDE)
    a("s_add_u32 s58, s58, %d" % H_OFF)
    a("s_add_u32 s59, s58, %d" % KSTRIDE)
    a("s_lshr_b32 s52, s%d, 1" % sXG)
    a("s_add_u32 s52, s52, 160")
    a("s_mul_i32 s57, s52, %d" % KSTRIDE)
    a("s_and_b32 s52, s%d, 1" % sXG)
    a("s_lshl_b32 s52, s52, 3")
    a("s_add_u32 s57, s57, s52")
    a("s_add_u32 s57, s57, %d" % H_OFF)
    a("s_mov_b32 s56, %s" % f32(LOG2E))
    a("v_cmp_eq_u32 s[32:33], 1, v%d" % vq)
    a("v_cmp_eq_u32 s[34:35], 2, v%d" % vq)
    a("v_cmp_eq_u32 s[10:11], 3, v%d" % vq)
    a("s_waitcnt lgkmcnt(0)")
    for tt in range(4):
        o = 24 * tt
        for h in range(4):
            qf = V(QF + 16 * tt + 4 * h, 4)
            a("%s %s, %s, %s, 0" % (MF, V(o + 4 * h, 4), V(AF + 12 * h, 4), qf))
            a("%s %s, %s, %s, %s" % (MF, V(o + 16, 4), V(AF + 12 * h + 4, 4), qf, "0" if h == 0 else V(o + 16, 4)))
            a("%s %s, %s, %s, %s" % (MF, V(o + 20, 4), V(AF + 12 * h + 8, 4), qf, "0" if h == 0 else V(o + 20, 4)))
    a("s_nop 7")
    for tt in range(4):
        o = 24 * tt
        for h in range(4): a("v_fma_f32 v%d, v%d, s56, v228" % (o + 20 + h, o + 20 + h))
        for h in range(4): a("v_rcp_f32 v%d, v%d" % (o + 20 + h, o + 20 + h))
        a("s_nop 0")
        a("v_cndmask_b32 v%d, v%d, v%d, s[32:33]" % (T8 + 8, o + 20, o + 21))
        a("v_cndmask_b32 v%d, v%d, v%d, s[34:35]" % (T8 + 8, T8 + 8, o + 22))
        a("v_cndmask_b32 v%d, v%d, v%d, s[10:11]" % (T8 + 8, T8 + 8, o + 23))
        for h in range(4):
            b, sel = o + 20 + (h & 2), h & 1
            for i in (0, 2): a("v_pk_mul_f32 v[%d:%d], v[%d:%d], v[%d:%d] op_sel:[0,%d] op_sel_hi:[1,%d]" % (o + 4 * h + i, o + 4 * h + i + 1, o + 4 * h + i, o + 4 * h + i + 1, b, b + 1, sel, sel))
        for i in (0, 2): a("v_pk_mul_f32 v[%d:%d], v[%d:%d], v[%d:%d] op_sel_hi:[1,0]" % (o + 16 + i, o + 17 + i, o + 16 + i, o + 17 + i, T8 + 8, T8 + 9))
        pack2(o, o); pack2(o + 2, o + 4)
        pack2(o + 4, o + 8); pack2(o + 6, o + 12)
        pack2(o + 8, o + 16)
        a.vmem("buffer_store_dwordx4 %s, v%d, %s, s58 offen offset:%d %s" % (V(o, 4), vX, WSR, tt * 1024, SC), "o")
        a.vmem("buffer_store_dwordx4 %s, v%d, %s, s59 offen offset:%d %s" % (V(o + 4, 4), vX, WSR, tt * 1024, SC), "o")
        a.vmem("buffer_store_dwordx2 %s, v%d, %s, s57 offen offset:%d %s" % (V(o + 8, 2), vX, WSR, tt * 1024, SC), "o")
    for o_, n_ in zip(keep[:5], new[:5]): a("v_mov_b32 v%d, v%d" % (o_, n_))
    vL, vX, vFS, vFP, vTK, vPL = keep
    p2.setup_special(176, 177, 178)
    tr_addrs(a, 176, 177, 178)
    a("s_mul_i32 s%d, s70, 4160" % sPX)
    a("s_lshl2_add_u32 s81, s%d, s%d" % (sXG, sFI))
    osig = lambda: signal(a, "s_add_u32 s49, s81, %d" % (128 * FO))
    stamp(a, 6)
    lgo = a.newlabel("Lp2a")
    a("s_cmp_lt_u32 s%d, 6" % sXG)
    a("s_cbranch_scc1 %s" % lgo)
    a("s_waitcnt vmcnt(0)")
    a("s_barrier")
    keepvm = list(a.vm)
    run(osig())
    a.vm = keepvm
    a("s_branch L_fin_idle")
    a.label(lgo)
    hooks = {}
    def add(st, key, v): hooks.setdefault(st, {}).setdefault(key, []).extend(v)
    add(1, "bar", ["o"]); add(1, "after", osig())
    ooff = "s_add_u32 s49, s%d, %d" % (sFI, 128 * FO)
    NSA = len(steps)
    add(3, "after", poll_issue(a, ooff, "plo"))
    add(5, "after", poll_check(a, ooff, "plo", "s72") + [(0, lambda: marks.add("o"))])
    wvm(a, [("w2", 0, k_) for k_ in range(3)])
    a("s_barrier")
    p2.visible.update((0, k_) for k_ in range(3))
    S_ = Stream(a, "v", WF)
    p2.add_slots(S_)
    S_.prime()
    S_.jobs += p2.jobs(4, lambda st: True, lambda st: st < NSA - 2 or "o" in marks)
    p2.main(S_, hooks, [18, 19])

def phase3(a):
    a.vm = [("x3", 0)] * 2 + [("p", 0, r) for r in range(NSL)]; a.lg = []
    a("s_cmp_eq_u32 s%d, 3" % sWAVE)
    a("s_cbranch_scc1 L_fin_poll")
    a("s_barrier")
    fin_loads(a, 1)
    fin_sum(a, 0)
    a("s_barrier")
    stamp(a, 14)
    fin_loads(a, 2)
    fin_sum(a, 1)
    fin_sum(a, 2)
    a("s_branch L_done")
    a.label("L_fin_poll")
    a.vm = []
    poll_now(a, "s_add_u32 s49, s%d, %d" % (sFI, 128 * (FP + 8)), "s73")
    a("s_barrier")
    poll_now(a, "s_add_u32 s49, s%d, %d" % (sFI, 128 * (FP + 16)), "s73")
    a("s_barrier")
    a("s_cmp_lg_u32 s2, 0")
    a("s_cbranch_scc1 L_done")
    a("s_mov_b32 s49, 0x%x" % FL(0))
    a("buffer_store_dword v%d, v%d, %s, s49 offen" % (vTK, vFS, WSR))
    a.label("L_done")

def fin_idle(a):
    a.label("L_fin_idle")
    a.vm = []; a.lg = []
    run(fin_setup(a))
    poll_now(a, "s_add_u32 s49, s%d, %d" % (sFI, 128 * FP), "s73")
    fin_loads(a, 0)
    a("s_branch L_final")

def code_prefetch(a):
    a("s_getpc_b64 s[60:61]")
    l = a.newlabel("Lpc")
    a.label(l)
    a("s_sub_u32 s%d, s60, %s-%s" % (rW2, l, NAME))
    a("s_subb_u32 s%d, s61, 0" % (rW2 + 1))
    a("s_and_b32 s%d, s%d, 0xffff" % (rW2 + 1, rW2 + 1))
    a("s_mov_b32 s%d, L_code_end-%s" % (rW2 + 2, NAME))
    a("s_mov_b32 s%d, 0x20000" % (rW2 + 3))
    a("s_lshr_b32 s52, s2, 3")
    a("s_lshl_b32 s52, s52, 12")
    a("s_lshl_b32 s49, s%d, 10" % sWAVE)
    a("s_add_u32 s52, s52, s49")
    a("v_lshlrev_b32 v63, 4, v%d" % vL)
    a.vmem("buffer_load_dword v%d, v63, s[%d:%d], s52 offen" % (vPL, rW2, rW2 + 3), "pf")

def build():
    a = Asm()
    a.raw("; @launch grid=(256,1,1) block=(256,1,1) lds=%d" % LDS_BYTES)
    a.raw('.amdgcn_target "amdgcn-amd-amdhsa--gfx950"')
    a.raw(".text")
    kernel_begin(a, NAME)
    a("s_cmp_ge_u32 s2, 256")
    a("s_cbranch_scc1 L_end")
    a("s_load_dwordx16 s[4:19], s[0:1], 0")
    a("s_load_dwordx4 s[20:23], s[0:1], 64")
    if CFG.stamp:
        for i in range(16): a("s_mov_b32 s%d, 0" % (84 + i))
        a("s_memrealtime s[100:101]")
    a("v_and_b32 v%d, 63, v0" % vL)
    a("v_lshrrev_b32 v1, 6, v0")
    a("v_cmp_eq_u32 vcc, 0xc0, v0")
    a("v_readfirstlane_b32 s%d, v1" % sWAVE)
    a("v_mov_b32 v1, 0x%x" % OOB)
    a("s_lshr_b32 s%d, s2, 6" % sC)
    a("v_cndmask_b32 v%d, v1, v%d, vcc" % (vFS, vL))
    a("v_and_b32 v1, 31, v0")
    a("v_lshlrev_b32 v%d, 2, v1" % vFP)
    if CFG.mapping == 0:
        a("s_and_b32 s%d, s2, 7" % sXG)
        a("s_bfe_u32 s%d, s2, 0x30003" % sI)
    elif CFG.mapping == 1:
        a("s_and_b32 s%d, s2, 3" % sXG)
        a("s_bfe_u32 s52, s2, 0x10003")
        a("s_lshl1_add_u32 s%d, s%d, s52" % (sXG, sXG))
        a("s_and_b32 s%d, s2, 4" % sI)
        a("s_bfe_u32 s52, s2, 0x20004")
        a("s_add_u32 s%d, s%d, s52" % (sI, sI))
    elif CFG.mapping == 4:
        a("s_and_b32 s%d, s2, 3" % sXG)
        a("s_bfe_u32 s52, s2, 0x10003")
        a("s_lshl1_add_u32 s%d, s%d, s52" % (sXG, sXG))
        a("s_bfe_u32 s%d, s2, 0x20004" % sI)
        a("s_bfe_u32 s52, s2, 0x10002")
        a("s_lshl1_add_u32 s%d, s%d, s52" % (sI, sI))
    a("s_mul_i32 s%d, s%d, %d" % (sROT, sC, CFG.rotc))
    a("s_add_u32 s%d, s%d, s%d" % (sROT, sROT, sI))
    if CFG.mapping != 0 and CFG.rotc:
        a("s_and_b32 s52, s%d, 1" % sXG)
        a("s_add_u32 s%d, s%d, s52" % (sROT, sROT))
    a("s_cmp_ge_u32 s%d, 9" % sROT)
    a("s_cselect_b32 s52, 9, 0")
    a("s_sub_u32 s%d, s%d, s52" % (sROT, sROT))
    a("s_lshl_b32 s52, s%d, 14" % sI)
    a("s_lshl_b32 s49, s%d, 12" % sWAVE)
    a("s_add_u32 s52, s52, s49")
    a("v_lshl_add_u32 v%d, v%d, 4, s52" % (vX, vL))
    a("s_lshl_b32 s%d, s%d, 7" % (sFI, sI))
    a("s_add_u32 s%d, s%d, 0x%x" % (sFI, sFI, FLG_OFF))
    a("s_waitcnt lgkmcnt(0)")
    if CFG.stamp: a("s_mov_b32 s84, s100")
    srd(a, rX, sX, 2048 * 1152)
    a("s_add_u32 s60, s%d, 0x%x" % (sWS, FL(0)))
    a("s_addc_u32 s61, s%d, 0" % (sWS + 1))
    a("s_load_dword s%d, s[60:61], 0" % sTOK)
    stats_load(a)
    srd(a, rWS, sWS, WS_BYTES)
    vm0 = list(a.vm)
    a("s_cmp_eq_u32 s%d, 3" % sC)
    a("s_cbranch_scc1 L_attn")
    path_mlp(a)
    a.label("L_final")
    phase3(a)
    stamp_out(a)
    a.label("L_end")
    a("s_endpgm")
    a.vm = vm0; a.lg = []
    a.label("L_attn")
    path_attn(a)
    a("s_branch L_final")
    fin_idle(a)
    a.lines += LATER
    a.label("L_code_end")
    a("s_endpgm")
    a.raw('.section .rodata,"a"')
    a.raw(kernel_desc(NAME, 512, 256))
    return a.text()

if __name__ == "__main__":
    args = sys.argv[1:]
    out = "parallel_sum__linear_attn_block__glu_gated_swiglu__prompt.s"
    for x in args:
        if x == "--stamp": CFG.stamp = True
        elif x == "-v": VERB = True
        elif "=" in x:
            k, v = x.split("="); assert hasattr(CFG, k), k; setattr(CFG, k, float(v) if "." in v else int(v))
        else: out = x
    open(out, "w").write(build())
    if CFG.stamp: open(out + ".slow", "w").write("\n".join(NSLOW))
```

```python
import sys, math
from lib import *

NAME = "parallel_sum__linear_attn_block__glu_gated_swiglu__prompt_kernel"
LOG2E = 1.4426950408889634
KSTRIDE = 131072
H_OFF = 18 * KSTRIDE
KVP_OFF = H_OFF + 164 * KSTRIDE
PART_OFF = KVP_OFF + 8 * 8 * 4 * 6 * 1024
PSL = 18 * KSTRIDE
FLG_OFF = PART_OFF + 10 * PSL
ST_OFF = 0
CS_OFF = 0x10000
WS_BYTES = 268435456
OOB = 0x7f000000
LDS_BYTES = 163840
SC = "sc0 sc1"
def FL(line): return FLG_OFF + 128 * line
FH, FKV, FO, FP, FC = 16, 56, 64, 72, 96

sX, sWQKV, sWO, sW1, sW3, sW2, sOUT, sDBG, sWS = 4, 6, 8, 12, 14, 16, 18, 20, 22
rWS, rWA, rX, rW2, rWO = 24, 28, 36, 40, 44
sWAVE, sI, sXG, sC, sTOK = 48, 50, 51, 78, 79
sFI = 80
sXo, sWo, sXL, sOne2, sCSB, sFC, sROT = 32, 33, 34, 35, 82, 83, 81
MF = "v_mfma_f32_16x16x32_bf16"
MF16 = "v_mfma_f32_16x16x16_bf16"
WSR = "s[%d:%d]" % (rWS, rWS + 3)
XR = "s[%d:%d]" % (rX, rX + 3)
ONE2 = 0x3f803f80

VERB = False
class Cfg:
    stamp = False
    mapping = 0
    split = 12
    kseq = 6
    sset = 0
    swave = 0
    pf = 1
    rotc = 0
    vmrate = 85
    epirate = 4.0
    age = 8
    dbgwg = -1
    sbase = 0
    sstep = 2
    exb = 9
    edl = 36
    late = 0
    relper = 4
    pfat = -2
CFG = Cfg()

def stamp(a, i, sset=0):
    if CFG.stamp and (sset == CFG.sset or i in (3, 15)):
        a("s_memrealtime s[100:101]")
        a.lg0()
        a("s_mov_b32 s%d, s100" % (84 + i))
def stamp_out(a):
    if not CFG.stamp: return
    a("s_waitcnt vmcnt(0)")
    stamp(a, 15)
    l = a.newlabel("Lst")
    a("s_cmp_lg_u32 s%d, %d" % (sWAVE, CFG.swave))
    a("s_cbranch_scc1 %s" % l)
    a("s_lshl_b32 s3, s2, 6")
    a("s_add_u32 s3, s3, 0xF000000")
    a("v_mov_b32 v1, s3")
    a("s_mov_b64 exec, 1")
    for i in range(8):
        a("v_mov_b32 v2, s%d" % (84 + 2 * i))
        a("v_mov_b32 v3, s%d" % (85 + 2 * i))
        a("global_store_dwordx2 v1, v[2:3], s[%d:%d] offset:%d" % (sWS, sWS + 1, i * 8))
    if CFG.dbgwg >= 0:
        a("s_cmp_lg_u32 s2, %d" % CFG.dbgwg)
        a("s_cbranch_scc1 %s" % l)
        a("s_load_dwordx2 s[20:21], s[0:1], 64")
        a("s_waitcnt lgkmcnt(0)")
        a("v_mov_b32 v1, 0")
        for i in range(16):
            a("s_sub_u32 s3, s%d, s84" % (84 + i)) if i != 1 else a("s_mov_b32 s3, s85")
            a("v_mov_b32 v2, s3")
            a("global_store_dword v1, v2, s[20:21] offset:%d" % (4 * i))
    a.label(l)

vL, vX, vFS, vFP, vTK, vPL = 174, 175, 216, 217, 218, 219

NOPS = {"w": 2, "x": 8, "xr": 16, "csa": 2, "cs": 1, "h": 4, "w2": 2, "h2": 4, "part": 4, "ex": 8, "o": 12, "stf": 4}
def chk(a, tag, **over):
    k = tag if isinstance(tag, str) else tag[0]
    a.expect(tag, over.get(k, NOPS.get(k, 1)))
def wvm(a, tags, **over):
    for t in tags: chk(a, t, **over)
    a.wait_vm(lambda t: t in tags)
def wlg(a, tags):
    for t in tags: chk(a, t)
    a.wait_lg(lambda t: t in tags)

def I(a, s, c=1):
    def fn(): a(s)
    fn.code = s
    return (c, fn)
def Q(a, code):
    out = []; ls = [l.strip() for l in code.split("\n") if l.strip()]
    i = 0
    while i < len(ls):
        grp = [ls[i]]
        if ls[i].startswith(("s_cmp", "s_bitcmp")):
            while i + 1 < len(ls) and ls[i + 1].startswith(("s_cmov", "s_cselect")):
                i += 1; grp.append(ls[i])
        out.append(I(a, "\n".join(grp), len(grp)))
        i += 1
    return out
def VM(a, fmt, tag=None):
    def fn(): a.vmem(fmt() if callable(fmt) else fmt, tag)
    fn.vm = True
    return (1, fn)
def run(fns):
    for c, fn in fns: fn()

def signal(a, soff_code, tag=None):
    return [I(a, soff_code),
            (1, lambda: a.vmem("buffer_store_dword v%d, v%d, %s, s49 offen %s" % (vTK, vFS, WSR, SC), tag))]

LATER = []
NSLOW = []
def slow_path(a, body, name):
    ls, lb, lp = a.newlabel("Lslow"), a.newlabel("Lback"), a.newlabel("Lspin")
    a("s_cbranch_scc1 %s" % ls)
    a.label(lb)
    b = Asm()
    b.label(ls)
    b("s_mov_b32 s59, 40000")
    if CFG.stamp:
        NSLOW.append(name)
        b("s_or_b32 s85, s85, 0x%x" % (1 << (len(NSLOW) - 1)))
    b.label(lp)
    b("s_sleep 1")
    body(b)
    b("s_cbranch_scc0 %s" % lb)
    b("s_sub_u32 s59, s59, 1")
    b("s_cmp_lg_u32 s59, 0")
    b("s_cbranch_scc1 %s" % lp)
    b("s_branch %s" % lb)
    LATER.extend(b.lines)
def poll_issue(a, soff_code, tag, dst=None):
    return [I(a, soff_code),
            (1, lambda: a.vmem("buffer_load_dword v%d, v%d, %s, s49 offen %s" % (dst or vPL, vFP, WSR, SC), tag))]
def poll_check(a, soff_code, tag, mask, dst=None):
    def f1():
        wvm(a, [tag])
        a("v_cmp_eq_u32 vcc, s%d, v%d" % (sTOK, dst or vPL))
    def f2():
        d = dst or vPL
        a("s_andn2_b32 s61, %s, vcc_lo" % mask)
        def body(b):
            b(soff_code)
            b("buffer_load_dword v%d, v%d, %s, s49 offen %s" % (d, vFP, WSR, SC))
            b("s_waitcnt vmcnt(0)")
            b("v_cmp_eq_u32 vcc, s%d, v%d" % (sTOK, d))
            b("s_andn2_b32 s61, %s, vcc_lo" % mask)
        slow_path(a, body, str(tag))
    return [(2, f1), (2, f2)]
def poll_now(a, soff_code, mask):
    tag = ("poll", a.newlabel())
    run(poll_issue(a, soff_code, tag))
    run(poll_check(a, soff_code, tag, mask))

def stats_load(a):
    a("s_lshl_b32 s52, s2, 2")
    a("s_add_u32 s52, s52, s%d" % sWAVE)
    a("v_lshrrev_b32 v40, 5, v%d" % vL)
    a("v_lshl_add_u32 v40, s52, 1, v40")
    a("v_mul_u32_u24 v41, 1152, v40")
    a("v_and_b32 v42, 31, v%d" % vL)
    a("v_lshl_add_u32 v43, v42, 4, v41")
    a("v_cmp_gt_u32 s[60:61], 8, v42")
    a("v_mov_b32 v45, 0x%x" % OOB)
    a.vmem("buffer_load_ushort v46, v41, %s, 0 offen" % XR, "ln")
    a.vmem("buffer_load_dwordx4 v[0:3], v43, %s, 0 offen" % XR, "ln")
    a("v_cndmask_b32 v44, v45, v43, s[60:61]")
    a.vmem("buffer_load_dwordx4 v[4:7], v43, %s, 0 offen offset:512" % XR, "ln")
    a.vmem("buffer_load_dwordx4 v[8:11], v44, %s, 0 offen offset:1024" % XR, "ln")
    a("v_cmp_eq_u32 vcc, 0, v42")
    a("v_cndmask_b32 v47, 0, -1, s[60:61]")
    a("v_lshlrev_b32 v40, 4, v40")
    a("v_cndmask_b32 v40, v45, v40, vcc")
def stats_compute(a):
    a.wait_vm(lambda t: t == "ln")
    a("v_lshlrev_b32 v46, 16, v46")
    a("v_and_b32 v47, v47, v46")
    D = 12
    for r in range(12):
        a("v_lshlrev_b32 v%d, 16, v%d" % (D + 2 * r, r))
        a("v_and_b32 v%d, 0xffff0000, v%d" % (D + 1 + 2 * r, r))
    for r in range(24):
        a("v_sub_f32 v%d, v%d, v%d" % (D + r, D + r, 46 if r < 16 else 47))
    a("v_pk_mul_f32 v[2:3], v[12:13], v[12:13]")
    a("v_pk_add_f32 v[0:1], v[12:13], v[14:15]")
    a("v_pk_fma_f32 v[2:3], v[14:15], v[14:15], v[2:3]")
    for r in range(4, 24, 2):
        a("v_pk_add_f32 v[0:1], v[0:1], v[%d:%d]" % (D + r, D + r + 1))
        a("v_pk_fma_f32 v[2:3], v[%d:%d], v[%d:%d], v[2:3]" % (D + r, D + r + 1, D + r, D + r + 1))
    a("v_add_f32 v0, v0, v1")
    a("v_add_f32 v1, v2, v3")
    for ror in (1, 2, 4, 8):
        a("s_nop 1")
        a("v_add_f32_dpp v0, v0, v0 row_ror:%d row_mask:0xf bank_mask:0xf" % ror)
        a("v_add_f32_dpp v1, v1, v1 row_ror:%d row_mask:0xf bank_mask:0xf" % ror)
    a("v_mov_b32 v2, v0")
    a("v_mov_b32 v3, v1")
    a("s_waitcnt lgkmcnt(0)")
    a("s_add_u32 s%d, s%d, 1" % (sTOK, sTOK))
    a("v_permlane16_swap_b32 v0, v2")
    a("v_permlane16_swap_b32 v1, v3")
    a("v_mov_b32 v%d, s%d" % (vTK, sTOK))
    a("s_mov_b32 s49, %d" % ST_OFF)
    a("v_add_f32 v0, v0, v2")
    a("v_add_f32 v1, v1, v3")
    a("v_mul_f32 v0, %s, v0" % f32(1.0 / 576))
    a("v_mul_f32 v1, %s, v1" % f32(1.0 / 576))
    a("v_fma_f32 v1, -v0, v0, v1")
    a("v_max_f32 v1, 0, v1")
    a("v_add_f32 v0, v0, v46")
    a("v_cvt_pk_bf16_f32 v1, v1, v1")
    a("v_cvt_pk_bf16_f32 v4, -v0, -v0")
    a("v_and_b32 v1, 0xffff0000, v1")
    a("v_add_f32 v1, %s, v1" % f32(1e-5))
    a("v_cvt_pk_bf16_f32 v1, v1, v1")
    a("v_and_b32 v1, 0xffff0000, v1")
    a("v_sqrt_f32 v1, v1")
    a("v_mov_b32 v5, s%d" % sTOK)
    a("v_mov_b32 v7, s%d" % sTOK)
    a("v_cvt_pk_bf16_f32 v1, v1, v1")
    a("v_and_b32 v6, 0xffff0000, v1")
    a.vmem("buffer_store_dwordx4 v[4:7], v40, %s, s49 offen %s" % (WSR, SC), "st")

def lane_fields(a, vq, vrow, vc):
    a("v_lshrrev_b32 v%d, 4, v%d" % (vq, vL))
    a("v_bfe_u32 v%d, v%d, 2, 3" % (vrow, vL))
    a("v_and_b32 v%d, 3, v%d" % (vc, vL))

def dma_lane_off(a, vD, t0, t1, rowbytes):
    return [I(a, "v_lshrrev_b32 v%d, 3, v%d" % (t0, vL)),
            I(a, "v_and_b32 v%d, 6, v%d" % (t1, t0)),
            I(a, "v_xor_b32 v%d, v%d, v%d" % (t1, t1, vL)),
            I(a, "v_and_b32 v%d, 7, v%d" % (t1, t1)),
            I(a, "v_mul_u32_u24 v%d, %d, v%d" % (t0, rowbytes, t0)),
            I(a, "v_lshl_add_u32 v%d, v%d, 4, v%d" % (vD, t1, t0))]

RA = 160
def tr_addrs(a, t0, t1, t2):
    lane_fields(a, t0, t1, t2)
    a("v_lshrrev_b32 v%d, 1, v%d" % (t0, t0))
    a("v_lshlrev_b32 v%d, 10, v%d" % (t0, t0))
    a("v_lshl_add_u32 v%d, v%d, 7, v%d" % (t0, t1, t0))
    a("v_lshl_add_u32 v%d, v%d, 3, v%d" % (t0, t2, t0))
    a("v_lshrrev_b32 v%d, 1, v%d" % (t1, t1))
    for u in range(4):
        a("v_xor_b32 v%d, %d, v%d" % (t2, u, t1))
        a("v_lshl_add_u32 v%d, v%d, 5, v%d" % (RA + u, t2, t0))
        a("v_add_u32 v%d, 0x10000, v%d" % (RA + 4 + u, RA + u))
        a("v_add_u32 v%d, 0x20000, v%d" % (RA + 8 + u, RA + u))

class XStage:
    def __init__(self, a, XO, XA, base, R, reg):
        self.a, self.XO, self.XA, self.base, self.R, self.reg = a, XO, XA, base, R, reg
    def setup_dma(self, t0, t1):
        a = self.a
        a("v_lshrrev_b32 v%d, 3, v%d" % (t0, vL))
        a("v_lshrrev_b32 v%d, 1, v%d" % (t1, t0))
        a("v_xor_b32 v%d, v%d, v%d" % (t1, t1, vL))
        a("v_and_b32 v%d, 7, v%d" % (t1, t1))
        a("s_lshl_b32 s52, s%d, 8" % sI)
        a("s_lshl_b32 s49, s%d, 6" % sWAVE)
        a("s_add_u32 s52, s52, s49")
        a("v_add_u32 v%d, s52, v%d" % (t0, t0))
        a("v_mul_u32_u24 v%d, 1152, v%d" % (t0, t0))
        a("v_lshl_add_u32 v%d, v%d, 4, v%d" % (self.XO, t1, t0))
        a("v_xor_b32 v%d, 64, v%d" % (self.XO + 1, self.XO))
        a("v_add_u32 v%d, %d, v%d" % (self.XO + 2, 2 * (8 * 1152 - 1024), self.XO))
        a("v_add_u32 v%d, %d, v%d" % (self.XO + 3, 3 * (8 * 1152 - 1024), self.XO + 1))
        a("v_add_u32 v%d, %d, v%d" % (self.XO + 1, 8 * 1152 - 1024, self.XO + 1))
        a("s_mul_i32 s%d, s%d, %d" % (sXL, sWAVE, self.R * 8192))
        a("s_add_u32 s%d, s%d, %d" % (sXL, sXL, self.base))
        a("s_lshl_b32 s%d, s%d, 7" % (sXo, sROT))
    def setup_read(self, t0, t1, t2):
        a = self.a
        a("v_and_b32 v%d, 15, v%d" % (t0, vL))
        a("v_lshrrev_b32 v%d, 1, v%d" % (t1, t0))
        a("v_lshrrev_b32 v%d, 5, v%d" % (t2, vL))
        a("v_xor_b32 v%d, v%d, v%d" % (t1, t1, t2))
        a("v_lshlrev_b32 v%d, 7, v%d" % (t0, t0))
        a("v_lshl_add_u32 v%d, v%d, 4, v%d" % (t0, t1, t0))
        a("v_bfe_u32 v%d, v%d, 4, 1" % (t2, vL))
        a("v_lshl_add_u32 v%d, v%d, 3, v%d" % (t0, t2, t0))
        a("v_add_u32 v%d, s%d, v%d" % (self.XA, sXL, t0))
        for k in range(1, 4):
            a("v_xor_b32 v%d, %d, v%d" % (self.XA + k, 32 * k, self.XA))
    def dma(self, p):
        a = self.a
        fns = []
        if p >= self.R: fns.append((1, lambda: wlg(a, [("xr", p - self.R)])))
        for hf in range(2):
            fns.append(I(a, "s_add_u32 m0, s%d, %d" % (sXL, (p % self.R) * 8192 + hf * 4096)))
            fns.append(I(a, "s_add_u32 s54, s%d, %d" % (sXo, hf * 32 * 1152)))
            for b in range(4):
                fns.append(VM(a, "buffer_load_dwordx4 v%d, %s, s54 offen offset:%d lds" % (self.XO + b, XR, b * 1024), ("x", p)))
        fns.append(I(a, "s_add_u32 s%d, s%d, 128\ns_cmp_ge_u32 s%d, 1152\ns_cmov_b32 s%d, 0" % (sXo, sXo, sXo, sXo), 3))
        return fns
    def job(self, p):
        return ("x", lambda: p < self.R or self.a.cnt.get(("xr", p - self.R), 0) == 16, lambda: self.dma(p))
    def reads(self, p):
        a = self.a
        fns = [(1, lambda: wvm(a, [("x", p)]))]
        for e in range(2):
            for tt in range(4):
                for h in range(2):
                    k, b = self.reg(2 * p + e, tt)
                    fns.append((1, lambda k=k, b=b, e=e, tt=tt, h=h: a.lds("ds_read_b64 %s, v%d offset:%d" % (R(k, b + 2 * h, 2), self.XA + 2 * e + h, (p % self.R) * 8192 + tt * 2048), ("xr", p))))
        return fns

class Stream:
    def __init__(self, a, kind, base):
        self.a, self.kind, self.base = a, kind, base
        self.slots = []; self.ring = []
        self.nring = 0
        self.next_rd = 0
        self.epi = []; self.deadline = 0; self.epiP = None
        self.extra = []
        self.vmacc = 1.0; self.vmrate = CFG.vmrate / 100.0
        self.jobs = []; self.mem = []
        self.pos = 0
    def refill(self):
        if self.mem: return
        blocked = set()
        for j, (cl, ready, make) in enumerate(self.jobs):
            if cl in blocked: continue
            if len(self.a.vm) <= 50 and ready():
                self.mem = make(); self.jobs.pop(j); return
            blocked.add(cl)
    def head(self, q):
        if q and "\n" in getattr(q[0][1], "code", "") and not getattr(q[0][1], "atom", False):
            parts = Q(self.a, q[0][1].code)
            for c, f in parts: f.atom = True
            q[0:1] = parts
        return q[0] if q else None
    def add(self, rd, mf):
        self.slots.append((rd, mf))
        self.ring.append(self.nring if rd else None)
        if rd: self.nring += 1
    def cur_ring(self, s):
        while s < len(self.slots) and self.ring[s] is None: s += 1
        return self.ring[s] if s < len(self.slots) else self.nring
    def read_limit(self, s):
        r = self.cur_ring(s)
        return (r & ~3) + 3 + min(2 * ((r & 3) + 1), 4)
    def pending_reads(self, lim):
        out = []
        while self.next_rd < len(self.slots):
            n = self.next_rd
            if self.ring[n] is None: self.next_rd += 1; continue
            if self.ring[n] > lim: break
            out += self.slots[n][0](self.kind, self.base + 4 * (self.ring[n] % 8), ("f", self.ring[n]))
            self.next_rd += 1
        return out
    def prime(self): run(self.pending_reads(self.cur_ring(self.pos) | 3))
    def epi_cost(self): return sum(c for c, _ in self.epi)
    def emit(self, pre=(), push=0):
        a = self.a
        s = self.pos
        rd, mf = self.slots[s]
        r = self.ring[s]
        if r is not None and ("f", r) in a.lg:
            a.wait_lg(lambda t: t is not None and t[0] == "f" and t[1] <= (r | 3))
        must = list(pre) + self.pending_reads(self.read_limit(s))
        mfmas = mf(R(self.kind, self.base + 4 * (r % 8), 4) if r is not None else None)
        n = len(mfmas)
        nr = self.ring[s + 1] if s + 1 < len(self.slots) else None
        caps = [2] * n
        if nr is not None and nr % 4 == 0: caps[-1] -= 1
        force = 0
        if self.epi:
            left = max(self.deadline - s, 1)
            force = self.epi_cost() - int((left - 1) * CFG.epirate) if n == 4 or left == 1 else 0
            if left * CFG.epirate < self.epi_cost(): force = math.ceil(self.epi_cost() / left) if n == 4 or left == 1 else 0
        self.vmacc = min(self.vmacc + (self.vmrate if n == 4 else 0), 2.0)
        mpush = 0
        if force > 0 and n == 4:
            if self.extra: push = max(push, 2)
            self.refill() if not pre else None
            if self.mem and self.vmacc >= 1: mpush = 2
        over = max(0, sum(c for c, _ in must) + max(force, 0) + push + mpush - sum(caps))
        for g in range(over): caps[g % n] += 1
        for g, m in enumerate(mfmas):
            a(m)
            cap = caps[g]
            while True:
                if must:
                    if must[0][0] <= cap or g == n - 1 or cap == caps[g]:
                        c, f = must.pop(0); f(); cap -= c; continue
                cands = []
                if n == 4 and push > 0: cands.append("extra")
                if n == 4 and mpush > 0: cands.append("mem")
                if force > 0 and self.epi: cands.append("epi")
                if n == 4: cands += ["mem", "extra", "epi"]
                done = False
                for q in cands:
                    if q == "mem":
                        if must or pre and g == 0: continue
                        self.refill()
                    if q == "extra" and (must or (pre and g == 0)): continue
                    lst = getattr(self, q)
                    h = self.head(lst)
                    if h is None: continue
                    vm = getattr(h[1], "vm", False)
                    if q == "mem" and vm and self.vmacc < 1: continue
                    if h[0] <= cap or (h[0] > 2 and cap == caps[g]) or (q == "epi" and force > 0 and g == n - 1):
                        lst.pop(0); h[1](); cap -= h[0]
                        if vm: self.vmacc -= 1
                        if q == "epi": force -= h[0]
                        if q == "extra": push -= h[0]
                        if q == "mem": mpush -= h[0]
                        done = True; break
                if not done: break
        self.pos += 1

def tr_read(a, off_fn, u):
    def rd(kind, reg, tag):
        off = off_fn()
        return [(1, lambda h=h: a.lds("ds_read_b64_tr_b16 %s, v%d offset:%d" % (R(kind, reg + 2 * h, 2), RA + 4 * (off >> 16) + u, (off & 0xffff) + h * 2048), tag)) for h in range(2)]
    return rd

WF = 128
HRING = 10
GORDER = [2, 1, 0]
def acc2(c, tt):
    g, k = c >> 2, c & 3
    if k >= 2: return ("a", 160 + 32 * g + 16 * (k - 2) + 4 * tt)
    return ("v", (32 * g if g < 2 else 224) + 16 * k + 4 * tt)
def hr(st, tt): return A(16 * (st % HRING) + 4 * tt, 4)
sPX = 56
vEW, vER = 195, 196

class P2:
    def __init__(self, a, steps, VO, VS, VX):
        self.a = a; self.steps = steps; self.VO = VO; self.VS = VS; self.VX = VX
        self.loc = {}
        self.free = []
        self.visible = set()
        self.cur = 0
        self.swapped = False
        NS, K = len(steps), CFG.kseq
        self.order = [(st, c) for st in range(NS - K) for c in range(12)]
        self.seq0 = len(self.order)
        for g in GORDER:
            self.order += [(st, c) for st in range(NS - K, NS) for c in range(4 * g, 4 * g + 4)]
        self.units = []
        for st, c in self.order:
            if (st, c >> 2) not in self.units: self.units.append((st, c >> 2))
    def setup_s(self):
        a = self.a
        srd(a, rW2, sW2, 4608 * 1152)
        srd(a, rWO, sWO, 576 * 1152)
        a("s_lshl_b32 s66, s%d, 11" % sWAVE)
    def setup_vo(self, t0, t1, half_code):
        a = self.a
        return dma_lane_off(a, self.VO, t0, t1, 1152) + Q(a, """s_mul_i32 s52, s68, 384
            s_and_b32 s60, s{W}, 1
            s_mul_i32 s60, s60, {R16}
            s_add_u32 s52, s52, s60
            v_add_u32 v{VO}, s52, v{VO}
            v_add_u32 v{VO1}, {D}, v{VO}
            {HALF}
            s_lshl1_add_u32 s52, s{I}, s52
            s_and_b32 s60, s{W}, 1
            s_lshl1_add_u32 s52, s52, s60
            s_lshl_b32 s52, s52, 12
            v_lshl_add_u32 v{VX}, v{L}, 4, s52""".format(W=sWAVE, R16=16 * 1152, VO=self.VO, VO1=self.VO + 1, D=8 * 1152 - 1024, HALF=half_code, I=sI, VX=self.VX, L=vL))
    def setup_special(self, t0, t1, t3):
        a = self.a
        for k in range(2):
            a("s_and_b32 s49, s%d, 1" % sWAVE)
            a("s_lshl_b32 s49, s49, 4")
            a("v_lshrrev_b32 v%d, 3, v%d" % (t0, vL))
            a("v_add3_u32 v%d, s49, v%d, %d" % (t0, t0, 8 * k))
            a("v_lshrrev_b32 v%d, 4, v%d" % (t1, t0))
            a("v_mul_u32_u24 v%d, 72, v%d" % (t1, t1))
            a("v_bfe_u32 v%d, v%d, 2, 2" % (t3, t0))
            a("v_lshl_add_u32 v%d, v%d, 4, v%d" % (t1, t3, t1))
            a("v_lshrrev_b32 v%d, 1, v%d" % (t3, t3))
            a("v_lshl_add_u32 v%d, v%d, 2, v%d" % (t1, t3, t1))
            a("v_and_b32 v%d, 3, v%d" % (t3, t0))
            a("v_add3_u32 v%d, v%d, v%d, 16" % (t1, t1, t3))
            a("v_sub_u32 v%d, v%d, v%d" % (t1, t1, t0))
            a("v_mul_u32_u24 v%d, 1152, v%d" % (t1, t1))
            a("v_add_u32 v%d, v%d, v%d" % (self.VS + k, self.VO + k, t1))
    def h_issue(self, st):
        a = self.a
        pl, row, kind = self.steps[st]
        fns = [I(a, "s_add_u32 s54, s%d, %d" % (62 if kind == "w2" else 64, pl * KSTRIDE))]
        for tt in range(4):
            fns.append(VM(a, "buffer_load_dwordx4 %s, v%d, %s, s54 offen offset:%d %s" % (hr(st, tt), self.VX, WSR, tt * 1024, SC), ("h2", st)))
        return fns
    def dma_issue(self, st, ln):
        a = self.a
        pl, row, kind = self.steps[st]
        r = rW2 if kind == "w2" else rWO
        vo = self.VS if kind == "wos" else self.VO
        sl = self.free.pop(0)
        self.loc[(st, ln)] = sl
        return [I(a, "s_add_u32 m0, s66, %d" % (sl * 8192)),
                I(a, "s_add_u32 s55, s%d, %d" % (63 if kind == "w2" else 65, row * 1152 + ln * 128)),
                VM(a, "buffer_load_dwordx4 v%d, s[%d:%d], s55 offen lds" % (vo, r, r + 3), ("w2", st, ln)),
                VM(a, "buffer_load_dwordx4 v%d, s[%d:%d], s55 offen offset:1024 lds" % (vo + 1, r, r + 3), ("w2", st, ln))]
    def jobs(self, first, w_ok, h_ok):
        out = []; hs = set(range(first))
        for st, ln in self.units:
            if st < first: continue
            if st not in hs:
                hs.add(st)
                out.append(("h2", lambda st=st: st - HRING < self.cur and h_ok(st), lambda st=st: self.h_issue(st)))
            out.append(("w2", lambda st=st: len(self.free) > self.reserve and w_ok(st), lambda st=st, ln=ln: self.dma_issue(st, ln)))
        return out
    reserve = 0
    def add_slots(self, S_):
        a = self.a
        self.s0 = len(S_.slots)
        fixed = set()
        for st, c in self.order:
            def rd(kind, reg, tag, st=st, c=c):
                assert (st, c >> 2) in self.visible, (st, c)
                off = self.loc[(st, c >> 2)] * 8192
                ra = RA + 4 * (off >> 16) + (c & 3)
                out = []
                if ra not in fixed:
                    fixed.add(ra); out.append(I(a, "v_xor_b32 v%d, s%d, v%d" % (ra, sPX, ra)))
                return out + tr_read(a, lambda: off, c & 3)(kind, reg, tag)
            def mf(w, st=st, c=c):
                return ["%s %s, %s, %s, %s" % (MF, R(*acc2(c, tt), 4), w, hr(st, tt), "0" if st == 0 else R(*acc2(c, tt), 4)) for tt in range(4)]
            S_.add(rd, mf)
    def exchange(self, g, slots):
        a = self.a
        send = []; fin = []
        def adj(q, reg, cur, want):
            if cur[0] != want: q.append(I(a, "v_add_u32 v%d, 0x%x, v%d" % (reg, (want - cur[0]) & 0xffffffff, reg))); cur[0] = want
        slots = sorted(slots)
        for k in range(8):
            off = slots[k >> 1] * 8192 + (k & 1) * 4096
            adj(send, vEW, self.ew, off & ~0xffff)
            send.append((3, lambda k=k, off=off: a.lds("ds_write_b128 v%d, %s offset:%d" % (vEW, R(*acc2(4 * g + 2 + (k & 1), k >> 1), 4), off & 0xffff), ("ex", g))))
            adj(fin, vER, self.er, off & ~0xffff)
            fin.append((1, lambda k=k, off=off: a.lds("ds_read_b128 %s, v%d offset:%d" % (V(64 + 4 * k, 4), vER, off & 0xffff), ("er", g, k >> 1))))
        fin.append(I(a, "s_add_u32 s58, s67, %d" % (2 * g * KSTRIDE)))
        for tt in range(4):
            r0, r1 = acc2(4 * g, tt)[1], acc2(4 * g + 1, tt)[1]
            fin.append((1, lambda tt=tt: a.wait_lg(lambda t: t == ("er", g, tt))))
            for i in range(4): fin.append(I(a, "v_add_f32 v%d, v%d, v%d" % (r0 + i, r0 + i, 64 + 8 * tt + i)))
            for i in range(4): fin.append(I(a, "v_add_f32 v%d, v%d, v%d" % (r1 + i, r1 + i, 68 + 8 * tt + i)))
            for d, s0 in ((r0, r0), (r0 + 1, r0 + 2), (r0 + 2, r1), (r0 + 3, r1 + 2)):
                fin.append(I(a, "v_cvt_pk_bf16_f32 v%d, v%d, v%d" % (d, s0, s0 + 1)))
            fin.append(VM(a, "buffer_store_dwordx4 %s, v%d, %s, s58 offen offset:%d %s" % (V(r0, 4), self.VX, WSR, tt * 1024, SC), ("part", g)))
        return send, fin
    def main(self, S_, hooks, dead0):
        a = self.a
        NS, K = len(self.steps), CFG.kseq
        PL = 4 * K
        seen = set()
        self.ew = [0]; self.er = [0]
        def psig(k): return signal(a, "s_add_u32 s49, s69, %d" % (128 * (FP + 8 * k)))
        poff = "s_add_u32 s49, s%d, %d" % (sFI, 128 * FP)
        bars = [s for s, (st, c) in enumerate(self.order) if s < self.seq0 and c == 7]
        for ps in range(3): bars += [self.seq0 + ps * PL + x for x in (2, CFG.exb, PL - 9)]
        last = {}
        for s, (st, c) in enumerate(self.order): last[(st, c >> 2)] = s
        freed = set()
        pend_fin = None
        for s, (st, c) in enumerate(self.order):
            if st not in seen:
                seen.add(st)
                self.cur = st
                if VERB: a.cm("HS p2 step %d" % st)
                if st < 11: stamp(a, 4 + st, 3)
                wvm(a, [("h2", st)])
                if st in (0, 8): stamp(a, 10 + st // 8)
            pre = []
            r = s - self.seq0
            if s in bars:
                nxt = min([b for b in bars if b > s] + [len(self.order)])
                lim = S_.read_limit(self.s0 + nxt - 1) - S_.ring[self.s0]
                need = []
                for st2, c2 in self.order[:lim + 1]:
                    u = (st2, c2 >> 2)
                    if u not in self.visible and u not in need: need.append(u)
                hk = hooks.get(st, {}) if r < 0 else {}
                tags = [("w2",) + u for u in need] + hk.get("bar", [])
                lg = []
                aft = list(hk.get("after", []))
                dead = [u for u in last if last[u] < s and u not in freed]
                newfree = [self.loc[u] for u in dead] + (dead0 if s == bars[0] else [])
                if r >= PL and r % PL == 2:
                    g = GORDER[r // PL - 1]
                    assert not S_.epi
                    newfree = self.free + newfree; self.free = []
                    self.scratch = newfree[:4]; newfree = newfree[4:]
                    send, pend_fin = self.exchange(g, self.scratch)
                    S_.epi = send; S_.deadline = S_.pos + CFG.exb - 3
                if r >= PL and r % PL == CFG.exb:
                    assert not S_.epi
                    lg.append(("ex", GORDER[r // PL - 1]))
                    S_.epi = [(2, lambda: None)] + pend_fin; S_.deadline = S_.pos + PL - CFG.exb - 2
                if r == 2 * PL + CFG.exb:
                    tags.append(("part", GORDER[0])); aft += psig(0)
                if tags or lg or aft or (newfree and S_.jobs) or (r >= PL and r % PL == 2):
                    def bar(tags=tags, lg=lg):
                        wlg(a, lg); wvm(a, tags)
                        a("s_barrier")
                    pre.append((2, bar))
                    self.visible.update(need); freed.update(dead); self.free += newfree
                    S_.extra += aft
            if r == 4: S_.extra += fin_setup(a)
            S_.emit(pre)
        assert not S_.extra and not S_.epi and not S_.jobs and not S_.mem
        stamp(a, 12)
        send, fin = self.exchange(GORDER[2], self.free[:4])
        run(poll_issue(a, poff, "plp"))
        a("s_nop 3")
        run(send)
        wlg(a, [("ex", GORDER[2])])
        a("s_barrier")
        run(fin)
        wvm(a, [("part", GORDER[1])])
        a("s_barrier")
        run(psig(1))
        run(poll_check(a, poff, "plp", "s73"))
        fin_loads(a, 0)
        wvm(a, [("part", GORDER[2])])
        a("s_barrier")
        run(psig(2))
        stamp(a, 13)

NSL = 5
PB = [96, 116, 32]
XB, SUM = 144, 224
vFA, vFB = 192, 193
def fin_setup(a):
    code = """s_lshl_b32 s52, s{XG}, 2
    s_add_u32 s52, s52, s{C}
    s_lshr_b32 s73, s52, 1
    s_lshl_b32 s74, s{I}, 4
    s_add_u32 s73, s73, s74
    s_and_b32 s52, s52, 1
    s_mul_i32 s74, s{W}, 6
    s_add_u32 s52, s52, s74
    s_lshl_b32 s74, s52, 17
    s_lshl_b32 s75, s73, 10
    s_add_u32 s74, s74, s75
    s_add_u32 s74, s74, {PART}
    s_mul_i32 s75, s73, {ROW}
    s_lshl_b32 s52, s52, 6
    s_add_u32 s75, s75, s52
    v_lshlrev_b32 v{FA}, 4, v{L}
    v_and_b32 v{FB}, 15, v{L}
    v_mul_u32_u24 v{FB}, 1152, v{FB}
    v_lshrrev_b32 v194, 4, v{L}
    v_lshl_add_u32 v{FB}, v194, 3, v{FB}
    s_lshr_b32 s52, s{XG}, 2
    s_mul_i32 s52, s52, 3
    s_lshl_b32 s73, 0x071c71c7, s52
    s_lshl_b32 s52, s{W}, 10
    v_add_u32 v{EW}, s52, v{FA}
    v_xor_b32 v{ER}, 0x800, v{EW}
    s_mov_b32 s76, 0x3f80
    s_mov_b32 s77, 0x3f800000""".format(EW=vEW, ER=vER, XG=sXG, C=sC, I=sI, W=sWAVE, PART=PART_OFF, ROW=16 * 1152, FA=vFA, FB=vFB, L=vL)
    q = [I(a, l) for l in code.split("\n")]
    q.append(I(a, "s_cmp_eq_u32 s%d, 3\ns_cmov_b32 s74, 0x%x\ns_cmov_b32 s75, 0x%x" % (sWAVE, OOB, OOB), 3))
    q.append((4, lambda: srd(a, rWA, sOUT, 2048 * 1152)))
    return q
def fin_loads(a, k):
    g = GORDER[k]
    a.vmem("buffer_load_dwordx2 %s, v%d, %s, s75 offen offset:%d" % (V(XB + 4 * k, 2), vFB, XR, 128 * g), ("x3", k))
    a.vmem("buffer_load_dwordx2 %s, v%d, %s, s75 offen offset:%d" % (V(XB + 4 * k + 2, 2), vFB, XR, 128 * g + 32), ("x3", k))
    a("s_add_u32 s58, s74, %d" % (2 * g * KSTRIDE))
    for r in range(NSL):
        a.vmem("buffer_load_dwordx4 %s, v%d, %s, s58 offen %s" % (V(PB[k] + 4 * r, 4), vFA, WSR, SC), ("p", k, r))
        if r < NSL - 1: a("s_add_u32 s58, s58, %d" % PSL)
def fin_sum(a, k):
    g = GORDER[k]
    OR = "s[%d:%d]" % (rWA, rWA + 3)
    a.wait_vm(lambda t: t == ("x3", k))
    for i in range(4):
        a("v_lshlrev_b32 v%d, 16, v%d" % (SUM + 8 * k + 2 * i, XB + 4 * k + i))
        a("v_and_b32 v%d, 0xffff0000, v%d" % (SUM + 8 * k + 2 * i + 1, XB + 4 * k + i))
    for r in range(NSL):
        a.wait_vm(lambda t: t == ("p", k, r))
        for i in range(4):
            p = PB[k] + 4 * r + i
            s_ = SUM + 8 * k + 2 * i
            a("v_dot2_f32_bf16 v%d, v%d, s76, v%d" % (s_, p, s_))
            a("v_dot2_f32_bf16 v%d, v%d, s77, v%d" % (s_ + 1, p, s_ + 1))
    a("s_nop 2")
    for i in range(4):
        a("v_cvt_pk_bf16_f32 v%d, v%d, v%d" % (XB + 4 * k + i, SUM + 8 * k + 2 * i, SUM + 8 * k + 2 * i + 1))
    a.vmem("buffer_store_dwordx2 %s, v%d, %s, s75 offen offset:%d" % (V(XB + 4 * k, 2), vFB, OR, 128 * g))
    a.vmem("buffer_store_dwordx2 %s, v%d, %s, s75 offen offset:%d" % (V(XB + 4 * k + 2, 2), vFB, OR, 128 * g + 32))

def hilo(a, v, t0, t1):
    return [I(a, "v_cvt_pk_bf16_f32 v%d, v%d, v%d" % (t0, v, v)),
            I(a, "v_and_b32 v%d, 0xffff0000, v%d" % (t0, t0)),
            I(a, "v_sub_f32 v%d, v%d, v%d" % (t1, v, t0)),
            I(a, "v_cvt_pk_bf16_f32 v%d, v%d, v%d" % (v, t0, t1))]

def stats_fetch(a, kind, base, vaddr):
    fns = [I(a, "s_mov_b32 s49, %d" % ST_OFF)]
    for tt in range(4):
        fns.append((1, lambda tt=tt: a.vmem("buffer_load_dwordx4 %s, v%d, %s, s49 offen offset:%d %s" % (R(kind, base + 4 * tt, 4), vaddr, WSR, 256 * tt, SC), "stf")))
    return fns
def stats_check(a, kind, base, vaddr, t0):
    code = []
    for n, r in enumerate([base + 4 * tt + k for tt in range(4) for k in (1, 3)]):
        if kind == "a":
            code.append("v_accvgpr_read_b32 v%d, a%d" % (t0, r)); r = t0
        if n == 0: code.append("v_cmp_eq_u32 s[60:61], s%d, v%d" % (sTOK, r))
        else: code += ["v_cmp_eq_u32 vcc, s%d, v%d" % (sTOK, r), "s_and_b64 s[60:61], s[60:61], vcc"]
    def last():
        a("s_cmp_lg_u64 s[60:61], -1")
        def body(b):
            b("s_mov_b32 s49, %d" % ST_OFF)
            for tt in range(4):
                b("buffer_load_dwordx4 %s, v%d, %s, s49 offen offset:%d %s" % (R(kind, base + 4 * tt, 4), vaddr, WSR, 256 * tt, SC))
            b("s_waitcnt vmcnt(0)")
            b("\n".join(code))
            b("s_cmp_lg_u64 s[60:61], -1")
        slow_path(a, body, "stats")
    return [(1, lambda: wvm(a, ["stf"]))] + [I(a, c) for c in code] + [(2, last)]
def stats_addr(a, dst):
    return [I(a, "v_and_b32 v%d, 15, v%d" % (dst, vL)),
            I(a, "s_lshl_b32 s52, s%d, 12\ns_lshl_b32 s60, s%d, 10\ns_add_u32 s52, s52, s60\nv_lshl_add_u32 v%d, v%d, 4, s52" % (sI, sWAVE, dst, dst), 4)]

def path_mlp(a):
    vD, TMP, HS, ONES, CSA, ST = 172, 176, 184, 188, 192, 200
    vCSR, vCSW, vCSL, vP2 = 220, 221, 222, 223
    def xreg(kk, tt):
        i = kk * 4 + tt
        return ("a", 4 * i) if i < 64 else ("v", 224 + 4 * (i - 64))
    def xr(kk, tt): return R(*xreg(kk, tt), 4)
    def acc(P, ti, tt): return 64 * P + 16 * ti + 4 * tt
    t0, t1, t2, t3 = 64, 65, 66, 67
    XS = XStage(a, TMP, TMP + 4, 8 * 8192, 3, xreg)
    WLIM = 576 * 9216
    loc = {}
    WT = [sWo, 4, 5, 6, 7, 10, 11, 20, 21]
    issued_at = {}; now = [0]
    free = list(range(8))
    def dma_issue(L, kk):
        sl = free.pop(0); loc[(L, kk)] = sl
        fns = [I(a, "s_add_u32 m0, s53, %d" % (sl * 8192)),
               I(a, "s_add_u32 s55, s%d, %d" % (WT[kk >> 1], (kk & 1) * 32 * 9216 + L * 128)),
               VM(a, "buffer_load_dwordx4 v%d, s[%d:%d], s55 offen lds" % (vD, rWA, rWA + 3), ("w", L, kk)),
               VM(a, "buffer_load_dwordx4 v%d, s[%d:%d], s55 offen offset:1024 lds" % (vD + 1, rWA, rWA + 3), ("w", L, kk))]
        if kk & 1 and L == 0 and kk < 17:
            o, n_ = WT[kk >> 1], WT[(kk >> 1) + 1]
            fns.append(I(a, "s_add_u32 s%d, s%d, %d\ns_cmp_ge_u32 s%d, %d\ns_cmov_b32 s%d, 0" % (n_, o, 64 * 9216, n_, WLIM, n_), 3))
        issued_at[(L, kk)] = now[0]
        return fns
    XS.setup_dma(t0, t1)
    run(XS.dma(0))
    a("s_cmp_ge_u32 s%d, 2" % sWAVE)
    a("s_cselect_b32 s%d, s%d, s%d" % (rWA, sW3, sW1))
    a("s_cselect_b32 s%d, s%d, s%d" % (rWA + 1, sW3 + 1, sW1 + 1))
    a("s_and_b32 s%d, s%d, 0xffff" % (rWA + 1, rWA + 1))
    a("s_mov_b32 s%d, %d" % (rWA + 2, WLIM))
    a("s_mov_b32 s%d, 0x20000" % (rWA + 3))
    a("s_mul_i32 s70, s%d, 3" % sXG)
    a("s_add_u32 s70, s70, s%d" % sC)
    run(dma_lane_off(a, vD, t0, t1, 9216))
    a("s_mul_i32 s52, s70, 384")
    a("s_and_b32 s49, s%d, 1" % sWAVE)
    a("s_mul_i32 s49, s49, %d" % (16 * 9216))
    a("s_add_u32 s52, s52, s49")
    a("v_add_u32 v%d, s52, v%d" % (vD, vD))
    a("v_add_u32 v%d, %d, v%d" % (vD + 1, 8 * 9216 - 1024, vD))
    a("s_lshl_b32 s53, s%d, 11" % sWAVE)
    a("s_mul_i32 s%d, s%d, %d" % (sWo, sROT, 64 * 9216))
    for kk in range(4): run(dma_issue(0, kk))
    code_prefetch(a)
    run(XS.dma(1))
    pf12 = []
    if CFG.pf:
        u0, u1 = HS, HS + 1
        pf12 = [I(a, "v_mov_b32 v%d, 0x%x" % (u0, OOB)),
                I(a, "s_and_b32 s52, s%d, 1\ns_lshl_b32 s52, s52, 7\ns_mul_i32 s60, s70, 384\ns_add_u32 s52, s52, s60\ns_mul_i32 s60, s%d, %d\ns_add_u32 s52, s52, s60\nv_mul_u32_u24 v%d, 9216, v%d"
                  % (sWAVE, sI, 72 * 9216, u1, vL), 7),
                VM(a, "buffer_load_dword v%d, v%d, s[%d:%d], s52 offen offset:128" % (vPL, u1, rWA, rWA + 3)),
                I(a, "v_cmp_gt_u32 vcc, 8, v%d\ns_add_u32 s52, s52, %d\ns_nop 0\nv_cndmask_b32 v%d, v%d, v%d, vcc" % (vL, 64 * 9216, u1, u0, u1), 4),
                VM(a, "buffer_load_dword v%d, v%d, s[%d:%d], s52 offen offset:128" % (vPL, u1, rWA, rWA + 3))]
        if CFG.pfat == -1: run(pf12)
    stamp(a, 4, 1)
    rel = [7, 12, 13, 2, 8, 14, 3, 9, 15, 4, 10, 16, 5, 11, 17]
    p2 = P2(a, [(r, 32 * r, "w2") for r in rel] + [(0, 0, "wo"), (1, 36, "wo")], vD, None, vCSR)
    XS.setup_read(t0, t1, t2)
    tr_addrs(a, t0, t1, t2)
    a("v_xor_b32 v%d, s%d, v%d" % (t2, sWAVE, t1))
    a("v_lshl_add_u32 v%d, v%d, 5, v%d" % (vCSR, t2, t0))
    stats_compute(a)
    stamp(a, 5, 1)
    run(XS.reads(0))
    a("s_mov_b32 s68, s%d" % sC)
    p2.setup_s()
    a("s_lshr_b32 s60, s%d, 1" % sWAVE)
    a("s_mul_i32 s%d, s60, 4160" % sPX)
    a("s_and_b32 s49, s%d, 6" % sXG)
    a("s_add_u32 s49, s49, s60")
    a("s_mul_i32 s62, s49, %d" % (18 * KSTRIDE))
    a("s_add_u32 s62, s62, %d" % H_OFF)
    a("s_mul_i32 s63, s49, %d" % (576 * 1152))
    a("s_mul_i32 s64, s49, %d" % (2 * KSTRIDE))
    a("s_add_u32 s64, s64, %d" % (H_OFF + 144 * KSTRIDE))
    a("s_mul_i32 s65, s49, %d" % (72 * 1152))
    a("s_mul_i32 s57, s70, %d" % (6 * KSTRIDE))
    a("s_add_u32 s57, s57, %d" % H_OFF)
    a("s_lshr_b32 s52, s%d, 1" % sXG)
    a("s_mul_i32 s52, s52, 3")
    a("s_add_u32 s52, s52, s%d" % sC)
    a("s_mul_i32 s52, s52, 6")
    a("s_add_u32 s52, s52, s60")
    a("s_lshl_b32 s67, s52, 17")
    a("s_add_u32 s67, s67, %d" % PART_OFF)
    a("s_lshl2_add_u32 s69, s70, s%d" % sFI)
    a("s_mul_i32 s52, s49, 3")
    a("s_lshl_b32 s71, 7, s52")
    a("s_lshl_b32 s72, 1, s49")
    a("s_mul_i32 s%d, s70, 12288" % sCSB)
    a("s_add_u32 s%d, s%d, %d" % (sCSB, sCSB, CS_OFF))
    a("s_lshl_b32 s%d, s70, 7" % sFC)
    a("s_add_u32 s%d, s%d, 0x%x" % (sFC, sFC, FL(FC)))
    a.wait_vm(lambda t: t == ("w", 0, 1))
    a("s_barrier")
    late = []
    L_ = lambda s, c=1: late.append(I(a, s, c))
    u0, u1 = CSA, CSA + 1
    L_("v_and_b32 v%d, 15, v%d" % (u0, vL))
    L_("v_lshlrev_b32 v%d, 5, v%d" % (u0, u0))
    L_("v_lshrrev_b32 v%d, 4, v%d" % (u1, vL))
    L_("v_lshl_add_u32 v%d, v%d, 9, v%d" % (vCSL, u1, u0))
    L_("v_lshl_add_u32 v%d, v%d, 4, v%d" % (vCSW, u1, u0))
    L_("s_lshr_b32 s52, s%d, 1\ns_lshl_b32 s52, s52, 11\ns_and_b32 s60, s%d, 1\ns_lshl_b32 s60, s60, 3\ns_add_u32 s52, s52, s60\n"
       "s_lshr_b32 s60, s%d, 1\ns_lshl_b32 s60, s60, 9\ns_add_u32 s52, s52, s60\ns_and_b32 s60, s%d, 1\ns_lshl2_add_u32 s52, s60, s52\n"
       "v_add_u32 v%d, s52, v%d" % (sWAVE, sWAVE, sI, sI, vCSW, vCSW), 11)
    L_("v_cmp_gt_u32 vcc, 32, v%d\nv_mov_b32 v%d, 0x%x\ns_nop 0\nv_cndmask_b32 v%d, v%d, v%d, vcc" % (vL, u0, OOB, vCSW, u0, vCSW), 4)
    L_("s_cmp_eq_u32 s%d, 7\ns_cselect_b32 s%d, 0x%x, 0" % (sI, sOne2, ONE2), 2)
    SPLIT = CFG.split
    seq = []
    for kk in range(SPLIT): seq += [("mm", 0, 0, kk), ("mm", 0, 1, kk)]
    seq += [("mm", 0, 0, kk) for kk in range(SPLIT, 18)] + [("mm", 0, 1, kk) for kk in range(SPLIT, 18)]
    for L in (1, 2):
        for P in (0, 1): seq += [("mm", L, P, kk) for kk in range(18)]
    def after(key, new): seq.insert(seq.index(key) + 1, new)
    after(("mm", 0, 1, 1), ("cs", 0))
    after(("mm", 0, 0, 13), ("corr", 0, 0))
    after(("mm", 0, 1, 13), ("corr", 0, 1))
    after(("corr", 0, 1), ("cs", 1))
    after(("mm", 1, 0, 17), ("corr", 1, 0))
    after(("mm", 1, 1, 6), ("corr", 1, 1))
    after(("mm", 1, 1, 8), ("cs", 2))
    after(("mm", 2, 0, 16), ("corr", 2, 0))
    after(("mm", 2, 1, 6), ("corr", 2, 1))
    NH = len(seq)
    idx = {k: n for n, k in enumerate(seq)}
    visible = set([(0, 0), (0, 1)])
    S_ = Stream(a, "v", WF)
    first_slot = []
    csr = [0]
    def slabs_of(e):
        if e[0] == "mm": return [(e[1], e[3])]
        if e[0] == "cs": return [(e[1], k) for k in range(4)]
        return []
    for e in seq:
        first_slot.append(len(S_.slots))
        if e[0] == "mm":
            _, L, P, kk = e
            for ti in (0, 2, 1, 3):
                def off(L=L, kk=kk, ti=ti):
                    assert (L, kk) in visible, (L, kk)
                    return loc[(L, kk)] * 8192 + (ti >> 1) * 4096
                def mf(w, P=P, ti=ti, kk=kk):
                    return ["%s %s, %s, %s, %s" % (MF, V(acc(P, ti, tt), 4), w, xr(kk, tt), "0" if kk == 0 else V(acc(P, ti, tt), 4)) for tt in range(4)]
                S_.add(tr_read(a, off, 2 * P + (ti & 1)), mf)
        elif e[0] == "corr":
            _, L, P = e
            for ti in range(4):
                S_.add(None, lambda w, P=P, ti=ti: ["%s %s, %s, %s, %s" % (MF16, V(acc(P, ti, tt), 4), V(CSA + 2 * ti, 2), V(ST + 4 * tt, 2), V(acc(P, ti, tt), 4)) for tt in range(4)])
        else:
            L = e[1]
            for k in range(4):
                for mat in range(2):
                    def rd(kind, reg, tag, L=L, k=k, mat=mat):
                        assert (L, k) in visible
                        out = []
                        if mat == 0:
                            d = loc[(L, k)] * 8192 - csr[0]; csr[0] += d
                            if d: out.append(I(a, "v_add_u32 v%d, 0x%x, v%d" % (vCSR, d & 0xffffffff, vCSR)))
                        return out + [(1, lambda h=h: a.lds("ds_read_b64_tr_b16 %s, v%d offset:%d" % (V(reg + 2 * h, 2), vCSR, mat * 4096 + h * 2048), tag)) for h in range(2)]
                    def mf(w, k=k, mat=mat):
                        pre = ""
                        if mat == 0 and k in (0, 2):
                            pre = "".join("v_mov_b32 v%d, %s\n" % (ONES + i, "0x%x" % ONE2 if k == 0 else "s%d" % sOne2) for i in range(4)) + "s_nop 1\n"
                        return [pre + "%s %s, %s, %s, %s" % (MF, V(CSA + 4 * mat, 4), V(ONES, 4), w, "0" if k == 0 else V(CSA + 4 * mat, 4))]
                    S_.add(rd, mf)
    first_slot.append(len(S_.slots))
    p2.add_slots(S_)
    def epilogue(L, P):
        q = [I(a, "s_add_u32 s58, s57, %d" % ((2 * L + P) * KSTRIDE))]
        n = 0
        for tt in range(4):
            rs, cc = ST + 4 * tt + 2, ST + 4 * tt + 3
            for half in range(2):
                g, u = acc(P, half, tt), acc(P, 2 + half, tt)
                t = TMP + 4 * (n % 2); n += 1
                for i in range(4): q.append(I(a, "v_mul_f32 v%d, v%d, v%d" % (t + i, g + i, rs)))
                for i in range(4): q.append(I(a, "v_exp_f32 v%d, v%d" % (t + i, t + i), 2))
                for i in range(4): q.append(I(a, "v_mul_f32 v%d, v%d, v%d" % (u + i, g + i, u + i)))
                for i in range(4): q.append(I(a, "v_fma_f32 v%d, v%d, v%d, v%d" % (t + i, t + i, cc, cc)))
                for i in range(4): q.append(I(a, "v_rcp_f32 v%d, v%d" % (t + i, t + i), 2))
                for i in range(4): q.append(I(a, "v_mul_f32 v%d, v%d, v%d" % (t + i, t + i, u + i)))
                for i in range(2): q.append(I(a, "v_cvt_pk_bf16_f32 v%d, v%d, v%d" % (HS + 2 * half + i, t + 2 * i, t + 2 * i + 1)))
            q.append((1, lambda tt=tt: a.vmem("buffer_store_dwordx4 %s, v%d, %s, s58 offen offset:%d %s" % (V(HS, 4), vX, WSR, tt * 1024, SC), ("h", L, P))))
        return q
    last_use = {}
    for n, e in enumerate(seq):
        for sl in slabs_of(e): last_use[sl] = n
    lastP = {}
    for n, e in enumerate(seq):
        if e[0] != "cs": lastP[e[1:3]] = n
    marks = set()
    def mark(m): return (0, lambda: marks.add(m))
    released = set()
    def hsig(stage): return signal(a, "s_add_u32 s49, s69, %d" % (128 * (FH + 8 * stage)))
    def hoff(stage): return "s_add_u32 s49, s%d, %d" % (sFI, 128 * (FH + 8 * stage))
    coff = "s_mov_b32 s49, s%d" % sFC
    def csa_load(L, P):
        return [I(a, "s_add_u32 s49, s%d, %d" % (sCSB, L * 4096 + P * 2048))] + \
               [(1, lambda k=k: a.vmem("buffer_load_dwordx4 %s, v%d, %s, s49 offen offset:%d %s" % (V(CSA + 4 * k, 4), vCSL, WSR, 16 * k, SC), ("csa", L, P))) for k in range(2)]
    def cs_publish(L):
        return [I(a, "s_mov_b32 vcc_lo, 0xffff0000\ns_mov_b32 vcc_hi, 0\nv_cndmask_b32 v%d, v%d, v%d, vcc" % (CSA, CSA, CSA + 4), 3)] + hilo(a, CSA, CSA + 1, CSA + 2) + \
               [I(a, "s_add_u32 s49, s%d, %d" % (sCSB, L * 4096)),
                (1, lambda: a.vmem("buffer_store_dword v%d, v%d, %s, s49 offen %s" % (CSA, vCSW, WSR, SC), ("cs", L)))]
    ev = {}
    bar_tags = {}
    def at(n, fns): ev.setdefault(n, []).extend(fns)
    def sig_after(n, tag, fns):
        n |= 1
        bar_tags.setdefault(n, ([], []))
        bar_tags[n][0].append(tag); bar_tags[n][1].extend(fns)
    at(0, late + [mark("late")])
    if CFG.pf and CFG.pfat >= 0: at(CFG.pfat, pf12)
    for L in range(3):
        n = idx[("cs", L)]
        at(n + 2, cs_publish(L))
        sig_after(n + 4, ("cs", L), signal(a, "s_lshl2_add_u32 s49, s%d, s%d\ns_add_u32 s49, s49, %d" % (sI, sFC, 32 * L)))
        c0 = idx[("corr", L, 0)]
        at(c0 - 11, poll_issue(a, coff, ("plc", L)))
        at(c0 - 7, poll_check(a, coff, ("plc", L), "0x%x" % (0xff << (8 * L))) + csa_load(L, 0))
        at(c0 + 1, csa_load(L, 1))
    c0 = idx[("corr", 0, 0)]
    at(c0 - 12, stats_addr(a, vP2) + stats_fetch(a, "v", ST, vP2))
    fx = stats_check(a, "v", ST, vP2, None)
    for tt in range(4):
        b = ST + 4 * tt
        fx += [I(a, "v_mov_b32 v%d, v%d" % (b + 1, b)), I(a, "v_mul_f32 v%d, v%d, v%d" % (b + 3, b + 2, b + 2)), I(a, "v_rcp_f32 v%d, v%d" % (b + 2, b + 2), 2)]
    for tt in range(4): fx.append(I(a, "v_mul_f32 v%d, %s, v%d" % (ST + 4 * tt + 2, f32(-LOG2E), ST + 4 * tt + 2)))
    at(c0 - 5, fx + [mark("stats")])
    xread_at = {1: 1, 2: 6, 3: 10, 4: 14, 5: 17, 6: 20, 7: 23, 8: 26}
    for p, n in xread_at.items():
        at(n, XS.reads(p))
    mm = lambda L, P, kk: idx[("mm", L, P, kk)]
    sig_after(mm(1, 1, 3), ("h", 0, 1), hsig(0))
    sig_after(mm(2, 0, 3), ("h", 1, 0), hsig(1))
    sig_after(mm(2, 1, 3), ("h", 1, 1), hsig(2))
    at(mm(2, 0, 11), poll_issue(a, hoff(1), "pl1", vP2))
    at(mm(2, 0, 17), poll_check(a, hoff(1), "pl1", "s71", vP2) + [mark("h1")])
    at(NH - 3, poll_issue(a, hoff(2), "pl2"))
    at(mm(2, 0, 5), p2.setup_vo(vCSR, vCSW, "s_and_b32 s52, s%d, 1" % sXG) + [mark("vo")])
    if CFG.pf:
        pf = Q(a, """s_and_b32 s52, s{W}, 1
            s_mul_i32 s52, s52, 36
            s_mul_i32 s60, s{I}, 72
            s_add_u32 s52, s52, s60
            v_mul_u32_u24 v{P}, 43, v{L}
            v_lshrrev_b32 v{P}, 7, v{P}
            v_mul_u32_u24 v{T}, 3, v{P}
            v_sub_u32 v{T}, v{L}, v{T}
            v_add_u32 v{P}, s52, v{P}
            v_mul_u32_u24 v{P}, 1152, v{P}
            v_lshl_add_u32 v{P}, v{T}, 7, v{P}
            s_mul_i32 s52, s68, 384
            s_add_u32 s52, s52, s63""".format(W=sWAVE, I=sI, P=vP2, L=vL, T=vPL))
        pf += [VM(a, "buffer_load_dword v%d, v%d, s[%d:%d], s52 offen" % (vPL, vP2, rW2, rW2 + 3)),
               I(a, "s_add_u32 s52, s52, %d" % (18 * 1152)),
               VM(a, "buffer_load_dword v%d, v%d, s[%d:%d], s52 offen" % (vPL, vP2, rW2, rW2 + 3))]
        at(mm(1, 0, 1), pf)
    def wjob(L, kk):
        def make():
            if VERB: print("hs", now[0], seq[now[0]], "issue W", (L, kk), file=sys.stderr)
            return dma_issue(L, kk)
        return ("w", lambda: len(free) > 0, make)
    for p in range(2, 9): S_.jobs += [XS.job(p), wjob(0, 2 * p), wjob(0, 2 * p + 1)]
    S_.jobs += [wjob(L, kk) for L in (1, 2) for kk in range(18)]
    hmark = lambda st: "h1" if st < 6 else ("h2" if st < 9 else ("h3" if st < 12 else ("h4" if st < 15 else "o")))
    S_.jobs += p2.jobs(0, lambda st: "vo" in marks,
                       lambda st: hmark(st) in marks and now[0] > mm(2, 1, min(st, 9)))
    xdead = {}
    S_.prime()
    for n, e in enumerate(seq):
        pre = []
        now[0] = n
        if VERB: a.cm("HS %d %s" % (n, e))
        if n >= CFG.sbase and (n - CFG.sbase) % CFG.sstep == 0 and (n - CFG.sbase) // CFG.sstep < 11: stamp(a, 4 + (n - CFG.sbase) // CFG.sstep, 2)
        if e[0] == "mm" and e[1] == 0 and e[2] == 0 and e[3] % 2 == 0:
            wlg(a, [("xr", e[3] // 2)])
        if e[0] == "cs": assert "late" in marks
        if e[0] == "corr": assert "stats" in marks
        if n == mm(2, 0, 5): assert a.cnt.get(("w", 2, 17)) == 2
        if e[0] == "corr": wvm(a, [("csa", e[1], e[2])])
        if e[0] == "mm" and e[3] == 0 and (e[1] > 0 or e[2] == 0): stamp(a, 3 if e[1] == 0 else 3 + 2 * e[1] + e[2])
        if e == ("mm", 0, 0, 9): stamp(a, 4)
        if n % 2 == 1:
            rmax = S_.read_limit(first_slot[min(n + 2, NH)] - 1)
            need = []
            for m in range(n, NH):
                if S_.cur_ring(first_slot[m]) <= rmax:
                    need += [x for x in slabs_of(seq[m]) if x not in visible and x not in need]
            rel_ = [x for x, lu in last_use.items() if lu < n and x not in released]
            tags, aft = bar_tags.pop(n, ([], []))
            tags = list(tags)
            if S_.cur_ring(first_slot[NH]) <= rmax and not p2.visible:
                tags += [("w2", 0, k_) for k_ in range(3)]; p2.visible.update((0, k_) for k_ in range(3))
            xrel = [p for p, m in xread_at.items() if p >= 6 and m + 3 <= n and p not in xdead]
            want_space = S_.jobs and S_.jobs[0][0] in ("w", "w2", "x") or any(j[0] in ("w", "w2") for j in S_.jobs[:3])
            if rel_ and not (need or tags or xrel) and (not want_space or (n > 40 and len(rel_) < CFG.relper)): rel_ = []
            if need or rel_ or tags or xrel:
                need += [x for x, t_ in issued_at.items() if x not in visible and x not in need and t_ + CFG.age <= n]
                for x in need: assert x in loc, ("slab not issued", n, x)
                def bar(need=need, tags=tags, xrel=xrel):
                    wlg(a, [("xr", p) for p in xrel])
                    wvm(a, [("w",) + x for x in need] + tags)
                    a("s_barrier")
                pre.append((2, bar))
                visible.update(need); released.update(rel_)
                for x in rel_: free.append(loc[x])
                for p in xrel:
                    xdead[p] = 1
                    free.extend(8 + 3 * w + p % 3 for w in range(4))
            S_.extra += aft
        S_.extra += ev.pop(n, [])
        if (2, 17) in loc:
            while free:
                p2.free.append(free.pop(0))
        ns = first_slot[n + 1] - first_slot[n]
        for k in range(ns):
            if e[0] == "mm" and e[3] == 0 and k == 0:
                assert not (S_.epi and S_.epiP == e[2]), "epilogue not finished"
            S_.emit(pre if k == 0 else (), 2 if len(S_.extra) > 12 else 0)
            if k == 1 and n > 0:
                pe = seq[n - 1]
                if pe[0] != "cs" and lastP[pe[1:3]] == n - 1:
                    assert not S_.epi
                    S_.epi = epilogue(pe[1], pe[2]); S_.epiP = pe[2]
                    S_.deadline = first_slot[mm(pe[1] + 1, pe[2], 0)] - 1 if pe[1] < 2 else first_slot[NH] - 1
    assert not S_.epi and not ev and not bar_tags, (ev.keys(), bar_tags.keys())
    now[0] = NH
    if VERB: print("; left for phase 2:", [j[0] for j in S_.jobs], "extra", len(S_.extra), file=sys.stderr)
    stamp(a, 9)
    S_.epi = [(8, lambda: None), (8, lambda: None)] + epilogue(2, 1)
    S_.deadline = S_.pos + CFG.edl
    ooff = "s_add_u32 s49, s%d, %d" % (sFI, 128 * FO)
    hooks = {}
    def add(st, key, v): hooks.setdefault(st, {}).setdefault(key, []).extend(v)
    add(0, "bar", [("h", 2, 0)]); add(0, "after", hsig(3))
    add(0, "after", poll_check(a, hoff(2), "pl2", "s71") + [mark("h2")])
    add(2, "after", poll_issue(a, hoff(3), "pl3"))
    add(3, "bar", [("h", 2, 1)]); add(3, "after", hsig(4))
    add(4, "after", poll_check(a, hoff(3), "pl3", "s71") + [mark("h3")])
    add(5, "after", poll_issue(a, hoff(4), "pl4"))
    add(5, "after", poll_issue(a, ooff, "plo", vP2))
    add(7 - CFG.late, "after", poll_check(a, hoff(4), "pl4", "s71") + [mark("h4")] + poll_check(a, ooff, "plo", "s72", vP2) + [mark("o")])
    dead0 = [loc[x] for x in last_use if x not in released]
    p2.main(S_, hooks, dead0)

C0 = [0, 4, 9, 13]
def path_attn(a):
    global vL, vX, vFS, vFP, vTK, vPL
    keep = (vL, vX, vFS, vFP, vTK, vPL)
    a.cnt = {}
    RB, VO, XO, XA = 224, 230, 236, 240
    vCS0, vCS1, vCSW, vP2, u0, u1 = 250, 251, 252, 253, 254, 255
    aONE, aCS, aST, aCSA, aX = 32, 36, 52, 68, 96
    t0, t1, t2, t3, t4 = 64, 65, 66, 67, 68
    new = (244, 245, 246, 247, 248, 249)
    for o_, n_ in zip(keep[:4], new[:4]): a("v_mov_b32 v%d, v%d" % (n_, o_))
    vL, vX, vFS, vFP, vTK, vPL = new
    def xreg(kk, tt): return ("a", aX + 16 * (kk % 10) + 4 * tt)
    def xr(kk, tt): return R(*xreg(kk, tt), 4)
    def acc(T, tt): return 16 * T + 4 * tt
    XS = XStage(a, XO, XA, 98304, 2, xreg)
    WLIM = 576 * 3456
    def dma_issue(kk):
        fns = [I(a, "s_add_u32 s55, s%d, %d" % (sWo, (kk & 1) * 32 * 3456))]
        for idx in range(6):
            if idx % 3 == 0:
                fns.append(I(a, "s_add_u32 m0, s53, %d" % ((kk % 4) * 24576 + (idx // 3) * 3072)))
            fns.append(VM(a, "buffer_load_dwordx4 v%d, s[%d:%d], s55 offen offset:%d lds" % (VO + idx, rWA, rWA + 3, (idx % 3) * 1024), ("w", kk)))
        if kk & 1: fns.append(I(a, "s_add_u32 s%d, s%d, %d\ns_cmp_ge_u32 s%d, %d\ns_cmov_b32 s%d, 0" % (sWo, sWo, 64 * 3456, sWo, WLIM, sWo), 3))
        return fns
    XS.setup_dma(t0, t1)
    run(XS.dma(0))
    srd(a, rWA, sWQKV, WLIM, bias=2048)
    run(dma_lane_off(a, t2, t0, t1, 3456))
    for idx in range(6):
        a("s_mul_i32 s52, s%d, 6" % sWAVE)
        a("s_add_u32 s52, s52, %d" % idx)
        a("s_and_b32 s49, s52, 3")
        a("s_mul_i32 s49, s49, %d" % (8 * 3456))
        a("s_bfe_u32 s60, s52, 0x10002")
        a("s_add_u32 s60, s60, s%d" % sXG)
        a("s_lshl_b32 s60, s60, 7")
        a("s_add_u32 s49, s49, s60")
        a("s_lshr_b32 s60, s52, 3")
        a("s_mul_i32 s60, s60, 1152")
        a("s_add_u32 s49, s49, s60")
        a("s_add_u32 s49, s49, %d" % (2048 - (idx % 3) * 1024))
        a("v_add_u32 v%d, s49, v%d" % (VO + idx, t2))
    a("s_mul_i32 s53, s%d, 6144" % sWAVE)
    a("s_mul_i32 s%d, s%d, %d" % (sWo, sROT, 64 * 3456))
    run(dma_issue(0)); run(dma_issue(1))
    code_prefetch(a)
    run(XS.dma(1))
    stamp(a, 4, 1)
    XS.setup_read(t0, t1, t2)
    lane_fields(a, t0, t1, t2)
    a("v_lshrrev_b32 v%d, 1, v%d" % (t0, t0))
    a("v_lshlrev_b32 v%d, 10, v%d" % (t0, t0))
    a("v_lshl_add_u32 v%d, v%d, 7, v%d" % (t0, t1, t0))
    a("v_lshrrev_b32 v%d, 1, v%d" % (t1, t1))
    a("s_lshl_b32 s52, s%d, 1" % sXG)
    for p in range(6):
        r = RB + p
        if p < 4:
            a("v_add_u32 v%d, %d, v%d" % (t3, C0[p], t2))
        elif p == 4:
            a("v_lshrrev_b32 v%d, 1, v%d" % (t3, t2))
            a("v_lshl_add_u32 v%d, v%d, 2, v%d" % (t3, t2, t3))
            a("v_add_u32 v%d, 4, v%d" % (t3, t3))
        else:
            a("v_and_b32 v%d, 1, v%d" % (t3, t2))
            a("v_mul_u32_u24 v%d, 9, v%d" % (t3, t3))
            a("v_add_u32 v%d, 8, v%d" % (t3, t3))
        a("v_add_u32 v%d, s52, v%d" % (t3, t3))
        a("v_lshrrev_b32 v%d, 4, v%d" % (t4, t3))
        a("v_lshl_add_u32 v%d, v%d, 12, v%d" % (r, t4, t0))
        a("v_bfe_u32 v%d, v%d, 2, 2" % (t4, t3))
        a("v_xor_b32 v%d, v%d, v%d" % (t4, t4, t1))
        a("v_lshl_add_u32 v%d, v%d, 5, v%d" % (r, t4, r))
        a("v_and_b32 v%d, 3, v%d" % (t4, t3))
        a("v_lshl_add_u32 v%d, v%d, 3, v%d" % (r, t4, r))
        if p == 5:
            a("v_lshrrev_b32 v%d, 1, v%d" % (t4, t2))
            a("v_add_u32 v%d, 1, v%d" % (t4, t4))
            a("v_lshl_add_u32 v%d, v%d, 13, v%d" % (r, t4, r))
    a("s_bitcmp1_b32 s%d, 0" % sWAVE)
    a("s_cselect_b64 vcc, -1, 0")
    a("v_cndmask_b32 v%d, v%d, v%d, vcc" % (t3, RB, RB + 1))
    a("v_cndmask_b32 v%d, v%d, v%d, vcc" % (t4, RB + 2, RB + 3))
    a("v_cndmask_b32 v%d, v%d, v%d, vcc" % (vCS1, RB + 4, RB + 5))
    a("s_bitcmp1_b32 s%d, 1" % sWAVE)
    a("s_cselect_b64 vcc, -1, 0")
    a("v_cndmask_b32 v%d, v%d, v%d, vcc" % (vCS0, t3, t4))
    a("v_mov_b32 v%d, 0x%x" % (t3, ONE2))
    for i in range(4): a("v_accvgpr_write_b32 a%d, v%d" % (aONE + i, t3))
    stats_compute(a)
    stamp(a, 5, 1)
    run(XS.reads(0))
    steps = [(18 * x_ + P, 32 * (18 * x_ + P), "w2") for x_ in range(4) for P in (0, 1, 6)] + [(0, 0, "wos"), (1, 144, "wos")]
    p2 = P2(a, steps, 220, 197, 222)
    a("s_cmp_ge_u32 s%d, 3" % sXG)
    a("s_cselect_b32 s4, 1, 0")
    a("s_mul_i32 s52, s4, 3")
    a("s_sub_u32 s68, s%d, s52" % sXG)
    a("s_lshr_b32 s70, s%d, 1" % sWAVE)
    p2.setup_s()
    a("s_mul_i32 s62, s70, %d" % (72 * KSTRIDE))
    a("s_add_u32 s62, s62, %d" % H_OFF)
    a("s_mul_i32 s63, s70, %d" % (2304 * 1152))
    a("s_mul_i32 s64, s70, %d" % (2 * KSTRIDE))
    a("s_add_u32 s64, s64, %d" % (H_OFF + 160 * KSTRIDE))
    a("s_mul_i32 s65, s70, %d" % (288 * 1152))
    a("s_add_u32 s52, s68, 12")
    a("s_mul_i32 s52, s52, 6")
    a("s_add_u32 s52, s52, s70")
    a("s_lshl_b32 s67, s52, 17")
    a("s_add_u32 s67, s67, %d" % PART_OFF)
    a("s_add_u32 s52, s%d, 24" % sXG)
    a("s_lshl2_add_u32 s69, s52, s%d" % sFI)
    a("s_lshl_b32 s%d, s52, 7" % sFC)
    a("s_add_u32 s%d, s%d, 0x%x" % (sFC, sFC, FL(FC)))
    a("s_mul_i32 s52, s70, 12")
    a("s_lshl_b32 s71, 0x6db, s52")
    a("s_lshl_b32 s52, s70, 2")
    a("s_lshl_b32 s72, 15, s52")
    a("s_cmp_ge_u32 s%d, 6" % sXG)
    a("s_cmov_b32 s62, 0x%x" % OOB)
    a("s_cmov_b32 s63, 0x%x" % OOB)
    a("s_cmov_b32 s71, 0")
    a("s_lshl_b32 s%d, s%d, 13" % (sCSB, sXG))
    a("s_add_u32 s%d, s%d, %d" % (sCSB, sCSB, CS_OFF + 24 * 12288))
    a("s_cmp_eq_u32 s%d, 7" % sI)
    a("s_cselect_b32 s%d, 0x%x, 0" % (sOne2, ONE2))
    wvm(a, [("w", 0)], w=6)
    a("s_barrier")
    TL = [(0, 0), (1, 0), (2, 0), (3, 0), (4, 0)] + [(p, 1) for p in range(4)] + [(p, 2) for p in range(4)] + [(5, 0)]
    S_ = Stream(a, "a", 0)
    visible = set([0])
    cur = [0] * 6
    csr = [0]
    info = []
    for kk in range(18):
        for T in range(14):
            def rd(kind, reg, tag, kk=kk, T=T):
                assert kk in visible
                p, win = TL[T]
                want = ((kk % 4) // 2) * 49152
                out = []
                if cur[p] != want:
                    out.append(I(a, "v_add_u32 v%d, 0x%x, v%d" % (RB + p, (want - cur[p]) & 0xffffffff, RB + p))); cur[p] = want
                return out + [(1, lambda h=h: a.lds("ds_read_b64_tr_b16 %s, v%d offset:%d" % (A(reg + 2 * h, 2), RB + p, (kk % 2) * 24576 + win * 8192 + h * 2048), tag)) for h in range(2)]
            def mf(w, kk=kk, T=T):
                return ["%s %s, %s, %s, %s" % (MF, V(acc(T, tt), 4), w, xr(kk, tt), "0" if kk == 0 else V(acc(T, tt), 4)) for tt in range(4)]
            S_.add(rd, mf); info.append((kk, T))
            if kk < 4 and T in (1, 3, 5, 7):
                k = T // 2
                def rd(kind, reg, tag, kk=kk, k=k):
                    out = []
                    if k == 0 and kk > 0:
                        out += [I(a, "v_add_u32 v%d, 24576, v%d" % (vCS0, vCS0)), I(a, "v_add_u32 v%d, 24576, v%d" % (vCS1, vCS1))]
                    return out + [(1, lambda h=h: a.lds("ds_read_b64_tr_b16 %s, v%d offset:%d" % (A(reg + 2 * h, 2), vCS0 if k < 3 else vCS1, (k * 8192 if k < 3 else 0) + h * 2048), tag)) for h in range(2)]
                def mf(w, kk=kk, k=k):
                    pre = ""
                    if kk == 2 and k == 0:
                        pre = "v_mov_b32 v%d, s%d\n" % (u0, sOne2) + "".join("v_accvgpr_write_b32 a%d, v%d\n" % (aONE + i, u0) for i in range(4)) + "s_nop 1\n"
                    return [pre + "%s %s, %s, %s, %s" % (MF, A(aCS + 4 * k, 4), A(aONE, 4), w, "0" if kk == 0 else A(aCS + 4 * k, 4))]
                S_.add(rd, mf); info.append((kk, -1))
    for T in list(range(9, 13)) + list(range(5, 9)) + [13] + list(range(5)):
        S_.add(None, lambda w, T=T: ["%s %s, %s, %s, %s" % (MF16, V(acc(T, tt), 4), A(aCSA + 2 * T, 2), A(aST + 4 * tt, 2), V(acc(T, tt), 4)) for tt in range(4)])
        info.append((18, T))
    ev = {}; bt = {}
    def at(kk, fns): ev.setdefault(kk, []).extend(fns)
    w_ = [I(a, "v_lshrrev_b32 v%d, 4, v%d" % (u0, vL)),
          I(a, "v_mul_u32_u24 v%d, 9, v%d\nv_add_u32 v%d, 1, v%d\nv_lshrrev_b32 v%d, 1, v%d\nv_add_u32 v%d, s%d, v%d" % (vCSW, u0, vCSW, vCSW, vCSW, vCSW, vCSW, sWAVE, vCSW), 4),
          I(a, "s_mul_i32 s52, s%d, 9\ns_add_u32 s52, s52, 4\ns_cmp_ge_u32 s%d, 2\ns_cmov_b32 s52, 0x%x\nv_mov_b32 v%d, s52\nv_cmp_eq_u32 vcc, 3, v%d\ns_nop 1\nv_cndmask_b32 v%d, v%d, v%d, vcc"
            % (sWAVE, sWAVE, OOB >> 3, u1, u0, vCSW, vCSW, u1), 8),
          I(a, "v_and_b32 v%d, 15, v%d\nv_lshlrev_b32 v%d, 7, v%d\nv_lshl_add_u32 v%d, v%d, 3, v%d" % (u0, vL, u0, u0, vCSW, vCSW, u0), 3),
          I(a, "s_lshr_b32 s52, s%d, 1\ns_lshl_b32 s52, s52, 11\ns_and_b32 s60, s%d, 1\ns_lshl2_add_u32 s52, s60, s52\nv_add_u32 v%d, s52, v%d" % (sI, sI, vCSW, vCSW), 5)]
    marks = set()
    at(0, w_ + [(0, lambda: marks.add(1))])
    pub = [I(a, "v_accvgpr_read_b32 v%d, a%d" % (u0, aCS))]
    for k, (lo, hi) in enumerate([("0xffff0000", "0"), ("0", "0xffff"), ("0", "0xffff0000")]):
        pub.append(I(a, "v_accvgpr_read_b32 v%d, a%d\ns_mov_b32 vcc_lo, %s\ns_mov_b32 vcc_hi, %s\nv_cndmask_b32 v%d, v%d, v%d, vcc" % (u1, aCS + 4 * (k + 1), lo, hi, u0, u0, u1), 4))
    pub += hilo(a, u0, u1, vCS0)
    pub.append((1, lambda: a.vmem("buffer_store_dword v%d, v%d, %s, s%d offen %s" % (u0, vCSW, WSR, sCSB, SC), ("cs", 0))))
    at(3, pub)
    bt[5] = ([("cs", 0)], signal(a, "s_lshl2_add_u32 s49, s%d, s%d" % (sI, sFC)))
    coff = "s_mov_b32 s49, s%d" % sFC
    at(10, poll_issue(a, coff, "plc") + stats_addr(a, vCS0) + stats_fetch(a, "a", aST, vCS0))
    ld = poll_check(a, coff, "plc", "0xff") + [I(a, "v_lshlrev_b32 v%d, 7, v%d" % (u0, vL))]
    for k in range(7):
        ld.append((1, lambda k=k: a.vmem("buffer_load_dwordx4 %s, v%d, %s, s%d offen offset:%d %s" % (A(aCSA + 4 * k, 4), u0, WSR, sCSB, 16 * k, SC), ("csa", 0))))
    ld += stats_check(a, "a", aST, vCS0, u1)
    for tt in range(4): ld.append(I(a, "v_accvgpr_mov_b32 a%d, a%d" % (aST + 4 * tt + 1, aST + 4 * tt)))
    at(13, ld)
    if CFG.pf:
        pf = Q(a, """s_and_b32 s52, s{I}, 1
            s_mul_i32 s52, s52, 48
            v_add_u32 v{P}, s52, v{L}
            v_lshrrev_b32 v{T}, 6, v{P}
            v_lshl_add_u32 v{P}, v{T}, 7, v{P}
            v_mul_u32_u24 v{P}, 1152, v{P}
            s_lshr_b32 s52, s{I}, 1
            s_mul_i32 s52, s52, {G}
            s_mul_i32 s60, s68, 384
            s_add_u32 s52, s52, s60
            s_add_u32 s52, s52, s63
            s_and_b32 s60, s{W}, 1
            s_lshl_b32 s60, s60, 7
            s_add_u32 s60, s60, s52""".format(I=sI, P=vP2, L=vL, T=u1, G=576 * 1152, W=sWAVE))
        pf += [VM(a, "buffer_load_dword a%d, v%d, s[%d:%d], s60 offen" % (aONE, vP2, rW2, rW2 + 3)),
               VM(a, "buffer_load_dword a%d, v%d, s[%d:%d], s52 offen offset:256" % (aONE, vP2, rW2, rW2 + 3))]
        at(15, pf)
    S_.prime()
    wjob = lambda kk: ("w", lambda: kk - 2 in visible, lambda: dma_issue(kk))
    S_.jobs += [wjob(2), wjob(3)]
    for p in range(2, 9): S_.jobs += [XS.job(p), wjob(2 * p), wjob(2 * p + 1)]
    for s, (kk, T) in enumerate(info):
        pre = []
        if T == 0 and kk < 18 and kk % 2 == 0: wlg(a, [("xr", kk // 2)])
        if s == 0: stamp(a, 3)
        if kk == 2: assert marks
        if kk == 18 and T == 9:
            assert not S_.extra
            wvm(a, [("csa", 0)], csa=7)
        if T == 9 and kk < 17:
            tags, aft = bt.pop(kk, ([], []))
            def bar(kk=kk, tags=tags):
                wvm(a, [("w", kk + 1)] + tags, w=6)
                a("s_barrier")
            pre.append((2, bar))
            visible.add(kk + 1)
            S_.extra += aft
            if kk % 2 == 0 and kk // 2 + 1 < 9:
                p = kk // 2 + 1
                S_.extra += XS.reads(p)
            S_.extra += ev.pop(kk, [])
        S_.emit(pre)
    assert not S_.extra and not ev and not S_.jobs and not S_.mem
    RS = 296
    vq, vn, vI0, vI1 = 224, 225, 226, 227
    T8 = 232
    t0, t1, t2, t3 = 242, 243, 254, 255
    SCL = 250
    a("s_barrier")
    stamp(a, 2)
    for tt in range(4): a("v_accvgpr_read_b32 v%d, a%d" % (SCL + tt, aST + 4 * tt + 2))
    a("v_lshrrev_b32 v%d, 4, v%d" % (vq, vL))
    a("v_and_b32 v%d, 15, v%d" % (vn, vL))
    for tt in range(4): a("v_rcp_f32 v%d, v%d" % (SCL + tt, SCL + tt))
    a("s_lshl_b32 s52, s%d, 6" % sWAVE)
    a("v_add_u32 v%d, s52, v%d" % (t0, vn))
    a("v_mul_u32_u24 v%d, %d, v%d" % (t0, RS, t0))
    a("v_lshl_add_u32 v%d, v%d, 3, v%d" % (vI0, vq, t0))
    a("v_mul_u32_u24 v%d, 72, v%d" % (t1, vq))
    a("v_add3_u32 v%d, v%d, v%d, 64" % (vI1, t0, t1))
    for tt in range(4): a("v_mul_f32 v%d, %s, v%d" % (SCL + tt, f32(LOG2E), SCL + tt))
    a("s_mov_b32 s56, %s" % f32(1.0 / LOG2E))
    a("s_mov_b32 s57, s56")
    a("v_mov_b32 v228, %s" % f32(1e-6 * LOG2E))
    a("v_cmp_gt_u32 s[32:33], 2, v%d" % vq)
    def scale4(r, tt):
        b, o = SCL + (tt & 2), tt & 1
        for i in (0, 2): a("v_pk_mul_f32 v[%d:%d], v[%d:%d], v[%d:%d] op_sel:[0,%d] op_sel_hi:[1,%d]" % (r + i, r + i + 1, r + i, r + i + 1, b, b + 1, o, o))
    def phi4(r, t, keepm=None):
        for i in range(4): a("v_exp_f32_e64 v%d, v%d clamp" % (t + i, r + i))
        for i in range(4): a("v_max_f32 v%d, v%d, v228" % (t + 4 + i, r + i))
        d = r if keepm is None else t
        for i in range(0, 4, 2): a("v_pk_fma_f32 v[%d:%d], v[%d:%d], s[56:57], v[%d:%d]" % (d + i, d + i + 1, t + 4 + i, t + 5 + i, t + i, t + i + 1))
        if keepm is not None:
            for i in range(4): a("v_cndmask_b32 v%d, v%d, v%d, %s" % (r + i, r + i, t + i, keepm))
    def pack2(dst, r):
        a("v_cvt_pk_bf16_f32 v%d, v%d, v%d" % (dst, r, r + 1))
        a("v_cvt_pk_bf16_f32 v%d, v%d, v%d" % (dst + 1, r + 2, r + 3))
    for T in list(range(9, 13)) + list(range(5, 9)) + [13]:
        for tt in range(4):
            r = acc(T, tt)
            scale4(r, tt)
            if 5 <= T < 9: phi4(r, T8)
            elif T == 13: phi4(r, T8, keepm="s[32:33]")
            pack2(r, r)
            if T == 13: a("ds_write_b64 v%d, v[%d:%d] offset:%d" % (vI1, r, r + 1, tt * 16 * RS))
            else:
                off = C0[(T - 5) % 4] * 8 + (144 if T >= 9 else 0)
                a("ds_write_b64 v%d, v[%d:%d] offset:%d" % (vI0, r, r + 1, tt * 16 * RS + off))
    vM, vLf = 229, 230
    a("v_bfe_u32 v%d, v%d, 2, 4" % (t0, vL))
    a("v_mul_u32_u24 v%d, %d, v%d" % (t0, RS, t0))
    a("v_and_b32 v%d, 3, v%d" % (t2, vL))
    a("s_lshl_b32 s52, s%d, 2" % sWAVE)
    a("s_lshr_b32 s49, s%d, 1" % sWAVE)
    a("s_add_u32 s52, s52, s49")
    a("v_add_u32 v%d, s52, v%d" % (t3, t2))
    a("v_lshl_add_u32 v%d, v%d, 3, v%d" % (vM, t3, t0))
    a("v_lshrrev_b32 v%d, 1, v%d" % (t3, t2))
    a("v_lshl_add_u32 v%d, v%d, 2, v%d" % (t3, t2, t3))
    a("v_add_u32 v%d, 4, v%d" % (t3, t3))
    a("v_lshl_add_u32 v%d, v%d, 3, v%d" % (vLf, t3, t0))
    ONES = 232
    for i in range(4): a("v_mov_b32 v%d, 0x%x" % (ONES + i, ONE2))
    a.lg0()
    a("s_barrier")
    KC = 80
    FR = 104
    for half in range(2):
        for k4 in range(4):
            for f, (base, off) in enumerate([(vM, 0), (vLf, 0), (vM, 144), (vLf, 144)]):
                for rd in range(2):
                    r = FR + 16 * k4 + 4 * f + 2 * rd
                    a.lds("ds_read_b64_tr_b16 v[%d:%d], v%d offset:%d" % (r, r + 1, base, (32 * k4 + 16 * rd) * RS + off), k4)
        if half == 0:
            a("v_add_u32 v%d, %d, v%d" % (vM, 128 * RS, vM))
            a("v_add_u32 v%d, %d, v%d" % (vLf, 128 * RS, vLf))
        for k4 in range(4):
            a.wait_lg(lambda t: t == k4)
            b = FR + 16 * k4
            for ci, (fa, fb) in enumerate([(b, b + 8), (b + 4, b + 8), (b, b + 12), (b + 4, b + 12), (b, ONES), (b + 4, ONES)]):
                d = KC + 4 * ci
                c = "0" if (half == 0 and k4 == 0) else V(d, 4)
                a("%s %s, %s, %s, %s" % (MF, V(d, 4), V(fa, 4), V(fb, 4), c))
    a("s_lshl_b32 s52, s%d, 5" % sXG)
    a("s_add_u32 s52, s52, s%d" % sWAVE)
    a("s_mul_i32 s3, s52, 6144")
    a("s_add_u32 s3, s3, %d" % KVP_OFF)
    a("s_mul_i32 s52, s%d, 24576" % sI)
    a("s_add_u32 s58, s3, s52")
    a("s_add_u32 s59, s58, 3072")
    a("v_lshlrev_b32 v%d, 4, v%d" % (t0, vL))
    a("s_lshl_b32 s81, s%d, 7" % sXG)
    a("s_add_u32 s81, s81, %d" % FL(FKV))
    a("s_nop 2")
    for ci in range(6):
        a.vmem("buffer_store_dwordx4 %s, v%d, %s, s%d offen offset:%d %s" % (V(KC + 4 * ci, 4), t0, WSR, 58 + ci // 3, (ci % 3) * 1024, SC), "kvp")
    QF = 104
    def qphi(tt):
        for T in range(5):
            scale4(acc(T, tt), tt)
            phi4(acc(T, tt), T8)
        for h in range(4):
            pack2(QF + 16 * tt + 4 * h, acc(h, tt))
            pack2(QF + 16 * tt + 4 * h + 2, acc(4, tt))
    qphi(0); qphi(1)
    a.vm0()
    a("s_barrier")
    run(signal(a, "s_lshl2_add_u32 s49, s%d, s81" % sI))
    qphi(2); qphi(3)
    MO = 232
    a("s_and_b32 s52, s%d, 1" % sWAVE)
    a("s_lshl_b32 s49, s52, 1")
    a("v_mov_b32 v%d, 0x%x" % (t1, OOB))
    a("v_cmp_le_u32 s[32:33], s49, v%d" % vn)
    a("v_cmp_eq_u32 s[34:35], s%d, v%d" % (sWAVE, vq))
    a("v_lshrrev_b32 v%d, 2, v%d" % (t2, vn))
    a("v_cmp_eq_u32 s[10:11], s%d, v%d" % (sWAVE, t2))
    a("v_and_b32 v%d, 3, v%d" % (t2, vn))
    a("s_add_u32 s49, s49, 2")
    a("v_cmp_gt_u32 vcc, s49, v%d" % t2)
    a("v_cmp_eq_u32 s[20:21], s%d, v%d" % (sWAVE, t2))
    a("s_and_b64 s[10:11], s[10:11], vcc")
    a("s_nop 1")
    for ci, m in enumerate([32, 10, 20]):
        a("v_cndmask_b32 v%d, v%d, v%d, s[%d:%d]" % (MO + 2 * ci, t1, t0, m, m + 1))
        a("v_cndmask_b32 v%d, v%d, v%d, s[34:35]" % (MO + 2 * ci + 1, t1, MO + 2 * ci))
    vm0, vm3 = 238, 239
    a("v_cmp_le_u32 s[32:33], s52, v%d" % vq)
    a("s_sub_u32 s49, 0, s52")
    a("v_mov_b32 v%d, s49" % vm3)
    a("v_cndmask_b32 v%d, 0, -1, s[32:33]" % vm0)
    run(p2.setup_vo(240, 241, "s_mov_b32 s52, s4"))
    h0off = "s_add_u32 s49, s%d, %d" % (sFI, 128 * FH)
    run(poll_issue(a, h0off, "pl0", 255))
    poll_now(a, "s_mov_b32 s49, s81", "0xff")
    stamp(a, 5)
    p2.free = list(range(18))
    bufs = [0, 24, 48, 72, 168, 192]
    def ldp(i, base):
        a("s_add_u32 s58, s3, %d" % (i * 24576))
        a("s_add_u32 s59, s58, 3072")
        for ci in range(6):
            a.vmem("buffer_load_dwordx4 %s, v%d, %s, s%d offen offset:%d %s" % (V(base + 4 * ci, 4), MO + ci, WSR, 58 + ci // 3, (ci % 3) * 1024, SC), ("kv", i))
    for i in range(6): ldp(i, bufs[i])
    for i in range(1, 8):
        a.wait_vm(lambda t: t == ("kv", i))
        b = bufs[i] if i < 6 else bufs[i - 5]
        for r in range(0, 24, 2): a("v_pk_add_f32 v[%d:%d], v[%d:%d], v[%d:%d]" % (r, r + 1, r, r + 1, b + r, b + r + 1))
        if i + 5 < 8: ldp(i + 5, bufs[i])
        if i == 2: run(poll_check(a, h0off, "pl0", "s71", 255))
        if 2 <= i < 6: run(p2.dma_issue(i - 2, 0) + p2.dma_issue(i - 2, 1) + p2.dma_issue(i - 2, 2) + p2.h_issue(i - 2))
    for f in range(3):
        pack2(24 + 4 * f, 8 * f)
        pack2(24 + 4 * f + 2, 8 * f + 4)
        a("v_and_b32 v%d, v%d, v%d" % (24 + 4 * f, 24 + 4 * f, vm0))
        a("v_and_b32 v%d, v%d, v%d" % (24 + 4 * f + 3, 24 + 4 * f + 3, vm3))
    a("s_mul_i32 s52, s%d, 3072" % sWAVE)
    a("v_add_u32 v%d, 0x25000, v%d" % (t0, t0))
    a("v_add_u32 v%d, s52, v%d" % (t1, t0))
    for f in range(3):
        a("ds_write_b128 v%d, %s offset:%d" % (t1, V(24 + 4 * f, 4), f * 1024))
    a("s_waitcnt lgkmcnt(0)")
    a("s_barrier")
    AF = 168
    for i in range(12):
        a("ds_read_b128 %s, v%d offset:%d" % (V(AF + 4 * i, 4), t0, i * 1024))
    a("s_lshl_b32 s52, s%d, 1" % sXG)
    a("s_add_u32 s52, s52, 144")
    a("s_mul_i32 s58, s52, %d" % KSTRIDE)
    a("s_add_u32 s58, s58, %d" % H_OFF)
    a("s_add_u32 s59, s58, %d" % KSTRIDE)
    a("s_lshr_b32 s52, s%d, 1" % sXG)
    a("s_add_u32 s52, s52, 160")
    a("s_mul_i32 s57, s52, %d" % KSTRIDE)
    a("s_and_b32 s52, s%d, 1" % sXG)
    a("s_lshl_b32 s52, s52, 3")
    a("s_add_u32 s57, s57, s52")
    a("s_add_u32 s57, s57, %d" % H_OFF)
    a("s_mov_b32 s56, %s" % f32(LOG2E))
    a("v_cmp_eq_u32 s[32:33], 1, v%d" % vq)
    a("v_cmp_eq_u32 s[34:35], 2, v%d" % vq)
    a("v_cmp_eq_u32 s[10:11], 3, v%d" % vq)
    a("s_waitcnt lgkmcnt(0)")
    for tt in range(4):
        o = 24 * tt
        for h in range(4):
            qf = V(QF + 16 * tt + 4 * h, 4)
            a("%s %s, %s, %s, 0" % (MF, V(o + 4 * h, 4), V(AF + 12 * h, 4), qf))
            a("%s %s, %s, %s, %s" % (MF, V(o + 16, 4), V(AF + 12 * h + 4, 4), qf, "0" if h == 0 else V(o + 16, 4)))
            a("%s %s, %s, %s, %s" % (MF, V(o + 20, 4), V(AF + 12 * h + 8, 4), qf, "0" if h == 0 else V(o + 20, 4)))
    a("s_nop 7")
    for tt in range(4):
        o = 24 * tt
        for h in range(4): a("v_fma_f32 v%d, v%d, s56, v228" % (o + 20 + h, o + 20 + h))
        for h in range(4): a("v_rcp_f32 v%d, v%d" % (o + 20 + h, o + 20 + h))
        a("s_nop 0")
        a("v_cndmask_b32 v%d, v%d, v%d, s[32:33]" % (T8 + 8, o + 20, o + 21))
        a("v_cndmask_b32 v%d, v%d, v%d, s[34:35]" % (T8 + 8, T8 + 8, o + 22))
        a("v_cndmask_b32 v%d, v%d, v%d, s[10:11]" % (T8 + 8, T8 + 8, o + 23))
        for h in range(4):
            b, sel = o + 20 + (h & 2), h & 1
            for i in (0, 2): a("v_pk_mul_f32 v[%d:%d], v[%d:%d], v[%d:%d] op_sel:[0,%d] op_sel_hi:[1,%d]" % (o + 4 * h + i, o + 4 * h + i + 1, o + 4 * h + i, o + 4 * h + i + 1, b, b + 1, sel, sel))
        for i in (0, 2): a("v_pk_mul_f32 v[%d:%d], v[%d:%d], v[%d:%d] op_sel_hi:[1,0]" % (o + 16 + i, o + 17 + i, o + 16 + i, o + 17 + i, T8 + 8, T8 + 9))
        pack2(o, o); pack2(o + 2, o + 4)
        pack2(o + 4, o + 8); pack2(o + 6, o + 12)
        pack2(o + 8, o + 16)
        a.vmem("buffer_store_dwordx4 %s, v%d, %s, s58 offen offset:%d %s" % (V(o, 4), vX, WSR, tt * 1024, SC), "o")
        a.vmem("buffer_store_dwordx4 %s, v%d, %s, s59 offen offset:%d %s" % (V(o + 4, 4), vX, WSR, tt * 1024, SC), "o")
        a.vmem("buffer_store_dwordx2 %s, v%d, %s, s57 offen offset:%d %s" % (V(o + 8, 2), vX, WSR, tt * 1024, SC), "o")
    for o_, n_ in zip(keep[:5], new[:5]): a("v_mov_b32 v%d, v%d" % (o_, n_))
    vL, vX, vFS, vFP, vTK, vPL = keep
    p2.setup_special(176, 177, 178)
    tr_addrs(a, 176, 177, 178)
    a("s_mul_i32 s%d, s70, 4160" % sPX)
    a("s_lshl2_add_u32 s81, s%d, s%d" % (sXG, sFI))
    osig = lambda: signal(a, "s_add_u32 s49, s81, %d" % (128 * FO))
    stamp(a, 6)
    lgo = a.newlabel("Lp2a")
    a("s_cmp_lt_u32 s%d, 6" % sXG)
    a("s_cbranch_scc1 %s" % lgo)
    a("s_waitcnt vmcnt(0)")
    a("s_barrier")
    keepvm = list(a.vm)
    run(osig())
    a.vm = keepvm
    a("s_branch L_fin_idle")
    a.label(lgo)
    hooks = {}
    def add(st, key, v): hooks.setdefault(st, {}).setdefault(key, []).extend(v)
    add(1, "bar", ["o"]); add(1, "after", osig())
    ooff = "s_add_u32 s49, s%d, %d" % (sFI, 128 * FO)
    NSA = len(steps)
    add(3, "after", poll_issue(a, ooff, "plo"))
    add(5, "after", poll_check(a, ooff, "plo", "s72") + [(0, lambda: marks.add("o"))])
    wvm(a, [("w2", 0, k_) for k_ in range(3)])
    a("s_barrier")
    p2.visible.update((0, k_) for k_ in range(3))
    S_ = Stream(a, "v", WF)
    p2.add_slots(S_)
    S_.prime()
    S_.jobs += p2.jobs(4, lambda st: True, lambda st: st < NSA - 2 or "o" in marks)
    p2.main(S_, hooks, [18, 19])

def phase3(a):
    a.vm = [("x3", 0)] * 2 + [("p", 0, r) for r in range(NSL)]; a.lg = []
    a("s_cmp_eq_u32 s%d, 3" % sWAVE)
    a("s_cbranch_scc1 L_fin_poll")
    a("s_barrier")
    fin_loads(a, 1)
    fin_sum(a, 0)
    a("s_barrier")
    stamp(a, 14)
    fin_loads(a, 2)
    fin_sum(a, 1)
    fin_sum(a, 2)
    a("s_branch L_done")
    a.label("L_fin_poll")
    a.vm = []
    poll_now(a, "s_add_u32 s49, s%d, %d" % (sFI, 128 * (FP + 8)), "s73")
    a("s_barrier")
    poll_now(a, "s_add_u32 s49, s%d, %d" % (sFI, 128 * (FP + 16)), "s73")
    a("s_barrier")
    a("s_cmp_lg_u32 s2, 0")
    a("s_cbranch_scc1 L_done")
    a("s_mov_b32 s49, 0x%x" % FL(0))
    a("buffer_store_dword v%d, v%d, %s, s49 offen" % (vTK, vFS, WSR))
    a.label("L_done")

def fin_idle(a):
    a.label("L_fin_idle")
    a.vm = []; a.lg = []
    run(fin_setup(a))
    poll_now(a, "s_add_u32 s49, s%d, %d" % (sFI, 128 * FP), "s73")
    fin_loads(a, 0)
    a("s_branch L_final")

def code_prefetch(a):
    a("s_getpc_b64 s[60:61]")
    l = a.newlabel("Lpc")
    a.label(l)
    a("s_sub_u32 s%d, s60, %s-%s" % (rW2, l, NAME))
    a("s_subb_u32 s%d, s61, 0" % (rW2 + 1))
    a("s_and_b32 s%d, s%d, 0xffff" % (rW2 + 1, rW2 + 1))
    a("s_mov_b32 s%d, L_code_end-%s" % (rW2 + 2, NAME))
    a("s_mov_b32 s%d, 0x20000" % (rW2 + 3))
    a("s_lshr_b32 s52, s2, 3")
    a("s_lshl_b32 s52, s52, 12")
    a("s_lshl_b32 s49, s%d, 10" % sWAVE)
    a("s_add_u32 s52, s52, s49")
    a("v_lshlrev_b32 v63, 4, v%d" % vL)
    a.vmem("buffer_load_dword v%d, v63, s[%d:%d], s52 offen" % (vPL, rW2, rW2 + 3), "pf")

def build():
    a = Asm()
    a.raw("; @launch grid=(256,1,1) block=(256,1,1) lds=%d" % LDS_BYTES)
    a.raw('.amdgcn_target "amdgcn-amd-amdhsa--gfx950"')
    a.raw(".text")
    kernel_begin(a, NAME)
    a("s_cmp_ge_u32 s2, 256")
    a("s_cbranch_scc1 L_end")
    a("s_load_dwordx16 s[4:19], s[0:1], 0")
    a("s_load_dwordx4 s[20:23], s[0:1], 64")
    if CFG.stamp:
        for i in range(16): a("s_mov_b32 s%d, 0" % (84 + i))
        a("s_memrealtime s[100:101]")
    a("v_and_b32 v%d, 63, v0" % vL)
    a("v_lshrrev_b32 v1, 6, v0")
    a("v_cmp_eq_u32 vcc, 0xc0, v0")
    a("v_readfirstlane_b32 s%d, v1" % sWAVE)
    a("v_mov_b32 v1, 0x%x" % OOB)
    a("s_lshr_b32 s%d, s2, 6" % sC)
    a("v_cndmask_b32 v%d, v1, v%d, vcc" % (vFS, vL))
    a("v_and_b32 v1, 31, v0")
    a("v_lshlrev_b32 v%d, 2, v1" % vFP)
    if CFG.mapping == 0:
        a("s_and_b32 s%d, s2, 7" % sXG)
        a("s_bfe_u32 s%d, s2, 0x30003" % sI)
    elif CFG.mapping == 1:
        a("s_and_b32 s%d, s2, 3" % sXG)
        a("s_bfe_u32 s52, s2, 0x10003")
        a("s_lshl1_add_u32 s%d, s%d, s52" % (sXG, sXG))
        a("s_and_b32 s%d, s2, 4" % sI)
        a("s_bfe_u32 s52, s2, 0x20004")
        a("s_add_u32 s%d, s%d, s52" % (sI, sI))
    elif CFG.mapping == 4:
        a("s_and_b32 s%d, s2, 3" % sXG)
        a("s_bfe_u32 s52, s2, 0x10003")
        a("s_lshl1_add_u32 s%d, s%d, s52" % (sXG, sXG))
        a("s_bfe_u32 s%d, s2, 0x20004" % sI)
        a("s_bfe_u32 s52, s2, 0x10002")
        a("s_lshl1_add_u32 s%d, s%d, s52" % (sI, sI))
    a("s_mul_i32 s%d, s%d, %d" % (sROT, sC, CFG.rotc))
    a("s_add_u32 s%d, s%d, s%d" % (sROT, sROT, sI))
    if CFG.mapping != 0 and CFG.rotc:
        a("s_and_b32 s52, s%d, 1" % sXG)
        a("s_add_u32 s%d, s%d, s52" % (sROT, sROT))
    a("s_cmp_ge_u32 s%d, 9" % sROT)
    a("s_cselect_b32 s52, 9, 0")
    a("s_sub_u32 s%d, s%d, s52" % (sROT, sROT))
    a("s_lshl_b32 s52, s%d, 14" % sI)
    a("s_lshl_b32 s49, s%d, 12" % sWAVE)
    a("s_add_u32 s52, s52, s49")
    a("v_lshl_add_u32 v%d, v%d, 4, s52" % (vX, vL))
    a("s_lshl_b32 s%d, s%d, 7" % (sFI, sI))
    a("s_add_u32 s%d, s%d, 0x%x" % (sFI, sFI, FLG_OFF))
    a("s_waitcnt lgkmcnt(0)")
    if CFG.stamp: a("s_mov_b32 s84, s100")
    srd(a, rX, sX, 2048 * 1152)
    a("s_add_u32 s60, s%d, 0x%x" % (sWS, FL(0)))
    a("s_addc_u32 s61, s%d, 0" % (sWS + 1))
    a("s_load_dword s%d, s[60:61], 0" % sTOK)
    stats_load(a)
    srd(a, rWS, sWS, WS_BYTES)
    vm0 = list(a.vm)
    a("s_cmp_eq_u32 s%d, 3" % sC)
    a("s_cbranch_scc1 L_attn")
    path_mlp(a)
    a.label("L_final")
    phase3(a)
    stamp_out(a)
    a.label("L_end")
    a("s_endpgm")
    a.vm = vm0; a.lg = []
    a.label("L_attn")
    path_attn(a)
    a("s_branch L_final")
    fin_idle(a)
    a.lines += LATER
    a.label("L_code_end")
    a("s_endpgm")
    a.raw('.section .rodata,"a"')
    a.raw(kernel_desc(NAME, 512, 256))
    return a.text()

if __name__ == "__main__":
    args = sys.argv[1:]
    out = "parallel_sum__linear_attn_block__glu_gated_swiglu__prompt.s"
    for x in args:
        if x == "--stamp": CFG.stamp = True
        elif x == "-v": VERB = True
        elif "=" in x:
            k, v = x.split("="); assert hasattr(CFG, k), k; setattr(CFG, k, float(v) if "." in v else int(v))
        else: out = x
    open(out, "w").write(build())
    if CFG.stamp: open(out + ".slow", "w").write("\n".join(NSLOW))
```

```python
import sys, math
from lib import *

NAME = "parallel_sum__linear_attn_block__glu_gated_swiglu__prompt_kernel"
LOG2E = 1.4426950408889634
KSTRIDE = 131072
H_OFF = 18 * KSTRIDE
KVP_OFF = H_OFF + 164 * KSTRIDE
PART_OFF = KVP_OFF + 8 * 8 * 4 * 6 * 1024
PSL = 18 * KSTRIDE
FLG_OFF = PART_OFF + 10 * PSL
ST_OFF = 0
CS_OFF = 0x10000
WS_BYTES = 268435456
OOB = 0x7f000000
LDS_BYTES = 163840
SC = "sc0 sc1"
OSC = ""
def FL(line): return FLG_OFF + 128 * line
FH, FKV, FO, FC, FP = 16, 56, 64, 96, 128

sX, sWQKV, sWO, sW1, sW3, sW2, sOUT, sDBG, sWS = 4, 6, 8, 12, 14, 16, 18, 20, 22
rWS, rWA, rX, rW2, rWO = 24, 28, 36, 40, 44
sWAVE, sI, sXG, sC, sTOK = 48, 50, 51, 78, 79
sFI = 80
sXo, sWo, sXL, sOne2, sCSB, sFC, sROT = 32, 33, 34, 35, 82, 83, 81
MF = "v_mfma_f32_16x16x32_bf16"
MF16 = "v_mfma_f32_16x16x16_bf16"
WSR = "s[%d:%d]" % (rWS, rWS + 3)
XR = "s[%d:%d]" % (rX, rX + 3)
ONE2 = 0x3f803f80

VERB = False
class Cfg:
    stamp = False
    clk = 0
    mapping = 0
    split = 12
    kseq = 5
    sset = 0
    swave = 0
    pf = 4
    rotc = 0
    vmrate = 85
    epirate = 4.5
    age = 16
    window = 60
    one = 0
    slp0 = 8
    slp1 = 2
    sum0 = 0
    hw = 1.0
    hrot = 2
    xlead = 3
    cs0 = 2
    cs1 = 4
    cs2 = 18
    cj1 = 8
    cj2 = 3
    pfw = 0
    pfa = 14
    pfs = 3
    init = 0
    cmode = 1
    cdel = 3
    sigd = 7
    gate1 = 31
    gate2 = 68
    dbgwg = -1
    sbase = 0
    sstep = 2
    exs = 5
    edl = 56
    s4 = 6
    p4 = 8
    c4 = 9
    ofirst = 1
    relper = 4
    pfat = -2
CFG = Cfg()

def stamp(a, i, sset=0):
    if CFG.stamp and (sset == CFG.sset or i in (3, 15)):
        a("s_memtime s[100:101]" if CFG.clk else "s_memrealtime s[100:101]")
        a.lg0()
        a("s_mov_b32 s%d, s100" % (84 + i))
def stamp_out(a):
    if not CFG.stamp: return
    a("s_waitcnt vmcnt(0)")
    stamp(a, 15)
    l = a.newlabel("Lst")
    a("s_cmp_lg_u32 s%d, %d" % (sWAVE, CFG.swave))
    a("s_cbranch_scc1 %s" % l)
    a("s_lshl_b32 s3, s2, 6")
    a("s_add_u32 s3, s3, 0xF000000")
    a("v_mov_b32 v1, s3")
    a("s_mov_b64 exec, 1")
    for i in range(8):
        a("v_mov_b32 v2, s%d" % (84 + 2 * i))
        a("v_mov_b32 v3, s%d" % (85 + 2 * i))
        a("global_store_dwordx2 v1, v[2:3], s[%d:%d] offset:%d" % (sWS, sWS + 1, i * 8))
    if CFG.dbgwg >= 0:
        a("s_cmp_lg_u32 s2, %d" % CFG.dbgwg)
        a("s_cbranch_scc1 %s" % l)
        a("s_load_dwordx2 s[20:21], s[0:1], 64")
        a("s_waitcnt lgkmcnt(0)")
        a("v_mov_b32 v1, 0")
        for i in range(16):
            a("s_sub_u32 s3, s%d, s84" % (84 + i)) if i != 1 else a("s_mov_b32 s3, s85")
            a("v_mov_b32 v2, s3")
            a("global_store_dword v1, v2, s[20:21] offset:%d" % (4 * i))
    a.label(l)

vL, vX, vFS, vFP, vTK, vPL = 174, 175, 216, 217, 218, 219

NOPS = {"w": 2, "x": 8, "xr": 8, "csa": 2, "cs": 1, "h": 4, "w2": 2, "h2": 4, "part": 4, "ex": 8, "er": 8, "o": 12, "stf": 4}
CUR = [None]
def chk(a, tag, **over):
    k = tag if isinstance(tag, str) else tag[0]
    n = over.get(k, NOPS.get(k, 1))
    S_ = CUR[0]
    if a.cnt.get(tag, 0) < n and S_ is not None:
        if VERB: print("LATE", tag, a.cnt.get(tag, 0), file=sys.stderr)
        while a.cnt.get(tag, 0) < n:
            if k in ("x", "w", "w2", "h2"):
                assert not S_.inbar or S_.mem, ("needs space behind this barrier", tag)
                S_.refill()
                q = S_.mem
            elif k in ("h", "part", "ex"):
                S_.flush_epi(); continue
            else: q = S_.extra
            assert q, ("cannot produce", tag)
            q.pop(0)[1]()
    a.expect(tag, n)
def wvm(a, tags, **over):
    for t in tags: chk(a, t, **over)
    a.wait_vm(lambda t: t in tags)
def wlg(a, tags):
    for t in tags: chk(a, t)
    a.wait_lg(lambda t: t in tags)

def ityp(code):
    out = ""
    for l in code.split("\n"):
        op = l.strip().split(" ")[0]
        if not op: continue
        if op == "s_waitcnt": continue
        if op.startswith("s_"): out += "S"
        elif op.startswith(("v_exp", "v_rcp", "v_sqrt")): out += "T"
        elif op.startswith("v_"): out += "V"
        elif op.startswith("ds_read"): out += "D"
        elif op.startswith("ds_write"): out += "X"
        elif op.startswith("buffer_store_dwordx"): out += "O"
        else: out += "M"
    return out
def I(a, s, c=1):
    def fn(): a(s)
    fn.code = s
    return (ityp(s), fn)
def Q(a, code):
    out = []; ls = [l.strip() for l in code.split("\n") if l.strip()]
    i = 0
    while i < len(ls):
        grp = [ls[i]]
        if ls[i].startswith(("s_cmp", "s_bitcmp")):
            while i + 1 < len(ls) and ls[i + 1].startswith(("s_cmov", "s_cselect")):
                i += 1; grp.append(ls[i])
        out.append(I(a, "\n".join(grp), len(grp)))
        i += 1
    return out
def VM(a, fmt, tag=None, w=1.0):
    def fn(): a.vmem(fmt() if callable(fmt) else fmt, tag)
    fn.vm = w
    return (ityp(fmt), fn)
def run(fns):
    for c, fn in fns: fn()

def signal(a, soff_code, tag=None):
    return [I(a, soff_code),
            ("M", lambda: a.vmem("buffer_store_dword v%d, v%d, %s, s49 offen %s" % (vTK, vFS, WSR, SC), tag))]

LATER = []
NSLOW = []
def slow_path(a, body, name):
    ls, lb, lp = a.newlabel("Lslow"), a.newlabel("Lback"), a.newlabel("Lspin")
    a("s_cbranch_scc1 %s" % ls)
    a.label(lb)
    b = Asm()
    b.label(ls)
    b("s_mov_b32 s59, 40000")
    if CFG.stamp:
        NSLOW.append(name)
        b("s_or_b32 s85, s85, 0x%x" % (1 << (len(NSLOW) - 1)))
    b.label(lp)
    b("s_sleep 1")
    body(b)
    b("s_cbranch_scc0 %s" % lb)
    b("s_sub_u32 s59, s59, 1")
    b("s_cmp_lg_u32 s59, 0")
    b("s_cbranch_scc1 %s" % lp)
    b("s_branch %s" % lb)
    LATER.extend(b.lines)
def poll_issue(a, soff_code, tag, dst=None):
    return [I(a, soff_code),
            ("M", lambda: a.vmem("buffer_load_dword v%d, v%d, %s, s49 offen %s" % (dst or vPL, vFP, WSR, SC), tag))]
def poll_check(a, soff_code, tag, mask, dst=None):
    def f1():
        wvm(a, [tag])
        a("v_cmp_eq_u32 vcc, s%d, v%d" % (sTOK, dst or vPL))
    def f2():
        d = dst or vPL
        a("s_andn2_b32 s61, %s, vcc_lo" % mask)
        def body(b):
            b(soff_code)
            b("buffer_load_dword v%d, v%d, %s, s49 offen %s" % (d, vFP, WSR, SC))
            b("s_waitcnt vmcnt(0)")
            b("v_cmp_eq_u32 vcc, s%d, v%d" % (sTOK, d))
            b("s_andn2_b32 s61, %s, vcc_lo" % mask)
        slow_path(a, body, str(tag))
    return [("SV", f1), ("SS", f2)]
def poll_now(a, soff_code, mask):
    tag = ("poll", a.newlabel())
    run(poll_issue(a, soff_code, tag))
    run(poll_check(a, soff_code, tag, mask))

def stats_load(a):
    a("s_lshl_b32 s52, s2, 2")
    a("s_add_u32 s52, s52, s%d" % sWAVE)
    a("v_lshrrev_b32 v40, 5, v%d" % vL)
    a("v_lshl_add_u32 v40, s52, 1, v40")
    a("v_mul_u32_u24 v41, 1152, v40")
    a("v_and_b32 v42, 31, v%d" % vL)
    a("v_lshl_add_u32 v43, v42, 4, v41")
    a("v_cmp_gt_u32 s[60:61], 8, v42")
    a("v_mov_b32 v45, 0x%x" % OOB)
    a.vmem("buffer_load_ushort v46, v41, %s, 0 offen" % XR, "ln")
    a.vmem("buffer_load_dwordx4 v[0:3], v43, %s, 0 offen" % XR, "ln")
    a("v_cndmask_b32 v44, v45, v43, s[60:61]")
    a.vmem("buffer_load_dwordx4 v[4:7], v43, %s, 0 offen offset:512" % XR, "ln")
    a.vmem("buffer_load_dwordx4 v[8:11], v44, %s, 0 offen offset:1024" % XR, "ln")
    a("v_cmp_eq_u32 vcc, 0, v42")
    a("v_cndmask_b32 v47, 0, -1, s[60:61]")
    a("v_lshlrev_b32 v40, 4, v40")
    a("v_cndmask_b32 v40, v45, v40, vcc")
def stats_compute(a):
    a.wait_vm(lambda t: t == "ln")
    a("v_lshlrev_b32 v46, 16, v46")
    a("v_and_b32 v47, v47, v46")
    D = 12
    for r in range(12):
        a("v_lshlrev_b32 v%d, 16, v%d" % (D + 2 * r, r))
        a("v_and_b32 v%d, 0xffff0000, v%d" % (D + 1 + 2 * r, r))
    for r in range(24):
        a("v_sub_f32 v%d, v%d, v%d" % (D + r, D + r, 46 if r < 16 else 47))
    a("v_pk_mul_f32 v[2:3], v[12:13], v[12:13]")
    a("v_pk_add_f32 v[0:1], v[12:13], v[14:15]")
    a("v_pk_fma_f32 v[2:3], v[14:15], v[14:15], v[2:3]")
    for r in range(4, 24, 2):
        a("v_pk_add_f32 v[0:1], v[0:1], v[%d:%d]" % (D + r, D + r + 1))
        a("v_pk_fma_f32 v[2:3], v[%d:%d], v[%d:%d], v[2:3]" % (D + r, D + r + 1, D + r, D + r + 1))
    a("v_add_f32 v0, v0, v1")
    a("v_add_f32 v1, v2, v3")
    for ror in (1, 2, 4, 8):
        a("s_nop 1")
        a("v_add_f32_dpp v0, v0, v0 row_ror:%d row_mask:0xf bank_mask:0xf" % ror)
        a("v_add_f32_dpp v1, v1, v1 row_ror:%d row_mask:0xf bank_mask:0xf" % ror)
    a("v_mov_b32 v2, v0")
    a("v_mov_b32 v3, v1")
    a("s_waitcnt lgkmcnt(0)")
    a("s_add_u32 s%d, s%d, 1" % (sTOK, sTOK))
    a("v_permlane16_swap_b32 v0, v2")
    a("v_permlane16_swap_b32 v1, v3")
    a("v_mov_b32 v%d, s%d" % (vTK, sTOK))
    a("s_mov_b32 s49, %d" % ST_OFF)
    a("v_add_f32 v0, v0, v2")
    a("v_add_f32 v1, v1, v3")
    a("v_mul_f32 v0, %s, v0" % f32(1.0 / 576))
    a("v_mul_f32 v1, %s, v1" % f32(1.0 / 576))
    a("v_fma_f32 v1, -v0, v0, v1")
    a("v_max_f32 v1, 0, v1")
    a("v_add_f32 v0, v0, v46")
    a("v_cvt_pk_bf16_f32 v1, v1, v1")
    a("v_cvt_pk_bf16_f32 v4, -v0, -v0")
    a("v_and_b32 v1, 0xffff0000, v1")
    a("v_add_f32 v1, %s, v1" % f32(1e-5))
    a("v_cvt_pk_bf16_f32 v1, v1, v1")
    a("v_and_b32 v1, 0xffff0000, v1")
    a("v_sqrt_f32 v1, v1")
    a("v_mov_b32 v5, s%d" % sTOK)
    a("v_mov_b32 v7, s%d" % sTOK)
    a("v_cvt_pk_bf16_f32 v1, v1, v1")
    a("v_and_b32 v6, 0xffff0000, v1")
    a.vmem("buffer_store_dwordx4 v[4:7], v40, %s, s49 offen %s" % (WSR, SC), "st")

def lane_fields(a, vq, vrow, vc):
    a("v_lshrrev_b32 v%d, 4, v%d" % (vq, vL))
    a("v_bfe_u32 v%d, v%d, 2, 3" % (vrow, vL))
    a("v_and_b32 v%d, 3, v%d" % (vc, vL))

def dma_lane_off(a, vD, t0, t1, rowbytes, perm=False):
    return [I(a, "v_lshrrev_b32 v%d, 3, v%d" % (t0, vL)),
            I(a, "v_and_b32 v%d, 6, v%d" % (t1, t0)),
            I(a, "v_xor_b32 v%d, v%d, v%d" % (t1, t1, vL)),
            I(a, "v_and_b32 v%d, 7, v%d" % (t1, t1))] + \
           ([I(a, "v_and_b32 v%d, 4, v%d" % (vD, t0)), I(a, "v_add_u32 v%d, v%d, v%d" % (t0, t0, vD))] if perm else []) + [
            I(a, "v_mul_u32_u24 v%d, %d, v%d" % (t0, rowbytes, t0)),
            I(a, "v_lshl_add_u32 v%d, v%d, 4, v%d" % (vD, t1, t0))]

RA = 160
def tr_addrs(a, t0, t1, t2):
    lane_fields(a, t0, t1, t2)
    a("v_lshrrev_b32 v%d, 1, v%d" % (t0, t0))
    a("v_lshlrev_b32 v%d, 10, v%d" % (t0, t0))
    a("v_lshl_add_u32 v%d, v%d, 7, v%d" % (t0, t1, t0))
    a("v_lshl_add_u32 v%d, v%d, 3, v%d" % (t0, t2, t0))
    a("v_lshrrev_b32 v%d, 1, v%d" % (t1, t1))
    for u in range(4):
        a("v_xor_b32 v%d, %d, v%d" % (t2, u, t1))
        a("v_lshl_add_u32 v%d, v%d, 5, v%d" % (RA + u, t2, t0))
        a("v_add_u32 v%d, 0x10000, v%d" % (RA + 4 + u, RA + u))
        a("v_add_u32 v%d, 0x20000, v%d" % (RA + 8 + u, RA + u))

class XStage:
    def __init__(self, a, XO, XA, base, R, reg):
        self.a, self.XO, self.XA, self.base, self.R, self.reg = a, XO, XA, base, R, reg
    def setup_dma(self, t0, t1):
        a = self.a
        a("v_lshrrev_b32 v%d, 3, v%d" % (t0, vL))
        a("v_lshrrev_b32 v%d, 1, v%d" % (t1, t0))
        a("v_xor_b32 v%d, v%d, v%d" % (t1, t1, vL))
        a("v_and_b32 v%d, 7, v%d" % (t1, t1))
        a("s_lshl_b32 s52, s%d, 8" % sI)
        a("s_lshl_b32 s49, s%d, 6" % sWAVE)
        a("s_add_u32 s52, s52, s49")
        a("v_add_u32 v%d, s52, v%d" % (t0, t0))
        a("v_mul_u32_u24 v%d, 1152, v%d" % (t0, t0))
        a("v_lshl_add_u32 v%d, v%d, 4, v%d" % (self.XO, t1, t0))
        a("v_xor_b32 v%d, 64, v%d" % (self.XO + 1, self.XO))
        a("v_add_u32 v%d, %d, v%d" % (self.XO + 2, 2 * (8 * 1152 - 1024), self.XO))
        a("v_add_u32 v%d, %d, v%d" % (self.XO + 3, 3 * (8 * 1152 - 1024), self.XO + 1))
        a("v_add_u32 v%d, %d, v%d" % (self.XO + 1, 8 * 1152 - 1024, self.XO + 1))
        a("s_mul_i32 s%d, s%d, %d" % (sXL, sWAVE, self.R * 8192))
        a("s_add_u32 s%d, s%d, %d" % (sXL, sXL, self.base))
        a("s_lshl_b32 s%d, s%d, 7" % (sXo, sROT))
    def setup_read(self, t0, t1, t2):
        a = self.a
        a("v_and_b32 v%d, 15, v%d" % (t0, vL))
        a("v_lshrrev_b32 v%d, 1, v%d" % (t1, t0))
        a("v_lshrrev_b32 v%d, 4, v%d" % (t2, vL))
        a("v_xor_b32 v%d, v%d, v%d" % (t1, t1, t2))
        a("v_lshlrev_b32 v%d, 7, v%d" % (t0, t0))
        a("v_lshl_add_u32 v%d, v%d, 4, v%d" % (t0, t1, t0))
        a("v_add_u32 v%d, s%d, v%d" % (self.XA, sXL, t0))
        a("v_xor_b32 v%d, 64, v%d" % (self.XA + 1, self.XA))
    def dma(self, p):
        a = self.a
        fns = []
        if p >= self.R: fns.append(("S", lambda: wlg(a, [("xr", p - self.R)])))
        for hf in range(2):
            fns.append(I(a, "s_add_u32 m0, s%d, %d" % (sXL, (p % self.R) * 8192 + hf * 4096)))
            fns.append(I(a, "s_add_u32 s54, s%d, %d" % (sXo, hf * 32 * 1152)))
            for b in range(4):
                fns.append(VM(a, "buffer_load_dwordx4 v%d, %s, s54 offen offset:%d lds" % (self.XO + b, XR, b * 1024), ("x", p)))
        fns.append(I(a, "s_add_u32 s%d, s%d, 128\ns_cmp_ge_u32 s%d, 1152\ns_cmov_b32 s%d, 0" % (sXo, sXo, sXo, sXo), 3))
        return fns
    def job(self, p):
        return ("x", lambda: p < self.R or self.a.cnt.get(("xr", p - self.R), 0) == 8, lambda: self.dma(p))
    def reads(self, p):
        a = self.a
        fns = [("S", lambda: wvm(a, [("x", p)]))]
        for e in range(2):
            for tt in range(4):
                k, b = self.reg(2 * p + e, tt)
                fns.append(("D", lambda k=k, b=b, e=e, tt=tt: a.lds("ds_read_b128 %s, v%d offset:%d" % (R(k, b, 4), self.XA + e, (p % self.R) * 8192 + tt * 2048), ("xr", p))))
        return fns

class Stream:
    def __init__(self, a, kind, base):
        self.a, self.kind, self.base = a, kind, base
        self.slots = []; self.ring = []
        self.nring = 0
        self.next_rd = 0
        self.epi = []; self.deadline = 0; self.epiP = None; self.hold = 0; self.edone = {}; self.short = False
        self.extra = []
        self.inbar = False
        CUR[0] = self
        self.vmacc = 1.0; self.vmrate = CFG.vmrate / 100.0
        self.jobs = []; self.mem = []
        self.pos = 0
    def refill(self):
        if self.mem: return
        blocked = set()
        for j, (cl, ready, make) in enumerate(self.jobs):
            if cl in blocked: continue
            if len(self.a.vm) <= 50 and ready():
                self.mem = make(); self.jobs.pop(j); return
            blocked.add(cl)
    def head(self, q):
        if q and "\n" in getattr(q[0][1], "code", "") and not getattr(q[0][1], "atom", False):
            parts = Q(self.a, q[0][1].code)
            for c, f in parts: f.atom = True
            q[0:1] = parts
        return q[0] if q else None
    def add(self, rd, mf):
        self.slots.append((rd, mf))
        self.ring.append(self.nring if rd else None)
        if rd: self.nring += 1
    def cur_ring(self, s):
        while s < len(self.slots) and self.ring[s] is None: s += 1
        return self.ring[s] if s < len(self.slots) else self.nring
    def read_limit(self, s):
        return self.cur_ring(s) + 4
    def pending_reads(self, lim):
        out = []
        while self.next_rd < len(self.slots):
            n = self.next_rd
            if self.ring[n] is None: self.next_rd += 1; continue
            if self.ring[n] > lim: break
            out += self.slots[n][0](self.kind, self.base + 4 * (self.ring[n] % 8), ("f", self.ring[n]))
            self.next_rd += 1
        return out
    def prime(self): run(self.pending_reads(self.cur_ring(self.pos) + 3))
    def set_epi(self, items, deadline, hold=0, ordered=True):
        assert not self.epi
        ops = []
        for n, it in enumerate(items):
            deps = set()
            if ordered:
                if n: deps.add(n - 1)
            else:
                rd, wr = set(it[2]), set(it[3])
                for m in range(n):
                    if (rd | wr) & set(items[m][3]) or wr & set(items[m][2]): deps.add(m)
            ops.append([it[0], it[1], deps, n])
        self.epi = ops; self.edone = {}; self.deadline = deadline; self.hold = self.pos + hold
    def epi_cost(self): return sum(2 if o[0] in "TMOX" and o[0] else len(o[0]) for o in self.epi)
    def epi_pick(self, fits, strict=True):
        if self.pos < self.hold or (strict and self.short): return None
        for o in self.epi[:CFG.window]:
            ok = True
            for d in o[2]:
                if d not in self.edone: ok = False; break
                t, at = self.edone[d]
                if (t == "T" or strict) and t in ("T", "V") and o[0] in ("T", "V") and self.a.n - at < 1: ok = False; break
            if ok and fits(o[0]): return o
        return None
    def epi_run(self, o):
        self.epi.remove(o); o[1](); self.edone[o[3]] = (o[0], self.a.n)
    def flush_epi(self):
        while self.epi:
            o = self.epi_pick(lambda t: True, False)
            if o is None: self.a("s_nop 0"); continue
            self.epi_run(o)
    def emit(self, pre=(), push=0):
        a = self.a
        s = self.pos
        rd, mf = self.slots[s]
        r = self.ring[s]
        if r is not None: a.wait_lg(lambda t: t == ("f", r))
        mfmas = mf(R(self.kind, self.base + 4 * (r % 8), 4) if r is not None else None)
        n = len(mfmas)
        must = list(pre) + (self.pending_reads(self.read_limit(s)) if n == 4 else [])
        self.short = n < 4
        force = 0
        if self.epi and s >= self.hold and (n == 4 or self.deadline - s <= 1):
            left = max(self.deadline - s, 1)
            force = self.epi_cost() - int((left - 1) * CFG.epirate)
            if left * CFG.epirate < self.epi_cost(): force = math.ceil(self.epi_cost() / left)
        if n == 4: self.vmacc = min(self.vmacc + self.vmrate, 2.0)
        cost0 = self.epi_cost()
        for g, m in enumerate(mfmas):
            a(m)
            st = {"pos": 0, "vec": False, "bar": False}
            def place(t, commit=False):
                pos, vec, bar = st["pos"], st["vec"], st["bar"]
                for c in t:
                    if c == "B": pos += 2; bar = True
                    elif c == "S": pos += 1
                    elif c == "D":
                        if vec or bar: return False
                        pos = max(pos, 1) + 1; vec = True
                    elif c == "V": pos = max(pos, 1) + 1; vec = True
                    elif c == "T":
                        pos = max(pos, 1) + 2; vec = True
                    elif c == "M":
                        if pos: return False
                        pos = 3; vec = True
                    elif c == "O":
                        if pos: return False
                        pos = 2; vec = True
                    elif c == "X":
                        if vec or pos > 1: return False
                        pos = 3; vec = True
                if pos > 3: return False
                if commit: st["pos"], st["vec"], st["bar"] = pos, vec, bar
                return True
            def take(lst):
                t, f = lst.pop(0); place(t, True); f()
                if getattr(f, "vm", False): self.vmacc -= f.vm
            free_q = n == 4 and not any(t == "B" for t, f in must)
            nd = sum(1 for t, f in must if t == "D")
            want_d = nd > 0 and (nd >= n - g or g % 2 == 0 or nd > (n - g) // 2)
            def heads():
                out = []
                if not any(t == "B" for t, f in must):
                    self.refill()
                    for lst in (self.mem, self.extra):
                        h = self.head(lst)
                        if h is None: continue
                        if lst is self.mem and getattr(h[1], "vm", False) and self.vmacc < 1: continue
                        out.append(lst)
                return out
            def drop_free():
                ch = True
                while ch:
                    ch = False
                    for lst in heads():
                        if lst[0][0] == "": take(lst); ch = True
                    o = self.epi_pick(lambda t: t == "") if free_q or not must or must[0][0] != "B" else None
                    if o: self.epi_run(o); ch = True
            while must and must[0][0] == "B":
                self.inbar = True; take(must); self.inbar = False
            st["w"] = False
            if g == n - 1 and n == 4:
                nx = self.cur_ring(s + 1)
                if ("f", nx) in a.lg and a.cnt.get(("f", nx), 0) % 2 == 0:
                    two = a.cnt.get(("f", nx + 1), 0) == 2
                    a.wait_lg(lambda t: t == ("f", nx) or (two and t == ("f", nx + 1))); st["w"] = True
            drop_free()
            done_heavy = False
            if not want_d and not (must and must[0][0] == "V"):
                for lst in heads():
                    if lst[0][0] in ("M", "O") and place(lst[0][0]): take(lst); done_heavy = True; break
                if not done_heavy:
                    o = self.epi_pick(lambda t: t in ("O", "M", "X") and place(t))
                    if o: place(o[0], True); self.epi_run(o); done_heavy = True
            if not done_heavy:
                if st["w"]: place("S", True)
                if st["pos"] == 0:
                    for lst in heads():
                        if lst[0][0] == "S" or (lst[0][0] in ("SS", "SV") and not want_d): take(lst); break
                    else:
                        o = self.epi_pick(lambda t: t == "S")
                        if o: place("S", True); self.epi_run(o)
                    drop_free()
                if must and must[0][0] == "D" and want_d and place("D"): take(must)
                elif not want_d:
                    for lst in heads():
                        if lst[0][0] == "D" and place("D"): take(lst); break
                    else:
                        o = self.epi_pick(lambda t: t == "D" and place(t))
                        if o: place("D", True); self.epi_run(o)
            while True:
                drop_free()
                if must and must[0][0] == "V" and place("V"): take(must); continue
                for lst in heads():
                    if lst[0][0] and set(lst[0][0]) <= set("SVT") and place(lst[0][0]): take(lst); break
                else:
                    o = self.epi_pick(lambda t: t == "T" and place(t)) or self.epi_pick(lambda t: t in ("V", "S") and place(t))
                    if o is None: break
                    place(o[0], True); self.epi_run(o)
            want = force * (g + 1) / n
            while self.epi and cost0 - self.epi_cost() < want:
                o = self.epi_pick(lambda t: t in ("V", "T", "S", "") or g == n - 1, False)
                if o is None: break
                self.epi_run(o)
            if g == n - 1:
                while must: must.pop(0)[1]()
                k = push
                while k > 0 and self.head(self.extra): self.extra.pop(0)[1](); k -= 1
        self.pos += 1

def tr_read(a, off_fn, u):
    def rd(kind, reg, tag):
        off = off_fn()
        return [("D", lambda h=h: a.lds("ds_read_b64_tr_b16 %s, v%d offset:%d" % (R(kind, reg + 2 * h, 2), RA + 4 * (off >> 16) + u, (off & 0xffff) + h * 2048), tag)) for h in range(2)]
    return rd

WF = 128
HRING = 10
GORDER = [2, 1, 0]
def acc2(c, tt):
    g, k = c >> 2, c & 3
    if k >= 2: return ("a", 160 + 32 * g + 16 * (k - 2) + 4 * tt)
    return ("v", (32 * g if g < 2 else 224) + 16 * k + 4 * tt)
def hr(st, tt): return A(16 * (st % HRING) + 4 * tt, 4)
sPX = 56
vEW, vER = 195, 196
HB = {0: 12, 1: 13, 2: 62}
WB = {0: 14, 1: 15, 2: 3}
def rot_bases(a, other):
    if CFG.hrot == 2:
        a("s_add_u32 s61, s68, s%d" % other)
        a("s_mul_i32 s60, s61, 43")
        a("s_lshr_b32 s60, s60, 7")
        a("s_mul_i32 s60, s60, 3")
        a("s_sub_u32 s61, s61, s60")
    else: a("s_mov_b32 s61, s68")
    for k in range(3):
        if CFG.hrot:
            a("s_add_u32 s52, s61, %d" % k)
            a("s_cmp_ge_u32 s52, 3")
            a("s_cselect_b32 s60, 3, 0")
            a("s_sub_u32 s52, s52, s60")
        else: a("s_mov_b32 s52, %d" % k)
        a("s_mul_i32 s60, s52, %d" % (192 * 1152))
        a("s_add_u32 s%d, s63, s60" % WB[k])
        a("s_mul_i32 s60, s52, %d" % (6 * KSTRIDE))
        a("s_add_u32 s%d, s62, s60" % HB[k])

class P2:
    def __init__(self, a, steps, VO, VS, VX):
        self.a = a; self.steps = steps; self.VO = VO; self.VS = VS; self.VX = VX
        self.loc = {}
        self.free = []
        self.visible = set()
        self.cur = 0
        self.swapped = False
        NS, K = len(steps), CFG.kseq
        self.order = [(st, c) for st in range(NS - K) for c in range(12)]
        self.seq0 = len(self.order)
        for g in GORDER:
            for c0 in (4 * g + 2, 4 * g):
                self.order += [(st, c) for st in range(NS - K, NS) for c in (c0, c0 + 1)]
        self.units = []
        for st, c in self.order:
            if (st, c >> 2) not in self.units: self.units.append((st, c >> 2))
    def setup_s(self):
        a = self.a
        srd(a, rW2, sW2, 4608 * 1152)
        srd(a, rWO, sWO, 576 * 1152)
        a("s_lshl_b32 s66, s%d, 11" % sWAVE)
    def setup_vo(self, t0, t1, half_code, sTile=sI):
        a = self.a
        return dma_lane_off(a, self.VO, t0, t1, 1152) + Q(a, """s_mul_i32 s52, s68, 384
            s_and_b32 s60, s{W}, 1
            s_mul_i32 s60, s60, {R16}
            s_add_u32 s52, s52, s60
            v_add_u32 v{VO}, s52, v{VO}
            v_add_u32 v{VO1}, {D}, v{VO}
            {HALF}
            s_lshl_b32 s9, s52, 10
            s_add_u32 s9, s9, s69
            s_lshl1_add_u32 s52, s{I}, s52
            s_and_b32 s60, s{W}, 1
            s_lshl1_add_u32 s52, s52, s60
            s_lshl_b32 s52, s52, 12
            v_lshl_add_u32 v{VX}, v{L}, 4, s52""".format(W=sWAVE, R16=16 * 1152, VO=self.VO, VO1=self.VO + 1, D=8 * 1152 - 1024, HALF=half_code, I=sTile, VX=self.VX, L=vL))
    def setup_special(self, t0, t1, t3):
        a = self.a
        for k in range(2):
            a("s_and_b32 s49, s%d, 1" % sWAVE)
            a("s_lshl_b32 s49, s49, 4")
            a("v_lshrrev_b32 v%d, 3, v%d" % (t0, vL))
            a("v_add3_u32 v%d, s49, v%d, %d" % (t0, t0, 8 * k))
            a("v_lshrrev_b32 v%d, 4, v%d" % (t1, t0))
            a("v_mul_u32_u24 v%d, 72, v%d" % (t1, t1))
            a("v_bfe_u32 v%d, v%d, 2, 2" % (t3, t0))
            a("v_lshl_add_u32 v%d, v%d, 4, v%d" % (t1, t3, t1))
            a("v_lshrrev_b32 v%d, 1, v%d" % (t3, t3))
            a("v_lshl_add_u32 v%d, v%d, 2, v%d" % (t1, t3, t1))
            a("v_and_b32 v%d, 3, v%d" % (t3, t0))
            a("v_add3_u32 v%d, v%d, v%d, 16" % (t1, t1, t3))
            a("v_sub_u32 v%d, v%d, v%d" % (t1, t1, t0))
            a("v_mul_u32_u24 v%d, 1152, v%d" % (t1, t1))
            a("v_add_u32 v%d, v%d, v%d" % (self.VS + k, self.VO + k, t1))
    def h_issue(self, st):
        a = self.a
        pl, row, kind = self.steps[st]
        fns = [I(a, "s_add_u32 s54, s%d, %d" % (HB[kind] if kind in HB else 64, pl * KSTRIDE))]
        for tt in range(4):
            fns.append(VM(a, "buffer_load_dwordx4 %s, v%d, %s, s54 offen offset:%d %s" % (hr(st, tt), self.VX, WSR, tt * 1024, SC), ("h2", st), CFG.hw))
        return fns
    def dma_issue(self, st, ln):
        a = self.a
        pl, row, kind = self.steps[st]
        r = rW2 if kind in HB else rWO
        vo = self.VS if kind == "wos" else self.VO
        sl = self.free.pop(0)
        self.loc[(st, ln)] = sl
        return [I(a, "s_add_u32 m0, s66, %d" % (sl * 8192)),
                I(a, "s_add_u32 s55, s%d, %d" % (WB[kind] if kind in WB else 65, row * 1152 + ln * 128)),
                VM(a, "buffer_load_dwordx4 v%d, s[%d:%d], s55 offen lds" % (vo, r, r + 3), ("w2", st, ln)),
                VM(a, "buffer_load_dwordx4 v%d, s[%d:%d], s55 offen offset:1024 lds" % (vo + 1, r, r + 3), ("w2", st, ln))]
    def jobs(self, first, w_ok, h_ok):
        out = []; hs = set(range(first))
        for st, ln in self.units:
            if st < first: continue
            if st not in hs:
                hs.add(st)
                out.append(("h2", lambda st=st: st - HRING < self.cur and h_ok(st), lambda st=st: self.h_issue(st)))
            out.append(("w2", lambda st=st: len(self.free) > self.reserve and w_ok(st), lambda st=st, ln=ln: self.dma_issue(st, ln)))
        return out
    reserve = 0
    def add_slots(self, S_):
        a = self.a
        self.s0 = len(S_.slots)
        fixed = set()
        for st, c in self.order:
            def rd(kind, reg, tag, st=st, c=c):
                assert (st, c >> 2) in self.visible, (st, c)
                off = self.loc[(st, c >> 2)] * 8192
                ra = RA + 4 * (off >> 16) + (c & 3)
                out = []
                if ra not in fixed:
                    fixed.add(ra); out.append(I(a, "v_xor_b32 v%d, s%d, v%d" % (ra, sPX, ra)))
                return out + tr_read(a, lambda: off, c & 3)(kind, reg, tag)
            def mf(w, st=st, c=c):
                return ["%s %s, %s, %s, %s" % (MF, R(*acc2(c, tt), 4), w, hr(st, tt), "0" if st == 0 else R(*acc2(c, tt), 4)) for tt in range(4)]
            S_.add(rd, mf)
    def exchange(self, g, slots, packed=False):
        a = self.a
        send = []; recv = []; fin = []
        def adj(q, reg, cur, want):
            if cur[0] != want: q.append(I(a, "v_add_u32 v%d, 0x%x, v%d" % (reg, (want - cur[0]) & 0xffffffff, reg))); cur[0] = want
        slots = sorted(slots)
        for k in range(8):
            off = slots[k >> 1] * 8192 + (k & 1) * 4096
            adj(send, vEW, self.ew, off & ~0xffff)
            send.append(("X", lambda k=k, off=off: a.lds("ds_write_b128 v%d, %s offset:%d" % (vEW, R(*acc2(4 * g + 2 + (k & 1), k >> 1), 4), off & 0xffff), ("ex", g))))
            adj(recv, vER, self.er, off & ~0xffff)
            recv.append(("D", lambda k=k, off=off: a.lds("ds_read_b128 %s, v%d offset:%d" % (V(64 + 4 * k, 4), vER, off & 0xffff), ("er", g))))
        fin.append(I(a, "s_add_u32 s58, s67, %d" % (2 * g * KSTRIDE)) + ([], ["s58"]))
        for tt in range(4):
            r0, r1 = acc2(4 * g, tt)[1], acc2(4 * g + 1, tt)[1]
            for r, t in ((r0, 64 + 8 * tt), (r1, 68 + 8 * tt)):
                if packed:
                    for i in (0, 2): fin.append(I(a, "v_pk_add_f32 %s, %s, %s" % (V(r + i, 2), V(r + i, 2), V(t + i, 2))) + ([], []))
                else:
                    for i in range(4): fin.append(I(a, "v_add_f32 v%d, v%d, v%d" % (r + i, r + i, t + i)) + ([r + i], [r + i]))
            for d, s0 in ((r0, r0), (r0 + 1, r0 + 2), (r0 + 2, r1), (r0 + 3, r1 + 2)):
                fin.append(I(a, "v_cvt_pk_bf16_f32 v%d, v%d, v%d" % (d, s0, s0 + 1)) + ([s0, s0 + 1], [d]))
            fin.append(VM(a, "buffer_store_dwordx4 %s, v%d, %s, s58 offen offset:%d %s" % (V(r0, 4), self.VX, WSR, tt * 1024, SC), ("part", g)) + ([r0, r0 + 1, r0 + 2, r0 + 3, "s58"], []))
        return send, recv, fin
    def main(self, S_, hooks, dead0):
        a = self.a
        NS, K = len(self.steps), CFG.kseq
        PL, HL = 4 * K, 2 * K
        XB_ = HL + 2 + CFG.exs
        seen = set()
        self.ew = [0]; self.er = [0]
        def psig(k): return signal(a, "s_add_u32 s49, s9, %d" % (128 * (FP + 16 * k)))
        bars = [s for s, (st, c) in enumerate(self.order) if s < self.seq0 and c == 7]
        for ps in range(3): bars += [self.seq0 + ps * PL + x for x in (2, XB_)]
        last = {}
        for s, (st, c) in enumerate(self.order): last[(st, c >> 2)] = s
        freed = set()
        ex = {}
        for s, (st, c) in enumerate(self.order):
            if st not in seen:
                seen.add(st)
                self.cur = st
                if VERB: a.cm("HS p2 step %d" % st)
                if st < 11: stamp(a, 4 + st, 3)
                wvm(a, [("h2", st)])
                if st in (0, 8): stamp(a, 10 + st // 8)
            pre = []
            r = s - self.seq0
            if VERB and r > 0 and r % HL == 0: a.cm("HS p2 half %d" % (r // HL))
            if r >= -24 and r % 12 == 0 and r < 0: stamp(a, 6 + r // 12, 4)
            if r >= 0 and r % HL == 0: stamp(a, 6 + r // HL, 4)
            if r == -36: self.reserve = 4
            k, x = (r // PL, r % PL) if r >= 0 else (-1, -1)
            if s in bars:
                nxt = min([b for b in bars if b > s] + [len(self.order)])
                lim = S_.read_limit(self.s0 + nxt - 1) - S_.ring[self.s0]
                need = []
                for st2, c2 in self.order[:lim + 1]:
                    u = (st2, c2 >> 2)
                    if u not in self.visible and u not in need: need.append(u)
                hk = hooks.get(st, {}) if r < 0 else {}
                tags = [("w2",) + u for u in need] + hk.get("bar", [])
                lg = []
                aft = list(hk.get("after", []))
                dead = [u for u in last if last[u] < s and u not in freed]
                newfree = [self.loc[u] for u in dead] + (dead0 if s == bars[0] else [])
                if x == 2 and k > 0:
                    lg.append(("er", GORDER[k - 1]))
                if x == XB_:
                    lg.append(("ex", GORDER[k])); aft += ex[k][1]
                if tags or lg or aft or (newfree and S_.jobs):
                    def bar(tags=tags, lg=lg):
                        wlg(a, lg); wvm(a, tags)
                        a("s_barrier")
                    pre.append(("B", bar))
                    self.visible.update(need); freed.update(dead); self.free += newfree
                    S_.extra += aft
            if x == 3 and k > 0: S_.set_epi(ex[k - 1][2], S_.pos + HL - 2, 0, False)
            if x == HL + 2:
                if k == 0:
                    self.scratch = self.free[:4]; self.free = self.free[4:]; self.reserve = 0
                ex[k] = self.exchange(GORDER[k], self.scratch, k == 2)
                S_.set_epi(ex[k][0], S_.pos + CFG.exs)
            if r == -20: S_.extra += fin_setup(a)
            S_.emit(pre)
        assert not S_.epi and not S_.jobs and not S_.mem
        run(S_.extra); S_.extra = []
        if VERB: a.cm("END")
        stamp(a, 12); stamp(a, 12, 4)
        wlg(a, [("er", GORDER[2])])
        a("s_nop 5")
        for it in ex[2][2]: it[1]()
        stamp(a, 13, 4)
        if not CFG.one:
            wvm(a, [("part", GORDER[1])])
            a("s_barrier")
            run(psig(0))
        stamp(a, 14, 4)
        wvm(a, [("part", GORDER[2])])
        a("s_barrier")
        run(psig(1))
        stamp(a, 13)

NSL = 5
PB = [96, 116, 32]
XB, SUM = 144, 224
vFA, vFB = 192, 193
def fin_setup(a):
    code = """s_lshl_b32 s52, s{XG}, 2
    s_add_u32 s52, s52, s{C}
    s_lshr_b32 s73, s52, 1
    s_lshl_b32 s74, s{I}, 4
    s_add_u32 s73, s73, s74
    s_and_b32 s52, s52, 1
    s_mul_i32 s74, s{W}, 6
    s_add_u32 s52, s52, s74
    s_lshl_b32 s74, s52, 17
    s_lshl_b32 s75, s73, 10
    s_add_u32 s74, s74, s75
    s_add_u32 s74, s74, {PART}
    s_mul_i32 s75, s73, {ROW}
    s_lshl_b32 s52, s52, 6
    s_add_u32 s75, s75, s52
    v_lshlrev_b32 v{FA}, 4, v{L}
    v_and_b32 v{FB}, 15, v{L}
    v_mul_u32_u24 v{FB}, 1152, v{FB}
    v_lshrrev_b32 v194, 4, v{L}
    v_lshl_add_u32 v{FB}, v194, 3, v{FB}
    s_lshr_b32 s52, s{XG}, 2
    s_lshl_b32 s8, s52, 10
    s_add_u32 s8, s8, s{FI}
    s_mul_i32 s52, s52, 3
    s_lshl_b32 s73, 0x071c71c7, s52
    s_lshl_b32 s52, s{W}, 10
    v_add_u32 v{EW}, s52, v{FA}
    v_xor_b32 v{ER}, 0x800, v{EW}
    s_mov_b32 s76, 0x3f80
    s_mov_b32 s77, 0x3f800000""".format(EW=vEW, ER=vER, FI=sFI, XG=sXG, C=sC, I=sI, W=sWAVE, PART=PART_OFF, ROW=16 * 1152, FA=vFA, FB=vFB, L=vL)
    q = [I(a, l) for l in code.split("\n")]
    q.append(I(a, "s_cmp_eq_u32 s%d, 3\ns_cmov_b32 s74, 0x%x\ns_cmov_b32 s75, 0x%x" % (sWAVE, OOB, OOB), 3))
    b_ = Asm(); srd(b_, rWA, sOUT, 2048 * 1152)
    q += Q(a, "\n".join(b_.lines))
    return q
def fin_x(a, k):
    g = GORDER[k]
    a.vmem("buffer_load_dwordx2 %s, v%d, %s, s75 offen offset:%d" % (V(XB + 4 * k, 2), vFB, XR, 128 * g), ("x3", k))
    a.vmem("buffer_load_dwordx2 %s, v%d, %s, s75 offen offset:%d" % (V(XB + 4 * k + 2, 2), vFB, XR, 128 * g + 32), ("x3", k))
def fin_loads(a, k):
    g = GORDER[k]
    a("s_add_u32 s58, s74, %d" % (2 * g * KSTRIDE))
    for r in range(NSL):
        a.vmem("buffer_load_dwordx4 %s, v%d, %s, s58 offen %s" % (V(PB[k] + 4 * r, 4), vFA, WSR, SC), ("p", k, r))
        if r < NSL - 1: a("s_add_u32 s58, s58, %d" % PSL)
def fin_sum(a, k):
    g = GORDER[k]
    OR = "s[%d:%d]" % (rWA, rWA + 3)
    a.wait_vm(lambda t: t == ("x3", k))
    for i in range(4):
        a("v_lshlrev_b32 v%d, 16, v%d" % (SUM + 8 * k + 2 * i, XB + 4 * k + i))
        a("v_and_b32 v%d, 0xffff0000, v%d" % (SUM + 8 * k + 2 * i + 1, XB + 4 * k + i))
    for r in range(NSL):
        a.wait_vm(lambda t: t == ("p", k, r))
        for i in range(4):
            p = PB[k] + 4 * r + i
            s_ = SUM + 8 * k + 2 * i
            a("v_dot2_f32_bf16 v%d, v%d, s76, v%d" % (s_, p, s_))
            a("v_dot2_f32_bf16 v%d, v%d, s77, v%d" % (s_ + 1, p, s_ + 1))
    a("s_nop 2")
    for i in range(4):
        a("v_cvt_pk_bf16_f32 v%d, v%d, v%d" % (XB + 4 * k + i, SUM + 8 * k + 2 * i, SUM + 8 * k + 2 * i + 1))
    a.vmem("buffer_store_dwordx2 %s, v%d, %s, s75 offen offset:%d%s" % (V(XB + 4 * k, 2), vFB, OR, 128 * g, OSC))
    a.vmem("buffer_store_dwordx2 %s, v%d, %s, s75 offen offset:%d%s" % (V(XB + 4 * k + 2, 2), vFB, OR, 128 * g + 32, OSC))

def hilo(a, v, t0, t1):
    return [I(a, "v_cvt_pk_bf16_f32 v%d, v%d, v%d" % (t0, v, v)),
            I(a, "v_and_b32 v%d, 0xffff0000, v%d" % (t0, t0)),
            I(a, "v_sub_f32 v%d, v%d, v%d" % (t1, v, t0)),
            I(a, "v_cvt_pk_bf16_f32 v%d, v%d, v%d" % (v, t0, t1))]

def stats_fetch(a, kind, base, vaddr):
    fns = [I(a, "s_mov_b32 s49, %d" % ST_OFF)]
    for tt in range(4):
        fns.append(("M", lambda tt=tt: a.vmem("buffer_load_dwordx4 %s, v%d, %s, s49 offen offset:%d %s" % (R(kind, base + 4 * tt, 4), vaddr, WSR, 256 * tt, SC), "stf")))
    return fns
def stats_check(a, kind, base, vaddr, t0):
    code = []
    for n, r in enumerate([base + 4 * tt + k for tt in range(4) for k in (1, 3)]):
        if kind == "a":
            code.append("v_accvgpr_read_b32 v%d, a%d" % (t0, r)); r = t0
        if n == 0: code.append("v_cmp_eq_u32 s[60:61], s%d, v%d" % (sTOK, r))
        else: code += ["v_cmp_eq_u32 vcc, s%d, v%d" % (sTOK, r), "s_and_b64 s[60:61], s[60:61], vcc"]
    def last():
        a("s_cmp_lg_u64 s[60:61], -1")
        def body(b):
            b("s_mov_b32 s49, %d" % ST_OFF)
            for tt in range(4):
                b("buffer_load_dwordx4 %s, v%d, %s, s49 offen offset:%d %s" % (R(kind, base + 4 * tt, 4), vaddr, WSR, 256 * tt, SC))
            b("s_waitcnt vmcnt(0)")
            b("\n".join(code))
            b("s_cmp_lg_u64 s[60:61], -1")
        slow_path(a, body, "stats")
    return [("S", lambda: wvm(a, ["stf"]))] + [I(a, c) for c in code] + [("SS", last)]
def stats_addr(a, dst):
    return [I(a, "v_and_b32 v%d, 15, v%d" % (dst, vL)),
            I(a, "s_lshl_b32 s52, s%d, 12\ns_lshl_b32 s60, s%d, 10\ns_add_u32 s52, s52, s60\nv_lshl_add_u32 v%d, v%d, 4, s52" % (sI, sWAVE, dst, dst), 4)]

def path_mlp(a):
    vD, TMP, HS, ONES, CSA, ST = 172, 176, 184, 188, 192, 200
    vCSR, vCSW, vCSL, vP2 = 220, 221, 222, 223
    def xreg(kk, tt):
        i = kk * 4 + tt
        return ("a", 4 * i) if i < 64 else ("v", 224 + 4 * (i - 64))
    def xr(kk, tt): return R(*xreg(kk, tt), 4)
    def acc(P, ti, tt): return 64 * P + 16 * ti + 4 * tt
    t0, t1, t2, t3 = 64, 65, 66, 67
    XS = XStage(a, TMP, TMP + 4, 8 * 8192, 3, xreg)
    WLIM = 576 * 9216
    loc = {}
    WT = [sWo, 4, 5, 6, 7, 10, 11, 20, 21]
    issued_at = {}; now = [0]
    free = list(range(8))
    def dma_issue(L, kk):
        sl = free.pop(0); loc[(L, kk)] = sl
        fns = [I(a, "s_add_u32 m0, s53, %d" % (sl * 8192)),
               I(a, "s_add_u32 s55, s%d, %d" % (WT[kk >> 1], (kk & 1) * 32 * 9216 + L * 128)),
               VM(a, "buffer_load_dwordx4 v%d, s[%d:%d], s55 offen lds" % (vD, rWA, rWA + 3), ("w", L, kk)),
               VM(a, "buffer_load_dwordx4 v%d, s[%d:%d], s55 offen offset:1024 lds" % (vD + 1, rWA, rWA + 3), ("w", L, kk))]
        if kk & 1 and L == 0 and kk < 17:
            o, n_ = WT[kk >> 1], WT[(kk >> 1) + 1]
            fns.append(I(a, "s_add_u32 s%d, s%d, %d\ns_cmp_ge_u32 s%d, %d\ns_cmov_b32 s%d, 0" % (n_, o, 64 * 9216, n_, WLIM, n_), 3))
        issued_at[(L, kk)] = now[0]
        return fns
    def c_issue(L, k):
        key = (10 + L, k)
        sl = free.pop(0); loc[key] = sl
        issued_at[key] = now[0]
        ld = lambda v, o: VM(a, "buffer_load_dwordx4 v%d, s[%d:%d], s55 offen%s lds" % (v, rWA, rWA + 3, o), ("w",) + key)
        if k < 2:
            return [I(a, "s_add_u32 m0, s53, %d" % (sl * 8192)), I(a, "s_add_u32 s55, s%d, %d" % (sWo, k * 32 * 9216 + L * 128)), ld(vD, ""), ld(vD + 1, " offset:1024")]
        return [I(a, "s_add_u32 m0, s53, %d" % (sl * 8192)), I(a, "s_lshr_b32 s55, s%d, 2" % sWo), I(a, "s_add_u32 s55, s55, %d" % (512 * 9216 + 128)), ld(vD, ""),
                I(a, "s_sub_u32 s55, s55, %d" % (16 * 9216 - 128)), ld(vD + 1, " offset:1024")]
    assert CFG.rotc == 0
    XS.setup_dma(t0, t1)
    run(XS.dma(0))
    a("s_cmp_ge_u32 s%d, 2" % sWAVE)
    a("s_cselect_b32 s%d, s%d, s%d" % (rWA, sW3, sW1))
    a("s_cselect_b32 s%d, s%d, s%d" % (rWA + 1, sW3 + 1, sW1 + 1))
    a("s_and_b32 s%d, s%d, 0xffff" % (rWA + 1, rWA + 1))
    a("s_mov_b32 s%d, %d" % (rWA + 2, WLIM))
    a("s_mov_b32 s%d, 0x20000" % (rWA + 3))
    a("s_mul_i32 s70, s%d, 3" % sXG)
    a("s_add_u32 s70, s70, s%d" % sC)
    run(dma_lane_off(a, vD, t0, t1, 9216, True))
    a("s_mul_i32 s52, s70, 384")
    a("s_and_b32 s49, s%d, 1" % sWAVE)
    a("s_mul_i32 s49, s49, %d" % (4 * 9216))
    a("s_add_u32 s52, s52, s49")
    a("v_add_u32 v%d, s52, v%d" % (vD, vD))
    a("v_add_u32 v%d, %d, v%d" % (vD + 1, 16 * 9216 - 1024, vD))
    a("s_lshl_b32 s53, s%d, 11" % sWAVE)
    a("s_mul_i32 s%d, s%d, %d" % (sWo, sROT, 64 * 9216))
    for kk in range(4): run(dma_issue(0, kk))
    code_prefetch(a)
    run(XS.dma(1))
    if CFG.init >= 1: run(c_issue(1, 0) + c_issue(1, 1) + c_issue(0, 2))
    if CFG.init >= 2: run(XS.dma(2))
    stamp(a, 4, 1)
    st_ = [(r, 32 * r, k) for r in range(1, 6) for k in range(3)]; so_ = [(0, 0, "wo"), (1, 36, "wo")]
    p2 = P2(a, st_[:12] + so_ + st_[12:] if CFG.ofirst else st_ + so_, vD, None, vCSR)
    XS.setup_read(t0, t1, t2)
    tr_addrs(a, t0, t1, t2)
    a("v_xor_b32 v%d, s%d, v%d" % (t2, sWAVE, t1))
    a("v_lshl_add_u32 v%d, v%d, 5, v%d" % (vCSR, t2, t0))
    a("s_mov_b32 s68, s%d" % sC)
    p2.setup_s()
    a("s_lshr_b32 s60, s%d, 1" % sWAVE)
    a("s_mul_i32 s%d, s60, 4160" % sPX)
    a("s_and_b32 s49, s%d, 6" % sXG)
    a("s_add_u32 s49, s49, s60")
    a("s_mul_i32 s62, s49, %d" % (18 * KSTRIDE))
    a("s_add_u32 s62, s62, %d" % H_OFF)
    a("s_mul_i32 s63, s49, %d" % (576 * 1152))
    a("s_mul_i32 s64, s49, %d" % (2 * KSTRIDE))
    a("s_add_u32 s64, s64, %d" % (H_OFF + 144 * KSTRIDE))
    a("s_mul_i32 s65, s49, %d" % (72 * 1152))
    a("s_mul_i32 s57, s70, %d" % (6 * KSTRIDE))
    a("s_add_u32 s57, s57, %d" % H_OFF)
    a("s_lshr_b32 s52, s%d, 1" % sXG)
    a("s_mul_i32 s52, s52, 3")
    a("s_add_u32 s52, s52, s%d" % sC)
    a("s_mul_i32 s52, s52, 6")
    a("s_add_u32 s52, s52, s60")
    a("s_lshl_b32 s67, s52, 17")
    a("s_add_u32 s67, s67, %d" % PART_OFF)
    a("s_lshl2_add_u32 s69, s70, s%d" % sFI)
    a("s_mul_i32 s52, s49, 3")
    a("s_lshl_b32 s71, 7, s52")
    a("s_lshl_b32 s72, 1, s49")
    a("s_mul_i32 s%d, s70, 12288" % sCSB)
    a("s_add_u32 s%d, s%d, %d" % (sCSB, sCSB, CS_OFF))
    a("s_lshl_b32 s%d, s70, 7" % sFC)
    a("s_add_u32 s%d, s%d, 0x%x" % (sFC, sFC, FL(FC)))
    b_ = Asm(); rot_bases(b_, sI)
    late2 = Q(a, "\n".join(b_.lines))
    late = []
    L_ = lambda s, c=1: late.append(I(a, s, c))
    u0, u1 = CSA, CSA + 1
    L_("v_and_b32 v%d, 15, v%d" % (u0, vL))
    L_("v_lshlrev_b32 v%d, 5, v%d" % (u0, u0))
    L_("v_lshrrev_b32 v%d, 4, v%d" % (u1, vL))
    L_("v_lshl_add_u32 v%d, v%d, 9, v%d" % (vCSL, u1, u0))
    L_("v_lshl_add_u32 v%d, v%d, 4, v%d" % (vCSW, u1, u0))
    L_("s_lshr_b32 s52, s%d, 1\ns_lshl_b32 s52, s52, 11\ns_and_b32 s60, s%d, 1\ns_lshl_b32 s60, s60, 3\ns_add_u32 s52, s52, s60\n"
       "s_lshr_b32 s60, s%d, 1\ns_lshl_b32 s60, s60, 9\ns_add_u32 s52, s52, s60\ns_and_b32 s60, s%d, 1\ns_lshl2_add_u32 s52, s60, s52\n"
       "v_add_u32 v%d, s52, v%d" % (sWAVE, sWAVE, sI, sI, vCSW, vCSW), 11)
    L_("v_cmp_gt_u32 vcc, 32, v%d\nv_mov_b32 v%d, 0x%x\ns_nop 0\nv_cndmask_b32 v%d, v%d, v%d, vcc" % (vL, u0, OOB, vCSW, u0, vCSW), 4)
    L_("s_cmp_eq_u32 s%d, 7\ns_cselect_b32 s%d, 0x%x, 0" % (sI, sOne2, ONE2), 2)
    CSL, ONL, ONH, ON7 = [224, 240, 248], HS, 232, 236
    for i in range(4):
        late.insert(0, I(a, "v_mov_b32 v%d, 0x%x" % (ONES + i, ONE2)))
        L_("v_mov_b32 v%d, s%d" % (ON7 + i, sOne2))
    for i in range(4):
        L_("v_cndmask_b32 v%d, 0, v%d, vcc" % (ONL + i, ONES))
        L_("v_xor_b32 v%d, v%d, v%d" % (ONH + i, ONL + i, ONES))
    run(late); run(late2)
    stats_compute(a)
    stamp(a, 5, 1)
    run(XS.reads(0))
    a.wait_vm(lambda t: t == ("w", 0, 1))
    a("s_barrier")
    SPLIT = CFG.split
    seq = []
    for kk in range(SPLIT): seq += [("mm", 0, 0, kk), ("mm", 0, 1, kk)]
    seq += [("mm", 0, 0, kk) for kk in range(SPLIT, 18)] + [("mm", 0, 1, kk) for kk in range(SPLIT, 18)]
    for L in (1, 2):
        for P in (0, 1): seq += [("mm", L, P, kk) for kk in range(18)]
    def after(key, new): seq.insert(seq.index(key) + 1, new)
    after(("mm", 0, 0, 13), ("corr", 0, 0))
    for L in range(3): after(("mm", L, 1, 17), ("corr", L, 1))
    if CFG.cmode == 1 and CFG.cdel >= 0: after(("mm", 1, 1, CFG.cdel), ("corr", 1, 0))
    else: after(("mm", 1, 0, 17), ("corr", 1, 0))
    after(("mm", 2, 0, 17), ("corr", 2, 0))
    cs_steps = {0: [((0, 0), ONES), ((0, 1), ONES), ((0, 2), ON7), ((0, 3), ON7)],
                1: [((11, 0), ONES), ((11, 1), ONES), ((10, 2), ONL)], 2: [((12, 0), ONES), ((12, 1), ONES), ((10, 2), ONH)]}
    cs_at = {0: CFG.cs0, 1: CFG.cs1, 2: CFG.cs2}
    attach = {}
    if CFG.cmode == 1:
        CSL[1], CSL[2] = TMP, CSA
        n1 = seq.index(("corr", 0, 1)) + 1
        cs_at[1] = cs_at[2] = n1 + 1
        attach[seq[n1]] = [(1, k, (1, k), ONES, mat) for k in range(2) for mat in range(2)]
        attach[seq[n1 + 1]] = [(2, k, (2, k), ONES, mat) for k in range(2) for mat in range(2)]
        attach[seq[n1 + 2]] = [(1, 2, (10, 2), ONL, 0), (1, 2, (10, 2), ONL, 1), (2, 2, (10, 2), -ONES, 0), (2, 2, (10, 2), ONES, 1)]
    for L in range(3 if CFG.cmode == 0 else 1):
        its = [(L, k, sl, on, mat) for k, (sl, on) in enumerate(cs_steps[L]) for mat in range(2)]
        attach[seq[cs_at[L]]] = its[:4]; attach[seq[cs_at[L] + 1]] = its[4:]
    NH = len(seq)
    idx = {k: n for n, k in enumerate(seq)}
    visible = set([(0, 0), (0, 1)])
    S_ = Stream(a, "v", WF)
    first_slot = []
    csr = [0]
    def slabs_of(e):
        if e[0] == "mm": return [(e[1], e[3])] + [x[2] for x in attach.get(e, [])]
        return []
    for e in seq:
        first_slot.append(len(S_.slots))
        if e[0] == "mm":
            _, L, P, kk = e
            att = list(attach.get(e, []))
            for ti in (0, 2, 1, 3):
                def off(L=L, kk=kk, ti=ti):
                    assert (L, kk) in visible, (L, kk)
                    return loc[(L, kk)] * 8192 + (ti >> 1) * 4096
                def mf(w, P=P, ti=ti, kk=kk):
                    return ["%s %s, %s, %s, %s" % (MF, V(acc(P, ti, tt), 4), w, xr(kk, tt), "0" if kk == 0 else V(acc(P, ti, tt), 4)) for tt in range(4)]
                S_.add(tr_read(a, off, 2 * P + (ti & 1)), mf)
                if att:
                    cl, k, sl, on, mat = att.pop(0); CS = CSL[cl]
                    def rd(kind, reg, tag, sl=sl, mat=mat):
                        assert sl in visible
                        out = []
                        d = loc[sl] * 8192 - csr[0]; csr[0] += d
                        if d: out.append(I(a, "v_add_u32 v%d, 0x%x, v%d" % (vCSR, d & 0xffffffff, vCSR)))
                        return out + [("D", lambda h=h: a.lds("ds_read_b64_tr_b16 %s, v%d offset:%d" % (V(reg + 2 * h, 2), vCSR, mat * 4096 + h * 2048), tag)) for h in range(2)]
                    S_.add(rd, lambda w, k=k, on=on, mat=mat, CS=CS: [("".join("v_xor_b32 v%d, v%d, v%d\n" % (ONES + i, ONES + i, ONL) for i in range(4)) + "s_nop 1\n" if on < 0 else "") + "%s %s, %s, %s, %s" % (MF, V(CS + 4 * mat, 4), V(abs(on), 4), w, "0" if k == 0 else V(CS + 4 * mat, 4))])
        elif e[0] == "corr":
            _, L, P = e
            for ti in range(4):
                S_.add(None, lambda w, P=P, ti=ti: ["%s %s, %s, %s, %s" % (MF16, V(acc(P, ti, tt), 4), V(CSA + 2 * ti, 2), V(ST + 4 * tt, 2), V(acc(P, ti, tt), 4)) for tt in range(4)])
    first_slot.append(len(S_.slots))
    p2.add_slots(S_)
    def epilogue(L, P):
        q = [I(a, "s_add_u32 s58, s57, %d" % ((2 * L + P) * KSTRIDE)) + ([], ["s58"])]
        for tt in range(4):
            rs, cc = ST + 4 * tt + 2, ST + 4 * tt + 3
            o = acc(P, 2, tt)
            gu = [(acc(P, half, tt) + i, acc(P, 2 + half, tt) + i) for half in range(2) for i in range(4)]
            for g, u in gu:
                q.append(I(a, "v_mul_f32 v%d, v%d, v%d" % (u, g, u)) + ([g, u], [u]))
                q.append(I(a, "v_mul_f32 v%d, v%d, v%d" % (g, g, rs)) + ([g], [g]))
            for g, u in gu: q.append(I(a, "v_exp_f32 v%d, v%d" % (g, g)) + ([g], [g]))
            for g, u in gu: q.append(I(a, "v_fma_f32 v%d, v%d, v%d, v%d" % (g, g, cc, cc)) + ([g], [g]))
            for g, u in gu: q.append(I(a, "v_rcp_f32 v%d, v%d" % (g, g)) + ([g], [g]))
            for g, u in gu: q.append(I(a, "v_mul_f32 v%d, v%d, v%d" % (g, g, u)) + ([g, u], [g]))
            for k in range(4):
                g = gu[2 * k][0]
                q.append(I(a, "v_cvt_pk_bf16_f32 v%d, v%d, v%d" % (o + k, g, g + 1)) + ([g, g + 1], [o + k]))
            q.append(VM(a, "buffer_store_dwordx4 %s, v%d, %s, s58 offen offset:%d %s" % (V(o, 4), vX, WSR, tt * 1024, SC), ("h", L, P)) + ([o, o + 1, o + 2, o + 3, "s58"], []))
        return q
    last_use = {}
    for n, e in enumerate(seq):
        for sl in slabs_of(e): last_use[sl] = n
    lastP = {}
    for n, e in enumerate(seq):
        if e[0] != "cs": lastP[e[1:3]] = n
    marks = set()
    def mark(m): return ("", lambda: marks.add(m))
    released = set()
    def hsig(stage): return signal(a, "s_add_u32 s49, s69, %d" % (128 * (FH + 8 * stage)))
    def hoff(stage): return "s_add_u32 s49, s%d, %d" % (sFI, 128 * (FH + 8 * stage))
    coff = "s_mov_b32 s49, s%d" % sFC
    def csa_load(L, P):
        return [I(a, "s_add_u32 s49, s%d, %d" % (sCSB, L * 4096 + P * 2048))] + \
               [("M", lambda k=k: a.vmem("buffer_load_dwordx4 %s, v%d, %s, s49 offen offset:%d %s" % (V(CSA + 4 * k, 4), vCSL, WSR, 16 * k, SC), ("csa", L, P))) for k in range(2)]
    def cs_publish(L):
        CS = CSL[L]
        return [I(a, "s_mov_b32 vcc_lo, 0xffff0000\ns_mov_b32 vcc_hi, 0\nv_cndmask_b32 v%d, v%d, v%d, vcc" % (CS, CS, CS + 4), 3)] + hilo(a, CS, CS + 1, CS + 2) + \
               [I(a, "s_add_u32 s49, s%d, %d" % (sCSB, L * 4096)),
                ("M", lambda: a.vmem("buffer_store_dword v%d, v%d, %s, s49 offen %s" % (CS, vCSW, WSR, SC), ("cs", L))), mark(("pub", L))]
    ev = {}
    bar_tags = {}
    def at(n, fns): ev.setdefault(n, []).extend(fns)
    def sig_after(n, tag, fns):
        n |= 1
        bar_tags.setdefault(n, ([], []))
        bar_tags[n][0].append(tag); bar_tags[n][1].extend(fns)
    marks.add("late")
    csig = lambda L: signal(a, "s_lshl2_add_u32 s49, s%d, s%d\ns_add_u32 s49, s49, %d" % (sI, sFC, 32 * L))
    for L in range(3):
        at(cs_at[L] + 3, cs_publish(L))
        at(idx[("corr", L, 0)] + 1, csa_load(L, 1))
        if L > CFG.cmode: at(idx[("corr", L - 1, 1)] + 1, csa_load(L, 0))
    sig_after(cs_at[0] + 5, ("cs", 0), csig(0))
    sig_after(cs_at[2] + (8 if CFG.cmode == 0 else CFG.sigd), ("cs", 2), csig(1))
    c0 = idx[("corr", 0, 0)]
    at(c0 - 11, poll_issue(a, coff, ("plc", 0)))
    at(c0 - 7, poll_check(a, coff, ("plc", 0), "0xff") + csa_load(0, 0))
    if CFG.cmode == 0:
        at(idx[("corr", 0, 1)] - 5, poll_issue(a, coff, ("plc", 1)))
        at(idx[("corr", 0, 1)], poll_check(a, coff, ("plc", 1), "0xff00"))
    else:
        at(idx[("corr", 1, 0)] - 9, poll_issue(a, coff, ("plc", 1)))
        at(idx[("corr", 1, 0)] - 5, poll_check(a, coff, ("plc", 1), "0xff00") + csa_load(1, 0))
    c0 = idx[("corr", 0, 0)]
    at(c0 - 12, stats_addr(a, vP2) + stats_fetch(a, "v", ST, vP2))
    fx = stats_check(a, "v", ST, vP2, None)
    for tt in range(4):
        b = ST + 4 * tt
        fx += [I(a, "v_mov_b32 v%d, v%d" % (b + 1, b)), I(a, "v_mul_f32 v%d, v%d, v%d" % (b + 3, b + 2, b + 2)), I(a, "v_rcp_f32 v%d, v%d" % (b + 2, b + 2), 2)]
    for tt in range(4): fx.append(I(a, "v_mul_f32 v%d, %s, v%d" % (ST + 4 * tt + 2, f32(-LOG2E), ST + 4 * tt + 2)))
    at(c0 - 5, fx + [mark("stats")])
    xread_at = {}
    for p in range(8, 0, -1): xread_at[p] = max(min(idx[("mm", 0, 0, 2 * p)] - CFG.xlead, xread_at.get(p + 1, 99) - 3), 0)
    for p, n in xread_at.items():
        at(n, XS.reads(p))
    mm = lambda L, P, kk: idx[("mm", L, P, kk)]
    sig_after(mm(1, 1, 2), ("h", 0, 1), hsig(0))
    sig_after(mm(2, 0, 3), ("h", 1, 0), hsig(1))
    sig_after(mm(2, 1, 2), ("h", 1, 1), hsig(2))
    at(mm(2, 0, 13), poll_issue(a, hoff(1), "pl1", vP2))
    at(mm(2, 0, 17), poll_check(a, hoff(1), "pl1", "s71", vP2) + [mark("h1")])
    at(NH - 3, poll_issue(a, hoff(2), "pl2"))
    at(mm(2, 0, 6), p2.setup_vo(vCSR, vCSW, "s_and_b32 s52, s%d, 1" % sXG) + [mark("vo")])
    if CFG.pf == 1:
        pf = Q(a, """s_and_b32 s52, s{W}, 1
            s_mul_i32 s52, s52, 36
            s_mul_i32 s60, s{I}, 72
            s_add_u32 s52, s52, s60
            v_mul_u32_u24 v{P}, 43, v{L}
            v_lshrrev_b32 v{P}, 7, v{P}
            v_mul_u32_u24 v{T}, 3, v{P}
            v_sub_u32 v{T}, v{L}, v{T}
            v_add_u32 v{P}, s52, v{P}
            v_mul_u32_u24 v{P}, 1152, v{P}
            v_lshl_add_u32 v{P}, v{T}, 7, v{P}
            s_mul_i32 s52, s68, 384
            s_add_u32 s52, s52, s63""".format(W=sWAVE, I=sI, P=vP2, L=vL, T=vPL))
        pf += [VM(a, "buffer_load_dword v%d, v%d, s[%d:%d], s52 offen" % (vPL, vP2, rW2, rW2 + 3)),
               I(a, "s_add_u32 s52, s52, %d" % (18 * 1152)),
               VM(a, "buffer_load_dword v%d, v%d, s[%d:%d], s52 offen" % (vPL, vP2, rW2, rW2 + 3))]
        at(idx[("corr", 1, 0)] + 1 + CFG.pfw, pf)
    if CFG.pf == 4:
        pf = Q(a, """s_lshl2_add_u32 s52, s2, s{W}
            s_lshl_b32 s52, s52, 13
            v_lshlrev_b32 v{P}, 7, v{L}""".format(W=sWAVE, P=vP2, L=vL))
        pf += [VM(a, "buffer_load_dword v%d, v%d, s[%d:%d], s52 offen" % (vPL, vP2, rW2, rW2 + 3))]
        pf += Q(a, """s_cmp_lt_u32 s52, {N}
            s_cmov_b32 s52, 0x{O:x}
            s_sub_u32 s52, s52, {N}""".format(N=4608 * 1152, O=OOB))
        pf += [VM(a, "buffer_load_dword v%d, v%d, s[%d:%d], s52 offen" % (vPL, vP2, rWO, rWO + 3))]
        at((mm(1, 0, 2) if CFG.cmode == 0 else idx[("corr", 1, 0)] - 4) + CFG.pfw, pf)
    def wjob(L, kk):
        def make():
            if VERB: print("hs", now[0], seq[now[0]], "issue W", (L, kk), file=sys.stderr)
            return dma_issue(L, kk)
        gate = 0
        if CFG.cmode == 1 and kk >= 2: gate = (0, CFG.gate1, CFG.gate2)[L]
        return ("w", lambda: len(free) > 0 and now[0] >= gate, make)
    def cjob(L, k):
        def make():
            if VERB: print("hs", now[0], seq[now[0]], "issue C", (L, k), file=sys.stderr)
            return c_issue(L, k)
        return ("w", lambda: len(free) > 0, make)
    cj = {CFG.cj1: [cjob(1, 0), cjob(1, 1), cjob(0, 2)], CFG.cj2: [cjob(2, 0), cjob(2, 1)]}
    if CFG.init >= 1: del cj[CFG.cj1]
    if CFG.cmode == 1: cj = {CFG.cj1: [wjob(1, 0), wjob(1, 1)], 9: [cjob(0, 2), wjob(2, 0), wjob(2, 1)]}
    for p in range(2, 9): S_.jobs += ([XS.job(p)] if p > 2 or CFG.init < 2 else []) + [wjob(0, 2 * p), wjob(0, 2 * p + 1)] + cj.get(p, [])
    S_.jobs += cj.get(9, [])
    S_.jobs += [wjob(L, kk) for L in (1, 2) for kk in range(2 * CFG.cmode, 18)]
    hmark = lambda st: "h1" if st < 6 else ("h2" if st < 9 else ("h3" if st < 12 else ("o" if p2.steps[st][2] == "wo" else "h4")))
    S_.jobs += p2.jobs(0, lambda st: "vo" in marks,
                       lambda st: hmark(st) in marks and now[0] > mm(2, 1, min(st, 9)))
    xdead = {}
    S_.prime()
    for n, e in enumerate(seq):
        pre = []
        now[0] = n
        if VERB: a.cm("HS %d %s" % (n, e))
        if n >= CFG.sbase and (n - CFG.sbase) % CFG.sstep == 0 and (n - CFG.sbase) // CFG.sstep < 11: stamp(a, 4 + (n - CFG.sbase) // CFG.sstep, 2)
        if e[0] == "mm" and e[1] == 0 and e[2] == 0 and e[3] % 2 == 0:
            wlg(a, [("xr", e[3] // 2)])
        if n == xread_at[8]: assert ("pub", 2 if CFG.cmode == 0 else 0) in marks
        if e[0] == "corr": assert "stats" in marks
        if n == mm(2, 0, 5): assert a.cnt.get(("w", 2, 17)) == 2
        if e[0] == "corr": wvm(a, [("csa", e[1], e[2])])
        if e[0] == "mm" and e[3] == 0 and (e[1] > 0 or e[2] == 0): stamp(a, 3 if e[1] == 0 else 3 + 2 * e[1] + e[2])
        if e == ("mm", 0, 0, 9): stamp(a, 4)
        if n % 2 == 1:
            rmax = S_.read_limit(first_slot[min(n + 2, NH)] - 1)
            need = []
            for m in range(n, NH):
                if S_.cur_ring(first_slot[m]) <= rmax:
                    need += [x for x in slabs_of(seq[m]) if x not in visible and x not in need]
            rel_ = [x for x, lu in last_use.items() if lu < n and x not in released]
            tags, aft = bar_tags.pop(n, ([], []))
            tags = list(tags)
            if S_.cur_ring(first_slot[NH]) <= rmax and not p2.visible:
                tags += [("w2", 0, k_) for k_ in range(3)]; p2.visible.update((0, k_) for k_ in range(3))
            xrel = [p for p, m in xread_at.items() if p >= 6 and m + 3 <= n and p not in xdead]
            want_space = S_.jobs and S_.jobs[0][0] in ("w", "w2", "x") or any(j[0] in ("w", "w2") for j in S_.jobs[:3])
            if rel_ and not (need or tags or xrel) and (not want_space or (n > 40 and len(rel_) < CFG.relper)): rel_ = []
            if need or rel_ or tags or xrel:
                need += [x for x, t_ in issued_at.items() if x not in visible and x not in need and
                         (t_ + CFG.age <= n or (a.cnt.get(("w",) + x, 0) == 2 and ("w",) + x not in a.vm))]
                for x in need: assert x in loc, ("slab not issued", n, x)
                def bar(need=need, tags=tags, xrel=xrel):
                    wlg(a, [("xr", p) for p in xrel])
                    wvm(a, [("w",) + x for x in need] + tags)
                    a("s_barrier")
                pre.append(("B", bar))
                visible.update(need); released.update(rel_)
                for x in rel_: free.append(loc[x])
                for p in xrel:
                    xdead[p] = 1
                    free.extend(8 + 3 * w + p % 3 for w in range(4))
            S_.extra += aft
        S_.extra += ev.pop(n, [])
        if (2, 17) in loc:
            while free:
                p2.free.append(free.pop(0))
        ns = first_slot[n + 1] - first_slot[n]
        for k in range(ns):
            if e[0] == "mm" and e[3] == 0 and k == 0:
                assert not (S_.epi and S_.epiP == e[2]), "epilogue not finished"
            S_.emit(pre if k == 0 else (), 1 if len(S_.extra) > 20 else 0)
            if k == 1 and n > 0:
                pe = seq[n - 1]
                if pe[0] != "cs" and lastP[pe[1:3]] == n - 1:
                    assert not S_.epi
                    S_.set_epi(epilogue(pe[1], pe[2]), first_slot[mm(pe[1] + 1, pe[2], 0)] - 1 if pe[1] < 2 else first_slot[NH] - 1, 0, False)
                    S_.epiP = pe[2]
    assert not S_.epi and not ev and not bar_tags, (ev.keys(), bar_tags.keys())
    now[0] = NH
    if VERB: print("; left for phase 2:", [j[0] for j in S_.jobs], "extra", len(S_.extra), file=sys.stderr)
    stamp(a, 9)
    S_.set_epi(epilogue(2, 1), S_.pos + CFG.edl, 2, False)
    ooff = "s_add_u32 s49, s%d, %d" % (sFI, 128 * FO)
    hooks = {}
    def add(st, key, v): hooks.setdefault(st, {}).setdefault(key, []).extend(v)
    add(0, "bar", [("h", 2, 0)]); add(0, "after", hsig(3))
    add(0, "after", poll_check(a, hoff(2), "pl2", "s71") + [mark("h2")])
    add(2, "after", poll_issue(a, hoff(3), "pl3"))
    add(CFG.s4, "bar", [("h", 2, 1)]); add(CFG.s4, "after", hsig(4))
    add(4, "after", poll_check(a, hoff(3), "pl3", "s71") + [mark("h3")])
    add(5, "after", poll_issue(a, ooff, "plo", vP2))
    add(7, "after", poll_check(a, ooff, "plo", "s72", vP2) + [mark("o")])
    add(CFG.p4, "after", poll_issue(a, hoff(4), "pl4"))
    add(CFG.c4, "after", poll_check(a, hoff(4), "pl4", "s71") + [mark("h4")])
    dead0 = [loc[x] for x in last_use if x not in released]
    p2.main(S_, hooks, dead0)

C0 = [0, 4, 9, 13]
def path_attn(a):
    global vL, vX, vFS, vFP, vTK, vPL
    keep = (vL, vX, vFS, vFP, vTK, vPL)
    a.cnt = {}
    RB, VO, XO, XA = 224, 230, 236, 240
    vCS0, vCS1, vCSW, vP2, u0, u1 = 250, 251, 252, 253, 254, 255
    aONE, aCS, aST, aCSA, aX = 32, 36, 52, 68, 96
    t0, t1, t2, t3, t4 = 64, 65, 66, 67, 68
    new = (244, 245, 246, 247, 248, 249)
    for o_, n_ in zip(keep[:4], new[:4]): a("v_mov_b32 v%d, v%d" % (n_, o_))
    vL, vX, vFS, vFP, vTK, vPL = new
    def xreg(kk, tt): return ("a", aX + 16 * (kk % 10) + 4 * tt)
    def xr(kk, tt): return R(*xreg(kk, tt), 4)
    def acc(T, tt): return 16 * T + 4 * tt
    XS = XStage(a, XO, XA, 98304, 2, xreg)
    WLIM = 576 * 3456
    def dma_issue(kk):
        fns = [I(a, "s_add_u32 s55, s%d, %d" % (sWo, (kk & 1) * 32 * 3456))]
        for idx in range(6):
            if idx % 3 == 0:
                fns.append(I(a, "s_add_u32 m0, s53, %d" % ((kk % 4) * 24576 + (idx // 3) * 3072)))
            fns.append(VM(a, "buffer_load_dwordx4 v%d, s[%d:%d], s55 offen offset:%d lds" % (VO + idx, rWA, rWA + 3, (idx % 3) * 1024), ("w", kk)))
        if kk & 1: fns.append(I(a, "s_add_u32 s%d, s%d, %d\ns_cmp_ge_u32 s%d, %d\ns_cmov_b32 s%d, 0" % (sWo, sWo, 64 * 3456, sWo, WLIM, sWo), 3))
        return fns
    XS.setup_dma(t0, t1)
    run(XS.dma(0))
    srd(a, rWA, sWQKV, WLIM, bias=2048)
    run(dma_lane_off(a, t2, t0, t1, 3456, True))
    for idx in range(6):
        a("s_mul_i32 s52, s%d, 6" % sWAVE)
        a("s_add_u32 s52, s52, %d" % idx)
        a("s_and_b32 s49, s52, 1")
        a("s_bfe_u32 s60, s52, 0x10001")
        a("s_lshl2_add_u32 s49, s49, s60")
        a("s_mul_i32 s49, s49, %d" % (4 * 3456))
        a("s_bfe_u32 s60, s52, 0x10002")
        a("s_add_u32 s60, s60, s%d" % sXG)
        a("s_lshl_b32 s60, s60, 7")
        a("s_add_u32 s49, s49, s60")
        a("s_lshr_b32 s60, s52, 3")
        a("s_mul_i32 s60, s60, 1152")
        a("s_add_u32 s49, s49, s60")
        a("s_add_u32 s49, s49, %d" % (2048 - (idx % 3) * 1024))
        a("v_add_u32 v%d, s49, v%d" % (VO + idx, t2))
    a("s_mul_i32 s53, s%d, 6144" % sWAVE)
    a("s_mul_i32 s%d, s%d, %d" % (sWo, sROT, 64 * 3456))
    run(dma_issue(0)); run(dma_issue(1))
    code_prefetch(a)
    run(XS.dma(1))
    stamp(a, 4, 1)
    XS.setup_read(t0, t1, t2)
    lane_fields(a, t0, t1, t2)
    a("v_lshrrev_b32 v%d, 1, v%d" % (t0, t0))
    a("v_lshlrev_b32 v%d, 10, v%d" % (t0, t0))
    a("v_lshl_add_u32 v%d, v%d, 7, v%d" % (t0, t1, t0))
    a("v_lshrrev_b32 v%d, 1, v%d" % (t1, t1))
    a("s_lshl_b32 s52, s%d, 1" % sXG)
    for p in range(6):
        r = RB + p
        if p < 4:
            a("v_add_u32 v%d, %d, v%d" % (t3, C0[p], t2))
        elif p == 4:
            a("v_lshrrev_b32 v%d, 1, v%d" % (t3, t2))
            a("v_lshl_add_u32 v%d, v%d, 2, v%d" % (t3, t2, t3))
            a("v_add_u32 v%d, 4, v%d" % (t3, t3))
        else:
            a("v_and_b32 v%d, 1, v%d" % (t3, t2))
            a("v_mul_u32_u24 v%d, 9, v%d" % (t3, t3))
            a("v_add_u32 v%d, 8, v%d" % (t3, t3))
        a("v_add_u32 v%d, s52, v%d" % (t3, t3))
        a("v_lshrrev_b32 v%d, 4, v%d" % (t4, t3))
        a("v_lshl_add_u32 v%d, v%d, 12, v%d" % (r, t4, t0))
        a("v_bfe_u32 v%d, v%d, 2, 2" % (t4, t3))
        a("v_xor_b32 v%d, v%d, v%d" % (t4, t4, t1))
        a("v_lshl_add_u32 v%d, v%d, 5, v%d" % (r, t4, r))
        a("v_and_b32 v%d, 3, v%d" % (t4, t3))
        a("v_lshl_add_u32 v%d, v%d, 3, v%d" % (r, t4, r))
        if p == 5:
            a("v_lshrrev_b32 v%d, 1, v%d" % (t4, t2))
            a("v_add_u32 v%d, 1, v%d" % (t4, t4))
            a("v_lshl_add_u32 v%d, v%d, 13, v%d" % (r, t4, r))
    a("s_bitcmp1_b32 s%d, 0" % sWAVE)
    a("s_cselect_b64 vcc, -1, 0")
    a("v_cndmask_b32 v%d, v%d, v%d, vcc" % (t3, RB, RB + 1))
    a("v_cndmask_b32 v%d, v%d, v%d, vcc" % (t4, RB + 2, RB + 3))
    a("v_cndmask_b32 v%d, v%d, v%d, vcc" % (vCS1, RB + 4, RB + 5))
    a("s_bitcmp1_b32 s%d, 1" % sWAVE)
    a("s_cselect_b64 vcc, -1, 0")
    a("v_cndmask_b32 v%d, v%d, v%d, vcc" % (vCS0, t3, t4))
    a("v_mov_b32 v%d, 0x%x" % (t3, ONE2))
    for i in range(4): a("v_accvgpr_write_b32 a%d, v%d" % (aONE + i, t3))
    stats_compute(a)
    stamp(a, 5, 1)
    run(XS.reads(0))
    steps = [(18 * x_, 576 * x_, k) for x_ in range(4) for k in range(3)] + [(0, 0, "wos"), (1, 144, "wos")]
    p2 = P2(a, steps, 220, 197, 222)
    a("s_cmp_ge_u32 s%d, 3" % sI)
    a("s_cselect_b32 s4, 1, 0")
    a("s_mul_i32 s52, s4, 3")
    a("s_sub_u32 s68, s%d, s52" % sI)
    a("s_lshr_b32 s70, s%d, 1" % sWAVE)
    a("s_lshl_b32 s5, s%d, 7" % sXG)
    a("s_add_u32 s5, s5, 0x%x" % FLG_OFF)
    p2.setup_s()
    a("s_mul_i32 s62, s70, %d" % (72 * KSTRIDE))
    a("s_add_u32 s62, s62, %d" % H_OFF)
    a("s_mul_i32 s63, s70, %d" % (2304 * 1152))
    a("s_mul_i32 s64, s70, %d" % (2 * KSTRIDE))
    a("s_add_u32 s64, s64, %d" % (H_OFF + 160 * KSTRIDE))
    a("s_mul_i32 s65, s70, %d" % (288 * 1152))
    a("s_add_u32 s52, s68, 12")
    a("s_mul_i32 s52, s52, 6")
    a("s_add_u32 s52, s52, s70")
    a("s_lshl_b32 s67, s52, 17")
    a("s_add_u32 s67, s67, %d" % PART_OFF)
    a("s_add_u32 s52, s%d, 24" % sI)
    a("s_lshl2_add_u32 s69, s52, s5")
    a("s_add_u32 s52, s%d, 24" % sXG)
    a("s_lshl_b32 s%d, s52, 7" % sFC)
    a("s_add_u32 s%d, s%d, 0x%x" % (sFC, sFC, FL(FC)))
    a("s_mul_i32 s52, s70, 12")
    a("s_lshl_b32 s71, 0xfff, s52")
    a("s_lshl_b32 s52, s70, 2")
    a("s_lshl_b32 s72, 15, s52")
    a("s_cmp_ge_u32 s%d, 6" % sI)
    a("s_cmov_b32 s62, 0x%x" % OOB)
    a("s_cmov_b32 s63, 0x%x" % OOB)
    a("s_cmov_b32 s71, 0")
    a("s_lshl_b32 s%d, s%d, 13" % (sCSB, sXG))
    a("s_add_u32 s%d, s%d, %d" % (sCSB, sCSB, CS_OFF + 24 * 12288))
    a("s_cmp_eq_u32 s%d, 7" % sI)
    a("s_cselect_b32 s%d, 0x%x, 0" % (sOne2, ONE2))
    wvm(a, [("w", 0)], w=6)
    a("s_barrier")
    TL = [(0, 0), (1, 0), (2, 0), (3, 0), (4, 0)] + [(p, 1) for p in range(4)] + [(p, 2) for p in range(4)] + [(5, 0)]
    S_ = Stream(a, "a", 0)
    visible = set([0])
    cur = [0] * 6
    csr = [0]
    info = []
    for kk in range(18):
        for T in range(14):
            def rd(kind, reg, tag, kk=kk, T=T):
                assert kk in visible
                p, win = TL[T]
                want = ((kk % 4) // 2) * 49152
                out = []
                if cur[p] != want:
                    out.append(I(a, "v_add_u32 v%d, 0x%x, v%d" % (RB + p, (want - cur[p]) & 0xffffffff, RB + p))); cur[p] = want
                return out + [("D", lambda h=h: a.lds("ds_read_b64_tr_b16 %s, v%d offset:%d" % (A(reg + 2 * h, 2), RB + p, (kk % 2) * 24576 + win * 8192 + h * 2048), tag)) for h in range(2)]
            def mf(w, kk=kk, T=T):
                return ["%s %s, %s, %s, %s" % (MF, V(acc(T, tt), 4), w, xr(kk, tt), "0" if kk == 0 else V(acc(T, tt), 4)) for tt in range(4)]
            S_.add(rd, mf); info.append((kk, T))
            if kk < 4 and T in (1, 3, 5, 7):
                k = T // 2
                def rd(kind, reg, tag, kk=kk, k=k):
                    out = []
                    if k == 0 and kk > 0:
                        out += [I(a, "v_add_u32 v%d, 24576, v%d" % (vCS0, vCS0)), I(a, "v_add_u32 v%d, 24576, v%d" % (vCS1, vCS1))]
                    return out + [("D", lambda h=h: a.lds("ds_read_b64_tr_b16 %s, v%d offset:%d" % (A(reg + 2 * h, 2), vCS0 if k < 3 else vCS1, (k * 8192 if k < 3 else 0) + h * 2048), tag)) for h in range(2)]
                def mf(w, kk=kk, k=k):
                    pre = ""
                    if kk == 2 and k == 0:
                        pre = "v_mov_b32 v%d, s%d\n" % (u0, sOne2) + "".join("v_accvgpr_write_b32 a%d, v%d\n" % (aONE + i, u0) for i in range(4)) + "s_nop 1\n"
                    return [pre + "%s %s, %s, %s, %s" % (MF, A(aCS + 4 * k, 4), A(aONE, 4), w, "0" if kk == 0 else A(aCS + 4 * k, 4))]
                S_.add(rd, mf); info.append((kk, -1))
    for T in list(range(9, 13)) + list(range(5, 9)) + [13] + list(range(5)):
        S_.add(None, lambda w, T=T: ["%s %s, %s, %s, %s" % (MF16, V(acc(T, tt), 4), A(aCSA + 2 * T, 2), A(aST + 4 * tt, 2), V(acc(T, tt), 4)) for tt in range(4)])
        info.append((18, T))
    ev = {}; bt = {}
    def at(kk, fns): ev.setdefault(kk, []).extend(fns)
    w_ = [I(a, "v_lshrrev_b32 v%d, 4, v%d" % (u0, vL)),
          I(a, "v_mul_u32_u24 v%d, 9, v%d\nv_add_u32 v%d, 1, v%d\nv_lshrrev_b32 v%d, 1, v%d\nv_add_u32 v%d, s%d, v%d" % (vCSW, u0, vCSW, vCSW, vCSW, vCSW, vCSW, sWAVE, vCSW), 4),
          I(a, "s_mul_i32 s52, s%d, 9\ns_add_u32 s52, s52, 4\ns_cmp_ge_u32 s%d, 2\ns_cmov_b32 s52, 0x%x\nv_mov_b32 v%d, s52\nv_cmp_eq_u32 vcc, 3, v%d\ns_nop 1\nv_cndmask_b32 v%d, v%d, v%d, vcc"
            % (sWAVE, sWAVE, OOB >> 3, u1, u0, vCSW, vCSW, u1), 8),
          I(a, "v_and_b32 v%d, 15, v%d\nv_lshlrev_b32 v%d, 7, v%d\nv_lshl_add_u32 v%d, v%d, 3, v%d" % (u0, vL, u0, u0, vCSW, vCSW, u0), 3),
          I(a, "s_lshr_b32 s52, s%d, 1\ns_lshl_b32 s52, s52, 11\ns_and_b32 s60, s%d, 1\ns_lshl2_add_u32 s52, s60, s52\nv_add_u32 v%d, s52, v%d" % (sI, sI, vCSW, vCSW), 5)]
    marks = set()
    at(0, w_ + [("", lambda: marks.add(1))])
    pub = [I(a, "v_accvgpr_read_b32 v%d, a%d" % (u0, aCS))]
    for k, (lo, hi) in enumerate([("0xffff0000", "0"), ("0", "0xffff"), ("0", "0xffff0000")]):
        pub.append(I(a, "v_accvgpr_read_b32 v%d, a%d\ns_mov_b32 vcc_lo, %s\ns_mov_b32 vcc_hi, %s\nv_cndmask_b32 v%d, v%d, v%d, vcc" % (u1, aCS + 4 * (k + 1), lo, hi, u0, u0, u1), 4))
    pub += hilo(a, u0, u1, vCS0)
    pub.append(("M", lambda: a.vmem("buffer_store_dword v%d, v%d, %s, s%d offen %s" % (u0, vCSW, WSR, sCSB, SC), ("cs", 0))))
    at(3, pub)
    b_ = Asm(); rot_bases(b_, 4)
    at(7, Q(a, "\n".join(b_.lines)))
    bt[5] = ([("cs", 0)], signal(a, "s_lshl2_add_u32 s49, s%d, s%d" % (sI, sFC)))
    coff = "s_mov_b32 s49, s%d" % sFC
    at(10, poll_issue(a, coff, "plc") + stats_addr(a, vCS0) + stats_fetch(a, "a", aST, vCS0))
    ld = poll_check(a, coff, "plc", "0xff") + [I(a, "v_lshlrev_b32 v%d, 7, v%d" % (u0, vL))]
    for k in range(7):
        ld.append(("M", lambda k=k: a.vmem("buffer_load_dwordx4 %s, v%d, %s, s%d offen offset:%d %s" % (A(aCSA + 4 * k, 4), u0, WSR, sCSB, 16 * k, SC), ("csa", 0))))
    ld += stats_check(a, "a", aST, vCS0, u1)
    for tt in range(4): ld.append(I(a, "v_accvgpr_mov_b32 a%d, a%d" % (aST + 4 * tt + 1, aST + 4 * tt)))
    at(13, ld)
    if CFG.pf in (1, 2, 3):
        pf = Q(a, """s_mul_i32 s52, s{I}, 3
            s_add_u32 s52, s52, s{W}
            s_mul_i32 s52, s52, {B}
            s_cmp_eq_u32 s{W}, 3
            s_cmov_b32 s52, 0x{O:x}
            v_lshlrev_b32 v{P}, 7, v{L}""".format(I=sI, P=vP2, L=vL, B=192 * 1152, W=sWAVE, O=OOB))
        pf = [(c, f) for c, f in Q(a, "\n".join(f.code for c, f in pf).replace("s52", "s7"))]
        at(CFG.pfa, pf)
        for k in range(5):
            at(min(CFG.pfa + (k + 1) // 2, 16), [VM(a, "buffer_load_dword a%d, v%d, s[%d:%d], s7 offen" % (aONE, vP2, rW2, rW2 + 3)), I(a, "s_add_u32 s7, s7, %d" % (8192 if k < 3 else 4096))])
    S_.prime()
    wjob = lambda kk: ("w", lambda: kk - 2 in visible, lambda: dma_issue(kk))
    S_.jobs += [wjob(2), wjob(3)]
    for p in range(2, 9): S_.jobs += [XS.job(p), wjob(2 * p), wjob(2 * p + 1)]
    for s, (kk, T) in enumerate(info):
        pre = []
        if T == 0 and kk < 18 and kk % 2 == 0: wlg(a, [("xr", kk // 2)])
        if s == 0: stamp(a, 3)
        if kk == 2: assert marks
        if kk == 18 and T == 9:
            assert not S_.extra
            wvm(a, [("csa", 0)], csa=7)
        if T == 9 and kk < 17:
            tags, aft = bt.pop(kk, ([], []))
            def bar(kk=kk, tags=tags):
                wvm(a, [("w", kk + 1)] + tags, w=6)
                a("s_barrier")
            pre.append(("B", bar))
            visible.add(kk + 1)
            S_.extra += aft
            if kk % 2 == 0 and kk // 2 + 1 < 9:
                p = kk // 2 + 1
                S_.extra += XS.reads(p)
            S_.extra += ev.pop(kk, [])
        S_.emit(pre)
    assert not S_.extra and not ev and not S_.jobs and not S_.mem
    RS = 296
    vq, vn, vI0, vI1 = 224, 225, 226, 227
    T8 = 232
    t0, t1, t2, t3 = 242, 243, 254, 255
    SCL = 250
    a("s_barrier")
    stamp(a, 2)
    for tt in range(4): a("v_accvgpr_read_b32 v%d, a%d" % (SCL + tt, aST + 4 * tt + 2))
    a("v_lshrrev_b32 v%d, 4, v%d" % (vq, vL))
    a("v_and_b32 v%d, 15, v%d" % (vn, vL))
    for tt in range(4): a("v_rcp_f32 v%d, v%d" % (SCL + tt, SCL + tt))
    a("s_lshl_b32 s52, s%d, 6" % sWAVE)
    a("v_add_u32 v%d, s52, v%d" % (t0, vn))
    a("v_mul_u32_u24 v%d, %d, v%d" % (t0, RS, t0))
    a("v_lshl_add_u32 v%d, v%d, 3, v%d" % (vI0, vq, t0))
    a("v_mul_u32_u24 v%d, 72, v%d" % (t1, vq))
    a("v_add3_u32 v%d, v%d, v%d, 64" % (vI1, t0, t1))
    for tt in range(4): a("v_mul_f32 v%d, %s, v%d" % (SCL + tt, f32(LOG2E), SCL + tt))
    a("s_mov_b32 s56, %s" % f32(1.0 / LOG2E))
    a("s_mov_b32 s57, s56")
    a("v_mov_b32 v228, %s" % f32(1e-6 * LOG2E))
    a("v_cmp_gt_u32 s[32:33], 2, v%d" % vq)
    def scale4(r, tt):
        b, o = SCL + (tt & 2), tt & 1
        for i in (0, 2): a("v_pk_mul_f32 v[%d:%d], v[%d:%d], v[%d:%d] op_sel:[0,%d] op_sel_hi:[1,%d]" % (r + i, r + i + 1, r + i, r + i + 1, b, b + 1, o, o))
    def phi4(r, t, keepm=None):
        for i in range(4): a("v_exp_f32_e64 v%d, v%d clamp" % (t + i, r + i))
        for i in range(4): a("v_max_f32 v%d, v%d, v228" % (t + 4 + i, r + i))
        d = r if keepm is None else t
        for i in range(0, 4, 2): a("v_pk_fma_f32 v[%d:%d], v[%d:%d], s[56:57], v[%d:%d]" % (d + i, d + i + 1, t + 4 + i, t + 5 + i, t + i, t + i + 1))
        if keepm is not None:
            for i in range(4): a("v_cndmask_b32 v%d, v%d, v%d, %s" % (r + i, r + i, t + i, keepm))
    def pack2(dst, r):
        a("v_cvt_pk_bf16_f32 v%d, v%d, v%d" % (dst, r, r + 1))
        a("v_cvt_pk_bf16_f32 v%d, v%d, v%d" % (dst + 1, r + 2, r + 3))
    pfm = []
    if CFG.pf == 3:
        a("s_and_b32 s52, s%d, 6" % sXG)
        a("s_lshl_b32 s52, s52, 4")
        a("s_lshl2_add_u32 s52, s%d, s52" % sI)
        a("s_add_u32 s52, s52, s%d" % sWAVE)
        a("s_mul_i32 s7, s52, %d" % (36 * 1152))
        a("s_mul_i32 s60, s52, %d" % (36 * 144))
        a("v_lshlrev_b32 v231, 7, v%d" % vL)
        pfm = ["buffer_load_dword a%d, v231, s[%d:%d], s60 offen" % (aONE, rWO, rWO + 3)]
        for k in range(5): pfm.append("buffer_load_dword a%d, v231, s[%d:%d], s7 offen\ns_add_u32 s7, s7, %d" % (aONE, rW2, rW2 + 3, 8320))
    nq = 0
    for T in list(range(9, 13)) + list(range(5, 9)) + [13]:
        for tt in range(4):
            r = acc(T, tt)
            if pfm and (nq in (0, 8) or (nq >= 16 and nq % CFG.pfs == 0)): a.vmem(pfm.pop(0))
            nq += 1
            scale4(r, tt)
            if 5 <= T < 9: phi4(r, T8)
            elif T == 13: phi4(r, T8, keepm="s[32:33]")
            pack2(r, r)
            if T == 13: a("ds_write_b64 v%d, v[%d:%d] offset:%d" % (vI1, r, r + 1, tt * 16 * RS))
            else:
                off = C0[(T - 5) % 4] * 8 + (144 if T >= 9 else 0)
                a("ds_write_b64 v%d, v[%d:%d] offset:%d" % (vI0, r, r + 1, tt * 16 * RS + off))
    assert not pfm
    vM, vLf = 229, 230
    a("v_bfe_u32 v%d, v%d, 2, 4" % (t0, vL))
    a("v_mul_u32_u24 v%d, %d, v%d" % (t0, RS, t0))
    a("v_and_b32 v%d, 3, v%d" % (t2, vL))
    a("s_lshl_b32 s52, s%d, 2" % sWAVE)
    a("s_lshr_b32 s49, s%d, 1" % sWAVE)
    a("s_add_u32 s52, s52, s49")
    a("v_add_u32 v%d, s52, v%d" % (t3, t2))
    a("v_lshl_add_u32 v%d, v%d, 3, v%d" % (vM, t3, t0))
    a("v_lshrrev_b32 v%d, 1, v%d" % (t3, t2))
    a("v_lshl_add_u32 v%d, v%d, 2, v%d" % (t3, t2, t3))
    a("v_add_u32 v%d, 4, v%d" % (t3, t3))
    a("v_lshl_add_u32 v%d, v%d, 3, v%d" % (vLf, t3, t0))
    ONES = 232
    for i in range(4): a("v_mov_b32 v%d, 0x%x" % (ONES + i, ONE2))
    a.lg0()
    a("s_barrier")
    KC = 80
    FR = 104
    for half in range(2):
        for k4 in range(4):
            for f, (base, off) in enumerate([(vM, 0), (vLf, 0), (vM, 144), (vLf, 144)]):
                for rd in range(2):
                    r = FR + 16 * k4 + 4 * f + 2 * rd
                    a.lds("ds_read_b64_tr_b16 v[%d:%d], v%d offset:%d" % (r, r + 1, base, (32 * k4 + 16 * rd) * RS + off), k4)
        if half == 0:
            a("v_add_u32 v%d, %d, v%d" % (vM, 128 * RS, vM))
            a("v_add_u32 v%d, %d, v%d" % (vLf, 128 * RS, vLf))
        for k4 in range(4):
            a.wait_lg(lambda t: t == k4)
            b = FR + 16 * k4
            for ci, (fa, fb) in enumerate([(b, b + 8), (b + 4, b + 8), (b, b + 12), (b + 4, b + 12), (b, ONES), (b + 4, ONES)]):
                d = KC + 4 * ci
                c = "0" if (half == 0 and k4 == 0) else V(d, 4)
                a("%s %s, %s, %s, %s" % (MF, V(d, 4), V(fa, 4), V(fb, 4), c))
    a("s_lshl_b32 s52, s%d, 5" % sXG)
    a("s_add_u32 s52, s52, s%d" % sWAVE)
    a("s_mul_i32 s6, s52, 6144")
    a("s_add_u32 s6, s6, %d" % KVP_OFF)
    a("s_mul_i32 s52, s%d, 24576" % sI)
    a("s_add_u32 s58, s6, s52")
    a("s_add_u32 s59, s58, 3072")
    a("v_lshlrev_b32 v%d, 4, v%d" % (t0, vL))
    a("s_lshl_b32 s81, s%d, 7" % sXG)
    a("s_add_u32 s81, s81, %d" % FL(FKV))
    a("s_nop 2")
    for ci in range(6):
        a.vmem("buffer_store_dwordx4 %s, v%d, %s, s%d offen offset:%d %s" % (V(KC + 4 * ci, 4), t0, WSR, 58 + ci // 3, (ci % 3) * 1024, SC), "kvp")
    QF = 104
    def qphi(tt):
        for T in range(5):
            scale4(acc(T, tt), tt)
            phi4(acc(T, tt), T8)
        for h in range(4):
            pack2(QF + 16 * tt + 4 * h, acc(h, tt))
            pack2(QF + 16 * tt + 4 * h + 2, acc(4, tt))
    qphi(0); qphi(1)
    a.vm0()
    a("s_barrier")
    run(signal(a, "s_lshl2_add_u32 s49, s%d, s81" % sI))
    qphi(2); qphi(3)
    MO = 232
    a("s_and_b32 s52, s%d, 1" % sWAVE)
    a("s_lshl_b32 s49, s52, 1")
    a("v_mov_b32 v%d, 0x%x" % (t1, OOB))
    a("v_cmp_le_u32 s[32:33], s49, v%d" % vn)
    a("v_cmp_eq_u32 s[34:35], s%d, v%d" % (sWAVE, vq))
    a("v_lshrrev_b32 v%d, 2, v%d" % (t2, vn))
    a("v_cmp_eq_u32 s[10:11], s%d, v%d" % (sWAVE, t2))
    a("v_and_b32 v%d, 3, v%d" % (t2, vn))
    a("s_add_u32 s49, s49, 2")
    a("v_cmp_gt_u32 vcc, s49, v%d" % t2)
    a("v_cmp_eq_u32 s[20:21], s%d, v%d" % (sWAVE, t2))
    a("s_and_b64 s[10:11], s[10:11], vcc")
    a("s_nop 1")
    for ci, m in enumerate([32, 10, 20]):
        a("v_cndmask_b32 v%d, v%d, v%d, s[%d:%d]" % (MO + 2 * ci, t1, t0, m, m + 1))
        a("v_cndmask_b32 v%d, v%d, v%d, s[34:35]" % (MO + 2 * ci + 1, t1, MO + 2 * ci))
    vm0, vm3 = 238, 239
    a("v_cmp_le_u32 s[32:33], s52, v%d" % vq)
    a("s_sub_u32 s49, 0, s52")
    a("v_mov_b32 v%d, s49" % vm3)
    a("v_cndmask_b32 v%d, 0, -1, s[32:33]" % vm0)
    run(p2.setup_vo(240, 241, "s_mov_b32 s52, s4", sXG))
    h0off = "s_add_u32 s49, s5, %d" % (128 * FH)
    run(poll_issue(a, h0off, "pl0", 255))
    poll_now(a, "s_mov_b32 s49, s81", "0xff")
    stamp(a, 5)
    p2.free = list(range(18))
    bufs = [0, 24, 48, 72, 168, 192]
    def ldp(i, base):
        a("s_add_u32 s58, s6, %d" % (i * 24576))
        a("s_add_u32 s59, s58, 3072")
        for ci in range(6):
            a.vmem("buffer_load_dwordx4 %s, v%d, %s, s%d offen offset:%d %s" % (V(base + 4 * ci, 4), MO + ci, WSR, 58 + ci // 3, (ci % 3) * 1024, SC), ("kv", i))
    for i in range(6): ldp(i, bufs[i])
    for i in range(1, 8):
        a.wait_vm(lambda t: t == ("kv", i))
        b = bufs[i] if i < 6 else bufs[i - 5]
        for r in range(0, 24, 2): a("v_pk_add_f32 v[%d:%d], v[%d:%d], v[%d:%d]" % (r, r + 1, r, r + 1, b + r, b + r + 1))
        if i + 5 < 8: ldp(i + 5, bufs[i])
        if i == 2: run(poll_check(a, h0off, "pl0", "s71", 255))
        if 2 <= i < 6: run(p2.dma_issue(i - 2, 0) + p2.dma_issue(i - 2, 1) + p2.dma_issue(i - 2, 2) + p2.h_issue(i - 2))
    for f in range(3):
        pack2(24 + 4 * f, 8 * f)
        pack2(24 + 4 * f + 2, 8 * f + 4)
        a("v_and_b32 v%d, v%d, v%d" % (24 + 4 * f, 24 + 4 * f, vm0))
        a("v_and_b32 v%d, v%d, v%d" % (24 + 4 * f + 3, 24 + 4 * f + 3, vm3))
    a("s_mul_i32 s52, s%d, 3072" % sWAVE)
    a("v_add_u32 v%d, 0x25000, v%d" % (t0, t0))
    a("v_add_u32 v%d, s52, v%d" % (t1, t0))
    for f in range(3):
        a("ds_write_b128 v%d, %s offset:%d" % (t1, V(24 + 4 * f, 4), f * 1024))
    a("s_waitcnt lgkmcnt(0)")
    a("s_barrier")
    AF = 168
    for i in range(12):
        a("ds_read_b128 %s, v%d offset:%d" % (V(AF + 4 * i, 4), t0, i * 1024))
    a("s_lshl_b32 s52, s%d, 1" % sXG)
    a("s_add_u32 s52, s52, 144")
    a("s_mul_i32 s58, s52, %d" % KSTRIDE)
    a("s_add_u32 s58, s58, %d" % H_OFF)
    a("s_add_u32 s59, s58, %d" % KSTRIDE)
    a("s_lshr_b32 s52, s%d, 1" % sXG)
    a("s_add_u32 s52, s52, 160")
    a("s_mul_i32 s57, s52, %d" % KSTRIDE)
    a("s_and_b32 s52, s%d, 1" % sXG)
    a("s_lshl_b32 s52, s52, 3")
    a("s_add_u32 s57, s57, s52")
    a("s_add_u32 s57, s57, %d" % H_OFF)
    a("s_mov_b32 s56, %s" % f32(LOG2E))
    a("v_cmp_eq_u32 s[32:33], 1, v%d" % vq)
    a("v_cmp_eq_u32 s[34:35], 2, v%d" % vq)
    a("v_cmp_eq_u32 s[10:11], 3, v%d" % vq)
    a("s_waitcnt lgkmcnt(0)")
    for tt in range(4):
        o = 24 * tt
        for h in range(4):
            qf = V(QF + 16 * tt + 4 * h, 4)
            a("%s %s, %s, %s, 0" % (MF, V(o + 4 * h, 4), V(AF + 12 * h, 4), qf))
            a("%s %s, %s, %s, %s" % (MF, V(o + 16, 4), V(AF + 12 * h + 4, 4), qf, "0" if h == 0 else V(o + 16, 4)))
            a("%s %s, %s, %s, %s" % (MF, V(o + 20, 4), V(AF + 12 * h + 8, 4), qf, "0" if h == 0 else V(o + 20, 4)))
    a("s_nop 7")
    for tt in range(4):
        o = 24 * tt
        for h in range(4): a("v_fma_f32 v%d, v%d, s56, v228" % (o + 20 + h, o + 20 + h))
        for h in range(4): a("v_rcp_f32 v%d, v%d" % (o + 20 + h, o + 20 + h))
        a("s_nop 0")
        a("v_cndmask_b32 v%d, v%d, v%d, s[32:33]" % (T8 + 8, o + 20, o + 21))
        a("v_cndmask_b32 v%d, v%d, v%d, s[34:35]" % (T8 + 8, T8 + 8, o + 22))
        a("v_cndmask_b32 v%d, v%d, v%d, s[10:11]" % (T8 + 8, T8 + 8, o + 23))
        for h in range(4):
            b, sel = o + 20 + (h & 2), h & 1
            for i in (0, 2): a("v_pk_mul_f32 v[%d:%d], v[%d:%d], v[%d:%d] op_sel:[0,%d] op_sel_hi:[1,%d]" % (o + 4 * h + i, o + 4 * h + i + 1, o + 4 * h + i, o + 4 * h + i + 1, b, b + 1, sel, sel))
        for i in (0, 2): a("v_pk_mul_f32 v[%d:%d], v[%d:%d], v[%d:%d] op_sel_hi:[1,0]" % (o + 16 + i, o + 17 + i, o + 16 + i, o + 17 + i, T8 + 8, T8 + 9))
        pack2(o, o); pack2(o + 2, o + 4)
        pack2(o + 4, o + 8); pack2(o + 6, o + 12)
        pack2(o + 8, o + 16)
        a.vmem("buffer_store_dwordx4 %s, v%d, %s, s58 offen offset:%d %s" % (V(o, 4), vX, WSR, tt * 1024, SC), "o")
        a.vmem("buffer_store_dwordx4 %s, v%d, %s, s59 offen offset:%d %s" % (V(o + 4, 4), vX, WSR, tt * 1024, SC), "o")
        a.vmem("buffer_store_dwordx2 %s, v%d, %s, s57 offen offset:%d %s" % (V(o + 8, 2), vX, WSR, tt * 1024, SC), "o")
    for o_, n_ in zip(keep[:5], new[:5]): a("v_mov_b32 v%d, v%d" % (o_, n_))
    vL, vX, vFS, vFP, vTK, vPL = keep
    p2.setup_special(176, 177, 178)
    tr_addrs(a, 176, 177, 178)
    a("s_mul_i32 s%d, s70, 4160" % sPX)
    a("s_lshl2_add_u32 s81, s%d, s%d" % (sXG, sFI))
    a("s_mov_b32 s%d, s5" % sFI)
    a("s_mov_b32 s52, s%d" % sI)
    a("s_mov_b32 s%d, s%d" % (sI, sXG))
    a("s_mov_b32 s%d, s52" % sXG)
    osig = lambda: signal(a, "s_add_u32 s49, s81, %d" % (128 * FO))
    stamp(a, 6)
    lgo = a.newlabel("Lp2a")
    a("s_cmp_lt_u32 s%d, 6" % sXG)
    a("s_cbranch_scc1 %s" % lgo)
    a("s_waitcnt vmcnt(0)")
    a("s_barrier")
    keepvm = list(a.vm)
    run(osig())
    a.vm = keepvm
    a("s_branch L_fin_idle")
    a.label(lgo)
    hooks = {}
    def add(st, key, v): hooks.setdefault(st, {}).setdefault(key, []).extend(v)
    add(1, "bar", ["o"]); add(1, "after", osig())
    ooff = "s_add_u32 s49, s%d, %d" % (sFI, 128 * FO)
    NSA = len(steps)
    add(3, "after", poll_issue(a, ooff, "plo"))
    add(5, "after", poll_check(a, ooff, "plo", "s72") + [("", lambda: marks.add("o"))])
    wvm(a, [("w2", 0, k_) for k_ in range(3)])
    a("s_barrier")
    p2.visible.update((0, k_) for k_ in range(3))
    for k_ in [k_ for k_ in a.cnt if isinstance(k_, tuple) and k_[0] == "f"]: del a.cnt[k_]
    S_ = Stream(a, "v", WF)
    p2.add_slots(S_)
    S_.prime()
    S_.jobs += p2.jobs(4, lambda st: True, lambda st: st < NSA - 2 or "o" in marks)
    p2.main(S_, hooks, [18, 19])

def spin(a, soff_code, mask, sleep):
    lp, ld = a.newlabel("Lw"), a.newlabel("Lw")
    a(soff_code)
    a("s_mov_b32 s59, 40000")
    a.label(lp)
    a("buffer_load_dword v%d, v%d, %s, s49 offen %s" % (vPL, vFP, WSR, SC))
    a("s_waitcnt vmcnt(0)")
    a("v_cmp_eq_u32 vcc, s%d, v%d" % (sTOK, vPL))
    a("s_andn2_b32 s61, %s, vcc_lo" % mask)
    a("s_cbranch_scc0 %s" % ld)
    a("s_sleep %d" % sleep)
    a("s_sub_u32 s59, s59, 1")
    a("s_cmp_lg_u32 s59, 0")
    a("s_cbranch_scc1 %s" % lp)
    a.label(ld)

def phase3(a):
    a.vm = []; a.lg = []
    CUR[0] = None
    a("s_cmp_eq_u32 s%d, 3" % sWAVE)
    a("s_cbranch_scc1 L_fin_poll")
    for k in range(3): fin_x(a, k)
    a("s_barrier")
    fin_loads(a, 0)
    fin_loads(a, 1)
    if CFG.sum0: fin_sum(a, 0)
    if not CFG.one: a("s_barrier")
    stamp(a, 14)
    fin_loads(a, 2)
    if not CFG.sum0: fin_sum(a, 0)
    fin_sum(a, 1)
    fin_sum(a, 2)
    a("s_branch L_done")
    a.label("L_fin_poll")
    a.vm = []
    if not CFG.one:
        spin(a, "s_add_u32 s49, s8, %d" % (128 * FP), "s73", CFG.slp0)
        a("s_barrier")
    spin(a, "s_add_u32 s49, s8, %d" % (128 * (FP + 16)), "s73", CFG.slp1)
    a("s_barrier")
    a("s_cmp_lg_u32 s2, 0")
    a("s_cbranch_scc1 L_done")
    a("s_mov_b32 s49, 0x%x" % FL(0))
    a("buffer_store_dword v%d, v%d, %s, s49 offen" % (vTK, vFS, WSR))
    a.label("L_done")

def fin_idle(a):
    a.label("L_fin_idle")
    a.vm = []; a.lg = []
    run(fin_setup(a))
    a("s_branch L_final")

def code_prefetch(a):
    a("s_getpc_b64 s[60:61]")
    l = a.newlabel("Lpc")
    a.label(l)
    a("s_sub_u32 s%d, s60, %s-%s" % (rW2, l, NAME))
    a("s_subb_u32 s%d, s61, 0" % (rW2 + 1))
    a("s_and_b32 s%d, s%d, 0xffff" % (rW2 + 1, rW2 + 1))
    a("s_mov_b32 s%d, L_code_end-%s" % (rW2 + 2, NAME))
    a("s_mov_b32 s%d, 0x20000" % (rW2 + 3))
    a("s_lshr_b32 s52, s2, 3")
    a("s_lshl_b32 s52, s52, 12")
    a("s_lshl_b32 s49, s%d, 10" % sWAVE)
    a("s_add_u32 s52, s52, s49")
    a("v_lshlrev_b32 v63, 4, v%d" % vL)
    a.vmem("buffer_load_dword v%d, v63, s[%d:%d], s52 offen" % (vPL, rW2, rW2 + 3), "pf")

def build():
    a = Asm()
    a.raw("; @launch grid=(256,1,1) block=(256,1,1) lds=%d" % LDS_BYTES)
    a.raw('.amdgcn_target "amdgcn-amd-amdhsa--gfx950"')
    a.raw(".text")
    kernel_begin(a, NAME)
    a("s_cmp_ge_u32 s2, 256")
    a("s_cbranch_scc1 L_end")
    a("s_load_dwordx16 s[4:19], s[0:1], 0")
    a("s_load_dwordx4 s[20:23], s[0:1], 64")
    if CFG.stamp:
        for i in range(16): a("s_mov_b32 s%d, 0" % (84 + i))
        a("s_memtime s[100:101]" if CFG.clk else "s_memrealtime s[100:101]")
    a("v_and_b32 v%d, 63, v0" % vL)
    a("v_lshrrev_b32 v1, 6, v0")
    a("v_cmp_eq_u32 vcc, 0xc0, v0")
    a("v_readfirstlane_b32 s%d, v1" % sWAVE)
    a("v_mov_b32 v1, 0x%x" % OOB)
    a("s_lshr_b32 s%d, s2, 6" % sC)
    a("v_cndmask_b32 v%d, v1, v%d, vcc" % (vFS, vL))
    a("v_and_b32 v1, 31, v0")
    a("v_lshlrev_b32 v%d, 2, v1" % vFP)
    if CFG.mapping == 0:
        a("s_and_b32 s%d, s2, 7" % sXG)
        a("s_bfe_u32 s%d, s2, 0x30003" % sI)
    elif CFG.mapping == 1:
        a("s_and_b32 s%d, s2, 3" % sXG)
        a("s_bfe_u32 s52, s2, 0x10003")
        a("s_lshl1_add_u32 s%d, s%d, s52" % (sXG, sXG))
        a("s_and_b32 s%d, s2, 4" % sI)
        a("s_bfe_u32 s52, s2, 0x20004")
        a("s_add_u32 s%d, s%d, s52" % (sI, sI))
    elif CFG.mapping == 4:
        a("s_and_b32 s%d, s2, 3" % sXG)
        a("s_bfe_u32 s52, s2, 0x10003")
        a("s_lshl1_add_u32 s%d, s%d, s52" % (sXG, sXG))
        a("s_bfe_u32 s%d, s2, 0x20004" % sI)
        a("s_bfe_u32 s52, s2, 0x10002")
        a("s_lshl1_add_u32 s%d, s%d, s52" % (sI, sI))
    a("s_mul_i32 s%d, s%d, %d" % (sROT, sC, CFG.rotc))
    a("s_add_u32 s%d, s%d, s%d" % (sROT, sROT, sI))
    if CFG.mapping != 0 and CFG.rotc:
        a("s_and_b32 s52, s%d, 1" % sXG)
        a("s_add_u32 s%d, s%d, s52" % (sROT, sROT))
    a("s_cmp_ge_u32 s%d, 9" % sROT)
    a("s_cselect_b32 s52, 9, 0")
    a("s_sub_u32 s%d, s%d, s52" % (sROT, sROT))
    a("s_lshl_b32 s52, s%d, 14" % sI)
    a("s_lshl_b32 s49, s%d, 12" % sWAVE)
    a("s_add_u32 s52, s52, s49")
    a("v_lshl_add_u32 v%d, v%d, 4, s52" % (vX, vL))
    a("s_lshl_b32 s%d, s%d, 7" % (sFI, sI))
    a("s_add_u32 s%d, s%d, 0x%x" % (sFI, sFI, FLG_OFF))
    a("s_waitcnt lgkmcnt(0)")
    if CFG.stamp: a("s_mov_b32 s84, s100")
    srd(a, rX, sX, 2048 * 1152)
    a("s_add_u32 s60, s%d, 0x%x" % (sWS, FL(0)))
    a("s_addc_u32 s61, s%d, 0" % (sWS + 1))
    a("s_load_dword s%d, s[60:61], 0" % sTOK)
    stats_load(a)
    srd(a, rWS, sWS, WS_BYTES)
    vm0 = list(a.vm)
    a("s_cmp_eq_u32 s%d, 3" % sC)
    a("s_cbranch_scc1 L_attn")
    path_mlp(a)
    a.label("L_final")
    phase3(a)
    stamp_out(a)
    a.label("L_end")
    a("s_endpgm")
    a.vm = vm0; a.lg = []
    a.label("L_attn")
    path_attn(a)
    a("s_branch L_final")
    fin_idle(a)
    a.lines += LATER
    a.label("L_code_end")
    a("s_endpgm")
    a.raw('.section .rodata,"a"')
    a.raw(kernel_desc(NAME, 512, 256))
    return a.text()

if __name__ == "__main__":
    args = sys.argv[1:]
    out = "parallel_sum__linear_attn_block__glu_gated_swiglu__prompt.s"
    for x in args:
        if x == "--stamp": CFG.stamp = True
        elif x == "-v": VERB = True
        elif x == "--sc1": SC = "sc1"
        elif x == "--osc": OSC = " sc1"
        elif x == "--ont": OSC = " nt"
        elif "=" in x:
            k, v = x.split("="); assert hasattr(CFG, k), k; setattr(CFG, k, float(v) if "." in v else int(v))
        else: out = x
    open(out, "w").write(build())
    if CFG.stamp: open(out + ".slow", "w").write("\n".join(NSLOW))
```

```python
import sys, math
from lib import *

NAME = "parallel_sum__linear_attn_block__glu_gated_swiglu__prompt_kernel"
LOG2E = 1.4426950408889634
KSTRIDE = 131072
H_OFF = 18 * KSTRIDE
KVP_OFF = H_OFF + 164 * KSTRIDE
PART_OFF = KVP_OFF + 8 * 8 * 4 * 6 * 1024
PSL = 18 * KSTRIDE
FLG_OFF = 0x80000
ST_OFF = 0
CS_OFF = 0x10000
WS_BYTES = 268435456
OOB = 0x7f000000
LDS_BYTES = 163840
SC = "sc0 sc1"
OSC = ""
def FL(line): return FLG_OFF + 128 * line
FH, FKV, FO, FC, FP = 16, 56, 64, 96, 128

sX, sWQKV, sWO, sW1, sW3, sW2, sOUT, sDBG, sWS = 4, 6, 8, 12, 14, 16, 18, 20, 22
rWS, rWA, rX, rW2, rWO = 24, 28, 36, 40, 44
sWAVE, sI, sXG, sC, sTOK = 48, 50, 51, 78, 79
sFI = 80
sXo, sWo, sXL, sOne2, sCSB, sFC, sROT = 32, 33, 34, 35, 82, 83, 81
MF = "v_mfma_f32_16x16x32_bf16"
MF16 = "v_mfma_f32_16x16x16_bf16"
WSR = "s[%d:%d]" % (rWS, rWS + 3)
XR = "s[%d:%d]" % (rX, rX + 3)
ONE2 = 0x3f803f80

VERB = False
class Cfg:
    stamp = False
    clk = 0
    mapping = 0
    split = 12
    kseq = 5
    sset = 0
    swave = 0
    pf = 4
    rotc = 0
    vmrate = 85
    epirate = 4.5
    age = 16
    window = 60
    tlb = 0
    ah = 4
    osplit = 0
    po = 5
    lean = 2
    boost = 3
    one = 0
    slp0 = 8
    slp1 = 2
    sum0 = 0
    hw = 1.0
    hrot = 2
    xlead = 2
    cs0 = 4
    cs1 = 4
    cs2 = 18
    cj1 = 8
    cj2 = 3
    pfw = 0
    pfa = 14
    pfs = 3
    init = 0
    cmode = 1
    cdel = 3
    sigd = 7
    gate1 = 35
    c00 = 16
    sig0 = 9
    p0 = 11
    k0 = 6
    gate2 = 68
    dbgwg = -1
    sbase = 0
    sstep = 2
    exs = 5
    edl = 56
    s4 = 6
    p4 = 8
    c4 = 9
    ofirst = 1
    relper = 4
    pfat = -2
CFG = Cfg()

def stamp(a, i, sset=0):
    if CFG.stamp and (sset == CFG.sset or i in (3, 15)):
        a("s_memtime s[100:101]" if CFG.clk else "s_memrealtime s[100:101]")
        a.lg0()
        a("s_mov_b32 s%d, s100" % (84 + i))
def stamp_out(a):
    if not CFG.stamp: return
    a("s_waitcnt vmcnt(0)")
    stamp(a, 15)
    l = a.newlabel("Lst")
    a("s_cmp_lg_u32 s%d, %d" % (sWAVE, CFG.swave))
    a("s_cbranch_scc1 %s" % l)
    a("s_lshl_b32 s3, s2, 6")
    a("s_add_u32 s3, s3, 0xF000000")
    a("v_mov_b32 v1, s3")
    a("s_mov_b64 exec, 1")
    for i in range(8):
        a("v_mov_b32 v2, s%d" % (84 + 2 * i))
        a("v_mov_b32 v3, s%d" % (85 + 2 * i))
        a("global_store_dwordx2 v1, v[2:3], s[%d:%d] offset:%d" % (sWS, sWS + 1, i * 8))
    if CFG.dbgwg >= 0:
        a("s_cmp_lg_u32 s2, %d" % CFG.dbgwg)
        a("s_cbranch_scc1 %s" % l)
        a("s_load_dwordx2 s[20:21], s[0:1], 64")
        a("s_waitcnt lgkmcnt(0)")
        a("v_mov_b32 v1, 0")
        for i in range(16):
            a("s_sub_u32 s3, s%d, s84" % (84 + i)) if i != 1 else a("s_mov_b32 s3, s85")
            a("v_mov_b32 v2, s3")
            a("global_store_dword v1, v2, s[20:21] offset:%d" % (4 * i))
    a.label(l)

vL, vX, vFS, vFP, vTK, vPL = 174, 175, 216, 217, 218, 219

NOPS = {"w": 2, "x": 8, "xr": 8, "csa": 2, "cs": 1, "h": 4, "w2": 2, "h2": 4, "part": 4, "ex": 8, "er": 8, "o": 12, "stf": 4}
CUR = [None]
def chk(a, tag, **over):
    k = tag if isinstance(tag, str) else tag[0]
    n = over.get(k, NOPS.get(k, 1))
    S_ = CUR[0]
    if a.cnt.get(tag, 0) < n and S_ is not None:
        if VERB: print("LATE", tag, a.cnt.get(tag, 0), file=sys.stderr)
        while a.cnt.get(tag, 0) < n:
            if k in ("x", "w", "w2", "h2"):
                assert not S_.inbar or S_.mem, ("needs space behind this barrier", tag)
                S_.refill()
                q = S_.mem
            elif k in ("h", "part", "ex"):
                S_.flush_epi(); continue
            else: q = S_.extra
            assert q, ("cannot produce", tag)
            q.pop(0)[1]()
    a.expect(tag, n)
def wvm(a, tags, **over):
    for t in tags: chk(a, t, **over)
    a.wait_vm(lambda t: t in tags)
def wlg(a, tags):
    for t in tags: chk(a, t)
    a.wait_lg(lambda t: t in tags)

def ityp(code):
    out = ""
    for l in code.split("\n"):
        op = l.strip().split(" ")[0]
        if not op: continue
        if op == "s_waitcnt": continue
        if op.startswith("s_"): out += "S"
        elif op.startswith(("v_exp", "v_rcp", "v_sqrt")): out += "T"
        elif op.startswith("v_"): out += "V"
        elif op.startswith("ds_read"): out += "D"
        elif op.startswith("ds_write"): out += "X"
        elif op.startswith("buffer_store_dwordx"): out += "O"
        else: out += "M"
    return out
def I(a, s, c=1):
    def fn(): a(s)
    fn.code = s
    return (ityp(s), fn)
def Q(a, code):
    out = []; ls = [l.strip() for l in code.split("\n") if l.strip()]
    i = 0
    while i < len(ls):
        grp = [ls[i]]
        if ls[i].startswith(("s_cmp", "s_bitcmp")):
            while i + 1 < len(ls) and ls[i + 1].startswith(("s_cmov", "s_cselect")):
                i += 1; grp.append(ls[i])
        out.append(I(a, "\n".join(grp), len(grp)))
        i += 1
    return out
def VM(a, fmt, tag=None, w=1.0):
    def fn(): a.vmem(fmt() if callable(fmt) else fmt, tag)
    fn.vm = w
    return (ityp(fmt), fn)
def run(fns):
    for c, fn in fns: fn()

def signal(a, soff_code, tag=None):
    return [I(a, soff_code),
            ("M", lambda: a.vmem("buffer_store_dword v%d, v%d, %s, s49 offen %s" % (vTK, vFS, WSR, SC), tag))]

LATER = []
NSLOW = []
def slow_path(a, body, name):
    ls, lb, lp = a.newlabel("Lslow"), a.newlabel("Lback"), a.newlabel("Lspin")
    a("s_cbranch_scc1 %s" % ls)
    a.label(lb)
    b = Asm()
    b.label(ls)
    b("s_mov_b32 s59, 40000")
    if CFG.stamp:
        NSLOW.append(name)
        b("s_or_b32 s85, s85, 0x%x" % (1 << (len(NSLOW) - 1)))
    b.label(lp)
    b("s_sleep 1")
    body(b)
    b("s_cbranch_scc0 %s" % lb)
    b("s_sub_u32 s59, s59, 1")
    b("s_cmp_lg_u32 s59, 0")
    b("s_cbranch_scc1 %s" % lp)
    b("s_branch %s" % lb)
    LATER.extend(b.lines)
def poll_issue(a, soff_code, tag, dst=None):
    return [I(a, soff_code),
            ("M", lambda: a.vmem("buffer_load_dword v%d, v%d, %s, s49 offen %s" % (dst or vPL, vFP, WSR, SC), tag))]
def poll_check(a, soff_code, tag, mask, dst=None):
    def f1():
        wvm(a, [tag])
        a("v_cmp_eq_u32 vcc, s%d, v%d" % (sTOK, dst or vPL))
    def f2():
        d = dst or vPL
        a("s_andn2_b32 s61, %s, vcc_lo" % mask)
        def body(b):
            b(soff_code)
            b("buffer_load_dword v%d, v%d, %s, s49 offen %s" % (d, vFP, WSR, SC))
            b("s_waitcnt vmcnt(0)")
            b("v_cmp_eq_u32 vcc, s%d, v%d" % (sTOK, d))
            b("s_andn2_b32 s61, %s, vcc_lo" % mask)
        slow_path(a, body, str(tag))
    return [("SV", f1), ("SS", f2)]
def poll_now(a, soff_code, mask):
    tag = ("poll", a.newlabel())
    run(poll_issue(a, soff_code, tag))
    run(poll_check(a, soff_code, tag, mask))

def stats_load(a):
    a("s_lshl_b32 s52, s2, 2")
    a("s_add_u32 s52, s52, s%d" % sWAVE)
    a("v_lshrrev_b32 v40, 5, v%d" % vL)
    a("v_lshl_add_u32 v40, s52, 1, v40")
    a("v_mul_u32_u24 v41, 1152, v40")
    a("v_and_b32 v42, 31, v%d" % vL)
    a("v_lshl_add_u32 v43, v42, 4, v41")
    a("v_cmp_gt_u32 vcc, 8, v42")
    a("v_mov_b32 v45, 0x%x" % OOB)
    a("v_lshlrev_b32 v40, 4, v40")
    a("v_cndmask_b32 v44, v45, v43, vcc")
    a("v_cmp_eq_u32 vcc, 0, v42")
def stats_issue(a):
    a.vmem("buffer_load_dwordx4 v[0:3], v43, %s, 0 offen" % XR, "ln")
    a.vmem("buffer_load_dwordx4 v[4:7], v43, %s, 0 offen offset:512" % XR, "ln")
    a.vmem("buffer_load_dwordx4 v[8:11], v44, %s, 0 offen offset:1024" % XR, "ln")
    a("v_cndmask_b32 v40, v45, v40, vcc")
def stats_compute(a):
    a("s_mov_b32 s49, 0x%x" % ONE2)
    a("s_waitcnt lgkmcnt(0)")
    a("s_add_u32 s%d, s%d, 1" % (sTOK, sTOK))
    a("v_mov_b32 v%d, s%d" % (vTK, sTOK))
    a("v_mov_b32 v17, s%d" % sTOK)
    a("v_mov_b32 v19, s%d" % sTOK)
    a.wait_vm(lambda t: t == "ln")
    for r in range(12):
        a("v_dot2_f32_bf16 v12, v%d, s49, %s" % (r, "0" if r == 0 else "v12"))
        a("v_dot2_f32_bf16 v13, v%d, v%d, %s" % (r, r, "0" if r == 0 else "v13"))
    a("s_mov_b32 s49, %d" % ST_OFF)
    a("s_nop 1")
    for ror in (1, 2, 4, 8):
        a("v_add_f32_dpp v12, v12, v12 row_ror:%d row_mask:0xf bank_mask:0xf" % ror)
        a("v_add_f32_dpp v13, v13, v13 row_ror:%d row_mask:0xf bank_mask:0xf" % ror)
        a("s_nop 0")
    a("v_mov_b32 v14, v12")
    a("v_mov_b32 v15, v13")
    a("s_nop 1")
    a("v_permlane16_swap_b32 v12, v14")
    a("v_permlane16_swap_b32 v13, v15")
    a("s_nop 0")
    a("v_add_f32 v12, v12, v14")
    a("v_add_f32 v13, v13, v15")
    a("v_mul_f32 v12, %s, v12" % f32(1.0 / 576))
    a("v_mul_f32 v13, %s, v13" % f32(1.0 / 576))
    a("v_fma_f32 v13, -v12, v12, v13")
    a("v_max_f32 v13, 0, v13")
    a("v_cvt_pk_bf16_f32 v13, v13, v13")
    a("v_cvt_pk_bf16_f32 v16, -v12, -v12")
    a("v_and_b32 v13, 0xffff0000, v13")
    a("v_add_f32 v13, %s, v13" % f32(1e-5))
    a("v_cvt_pk_bf16_f32 v13, v13, v13")
    a("v_and_b32 v13, 0xffff0000, v13")
    a("v_sqrt_f32 v13, v13")
    a("s_nop 0")
    a("v_cvt_pk_bf16_f32 v13, v13, v13")
    a("v_and_b32 v18, 0xffff0000, v13")
    a.vmem("buffer_store_dwordx4 v[16:19], v40, %s, s49 offen %s" % (WSR, SC), "st")

def lane_fields(a, vq, vrow, vc):
    a("v_lshrrev_b32 v%d, 4, v%d" % (vq, vL))
    a("v_bfe_u32 v%d, v%d, 2, 3" % (vrow, vL))
    a("v_and_b32 v%d, 3, v%d" % (vc, vL))

def dma_lane_off(a, vD, t0, t1, rowbytes, perm=False):
    return [I(a, "v_lshrrev_b32 v%d, 3, v%d" % (t0, vL)),
            I(a, "v_and_b32 v%d, 6, v%d" % (t1, t0)),
            I(a, "v_xor_b32 v%d, v%d, v%d" % (t1, t1, vL)),
            I(a, "v_and_b32 v%d, 7, v%d" % (t1, t1))] + \
           ([I(a, "v_and_b32 v%d, 4, v%d" % (vD, t0)), I(a, "v_add_u32 v%d, v%d, v%d" % (t0, t0, vD))] if perm else []) + [
            I(a, "v_mul_u32_u24 v%d, %d, v%d" % (t0, rowbytes, t0)),
            I(a, "v_lshl_add_u32 v%d, v%d, 4, v%d" % (vD, t1, t0))]

RA = 160
def tr_addrs(a, t0, t1, t2):
    lane_fields(a, t0, t1, t2)
    a("v_lshrrev_b32 v%d, 1, v%d" % (t0, t0))
    a("v_lshlrev_b32 v%d, 10, v%d" % (t0, t0))
    a("v_lshl_add_u32 v%d, v%d, 7, v%d" % (t0, t1, t0))
    a("v_lshl_add_u32 v%d, v%d, 3, v%d" % (t0, t2, t0))
    a("v_lshrrev_b32 v%d, 1, v%d" % (t1, t1))
    for u in range(4):
        a("v_xor_b32 v%d, %d, v%d" % (t2, u, t1))
        a("v_lshl_add_u32 v%d, v%d, 5, v%d" % (RA + u, t2, t0))
        a("v_add_u32 v%d, 0x10000, v%d" % (RA + 4 + u, RA + u))
        a("v_add_u32 v%d, 0x20000, v%d" % (RA + 8 + u, RA + u))

class XStage:
    def __init__(self, a, XO, XA, base, R, reg):
        self.a, self.XO, self.XA, self.base, self.R, self.reg = a, XO, XA, base, R, reg
    def setup_dma(self, t0, t1):
        a = self.a
        a("v_lshrrev_b32 v%d, 3, v%d" % (t0, vL))
        a("v_lshrrev_b32 v%d, 1, v%d" % (t1, t0))
        a("v_xor_b32 v%d, v%d, v%d" % (t1, t1, vL))
        a("v_and_b32 v%d, 7, v%d" % (t1, t1))
        a("s_lshl_b32 s52, s%d, 8" % sI)
        a("s_lshl_b32 s49, s%d, 6" % sWAVE)
        a("s_add_u32 s52, s52, s49")
        a("v_add_u32 v%d, s52, v%d" % (t0, t0))
        a("v_mul_u32_u24 v%d, 1152, v%d" % (t0, t0))
        a("v_lshl_add_u32 v%d, v%d, 4, v%d" % (self.XO, t1, t0))
        a("v_xor_b32 v%d, 64, v%d" % (self.XO + 1, self.XO))
        a("v_add_u32 v%d, %d, v%d" % (self.XO + 2, 2 * (8 * 1152 - 1024), self.XO))
        a("v_add_u32 v%d, %d, v%d" % (self.XO + 3, 3 * (8 * 1152 - 1024), self.XO + 1))
        a("v_add_u32 v%d, %d, v%d" % (self.XO + 1, 8 * 1152 - 1024, self.XO + 1))
        a("s_mul_i32 s%d, s%d, %d" % (sXL, sWAVE, self.R * 8192))
        a("s_add_u32 s%d, s%d, %d" % (sXL, sXL, self.base))
        a("s_lshl_b32 s%d, s%d, 7" % (sXo, sROT))
    def setup_read(self, t0, t1, t2):
        a = self.a
        a("v_and_b32 v%d, 15, v%d" % (t0, vL))
        a("v_lshrrev_b32 v%d, 1, v%d" % (t1, t0))
        a("v_lshrrev_b32 v%d, 4, v%d" % (t2, vL))
        a("v_xor_b32 v%d, v%d, v%d" % (t1, t1, t2))
        a("v_lshlrev_b32 v%d, 7, v%d" % (t0, t0))
        a("v_lshl_add_u32 v%d, v%d, 4, v%d" % (t0, t1, t0))
        a("v_add_u32 v%d, s%d, v%d" % (self.XA, sXL, t0))
        a("v_xor_b32 v%d, 64, v%d" % (self.XA + 1, self.XA))
    def dma(self, p):
        a = self.a
        fns = []
        if p >= self.R: fns.append(("S", lambda: wlg(a, [("xr", p - self.R)])))
        for hf in range(2):
            fns.append(I(a, "s_add_u32 m0, s%d, %d" % (sXL, (p % self.R) * 8192 + hf * 4096)))
            fns.append(I(a, "s_add_u32 s54, s%d, %d" % (sXo, hf * 32 * 1152)))
            for b in range(4):
                fns.append(VM(a, "buffer_load_dwordx4 v%d, %s, s54 offen offset:%d lds" % (self.XO + b, XR, b * 1024), ("x", p)))
        fns.append(I(a, "s_add_u32 s%d, s%d, 128\ns_cmp_ge_u32 s%d, 1152\ns_cmov_b32 s%d, 0" % (sXo, sXo, sXo, sXo), 3))
        return fns
    def job(self, p):
        return ("x", lambda: p < self.R or self.a.cnt.get(("xr", p - self.R), 0) == 8, lambda: self.dma(p))
    def reads(self, p):
        a = self.a
        fns = [("S", lambda: wvm(a, [("x", p)]))]
        for e in range(2):
            for tt in range(4):
                k, b = self.reg(2 * p + e, tt)
                fns.append(("D", lambda k=k, b=b, e=e, tt=tt: a.lds("ds_read_b128 %s, v%d offset:%d" % (R(k, b, 4), self.XA + e, (p % self.R) * 8192 + tt * 2048), ("xr", p))))
        return fns

class Stream:
    def __init__(self, a, kind, base):
        self.a, self.kind, self.base = a, kind, base
        self.slots = []; self.ring = []
        self.nring = 0
        self.next_rd = 0
        self.epi = []; self.deadline = 0; self.epiP = None; self.hold = 0; self.edone = {}; self.short = False
        self.extra = []
        self.inbar = False
        CUR[0] = self
        self.vmacc = 1.0; self.vmrate = CFG.vmrate / 100.0
        self.jobs = []; self.mem = []
        self.pos = 0
    def refill(self):
        if self.mem: return
        blocked = set()
        for j, (cl, ready, make) in enumerate(self.jobs):
            if cl in blocked: continue
            if len(self.a.vm) <= 50 and ready():
                self.mem = make(); self.jobs.pop(j); return
            blocked.add(cl)
    def head(self, q):
        if q and "\n" in getattr(q[0][1], "code", "") and not getattr(q[0][1], "atom", False):
            parts = Q(self.a, q[0][1].code)
            for c, f in parts: f.atom = True
            q[0:1] = parts
        return q[0] if q else None
    def add(self, rd, mf):
        self.slots.append((rd, mf))
        self.ring.append(self.nring if rd else None)
        if rd: self.nring += 1
    def cur_ring(self, s):
        while s < len(self.slots) and self.ring[s] is None: s += 1
        return self.ring[s] if s < len(self.slots) else self.nring
    def read_limit(self, s):
        return self.cur_ring(s) + 4
    def pending_reads(self, lim):
        out = []
        while self.next_rd < len(self.slots):
            n = self.next_rd
            if self.ring[n] is None: self.next_rd += 1; continue
            if self.ring[n] > lim: break
            out += self.slots[n][0](self.kind, self.base + 4 * (self.ring[n] % 8), ("f", self.ring[n]))
            self.next_rd += 1
        return out
    def prime(self): run(self.pending_reads(self.cur_ring(self.pos) + 3))
    def set_epi(self, items, deadline, hold=0, ordered=True):
        assert not self.epi
        ops = []
        for n, it in enumerate(items):
            deps = set()
            if ordered:
                if n: deps.add(n - 1)
            else:
                rd, wr = set(it[2]), set(it[3])
                for m in range(n):
                    if (rd | wr) & set(items[m][3]) or wr & set(items[m][2]): deps.add(m)
            ops.append([it[0], it[1], deps, n])
        self.epi = ops; self.edone = {}; self.deadline = deadline; self.hold = self.pos + hold
    def epi_cost(self): return sum(2 if o[0] in "TMOX" and o[0] else len(o[0]) for o in self.epi)
    def epi_pick(self, fits, strict=True):
        if self.pos < self.hold or (strict and self.short): return None
        for o in self.epi[:CFG.window]:
            ok = True
            for d in o[2]:
                if d not in self.edone: ok = False; break
                t, at = self.edone[d]
                if (t == "T" or strict) and t in ("T", "V") and o[0] in ("T", "V") and self.a.n - at < 1: ok = False; break
            if ok and fits(o[0]): return o
        return None
    def epi_run(self, o):
        self.epi.remove(o); o[1](); self.edone[o[3]] = (o[0], self.a.n)
    def flush_epi(self):
        while self.epi:
            o = self.epi_pick(lambda t: True, False)
            if o is None: self.a("s_nop 0"); continue
            self.epi_run(o)
    def emit(self, pre=(), push=0):
        a = self.a
        s = self.pos
        rd, mf = self.slots[s]
        r = self.ring[s]
        if r is not None: a.wait_lg(lambda t: t == ("f", r))
        mfmas = mf(R(self.kind, self.base + 4 * (r % 8), 4) if r is not None else None)
        n = len(mfmas)
        must = list(pre) + (self.pending_reads(self.read_limit(s)) if n == 4 else [])
        self.short = n < 4
        force = 0
        if self.epi and s >= self.hold and (n == 4 or self.deadline - s <= 1):
            left = max(self.deadline - s, 1)
            force = self.epi_cost() - int((left - 1) * CFG.epirate)
            if left * CFG.epirate < self.epi_cost(): force = math.ceil(self.epi_cost() / left)
        if n == 4: self.vmacc = min(self.vmacc + self.vmrate, 2.0)
        cost0 = self.epi_cost()
        for g, m in enumerate(mfmas):
            a(m)
            st = {"pos": 0, "vec": False, "bar": False}
            def place(t, commit=False):
                pos, vec, bar = st["pos"], st["vec"], st["bar"]
                for c in t:
                    if c == "B": pos += 2; bar = True
                    elif c == "S": pos += 1
                    elif c == "D":
                        if vec or bar: return False
                        pos = max(pos, 1) + 1; vec = True
                    elif c == "V": pos = max(pos, 1) + 1; vec = True
                    elif c == "T":
                        pos = max(pos, 1) + 2; vec = True
                    elif c == "M":
                        if pos: return False
                        pos = 3; vec = True
                    elif c == "O":
                        if pos: return False
                        pos = 2; vec = True
                    elif c == "X":
                        if vec or pos > 1: return False
                        pos = 3; vec = True
                if pos > 3: return False
                if commit: st["pos"], st["vec"], st["bar"] = pos, vec, bar
                return True
            def take(lst):
                t, f = lst.pop(0); place(t, True); f()
                if getattr(f, "vm", False): self.vmacc -= f.vm
            free_q = n == 4 and not any(t == "B" for t, f in must)
            nd = sum(1 for t, f in must if t == "D")
            want_d = nd > 0 and (nd >= n - g or g % 2 == 0 or nd > (n - g) // 2)
            def heads():
                out = []
                if not any(t == "B" for t, f in must):
                    self.refill()
                    for lst in (self.mem, self.extra):
                        h = self.head(lst)
                        if h is None: continue
                        if lst is self.mem and getattr(h[1], "vm", False) and self.vmacc < 1: continue
                        out.append(lst)
                return out
            def drop_free():
                ch = True
                while ch:
                    ch = False
                    for lst in heads():
                        if lst[0][0] == "": take(lst); ch = True
                    o = self.epi_pick(lambda t: t == "") if free_q or not must or must[0][0] != "B" else None
                    if o: self.epi_run(o); ch = True
            while must and must[0][0] == "B":
                self.inbar = True; take(must); self.inbar = False
            st["w"] = False
            if g == n - 1 and n == 4:
                nx = self.cur_ring(s + 1)
                if ("f", nx) in a.lg and a.cnt.get(("f", nx), 0) % 2 == 0:
                    two = a.cnt.get(("f", nx + 1), 0) == 2
                    a.wait_lg(lambda t: t == ("f", nx) or (two and t == ("f", nx + 1))); st["w"] = True
            drop_free()
            done_heavy = False
            if not want_d and not (must and must[0][0] == "V"):
                for lst in heads():
                    if lst[0][0] in ("M", "O") and place(lst[0][0]): take(lst); done_heavy = True; break
                if not done_heavy:
                    o = self.epi_pick(lambda t: t in ("O", "M", "X") and place(t))
                    if o: place(o[0], True); self.epi_run(o); done_heavy = True
            if not done_heavy:
                if st["w"]: place("S", True)
                if st["pos"] == 0:
                    for lst in heads():
                        if lst[0][0] == "S" or (lst[0][0] in ("SS", "SV") and not want_d): take(lst); break
                    else:
                        o = self.epi_pick(lambda t: t == "S")
                        if o: place("S", True); self.epi_run(o)
                    drop_free()
                if must and must[0][0] == "D" and want_d and place("D"): take(must)
                elif not want_d:
                    for lst in heads():
                        if lst[0][0] == "D" and place("D"): take(lst); break
                    else:
                        o = self.epi_pick(lambda t: t == "D" and place(t))
                        if o: place("D", True); self.epi_run(o)
            while True:
                drop_free()
                if must and must[0][0] == "V" and place("V"): take(must); continue
                for lst in heads():
                    if lst[0][0] and set(lst[0][0]) <= set("SVT") and place(lst[0][0]): take(lst); break
                else:
                    o = self.epi_pick(lambda t: t == "T" and place(t)) or self.epi_pick(lambda t: t in ("V", "S") and place(t))
                    if o is None: break
                    place(o[0], True); self.epi_run(o)
            want = force * (g + 1) / n
            while self.epi and cost0 - self.epi_cost() < want:
                o = self.epi_pick(lambda t: t in ("V", "T", "S", "") or g == n - 1, False)
                if o is None: break
                self.epi_run(o)
            if g == n - 1:
                while must: must.pop(0)[1]()
                k = push
                while k > 0 and self.head(self.extra): self.extra.pop(0)[1](); k -= 1
        self.pos += 1

def tr_read(a, off_fn, u):
    def rd(kind, reg, tag):
        off = off_fn()
        return [("D", lambda h=h: a.lds("ds_read_b64_tr_b16 %s, v%d offset:%d" % (R(kind, reg + 2 * h, 2), RA + 4 * (off >> 16) + u, (off & 0xffff) + h * 2048), tag)) for h in range(2)]
    return rd

WF = 128
HRING = 10
GORDER = [2, 1, 0]
def acc2(c, tt):
    g, k = c >> 2, c & 3
    if k >= 2: return ("a", 160 + 32 * g + 16 * (k - 2) + 4 * tt)
    return ("v", (32 * g if g < 2 else 224) + 16 * k + 4 * tt)
def hr(st, tt): return A(16 * (st % HRING) + 4 * tt, 4)
sPX = 56
vEW, vER = 195, 196
HB = {0: 12, 1: 13, 2: 62}
WB = {0: 14, 1: 15, 2: 3}
def rot_bases(a, other):
    if CFG.hrot == 2:
        a("s_add_u32 s61, s68, s%d" % other)
        a("s_mul_i32 s60, s61, 43")
        a("s_lshr_b32 s60, s60, 7")
        a("s_mul_i32 s60, s60, 3")
        a("s_sub_u32 s61, s61, s60")
    else: a("s_mov_b32 s61, s68")
    for k in range(3):
        if CFG.hrot:
            a("s_add_u32 s52, s61, %d" % k)
            a("s_cmp_ge_u32 s52, 3")
            a("s_cselect_b32 s60, 3, 0")
            a("s_sub_u32 s52, s52, s60")
        else: a("s_mov_b32 s52, %d" % k)
        a("s_mul_i32 s60, s52, %d" % (192 * 1152))
        a("s_add_u32 s%d, s63, s60" % WB[k])
        a("s_mul_i32 s60, s52, %d" % (6 * KSTRIDE))
        a("s_add_u32 s%d, s62, s60" % HB[k])

class P2:
    def __init__(self, a, steps, VO, VS, VX):
        self.a = a; self.steps = steps; self.VO = VO; self.VS = VS; self.VX = VX
        self.loc = {}
        self.free = []
        self.visible = set()
        self.cur = 0
        self.swapped = False
        NS, K = len(steps), CFG.kseq
        self.order = [(st, c) for st in range(NS - K) for c in range(12)]
        self.seq0 = len(self.order)
        for g in GORDER:
            for c0 in (4 * g + 2, 4 * g):
                self.order += [(st, c) for st in range(NS - K, NS) for c in (c0, c0 + 1)]
        self.units = []
        for st, c in self.order:
            if (st, c >> 2) not in self.units: self.units.append((st, c >> 2))
    def setup_s(self):
        a = self.a
        srd(a, rW2, sW2, 4608 * 1152)
        srd(a, rWO, sWO, 576 * 1152)
        a("s_lshl_b32 s66, s%d, 11" % sWAVE)
    def setup_vo(self, t0, t1, half_code, sTile=sI):
        a = self.a
        return dma_lane_off(a, self.VO, t0, t1, 1152) + Q(a, """s_mul_i32 s52, s68, 384
            s_and_b32 s60, s{W}, 1
            s_mul_i32 s60, s60, {R16}
            s_add_u32 s52, s52, s60
            v_add_u32 v{VO}, s52, v{VO}
            v_add_u32 v{VO1}, {D}, v{VO}
            {HALF}
            s_lshl_b32 s9, s52, 10
            s_add_u32 s9, s9, s69
            s_lshl1_add_u32 s52, s{I}, s52
            s_and_b32 s60, s{W}, 1
            s_lshl1_add_u32 s52, s52, s60
            s_lshl_b32 s52, s52, 12
            v_lshl_add_u32 v{VX}, v{L}, 4, s52""".format(W=sWAVE, R16=16 * 1152, VO=self.VO, VO1=self.VO + 1, D=8 * 1152 - 1024, HALF=half_code, I=sTile, VX=self.VX, L=vL))
    def setup_special(self, t0, t1, t3):
        a = self.a
        for k in range(2):
            a("s_and_b32 s49, s%d, 1" % sWAVE)
            a("s_lshl_b32 s49, s49, 4")
            a("v_lshrrev_b32 v%d, 3, v%d" % (t0, vL))
            a("v_add3_u32 v%d, s49, v%d, %d" % (t0, t0, 8 * k))
            a("v_lshrrev_b32 v%d, 4, v%d" % (t1, t0))
            a("v_mul_u32_u24 v%d, 72, v%d" % (t1, t1))
            a("v_bfe_u32 v%d, v%d, 2, 2" % (t3, t0))
            a("v_lshl_add_u32 v%d, v%d, 4, v%d" % (t1, t3, t1))
            a("v_lshrrev_b32 v%d, 1, v%d" % (t3, t3))
            a("v_lshl_add_u32 v%d, v%d, 2, v%d" % (t1, t3, t1))
            a("v_and_b32 v%d, 3, v%d" % (t3, t0))
            a("v_add3_u32 v%d, v%d, v%d, 16" % (t1, t1, t3))
            a("v_sub_u32 v%d, v%d, v%d" % (t1, t1, t0))
            a("v_mul_u32_u24 v%d, 1152, v%d" % (t1, t1))
            a("v_add_u32 v%d, v%d, v%d" % (self.VS + k, self.VO + k, t1))
    def h_issue(self, st):
        a = self.a
        pl, row, kind = self.steps[st]
        fns = [I(a, "s_add_u32 s54, s%d, %d" % (HB[kind] if kind in HB else (7 if kind == "woa" else 64), pl * KSTRIDE))]
        for tt in range(4):
            fns.append(VM(a, "buffer_load_dwordx4 %s, v%d, %s, s54 offen offset:%d %s" % (hr(st, tt), self.VX, WSR, tt * 1024, SC), ("h2", st), CFG.hw))
        return fns
    def dma_issue(self, st, ln):
        a = self.a
        pl, row, kind = self.steps[st]
        r = rW2 if kind in HB else rWO
        vo = self.VS if kind == "wos" else self.VO
        sl = self.free.pop(0)
        self.loc[(st, ln)] = sl
        return [I(a, "s_add_u32 m0, s66, %d" % (sl * 8192)),
                I(a, "s_add_u32 s55, s%d, %d" % (WB[kind] if kind in WB else 65, row * 1152 + ln * 128)),
                VM(a, "buffer_load_dwordx4 v%d, s[%d:%d], s55 offen lds" % (vo, r, r + 3), ("w2", st, ln)),
                VM(a, "buffer_load_dwordx4 v%d, s[%d:%d], s55 offen offset:1024 lds" % (vo + 1, r, r + 3), ("w2", st, ln))]
    def jobs(self, first, w_ok, h_ok):
        out = []; hs = set(range(first))
        for st, ln in self.units:
            if st < first: continue
            if st not in hs:
                hs.add(st)
                out.append(("h2", lambda st=st: st - HRING < self.cur and h_ok(st), lambda st=st: self.h_issue(st)))
            out.append(("w2", lambda st=st: len(self.free) > self.reserve and w_ok(st), lambda st=st, ln=ln: self.dma_issue(st, ln)))
        return out
    reserve = 0
    def add_slots(self, S_):
        a = self.a
        self.s0 = len(S_.slots)
        fixed = set()
        for st, c in self.order:
            def rd(kind, reg, tag, st=st, c=c):
                assert (st, c >> 2) in self.visible, (st, c)
                off = self.loc[(st, c >> 2)] * 8192
                ra = RA + 4 * (off >> 16) + (c & 3)
                out = []
                if ra not in fixed:
                    fixed.add(ra); out.append(I(a, "v_xor_b32 v%d, s%d, v%d" % (ra, sPX, ra)))
                return out + tr_read(a, lambda: off, c & 3)(kind, reg, tag)
            def mf(w, st=st, c=c):
                return ["%s %s, %s, %s, %s" % (MF, R(*acc2(c, tt), 4), w, hr(st, tt), "0" if st == 0 else R(*acc2(c, tt), 4)) for tt in range(4)]
            S_.add(rd, mf)
    def exchange(self, g, slots, packed=False):
        a = self.a
        send = []; recv = []; fin = []
        def adj(q, reg, cur, want):
            if cur[0] != want: q.append(I(a, "v_add_u32 v%d, 0x%x, v%d" % (reg, (want - cur[0]) & 0xffffffff, reg))); cur[0] = want
        slots = sorted(slots)
        for k in range(8):
            off = slots[k >> 1] * 8192 + (k & 1) * 4096
            adj(send, vEW, self.ew, off & ~0xffff)
            send.append(("X", lambda k=k, off=off: a.lds("ds_write_b128 v%d, %s offset:%d" % (vEW, R(*acc2(4 * g + 2 + (k & 1), k >> 1), 4), off & 0xffff), ("ex", g))))
            adj(recv, vER, self.er, off & ~0xffff)
            recv.append(("D", lambda k=k, off=off: a.lds("ds_read_b128 %s, v%d offset:%d" % (V(64 + 4 * k, 4), vER, off & 0xffff), ("er", g))))
        fin.append(I(a, "s_add_u32 s58, s67, %d" % (2 * g * KSTRIDE)) + ([], ["s58"]))
        for tt in range(4):
            r0, r1 = acc2(4 * g, tt)[1], acc2(4 * g + 1, tt)[1]
            for r, t in ((r0, 64 + 8 * tt), (r1, 68 + 8 * tt)):
                if packed:
                    for i in (0, 2): fin.append(I(a, "v_pk_add_f32 %s, %s, %s" % (V(r + i, 2), V(r + i, 2), V(t + i, 2))) + ([], []))
                else:
                    for i in range(4): fin.append(I(a, "v_add_f32 v%d, v%d, v%d" % (r + i, r + i, t + i)) + ([r + i], [r + i]))
            for d, s0 in ((r0, r0), (r0 + 1, r0 + 2), (r0 + 2, r1), (r0 + 3, r1 + 2)):
                fin.append(I(a, "v_cvt_pk_bf16_f32 v%d, v%d, v%d" % (d, s0, s0 + 1)) + ([s0, s0 + 1], [d]))
            fin.append(VM(a, "buffer_store_dwordx4 %s, v%d, %s, s58 offen offset:%d %s" % (V(r0, 4), self.VX, WSR, tt * 1024, SC), ("part", g)) + ([r0, r0 + 1, r0 + 2, r0 + 3, "s58"], []))
        return send, recv, fin
    def main(self, S_, hooks, dead0):
        a = self.a
        NS, K = len(self.steps), CFG.kseq
        PL, HL = 4 * K, 2 * K
        XB_ = HL + 2 + CFG.exs
        seen = set()
        self.ew = [0]; self.er = [0]
        def psig(k): return signal(a, "s_add_u32 s49, s9, %d" % (128 * (FP + 16 * k)))
        bars = [s for s, (st, c) in enumerate(self.order) if s < self.seq0 and c == 7]
        for ps in range(3): bars += [self.seq0 + ps * PL + x for x in (2, XB_)]
        last = {}
        for s, (st, c) in enumerate(self.order): last[(st, c >> 2)] = s
        freed = set()
        ex = {}
        for s, (st, c) in enumerate(self.order):
            if st not in seen:
                seen.add(st)
                self.cur = st
                if VERB: a.cm("HS p2 step %d" % st)
                if st < 11: stamp(a, 4 + st, 3)
                wvm(a, [("h2", st)])
                if st in (0, 8): stamp(a, 10 + st // 8)
            pre = []
            r = s - self.seq0
            if VERB and r > 0 and r % HL == 0: a.cm("HS p2 half %d" % (r // HL))
            if r >= -24 and r % 12 == 0 and r < 0: stamp(a, 6 + r // 12, 4)
            if r >= 0 and r % HL == 0: stamp(a, 6 + r // HL, 4)
            if r == -36: self.reserve = 4
            k, x = (r // PL, r % PL) if r >= 0 else (-1, -1)
            if s in bars:
                nxt = min([b for b in bars if b > s] + [len(self.order)])
                lim = S_.read_limit(self.s0 + nxt - 1) - S_.ring[self.s0]
                need = []
                for st2, c2 in self.order[:lim + 1]:
                    u = (st2, c2 >> 2)
                    if u not in self.visible and u not in need: need.append(u)
                hk = hooks.get(st, {}) if r < 0 else {}
                tags = [("w2",) + u for u in need] + hk.get("bar", [])
                lg = []
                aft = list(hk.get("after", []))
                dead = [u for u in last if last[u] < s and u not in freed]
                newfree = [self.loc[u] for u in dead] + (dead0 if s == bars[0] else [])
                if x == 2 and k > 0:
                    lg.append(("er", GORDER[k - 1]))
                if x == XB_:
                    lg.append(("ex", GORDER[k])); aft += ex[k][1]
                if tags or lg or aft or (newfree and S_.jobs):
                    def bar(tags=tags, lg=lg):
                        wlg(a, lg); wvm(a, tags)
                        a("s_barrier")
                    pre.append(("B", bar))
                    self.visible.update(need); freed.update(dead); self.free += newfree
                    S_.extra += aft
            if x == 3 and k > 0: S_.set_epi(ex[k - 1][2], S_.pos + HL - 2, 0, False)
            if x == HL + 2:
                if k == 0:
                    self.scratch = self.free[:4]; self.free = self.free[4:]; self.reserve = 0
                ex[k] = self.exchange(GORDER[k], self.scratch, k == 2)
                S_.set_epi(ex[k][0], S_.pos + CFG.exs)
            if r == -20: S_.extra += fin_setup(a)
            S_.emit(pre)
        assert not S_.epi and not S_.jobs and not S_.mem
        run(S_.extra); S_.extra = []
        if VERB: a.cm("END")
        stamp(a, 12); stamp(a, 12, 4)
        wlg(a, [("er", GORDER[2])])
        a("s_nop 5")
        for it in ex[2][2]: it[1]()
        stamp(a, 13, 4)
        if not CFG.one:
            wvm(a, [("part", GORDER[1])])
            a("s_barrier")
            run(psig(0))
        stamp(a, 14, 4)
        wvm(a, [("part", GORDER[2])])
        a("s_barrier")
        run(psig(1))
        stamp(a, 13)

NSL = 5
PB = [96, 116, 32]
XB, SUM = 144, 224
vFA, vFB = 192, 193
def fin_setup(a):
    code = """s_lshl_b32 s52, s{XG}, 2
    s_add_u32 s52, s52, s{C}
    s_lshr_b32 s73, s52, 1
    s_lshl_b32 s74, s{I}, 4
    s_add_u32 s73, s73, s74
    s_and_b32 s52, s52, 1
    s_mul_i32 s74, s{W}, 6
    s_add_u32 s52, s52, s74
    s_lshl_b32 s74, s52, 17
    s_lshl_b32 s75, s73, 10
    s_add_u32 s74, s74, s75
    s_add_u32 s74, s74, {PART}
    s_mul_i32 s75, s73, {ROW}
    s_lshl_b32 s52, s52, 6
    s_add_u32 s75, s75, s52
    v_lshlrev_b32 v{FA}, 4, v{L}
    v_and_b32 v{FB}, 15, v{L}
    v_mul_u32_u24 v{FB}, 1152, v{FB}
    v_lshrrev_b32 v194, 4, v{L}
    v_lshl_add_u32 v{FB}, v194, 3, v{FB}
    s_lshr_b32 s52, s{XG}, 2
    s_lshl_b32 s8, s52, 10
    s_add_u32 s8, s8, s{FI}
    s_mul_i32 s52, s52, 3
    s_lshl_b32 s73, 0x071c71c7, s52
    s_lshl_b32 s52, s{W}, 10
    v_add_u32 v{EW}, s52, v{FA}
    v_xor_b32 v{ER}, 0x800, v{EW}
    s_mov_b32 s76, 0x3f80
    s_mov_b32 s77, 0x3f800000""".format(EW=vEW, ER=vER, FI=sFI, XG=sXG, C=sC, I=sI, W=sWAVE, PART=PART_OFF, ROW=16 * 1152, FA=vFA, FB=vFB, L=vL)
    q = [I(a, l) for l in code.split("\n")]
    q.append(I(a, "s_cmp_eq_u32 s%d, 3\ns_cmov_b32 s74, 0x%x\ns_cmov_b32 s75, 0x%x" % (sWAVE, OOB, OOB), 3))
    b_ = Asm(); srd(b_, rWA, sOUT, 2048 * 1152)
    q += Q(a, "\n".join(b_.lines))
    return q
def fin_x(a, k):
    g = GORDER[k]
    a.vmem("buffer_load_dwordx2 %s, v%d, %s, s75 offen offset:%d" % (V(XB + 4 * k, 2), vFB, XR, 128 * g), ("x3", k))
    a.vmem("buffer_load_dwordx2 %s, v%d, %s, s75 offen offset:%d" % (V(XB + 4 * k + 2, 2), vFB, XR, 128 * g + 32), ("x3", k))
def fin_loads(a, k):
    g = GORDER[k]
    a("s_add_u32 s58, s74, %d" % (2 * g * KSTRIDE))
    for r in range(NSL):
        a.vmem("buffer_load_dwordx4 %s, v%d, %s, s58 offen %s" % (V(PB[k] + 4 * r, 4), vFA, WSR, SC), ("p", k, r))
        if r < NSL - 1: a("s_add_u32 s58, s58, %d" % PSL)
def fin_sum(a, k):
    g = GORDER[k]
    OR = "s[%d:%d]" % (rWA, rWA + 3)
    a.wait_vm(lambda t: t == ("x3", k))
    for i in range(4):
        a("v_lshlrev_b32 v%d, 16, v%d" % (SUM + 8 * k + 2 * i, XB + 4 * k + i))
        a("v_and_b32 v%d, 0xffff0000, v%d" % (SUM + 8 * k + 2 * i + 1, XB + 4 * k + i))
    for r in range(NSL):
        a.wait_vm(lambda t: t == ("p", k, r))
        for i in range(4):
            p = PB[k] + 4 * r + i
            s_ = SUM + 8 * k + 2 * i
            a("v_dot2_f32_bf16 v%d, v%d, s76, v%d" % (s_, p, s_))
            a("v_dot2_f32_bf16 v%d, v%d, s77, v%d" % (s_ + 1, p, s_ + 1))
    a("s_nop 2")
    for i in range(4):
        a("v_cvt_pk_bf16_f32 v%d, v%d, v%d" % (XB + 4 * k + i, SUM + 8 * k + 2 * i, SUM + 8 * k + 2 * i + 1))
    a.vmem("buffer_store_dwordx2 %s, v%d, %s, s75 offen offset:%d%s" % (V(XB + 4 * k, 2), vFB, OR, 128 * g, OSC))
    a.vmem("buffer_store_dwordx2 %s, v%d, %s, s75 offen offset:%d%s" % (V(XB + 4 * k + 2, 2), vFB, OR, 128 * g + 32, OSC))

def hilo(a, v, t0, t1):
    return [I(a, "v_cvt_pk_bf16_f32 v%d, v%d, v%d" % (t0, v, v)),
            I(a, "v_and_b32 v%d, 0xffff0000, v%d" % (t0, t0)),
            I(a, "v_sub_f32 v%d, v%d, v%d" % (t1, v, t0)),
            I(a, "v_cvt_pk_bf16_f32 v%d, v%d, v%d" % (v, t0, t1))]

def stats_fetch(a, kind, base, vaddr):
    fns = [I(a, "s_mov_b32 s49, %d" % ST_OFF)]
    for tt in range(4):
        fns.append(("M", lambda tt=tt: a.vmem("buffer_load_dwordx4 %s, v%d, %s, s49 offen offset:%d %s" % (R(kind, base + 4 * tt, 4), vaddr, WSR, 256 * tt, SC), "stf")))
    return fns
def stats_check(a, kind, base, vaddr, t0):
    code = []
    for n, r in enumerate([base + 4 * tt + k for tt in range(4) for k in (1, 3)]):
        if kind == "a":
            code.append("v_accvgpr_read_b32 v%d, a%d" % (t0, r)); r = t0
        if n == 0: code.append("v_cmp_eq_u32 s[60:61], s%d, v%d" % (sTOK, r))
        else: code += ["v_cmp_eq_u32 vcc, s%d, v%d" % (sTOK, r), "s_and_b64 s[60:61], s[60:61], vcc"]
    def last():
        a("s_cmp_lg_u64 s[60:61], -1")
        def body(b):
            b("s_mov_b32 s49, %d" % ST_OFF)
            for tt in range(4):
                b("buffer_load_dwordx4 %s, v%d, %s, s49 offen offset:%d %s" % (R(kind, base + 4 * tt, 4), vaddr, WSR, 256 * tt, SC))
            b("s_waitcnt vmcnt(0)")
            b("\n".join(code))
            b("s_cmp_lg_u64 s[60:61], -1")
        slow_path(a, body, "stats")
    return [("S", lambda: wvm(a, ["stf"]))] + [I(a, c) for c in code] + [("SS", last)]
def stats_addr(a, dst):
    return [I(a, "v_and_b32 v%d, 15, v%d" % (dst, vL)),
            I(a, "s_lshl_b32 s52, s%d, 12\ns_lshl_b32 s60, s%d, 10\ns_add_u32 s52, s52, s60\nv_lshl_add_u32 v%d, v%d, 4, s52" % (sI, sWAVE, dst, dst), 4)]

def path_mlp(a):
    vD, TMP, HS, ONES, CSA, ST = 172, 176, 184, 188, 192, 200
    vCSR, vCSW, vCSL, vP2 = 220, 221, 222, 223
    def xreg(kk, tt):
        i = kk * 4 + tt
        return ("a", 4 * i) if i < 64 else ("v", 224 + 4 * (i - 64))
    def xr(kk, tt): return R(*xreg(kk, tt), 4)
    def acc(P, ti, tt): return 64 * P + 16 * ti + 4 * tt
    t0, t1, t2, t3 = 64, 65, 66, 67
    XS = XStage(a, TMP, TMP + 4, 8 * 8192, 3, xreg)
    WLIM = 576 * 9216
    loc = {}
    WT = [sWo, 4, 5, 6, 7, 10, 11, 20, 21]
    issued_at = {}; now = [0]
    free = list(range(8))
    def dma_issue(L, kk):
        sl = free.pop(0); loc[(L, kk)] = sl
        fns = [I(a, "s_add_u32 m0, s53, %d" % (sl * 8192)),
               I(a, "s_add_u32 s55, s%d, %d" % (WT[kk >> 1], (kk & 1) * 32 * 9216 + L * 128)),
               VM(a, "buffer_load_dwordx4 v%d, s[%d:%d], s55 offen lds" % (vD, rWA, rWA + 3), ("w", L, kk)),
               VM(a, "buffer_load_dwordx4 v%d, s[%d:%d], s55 offen offset:1024 lds" % (vD + 1, rWA, rWA + 3), ("w", L, kk))]
        if kk & 1 and L == 0 and kk < 17:
            o, n_ = WT[kk >> 1], WT[(kk >> 1) + 1]
            fns.append(I(a, "s_add_u32 s%d, s%d, %d\ns_cmp_ge_u32 s%d, %d\ns_cmov_b32 s%d, 0" % (n_, o, 64 * 9216, n_, WLIM, n_), 3))
        issued_at[(L, kk)] = now[0]
        return fns
    def c_issue(L, k):
        key = (10 + L, k)
        sl = free.pop(0); loc[key] = sl
        issued_at[key] = now[0]
        ld = lambda v, o: VM(a, "buffer_load_dwordx4 v%d, s[%d:%d], s55 offen%s lds" % (v, rWA, rWA + 3, o), ("w",) + key)
        if k < 2:
            return [I(a, "s_add_u32 m0, s53, %d" % (sl * 8192)), I(a, "s_add_u32 s55, s%d, %d" % (sWo, k * 32 * 9216 + L * 128)), ld(vD, ""), ld(vD + 1, " offset:1024")]
        return [I(a, "s_add_u32 m0, s53, %d" % (sl * 8192)), I(a, "s_lshr_b32 s55, s%d, 2" % sWo), I(a, "s_add_u32 s55, s55, %d" % (512 * 9216 + 128)), ld(vD, ""),
                I(a, "s_sub_u32 s55, s55, %d" % (16 * 9216 - 128)), ld(vD + 1, " offset:1024")]
    assert CFG.rotc == 0
    XS.setup_dma(t0, t1)
    run(XS.dma(0))
    a("s_cmp_ge_u32 s%d, 2" % sWAVE)
    a("s_cselect_b32 s%d, s%d, s%d" % (rWA, sW3, sW1))
    a("s_cselect_b32 s%d, s%d, s%d" % (rWA + 1, sW3 + 1, sW1 + 1))
    a("s_and_b32 s%d, s%d, 0xffff" % (rWA + 1, rWA + 1))
    a("s_mov_b32 s%d, %d" % (rWA + 2, WLIM))
    a("s_mov_b32 s%d, 0x20000" % (rWA + 3))
    a("s_mul_i32 s70, s%d, 3" % sXG)
    a("s_add_u32 s70, s70, s%d" % sC)
    run(dma_lane_off(a, vD, t0, t1, 9216, True))
    a("s_mul_i32 s52, s70, 384")
    a("s_and_b32 s49, s%d, 1" % sWAVE)
    a("s_mul_i32 s49, s49, %d" % (4 * 9216))
    a("s_add_u32 s52, s52, s49")
    a("v_add_u32 v%d, s52, v%d" % (vD, vD))
    a("v_add_u32 v%d, %d, v%d" % (vD + 1, 16 * 9216 - 1024, vD))
    a("s_lshl_b32 s53, s%d, 11" % sWAVE)
    a("s_mul_i32 s%d, s%d, %d" % (sWo, sROT, 64 * 9216))
    for kk in range(2 if CFG.lean else 4): run(dma_issue(0, kk))
    code_prefetch(a)
    if not CFG.lean: run(XS.dma(1))
    if CFG.init >= 1: run(c_issue(1, 0) + c_issue(1, 1) + c_issue(0, 2))
    if CFG.init >= 2: run(XS.dma(2))
    stamp(a, 4, 1)
    st_ = [(r, 32 * r, k) for r in range(1, 6) for k in range(3)]; so_ = [(0, 0, "wo"), (1, 36, "wo")][:2 - CFG.osplit]
    p2 = P2(a, st_[:12] + so_ + st_[12:] if CFG.ofirst else st_ + so_, vD, None, vCSR)
    XS.setup_read(t0, t1, t2)
    tr_addrs(a, t0, t1, t2)
    a("v_xor_b32 v%d, s%d, v%d" % (t2, sWAVE, t1))
    a("v_lshl_add_u32 v%d, v%d, 5, v%d" % (vCSR, t2, t0))
    a("s_mov_b32 s68, s%d" % sC)
    p2.setup_s()
    a("s_lshr_b32 s60, s%d, 1" % sWAVE)
    a("s_mul_i32 s%d, s60, 4160" % sPX)
    a("s_and_b32 s49, s%d, 6" % sXG)
    a("s_add_u32 s49, s49, s60")
    a("s_mul_i32 s62, s49, %d" % (18 * KSTRIDE))
    a("s_add_u32 s62, s62, %d" % H_OFF)
    a("s_mul_i32 s63, s49, %d" % (576 * 1152))
    a("s_mul_i32 s64, s49, %d" % (2 * KSTRIDE))
    a("s_add_u32 s64, s64, %d" % (H_OFF + 144 * KSTRIDE))
    a("s_mul_i32 s65, s49, %d" % (72 * 1152))
    a("s_mul_i32 s57, s70, %d" % (6 * KSTRIDE))
    a("s_add_u32 s57, s57, %d" % H_OFF)
    a("s_lshr_b32 s52, s%d, 1" % sXG)
    a("s_mul_i32 s52, s52, 3")
    a("s_add_u32 s52, s52, s%d" % sC)
    a("s_mul_i32 s52, s52, 6")
    a("s_add_u32 s52, s52, s60")
    a("s_lshl_b32 s67, s52, 17")
    a("s_add_u32 s67, s67, %d" % PART_OFF)
    a("s_lshl2_add_u32 s69, s70, s%d" % sFI)
    a("s_mul_i32 s52, s49, 3")
    a("s_lshl_b32 s71, 7, s52")
    a("s_lshl_b32 s72, 1, s49")
    a("s_mul_i32 s%d, s70, 12288" % sCSB)
    a("s_add_u32 s%d, s%d, %d" % (sCSB, sCSB, CS_OFF))
    a("s_lshl_b32 s%d, s70, 7" % sFC)
    a("s_add_u32 s%d, s%d, 0x%x" % (sFC, sFC, FL(FC)))
    b_ = Asm(); rot_bases(b_, sI)
    late2 = Q(a, "\n".join(b_.lines))
    late = []
    L_ = lambda s, c=1: late.append(I(a, s, c))
    u0, u1 = CSA, CSA + 1
    L_("v_and_b32 v%d, 15, v%d" % (u0, vL))
    L_("v_lshlrev_b32 v%d, 4, v%d" % (u0, u0))
    L_("v_lshrrev_b32 v%d, 4, v%d" % (u1, vL))
    L_("v_lshlrev_b32 v%d, 4, v%d" % (vCSL, vL))
    L_("v_lshl_add_u32 v%d, v%d, 10, v%d" % (vCSW, u1, u0))
    L_("s_lshr_b32 s52, s%d, 1\ns_lshl_b32 s52, s52, 11\ns_and_b32 s60, s%d, 1\ns_lshl_b32 s60, s60, 3\ns_add_u32 s52, s52, s60\n"
       "s_lshr_b32 s60, s%d, 1\ns_lshl_b32 s60, s60, 8\ns_add_u32 s52, s52, s60\ns_and_b32 s60, s%d, 1\ns_lshl2_add_u32 s52, s60, s52\n"
       "v_add_u32 v%d, s52, v%d" % (sWAVE, sWAVE, sI, sI, vCSW, vCSW), 11)
    L_("v_cmp_gt_u32 vcc, 32, v%d\nv_mov_b32 v%d, 0x%x\ns_nop 0\nv_cndmask_b32 v%d, v%d, v%d, vcc" % (vL, u0, OOB, vCSW, u0, vCSW), 4)
    L_("s_cmp_eq_u32 s%d, 7\ns_cselect_b32 s%d, 0x%x, 0" % (sI, sOne2, ONE2), 2)
    CSL, ONL, ONH, ON7 = [224, 240, 248], HS, 232, 236
    for i in range(4):
        late.insert(0, I(a, "v_mov_b32 v%d, 0x%x" % (ONES + i, ONE2)))
        L_("v_mov_b32 v%d, s%d" % (ON7 + i, sOne2))
    for i in range(4):
        L_("v_cndmask_b32 v%d, 0, v%d, vcc" % (ONL + i, ONES))
        L_("v_xor_b32 v%d, v%d, v%d" % (ONH + i, ONL + i, ONES))
    run(late); run(late2)
    if CFG.lean == 1: run(XS.dma(1) + dma_issue(0, 2) + dma_issue(0, 3))
    stamp(a, 7, 1)
    stats_compute(a)
    stamp(a, 5, 1)
    run(XS.reads(0))
    a.wait_vm(lambda t: t == ("w", 0, 1))
    a("s_barrier")
    SPLIT = CFG.split
    seq = []
    for kk in range(SPLIT): seq += [("mm", 0, 0, kk), ("mm", 0, 1, kk)]
    seq += [("mm", 0, 0, kk) for kk in range(SPLIT, 18)] + [("mm", 0, 1, kk) for kk in range(SPLIT, 18)]
    for L in (1, 2):
        for P in (0, 1): seq += [("mm", L, P, kk) for kk in range(18)]
    def after(key, new): seq.insert(seq.index(key) + 1, new)
    after(("mm", 0, 0, CFG.c00), ("corr", 0, 0))
    for L in range(3): after(("mm", L, 1, 17), ("corr", L, 1))
    if CFG.cmode == 1 and CFG.cdel >= 0: after(("mm", 1, 1, CFG.cdel), ("corr", 1, 0))
    else: after(("mm", 1, 0, 17), ("corr", 1, 0))
    after(("mm", 2, 0, 17), ("corr", 2, 0))
    cs_steps = {0: [((0, 0), ONES), ((0, 1), ONES), ((0, 2), ON7), ((0, 3), ON7)],
                1: [((11, 0), ONES), ((11, 1), ONES), ((10, 2), ONL)], 2: [((12, 0), ONES), ((12, 1), ONES), ((10, 2), ONH)]}
    cs_at = {0: CFG.cs0, 1: CFG.cs1, 2: CFG.cs2}
    attach = {}
    if CFG.cmode == 1:
        CSL[1], CSL[2] = TMP, CSA
        n1 = seq.index(("corr", 0, 1)) + 1
        cs_at[1] = cs_at[2] = n1 + 1
        attach[seq[n1]] = [(1, k, (1, k), ONES, mat) for k in range(2) for mat in range(2)]
        attach[seq[n1 + 1]] = [(2, k, (2, k), ONES, mat) for k in range(2) for mat in range(2)]
        attach[seq[n1 + 2]] = [(1, 2, (10, 2), ONL, 0), (1, 2, (10, 2), ONL, 1), (2, 2, (10, 2), -ONES, 0), (2, 2, (10, 2), ONES, 1)]
    for L in range(3 if CFG.cmode == 0 else 1):
        its = [(L, k, sl, on, mat) for k, (sl, on) in enumerate(cs_steps[L]) for mat in range(2)]
        attach[seq[cs_at[L]]] = its[:4]; attach[seq[cs_at[L] + 1]] = its[4:]
    NH = len(seq)
    idx = {k: n for n, k in enumerate(seq)}
    visible = set([(0, 0), (0, 1)])
    S_ = Stream(a, "v", WF)
    first_slot = []
    csr = [0]
    def slabs_of(e):
        if e[0] == "mm": return [(e[1], e[3])] + [x[2] for x in attach.get(e, [])]
        return []
    for e in seq:
        first_slot.append(len(S_.slots))
        if e[0] == "mm":
            _, L, P, kk = e
            att = list(attach.get(e, []))
            for ti in (0, 2, 1, 3):
                def off(L=L, kk=kk, ti=ti):
                    assert (L, kk) in visible, (L, kk)
                    return loc[(L, kk)] * 8192 + (ti >> 1) * 4096
                def mf(w, P=P, ti=ti, kk=kk):
                    return ["%s %s, %s, %s, %s" % (MF, V(acc(P, ti, tt), 4), w, xr(kk, tt), "0" if kk == 0 else V(acc(P, ti, tt), 4)) for tt in range(4)]
                S_.add(tr_read(a, off, 2 * P + (ti & 1)), mf)
                if att:
                    cl, k, sl, on, mat = att.pop(0); CS = CSL[cl]
                    def rd(kind, reg, tag, sl=sl, mat=mat):
                        assert sl in visible
                        out = []
                        d = loc[sl] * 8192 - csr[0]; csr[0] += d
                        if d: out.append(I(a, "v_add_u32 v%d, 0x%x, v%d" % (vCSR, d & 0xffffffff, vCSR)))
                        return out + [("D", lambda h=h: a.lds("ds_read_b64_tr_b16 %s, v%d offset:%d" % (V(reg + 2 * h, 2), vCSR, mat * 4096 + h * 2048), tag)) for h in range(2)]
                    S_.add(rd, lambda w, k=k, on=on, mat=mat, CS=CS: [("".join("v_xor_b32 v%d, v%d, v%d\n" % (ONES + i, ONES + i, ONL) for i in range(4)) + "s_nop 1\n" if on < 0 else "") + "%s %s, %s, %s, %s" % (MF, V(CS + 4 * mat, 4), V(abs(on), 4), w, "0" if k == 0 else V(CS + 4 * mat, 4))])
        elif e[0] == "corr":
            _, L, P = e
            for ti in range(4):
                S_.add(None, lambda w, P=P, ti=ti: ["%s %s, %s, %s, %s" % (MF16, V(acc(P, ti, tt), 4), V(CSA + 2 * ti, 2), V(ST + 4 * tt, 2), V(acc(P, ti, tt), 4)) for tt in range(4)])
    first_slot.append(len(S_.slots))
    p2.add_slots(S_)
    def epilogue(L, P):
        q = [I(a, "s_add_u32 s58, s57, %d" % ((2 * L + P) * KSTRIDE)) + ([], ["s58"])]
        for tt in range(4):
            rs, cc = ST + 4 * tt + 2, ST + 4 * tt + 3
            o = acc(P, 2, tt)
            gu = [(acc(P, half, tt) + i, acc(P, 2 + half, tt) + i) for half in range(2) for i in range(4)]
            for g, u in gu:
                q.append(I(a, "v_mul_f32 v%d, v%d, v%d" % (u, g, u)) + ([g, u], [u]))
                q.append(I(a, "v_mul_f32 v%d, v%d, v%d" % (g, g, rs)) + ([g], [g]))
            for g, u in gu: q.append(I(a, "v_exp_f32 v%d, v%d" % (g, g)) + ([g], [g]))
            for g, u in gu: q.append(I(a, "v_fma_f32 v%d, v%d, v%d, v%d" % (g, g, cc, cc)) + ([g], [g]))
            for g, u in gu: q.append(I(a, "v_rcp_f32 v%d, v%d" % (g, g)) + ([g], [g]))
            for g, u in gu: q.append(I(a, "v_mul_f32 v%d, v%d, v%d" % (g, g, u)) + ([g, u], [g]))
            for k in range(4):
                g = gu[2 * k][0]
                q.append(I(a, "v_cvt_pk_bf16_f32 v%d, v%d, v%d" % (o + k, g, g + 1)) + ([g, g + 1], [o + k]))
            q.append(VM(a, "buffer_store_dwordx4 %s, v%d, %s, s58 offen offset:%d %s" % (V(o, 4), vX, WSR, tt * 1024, SC), ("h", L, P)) + ([o, o + 1, o + 2, o + 3, "s58"], []))
        return q
    last_use = {}
    for n, e in enumerate(seq):
        for sl in slabs_of(e): last_use[sl] = n
    lastP = {}
    for n, e in enumerate(seq):
        if e[0] != "cs": lastP[e[1:3]] = n
    marks = set()
    def mark(m): return ("", lambda: marks.add(m))
    released = set()
    def hsig(stage): return signal(a, "s_add_u32 s49, s69, %d" % (128 * (FH + 8 * stage)))
    def hoff(stage): return "s_add_u32 s49, s%d, %d" % (sFI, 128 * (FH + 8 * stage))
    coff = "s_mov_b32 s49, s%d" % sFC
    def csa_load(L, P):
        return [I(a, "s_add_u32 s49, s%d, %d" % (sCSB, L * 4096 + P * 2048))] + \
               [("M", lambda k=k: a.vmem("buffer_load_dwordx4 %s, v%d, %s, s49 offen offset:%d %s" % (V(CSA + 4 * k, 4), vCSL, WSR, 1024 * k, SC), ("csa", L, P))) for k in range(2)]
    def cs_publish(L):
        CS = CSL[L]
        return [I(a, "s_mov_b32 vcc_lo, 0xffff0000\ns_mov_b32 vcc_hi, 0\nv_cndmask_b32 v%d, v%d, v%d, vcc" % (CS, CS, CS + 4), 3)] + hilo(a, CS, CS + 1, CS + 2) + \
               [I(a, "s_add_u32 s49, s%d, %d" % (sCSB, L * 4096)),
                ("M", lambda: a.vmem("buffer_store_dword v%d, v%d, %s, s49 offen %s" % (CS, vCSW, WSR, SC), ("cs", L))), mark(("pub", L))]
    ev = {}
    bar_tags = {}
    def at(n, fns): ev.setdefault(n, []).extend(fns)
    def sig_after(n, tag, fns):
        n |= 1
        bar_tags.setdefault(n, ([], []))
        bar_tags[n][0].append(tag); bar_tags[n][1].extend(fns)
    marks.add("late")
    csig = lambda L: signal(a, "s_lshl2_add_u32 s49, s%d, s%d\ns_add_u32 s49, s49, %d" % (sI, sFC, 32 * L))
    for L in range(3):
        at(cs_at[L] + 3, cs_publish(L))
        at(idx[("corr", L, 0)] + 1, csa_load(L, 1))
        if L > CFG.cmode: at(idx[("corr", L - 1, 1)] + 1, csa_load(L, 0))
    sig_after(cs_at[0] + CFG.sig0, ("cs", 0), csig(0))
    sig_after(cs_at[2] + (8 if CFG.cmode == 0 else CFG.sigd), ("cs", 2), csig(1))
    c0 = idx[("corr", 0, 0)]
    at(c0 - CFG.p0, poll_issue(a, coff, ("plc", 0)))
    at(c0 - CFG.k0, poll_check(a, coff, ("plc", 0), "0xff") + csa_load(0, 0))
    if CFG.cmode == 0:
        at(idx[("corr", 0, 1)] - 5, poll_issue(a, coff, ("plc", 1)))
        at(idx[("corr", 0, 1)], poll_check(a, coff, ("plc", 1), "0xff00"))
    else:
        at(idx[("corr", 1, 0)] - 9, poll_issue(a, coff, ("plc", 1)))
        at(idx[("corr", 1, 0)] - 5, poll_check(a, coff, ("plc", 1), "0xff00") + csa_load(1, 0))
    c0 = idx[("corr", 0, 0)]
    at(c0 - 12, stats_addr(a, vP2) + stats_fetch(a, "v", ST, vP2))
    fx = stats_check(a, "v", ST, vP2, None)
    for tt in range(4):
        b = ST + 4 * tt
        fx += [I(a, "v_mov_b32 v%d, v%d" % (b + 1, b)), I(a, "v_mul_f32 v%d, v%d, v%d" % (b + 3, b + 2, b + 2)), I(a, "v_rcp_f32 v%d, v%d" % (b + 2, b + 2), 2)]
    for tt in range(4): fx.append(I(a, "v_mul_f32 v%d, %s, v%d" % (ST + 4 * tt + 2, f32(-LOG2E), ST + 4 * tt + 2)))
    at(c0 - 5, fx + [mark("stats")])
    xread_at = {}
    for p in range(8, 0, -1): xread_at[p] = max(min(idx[("mm", 0, 0, 2 * p)] - CFG.xlead, xread_at.get(p + 1, 99) - 3), 0)
    for p, n in xread_at.items():
        at(n, XS.reads(p))
    mm = lambda L, P, kk: idx[("mm", L, P, kk)]
    sig_after(mm(1, 1, 2), ("h", 0, 1), hsig(0))
    sig_after(mm(2, 0, 3), ("h", 1, 0), hsig(1))
    sig_after(mm(2, 1, 2), ("h", 1, 1), hsig(2))
    at(mm(2, 0, 13), poll_issue(a, hoff(1), "pl1", vP2))
    at(mm(2, 0, 17), poll_check(a, hoff(1), "pl1", "s71", vP2) + [mark("h1")])
    at(NH - 3, poll_issue(a, hoff(2), "pl2"))
    at(mm(2, 0, 6), p2.setup_vo(vCSR, vCSW, "s_and_b32 s52, s%d, 1" % sXG) + [mark("vo")])
    if CFG.pf == 1:
        pf = Q(a, """s_and_b32 s52, s{W}, 1
            s_mul_i32 s52, s52, 36
            s_mul_i32 s60, s{I}, 72
            s_add_u32 s52, s52, s60
            v_mul_u32_u24 v{P}, 43, v{L}
            v_lshrrev_b32 v{P}, 7, v{P}
            v_mul_u32_u24 v{T}, 3, v{P}
            v_sub_u32 v{T}, v{L}, v{T}
            v_add_u32 v{P}, s52, v{P}
            v_mul_u32_u24 v{P}, 1152, v{P}
            v_lshl_add_u32 v{P}, v{T}, 7, v{P}
            s_mul_i32 s52, s68, 384
            s_add_u32 s52, s52, s63""".format(W=sWAVE, I=sI, P=vP2, L=vL, T=vPL))
        pf += [VM(a, "buffer_load_dword v%d, v%d, s[%d:%d], s52 offen" % (vPL, vP2, rW2, rW2 + 3)),
               I(a, "s_add_u32 s52, s52, %d" % (18 * 1152)),
               VM(a, "buffer_load_dword v%d, v%d, s[%d:%d], s52 offen" % (vPL, vP2, rW2, rW2 + 3))]
        at(idx[("corr", 1, 0)] + 1 + CFG.pfw, pf)
    if CFG.pf == 4:
        pf = Q(a, """s_lshl2_add_u32 s52, s2, s{W}
            s_lshl_b32 s52, s52, 13
            v_lshlrev_b32 v{P}, 7, v{L}""".format(W=sWAVE, P=vP2, L=vL))
        pf += [VM(a, "buffer_load_dword v%d, v%d, s[%d:%d], s52 offen" % (vPL, vP2, rW2, rW2 + 3))]
        pf += Q(a, """s_cmp_lt_u32 s52, {N}
            s_cmov_b32 s52, 0x{O:x}
            s_sub_u32 s52, s52, {N}""".format(N=4608 * 1152, O=OOB))
        pf += [VM(a, "buffer_load_dword v%d, v%d, s[%d:%d], s52 offen" % (vPL, vP2, rWO, rWO + 3))]
        at((mm(1, 0, 2) if CFG.cmode == 0 else idx[("corr", 1, 0)] - 4) + CFG.pfw, pf)
    def wjob(L, kk):
        def make():
            if VERB: print("hs", now[0], seq[now[0]], "issue W", (L, kk), file=sys.stderr)
            return dma_issue(L, kk)
        gate = 0
        if CFG.cmode == 1 and kk >= 2: gate = (0, CFG.gate1, CFG.gate2)[L]
        return ("w", lambda: len(free) > 0 and now[0] >= gate, make)
    def cjob(L, k):
        def make():
            if VERB: print("hs", now[0], seq[now[0]], "issue C", (L, k), file=sys.stderr)
            return c_issue(L, k)
        return ("w", lambda: len(free) > 0, make)
    cj = {CFG.cj1: [cjob(1, 0), cjob(1, 1), cjob(0, 2)], CFG.cj2: [cjob(2, 0), cjob(2, 1)]}
    if CFG.init >= 1: del cj[CFG.cj1]
    if CFG.cmode == 1: cj = {CFG.cj1: [wjob(1, 0), wjob(1, 1)], 9: [cjob(0, 2), wjob(2, 0), wjob(2, 1)]}
    for p in range(1 if CFG.lean == 2 else 2, 9): S_.jobs += ([XS.job(p)] if p > 2 or CFG.init < 2 else []) + [wjob(0, 2 * p), wjob(0, 2 * p + 1)] + cj.get(p, [])
    S_.jobs += cj.get(9, [])
    S_.jobs += [wjob(L, kk) for L in (1, 2) for kk in range(2 * CFG.cmode, 18)]
    hmark = lambda st: "h1" if st < 6 else ("h2" if st < 9 else ("h3" if st < 12 else ("o" if p2.steps[st][2] == "wo" else "h4")))
    S_.jobs += p2.jobs(0, lambda st: "vo" in marks,
                       lambda st: hmark(st) in marks and now[0] > mm(2, 1, min(st, 9)))
    xdead = {}
    S_.prime()
    for n, e in enumerate(seq):
        pre = []
        now[0] = n
        S_.vmrate = 2.0 if n < CFG.boost else CFG.vmrate / 100.0
        if VERB: a.cm("HS %d %s" % (n, e))
        if n >= CFG.sbase and (n - CFG.sbase) % CFG.sstep == 0 and (n - CFG.sbase) // CFG.sstep < 11: stamp(a, 4 + (n - CFG.sbase) // CFG.sstep, 2)
        if e[0] == "mm" and e[1] == 0 and e[2] == 0 and e[3] % 2 == 0:
            wlg(a, [("xr", e[3] // 2)])
        if n == xread_at[8]: assert ("pub", 2 if CFG.cmode == 0 else 0) in marks
        if e[0] == "corr": assert "stats" in marks
        if n == mm(2, 0, 5): assert a.cnt.get(("w", 2, 17)) == 2
        if e[0] == "corr": wvm(a, [("csa", e[1], e[2])])
        if e[0] == "mm" and e[3] == 0 and (e[1] > 0 or e[2] == 0): stamp(a, 3 if e[1] == 0 else 3 + 2 * e[1] + e[2])
        if e == ("mm", 0, 0, 9): stamp(a, 4)
        if n % 2 == 1:
            rmax = S_.read_limit(first_slot[min(n + 2, NH)] - 1)
            need = []
            for m in range(n, NH):
                if S_.cur_ring(first_slot[m]) <= rmax:
                    need += [x for x in slabs_of(seq[m]) if x not in visible and x not in need]
            rel_ = [x for x, lu in last_use.items() if lu < n and x not in released]
            tags, aft = bar_tags.pop(n, ([], []))
            tags = list(tags)
            if S_.cur_ring(first_slot[NH]) <= rmax and not p2.visible:
                tags += [("w2", 0, k_) for k_ in range(3)]; p2.visible.update((0, k_) for k_ in range(3))
            xrel = [p for p, m in xread_at.items() if p >= 6 and m + 3 <= n and p not in xdead]
            want_space = S_.jobs and S_.jobs[0][0] in ("w", "w2", "x") or any(j[0] in ("w", "w2") for j in S_.jobs[:3])
            if rel_ and not (need or tags or xrel) and (not want_space or (n > 40 and len(rel_) < CFG.relper)): rel_ = []
            if need or rel_ or tags or xrel:
                need += [x for x, t_ in issued_at.items() if x not in visible and x not in need and
                         (t_ + CFG.age <= n or (a.cnt.get(("w",) + x, 0) == 2 and ("w",) + x not in a.vm))]
                for x in need: assert x in loc, ("slab not issued", n, x)
                def bar(need=need, tags=tags, xrel=xrel):
                    wlg(a, [("xr", p) for p in xrel])
                    wvm(a, [("w",) + x for x in need] + tags)
                    a("s_barrier")
                pre.append(("B", bar))
                visible.update(need); released.update(rel_)
                for x in rel_: free.append(loc[x])
                for p in xrel:
                    xdead[p] = 1
                    free.extend(8 + 3 * w + p % 3 for w in range(4))
            S_.extra += aft
        S_.extra += ev.pop(n, [])
        if (2, 17) in loc:
            while free:
                p2.free.append(free.pop(0))
        ns = first_slot[n + 1] - first_slot[n]
        for k in range(ns):
            if e[0] == "mm" and e[3] == 0 and k == 0:
                assert not (S_.epi and S_.epiP == e[2]), "epilogue not finished"
            S_.emit(pre if k == 0 else (), 1 if len(S_.extra) > 20 else 0)
            if k == 1 and n > 0:
                pe = seq[n - 1]
                if pe[0] != "cs" and lastP[pe[1:3]] == n - 1:
                    assert not S_.epi
                    S_.set_epi(epilogue(pe[1], pe[2]), first_slot[mm(pe[1] + 1, pe[2], 0)] - 1 if pe[1] < 2 else first_slot[NH] - 1, 0, False)
                    S_.epiP = pe[2]
    assert not S_.epi and not ev and not bar_tags, (ev.keys(), bar_tags.keys())
    now[0] = NH
    if VERB: print("; left for phase 2:", [j[0] for j in S_.jobs], "extra", len(S_.extra), file=sys.stderr)
    stamp(a, 9)
    S_.set_epi(epilogue(2, 1), S_.pos + CFG.edl, 2, False)
    ooff = "s_add_u32 s49, s%d, %d" % (sFI, 128 * FO)
    hooks = {}
    def add(st, key, v): hooks.setdefault(st, {}).setdefault(key, []).extend(v)
    add(0, "bar", [("h", 2, 0)]); add(0, "after", hsig(3))
    add(0, "after", poll_check(a, hoff(2), "pl2", "s71") + [mark("h2")])
    add(2, "after", poll_issue(a, hoff(3), "pl3"))
    add(CFG.s4, "bar", [("h", 2, 1)]); add(CFG.s4, "after", hsig(4))
    add(4, "after", poll_check(a, hoff(3), "pl3", "s71") + [mark("h3")])
    if CFG.osplit < 2:
        add(CFG.po, "after", poll_issue(a, ooff, "plo", vP2))
        add(CFG.po + 2, "after", poll_check(a, ooff, "plo", "s72", vP2) + [mark("o")])
    add(CFG.p4, "after", poll_issue(a, hoff(4), "pl4"))
    add(CFG.c4, "after", poll_check(a, hoff(4), "pl4", "s71") + [mark("h4")])
    dead0 = [loc[x] for x in last_use if x not in released]
    p2.main(S_, hooks, dead0)

C0 = [0, 4, 9, 13]
def path_attn(a):
    global vL, vX, vFS, vFP, vTK, vPL
    keep = (vL, vX, vFS, vFP, vTK, vPL)
    a.cnt = {}
    RB, VO, XO, XA = 224, 230, 236, 240
    vCS0, vCS1, vCSW, vP2, u0, u1 = 250, 251, 252, 253, 254, 255
    aONE, aCS, aST, aCSA, aX = 32, 36, 52, 68, 96
    t0, t1, t2, t3, t4 = 64, 65, 66, 67, 68
    new = (244, 245, 246, 247, 248, 249)
    for o_, n_ in zip(keep[:4], new[:4]): a("v_mov_b32 v%d, v%d" % (n_, o_))
    vL, vX, vFS, vFP, vTK, vPL = new
    def xreg(kk, tt): return ("a", aX + 16 * (kk % 10) + 4 * tt)
    def xr(kk, tt): return R(*xreg(kk, tt), 4)
    def acc(T, tt): return 16 * T + 4 * tt
    XS = XStage(a, XO, XA, 98304, 2, xreg)
    WLIM = 576 * 3456
    def dma_issue(kk):
        fns = [I(a, "s_add_u32 s55, s%d, %d" % (sWo, (kk & 1) * 32 * 3456))]
        for idx in range(6):
            if idx % 3 == 0:
                fns.append(I(a, "s_add_u32 m0, s53, %d" % ((kk % 4) * 24576 + (idx // 3) * 3072)))
            fns.append(VM(a, "buffer_load_dwordx4 v%d, s[%d:%d], s55 offen offset:%d lds" % (VO + idx, rWA, rWA + 3, (idx % 3) * 1024), ("w", kk)))
        if kk & 1: fns.append(I(a, "s_add_u32 s%d, s%d, %d\ns_cmp_ge_u32 s%d, %d\ns_cmov_b32 s%d, 0" % (sWo, sWo, 64 * 3456, sWo, WLIM, sWo), 3))
        return fns
    XS.setup_dma(t0, t1)
    run(XS.dma(0))
    srd(a, rWA, sWQKV, WLIM, bias=2048)
    run(dma_lane_off(a, t2, t0, t1, 3456, True))
    for idx in range(6):
        a("s_mul_i32 s52, s%d, 6" % sWAVE)
        a("s_add_u32 s52, s52, %d" % idx)
        a("s_and_b32 s49, s52, 1")
        a("s_bfe_u32 s60, s52, 0x10001")
        a("s_lshl2_add_u32 s49, s49, s60")
        a("s_mul_i32 s49, s49, %d" % (4 * 3456))
        a("s_bfe_u32 s60, s52, 0x10002")
        a("s_add_u32 s60, s60, s%d" % sXG)
        a("s_lshl_b32 s60, s60, 7")
        a("s_add_u32 s49, s49, s60")
        a("s_lshr_b32 s60, s52, 3")
        a("s_mul_i32 s60, s60, 1152")
        a("s_add_u32 s49, s49, s60")
        a("s_add_u32 s49, s49, %d" % (2048 - (idx % 3) * 1024))
        a("v_add_u32 v%d, s49, v%d" % (VO + idx, t2))
    a("s_mul_i32 s53, s%d, 6144" % sWAVE)
    a("s_mul_i32 s%d, s%d, %d" % (sWo, sROT, 64 * 3456))
    run(dma_issue(0))
    if not CFG.lean: run(dma_issue(1))
    code_prefetch(a)
    if not CFG.lean: run(XS.dma(1))
    stamp(a, 4, 1)
    XS.setup_read(t0, t1, t2)
    lane_fields(a, t0, t1, t2)
    a("v_lshrrev_b32 v%d, 1, v%d" % (t0, t0))
    a("v_lshlrev_b32 v%d, 10, v%d" % (t0, t0))
    a("v_lshl_add_u32 v%d, v%d, 7, v%d" % (t0, t1, t0))
    a("v_lshrrev_b32 v%d, 1, v%d" % (t1, t1))
    a("s_lshl_b32 s52, s%d, 1" % sXG)
    for p in range(6):
        r = RB + p
        if p < 4:
            a("v_add_u32 v%d, %d, v%d" % (t3, C0[p], t2))
        elif p == 4:
            a("v_lshrrev_b32 v%d, 1, v%d" % (t3, t2))
            a("v_lshl_add_u32 v%d, v%d, 2, v%d" % (t3, t2, t3))
            a("v_add_u32 v%d, 4, v%d" % (t3, t3))
        else:
            a("v_and_b32 v%d, 1, v%d" % (t3, t2))
            a("v_mul_u32_u24 v%d, 9, v%d" % (t3, t3))
            a("v_add_u32 v%d, 8, v%d" % (t3, t3))
        a("v_add_u32 v%d, s52, v%d" % (t3, t3))
        a("v_lshrrev_b32 v%d, 4, v%d" % (t4, t3))
        a("v_lshl_add_u32 v%d, v%d, 12, v%d" % (r, t4, t0))
        a("v_bfe_u32 v%d, v%d, 2, 2" % (t4, t3))
        a("v_xor_b32 v%d, v%d, v%d" % (t4, t4, t1))
        a("v_lshl_add_u32 v%d, v%d, 5, v%d" % (r, t4, r))
        a("v_and_b32 v%d, 3, v%d" % (t4, t3))
        a("v_lshl_add_u32 v%d, v%d, 3, v%d" % (r, t4, r))
        if p == 5:
            a("v_lshrrev_b32 v%d, 1, v%d" % (t4, t2))
            a("v_add_u32 v%d, 1, v%d" % (t4, t4))
            a("v_lshl_add_u32 v%d, v%d, 13, v%d" % (r, t4, r))
    a("s_bitcmp1_b32 s%d, 0" % sWAVE)
    a("s_cselect_b64 vcc, -1, 0")
    a("v_cndmask_b32 v%d, v%d, v%d, vcc" % (t3, RB, RB + 1))
    a("v_cndmask_b32 v%d, v%d, v%d, vcc" % (t4, RB + 2, RB + 3))
    a("v_cndmask_b32 v%d, v%d, v%d, vcc" % (vCS1, RB + 4, RB + 5))
    a("s_bitcmp1_b32 s%d, 1" % sWAVE)
    a("s_cselect_b64 vcc, -1, 0")
    a("v_cndmask_b32 v%d, v%d, v%d, vcc" % (vCS0, t3, t4))
    a("v_mov_b32 v%d, 0x%x" % (t3, ONE2))
    for i in range(4): a("v_accvgpr_write_b32 a%d, v%d" % (aONE + i, t3))
    steps = [(18 * x_, 576 * x_, k) for x_ in range(4) for k in range(3)] + [(2 * x_ + P, 36 * (2 * x_ + P), "woa") for x_ in range(4) for P in range(2 - CFG.osplit, 2)] + [(0, 0, "wos"), (1, 144, "wos")]
    p2 = P2(a, steps, 220, 197, 222)
    a("s_cmp_ge_u32 s%d, 3" % sI)
    a("s_cselect_b32 s4, 1, 0")
    a("s_mul_i32 s52, s4, 3")
    a("s_sub_u32 s68, s%d, s52" % sI)
    a("s_lshr_b32 s70, s%d, 1" % sWAVE)
    a("s_lshl_b32 s5, s%d, 7" % sXG)
    a("s_add_u32 s5, s5, 0x%x" % FLG_OFF)
    p2.setup_s()
    a("s_mul_i32 s62, s70, %d" % (72 * KSTRIDE))
    a("s_add_u32 s62, s62, %d" % H_OFF)
    a("s_mul_i32 s63, s70, %d" % (2304 * 1152))
    a("s_mul_i32 s64, s70, %d" % (2 * KSTRIDE))
    a("s_add_u32 s64, s64, %d" % (H_OFF + 160 * KSTRIDE))
    a("s_mul_i32 s65, s70, %d" % (288 * 1152))
    a("s_mul_i32 s7, s70, %d" % (8 * KSTRIDE))
    a("s_add_u32 s7, s7, %d" % (H_OFF + 144 * KSTRIDE))
    a("s_add_u32 s52, s68, 12")
    a("s_mul_i32 s52, s52, 6")
    a("s_add_u32 s52, s52, s70")
    a("s_lshl_b32 s67, s52, 17")
    a("s_add_u32 s67, s67, %d" % PART_OFF)
    a("s_add_u32 s52, s%d, 24" % sI)
    a("s_lshl2_add_u32 s69, s52, s5")
    a("s_add_u32 s52, s%d, 24" % sXG)
    a("s_lshl_b32 s%d, s52, 7" % sFC)
    a("s_add_u32 s%d, s%d, 0x%x" % (sFC, sFC, FL(FC)))
    a("s_mul_i32 s52, s70, 12")
    a("s_lshl_b32 s71, 0xfff, s52")
    a("s_lshl_b32 s52, s70, 2")
    a("s_lshl_b32 s72, 15, s52")
    a("s_cmp_ge_u32 s%d, 6" % sI)
    a("s_cmov_b32 s62, 0x%x" % OOB)
    a("s_cmov_b32 s63, 0x%x" % OOB)
    a("s_cmov_b32 s71, 0")
    a("s_lshl_b32 s%d, s%d, 13" % (sCSB, sXG))
    a("s_add_u32 s%d, s%d, %d" % (sCSB, sCSB, CS_OFF + 24 * 12288))
    a("s_cmp_eq_u32 s%d, 7" % sI)
    a("s_cselect_b32 s%d, 0x%x, 0" % (sOne2, ONE2))
    if CFG.lean: run(dma_issue(1) + XS.dma(1))
    stamp(a, 7, 1)
    stats_compute(a)
    stamp(a, 5, 1)
    run(XS.reads(0))
    wvm(a, [("w", 0)], w=6)
    a("s_barrier")
    TL = [(0, 0), (1, 0), (2, 0), (3, 0), (4, 0)] + [(p, 1) for p in range(4)] + [(p, 2) for p in range(4)] + [(5, 0)]
    S_ = Stream(a, "a", 0)
    visible = set([0])
    cur = [0] * 6
    csr = [0]
    info = []
    for kk in range(18):
        for T in range(14):
            def rd(kind, reg, tag, kk=kk, T=T):
                assert kk in visible
                p, win = TL[T]
                want = ((kk % 4) // 2) * 49152
                out = []
                if cur[p] != want:
                    out.append(I(a, "v_add_u32 v%d, 0x%x, v%d" % (RB + p, (want - cur[p]) & 0xffffffff, RB + p))); cur[p] = want
                return out + [("D", lambda h=h: a.lds("ds_read_b64_tr_b16 %s, v%d offset:%d" % (A(reg + 2 * h, 2), RB + p, (kk % 2) * 24576 + win * 8192 + h * 2048), tag)) for h in range(2)]
            def mf(w, kk=kk, T=T):
                return ["%s %s, %s, %s, %s" % (MF, V(acc(T, tt), 4), w, xr(kk, tt), "0" if kk == 0 else V(acc(T, tt), 4)) for tt in range(4)]
            S_.add(rd, mf); info.append((kk, T))
            if kk < 4 and T in (1, 3, 5, 7):
                k = T // 2
                def rd(kind, reg, tag, kk=kk, k=k):
                    out = []
                    if k == 0 and kk > 0:
                        out += [I(a, "v_add_u32 v%d, 24576, v%d" % (vCS0, vCS0)), I(a, "v_add_u32 v%d, 24576, v%d" % (vCS1, vCS1))]
                    return out + [("D", lambda h=h: a.lds("ds_read_b64_tr_b16 %s, v%d offset:%d" % (A(reg + 2 * h, 2), vCS0 if k < 3 else vCS1, (k * 8192 if k < 3 else 0) + h * 2048), tag)) for h in range(2)]
                def mf(w, kk=kk, k=k):
                    pre = ""
                    if kk == 2 and k == 0:
                        pre = "v_mov_b32 v%d, s%d\n" % (u0, sOne2) + "".join("v_accvgpr_write_b32 a%d, v%d\n" % (aONE + i, u0) for i in range(4)) + "s_nop 1\n"
                    return [pre + "%s %s, %s, %s, %s" % (MF, A(aCS + 4 * k, 4), A(aONE, 4), w, "0" if kk == 0 else A(aCS + 4 * k, 4))]
                S_.add(rd, mf); info.append((kk, -1))
    for T in list(range(9, 13)) + list(range(5, 9)) + [13] + list(range(5)):
        S_.add(None, lambda w, T=T: ["%s %s, %s, %s, %s" % (MF16, V(acc(T, tt), 4), A(aCSA + 2 * T, 2), A(aST + 4 * tt, 2), V(acc(T, tt), 4)) for tt in range(4)])
        info.append((18, T))
    ev = {}; bt = {}
    def at(kk, fns): ev.setdefault(kk, []).extend(fns)
    w_ = [I(a, "v_lshrrev_b32 v%d, 4, v%d" % (u0, vL)),
          I(a, "v_mul_u32_u24 v%d, 9, v%d\nv_add_u32 v%d, 1, v%d\nv_lshrrev_b32 v%d, 1, v%d\nv_add_u32 v%d, s%d, v%d" % (vCSW, u0, vCSW, vCSW, vCSW, vCSW, vCSW, sWAVE, vCSW), 4),
          I(a, "s_mul_i32 s52, s%d, 9\ns_add_u32 s52, s52, 4\ns_cmp_ge_u32 s%d, 2\ns_cmov_b32 s52, 0x%x\nv_mov_b32 v%d, s52\nv_cmp_eq_u32 vcc, 3, v%d\ns_nop 1\nv_cndmask_b32 v%d, v%d, v%d, vcc"
            % (sWAVE, sWAVE, OOB >> 9, u1, u0, vCSW, vCSW, u1), 8),
          I(a, "v_and_b32 v%d, 15, v%d\nv_lshlrev_b32 v%d, 4, v%d\nv_and_b32 v%d, 1, v%d\nv_lshl_add_u32 v%d, v%d, 3, v%d\nv_lshrrev_b32 v%d, 1, v%d\nv_lshl_add_u32 v%d, v%d, 10, v%d"
            % (u0, vL, u0, u0, u1, vCSW, u0, u1, u0, vCSW, vCSW, vCSW, vCSW, u0), 6),
          I(a, "s_lshr_b32 s52, s%d, 1\ns_lshl_b32 s52, s52, 8\ns_and_b32 s60, s%d, 1\ns_lshl2_add_u32 s52, s60, s52\nv_add_u32 v%d, s52, v%d" % (sI, sI, vCSW, vCSW), 5)]
    marks = set()
    at(0, w_ + [("", lambda: marks.add(1))])
    pub = [I(a, "v_accvgpr_read_b32 v%d, a%d" % (u0, aCS))]
    for k, (lo, hi) in enumerate([("0xffff0000", "0"), ("0", "0xffff"), ("0", "0xffff0000")]):
        pub.append(I(a, "v_accvgpr_read_b32 v%d, a%d\ns_mov_b32 vcc_lo, %s\ns_mov_b32 vcc_hi, %s\nv_cndmask_b32 v%d, v%d, v%d, vcc" % (u1, aCS + 4 * (k + 1), lo, hi, u0, u0, u1), 4))
    pub += hilo(a, u0, u1, vCS0)
    pub.append(("M", lambda: a.vmem("buffer_store_dword v%d, v%d, %s, s%d offen %s" % (u0, vCSW, WSR, sCSB, SC), ("cs", 0))))
    at(3, pub)
    b_ = Asm(); rot_bases(b_, 4)
    at(7, Q(a, "\n".join(b_.lines)))
    bt[5] = ([("cs", 0)], signal(a, "s_lshl2_add_u32 s49, s%d, s%d" % (sI, sFC)))
    coff = "s_mov_b32 s49, s%d" % sFC
    at(10, poll_issue(a, coff, "plc") + stats_addr(a, vCS0) + stats_fetch(a, "a", aST, vCS0))
    ld = poll_check(a, coff, "plc", "0xff") + [I(a, "v_lshlrev_b32 v%d, 4, v%d" % (u0, vL))]
    for k in range(7):
        if k == 4: ld.append(I(a, "s_add_u32 s%d, s%d, 4096" % (sCSB, sCSB)))
        ld.append(("M", lambda k=k: a.vmem("buffer_load_dwordx4 %s, v%d, %s, s%d offen offset:%d %s" % (A(aCSA + 4 * k, 4), u0, WSR, sCSB, 1024 * (k % 4), SC), ("csa", 0))))
    ld += stats_check(a, "a", aST, vCS0, u1)
    for tt in range(4): ld.append(I(a, "v_accvgpr_mov_b32 a%d, a%d" % (aST + 4 * tt + 1, aST + 4 * tt)))
    at(13, ld)
    if CFG.pf in (1, 2, 3):
        pf = Q(a, """s_mul_i32 s52, s{I}, 3
            s_add_u32 s52, s52, s{W}
            s_mul_i32 s52, s52, {B}
            s_cmp_eq_u32 s{W}, 3
            s_cmov_b32 s52, 0x{O:x}
            v_lshlrev_b32 v{P}, 7, v{L}""".format(I=sI, P=vP2, L=vL, B=192 * 1152, W=sWAVE, O=OOB))
        pf = [(c, f) for c, f in Q(a, "\n".join(f.code for c, f in pf).replace("s52", "s7"))]
        at(CFG.pfa, pf)
        for k in range(5):
            at(min(CFG.pfa + (k + 1) // 2, 16), [VM(a, "buffer_load_dword a%d, v%d, s[%d:%d], s7 offen" % (aONE, vP2, rW2, rW2 + 3)), I(a, "s_add_u32 s7, s7, %d" % (8192 if k < 3 else 4096))])
    S_.prime()
    wjob = lambda kk: ("w", lambda: kk - 2 in visible, lambda: dma_issue(kk))
    S_.jobs += [wjob(2), wjob(3)]
    for p in range(2, 9): S_.jobs += [XS.job(p), wjob(2 * p), wjob(2 * p + 1)]
    for s, (kk, T) in enumerate(info):
        pre = []
        if T == 0 and kk < 18 and kk % 2 == 0: wlg(a, [("xr", kk // 2)])
        if VERB and T == 0: a.cm("HS attn %d" % kk)
        if T == 0 and kk % 2 == 0: stamp(a, 4 + kk // 2, 6)
        if s == 0: stamp(a, 3)
        if kk == 2: assert marks
        if kk == 18 and T == 9:
            assert not S_.extra
            wvm(a, [("csa", 0)], csa=7)
        if T == 9 and kk < 17:
            tags, aft = bt.pop(kk, ([], []))
            def bar(kk=kk, tags=tags):
                wvm(a, [("w", kk + 1)] + tags, w=6)
                a("s_barrier")
            pre.append(("B", bar))
            visible.add(kk + 1)
            S_.extra += aft
            if kk % 2 == 0 and kk // 2 + 1 < 9:
                p = kk // 2 + 1
                S_.extra += XS.reads(p)
            S_.extra += ev.pop(kk, [])
        S_.emit(pre)
    assert not S_.extra and not ev and not S_.jobs and not S_.mem
    if VERB: a.cm("END")
    RS = 296
    vq, vn, vI0, vI1 = 224, 225, 226, 227
    T8 = 232
    t0, t1, t2, t3 = 242, 243, 254, 255
    SCL = 250
    a("s_barrier")
    stamp(a, 4, 5)
    stamp(a, 2)
    for tt in range(4): a("v_accvgpr_read_b32 v%d, a%d" % (SCL + tt, aST + 4 * tt + 2))
    a("v_lshrrev_b32 v%d, 4, v%d" % (vq, vL))
    a("v_and_b32 v%d, 15, v%d" % (vn, vL))
    for tt in range(4): a("v_rcp_f32 v%d, v%d" % (SCL + tt, SCL + tt))
    a("s_lshl_b32 s52, s%d, 6" % sWAVE)
    a("v_add_u32 v%d, s52, v%d" % (t0, vn))
    a("v_mul_u32_u24 v%d, %d, v%d" % (t0, RS, t0))
    a("v_lshl_add_u32 v%d, v%d, 3, v%d" % (vI0, vq, t0))
    a("v_mul_u32_u24 v%d, 72, v%d" % (t1, vq))
    a("v_add3_u32 v%d, v%d, v%d, 64" % (vI1, t0, t1))
    for tt in range(4): a("v_mul_f32 v%d, %s, v%d" % (SCL + tt, f32(LOG2E), SCL + tt))
    a("s_mov_b32 s56, %s" % f32(1.0 / LOG2E))
    a("s_mov_b32 s57, s56")
    a("v_mov_b32 v228, %s" % f32(1e-6 * LOG2E))
    a("v_cmp_gt_u32 s[32:33], 2, v%d" % vq)
    def scale4(r, tt):
        b, o = SCL + (tt & 2), tt & 1
        for i in (0, 2): a("v_pk_mul_f32 v[%d:%d], v[%d:%d], v[%d:%d] op_sel:[0,%d] op_sel_hi:[1,%d]" % (r + i, r + i + 1, r + i, r + i + 1, b, b + 1, o, o))
    def phi4(r, t, keepm=None):
        for i in range(4): a("v_exp_f32_e64 v%d, v%d clamp" % (t + i, r + i))
        for i in range(4): a("v_max_f32 v%d, v%d, v228" % (t + 4 + i, r + i))
        d = r if keepm is None else t
        for i in range(0, 4, 2): a("v_pk_fma_f32 v[%d:%d], v[%d:%d], s[56:57], v[%d:%d]" % (d + i, d + i + 1, t + 4 + i, t + 5 + i, t + i, t + i + 1))
        if keepm is not None:
            for i in range(4): a("v_cndmask_b32 v%d, v%d, v%d, %s" % (r + i, r + i, t + i, keepm))
    def pack2(dst, r):
        a("v_cvt_pk_bf16_f32 v%d, v%d, v%d" % (dst, r, r + 1))
        a("v_cvt_pk_bf16_f32 v%d, v%d, v%d" % (dst + 1, r + 2, r + 3))
    h0off = "s_add_u32 s49, s5, %d" % (128 * FH)
    side = []
    def sprinkle():
        while side:
            t, f = side.pop(0); f()
            if t == "M": break
    a("v_mov_b32 v%d, 0x%x" % (t2, ONE2))
    a("v_mov_b32 v%d, 0x%x" % (t3, ONE2))
    for tt in range(4): a("ds_write_b64 v%d, v[%d:%d] offset:%d" % (t0, t2, t3, tt * 16 * RS + 288))
    for T in [13] + list(range(9, 13)) + list(range(5, 9)):
        for tt in (3, 2, 1, 0):
            r = acc(T, tt)
            if T != 13 and (T < 9 or tt % 2 == 0): sprinkle()
            scale4(r, tt)
            if 5 <= T < 9: phi4(r, T8)
            elif T == 13: phi4(r, T8, keepm="s[32:33]")
            pack2(r, r)
            if T == 13: a("ds_write_b64 v%d, v[%d:%d] offset:%d" % (vI1, r, r + 1, tt * 16 * RS))
            else:
                off = C0[(T - 5) % 4] * 8 + (144 if T >= 9 else 0)
                a("ds_write_b64 v%d, v[%d:%d] offset:%d" % (vI0, r, r + 1, tt * 16 * RS + off))
        if T == 13:
            run(p2.setup_vo(240, 241, "s_mov_b32 s52, s4", sXG))
            p2.free = list(range(10, 18))
            for u in p2.units[:8]: side += p2.dma_issue(*u)
            side += poll_issue(a, h0off, "pl0", 231)
    run(side); side = []
    stamp(a, 5, 5)
    vM, vLf, vB2 = 229, 230, 226
    a("v_bfe_u32 v%d, v%d, 2, 4" % (t0, vL))
    a("v_mul_u32_u24 v%d, %d, v%d" % (t0, RS, t0))
    a("v_and_b32 v%d, 3, v%d" % (t2, vL))
    a("s_lshl_b32 s52, s%d, 2" % sWAVE)
    a("s_lshr_b32 s49, s%d, 1" % sWAVE)
    a("s_add_u32 s52, s52, s49")
    a("v_cmp_eq_u32 vcc, s%d, v%d" % (sWAVE, t2))
    a("v_add_u32 v%d, s52, v%d" % (t3, t2))
    a("v_lshl_add_u32 v%d, v%d, 3, v%d" % (vM, t3, t0))
    a("s_lshl_b32 s52, s52, 3")
    a("s_add_u32 s52, s52, 32")
    a("v_add_u32 v%d, s52, v%d" % (vLf, t0))
    a("v_add_u32 v%d, 144, v%d" % (t3, t0))
    a("v_cndmask_b32 v%d, v%d, v%d, vcc" % (vB2, t3, vLf))
    a("v_cmp_eq_u32 s[34:35], s%d, v%d" % (sWAVE, vq))
    a.lg0()
    a("s_barrier")
    KC = 80
    FR = 96
    for k8 in range(8):
        if k8 == 4:
            for v_ in (vM, vLf, vB2): a("v_add_u32 v%d, %d, v%d" % (v_, 128 * RS, v_))
        if k8 == 7: a.wait_lg(lambda t: t == 0)
        for f, (base, off) in enumerate([(vM, 0), (vLf, 0), (vM, 144), (vB2, 144)]):
            for rd in range(2):
                r = FR + 16 * (k8 % 7) + 4 * f + 2 * rd
                a.lds("ds_read_b64_tr_b16 v[%d:%d], v%d offset:%d" % (r, r + 1, base, (32 * (k8 % 4) + 16 * rd) * RS + off), k8)
        for kq in ([k8 - 1] if k8 else []) + ([7] if k8 == 7 else []):
            a.wait_lg(lambda t: t == kq)
            b = FR + 16 * (kq % 7)
            for ci, (fa, fb) in enumerate([(b, b + 8), (b, b + 12), (b + 4, b + 8), (b + 4, b + 12)]):
                d = KC + 4 * ci
                a("%s %s, %s, %s, %s" % (MF, V(d, 4), V(fa, 4), V(fb, 4), "0" if kq == 0 else V(d, 4)))
    stamp(a, 6, 5)
    a("s_lshl_b32 s52, s%d, 5" % sXG)
    a("s_add_u32 s52, s52, s%d" % sWAVE)
    a("s_mul_i32 s6, s52, 3072")
    a("s_add_u32 s6, s6, %d" % KVP_OFF)
    a("s_mul_i32 s52, s%d, 12288" % sI)
    a("s_add_u32 s58, s6, s52")
    a("v_lshlrev_b32 v%d, 4, v%d" % (t0, vL))
    a("s_lshl_b32 s81, s%d, 7" % sXG)
    a("s_add_u32 s81, s81, %d" % FL(FKV))
    for i in range(4): a("v_cndmask_b32 v%d, v%d, v%d, s[34:35]" % (KC + 8 + i, KC + 12 + i, KC + 8 + i))
    for ci in range(3):
        a.vmem("buffer_store_dwordx4 %s, v%d, %s, s58 offen offset:%d %s" % (V(KC + 4 * ci, 4), t0, WSR, ci * 1024, SC), "kvp")
    run(poll_check(a, h0off, "pl0", "s71", 231))
    for st in range(CFG.ah): side += p2.h_issue(st)
    QF = 104
    def qphi(tt):
        for T in range(5):
            sprinkle()
            scale4(acc(T, tt), tt)
            phi4(acc(T, tt), T8)
        for h in range(4):
            if h % 2: sprinkle()
            pack2(QF + 16 * tt + 4 * h, acc(h, tt))
            pack2(QF + 16 * tt + 4 * h + 2, acc(4, tt))
    qphi(0); qphi(1)
    stamp(a, 7, 5)
    a.wait_vm(lambda t: t == "kvp")
    a("s_barrier")
    run(signal(a, "s_lshl2_add_u32 s49, s%d, s81" % sI))
    p2.free += list(range(10))
    for u in p2.units[8:3 * CFG.ah]: side += p2.dma_issue(*u)
    stamp(a, 8, 5)
    qphi(2); qphi(3)
    run(side); side = []
    run(poll_issue(a, "s_mov_b32 s49, s81", "plkv"))
    a("s_and_b32 s52, s%d, 1" % sWAVE)
    a("s_lshl_b32 s49, s52, 1")
    a("v_cmp_le_u32 s[32:33], s49, v%d" % vn)
    a("v_lshrrev_b32 v%d, 2, v%d" % (t2, vn))
    a("v_cmp_eq_u32 s[16:17], s%d, v%d" % (sWAVE, t2))
    a("v_and_b32 v%d, 3, v%d" % (t2, vn))
    a("s_add_u32 s49, s49, 2")
    a("v_cmp_gt_u32 vcc, s49, v%d" % t2)
    a("v_cmp_eq_u32 s[20:21], s%d, v%d" % (sWAVE, t2))
    a("s_and_b64 s[10:11], s[16:17], vcc")
    a("v_cmp_le_u32 s[74:75], s52, v%d" % vq)
    a("s_cmp_eq_u32 s52, 1")
    a("s_cselect_b64 s[76:77], s[34:35], 0")
    stamp(a, 9, 5)
    run(poll_check(a, "s_mov_b32 s49, s81", "plkv", "0xff"))
    stamp(a, 5)
    stamp(a, 10, 5)
    for i in range(8):
        a("s_add_u32 s58, s6, %d" % (i * 12288))
        for ci in range(3):
            a.vmem("buffer_load_dwordx4 %s, v%d, %s, s58 offen offset:%d %s" % (V(12 * i + 4 * ci, 4), t0, WSR, ci * 1024, SC), ("kv", i))
    for i in range(1, 8):
        a.wait_vm(lambda t: t == ("kv", i))
        if i == 1: stamp(a, 11, 5)
        for r in range(12): a("v_add_f32 v%d, v%d, v%d" % (r, r, 12 * i + r))
    stamp(a, 12, 5)
    pack2(12, 0); pack2(14, 4); pack2(16, 8)
    a("v_mov_b32 v18, v16"); a("v_mov_b32 v19, v17"); a("v_mov_b32 v20, v16"); a("v_mov_b32 v21, v17")
    a("s_bitcmp1_b32 s%d, 0" % sWAVE)
    a("s_cselect_b64 vcc, -1, 0")
    a("v_permlane16_swap_b32 v18, v20")
    a("v_permlane16_swap_b32 v19, v21")
    a("v_mov_b32_dpp v22, v14 row_ror:4 row_mask:0xf bank_mask:0xf")
    a("v_mov_b32_dpp v23, v15 row_ror:4 row_mask:0xf bank_mask:0xf")
    a("v_cndmask_b32 v18, v20, v18, vcc")
    a("v_cndmask_b32 v19, v21, v19, vcc")
    a("v_cndmask_b32 v22, v14, v22, s[16:17]")
    a("v_cndmask_b32 v23, v15, v23, s[16:17]")
    a("v_mov_b32_dpp v20, v18 row_ror:4 row_mask:0xf bank_mask:0xf")
    a("v_mov_b32_dpp v21, v19 row_ror:4 row_mask:0xf bank_mask:0xf")
    a("v_cndmask_b32 v20, v18, v20, s[16:17]")
    a("v_cndmask_b32 v21, v19, v21, s[16:17]")
    for f, (m, mainr, leftr) in enumerate([(32, 12, 16), (10, 14, 18), (20, 22, 20)]):
        for k, (src, extra) in enumerate([(mainr, 74), (mainr + 1, m), (leftr, 34), (leftr + 1, 76)]):
            a("s_and_b64 vcc, s[%d:%d], s[%d:%d]" % (m, m + 1, extra, extra + 1))
            a("v_cndmask_b32 v%d, 0, v%d, vcc" % (24 + 4 * f + k, src))
    a("s_mul_i32 s52, s%d, 3072" % sWAVE)
    a("v_add_u32 v%d, 0x25000, v%d" % (t0, t0))
    a("v_add_u32 v%d, s52, v%d" % (t1, t0))
    for f in range(3):
        a("ds_write_b128 v%d, %s offset:%d" % (t1, V(24 + 4 * f, 4), f * 1024))
    a("s_waitcnt lgkmcnt(0)")
    a("s_barrier")
    AF = 168
    for i in range(12):
        a("ds_read_b128 %s, v%d offset:%d" % (V(AF + 4 * i, 4), t0, i * 1024))
    a("s_lshl_b32 s52, s%d, 1" % sXG)
    a("s_add_u32 s52, s52, 144")
    a("s_mul_i32 s58, s52, %d" % KSTRIDE)
    a("s_add_u32 s58, s58, %d" % H_OFF)
    a("s_add_u32 s59, s58, %d" % KSTRIDE)
    a("s_lshr_b32 s52, s%d, 1" % sXG)
    a("s_add_u32 s52, s52, 160")
    a("s_mul_i32 s57, s52, %d" % KSTRIDE)
    a("s_and_b32 s52, s%d, 1" % sXG)
    a("s_lshl_b32 s52, s52, 3")
    a("s_add_u32 s57, s57, s52")
    a("s_add_u32 s57, s57, %d" % H_OFF)
    a("s_mov_b32 s56, %s" % f32(LOG2E))
    a("v_cmp_eq_u32 s[32:33], 1, v%d" % vq)
    a("v_cmp_eq_u32 s[34:35], 2, v%d" % vq)
    a("v_cmp_eq_u32 s[10:11], 3, v%d" % vq)
    a("s_waitcnt lgkmcnt(0)")
    for tt in range(4):
        o = 24 * tt
        for h in range(4):
            qf = V(QF + 16 * tt + 4 * h, 4)
            a("%s %s, %s, %s, 0" % (MF, V(o + 4 * h, 4), V(AF + 12 * h, 4), qf))
            a("%s %s, %s, %s, %s" % (MF, V(o + 16, 4), V(AF + 12 * h + 4, 4), qf, "0" if h == 0 else V(o + 16, 4)))
            a("%s %s, %s, %s, %s" % (MF, V(o + 20, 4), V(AF + 12 * h + 8, 4), qf, "0" if h == 0 else V(o + 20, 4)))
    stamp(a, 13, 5)
    a("s_nop 7")
    for tt in range(4):
        o = 24 * tt
        for h in range(4): a("v_fma_f32 v%d, v%d, s56, v228" % (o + 20 + h, o + 20 + h))
        for h in range(4): a("v_rcp_f32 v%d, v%d" % (o + 20 + h, o + 20 + h))
        a("s_nop 0")
        a("v_cndmask_b32 v%d, v%d, v%d, s[32:33]" % (T8 + 8, o + 20, o + 21))
        a("v_cndmask_b32 v%d, v%d, v%d, s[34:35]" % (T8 + 8, T8 + 8, o + 22))
        a("v_cndmask_b32 v%d, v%d, v%d, s[10:11]" % (T8 + 8, T8 + 8, o + 23))
        for h in range(4):
            b, sel = o + 20 + (h & 2), h & 1
            for i in (0, 2): a("v_pk_mul_f32 v[%d:%d], v[%d:%d], v[%d:%d] op_sel:[0,%d] op_sel_hi:[1,%d]" % (o + 4 * h + i, o + 4 * h + i + 1, o + 4 * h + i, o + 4 * h + i + 1, b, b + 1, sel, sel))
        for i in (0, 2): a("v_pk_mul_f32 v[%d:%d], v[%d:%d], v[%d:%d] op_sel_hi:[1,0]" % (o + 16 + i, o + 17 + i, o + 16 + i, o + 17 + i, T8 + 8, T8 + 9))
        pack2(o, o); pack2(o + 2, o + 4)
        pack2(o + 4, o + 8); pack2(o + 6, o + 12)
        pack2(o + 8, o + 16)
        a.vmem("buffer_store_dwordx4 %s, v%d, %s, s58 offen offset:%d %s" % (V(o, 4), vX, WSR, tt * 1024, SC), "o")
        a.vmem("buffer_store_dwordx4 %s, v%d, %s, s59 offen offset:%d %s" % (V(o + 4, 4), vX, WSR, tt * 1024, SC), "o")
        a.vmem("buffer_store_dwordx2 %s, v%d, %s, s57 offen offset:%d %s" % (V(o + 8, 2), vX, WSR, tt * 1024, SC), "o")
    for o_, n_ in zip(keep[:5], new[:5]): a("v_mov_b32 v%d, v%d" % (o_, n_))
    vL, vX, vFS, vFP, vTK, vPL = keep
    p2.setup_special(176, 177, 178)
    tr_addrs(a, 176, 177, 178)
    a("s_mul_i32 s%d, s70, 4160" % sPX)
    a("s_lshl2_add_u32 s81, s%d, s%d" % (sXG, sFI))
    a("s_mov_b32 s%d, s5" % sFI)
    a("s_mov_b32 s52, s%d" % sI)
    a("s_mov_b32 s%d, s%d" % (sI, sXG))
    a("s_mov_b32 s%d, s52" % sXG)
    osig = lambda: signal(a, "s_add_u32 s49, s81, %d" % (128 * FO))
    stamp(a, 14, 5)
    stamp(a, 6)
    lgo = a.newlabel("Lp2a")
    a("s_cmp_lt_u32 s%d, 6" % sXG)
    a("s_cbranch_scc1 %s" % lgo)
    a("s_waitcnt vmcnt(0)")
    a("s_barrier")
    keepvm = list(a.vm)
    run(osig())
    a.vm = keepvm
    a("s_branch L_fin_idle")
    a.label(lgo)
    hooks = {}
    def add(st, key, v): hooks.setdefault(st, {}).setdefault(key, []).extend(v)
    add(1, "bar", ["o"]); add(1, "after", osig())
    ooff = "s_add_u32 s49, s%d, %d" % (sFI, 128 * FO)
    NSA = len(steps)
    add(3, "after", poll_issue(a, ooff, "plo"))
    add(5, "after", poll_check(a, ooff, "plo", "s72") + [("", lambda: marks.add("o"))])
    wvm(a, [("w2", 0, k_) for k_ in range(3)])
    a("s_barrier")
    p2.visible.update((0, k_) for k_ in range(3))
    for k_ in [k_ for k_ in a.cnt if isinstance(k_, tuple) and k_[0] == "f"]: del a.cnt[k_]
    S_ = Stream(a, "v", WF)
    p2.add_slots(S_)
    S_.prime()
    S_.jobs += p2.jobs(CFG.ah, lambda st: True, lambda st: st < 12 or "o" in marks)
    p2.main(S_, hooks, [18, 19])

def spin(a, soff_code, mask, sleep):
    lp, ld = a.newlabel("Lw"), a.newlabel("Lw")
    a(soff_code)
    a("s_mov_b32 s59, 40000")
    a.label(lp)
    a("buffer_load_dword v%d, v%d, %s, s49 offen %s" % (vPL, vFP, WSR, SC))
    a("s_waitcnt vmcnt(0)")
    a("v_cmp_eq_u32 vcc, s%d, v%d" % (sTOK, vPL))
    a("s_andn2_b32 s61, %s, vcc_lo" % mask)
    a("s_cbranch_scc0 %s" % ld)
    a("s_sleep %d" % sleep)
    a("s_sub_u32 s59, s59, 1")
    a("s_cmp_lg_u32 s59, 0")
    a("s_cbranch_scc1 %s" % lp)
    a.label(ld)

def phase3(a):
    a.vm = []; a.lg = []
    CUR[0] = None
    a("s_cmp_eq_u32 s%d, 3" % sWAVE)
    a("s_cbranch_scc1 L_fin_poll")
    for k in range(3): fin_x(a, k)
    a("s_barrier")
    fin_loads(a, 0)
    fin_loads(a, 1)
    if CFG.sum0: fin_sum(a, 0)
    if not CFG.one: a("s_barrier")
    stamp(a, 14)
    fin_loads(a, 2)
    if not CFG.sum0: fin_sum(a, 0)
    fin_sum(a, 1)
    fin_sum(a, 2)
    a("s_branch L_done")
    a.label("L_fin_poll")
    a.vm = []
    if not CFG.one:
        spin(a, "s_add_u32 s49, s8, %d" % (128 * FP), "s73", CFG.slp0)
        a("s_barrier")
    spin(a, "s_add_u32 s49, s8, %d" % (128 * (FP + 16)), "s73", CFG.slp1)
    a("s_barrier")
    a("s_cmp_lg_u32 s2, 0")
    a("s_cbranch_scc1 L_done")
    a("s_mov_b32 s49, 0x%x" % FL(0))
    a("buffer_store_dword v%d, v%d, %s, s49 offen" % (vTK, vFS, WSR))
    a.label("L_done")

def fin_idle(a):
    a.label("L_fin_idle")
    a.vm = []; a.lg = []
    run(fin_setup(a))
    a("s_branch L_final")

def code_prefetch(a):
    a("s_getpc_b64 s[60:61]")
    l = a.newlabel("Lpc")
    a.label(l)
    a("s_sub_u32 s%d, s60, %s-%s" % (rW2, l, NAME))
    a("s_subb_u32 s%d, s61, 0" % (rW2 + 1))
    a("s_and_b32 s%d, s%d, 0xffff" % (rW2 + 1, rW2 + 1))
    a("s_mov_b32 s%d, L_code_end-%s" % (rW2 + 2, NAME))
    a("s_mov_b32 s%d, 0x20000" % (rW2 + 3))
    a("s_lshr_b32 s52, s2, 3")
    a("s_lshl_b32 s52, s52, 12")
    a("s_lshl_b32 s49, s%d, 10" % sWAVE)
    a("s_add_u32 s52, s52, s49")
    a("v_lshlrev_b32 v63, 4, v%d" % vL)
    a.vmem("buffer_load_dword v%d, v63, s[%d:%d], s52 offen" % (vPL, rW2, rW2 + 3), "pf")
    if CFG.tlb:
        a("s_lshl_b32 s49, s%d, 1" % sWAVE)
        a("s_cmp_eq_u32 s%d, 1" % sWAVE)
        a("s_cselect_b32 s60, s%d, s%d" % (sW2, sWS)); a("s_cselect_b32 s61, s%d, s%d" % (sW2 + 1, sWS + 1))
        a("s_mov_b32 s%d, %d" % (rWO + 2, PART_OFF + 5 * PSL)); a("s_cmov_b32 s%d, %d" % (rWO + 2, 4608 * 1152))
        a("s_cmp_eq_u32 s%d, 2" % sWAVE)
        a("s_cmov_b32 s60, s%d" % sWO); a("s_cmov_b32 s61, s%d" % (sWO + 1)); a("s_cmov_b32 s%d, %d" % (rWO + 2, 576 * 1152))
        a("s_cmp_eq_u32 s%d, 3" % sWAVE)
        a("s_cmov_b32 s60, s%d" % sOUT); a("s_cmov_b32 s61, s%d" % (sOUT + 1)); a("s_cmov_b32 s%d, %d" % (rWO + 2, 2048 * 1152))
        a("s_mov_b32 s%d, s60" % rWO)
        a("s_and_b32 s%d, s61, 0xffff" % (rWO + 1))
        a("s_mov_b32 s%d, 0x20000" % (rWO + 3))
        a("v_lshlrev_b32 v63, %d, v%d" % (CFG.tlb, vL))
        a("s_lshl_b32 s52, s2, 7")
        a.vmem("buffer_load_dword v%d, v63, s[%d:%d], s52 offen %s" % (vPL, rWO, rWO + 3, SC), "pf")

def build():
    a = Asm()
    a.raw("; @launch grid=(256,1,1) block=(256,1,1) lds=%d" % LDS_BYTES)
    a.raw('.amdgcn_target "amdgcn-amd-amdhsa--gfx950"')
    a.raw(".text")
    kernel_begin(a, NAME)
    a("s_cmp_ge_u32 s2, 256")
    a("s_cbranch_scc1 L_end")
    a("s_load_dwordx16 s[4:19], s[0:1], 0")
    a("s_load_dwordx4 s[20:23], s[0:1], 64")
    if CFG.stamp:
        for i in range(16): a("s_mov_b32 s%d, 0" % (84 + i))
        a("s_memtime s[100:101]" if CFG.clk else "s_memrealtime s[100:101]")
    a("v_and_b32 v%d, 63, v0" % vL)
    a("v_lshrrev_b32 v1, 6, v0")
    a("v_cmp_eq_u32 vcc, 0xc0, v0")
    a("v_readfirstlane_b32 s%d, v1" % sWAVE)
    a("v_mov_b32 v1, 0x%x" % OOB)
    a("s_lshr_b32 s%d, s2, 6" % sC)
    a("v_cndmask_b32 v%d, v1, v%d, vcc" % (vFS, vL))
    a("v_and_b32 v1, 31, v0")
    a("v_lshlrev_b32 v%d, 2, v1" % vFP)
    if CFG.mapping == 0:
        a("s_and_b32 s%d, s2, 7" % sXG)
        a("s_bfe_u32 s%d, s2, 0x30003" % sI)
    elif CFG.mapping == 1:
        a("s_and_b32 s%d, s2, 3" % sXG)
        a("s_bfe_u32 s52, s2, 0x10003")
        a("s_lshl1_add_u32 s%d, s%d, s52" % (sXG, sXG))
        a("s_and_b32 s%d, s2, 4" % sI)
        a("s_bfe_u32 s52, s2, 0x20004")
        a("s_add_u32 s%d, s%d, s52" % (sI, sI))
    elif CFG.mapping == 4:
        a("s_and_b32 s%d, s2, 3" % sXG)
        a("s_bfe_u32 s52, s2, 0x10003")
        a("s_lshl1_add_u32 s%d, s%d, s52" % (sXG, sXG))
        a("s_bfe_u32 s%d, s2, 0x20004" % sI)
        a("s_bfe_u32 s52, s2, 0x10002")
        a("s_lshl1_add_u32 s%d, s%d, s52" % (sI, sI))
    a("s_mul_i32 s%d, s%d, %d" % (sROT, sC, CFG.rotc))
    a("s_add_u32 s%d, s%d, s%d" % (sROT, sROT, sI))
    if CFG.mapping != 0 and CFG.rotc:
        a("s_and_b32 s52, s%d, 1" % sXG)
        a("s_add_u32 s%d, s%d, s52" % (sROT, sROT))
    a("s_cmp_ge_u32 s%d, 9" % sROT)
    a("s_cselect_b32 s52, 9, 0")
    a("s_sub_u32 s%d, s%d, s52" % (sROT, sROT))
    a("s_lshl_b32 s52, s%d, 14" % sI)
    a("s_lshl_b32 s49, s%d, 12" % sWAVE)
    a("s_add_u32 s52, s52, s49")
    a("v_lshl_add_u32 v%d, v%d, 4, s52" % (vX, vL))
    a("s_lshl_b32 s%d, s%d, 7" % (sFI, sI))
    a("s_add_u32 s%d, s%d, 0x%x" % (sFI, sFI, FLG_OFF))
    stats_load(a)
    a("s_mov_b32 s%d, 0x%x" % (rX + 2, 2048 * 1152))
    a("s_mov_b32 s%d, 0x20000" % (rX + 3))
    a("s_waitcnt lgkmcnt(0)")
    if CFG.stamp: a("s_mov_b32 s84, s100")
    a("s_mov_b32 s%d, s%d" % (rX, sX))
    a("s_and_b32 s%d, s%d, 0xffff" % (rX + 1, sX + 1))
    stats_issue(a)
    a("s_add_u32 s60, s%d, 0x%x" % (sWS, FL(0)))
    a("s_addc_u32 s61, s%d, 0" % (sWS + 1))
    a("s_load_dword s%d, s[60:61], 0" % sTOK)
    stamp(a, 6, 1)
    srd(a, rWS, sWS, WS_BYTES)
    vm0 = list(a.vm)
    a("s_cmp_eq_u32 s%d, 3" % sC)
    a("s_cbranch_scc1 L_attn")
    path_mlp(a)
    a.label("L_final")
    phase3(a)
    stamp_out(a)
    a.label("L_end")
    a("s_endpgm")
    a.vm = vm0; a.lg = []
    a.label("L_attn")
    path_attn(a)
    a("s_branch L_final")
    fin_idle(a)
    a.lines += LATER
    a.label("L_code_end")
    a("s_endpgm")
    a.raw('.section .rodata,"a"')
    a.raw(kernel_desc(NAME, 512, 256))
    return a.text()

if __name__ == "__main__":
    args = sys.argv[1:]
    out = "parallel_sum__linear_attn_block__glu_gated_swiglu__prompt.s"
    for x in args:
        if x == "--stamp": CFG.stamp = True
        elif x == "-v": VERB = True
        elif x == "--sc1": SC = "sc1"
        elif x == "--osc": OSC = " sc1"
        elif x == "--ont": OSC = " nt"
        elif "=" in x:
            k, v = x.split("="); assert hasattr(CFG, k), k; setattr(CFG, k, float(v) if "." in v else int(v))
        else: out = x
    open(out, "w").write(build())
    if CFG.stamp: open(out + ".slow", "w").write("\n".join(NSLOW))
```

```python
import sys, math
from lib import *

NAME = "parallel_sum__linear_attn_block__glu_gated_swiglu__prompt_kernel"
LOG2E = 1.4426950408889634
KSTRIDE = 131072
H_OFF = 18 * KSTRIDE
KVP_OFF = H_OFF + 164 * KSTRIDE
PART_OFF = KVP_OFF + 8 * 8 * 4 * 6 * 1024
PSL = 18 * KSTRIDE
FLG_OFF = 0x80000
ST_OFF = 0
CS_OFF = 0x10000
WS_BYTES = 268435456
OOB = 0x7f000000
LDS_BYTES = 163840
SC = "sc0 sc1"
OSC = ""
DFL = ""
def FL(line): return FLG_OFF + 128 * line
FH, FKV, FO, FC, FP = 16, 56, 64, 96, 128

sX, sWQKV, sWO, sW1, sW3, sW2, sOUT, sDBG, sWS = 4, 6, 8, 12, 14, 16, 18, 20, 22
rWS, rWA, rX, rW2, rWO = 24, 28, 36, 40, 44
sWAVE, sI, sXG, sC, sTOK = 48, 50, 51, 78, 79
sFI = 80
sXo, sWo, sXL, sOne2, sCSB, sFC, sROT = 32, 33, 34, 35, 82, 83, 81
MF = "v_mfma_f32_16x16x32_bf16"
MF16 = "v_mfma_f32_16x16x16_bf16"
WSR = "s[%d:%d]" % (rWS, rWS + 3)
XR = "s[%d:%d]" % (rX, rX + 3)
ONE2 = 0x3f803f80

VERB = False
class Cfg:
    stamp = False
    clk = 0
    mapping = 0
    split = 12
    kseq = 5
    sset = 0
    swave = 0
    pf = 4
    rotc = 0
    vmrate = 85
    epirate = 4.5
    age = 16
    window = 60
    tlb = 0
    ah = 4
    osplit = 0
    po = 5
    lean = 2
    boost = 3
    one = 0
    slp0 = 8
    slp1 = 2
    sum0 = 0
    hw = 1.0
    hrot = 2
    xlead = 2
    cs0 = 4
    cs1 = 4
    cs2 = 18
    cj1 = 8
    cj2 = 3
    pfw = 0
    pfa = 14
    pfs = 3
    init = 0
    cmode = 1
    cdel = 3
    sigd = 7
    gate1 = 35
    c00 = 16
    sig0 = 9
    p0 = 11
    k0 = 6
    gate2 = 68
    dbgwg = -1
    sbase = 0
    sstep = 2
    exs = 5
    edl = 56
    s4 = 6
    p4 = 8
    c4 = 9
    ofirst = 1
    relper = 4
    pfat = -2
CFG = Cfg()

def stamp(a, i, sset=0):
    if CFG.stamp and (sset == CFG.sset or i in (3, 15)):
        a("s_memtime s[100:101]" if CFG.clk else "s_memrealtime s[100:101]")
        a.lg0()
        a("s_mov_b32 s%d, s100" % (84 + i))
def stamp_out(a):
    if not CFG.stamp: return
    a("s_waitcnt vmcnt(0)")
    stamp(a, 15)
    l = a.newlabel("Lst")
    a("s_cmp_lg_u32 s%d, %d" % (sWAVE, CFG.swave))
    a("s_cbranch_scc1 %s" % l)
    a("s_lshl_b32 s3, s2, 6")
    a("s_add_u32 s3, s3, 0xF000000")
    a("v_mov_b32 v1, s3")
    a("s_mov_b64 exec, 1")
    for i in range(8):
        a("v_mov_b32 v2, s%d" % (84 + 2 * i))
        a("v_mov_b32 v3, s%d" % (85 + 2 * i))
        a("global_store_dwordx2 v1, v[2:3], s[%d:%d] offset:%d" % (sWS, sWS + 1, i * 8))
    if CFG.dbgwg >= 0:
        a("s_cmp_lg_u32 s2, %d" % CFG.dbgwg)
        a("s_cbranch_scc1 %s" % l)
        a("s_load_dwordx2 s[20:21], s[0:1], 64")
        a("s_waitcnt lgkmcnt(0)")
        a("v_mov_b32 v1, 0")
        for i in range(16):
            a("s_sub_u32 s3, s%d, s84" % (84 + i)) if i != 1 else a("s_mov_b32 s3, s85")
            a("v_mov_b32 v2, s3")
            a("global_store_dword v1, v2, s[20:21] offset:%d" % (4 * i))
    a.label(l)

vL, vX, vFS, vFP, vTK, vPL = 174, 175, 216, 217, 218, 219

NOPS = {"w": 2, "x": 8, "xr": 8, "csa": 2, "cs": 1, "h": 4, "w2": 2, "h2": 4, "part": 4, "ex": 8, "er": 8, "o": 12, "stf": 4}
CUR = [None]
def chk(a, tag, **over):
    k = tag if isinstance(tag, str) else tag[0]
    n = over.get(k, NOPS.get(k, 1))
    S_ = CUR[0]
    if a.cnt.get(tag, 0) < n and S_ is not None:
        if VERB: print("LATE", tag, a.cnt.get(tag, 0), file=sys.stderr)
        while a.cnt.get(tag, 0) < n:
            if k in ("x", "w", "w2", "h2"):
                assert not S_.inbar or S_.mem, ("needs space behind this barrier", tag)
                S_.refill()
                q = S_.mem
            elif k in ("h", "part", "ex"):
                S_.flush_epi(); continue
            else: q = S_.extra
            assert q, ("cannot produce", tag)
            q.pop(0)[1]()
    a.expect(tag, n)
def wvm(a, tags, **over):
    for t in tags: chk(a, t, **over)
    a.wait_vm(lambda t: t in tags)
def wlg(a, tags):
    for t in tags: chk(a, t)
    a.wait_lg(lambda t: t in tags)

def ityp(code):
    out = ""
    for l in code.split("\n"):
        op = l.strip().split(" ")[0]
        if not op: continue
        if op == "s_waitcnt": continue
        if op.startswith("s_"): out += "S"
        elif op.startswith(("v_exp", "v_rcp", "v_sqrt")): out += "T"
        elif op.startswith("v_"): out += "V"
        elif op.startswith("ds_read"): out += "D"
        elif op.startswith("ds_write"): out += "X"
        elif op.startswith("buffer_store_dwordx"): out += "O"
        else: out += "M"
    return out
def I(a, s, c=1):
    def fn(): a(s)
    fn.code = s
    return (ityp(s), fn)
def Q(a, code):
    out = []; ls = [l.strip() for l in code.split("\n") if l.strip()]
    i = 0
    while i < len(ls):
        grp = [ls[i]]
        if ls[i].startswith(("s_cmp", "s_bitcmp")):
            while i + 1 < len(ls) and ls[i + 1].startswith(("s_cmov", "s_cselect")):
                i += 1; grp.append(ls[i])
        out.append(I(a, "\n".join(grp), len(grp)))
        i += 1
    return out
def VM(a, fmt, tag=None, w=1.0):
    def fn(): a.vmem(fmt() if callable(fmt) else fmt, tag)
    fn.vm = w
    return (ityp(fmt), fn)
def run(fns):
    for c, fn in fns: fn()

def signal(a, soff_code, tag=None):
    return [I(a, soff_code),
            ("M", lambda: a.vmem("buffer_store_dword v%d, v%d, %s, s49 offen %s" % (vTK, vFS, WSR, SC), tag))]

LATER = []
NSLOW = []
def slow_path(a, body, name):
    ls, lb, lp = a.newlabel("Lslow"), a.newlabel("Lback"), a.newlabel("Lspin")
    a("s_cbranch_scc1 %s" % ls)
    a.label(lb)
    b = Asm()
    b.label(ls)
    b("s_mov_b32 s59, 40000")
    if CFG.stamp:
        NSLOW.append(name)
        b("s_or_b32 s85, s85, 0x%x" % (1 << (len(NSLOW) - 1)))
    b.label(lp)
    b("s_sleep 1")
    body(b)
    b("s_cbranch_scc0 %s" % lb)
    b("s_sub_u32 s59, s59, 1")
    b("s_cmp_lg_u32 s59, 0")
    b("s_cbranch_scc1 %s" % lp)
    b("s_branch %s" % lb)
    LATER.extend(b.lines)
def poll_issue(a, soff_code, tag, dst=None):
    return [I(a, soff_code),
            ("M", lambda: a.vmem("buffer_load_dword v%d, v%d, %s, s49 offen %s" % (dst or vPL, vFP, WSR, SC), tag))]
def poll_check(a, soff_code, tag, mask, dst=None):
    def f1():
        wvm(a, [tag])
        a("v_cmp_eq_u32 vcc, s%d, v%d" % (sTOK, dst or vPL))
    def f2():
        d = dst or vPL
        a("s_andn2_b32 s61, %s, vcc_lo" % mask)
        def body(b):
            b(soff_code)
            b("buffer_load_dword v%d, v%d, %s, s49 offen %s" % (d, vFP, WSR, SC))
            b("s_waitcnt vmcnt(0)")
            b("v_cmp_eq_u32 vcc, s%d, v%d" % (sTOK, d))
            b("s_andn2_b32 s61, %s, vcc_lo" % mask)
        slow_path(a, body, str(tag))
    return [("SV", f1), ("SS", f2)]
def poll_now(a, soff_code, mask):
    tag = ("poll", a.newlabel())
    run(poll_issue(a, soff_code, tag))
    run(poll_check(a, soff_code, tag, mask))

def stats_load(a):
    a("s_lshl_b32 s52, s2, 2")
    a("s_add_u32 s52, s52, s%d" % sWAVE)
    a("v_lshrrev_b32 v40, 5, v%d" % vL)
    a("v_lshl_add_u32 v40, s52, 1, v40")
    a("v_mul_u32_u24 v41, 1152, v40")
    a("v_and_b32 v42, 31, v%d" % vL)
    a("v_lshl_add_u32 v43, v42, 4, v41")
    a("v_cmp_gt_u32 vcc, 8, v42")
    a("v_mov_b32 v45, 0x%x" % OOB)
    a("v_lshlrev_b32 v40, 4, v40")
    a("v_cndmask_b32 v44, v45, v43, vcc")
    a("v_cmp_eq_u32 vcc, 0, v42")
def stats_issue(a):
    a.vmem("buffer_load_dwordx4 v[0:3], v43, %s, 0 offen" % XR, "ln")
    a.vmem("buffer_load_dwordx4 v[4:7], v43, %s, 0 offen offset:512" % XR, "ln")
    a.vmem("buffer_load_dwordx4 v[8:11], v44, %s, 0 offen offset:1024" % XR, "ln")
    a("v_cndmask_b32 v40, v45, v40, vcc")
def stats_compute(a):
    a("s_mov_b32 s49, 0x%x" % ONE2)
    a("s_waitcnt lgkmcnt(0)")
    a("s_add_u32 s%d, s%d, 1" % (sTOK, sTOK))
    a("v_mov_b32 v%d, s%d" % (vTK, sTOK))
    a("v_mov_b32 v17, s%d" % sTOK)
    a("v_mov_b32 v19, s%d" % sTOK)
    a.wait_vm(lambda t: t == "ln")
    for r in range(12):
        a("v_dot2_f32_bf16 v12, v%d, s49, %s" % (r, "0" if r == 0 else "v12"))
        a("v_dot2_f32_bf16 v13, v%d, v%d, %s" % (r, r, "0" if r == 0 else "v13"))
    a("s_mov_b32 s49, %d" % ST_OFF)
    a("s_nop 1")
    for ror in (1, 2, 4, 8):
        a("v_add_f32_dpp v12, v12, v12 row_ror:%d row_mask:0xf bank_mask:0xf" % ror)
        a("v_add_f32_dpp v13, v13, v13 row_ror:%d row_mask:0xf bank_mask:0xf" % ror)
        a("s_nop 0")
    a("v_mov_b32 v14, v12")
    a("v_mov_b32 v15, v13")
    a("s_nop 1")
    a("v_permlane16_swap_b32 v12, v14")
    a("v_permlane16_swap_b32 v13, v15")
    a("s_nop 0")
    a("v_add_f32 v12, v12, v14")
    a("v_add_f32 v13, v13, v15")
    a("v_mul_f32 v12, %s, v12" % f32(1.0 / 576))
    a("v_mul_f32 v13, %s, v13" % f32(1.0 / 576))
    a("v_fma_f32 v13, -v12, v12, v13")
    a("v_max_f32 v13, 0, v13")
    a("v_cvt_pk_bf16_f32 v13, v13, v13")
    a("v_cvt_pk_bf16_f32 v16, -v12, -v12")
    a("v_and_b32 v13, 0xffff0000, v13")
    a("v_add_f32 v13, %s, v13" % f32(1e-5))
    a("v_cvt_pk_bf16_f32 v13, v13, v13")
    a("v_and_b32 v13, 0xffff0000, v13")
    a("v_sqrt_f32 v13, v13")
    a("s_nop 0")
    a("v_cvt_pk_bf16_f32 v13, v13, v13")
    a("v_and_b32 v18, 0xffff0000, v13")
    a.vmem("buffer_store_dwordx4 v[16:19], v40, %s, s49 offen %s" % (WSR, SC), "st")

def lane_fields(a, vq, vrow, vc):
    a("v_lshrrev_b32 v%d, 4, v%d" % (vq, vL))
    a("v_bfe_u32 v%d, v%d, 2, 3" % (vrow, vL))
    a("v_and_b32 v%d, 3, v%d" % (vc, vL))

def dma_lane_off(a, vD, t0, t1, rowbytes, perm=False):
    return [I(a, "v_lshrrev_b32 v%d, 3, v%d" % (t0, vL)),
            I(a, "v_and_b32 v%d, 6, v%d" % (t1, t0)),
            I(a, "v_xor_b32 v%d, v%d, v%d" % (t1, t1, vL)),
            I(a, "v_and_b32 v%d, 7, v%d" % (t1, t1))] + \
           ([I(a, "v_and_b32 v%d, 4, v%d" % (vD, t0)), I(a, "v_add_u32 v%d, v%d, v%d" % (t0, t0, vD))] if perm else []) + [
            I(a, "v_mul_u32_u24 v%d, %d, v%d" % (t0, rowbytes, t0)),
            I(a, "v_lshl_add_u32 v%d, v%d, 4, v%d" % (vD, t1, t0))]

RA = 160
def tr_addrs(a, t0, t1, t2):
    lane_fields(a, t0, t1, t2)
    a("v_lshrrev_b32 v%d, 1, v%d" % (t0, t0))
    a("v_lshlrev_b32 v%d, 10, v%d" % (t0, t0))
    a("v_lshl_add_u32 v%d, v%d, 7, v%d" % (t0, t1, t0))
    a("v_lshl_add_u32 v%d, v%d, 3, v%d" % (t0, t2, t0))
    a("v_lshrrev_b32 v%d, 1, v%d" % (t1, t1))
    for u in range(4):
        a("v_xor_b32 v%d, %d, v%d" % (t2, u, t1))
        a("v_lshl_add_u32 v%d, v%d, 5, v%d" % (RA + u, t2, t0))
        a("v_add_u32 v%d, 0x10000, v%d" % (RA + 4 + u, RA + u))
        a("v_add_u32 v%d, 0x20000, v%d" % (RA + 8 + u, RA + u))

class XStage:
    def __init__(self, a, XO, XA, base, R, reg):
        self.a, self.XO, self.XA, self.base, self.R, self.reg = a, XO, XA, base, R, reg
    def setup_dma(self, t0, t1):
        a = self.a
        a("v_lshrrev_b32 v%d, 3, v%d" % (t0, vL))
        a("v_lshrrev_b32 v%d, 1, v%d" % (t1, t0))
        a("v_xor_b32 v%d, v%d, v%d" % (t1, t1, vL))
        a("v_and_b32 v%d, 7, v%d" % (t1, t1))
        a("s_lshl_b32 s52, s%d, 8" % sI)
        a("s_lshl_b32 s49, s%d, 6" % sWAVE)
        a("s_add_u32 s52, s52, s49")
        a("v_add_u32 v%d, s52, v%d" % (t0, t0))
        a("v_mul_u32_u24 v%d, 1152, v%d" % (t0, t0))
        a("v_lshl_add_u32 v%d, v%d, 4, v%d" % (self.XO, t1, t0))
        a("v_xor_b32 v%d, 64, v%d" % (self.XO + 1, self.XO))
        a("v_add_u32 v%d, %d, v%d" % (self.XO + 2, 2 * (8 * 1152 - 1024), self.XO))
        a("v_add_u32 v%d, %d, v%d" % (self.XO + 3, 3 * (8 * 1152 - 1024), self.XO + 1))
        a("v_add_u32 v%d, %d, v%d" % (self.XO + 1, 8 * 1152 - 1024, self.XO + 1))
        a("s_mul_i32 s%d, s%d, %d" % (sXL, sWAVE, self.R * 8192))
        a("s_add_u32 s%d, s%d, %d" % (sXL, sXL, self.base))
        a("s_lshl_b32 s%d, s%d, 7" % (sXo, sROT))
    def setup_read(self, t0, t1, t2):
        a = self.a
        a("v_and_b32 v%d, 15, v%d" % (t0, vL))
        a("v_lshrrev_b32 v%d, 1, v%d" % (t1, t0))
        a("v_lshrrev_b32 v%d, 4, v%d" % (t2, vL))
        a("v_xor_b32 v%d, v%d, v%d" % (t1, t1, t2))
        a("v_lshlrev_b32 v%d, 7, v%d" % (t0, t0))
        a("v_lshl_add_u32 v%d, v%d, 4, v%d" % (t0, t1, t0))
        a("v_add_u32 v%d, s%d, v%d" % (self.XA, sXL, t0))
        a("v_xor_b32 v%d, 64, v%d" % (self.XA + 1, self.XA))
    def dma(self, p):
        a = self.a
        fns = []
        if p >= self.R: fns.append(("S", lambda: wlg(a, [("xr", p - self.R)])))
        for hf in range(2):
            fns.append(I(a, "s_add_u32 m0, s%d, %d" % (sXL, (p % self.R) * 8192 + hf * 4096)))
            fns.append(I(a, "s_add_u32 s54, s%d, %d" % (sXo, hf * 32 * 1152)))
            for b in range(4):
                fns.append(VM(a, "buffer_load_dwordx4 v%d, %s, s54 offen offset:%d lds" % (self.XO + b, XR, b * 1024), ("x", p)))
        fns.append(I(a, "s_add_u32 s%d, s%d, 128\ns_cmp_ge_u32 s%d, 1152\ns_cmov_b32 s%d, 0" % (sXo, sXo, sXo, sXo), 3))
        return fns
    def job(self, p):
        return ("x", lambda: p < self.R or self.a.cnt.get(("xr", p - self.R), 0) == 8, lambda: self.dma(p))
    def reads(self, p):
        a = self.a
        fns = [("S", lambda: wvm(a, [("x", p)]))]
        for e in range(2):
            for tt in range(4):
                k, b = self.reg(2 * p + e, tt)
                fns.append(("D", lambda k=k, b=b, e=e, tt=tt: a.lds("ds_read_b128 %s, v%d offset:%d" % (R(k, b, 4), self.XA + e, (p % self.R) * 8192 + tt * 2048), ("xr", p))))
        return fns

class Stream:
    def __init__(self, a, kind, base):
        self.a, self.kind, self.base = a, kind, base
        self.slots = []; self.ring = []
        self.nring = 0
        self.next_rd = 0
        self.epi = []; self.deadline = 0; self.epiP = None; self.hold = 0; self.edone = {}; self.short = False
        self.extra = []
        self.inbar = False
        CUR[0] = self
        self.vmacc = 1.0; self.vmrate = CFG.vmrate / 100.0
        self.jobs = []; self.mem = []
        self.pos = 0
    def refill(self):
        if self.mem: return
        blocked = set()
        for j, (cl, ready, make) in enumerate(self.jobs):
            if cl in blocked: continue
            if len(self.a.vm) <= 50 and ready():
                self.mem = make(); self.jobs.pop(j); return
            blocked.add(cl)
    def head(self, q):
        if q and "\n" in getattr(q[0][1], "code", "") and not getattr(q[0][1], "atom", False):
            parts = Q(self.a, q[0][1].code)
            for c, f in parts: f.atom = True
            q[0:1] = parts
        return q[0] if q else None
    def add(self, rd, mf):
        self.slots.append((rd, mf))
        self.ring.append(self.nring if rd else None)
        if rd: self.nring += 1
    def cur_ring(self, s):
        while s < len(self.slots) and self.ring[s] is None: s += 1
        return self.ring[s] if s < len(self.slots) else self.nring
    def read_limit(self, s):
        return self.cur_ring(s) + 4
    def pending_reads(self, lim):
        out = []
        while self.next_rd < len(self.slots):
            n = self.next_rd
            if self.ring[n] is None: self.next_rd += 1; continue
            if self.ring[n] > lim: break
            out += self.slots[n][0](self.kind, self.base + 4 * (self.ring[n] % 8), ("f", self.ring[n]))
            self.next_rd += 1
        return out
    def prime(self): run(self.pending_reads(self.cur_ring(self.pos) + 3))
    def set_epi(self, items, deadline, hold=0, ordered=True):
        assert not self.epi
        ops = []
        for n, it in enumerate(items):
            deps = set()
            if ordered:
                if n: deps.add(n - 1)
            else:
                rd, wr = set(it[2]), set(it[3])
                for m in range(n):
                    if (rd | wr) & set(items[m][3]) or wr & set(items[m][2]): deps.add(m)
            ops.append([it[0], it[1], deps, n])
        self.epi = ops; self.edone = {}; self.deadline = deadline; self.hold = self.pos + hold
    def epi_cost(self): return sum(2 if o[0] in "TMOX" and o[0] else len(o[0]) for o in self.epi)
    def epi_pick(self, fits, strict=True):
        if self.pos < self.hold or (strict and self.short): return None
        for o in self.epi[:CFG.window]:
            ok = True
            for d in o[2]:
                if d not in self.edone: ok = False; break
                t, at = self.edone[d]
                if (t == "T" or strict) and t in ("T", "V") and o[0] in ("T", "V") and self.a.n - at < 1: ok = False; break
            if ok and fits(o[0]): return o
        return None
    def epi_run(self, o):
        self.epi.remove(o); o[1](); self.edone[o[3]] = (o[0], self.a.n)
    def flush_epi(self):
        while self.epi:
            o = self.epi_pick(lambda t: True, False)
            if o is None: self.a("s_nop 0"); continue
            self.epi_run(o)
    def emit(self, pre=(), push=0):
        a = self.a
        s = self.pos
        rd, mf = self.slots[s]
        r = self.ring[s]
        if r is not None: a.wait_lg(lambda t: t == ("f", r))
        mfmas = mf(R(self.kind, self.base + 4 * (r % 8), 4) if r is not None else None)
        n = len(mfmas)
        must = list(pre) + (self.pending_reads(self.read_limit(s)) if n == 4 else [])
        self.short = n < 4
        force = 0
        if self.epi and s >= self.hold and (n == 4 or self.deadline - s <= 1):
            left = max(self.deadline - s, 1)
            force = self.epi_cost() - int((left - 1) * CFG.epirate)
            if left * CFG.epirate < self.epi_cost(): force = math.ceil(self.epi_cost() / left)
        if n == 4: self.vmacc = min(self.vmacc + self.vmrate, 2.0)
        cost0 = self.epi_cost()
        for g, m in enumerate(mfmas):
            a(m)
            st = {"pos": 0, "vec": False, "bar": False}
            def place(t, commit=False):
                pos, vec, bar = st["pos"], st["vec"], st["bar"]
                for c in t:
                    if c == "B": pos += 2; bar = True
                    elif c == "S": pos += 1
                    elif c == "D":
                        if vec or bar: return False
                        pos = max(pos, 1) + 1; vec = True
                    elif c == "V": pos = max(pos, 1) + 1; vec = True
                    elif c == "T":
                        pos = max(pos, 1) + 2; vec = True
                    elif c == "M":
                        if pos: return False
                        pos = 3; vec = True
                    elif c == "O":
                        if pos: return False
                        pos = 2; vec = True
                    elif c == "X":
                        if vec or pos > 1: return False
                        pos = 3; vec = True
                if pos > 3: return False
                if commit: st["pos"], st["vec"], st["bar"] = pos, vec, bar
                return True
            def take(lst):
                t, f = lst.pop(0); place(t, True); f()
                if getattr(f, "vm", False): self.vmacc -= f.vm
            free_q = n == 4 and not any(t == "B" for t, f in must)
            nd = sum(1 for t, f in must if t == "D")
            want_d = nd > 0 and (nd >= n - g or g % 2 == 0 or nd > (n - g) // 2)
            def heads():
                out = []
                if not any(t == "B" for t, f in must):
                    self.refill()
                    for lst in (self.mem, self.extra):
                        h = self.head(lst)
                        if h is None: continue
                        if lst is self.mem and getattr(h[1], "vm", False) and self.vmacc < 1: continue
                        out.append(lst)
                return out
            def drop_free():
                ch = True
                while ch:
                    ch = False
                    for lst in heads():
                        if lst[0][0] == "": take(lst); ch = True
                    o = self.epi_pick(lambda t: t == "") if free_q or not must or must[0][0] != "B" else None
                    if o: self.epi_run(o); ch = True
            while must and must[0][0] == "B":
                self.inbar = True; take(must); self.inbar = False
            st["w"] = False
            if g == n - 1 and n == 4:
                nx = self.cur_ring(s + 1)
                if ("f", nx) in a.lg and a.cnt.get(("f", nx), 0) % 2 == 0:
                    two = a.cnt.get(("f", nx + 1), 0) == 2
                    a.wait_lg(lambda t: t == ("f", nx) or (two and t == ("f", nx + 1))); st["w"] = True
            drop_free()
            done_heavy = False
            if not want_d and not (must and must[0][0] == "V"):
                for lst in heads():
                    if lst[0][0] in ("M", "O") and place(lst[0][0]): take(lst); done_heavy = True; break
                if not done_heavy:
                    o = self.epi_pick(lambda t: t in ("O", "M", "X") and place(t))
                    if o: place(o[0], True); self.epi_run(o); done_heavy = True
            if not done_heavy:
                if st["w"]: place("S", True)
                if st["pos"] == 0:
                    for lst in heads():
                        if lst[0][0] == "S" or (lst[0][0] in ("SS", "SV") and not want_d): take(lst); break
                    else:
                        o = self.epi_pick(lambda t: t == "S")
                        if o: place("S", True); self.epi_run(o)
                    drop_free()
                if must and must[0][0] == "D" and want_d and place("D"): take(must)
                elif not want_d:
                    for lst in heads():
                        if lst[0][0] == "D" and place("D"): take(lst); break
                    else:
                        o = self.epi_pick(lambda t: t == "D" and place(t))
                        if o: place("D", True); self.epi_run(o)
            while True:
                drop_free()
                if must and must[0][0] == "V" and place("V"): take(must); continue
                for lst in heads():
                    if lst[0][0] and set(lst[0][0]) <= set("SVT") and place(lst[0][0]): take(lst); break
                else:
                    o = self.epi_pick(lambda t: t == "T" and place(t)) or self.epi_pick(lambda t: t in ("V", "S") and place(t))
                    if o is None: break
                    place(o[0], True); self.epi_run(o)
            want = force * (g + 1) / n
            while self.epi and cost0 - self.epi_cost() < want:
                o = self.epi_pick(lambda t: t in ("V", "T", "S", "") or g == n - 1, False)
                if o is None: break
                self.epi_run(o)
            if g == n - 1:
                while must: must.pop(0)[1]()
                k = push
                while k > 0 and self.head(self.extra): self.extra.pop(0)[1](); k -= 1
        self.pos += 1

def tr_read(a, off_fn, u):
    def rd(kind, reg, tag):
        off = off_fn()
        return [("D", lambda h=h: a.lds("ds_read_b64_tr_b16 %s, v%d offset:%d" % (R(kind, reg + 2 * h, 2), RA + 4 * (off >> 16) + u, (off & 0xffff) + h * 2048), tag)) for h in range(2)]
    return rd

WF = 128
HRING = 10
GORDER = [2, 1, 0]
def acc2(c, tt):
    g, k = c >> 2, c & 3
    if k >= 2: return ("a", 160 + 32 * g + 16 * (k - 2) + 4 * tt)
    return ("v", (32 * g if g < 2 else 224) + 16 * k + 4 * tt)
def hr(st, tt): return A(16 * (st % HRING) + 4 * tt, 4)
sPX = 56
vEW, vER = 195, 196
HB = {0: 12, 1: 13, 2: 62}
WB = {0: 14, 1: 15, 2: 3}
def rot_bases(a, other):
    if CFG.hrot == 2:
        a("s_add_u32 s61, s68, s%d" % other)
        a("s_mul_i32 s60, s61, 43")
        a("s_lshr_b32 s60, s60, 7")
        a("s_mul_i32 s60, s60, 3")
        a("s_sub_u32 s61, s61, s60")
    else: a("s_mov_b32 s61, s68")
    for k in range(3):
        if CFG.hrot:
            a("s_add_u32 s52, s61, %d" % k)
            a("s_cmp_ge_u32 s52, 3")
            a("s_cselect_b32 s60, 3, 0")
            a("s_sub_u32 s52, s52, s60")
        else: a("s_mov_b32 s52, %d" % k)
        a("s_mul_i32 s60, s52, %d" % (192 * 1152))
        a("s_add_u32 s%d, s63, s60" % WB[k])
        a("s_mul_i32 s60, s52, %d" % (6 * KSTRIDE))
        a("s_add_u32 s%d, s62, s60" % HB[k])

class P2:
    def __init__(self, a, steps, VO, VS, VX):
        self.a = a; self.steps = steps; self.VO = VO; self.VS = VS; self.VX = VX
        self.loc = {}
        self.free = []
        self.visible = set()
        self.cur = 0
        self.swapped = False
        NS, K = len(steps), CFG.kseq
        self.order = [(st, c) for st in range(NS - K) for c in range(12)]
        self.seq0 = len(self.order)
        for g in GORDER:
            for c0 in (4 * g + 2, 4 * g):
                self.order += [(st, c) for st in range(NS - K, NS) for c in (c0, c0 + 1)]
        self.units = []
        for st, c in self.order:
            if (st, c >> 2) not in self.units: self.units.append((st, c >> 2))
    def setup_s(self):
        a = self.a
        srd(a, rW2, sW2, 4608 * 1152)
        srd(a, rWO, sWO, 576 * 1152)
        a("s_lshl_b32 s66, s%d, 11" % sWAVE)
    def setup_vo(self, t0, t1, half_code, sTile=sI):
        a = self.a
        return dma_lane_off(a, self.VO, t0, t1, 1152) + Q(a, """s_mul_i32 s52, s68, 384
            s_and_b32 s60, s{W}, 1
            s_mul_i32 s60, s60, {R16}
            s_add_u32 s52, s52, s60
            v_add_u32 v{VO}, s52, v{VO}
            v_add_u32 v{VO1}, {D}, v{VO}
            {HALF}
            s_lshl_b32 s9, s52, 10
            s_add_u32 s9, s9, s69
            s_lshl1_add_u32 s52, s{I}, s52
            s_and_b32 s60, s{W}, 1
            s_lshl1_add_u32 s52, s52, s60
            s_lshl_b32 s52, s52, 12
            v_lshl_add_u32 v{VX}, v{L}, 4, s52""".format(W=sWAVE, R16=16 * 1152, VO=self.VO, VO1=self.VO + 1, D=8 * 1152 - 1024, HALF=half_code, I=sTile, VX=self.VX, L=vL))
    def setup_special(self, t0, t1, t3):
        a = self.a
        for k in range(2):
            a("s_and_b32 s49, s%d, 1" % sWAVE)
            a("s_lshl_b32 s49, s49, 4")
            a("v_lshrrev_b32 v%d, 3, v%d" % (t0, vL))
            a("v_add3_u32 v%d, s49, v%d, %d" % (t0, t0, 8 * k))
            a("v_lshrrev_b32 v%d, 4, v%d" % (t1, t0))
            a("v_mul_u32_u24 v%d, 72, v%d" % (t1, t1))
            a("v_bfe_u32 v%d, v%d, 2, 2" % (t3, t0))
            a("v_lshl_add_u32 v%d, v%d, 4, v%d" % (t1, t3, t1))
            a("v_lshrrev_b32 v%d, 1, v%d" % (t3, t3))
            a("v_lshl_add_u32 v%d, v%d, 2, v%d" % (t1, t3, t1))
            a("v_and_b32 v%d, 3, v%d" % (t3, t0))
            a("v_add3_u32 v%d, v%d, v%d, 16" % (t1, t1, t3))
            a("v_sub_u32 v%d, v%d, v%d" % (t1, t1, t0))
            a("v_mul_u32_u24 v%d, 1152, v%d" % (t1, t1))
            a("v_add_u32 v%d, v%d, v%d" % (self.VS + k, self.VO + k, t1))
    def h_issue(self, st):
        a = self.a
        pl, row, kind = self.steps[st]
        fns = [I(a, "s_add_u32 s54, s%d, %d" % (HB[kind] if kind in HB else (7 if kind == "woa" else 64), pl * KSTRIDE))]
        for tt in range(4):
            fns.append(VM(a, "buffer_load_dwordx4 %s, v%d, %s, s54 offen offset:%d %s" % (hr(st, tt), self.VX, WSR, tt * 1024, SC), ("h2", st), CFG.hw))
        return fns
    def dma_issue(self, st, ln):
        a = self.a
        pl, row, kind = self.steps[st]
        r = rW2 if kind in HB else rWO
        vo = self.VS if kind == "wos" else self.VO
        sl = self.free.pop(0)
        self.loc[(st, ln)] = sl
        return [I(a, "s_add_u32 m0, s66, %d" % (sl * 8192)),
                I(a, "s_add_u32 s55, s%d, %d" % (WB[kind] if kind in WB else 65, row * 1152 + ln * 128)),
                VM(a, "buffer_load_dwordx4 v%d, s[%d:%d], s55 offen lds" % (vo, r, r + 3), ("w2", st, ln)),
                VM(a, "buffer_load_dwordx4 v%d, s[%d:%d], s55 offen offset:1024 lds" % (vo + 1, r, r + 3), ("w2", st, ln))]
    def jobs(self, first, w_ok, h_ok):
        out = []; hs = set(range(first))
        for st, ln in self.units:
            if st < first: continue
            if st not in hs:
                hs.add(st)
                out.append(("h2", lambda st=st: st - HRING < self.cur and h_ok(st), lambda st=st: self.h_issue(st)))
            out.append(("w2", lambda st=st: len(self.free) > self.reserve and w_ok(st), lambda st=st, ln=ln: self.dma_issue(st, ln)))
        return out
    reserve = 0
    def add_slots(self, S_):
        a = self.a
        self.s0 = len(S_.slots)
        fixed = set()
        for st, c in self.order:
            def rd(kind, reg, tag, st=st, c=c):
                assert (st, c >> 2) in self.visible, (st, c)
                off = self.loc[(st, c >> 2)] * 8192
                ra = RA + 4 * (off >> 16) + (c & 3)
                out = []
                if ra not in fixed:
                    fixed.add(ra); out.append(I(a, "v_xor_b32 v%d, s%d, v%d" % (ra, sPX, ra)))
                return out + tr_read(a, lambda: off, c & 3)(kind, reg, tag)
            def mf(w, st=st, c=c):
                return ["%s %s, %s, %s, %s" % (MF, R(*acc2(c, tt), 4), w, hr(st, tt), "0" if st == 0 else R(*acc2(c, tt), 4)) for tt in range(4)]
            S_.add(rd, mf)
    def exchange(self, g, slots, packed=False):
        a = self.a
        send = []; recv = []; fin = []
        def adj(q, reg, cur, want):
            if cur[0] != want: q.append(I(a, "v_add_u32 v%d, 0x%x, v%d" % (reg, (want - cur[0]) & 0xffffffff, reg))); cur[0] = want
        slots = sorted(slots)
        for k in range(8):
            off = slots[k >> 1] * 8192 + (k & 1) * 4096
            adj(send, vEW, self.ew, off & ~0xffff)
            send.append(("X", lambda k=k, off=off: a.lds("ds_write_b128 v%d, %s offset:%d" % (vEW, R(*acc2(4 * g + 2 + (k & 1), k >> 1), 4), off & 0xffff), ("ex", g))))
            adj(recv, vER, self.er, off & ~0xffff)
            recv.append(("D", lambda k=k, off=off: a.lds("ds_read_b128 %s, v%d offset:%d" % (V(64 + 4 * k, 4), vER, off & 0xffff), ("er", g))))
        fin.append(I(a, "s_add_u32 s58, s67, %d" % (2 * g * KSTRIDE)) + ([], ["s58"]))
        for tt in range(4):
            r0, r1 = acc2(4 * g, tt)[1], acc2(4 * g + 1, tt)[1]
            for r, t in ((r0, 64 + 8 * tt), (r1, 68 + 8 * tt)):
                if packed:
                    for i in (0, 2): fin.append(I(a, "v_pk_add_f32 %s, %s, %s" % (V(r + i, 2), V(r + i, 2), V(t + i, 2))) + ([], []))
                else:
                    for i in range(4): fin.append(I(a, "v_add_f32 v%d, v%d, v%d" % (r + i, r + i, t + i)) + ([r + i], [r + i]))
            for d, s0 in ((r0, r0), (r0 + 1, r0 + 2), (r0 + 2, r1), (r0 + 3, r1 + 2)):
                fin.append(I(a, "v_cvt_pk_bf16_f32 v%d, v%d, v%d" % (d, s0, s0 + 1)) + ([s0, s0 + 1], [d]))
            fin.append(VM(a, "buffer_store_dwordx4 %s, v%d, %s, s58 offen offset:%d %s" % (V(r0, 4), self.VX, WSR, tt * 1024, SC), ("part", g)) + ([r0, r0 + 1, r0 + 2, r0 + 3, "s58"], []))
        return send, recv, fin
    def main(self, S_, hooks, dead0):
        a = self.a
        NS, K = len(self.steps), CFG.kseq
        PL, HL = 4 * K, 2 * K
        XB_ = HL + 2 + CFG.exs
        seen = set()
        self.ew = [0]; self.er = [0]
        def psig(k): return signal(a, "s_add_u32 s49, s9, %d" % (128 * (FP + 16 * k)))
        bars = [s for s, (st, c) in enumerate(self.order) if s < self.seq0 and c == 7]
        for ps in range(3): bars += [self.seq0 + ps * PL + x for x in (2, XB_)]
        last = {}
        for s, (st, c) in enumerate(self.order): last[(st, c >> 2)] = s
        freed = set()
        ex = {}
        for s, (st, c) in enumerate(self.order):
            if st not in seen:
                seen.add(st)
                self.cur = st
                if VERB: a.cm("HS p2 step %d" % st)
                if st < 11: stamp(a, 4 + st, 3)
                wvm(a, [("h2", st)])
                if st in (0, 8): stamp(a, 10 + st // 8)
            pre = []
            r = s - self.seq0
            if VERB and r > 0 and r % HL == 0: a.cm("HS p2 half %d" % (r // HL))
            if r >= -24 and r % 12 == 0 and r < 0: stamp(a, 6 + r // 12, 4)
            if r >= 0 and r % HL == 0: stamp(a, 6 + r // HL, 4)
            if r == -36: self.reserve = 4
            k, x = (r // PL, r % PL) if r >= 0 else (-1, -1)
            if s in bars:
                nxt = min([b for b in bars if b > s] + [len(self.order)])
                lim = S_.read_limit(self.s0 + nxt - 1) - S_.ring[self.s0]
                need = []
                for st2, c2 in self.order[:lim + 1]:
                    u = (st2, c2 >> 2)
                    if u not in self.visible and u not in need: need.append(u)
                hk = hooks.get(st, {}) if r < 0 else {}
                tags = [("w2",) + u for u in need] + hk.get("bar", [])
                lg = []
                aft = list(hk.get("after", []))
                dead = [u for u in last if last[u] < s and u not in freed]
                newfree = [self.loc[u] for u in dead] + (dead0 if s == bars[0] else [])
                if x == 2 and k > 0:
                    lg.append(("er", GORDER[k - 1]))
                if x == XB_:
                    lg.append(("ex", GORDER[k])); aft += ex[k][1]
                if tags or lg or aft or (newfree and S_.jobs):
                    def bar(tags=tags, lg=lg):
                        wlg(a, lg); wvm(a, tags)
                        a("s_barrier")
                    pre.append(("B", bar))
                    self.visible.update(need); freed.update(dead); self.free += newfree
                    S_.extra += aft
            if x == 3 and k > 0: S_.set_epi(ex[k - 1][2], S_.pos + HL - 2, 0, False)
            if x == HL + 2:
                if k == 0:
                    self.scratch = self.free[:4]; self.free = self.free[4:]; self.reserve = 0
                ex[k] = self.exchange(GORDER[k], self.scratch, k == 2)
                S_.set_epi(ex[k][0], S_.pos + CFG.exs)
            if r == -20: S_.extra += fin_setup(a)
            S_.emit(pre)
        assert not S_.epi and not S_.jobs and not S_.mem
        run(S_.extra); S_.extra = []
        if VERB: a.cm("END")
        stamp(a, 12); stamp(a, 12, 4)
        wlg(a, [("er", GORDER[2])])
        a("s_nop 5")
        for it in ex[2][2]: it[1]()
        stamp(a, 13, 4)
        if not CFG.one:
            wvm(a, [("part", GORDER[1])])
            a("s_barrier")
            run(psig(0))
        stamp(a, 14, 4)
        wvm(a, [("part", GORDER[2])])
        a("s_barrier")
        run(psig(1))
        stamp(a, 13)

NSL = 5
PB = [96, 116, 32]
XB, SUM = 144, 224
vFA, vFB = 192, 193
def fin_setup(a):
    code = """s_lshl_b32 s52, s{XG}, 2
    s_add_u32 s52, s52, s{C}
    s_lshr_b32 s73, s52, 1
    s_lshl_b32 s74, s{I}, 4
    s_add_u32 s73, s73, s74
    s_and_b32 s52, s52, 1
    s_mul_i32 s74, s{W}, 6
    s_add_u32 s52, s52, s74
    s_lshl_b32 s74, s52, 17
    s_lshl_b32 s75, s73, 10
    s_add_u32 s74, s74, s75
    s_add_u32 s74, s74, {PART}
    s_mul_i32 s75, s73, {ROW}
    s_lshl_b32 s52, s52, 6
    s_add_u32 s75, s75, s52
    v_lshlrev_b32 v{FA}, 4, v{L}
    v_and_b32 v{FB}, 15, v{L}
    v_mul_u32_u24 v{FB}, 1152, v{FB}
    v_lshrrev_b32 v194, 4, v{L}
    v_lshl_add_u32 v{FB}, v194, 3, v{FB}
    s_lshr_b32 s52, s{XG}, 2
    s_lshl_b32 s8, s52, 10
    s_add_u32 s8, s8, s{FI}
    s_mul_i32 s52, s52, 3
    s_lshl_b32 s73, 0x071c71c7, s52
    s_lshl_b32 s52, s{W}, 10
    v_add_u32 v{EW}, s52, v{FA}
    v_xor_b32 v{ER}, 0x800, v{EW}
    s_mov_b32 s76, 0x3f80
    s_mov_b32 s77, 0x3f800000""".format(EW=vEW, ER=vER, FI=sFI, XG=sXG, C=sC, I=sI, W=sWAVE, PART=PART_OFF, ROW=16 * 1152, FA=vFA, FB=vFB, L=vL)
    q = [I(a, l) for l in code.split("\n")]
    q.append(I(a, "s_cmp_eq_u32 s%d, 3\ns_cmov_b32 s74, 0x%x\ns_cmov_b32 s75, 0x%x" % (sWAVE, OOB, OOB), 3))
    b_ = Asm(); srd(b_, rWA, sOUT, 2048 * 1152)
    q += Q(a, "\n".join(b_.lines))
    return q
def fin_x(a, k):
    g = GORDER[k]
    a.vmem("buffer_load_dwordx2 %s, v%d, %s, s75 offen offset:%d" % (V(XB + 4 * k, 2), vFB, XR, 128 * g), ("x3", k))
    a.vmem("buffer_load_dwordx2 %s, v%d, %s, s75 offen offset:%d" % (V(XB + 4 * k + 2, 2), vFB, XR, 128 * g + 32), ("x3", k))
def fin_loads(a, k):
    g = GORDER[k]
    a("s_add_u32 s58, s74, %d" % (2 * g * KSTRIDE))
    for r in range(NSL):
        a.vmem("buffer_load_dwordx4 %s, v%d, %s, s58 offen %s" % (V(PB[k] + 4 * r, 4), vFA, WSR, SC), ("p", k, r))
        if r < NSL - 1: a("s_add_u32 s58, s58, %d" % PSL)
def fin_sum(a, k):
    g = GORDER[k]
    OR = "s[%d:%d]" % (rWA, rWA + 3)
    a.wait_vm(lambda t: t == ("x3", k))
    for i in range(4):
        a("v_lshlrev_b32 v%d, 16, v%d" % (SUM + 8 * k + 2 * i, XB + 4 * k + i))
        a("v_and_b32 v%d, 0xffff0000, v%d" % (SUM + 8 * k + 2 * i + 1, XB + 4 * k + i))
    for r in range(NSL):
        a.wait_vm(lambda t: t == ("p", k, r))
        for i in range(4):
            p = PB[k] + 4 * r + i
            s_ = SUM + 8 * k + 2 * i
            a("v_dot2_f32_bf16 v%d, v%d, s76, v%d" % (s_, p, s_))
            a("v_dot2_f32_bf16 v%d, v%d, s77, v%d" % (s_ + 1, p, s_ + 1))
    a("s_nop 2")
    for i in range(4):
        a("v_cvt_pk_bf16_f32 v%d, v%d, v%d" % (XB + 4 * k + i, SUM + 8 * k + 2 * i, SUM + 8 * k + 2 * i + 1))
    a.vmem("buffer_store_dwordx2 %s, v%d, %s, s75 offen offset:%d%s" % (V(XB + 4 * k, 2), vFB, OR, 128 * g, OSC))
    a.vmem("buffer_store_dwordx2 %s, v%d, %s, s75 offen offset:%d%s" % (V(XB + 4 * k + 2, 2), vFB, OR, 128 * g + 32, OSC))

def hilo(a, v, t0, t1):
    return [I(a, "v_cvt_pk_bf16_f32 v%d, v%d, v%d" % (t0, v, v)),
            I(a, "v_and_b32 v%d, 0xffff0000, v%d" % (t0, t0)),
            I(a, "v_sub_f32 v%d, v%d, v%d" % (t1, v, t0)),
            I(a, "v_cvt_pk_bf16_f32 v%d, v%d, v%d" % (v, t0, t1))]

def stats_fetch(a, kind, base, vaddr):
    fns = [I(a, "s_mov_b32 s49, %d" % ST_OFF)]
    for tt in range(4):
        fns.append(("M", lambda tt=tt: a.vmem("buffer_load_dwordx4 %s, v%d, %s, s49 offen offset:%d %s" % (R(kind, base + 4 * tt, 4), vaddr, WSR, 256 * tt, SC), "stf")))
    return fns
def stats_check(a, kind, base, vaddr, t0):
    code = []
    for n, r in enumerate([base + 4 * tt + k for tt in range(4) for k in (1, 3)]):
        if kind == "a":
            code.append("v_accvgpr_read_b32 v%d, a%d" % (t0, r)); r = t0
        if n == 0: code.append("v_cmp_eq_u32 s[60:61], s%d, v%d" % (sTOK, r))
        else: code += ["v_cmp_eq_u32 vcc, s%d, v%d" % (sTOK, r), "s_and_b64 s[60:61], s[60:61], vcc"]
    def last():
        a("s_cmp_lg_u64 s[60:61], -1")
        def body(b):
            b("s_mov_b32 s49, %d" % ST_OFF)
            for tt in range(4):
                b("buffer_load_dwordx4 %s, v%d, %s, s49 offen offset:%d %s" % (R(kind, base + 4 * tt, 4), vaddr, WSR, 256 * tt, SC))
            b("s_waitcnt vmcnt(0)")
            b("\n".join(code))
            b("s_cmp_lg_u64 s[60:61], -1")
        slow_path(a, body, "stats")
    return [("S", lambda: wvm(a, ["stf"]))] + [I(a, c) for c in code] + [("SS", last)]
def stats_addr(a, dst):
    return [I(a, "v_and_b32 v%d, 15, v%d" % (dst, vL)),
            I(a, "s_lshl_b32 s52, s%d, 12\ns_lshl_b32 s60, s%d, 10\ns_add_u32 s52, s52, s60\nv_lshl_add_u32 v%d, v%d, 4, s52" % (sI, sWAVE, dst, dst), 4)]

def path_mlp(a):
    vD, TMP, HS, ONES, CSA, ST = 172, 176, 184, 188, 192, 200
    vCSR, vCSW, vCSL, vP2 = 220, 221, 222, 223
    def xreg(kk, tt):
        i = kk * 4 + tt
        return ("a", 4 * i) if i < 64 else ("v", 224 + 4 * (i - 64))
    def xr(kk, tt): return R(*xreg(kk, tt), 4)
    def acc(P, ti, tt): return 64 * P + 16 * ti + 4 * tt
    t0, t1, t2, t3 = 64, 65, 66, 67
    XS = XStage(a, TMP, TMP + 4, 8 * 8192, 3, xreg)
    WLIM = 576 * 9216
    loc = {}
    WT = [sWo, 4, 5, 6, 7, 10, 11, 20, 21]
    issued_at = {}; now = [0]
    free = list(range(8))
    def dma_issue(L, kk):
        sl = free.pop(0); loc[(L, kk)] = sl
        fns = [I(a, "s_add_u32 m0, s53, %d" % (sl * 8192)),
               I(a, "s_add_u32 s55, s%d, %d" % (WT[kk >> 1], (kk & 1) * 32 * 9216 + L * 128)),
               VM(a, "buffer_load_dwordx4 v%d, s[%d:%d], s55 offen lds" % (vD, rWA, rWA + 3), ("w", L, kk)),
               VM(a, "buffer_load_dwordx4 v%d, s[%d:%d], s55 offen offset:1024 lds" % (vD + 1, rWA, rWA + 3), ("w", L, kk))]
        if kk & 1 and L == 0 and kk < 17:
            o, n_ = WT[kk >> 1], WT[(kk >> 1) + 1]
            fns.append(I(a, "s_add_u32 s%d, s%d, %d\ns_cmp_ge_u32 s%d, %d\ns_cmov_b32 s%d, 0" % (n_, o, 64 * 9216, n_, WLIM, n_), 3))
        issued_at[(L, kk)] = now[0]
        return fns
    def c_issue(L, k):
        key = (10 + L, k)
        sl = free.pop(0); loc[key] = sl
        issued_at[key] = now[0]
        ld = lambda v, o: VM(a, "buffer_load_dwordx4 v%d, s[%d:%d], s55 offen%s lds" % (v, rWA, rWA + 3, o), ("w",) + key)
        if k < 2:
            return [I(a, "s_add_u32 m0, s53, %d" % (sl * 8192)), I(a, "s_add_u32 s55, s%d, %d" % (sWo, k * 32 * 9216 + L * 128)), ld(vD, ""), ld(vD + 1, " offset:1024")]
        return [I(a, "s_add_u32 m0, s53, %d" % (sl * 8192)), I(a, "s_lshr_b32 s55, s%d, 2" % sWo), I(a, "s_add_u32 s55, s55, %d" % (512 * 9216 + 128)), ld(vD, ""),
                I(a, "s_sub_u32 s55, s55, %d" % (16 * 9216 - 128)), ld(vD + 1, " offset:1024")]
    assert CFG.rotc == 0
    XS.setup_dma(t0, t1)
    run(XS.dma(0))
    a("s_cmp_ge_u32 s%d, 2" % sWAVE)
    a("s_cselect_b32 s%d, s%d, s%d" % (rWA, sW3, sW1))
    a("s_cselect_b32 s%d, s%d, s%d" % (rWA + 1, sW3 + 1, sW1 + 1))
    a("s_and_b32 s%d, s%d, 0xffff" % (rWA + 1, rWA + 1))
    a("s_mov_b32 s%d, %d" % (rWA + 2, WLIM))
    a("s_mov_b32 s%d, 0x20000" % (rWA + 3))
    a("s_mul_i32 s70, s%d, 3" % sXG)
    a("s_add_u32 s70, s70, s%d" % sC)
    run(dma_lane_off(a, vD, t0, t1, 9216, True))
    a("s_mul_i32 s52, s70, 384")
    a("s_and_b32 s49, s%d, 1" % sWAVE)
    a("s_mul_i32 s49, s49, %d" % (4 * 9216))
    a("s_add_u32 s52, s52, s49")
    a("v_add_u32 v%d, s52, v%d" % (vD, vD))
    a("v_add_u32 v%d, %d, v%d" % (vD + 1, 16 * 9216 - 1024, vD))
    a("s_lshl_b32 s53, s%d, 11" % sWAVE)
    a("s_mul_i32 s%d, s%d, %d" % (sWo, sROT, 64 * 9216))
    for kk in range(2 if CFG.lean else 4): run(dma_issue(0, kk))
    code_prefetch(a)
    if not CFG.lean: run(XS.dma(1))
    if CFG.init >= 1: run(c_issue(1, 0) + c_issue(1, 1) + c_issue(0, 2))
    if CFG.init >= 2: run(XS.dma(2))
    stamp(a, 4, 1)
    st_ = [(r, 32 * r, k) for r in range(1, 6) for k in range(3)]; so_ = [(0, 0, "wo"), (1, 36, "wo")][:2 - CFG.osplit]
    p2 = P2(a, st_[:12] + so_ + st_[12:] if CFG.ofirst else st_ + so_, vD, None, vCSR)
    XS.setup_read(t0, t1, t2)
    tr_addrs(a, t0, t1, t2)
    a("v_xor_b32 v%d, s%d, v%d" % (t2, sWAVE, t1))
    a("v_lshl_add_u32 v%d, v%d, 5, v%d" % (vCSR, t2, t0))
    a("s_mov_b32 s68, s%d" % sC)
    p2.setup_s()
    a("s_lshr_b32 s60, s%d, 1" % sWAVE)
    a("s_mul_i32 s%d, s60, 4160" % sPX)
    a("s_and_b32 s49, s%d, 6" % sXG)
    a("s_add_u32 s49, s49, s60")
    a("s_mul_i32 s62, s49, %d" % (18 * KSTRIDE))
    a("s_add_u32 s62, s62, %d" % H_OFF)
    a("s_mul_i32 s63, s49, %d" % (576 * 1152))
    a("s_mul_i32 s64, s49, %d" % (2 * KSTRIDE))
    a("s_add_u32 s64, s64, %d" % (H_OFF + 144 * KSTRIDE))
    a("s_mul_i32 s65, s49, %d" % (72 * 1152))
    a("s_mul_i32 s57, s70, %d" % (6 * KSTRIDE))
    a("s_add_u32 s57, s57, %d" % H_OFF)
    a("s_lshr_b32 s52, s%d, 1" % sXG)
    a("s_mul_i32 s52, s52, 3")
    a("s_add_u32 s52, s52, s%d" % sC)
    a("s_mul_i32 s52, s52, 6")
    a("s_add_u32 s52, s52, s60")
    a("s_lshl_b32 s67, s52, 17")
    a("s_add_u32 s67, s67, %d" % PART_OFF)
    a("s_lshl2_add_u32 s69, s70, s%d" % sFI)
    a("s_mul_i32 s52, s49, 3")
    a("s_lshl_b32 s71, 7, s52")
    a("s_lshl_b32 s72, 1, s49")
    a("s_mul_i32 s%d, s70, 12288" % sCSB)
    a("s_add_u32 s%d, s%d, %d" % (sCSB, sCSB, CS_OFF))
    a("s_lshl_b32 s%d, s70, 7" % sFC)
    a("s_add_u32 s%d, s%d, 0x%x" % (sFC, sFC, FL(FC)))
    b_ = Asm(); rot_bases(b_, sI)
    late2 = Q(a, "\n".join(b_.lines))
    late = []
    L_ = lambda s, c=1: late.append(I(a, s, c))
    u0, u1 = CSA, CSA + 1
    L_("v_and_b32 v%d, 15, v%d" % (u0, vL))
    L_("v_lshlrev_b32 v%d, 4, v%d" % (u0, u0))
    L_("v_lshrrev_b32 v%d, 4, v%d" % (u1, vL))
    L_("v_lshlrev_b32 v%d, 4, v%d" % (vCSL, vL))
    L_("v_lshl_add_u32 v%d, v%d, 10, v%d" % (vCSW, u1, u0))
    L_("s_lshr_b32 s52, s%d, 1\ns_lshl_b32 s52, s52, 11\ns_and_b32 s60, s%d, 1\ns_lshl_b32 s60, s60, 3\ns_add_u32 s52, s52, s60\n"
       "s_lshr_b32 s60, s%d, 1\ns_lshl_b32 s60, s60, 8\ns_add_u32 s52, s52, s60\ns_and_b32 s60, s%d, 1\ns_lshl2_add_u32 s52, s60, s52\n"
       "v_add_u32 v%d, s52, v%d" % (sWAVE, sWAVE, sI, sI, vCSW, vCSW), 11)
    L_("v_cmp_gt_u32 vcc, 32, v%d\nv_mov_b32 v%d, 0x%x\ns_nop 0\nv_cndmask_b32 v%d, v%d, v%d, vcc" % (vL, u0, OOB, vCSW, u0, vCSW), 4)
    L_("s_cmp_eq_u32 s%d, 7\ns_cselect_b32 s%d, 0x%x, 0" % (sI, sOne2, ONE2), 2)
    CSL, ONL, ONH, ON7 = [224, 240, 248], HS, 232, 236
    for i in range(4):
        late.insert(0, I(a, "v_mov_b32 v%d, 0x%x" % (ONES + i, ONE2)))
        L_("v_mov_b32 v%d, s%d" % (ON7 + i, sOne2))
    for i in range(4):
        L_("v_cndmask_b32 v%d, 0, v%d, vcc" % (ONL + i, ONES))
        L_("v_xor_b32 v%d, v%d, v%d" % (ONH + i, ONL + i, ONES))
    run(late); run(late2)
    if CFG.lean == 1: run(XS.dma(1) + dma_issue(0, 2) + dma_issue(0, 3))
    stamp(a, 7, 1)
    stats_compute(a)
    stamp(a, 5, 1)
    run(XS.reads(0))
    a.wait_vm(lambda t: t == ("w", 0, 1))
    a("s_barrier")
    SPLIT = CFG.split
    seq = []
    for kk in range(SPLIT): seq += [("mm", 0, 0, kk), ("mm", 0, 1, kk)]
    seq += [("mm", 0, 0, kk) for kk in range(SPLIT, 18)] + [("mm", 0, 1, kk) for kk in range(SPLIT, 18)]
    for L in (1, 2):
        for P in (0, 1): seq += [("mm", L, P, kk) for kk in range(18)]
    def after(key, new): seq.insert(seq.index(key) + 1, new)
    after(("mm", 0, 0, CFG.c00), ("corr", 0, 0))
    for L in range(3): after(("mm", L, 1, 17), ("corr", L, 1))
    if CFG.cmode == 1 and CFG.cdel >= 0: after(("mm", 1, 1, CFG.cdel), ("corr", 1, 0))
    else: after(("mm", 1, 0, 17), ("corr", 1, 0))
    after(("mm", 2, 0, 17), ("corr", 2, 0))
    cs_steps = {0: [((0, 0), ONES), ((0, 1), ONES), ((0, 2), ON7), ((0, 3), ON7)],
                1: [((11, 0), ONES), ((11, 1), ONES), ((10, 2), ONL)], 2: [((12, 0), ONES), ((12, 1), ONES), ((10, 2), ONH)]}
    cs_at = {0: CFG.cs0, 1: CFG.cs1, 2: CFG.cs2}
    attach = {}
    if CFG.cmode == 1:
        CSL[1], CSL[2] = TMP, CSA
        n1 = seq.index(("corr", 0, 1)) + 1
        cs_at[1] = cs_at[2] = n1 + 1
        attach[seq[n1]] = [(1, k, (1, k), ONES, mat) for k in range(2) for mat in range(2)]
        attach[seq[n1 + 1]] = [(2, k, (2, k), ONES, mat) for k in range(2) for mat in range(2)]
        attach[seq[n1 + 2]] = [(1, 2, (10, 2), ONL, 0), (1, 2, (10, 2), ONL, 1), (2, 2, (10, 2), -ONES, 0), (2, 2, (10, 2), ONES, 1)]
    for L in range(3 if CFG.cmode == 0 else 1):
        its = [(L, k, sl, on, mat) for k, (sl, on) in enumerate(cs_steps[L]) for mat in range(2)]
        attach[seq[cs_at[L]]] = its[:4]; attach[seq[cs_at[L] + 1]] = its[4:]
    NH = len(seq)
    idx = {k: n for n, k in enumerate(seq)}
    visible = set([(0, 0), (0, 1)])
    S_ = Stream(a, "v", WF)
    first_slot = []
    csr = [0]
    def slabs_of(e):
        if e[0] == "mm": return [(e[1], e[3])] + [x[2] for x in attach.get(e, [])]
        return []
    for e in seq:
        first_slot.append(len(S_.slots))
        if e[0] == "mm":
            _, L, P, kk = e
            att = list(attach.get(e, []))
            for ti in (0, 2, 1, 3):
                def off(L=L, kk=kk, ti=ti):
                    assert (L, kk) in visible, (L, kk)
                    return loc[(L, kk)] * 8192 + (ti >> 1) * 4096
                def mf(w, P=P, ti=ti, kk=kk):
                    return ["%s %s, %s, %s, %s" % (MF, V(acc(P, ti, tt), 4), w, xr(kk, tt), "0" if kk == 0 else V(acc(P, ti, tt), 4)) for tt in range(4)]
                S_.add(tr_read(a, off, 2 * P + (ti & 1)), mf)
                if att:
                    cl, k, sl, on, mat = att.pop(0); CS = CSL[cl]
                    def rd(kind, reg, tag, sl=sl, mat=mat):
                        assert sl in visible
                        out = []
                        d = loc[sl] * 8192 - csr[0]; csr[0] += d
                        if d: out.append(I(a, "v_add_u32 v%d, 0x%x, v%d" % (vCSR, d & 0xffffffff, vCSR)))
                        return out + [("D", lambda h=h: a.lds("ds_read_b64_tr_b16 %s, v%d offset:%d" % (V(reg + 2 * h, 2), vCSR, mat * 4096 + h * 2048), tag)) for h in range(2)]
                    S_.add(rd, lambda w, k=k, on=on, mat=mat, CS=CS: [("".join("v_xor_b32 v%d, v%d, v%d\n" % (ONES + i, ONES + i, ONL) for i in range(4)) + "s_nop 1\n" if on < 0 else "") + "%s %s, %s, %s, %s" % (MF, V(CS + 4 * mat, 4), V(abs(on), 4), w, "0" if k == 0 else V(CS + 4 * mat, 4))])
        elif e[0] == "corr":
            _, L, P = e
            for ti in range(4):
                S_.add(None, lambda w, P=P, ti=ti: ["%s %s, %s, %s, %s" % (MF16, V(acc(P, ti, tt), 4), V(CSA + 2 * ti, 2), V(ST + 4 * tt, 2), V(acc(P, ti, tt), 4)) for tt in range(4)])
    first_slot.append(len(S_.slots))
    p2.add_slots(S_)
    def epilogue(L, P):
        q = [I(a, "s_add_u32 s58, s57, %d" % ((2 * L + P) * KSTRIDE)) + ([], ["s58"])]
        for tt in range(4):
            rs, cc = ST + 4 * tt + 2, ST + 4 * tt + 3
            o = acc(P, 2, tt)
            gu = [(acc(P, half, tt) + i, acc(P, 2 + half, tt) + i) for half in range(2) for i in range(4)]
            for g, u in gu:
                q.append(I(a, "v_mul_f32 v%d, v%d, v%d" % (u, g, u)) + ([g, u], [u]))
                q.append(I(a, "v_mul_f32 v%d, v%d, v%d" % (g, g, rs)) + ([g], [g]))
            for g, u in gu: q.append(I(a, "v_exp_f32 v%d, v%d" % (g, g)) + ([g], [g]))
            for g, u in gu: q.append(I(a, "v_fma_f32 v%d, v%d, v%d, v%d" % (g, g, cc, cc)) + ([g], [g]))
            for g, u in gu: q.append(I(a, "v_rcp_f32 v%d, v%d" % (g, g)) + ([g], [g]))
            for g, u in gu: q.append(I(a, "v_mul_f32 v%d, v%d, v%d" % (g, g, u)) + ([g, u], [g]))
            for k in range(4):
                g = gu[2 * k][0]
                q.append(I(a, "v_cvt_pk_bf16_f32 v%d, v%d, v%d" % (o + k, g, g + 1)) + ([g, g + 1], [o + k]))
            q.append(VM(a, "buffer_store_dwordx4 %s, v%d, %s, s58 offen offset:%d %s" % (V(o, 4), vX, WSR, tt * 1024, SC), ("h", L, P)) + ([o, o + 1, o + 2, o + 3, "s58"], []))
        return q
    last_use = {}
    for n, e in enumerate(seq):
        for sl in slabs_of(e): last_use[sl] = n
    lastP = {}
    for n, e in enumerate(seq):
        if e[0] != "cs": lastP[e[1:3]] = n
    marks = set()
    def mark(m): return ("", lambda: marks.add(m))
    released = set()
    def hsig(stage): return signal(a, "s_add_u32 s49, s69, %d" % (128 * (FH + 8 * stage)))
    def hoff(stage): return "s_add_u32 s49, s%d, %d" % (sFI, 128 * (FH + 8 * stage))
    coff = "s_mov_b32 s49, s%d" % sFC
    def csa_load(L, P):
        return [I(a, "s_add_u32 s49, s%d, %d" % (sCSB, L * 4096 + P * 2048))] + \
               [("M", lambda k=k: a.vmem("buffer_load_dwordx4 %s, v%d, %s, s49 offen offset:%d %s" % (V(CSA + 4 * k, 4), vCSL, WSR, 1024 * k, SC), ("csa", L, P))) for k in range(2)]
    def cs_publish(L):
        CS = CSL[L]
        return [I(a, "s_mov_b32 vcc_lo, 0xffff0000\ns_mov_b32 vcc_hi, 0\nv_cndmask_b32 v%d, v%d, v%d, vcc" % (CS, CS, CS + 4), 3)] + hilo(a, CS, CS + 1, CS + 2) + \
               [I(a, "s_add_u32 s49, s%d, %d" % (sCSB, L * 4096)),
                ("M", lambda: a.vmem("buffer_store_dword v%d, v%d, %s, s49 offen %s" % (CS, vCSW, WSR, SC), ("cs", L))), mark(("pub", L))]
    ev = {}
    bar_tags = {}
    def at(n, fns): ev.setdefault(n, []).extend(fns)
    def sig_after(n, tag, fns):
        n |= 1
        bar_tags.setdefault(n, ([], []))
        bar_tags[n][0].append(tag); bar_tags[n][1].extend(fns)
    marks.add("late")
    csig = lambda L: signal(a, "s_lshl2_add_u32 s49, s%d, s%d\ns_add_u32 s49, s49, %d" % (sI, sFC, 32 * L))
    for L in range(3):
        at(cs_at[L] + 3, cs_publish(L))
        at(idx[("corr", L, 0)] + 1, csa_load(L, 1))
        if L > CFG.cmode: at(idx[("corr", L - 1, 1)] + 1, csa_load(L, 0))
    sig_after(cs_at[0] + CFG.sig0, ("cs", 0), csig(0))
    sig_after(cs_at[2] + (8 if CFG.cmode == 0 else CFG.sigd), ("cs", 2), csig(1))
    c0 = idx[("corr", 0, 0)]
    at(c0 - CFG.p0, poll_issue(a, coff, ("plc", 0)))
    at(c0 - CFG.k0, poll_check(a, coff, ("plc", 0), "0xff") + csa_load(0, 0))
    if CFG.cmode == 0:
        at(idx[("corr", 0, 1)] - 5, poll_issue(a, coff, ("plc", 1)))
        at(idx[("corr", 0, 1)], poll_check(a, coff, ("plc", 1), "0xff00"))
    else:
        at(idx[("corr", 1, 0)] - 9, poll_issue(a, coff, ("plc", 1)))
        at(idx[("corr", 1, 0)] - 5, poll_check(a, coff, ("plc", 1), "0xff00") + csa_load(1, 0))
    c0 = idx[("corr", 0, 0)]
    at(c0 - 12, stats_addr(a, vP2) + stats_fetch(a, "v", ST, vP2))
    fx = stats_check(a, "v", ST, vP2, None)
    for tt in range(4):
        b = ST + 4 * tt
        fx += [I(a, "v_mov_b32 v%d, v%d" % (b + 1, b)), I(a, "v_mul_f32 v%d, v%d, v%d" % (b + 3, b + 2, b + 2)), I(a, "v_rcp_f32 v%d, v%d" % (b + 2, b + 2), 2)]
    for tt in range(4): fx.append(I(a, "v_mul_f32 v%d, %s, v%d" % (ST + 4 * tt + 2, f32(-LOG2E), ST + 4 * tt + 2)))
    at(c0 - 5, fx + [mark("stats")])
    xread_at = {}
    for p in range(8, 0, -1): xread_at[p] = max(min(idx[("mm", 0, 0, 2 * p)] - CFG.xlead, xread_at.get(p + 1, 99) - 3), 0)
    for p, n in xread_at.items():
        at(n, XS.reads(p))
    mm = lambda L, P, kk: idx[("mm", L, P, kk)]
    sig_after(mm(1, 1, 2), ("h", 0, 1), hsig(0))
    sig_after(mm(2, 0, 3), ("h", 1, 0), hsig(1))
    sig_after(mm(2, 1, 2), ("h", 1, 1), hsig(2))
    at(mm(2, 0, 13), poll_issue(a, hoff(1), "pl1", vP2))
    at(mm(2, 0, 17), poll_check(a, hoff(1), "pl1", "s71", vP2) + [mark("h1")])
    at(NH - 3, poll_issue(a, hoff(2), "pl2"))
    at(mm(2, 0, 6), p2.setup_vo(vCSR, vCSW, "s_and_b32 s52, s%d, 1" % sXG) + [mark("vo")])
    if CFG.pf == 1:
        pf = Q(a, """s_and_b32 s52, s{W}, 1
            s_mul_i32 s52, s52, 36
            s_mul_i32 s60, s{I}, 72
            s_add_u32 s52, s52, s60
            v_mul_u32_u24 v{P}, 43, v{L}
            v_lshrrev_b32 v{P}, 7, v{P}
            v_mul_u32_u24 v{T}, 3, v{P}
            v_sub_u32 v{T}, v{L}, v{T}
            v_add_u32 v{P}, s52, v{P}
            v_mul_u32_u24 v{P}, 1152, v{P}
            v_lshl_add_u32 v{P}, v{T}, 7, v{P}
            s_mul_i32 s52, s68, 384
            s_add_u32 s52, s52, s63""".format(W=sWAVE, I=sI, P=vP2, L=vL, T=vPL))
        pf += [VM(a, "buffer_load_dword v%d, v%d, s[%d:%d], s52 offen" % (vPL, vP2, rW2, rW2 + 3)),
               I(a, "s_add_u32 s52, s52, %d" % (18 * 1152)),
               VM(a, "buffer_load_dword v%d, v%d, s[%d:%d], s52 offen" % (vPL, vP2, rW2, rW2 + 3))]
        at(idx[("corr", 1, 0)] + 1 + CFG.pfw, pf)
    if CFG.pf == 4:
        pf = Q(a, """s_lshl2_add_u32 s52, s2, s{W}
            s_lshl_b32 s52, s52, 13
            v_lshlrev_b32 v{P}, 7, v{L}""".format(W=sWAVE, P=vP2, L=vL))
        pf += [VM(a, "buffer_load_dword v%d, v%d, s[%d:%d], s52 offen" % (vPL, vP2, rW2, rW2 + 3))]
        pf += Q(a, """s_cmp_lt_u32 s52, {N}
            s_cmov_b32 s52, 0x{O:x}
            s_sub_u32 s52, s52, {N}""".format(N=4608 * 1152, O=OOB))
        pf += [VM(a, "buffer_load_dword v%d, v%d, s[%d:%d], s52 offen" % (vPL, vP2, rWO, rWO + 3))]
        at((mm(1, 0, 2) if CFG.cmode == 0 else idx[("corr", 1, 0)] - 4) + CFG.pfw, pf)
    def wjob(L, kk):
        def make():
            if VERB: print("hs", now[0], seq[now[0]], "issue W", (L, kk), file=sys.stderr)
            return dma_issue(L, kk)
        gate = 0
        if CFG.cmode == 1 and kk >= 2: gate = (0, CFG.gate1, CFG.gate2)[L]
        return ("w", lambda: len(free) > 0 and now[0] >= gate, make)
    def cjob(L, k):
        def make():
            if VERB: print("hs", now[0], seq[now[0]], "issue C", (L, k), file=sys.stderr)
            return c_issue(L, k)
        return ("w", lambda: len(free) > 0, make)
    cj = {CFG.cj1: [cjob(1, 0), cjob(1, 1), cjob(0, 2)], CFG.cj2: [cjob(2, 0), cjob(2, 1)]}
    if CFG.init >= 1: del cj[CFG.cj1]
    if CFG.cmode == 1: cj = {CFG.cj1: [wjob(1, 0), wjob(1, 1)], 9: [cjob(0, 2), wjob(2, 0), wjob(2, 1)]}
    for p in range(1 if CFG.lean == 2 else 2, 9): S_.jobs += ([XS.job(p)] if p > 2 or CFG.init < 2 else []) + [wjob(0, 2 * p), wjob(0, 2 * p + 1)] + cj.get(p, [])
    S_.jobs += cj.get(9, [])
    S_.jobs += [wjob(L, kk) for L in (1, 2) for kk in range(2 * CFG.cmode, 18)]
    hmark = lambda st: "h1" if st < 6 else ("h2" if st < 9 else ("h3" if st < 12 else ("o" if p2.steps[st][2] == "wo" else "h4")))
    S_.jobs += p2.jobs(0, lambda st: "vo" in marks,
                       lambda st: hmark(st) in marks and now[0] > mm(2, 1, min(st, 9)))
    xdead = {}
    S_.prime()
    for n, e in enumerate(seq):
        pre = []
        now[0] = n
        S_.vmrate = 2.0 if n < CFG.boost else CFG.vmrate / 100.0
        if VERB: a.cm("HS %d %s" % (n, e))
        if n >= CFG.sbase and (n - CFG.sbase) % CFG.sstep == 0 and (n - CFG.sbase) // CFG.sstep < 11: stamp(a, 4 + (n - CFG.sbase) // CFG.sstep, 2)
        if e[0] == "mm" and e[1] == 0 and e[2] == 0 and e[3] % 2 == 0:
            wlg(a, [("xr", e[3] // 2)])
        if n == xread_at[8]: assert ("pub", 2 if CFG.cmode == 0 else 0) in marks
        if e[0] == "corr": assert "stats" in marks
        if n == mm(2, 0, 5): assert a.cnt.get(("w", 2, 17)) == 2
        if e[0] == "corr": wvm(a, [("csa", e[1], e[2])])
        if e[0] == "mm" and e[3] == 0 and (e[1] > 0 or e[2] == 0): stamp(a, 3 if e[1] == 0 else 3 + 2 * e[1] + e[2])
        if e == ("mm", 0, 0, 9): stamp(a, 4)
        if n % 2 == 1:
            rmax = S_.read_limit(first_slot[min(n + 2, NH)] - 1)
            need = []
            for m in range(n, NH):
                if S_.cur_ring(first_slot[m]) <= rmax:
                    need += [x for x in slabs_of(seq[m]) if x not in visible and x not in need]
            rel_ = [x for x, lu in last_use.items() if lu < n and x not in released]
            tags, aft = bar_tags.pop(n, ([], []))
            tags = list(tags)
            if S_.cur_ring(first_slot[NH]) <= rmax and not p2.visible:
                tags += [("w2", 0, k_) for k_ in range(3)]; p2.visible.update((0, k_) for k_ in range(3))
            xrel = [p for p, m in xread_at.items() if p >= 6 and m + 3 <= n and p not in xdead]
            want_space = S_.jobs and S_.jobs[0][0] in ("w", "w2", "x") or any(j[0] in ("w", "w2") for j in S_.jobs[:3])
            if rel_ and not (need or tags or xrel) and (not want_space or (n > 40 and len(rel_) < CFG.relper)): rel_ = []
            if need or rel_ or tags or xrel:
                need += [x for x, t_ in issued_at.items() if x not in visible and x not in need and
                         (t_ + CFG.age <= n or (a.cnt.get(("w",) + x, 0) == 2 and ("w",) + x not in a.vm))]
                for x in need: assert x in loc, ("slab not issued", n, x)
                def bar(need=need, tags=tags, xrel=xrel):
                    wlg(a, [("xr", p) for p in xrel])
                    wvm(a, [("w",) + x for x in need] + tags)
                    a("s_barrier")
                pre.append(("B", bar))
                visible.update(need); released.update(rel_)
                for x in rel_: free.append(loc[x])
                for p in xrel:
                    xdead[p] = 1
                    free.extend(8 + 3 * w + p % 3 for w in range(4))
            S_.extra += aft
        S_.extra += ev.pop(n, [])
        if (2, 17) in loc:
            while free:
                p2.free.append(free.pop(0))
        ns = first_slot[n + 1] - first_slot[n]
        for k in range(ns):
            if e[0] == "mm" and e[3] == 0 and k == 0:
                assert not (S_.epi and S_.epiP == e[2]), "epilogue not finished"
            S_.emit(pre if k == 0 else (), 1 if len(S_.extra) > 20 else 0)
            if k == 1 and n > 0:
                pe = seq[n - 1]
                if pe[0] != "cs" and lastP[pe[1:3]] == n - 1:
                    assert not S_.epi
                    S_.set_epi(epilogue(pe[1], pe[2]), first_slot[mm(pe[1] + 1, pe[2], 0)] - 1 if pe[1] < 2 else first_slot[NH] - 1, 0, False)
                    S_.epiP = pe[2]
    assert not S_.epi and not ev and not bar_tags, (ev.keys(), bar_tags.keys())
    now[0] = NH
    if VERB: print("; left for phase 2:", [j[0] for j in S_.jobs], "extra", len(S_.extra), file=sys.stderr)
    stamp(a, 9)
    S_.set_epi(epilogue(2, 1), S_.pos + CFG.edl, 2, False)
    ooff = "s_add_u32 s49, s%d, %d" % (sFI, 128 * FO)
    hooks = {}
    def add(st, key, v): hooks.setdefault(st, {}).setdefault(key, []).extend(v)
    add(0, "bar", [("h", 2, 0)]); add(0, "after", hsig(3))
    add(0, "after", poll_check(a, hoff(2), "pl2", "s71") + [mark("h2")])
    add(2, "after", poll_issue(a, hoff(3), "pl3"))
    add(CFG.s4, "bar", [("h", 2, 1)]); add(CFG.s4, "after", hsig(4))
    add(4, "after", poll_check(a, hoff(3), "pl3", "s71") + [mark("h3")])
    if CFG.osplit < 2:
        add(CFG.po, "after", poll_issue(a, ooff, "plo", vP2))
        add(CFG.po + 2, "after", poll_check(a, ooff, "plo", "s72", vP2) + [mark("o")])
    add(CFG.p4, "after", poll_issue(a, hoff(4), "pl4"))
    add(CFG.c4, "after", poll_check(a, hoff(4), "pl4", "s71") + [mark("h4")])
    dead0 = [loc[x] for x in last_use if x not in released]
    p2.main(S_, hooks, dead0)

C0 = [0, 4, 9, 13]
def path_attn(a):
    global vL, vX, vFS, vFP, vTK, vPL
    keep = (vL, vX, vFS, vFP, vTK, vPL)
    a.cnt = {}
    RB, VO, XO, XA = 224, 230, 236, 240
    vCS0, vCS1, vCSW, vP2, u0, u1 = 250, 251, 252, 253, 254, 255
    aONE, aCS, aST, aCSA, aX = 32, 36, 52, 68, 96
    t0, t1, t2, t3, t4 = 64, 65, 66, 67, 68
    new = (244, 245, 246, 247, 248, 249)
    for o_, n_ in zip(keep[:4], new[:4]): a("v_mov_b32 v%d, v%d" % (n_, o_))
    vL, vX, vFS, vFP, vTK, vPL = new
    def xreg(kk, tt): return ("a", aX + 16 * (kk % 10) + 4 * tt)
    def xr(kk, tt): return R(*xreg(kk, tt), 4)
    def acc(T, tt): return 16 * T + 4 * tt
    XS = XStage(a, XO, XA, 98304, 2, xreg)
    WLIM = 576 * 3456
    def dma_issue(kk):
        fns = [I(a, "s_add_u32 s55, s%d, %d" % (sWo, (kk & 1) * 32 * 3456))]
        for idx in range(6):
            if idx % 3 == 0:
                fns.append(I(a, "s_add_u32 m0, s53, %d" % ((kk % 4) * 24576 + (idx // 3) * 3072)))
            fns.append(VM(a, "buffer_load_dwordx4 v%d, s[%d:%d], s55 offen offset:%d lds" % (VO + idx, rWA, rWA + 3, (idx % 3) * 1024), ("w", kk)))
        if kk & 1: fns.append(I(a, "s_add_u32 s%d, s%d, %d\ns_cmp_ge_u32 s%d, %d\ns_cmov_b32 s%d, 0" % (sWo, sWo, 64 * 3456, sWo, WLIM, sWo), 3))
        return fns
    XS.setup_dma(t0, t1)
    run(XS.dma(0))
    srd(a, rWA, sWQKV, WLIM, bias=2048)
    run(dma_lane_off(a, t2, t0, t1, 3456, True))
    for idx in range(6):
        a("s_mul_i32 s52, s%d, 6" % sWAVE)
        a("s_add_u32 s52, s52, %d" % idx)
        a("s_and_b32 s49, s52, 1")
        a("s_bfe_u32 s60, s52, 0x10001")
        a("s_lshl2_add_u32 s49, s49, s60")
        a("s_mul_i32 s49, s49, %d" % (4 * 3456))
        a("s_bfe_u32 s60, s52, 0x10002")
        a("s_add_u32 s60, s60, s%d" % sXG)
        a("s_lshl_b32 s60, s60, 7")
        a("s_add_u32 s49, s49, s60")
        a("s_lshr_b32 s60, s52, 3")
        a("s_mul_i32 s60, s60, 1152")
        a("s_add_u32 s49, s49, s60")
        a("s_add_u32 s49, s49, %d" % (2048 - (idx % 3) * 1024))
        a("v_add_u32 v%d, s49, v%d" % (VO + idx, t2))
    a("s_mul_i32 s53, s%d, 6144" % sWAVE)
    a("s_mul_i32 s%d, s%d, %d" % (sWo, sROT, 64 * 3456))
    run(dma_issue(0))
    if not CFG.lean: run(dma_issue(1))
    code_prefetch(a)
    if not CFG.lean: run(XS.dma(1))
    stamp(a, 4, 1)
    XS.setup_read(t0, t1, t2)
    lane_fields(a, t0, t1, t2)
    a("v_lshrrev_b32 v%d, 1, v%d" % (t0, t0))
    a("v_lshlrev_b32 v%d, 10, v%d" % (t0, t0))
    a("v_lshl_add_u32 v%d, v%d, 7, v%d" % (t0, t1, t0))
    a("v_lshrrev_b32 v%d, 1, v%d" % (t1, t1))
    a("s_lshl_b32 s52, s%d, 1" % sXG)
    for p in range(6):
        r = RB + p
        if p < 4:
            a("v_add_u32 v%d, %d, v%d" % (t3, C0[p], t2))
        elif p == 4:
            a("v_lshrrev_b32 v%d, 1, v%d" % (t3, t2))
            a("v_lshl_add_u32 v%d, v%d, 2, v%d" % (t3, t2, t3))
            a("v_add_u32 v%d, 4, v%d" % (t3, t3))
        else:
            a("v_and_b32 v%d, 1, v%d" % (t3, t2))
            a("v_mul_u32_u24 v%d, 9, v%d" % (t3, t3))
            a("v_add_u32 v%d, 8, v%d" % (t3, t3))
        a("v_add_u32 v%d, s52, v%d" % (t3, t3))
        a("v_lshrrev_b32 v%d, 4, v%d" % (t4, t3))
        a("v_lshl_add_u32 v%d, v%d, 12, v%d" % (r, t4, t0))
        a("v_bfe_u32 v%d, v%d, 2, 2" % (t4, t3))
        a("v_xor_b32 v%d, v%d, v%d" % (t4, t4, t1))
        a("v_lshl_add_u32 v%d, v%d, 5, v%d" % (r, t4, r))
        a("v_and_b32 v%d, 3, v%d" % (t4, t3))
        a("v_lshl_add_u32 v%d, v%d, 3, v%d" % (r, t4, r))
        if p == 5:
            a("v_lshrrev_b32 v%d, 1, v%d" % (t4, t2))
            a("v_add_u32 v%d, 1, v%d" % (t4, t4))
            a("v_lshl_add_u32 v%d, v%d, 13, v%d" % (r, t4, r))
    a("s_bitcmp1_b32 s%d, 0" % sWAVE)
    a("s_cselect_b64 vcc, -1, 0")
    a("v_cndmask_b32 v%d, v%d, v%d, vcc" % (t3, RB, RB + 1))
    a("v_cndmask_b32 v%d, v%d, v%d, vcc" % (t4, RB + 2, RB + 3))
    a("v_cndmask_b32 v%d, v%d, v%d, vcc" % (vCS1, RB + 4, RB + 5))
    a("s_bitcmp1_b32 s%d, 1" % sWAVE)
    a("s_cselect_b64 vcc, -1, 0")
    a("v_cndmask_b32 v%d, v%d, v%d, vcc" % (vCS0, t3, t4))
    a("v_mov_b32 v%d, 0x%x" % (t3, ONE2))
    for i in range(4): a("v_accvgpr_write_b32 a%d, v%d" % (aONE + i, t3))
    steps = [(18 * x_, 576 * x_, k) for x_ in range(4) for k in range(3)] + [(2 * x_ + P, 36 * (2 * x_ + P), "woa") for x_ in range(4) for P in range(2 - CFG.osplit, 2)] + [(0, 0, "wos"), (1, 144, "wos")]
    p2 = P2(a, steps, 220, 197, 222)
    a("s_cmp_ge_u32 s%d, 3" % sI)
    a("s_cselect_b32 s4, 1, 0")
    a("s_mul_i32 s52, s4, 3")
    a("s_sub_u32 s68, s%d, s52" % sI)
    a("s_lshr_b32 s70, s%d, 1" % sWAVE)
    a("s_lshl_b32 s5, s%d, 7" % sXG)
    a("s_add_u32 s5, s5, 0x%x" % FLG_OFF)
    p2.setup_s()
    a("s_mul_i32 s62, s70, %d" % (72 * KSTRIDE))
    a("s_add_u32 s62, s62, %d" % H_OFF)
    a("s_mul_i32 s63, s70, %d" % (2304 * 1152))
    a("s_mul_i32 s64, s70, %d" % (2 * KSTRIDE))
    a("s_add_u32 s64, s64, %d" % (H_OFF + 160 * KSTRIDE))
    a("s_mul_i32 s65, s70, %d" % (288 * 1152))
    a("s_mul_i32 s7, s70, %d" % (8 * KSTRIDE))
    a("s_add_u32 s7, s7, %d" % (H_OFF + 144 * KSTRIDE))
    a("s_add_u32 s52, s68, 12")
    a("s_mul_i32 s52, s52, 6")
    a("s_add_u32 s52, s52, s70")
    a("s_lshl_b32 s67, s52, 17")
    a("s_add_u32 s67, s67, %d" % PART_OFF)
    a("s_add_u32 s52, s%d, 24" % sI)
    a("s_lshl2_add_u32 s69, s52, s5")
    a("s_add_u32 s52, s%d, 24" % sXG)
    a("s_lshl_b32 s%d, s52, 7" % sFC)
    a("s_add_u32 s%d, s%d, 0x%x" % (sFC, sFC, FL(FC)))
    a("s_mul_i32 s52, s70, 12")
    a("s_lshl_b32 s71, 0xfff, s52")
    a("s_lshl_b32 s52, s70, 2")
    a("s_lshl_b32 s72, 15, s52")
    a("s_cmp_ge_u32 s%d, 6" % sI)
    a("s_cmov_b32 s62, 0x%x" % OOB)
    a("s_cmov_b32 s63, 0x%x" % OOB)
    a("s_cmov_b32 s71, 0")
    a("s_lshl_b32 s%d, s%d, 13" % (sCSB, sXG))
    a("s_add_u32 s%d, s%d, %d" % (sCSB, sCSB, CS_OFF + 24 * 12288))
    a("s_cmp_eq_u32 s%d, 7" % sI)
    a("s_cselect_b32 s%d, 0x%x, 0" % (sOne2, ONE2))
    if CFG.lean: run(dma_issue(1) + XS.dma(1))
    stamp(a, 7, 1)
    stats_compute(a)
    stamp(a, 5, 1)
    run(XS.reads(0))
    wvm(a, [("w", 0)], w=6)
    a("s_barrier")
    TL = [(0, 0), (1, 0), (2, 0), (3, 0), (4, 0)] + [(p, 1) for p in range(4)] + [(p, 2) for p in range(4)] + [(5, 0)]
    S_ = Stream(a, "a", 0)
    visible = set([0])
    cur = [0] * 6
    csr = [0]
    info = []
    for kk in range(18):
        for T in range(14):
            def rd(kind, reg, tag, kk=kk, T=T):
                assert kk in visible
                p, win = TL[T]
                want = ((kk % 4) // 2) * 49152
                out = []
                if cur[p] != want:
                    out.append(I(a, "v_add_u32 v%d, 0x%x, v%d" % (RB + p, (want - cur[p]) & 0xffffffff, RB + p))); cur[p] = want
                return out + [("D", lambda h=h: a.lds("ds_read_b64_tr_b16 %s, v%d offset:%d" % (A(reg + 2 * h, 2), RB + p, (kk % 2) * 24576 + win * 8192 + h * 2048), tag)) for h in range(2)]
            def mf(w, kk=kk, T=T):
                return ["%s %s, %s, %s, %s" % (MF, V(acc(T, tt), 4), w, xr(kk, tt), "0" if kk == 0 else V(acc(T, tt), 4)) for tt in range(4)]
            S_.add(rd, mf); info.append((kk, T))
            if kk < 4 and T in (1, 3, 5, 7):
                k = T // 2
                def rd(kind, reg, tag, kk=kk, k=k):
                    out = []
                    if k == 0 and kk > 0:
                        out += [I(a, "v_add_u32 v%d, 24576, v%d" % (vCS0, vCS0)), I(a, "v_add_u32 v%d, 24576, v%d" % (vCS1, vCS1))]
                    return out + [("D", lambda h=h: a.lds("ds_read_b64_tr_b16 %s, v%d offset:%d" % (A(reg + 2 * h, 2), vCS0 if k < 3 else vCS1, (k * 8192 if k < 3 else 0) + h * 2048), tag)) for h in range(2)]
                def mf(w, kk=kk, k=k):
                    pre = ""
                    if kk == 2 and k == 0:
                        pre = "v_mov_b32 v%d, s%d\n" % (u0, sOne2) + "".join("v_accvgpr_write_b32 a%d, v%d\n" % (aONE + i, u0) for i in range(4)) + "s_nop 1\n"
                    return [pre + "%s %s, %s, %s, %s" % (MF, A(aCS + 4 * k, 4), A(aONE, 4), w, "0" if kk == 0 else A(aCS + 4 * k, 4))]
                S_.add(rd, mf); info.append((kk, -1))
    for T in list(range(9, 13)) + list(range(5, 9)) + [13] + list(range(5)):
        S_.add(None, lambda w, T=T: ["%s %s, %s, %s, %s" % (MF16, V(acc(T, tt), 4), A(aCSA + 2 * T, 2), A(aST + 4 * tt, 2), V(acc(T, tt), 4)) for tt in range(4)])
        info.append((18, T))
    ev = {}; bt = {}
    def at(kk, fns): ev.setdefault(kk, []).extend(fns)
    w_ = [I(a, "v_lshrrev_b32 v%d, 4, v%d" % (u0, vL)),
          I(a, "v_mul_u32_u24 v%d, 9, v%d\nv_add_u32 v%d, 1, v%d\nv_lshrrev_b32 v%d, 1, v%d\nv_add_u32 v%d, s%d, v%d" % (vCSW, u0, vCSW, vCSW, vCSW, vCSW, vCSW, sWAVE, vCSW), 4),
          I(a, "s_mul_i32 s52, s%d, 9\ns_add_u32 s52, s52, 4\ns_cmp_ge_u32 s%d, 2\ns_cmov_b32 s52, 0x%x\nv_mov_b32 v%d, s52\nv_cmp_eq_u32 vcc, 3, v%d\ns_nop 1\nv_cndmask_b32 v%d, v%d, v%d, vcc"
            % (sWAVE, sWAVE, OOB >> 9, u1, u0, vCSW, vCSW, u1), 8),
          I(a, "v_and_b32 v%d, 15, v%d\nv_lshlrev_b32 v%d, 4, v%d\nv_and_b32 v%d, 1, v%d\nv_lshl_add_u32 v%d, v%d, 3, v%d\nv_lshrrev_b32 v%d, 1, v%d\nv_lshl_add_u32 v%d, v%d, 10, v%d"
            % (u0, vL, u0, u0, u1, vCSW, u0, u1, u0, vCSW, vCSW, vCSW, vCSW, u0), 6),
          I(a, "s_lshr_b32 s52, s%d, 1\ns_lshl_b32 s52, s52, 8\ns_and_b32 s60, s%d, 1\ns_lshl2_add_u32 s52, s60, s52\nv_add_u32 v%d, s52, v%d" % (sI, sI, vCSW, vCSW), 5)]
    marks = set()
    at(0, w_ + [("", lambda: marks.add(1))])
    pub = [I(a, "v_accvgpr_read_b32 v%d, a%d" % (u0, aCS))]
    for k, (lo, hi) in enumerate([("0xffff0000", "0"), ("0", "0xffff"), ("0", "0xffff0000")]):
        pub.append(I(a, "v_accvgpr_read_b32 v%d, a%d\ns_mov_b32 vcc_lo, %s\ns_mov_b32 vcc_hi, %s\nv_cndmask_b32 v%d, v%d, v%d, vcc" % (u1, aCS + 4 * (k + 1), lo, hi, u0, u0, u1), 4))
    pub += hilo(a, u0, u1, vCS0)
    pub.append(("M", lambda: a.vmem("buffer_store_dword v%d, v%d, %s, s%d offen %s" % (u0, vCSW, WSR, sCSB, SC), ("cs", 0))))
    at(3, pub)
    b_ = Asm(); rot_bases(b_, 4)
    at(7, Q(a, "\n".join(b_.lines)))
    bt[5] = ([("cs", 0)], signal(a, "s_lshl2_add_u32 s49, s%d, s%d" % (sI, sFC)))
    coff = "s_mov_b32 s49, s%d" % sFC
    at(10, poll_issue(a, coff, "plc") + stats_addr(a, vCS0) + stats_fetch(a, "a", aST, vCS0))
    ld = poll_check(a, coff, "plc", "0xff") + [I(a, "v_lshlrev_b32 v%d, 4, v%d" % (u0, vL))]
    for k in range(7):
        if k == 4: ld.append(I(a, "s_add_u32 s%d, s%d, 4096" % (sCSB, sCSB)))
        ld.append(("M", lambda k=k: a.vmem("buffer_load_dwordx4 %s, v%d, %s, s%d offen offset:%d %s" % (A(aCSA + 4 * k, 4), u0, WSR, sCSB, 1024 * (k % 4), SC), ("csa", 0))))
    ld += stats_check(a, "a", aST, vCS0, u1)
    for tt in range(4): ld.append(I(a, "v_accvgpr_mov_b32 a%d, a%d" % (aST + 4 * tt + 1, aST + 4 * tt)))
    at(13, ld)
    if CFG.pf in (1, 2, 3):
        pf = Q(a, """s_mul_i32 s52, s{I}, 3
            s_add_u32 s52, s52, s{W}
            s_mul_i32 s52, s52, {B}
            s_cmp_eq_u32 s{W}, 3
            s_cmov_b32 s52, 0x{O:x}
            v_lshlrev_b32 v{P}, 7, v{L}""".format(I=sI, P=vP2, L=vL, B=192 * 1152, W=sWAVE, O=OOB))
        pf = [(c, f) for c, f in Q(a, "\n".join(f.code for c, f in pf).replace("s52", "s7"))]
        at(CFG.pfa, pf)
        for k in range(5):
            at(min(CFG.pfa + (k + 1) // 2, 16), [VM(a, "buffer_load_dword a%d, v%d, s[%d:%d], s7 offen" % (aONE, vP2, rW2, rW2 + 3)), I(a, "s_add_u32 s7, s7, %d" % (8192 if k < 3 else 4096))])
    S_.prime()
    wjob = lambda kk: ("w", lambda: kk - 2 in visible, lambda: dma_issue(kk))
    S_.jobs += [wjob(2), wjob(3)]
    for p in range(2, 9): S_.jobs += [XS.job(p), wjob(2 * p), wjob(2 * p + 1)]
    for s, (kk, T) in enumerate(info):
        pre = []
        if T == 0 and kk < 18 and kk % 2 == 0: wlg(a, [("xr", kk // 2)])
        if VERB and T == 0: a.cm("HS attn %d" % kk)
        if T == 0 and kk % 2 == 0: stamp(a, 4 + kk // 2, 6)
        if s == 0: stamp(a, 3)
        if kk == 2: assert marks
        if kk == 18 and T == 9:
            assert not S_.extra
            wvm(a, [("csa", 0)], csa=7)
        if T == 9 and kk < 17:
            tags, aft = bt.pop(kk, ([], []))
            def bar(kk=kk, tags=tags):
                wvm(a, [("w", kk + 1)] + tags, w=6)
                a("s_barrier")
            pre.append(("B", bar))
            visible.add(kk + 1)
            S_.extra += aft
            if kk % 2 == 0 and kk // 2 + 1 < 9:
                p = kk // 2 + 1
                S_.extra += XS.reads(p)
            S_.extra += ev.pop(kk, [])
        S_.emit(pre)
    assert not S_.extra and not ev and not S_.jobs and not S_.mem
    if VERB: a.cm("END")
    RS = 296
    vq, vn, vI0, vI1 = 224, 225, 226, 227
    T8 = 232
    t0, t1, t2, t3 = 242, 243, 254, 255
    SCL = 250
    a("s_barrier")
    stamp(a, 4, 5)
    stamp(a, 2)
    for tt in range(4): a("v_accvgpr_read_b32 v%d, a%d" % (SCL + tt, aST + 4 * tt + 2))
    a("v_lshrrev_b32 v%d, 4, v%d" % (vq, vL))
    a("v_and_b32 v%d, 15, v%d" % (vn, vL))
    for tt in range(4): a("v_rcp_f32 v%d, v%d" % (SCL + tt, SCL + tt))
    a("s_lshl_b32 s52, s%d, 6" % sWAVE)
    a("v_add_u32 v%d, s52, v%d" % (t0, vn))
    a("v_mul_u32_u24 v%d, %d, v%d" % (t0, RS, t0))
    a("v_lshl_add_u32 v%d, v%d, 3, v%d" % (vI0, vq, t0))
    a("v_mul_u32_u24 v%d, 72, v%d" % (t1, vq))
    a("v_add3_u32 v%d, v%d, v%d, 64" % (vI1, t0, t1))
    for tt in range(4): a("v_mul_f32 v%d, %s, v%d" % (SCL + tt, f32(LOG2E), SCL + tt))
    a("s_mov_b32 s56, %s" % f32(1.0 / LOG2E))
    a("s_mov_b32 s57, s56")
    a("v_mov_b32 v228, %s" % f32(1e-6 * LOG2E))
    a("v_cmp_gt_u32 s[32:33], 2, v%d" % vq)
    def scale4(r, tt):
        b, o = SCL + (tt & 2), tt & 1
        for i in (0, 2): a("v_pk_mul_f32 v[%d:%d], v[%d:%d], v[%d:%d] op_sel:[0,%d] op_sel_hi:[1,%d]" % (r + i, r + i + 1, r + i, r + i + 1, b, b + 1, o, o))
    def phi4(r, t, keepm=None):
        for i in range(4): a("v_exp_f32_e64 v%d, v%d clamp" % (t + i, r + i))
        for i in range(4): a("v_max_f32 v%d, v%d, v228" % (t + 4 + i, r + i))
        d = r if keepm is None else t
        for i in range(0, 4, 2): a("v_pk_fma_f32 v[%d:%d], v[%d:%d], s[56:57], v[%d:%d]" % (d + i, d + i + 1, t + 4 + i, t + 5 + i, t + i, t + i + 1))
        if keepm is not None:
            for i in range(4): a("v_cndmask_b32 v%d, v%d, v%d, %s" % (r + i, r + i, t + i, keepm))
    def pack2(dst, r):
        a("v_cvt_pk_bf16_f32 v%d, v%d, v%d" % (dst, r, r + 1))
        a("v_cvt_pk_bf16_f32 v%d, v%d, v%d" % (dst + 1, r + 2, r + 3))
    h0off = "s_add_u32 s49, s5, %d" % (128 * FH)
    side = []
    def sprinkle():
        while side:
            t, f = side.pop(0); f()
            if t == "M": break
    a("v_mov_b32 v%d, 0x%x" % (t2, ONE2))
    a("v_mov_b32 v%d, 0x%x" % (t3, ONE2))
    for tt in range(4): a("ds_write_b64 v%d, v[%d:%d] offset:%d" % (t0, t2, t3, tt * 16 * RS + 288))
    for T in [13] + list(range(9, 13)) + list(range(5, 9)):
        for tt in (3, 2, 1, 0):
            r = acc(T, tt)
            if T != 13 and (T < 9 or tt % 2 == 0): sprinkle()
            scale4(r, tt)
            if 5 <= T < 9: phi4(r, T8)
            elif T == 13: phi4(r, T8, keepm="s[32:33]")
            pack2(r, r)
            if T == 13: a("ds_write_b64 v%d, v[%d:%d] offset:%d" % (vI1, r, r + 1, tt * 16 * RS))
            else:
                off = C0[(T - 5) % 4] * 8 + (144 if T >= 9 else 0)
                a("ds_write_b64 v%d, v[%d:%d] offset:%d" % (vI0, r, r + 1, tt * 16 * RS + off))
        if T == 13:
            run(p2.setup_vo(240, 241, "s_mov_b32 s52, s4", sXG))
            p2.free = list(range(10, 18))
            for u in p2.units[:8]: side += p2.dma_issue(*u)
            side += poll_issue(a, h0off, "pl0", 231)
    run(side); side = []
    stamp(a, 5, 5)
    vM, vLf, vB2 = 229, 230, 226
    a("v_bfe_u32 v%d, v%d, 2, 4" % (t0, vL))
    a("v_mul_u32_u24 v%d, %d, v%d" % (t0, RS, t0))
    a("v_and_b32 v%d, 3, v%d" % (t2, vL))
    a("s_lshl_b32 s52, s%d, 2" % sWAVE)
    a("s_lshr_b32 s49, s%d, 1" % sWAVE)
    a("s_add_u32 s52, s52, s49")
    a("v_cmp_eq_u32 vcc, s%d, v%d" % (sWAVE, t2))
    a("v_add_u32 v%d, s52, v%d" % (t3, t2))
    a("v_lshl_add_u32 v%d, v%d, 3, v%d" % (vM, t3, t0))
    a("s_lshl_b32 s52, s52, 3")
    a("s_add_u32 s52, s52, 32")
    a("v_add_u32 v%d, s52, v%d" % (vLf, t0))
    a("v_add_u32 v%d, 144, v%d" % (t3, t0))
    a("v_cndmask_b32 v%d, v%d, v%d, vcc" % (vB2, t3, vLf))
    a("v_cmp_eq_u32 s[34:35], s%d, v%d" % (sWAVE, vq))
    a.lg0()
    a("s_barrier")
    KC = 80
    FR = 96
    for k8 in range(8):
        if k8 == 4:
            for v_ in (vM, vLf, vB2): a("v_add_u32 v%d, %d, v%d" % (v_, 128 * RS, v_))
        if k8 == 7: a.wait_lg(lambda t: t == 0)
        for f, (base, off) in enumerate([(vM, 0), (vLf, 0), (vM, 144), (vB2, 144)]):
            for rd in range(2):
                r = FR + 16 * (k8 % 7) + 4 * f + 2 * rd
                a.lds("ds_read_b64_tr_b16 v[%d:%d], v%d offset:%d" % (r, r + 1, base, (32 * (k8 % 4) + 16 * rd) * RS + off), k8)
        for kq in ([k8 - 1] if k8 else []) + ([7] if k8 == 7 else []):
            a.wait_lg(lambda t: t == kq)
            b = FR + 16 * (kq % 7)
            for ci, (fa, fb) in enumerate([(b, b + 8), (b, b + 12), (b + 4, b + 8), (b + 4, b + 12)]):
                d = KC + 4 * ci
                a("%s %s, %s, %s, %s" % (MF, V(d, 4), V(fa, 4), V(fb, 4), "0" if kq == 0 else V(d, 4)))
    stamp(a, 6, 5)
    a("s_lshl_b32 s52, s%d, 5" % sXG)
    a("s_add_u32 s52, s52, s%d" % sWAVE)
    a("s_mul_i32 s6, s52, 3072")
    a("s_add_u32 s6, s6, %d" % KVP_OFF)
    a("s_mul_i32 s52, s%d, 12288" % sI)
    a("s_add_u32 s58, s6, s52")
    a("v_lshlrev_b32 v%d, 4, v%d" % (t0, vL))
    a("s_lshl_b32 s81, s%d, 7" % sXG)
    a("s_add_u32 s81, s81, %d" % FL(FKV))
    for i in range(4): a("v_cndmask_b32 v%d, v%d, v%d, s[34:35]" % (KC + 8 + i, KC + 12 + i, KC + 8 + i))
    for ci in range(3):
        a.vmem("buffer_store_dwordx4 %s, v%d, %s, s58 offen offset:%d %s" % (V(KC + 4 * ci, 4), t0, WSR, ci * 1024, SC), "kvp")
    run(poll_check(a, h0off, "pl0", "s71", 231))
    for st in range(CFG.ah): side += p2.h_issue(st)
    QF = 104
    def qphi(tt):
        for T in range(5):
            sprinkle()
            scale4(acc(T, tt), tt)
            phi4(acc(T, tt), T8)
        for h in range(4):
            if h % 2: sprinkle()
            pack2(QF + 16 * tt + 4 * h, acc(h, tt))
            pack2(QF + 16 * tt + 4 * h + 2, acc(4, tt))
    qphi(0); qphi(1)
    stamp(a, 7, 5)
    a.wait_vm(lambda t: t == "kvp")
    a("s_barrier")
    run(signal(a, "s_lshl2_add_u32 s49, s%d, s81" % sI))
    p2.free += list(range(10))
    for u in p2.units[8:3 * CFG.ah]: side += p2.dma_issue(*u)
    stamp(a, 8, 5)
    qphi(2); qphi(3)
    run(side); side = []
    run(poll_issue(a, "s_mov_b32 s49, s81", "plkv"))
    a("s_and_b32 s52, s%d, 1" % sWAVE)
    a("s_lshl_b32 s49, s52, 1")
    a("v_cmp_le_u32 s[32:33], s49, v%d" % vn)
    a("v_lshrrev_b32 v%d, 2, v%d" % (t2, vn))
    a("v_cmp_eq_u32 s[16:17], s%d, v%d" % (sWAVE, t2))
    a("v_and_b32 v%d, 3, v%d" % (t2, vn))
    a("s_add_u32 s49, s49, 2")
    a("v_cmp_gt_u32 vcc, s49, v%d" % t2)
    a("v_cmp_eq_u32 s[20:21], s%d, v%d" % (sWAVE, t2))
    a("s_and_b64 s[10:11], s[16:17], vcc")
    a("v_cmp_le_u32 s[74:75], s52, v%d" % vq)
    a("s_cmp_eq_u32 s52, 1")
    a("s_cselect_b64 s[76:77], s[34:35], 0")
    stamp(a, 9, 5)
    run(poll_check(a, "s_mov_b32 s49, s81", "plkv", "0xff"))
    stamp(a, 5)
    stamp(a, 10, 5)
    for i in range(8):
        a("s_add_u32 s58, s6, %d" % (i * 12288))
        for ci in range(3):
            a.vmem("buffer_load_dwordx4 %s, v%d, %s, s58 offen offset:%d %s" % (V(12 * i + 4 * ci, 4), t0, WSR, ci * 1024, SC), ("kv", i))
    for i in range(1, 8):
        a.wait_vm(lambda t: t == ("kv", i))
        if i == 1: stamp(a, 11, 5)
        for r in range(12): a("v_add_f32 v%d, v%d, v%d" % (r, r, 12 * i + r))
    stamp(a, 12, 5)
    pack2(12, 0); pack2(14, 4); pack2(16, 8)
    a("v_mov_b32 v18, v16"); a("v_mov_b32 v19, v17"); a("v_mov_b32 v20, v16"); a("v_mov_b32 v21, v17")
    a("s_bitcmp1_b32 s%d, 0" % sWAVE)
    a("s_cselect_b64 vcc, -1, 0")
    a("v_permlane16_swap_b32 v18, v20")
    a("v_permlane16_swap_b32 v19, v21")
    a("v_mov_b32_dpp v22, v14 row_ror:4 row_mask:0xf bank_mask:0xf")
    a("v_mov_b32_dpp v23, v15 row_ror:4 row_mask:0xf bank_mask:0xf")
    a("v_cndmask_b32 v18, v20, v18, vcc")
    a("v_cndmask_b32 v19, v21, v19, vcc")
    a("v_cndmask_b32 v22, v14, v22, s[16:17]")
    a("v_cndmask_b32 v23, v15, v23, s[16:17]")
    a("v_mov_b32_dpp v20, v18 row_ror:4 row_mask:0xf bank_mask:0xf")
    a("v_mov_b32_dpp v21, v19 row_ror:4 row_mask:0xf bank_mask:0xf")
    a("v_cndmask_b32 v20, v18, v20, s[16:17]")
    a("v_cndmask_b32 v21, v19, v21, s[16:17]")
    for f, (m, mainr, leftr) in enumerate([(32, 12, 16), (10, 14, 18), (20, 22, 20)]):
        for k, (src, extra) in enumerate([(mainr, 74), (mainr + 1, m), (leftr, 34), (leftr + 1, 76)]):
            a("s_and_b64 vcc, s[%d:%d], s[%d:%d]" % (m, m + 1, extra, extra + 1))
            a("v_cndmask_b32 v%d, 0, v%d, vcc" % (24 + 4 * f + k, src))
    a("s_mul_i32 s52, s%d, 3072" % sWAVE)
    a("v_add_u32 v%d, 0x25000, v%d" % (t0, t0))
    a("v_add_u32 v%d, s52, v%d" % (t1, t0))
    for f in range(3):
        a("ds_write_b128 v%d, %s offset:%d" % (t1, V(24 + 4 * f, 4), f * 1024))
    a("s_waitcnt lgkmcnt(0)")
    a("s_barrier")
    AF = 168
    for i in range(12):
        a("ds_read_b128 %s, v%d offset:%d" % (V(AF + 4 * i, 4), t0, i * 1024))
    a("s_lshl_b32 s52, s%d, 1" % sXG)
    a("s_add_u32 s52, s52, 144")
    a("s_mul_i32 s58, s52, %d" % KSTRIDE)
    a("s_add_u32 s58, s58, %d" % H_OFF)
    a("s_add_u32 s59, s58, %d" % KSTRIDE)
    a("s_lshr_b32 s52, s%d, 1" % sXG)
    a("s_add_u32 s52, s52, 160")
    a("s_mul_i32 s57, s52, %d" % KSTRIDE)
    a("s_and_b32 s52, s%d, 1" % sXG)
    a("s_lshl_b32 s52, s52, 3")
    a("s_add_u32 s57, s57, s52")
    a("s_add_u32 s57, s57, %d" % H_OFF)
    a("s_mov_b32 s56, %s" % f32(LOG2E))
    a("v_cmp_eq_u32 s[32:33], 1, v%d" % vq)
    a("v_cmp_eq_u32 s[34:35], 2, v%d" % vq)
    a("v_cmp_eq_u32 s[10:11], 3, v%d" % vq)
    a("s_waitcnt lgkmcnt(0)")
    for tt in range(4):
        o = 24 * tt
        for h in range(4):
            qf = V(QF + 16 * tt + 4 * h, 4)
            a("%s %s, %s, %s, 0" % (MF, V(o + 4 * h, 4), V(AF + 12 * h, 4), qf))
            a("%s %s, %s, %s, %s" % (MF, V(o + 16, 4), V(AF + 12 * h + 4, 4), qf, "0" if h == 0 else V(o + 16, 4)))
            a("%s %s, %s, %s, %s" % (MF, V(o + 20, 4), V(AF + 12 * h + 8, 4), qf, "0" if h == 0 else V(o + 20, 4)))
    stamp(a, 13, 5)
    a("s_nop 7")
    for tt in range(4):
        o = 24 * tt
        for h in range(4): a("v_fma_f32 v%d, v%d, s56, v228" % (o + 20 + h, o + 20 + h))
        for h in range(4): a("v_rcp_f32 v%d, v%d" % (o + 20 + h, o + 20 + h))
        a("s_nop 0")
        a("v_cndmask_b32 v%d, v%d, v%d, s[32:33]" % (T8 + 8, o + 20, o + 21))
        a("v_cndmask_b32 v%d, v%d, v%d, s[34:35]" % (T8 + 8, T8 + 8, o + 22))
        a("v_cndmask_b32 v%d, v%d, v%d, s[10:11]" % (T8 + 8, T8 + 8, o + 23))
        for h in range(4):
            b, sel = o + 20 + (h & 2), h & 1
            for i in (0, 2): a("v_pk_mul_f32 v[%d:%d], v[%d:%d], v[%d:%d] op_sel:[0,%d] op_sel_hi:[1,%d]" % (o + 4 * h + i, o + 4 * h + i + 1, o + 4 * h + i, o + 4 * h + i + 1, b, b + 1, sel, sel))
        for i in (0, 2): a("v_pk_mul_f32 v[%d:%d], v[%d:%d], v[%d:%d] op_sel_hi:[1,0]" % (o + 16 + i, o + 17 + i, o + 16 + i, o + 17 + i, T8 + 8, T8 + 9))
        pack2(o, o); pack2(o + 2, o + 4)
        pack2(o + 4, o + 8); pack2(o + 6, o + 12)
        pack2(o + 8, o + 16)
        a.vmem("buffer_store_dwordx4 %s, v%d, %s, s58 offen offset:%d %s" % (V(o, 4), vX, WSR, tt * 1024, SC), "o")
        a.vmem("buffer_store_dwordx4 %s, v%d, %s, s59 offen offset:%d %s" % (V(o + 4, 4), vX, WSR, tt * 1024, SC), "o")
        a.vmem("buffer_store_dwordx2 %s, v%d, %s, s57 offen offset:%d %s" % (V(o + 8, 2), vX, WSR, tt * 1024, SC), "o")
    for o_, n_ in zip(keep[:5], new[:5]): a("v_mov_b32 v%d, v%d" % (o_, n_))
    vL, vX, vFS, vFP, vTK, vPL = keep
    p2.setup_special(176, 177, 178)
    tr_addrs(a, 176, 177, 178)
    a("s_mul_i32 s%d, s70, 4160" % sPX)
    a("s_lshl2_add_u32 s81, s%d, s%d" % (sXG, sFI))
    a("s_mov_b32 s%d, s5" % sFI)
    a("s_mov_b32 s52, s%d" % sI)
    a("s_mov_b32 s%d, s%d" % (sI, sXG))
    a("s_mov_b32 s%d, s52" % sXG)
    osig = lambda: signal(a, "s_add_u32 s49, s81, %d" % (128 * FO))
    stamp(a, 14, 5)
    stamp(a, 6)
    lgo = a.newlabel("Lp2a")
    a("s_cmp_lt_u32 s%d, 6" % sXG)
    a("s_cbranch_scc1 %s" % lgo)
    a("s_waitcnt vmcnt(0)")
    a("s_barrier")
    keepvm = list(a.vm)
    run(osig())
    a.vm = keepvm
    a("s_branch L_fin_idle")
    a.label(lgo)
    hooks = {}
    def add(st, key, v): hooks.setdefault(st, {}).setdefault(key, []).extend(v)
    add(1, "bar", ["o"]); add(1, "after", osig())
    ooff = "s_add_u32 s49, s%d, %d" % (sFI, 128 * FO)
    NSA = len(steps)
    add(3, "after", poll_issue(a, ooff, "plo"))
    add(5, "after", poll_check(a, ooff, "plo", "s72") + [("", lambda: marks.add("o"))])
    wvm(a, [("w2", 0, k_) for k_ in range(3)])
    a("s_barrier")
    p2.visible.update((0, k_) for k_ in range(3))
    for k_ in [k_ for k_ in a.cnt if isinstance(k_, tuple) and k_[0] == "f"]: del a.cnt[k_]
    S_ = Stream(a, "v", WF)
    p2.add_slots(S_)
    S_.prime()
    S_.jobs += p2.jobs(CFG.ah, lambda st: True, lambda st: st < 12 or "o" in marks)
    p2.main(S_, hooks, [18, 19])

def spin(a, soff_code, mask, sleep):
    lp, ld = a.newlabel("Lw"), a.newlabel("Lw")
    a(soff_code)
    a("s_mov_b32 s59, 40000")
    a.label(lp)
    a("buffer_load_dword v%d, v%d, %s, s49 offen %s" % (vPL, vFP, WSR, SC))
    a("s_waitcnt vmcnt(0)")
    a("v_cmp_eq_u32 vcc, s%d, v%d" % (sTOK, vPL))
    a("s_andn2_b32 s61, %s, vcc_lo" % mask)
    a("s_cbranch_scc0 %s" % ld)
    a("s_sleep %d" % sleep)
    a("s_sub_u32 s59, s59, 1")
    a("s_cmp_lg_u32 s59, 0")
    a("s_cbranch_scc1 %s" % lp)
    a.label(ld)

def phase3(a):
    a.vm = []; a.lg = []
    CUR[0] = None
    a("s_cmp_eq_u32 s%d, 3" % sWAVE)
    a("s_cbranch_scc1 L_fin_poll")
    for k in range(3): fin_x(a, k)
    a("s_barrier")
    fin_loads(a, 0)
    fin_loads(a, 1)
    if CFG.sum0: fin_sum(a, 0)
    if not CFG.one: a("s_barrier")
    stamp(a, 14)
    fin_loads(a, 2)
    if not CFG.sum0: fin_sum(a, 0)
    fin_sum(a, 1)
    fin_sum(a, 2)
    a("s_branch L_done")
    a.label("L_fin_poll")
    a.vm = []
    if not CFG.one:
        spin(a, "s_add_u32 s49, s8, %d" % (128 * FP), "s73", CFG.slp0)
        a("s_barrier")
    spin(a, "s_add_u32 s49, s8, %d" % (128 * (FP + 16)), "s73", CFG.slp1)
    a("s_barrier")
    a("s_cmp_lg_u32 s2, 0")
    a("s_cbranch_scc1 L_done")
    a("s_mov_b32 s49, 0x%x" % FL(0))
    a("buffer_store_dword v%d, v%d, %s, s49 offen" % (vTK, vFS, WSR))
    a.label("L_done")

def fin_idle(a):
    a.label("L_fin_idle")
    a.vm = []; a.lg = []
    run(fin_setup(a))
    a("s_branch L_final")

def code_prefetch(a):
    a("s_getpc_b64 s[60:61]")
    l = a.newlabel("Lpc")
    a.label(l)
    a("s_sub_u32 s%d, s60, %s-%s" % (rW2, l, NAME))
    a("s_subb_u32 s%d, s61, 0" % (rW2 + 1))
    a("s_and_b32 s%d, s%d, 0xffff" % (rW2 + 1, rW2 + 1))
    a("s_mov_b32 s%d, L_code_end-%s" % (rW2 + 2, NAME))
    a("s_mov_b32 s%d, 0x20000" % (rW2 + 3))
    a("s_lshr_b32 s52, s2, 3")
    a("s_lshl_b32 s52, s52, 12")
    a("s_lshl_b32 s49, s%d, 10" % sWAVE)
    a("s_add_u32 s52, s52, s49")
    a("v_lshlrev_b32 v63, 4, v%d" % vL)
    a.vmem("buffer_load_dword v%d, v63, s[%d:%d], s52 offen" % (vPL, rW2, rW2 + 3), "pf")
    if CFG.tlb:
        a("s_lshl_b32 s49, s%d, 1" % sWAVE)
        a("s_cmp_eq_u32 s%d, 1" % sWAVE)
        a("s_cselect_b32 s60, s%d, s%d" % (sW2, sWS)); a("s_cselect_b32 s61, s%d, s%d" % (sW2 + 1, sWS + 1))
        a("s_mov_b32 s%d, %d" % (rWO + 2, PART_OFF + 5 * PSL)); a("s_cmov_b32 s%d, %d" % (rWO + 2, 4608 * 1152))
        a("s_cmp_eq_u32 s%d, 2" % sWAVE)
        a("s_cmov_b32 s60, s%d" % sWO); a("s_cmov_b32 s61, s%d" % (sWO + 1)); a("s_cmov_b32 s%d, %d" % (rWO + 2, 576 * 1152))
        a("s_cmp_eq_u32 s%d, 3" % sWAVE)
        a("s_cmov_b32 s60, s%d" % sOUT); a("s_cmov_b32 s61, s%d" % (sOUT + 1)); a("s_cmov_b32 s%d, %d" % (rWO + 2, 2048 * 1152))
        a("s_mov_b32 s%d, s60" % rWO)
        a("s_and_b32 s%d, s61, 0xffff" % (rWO + 1))
        a("s_mov_b32 s%d, 0x20000" % (rWO + 3))
        a("v_lshlrev_b32 v63, %d, v%d" % (CFG.tlb, vL))
        a("s_lshl_b32 s52, s2, 7")
        a.vmem("buffer_load_dword v%d, v63, s[%d:%d], s52 offen %s" % (vPL, rWO, rWO + 3, SC), "pf")

def build():
    a = Asm()
    a.raw("; @launch grid=(256,1,1) block=(256,1,1) lds=%d" % LDS_BYTES)
    a.raw('.amdgcn_target "amdgcn-amd-amdhsa--gfx950"')
    a.raw(".text")
    kernel_begin(a, NAME)
    a("s_cmp_ge_u32 s2, 256")
    a("s_cbranch_scc1 L_end")
    a("s_load_dwordx16 s[4:19], s[0:1], 0")
    a("s_load_dwordx4 s[20:23], s[0:1], 64")
    if CFG.stamp:
        for i in range(16): a("s_mov_b32 s%d, 0" % (84 + i))
        a("s_memtime s[100:101]" if CFG.clk else "s_memrealtime s[100:101]")
    a("v_and_b32 v%d, 63, v0" % vL)
    a("v_lshrrev_b32 v1, 6, v0")
    a("v_cmp_eq_u32 vcc, 0xc0, v0")
    a("v_readfirstlane_b32 s%d, v1" % sWAVE)
    a("v_mov_b32 v1, 0x%x" % OOB)
    a("s_lshr_b32 s%d, s2, 6" % sC)
    a("v_cndmask_b32 v%d, v1, v%d, vcc" % (vFS, vL))
    a("v_and_b32 v1, 31, v0")
    a("v_lshlrev_b32 v%d, 2, v1" % vFP)
    if CFG.mapping == 0:
        a("s_and_b32 s%d, s2, 7" % sXG)
        a("s_bfe_u32 s%d, s2, 0x30003" % sI)
    elif CFG.mapping == 1:
        a("s_and_b32 s%d, s2, 3" % sXG)
        a("s_bfe_u32 s52, s2, 0x10003")
        a("s_lshl1_add_u32 s%d, s%d, s52" % (sXG, sXG))
        a("s_and_b32 s%d, s2, 4" % sI)
        a("s_bfe_u32 s52, s2, 0x20004")
        a("s_add_u32 s%d, s%d, s52" % (sI, sI))
    elif CFG.mapping == 4:
        a("s_and_b32 s%d, s2, 3" % sXG)
        a("s_bfe_u32 s52, s2, 0x10003")
        a("s_lshl1_add_u32 s%d, s%d, s52" % (sXG, sXG))
        a("s_bfe_u32 s%d, s2, 0x20004" % sI)
        a("s_bfe_u32 s52, s2, 0x10002")
        a("s_lshl1_add_u32 s%d, s%d, s52" % (sI, sI))
    a("s_mul_i32 s%d, s%d, %d" % (sROT, sC, CFG.rotc))
    a("s_add_u32 s%d, s%d, s%d" % (sROT, sROT, sI))
    if CFG.mapping != 0 and CFG.rotc:
        a("s_and_b32 s52, s%d, 1" % sXG)
        a("s_add_u32 s%d, s%d, s52" % (sROT, sROT))
    a("s_cmp_ge_u32 s%d, 9" % sROT)
    a("s_cselect_b32 s52, 9, 0")
    a("s_sub_u32 s%d, s%d, s52" % (sROT, sROT))
    a("s_lshl_b32 s52, s%d, 14" % sI)
    a("s_lshl_b32 s49, s%d, 12" % sWAVE)
    a("s_add_u32 s52, s52, s49")
    a("v_lshl_add_u32 v%d, v%d, 4, s52" % (vX, vL))
    a("s_lshl_b32 s%d, s%d, 7" % (sFI, sI))
    a("s_add_u32 s%d, s%d, 0x%x" % (sFI, sFI, FLG_OFF))
    stats_load(a)
    a("s_mov_b32 s%d, 0x%x" % (rX + 2, 2048 * 1152))
    a("s_mov_b32 s%d, 0x20000" % (rX + 3))
    a("s_waitcnt lgkmcnt(0)")
    if CFG.stamp: a("s_mov_b32 s84, s100")
    a("s_mov_b32 s%d, s%d" % (rX, sX))
    a("s_and_b32 s%d, s%d, 0xffff" % (rX + 1, sX + 1))
    stats_issue(a)
    a("s_add_u32 s60, s%d, 0x%x" % (sWS, FL(0)))
    a("s_addc_u32 s61, s%d, 0" % (sWS + 1))
    a("s_load_dword s%d, s[60:61], 0" % sTOK)
    stamp(a, 6, 1)
    srd(a, rWS, sWS, WS_BYTES)
    vm0 = list(a.vm)
    a("s_cmp_eq_u32 s%d, 3" % sC)
    a("s_cbranch_scc1 L_attn")
    path_mlp(a)
    a.label("L_final")
    phase3(a)
    stamp_out(a)
    a.label("L_end")
    a("s_endpgm")
    a.vm = vm0; a.lg = []
    a.label("L_attn")
    path_attn(a)
    a("s_branch L_final")
    fin_idle(a)
    a.lines += LATER
    a.label("L_code_end")
    a("s_endpgm")
    a.raw('.section .rodata,"a"')
    a.raw(kernel_desc(NAME, 512, 256))
    return a.text()

if __name__ == "__main__":
    args = sys.argv[1:]
    out = "parallel_sum__linear_attn_block__glu_gated_swiglu__prompt.s"
    for x in args:
        if x == "--stamp": CFG.stamp = True
        elif x == "-v": VERB = True
        elif x == "--sc1": SC = "sc1"
        elif x == "--dsc1": DFL = "sc1"
        elif x == "--dnt": DFL = "nt"
        elif x == "--osc": OSC = " sc1"
        elif x == "--ont": OSC = " nt"
        elif "=" in x:
            k, v = x.split("="); assert hasattr(CFG, k), k; setattr(CFG, k, float(v) if "." in v else int(v))
        else: out = x
    txt = build()
    if DFL: txt = txt.replace(" lds\n", " %s lds\n" % DFL)
    open(out, "w").write(txt)
    if CFG.stamp: open(out + ".slow", "w").write("\n".join(NSLOW))
```

```python
import sys, math
from lib import *

NAME = "parallel_sum__linear_attn_block__glu_gated_swiglu__prompt_kernel"
LOG2E = 1.4426950408889634
KSTRIDE = 131072
H_OFF = 18 * KSTRIDE
KVP_OFF = H_OFF + 164 * KSTRIDE
PART_OFF = KVP_OFF + 8 * 8 * 4 * 6 * 1024
PSL = 18 * KSTRIDE
FLG_OFF = 0x80000
ST_OFF = 0
CS_OFF = 0x10000
WS_BYTES = 268435456
OOB = 0x7f000000
LDS_BYTES = 163840
SC = "sc0 sc1"
OSC = ""
DFL = ""
def FL(line): return FLG_OFF + 128 * line
FKV, FC, FP, FO, FH = 56, 96, 128, 192, 256

sX, sWQKV, sWO, sW1, sW3, sW2, sOUT, sDBG, sWS = 4, 6, 8, 12, 14, 16, 18, 20, 22
rWS, rWA, rX, rW2, rWO = 24, 28, 36, 40, 44
sWAVE, sI, sXG, sC, sTOK = 48, 50, 51, 78, 79
sFI = 80
sXo, sWo, sXL, sOne2, sCSB, sFC, sROT = 32, 33, 34, 35, 82, 83, 81
MF = "v_mfma_f32_16x16x32_bf16"
MF16 = "v_mfma_f32_16x16x16_bf16"
WSR = "s[%d:%d]" % (rWS, rWS + 3)
XR = "s[%d:%d]" % (rX, rX + 3)
ONE2 = 0x3f803f80

VERB = False
class Cfg:
    stamp = False
    clk = 0
    mapping = 0
    split = 12
    kseq = 5
    sset = 0
    swave = 0
    pf = 4
    rotc = 0
    vmrate = 85
    epirate = 4.5
    age = 16
    window = 60
    defer = 10
    af = 0
    ap = 8
    ka = 5
    s1 = 3
    p1 = 13
    c1 = 17
    s3 = 0
    pc1 = 9
    kc1 = 5
    rsv = 30
    hgap = 0
    mid = 0
    pmid = 3
    fsat = 56
    early = 30
    findl = 5
    abl = 0
    tlb = 0
    ah = 4
    osplit = 0
    po = 5
    lean = 2
    boost = 3
    one = 0
    slp0 = 8
    slp1 = 2
    sum0 = 0
    hw = 1.0
    hrot = 2
    xlead = 2
    cs0 = 4
    cs1 = 4
    cs2 = 18
    cj1 = 8
    cj2 = 3
    pfw = 0
    pfa = 14
    pfs = 3
    init = 0
    cmode = 1
    cdel = 3
    sigd = 7
    gate1 = 35
    c00 = 16
    sig0 = 9
    p0 = 11
    k0 = 6
    gate2 = 68
    dbgwg = -1
    sbase = 0
    sstep = 2
    exs = 5
    edl = 56
    s4 = 6
    p4 = 8
    c4 = 9
    ofirst = 1
    relper = 4
    pfat = -2
CFG = Cfg()

def stamp(a, i, sset=0):
    if CFG.stamp and (sset == CFG.sset or i in (3, 15)):
        a("s_memtime s[100:101]" if CFG.clk else "s_memrealtime s[100:101]")
        a.lg0()
        a("s_mov_b32 s%d, s100" % (84 + i))
def stamp_out(a):
    if not CFG.stamp: return
    a("s_waitcnt vmcnt(0)")
    stamp(a, 15)
    l = a.newlabel("Lst")
    a("s_cmp_lg_u32 s%d, %d" % (sWAVE, CFG.swave))
    a("s_cbranch_scc1 %s" % l)
    a("s_lshl_b32 s3, s2, 6")
    a("s_add_u32 s3, s3, 0xF000000")
    a("v_mov_b32 v1, s3")
    a("s_mov_b64 exec, 1")
    for i in range(8):
        a("v_mov_b32 v2, s%d" % (84 + 2 * i))
        a("v_mov_b32 v3, s%d" % (85 + 2 * i))
        a("global_store_dwordx2 v1, v[2:3], s[%d:%d] offset:%d" % (sWS, sWS + 1, i * 8))
    if CFG.dbgwg >= 0:
        a("s_cmp_lg_u32 s2, %d" % CFG.dbgwg)
        a("s_cbranch_scc1 %s" % l)
        a("s_load_dwordx2 s[20:21], s[0:1], 64")
        a("s_waitcnt lgkmcnt(0)")
        a("v_mov_b32 v1, 0")
        for i in range(16):
            a("s_sub_u32 s3, s%d, s84" % (84 + i)) if i != 1 else a("s_mov_b32 s3, s85")
            a("v_mov_b32 v2, s3")
            a("global_store_dword v1, v2, s[20:21] offset:%d" % (4 * i))
    a.label(l)

vL, vX, vFS, vFP, vTK, vPL = 174, 175, 216, 217, 218, 219

NOPS = {"w": 2, "x": 8, "xr": 8, "csa": 2, "cs": 1, "h": 4, "w2": 2, "h2": 4, "part": 4, "ex": 8, "er": 8, "o": 12, "stf": 4}
CUR = [None]
def chk(a, tag, **over):
    k = tag if isinstance(tag, str) else tag[0]
    n = over.get(k, NOPS.get(k, 1))
    S_ = CUR[0]
    if a.cnt.get(tag, 0) < n and S_ is not None:
        if VERB: print("LATE", tag, a.cnt.get(tag, 0), file=sys.stderr)
        while a.cnt.get(tag, 0) < n:
            if k in ("x", "w", "w2", "h2"):
                assert not S_.inbar or S_.mem, ("needs space behind this barrier", tag)
                S_.refill()
                q = S_.mem
            elif k in ("h", "part"):
                S_.flush_epi(); continue
            else: q = S_.extra
            assert q, ("cannot produce", tag)
            q.pop(0)[1]()
    a.expect(tag, n)
def wvm(a, tags, **over):
    for t in tags: chk(a, t, **over)
    a.wait_vm(lambda t: t in tags)
def wlg(a, tags, **over):
    for t in tags: chk(a, t, **over)
    a.wait_lg(lambda t: t in tags)

def ityp(code):
    out = ""
    for l in code.split("\n"):
        op = l.strip().split(" ")[0]
        if not op: continue
        if op == "s_waitcnt": continue
        if op.startswith("s_"): out += "S"
        elif op.startswith(("v_exp", "v_rcp", "v_sqrt")): out += "T"
        elif op.startswith("v_"): out += "V"
        elif op.startswith("ds_read"): out += "D"
        elif op.startswith("ds_write"): out += "X"
        elif op.startswith("buffer_store_dwordx"): out += "O"
        else: out += "M"
    return out
def I(a, s, c=1):
    def fn(): a(s)
    fn.code = s
    return (ityp(s), fn)
def Q(a, code):
    out = []; ls = [l.strip() for l in code.split("\n") if l.strip()]
    i = 0
    while i < len(ls):
        grp = [ls[i]]
        if ls[i].startswith(("s_cmp", "s_bitcmp")):
            while i + 1 < len(ls) and ls[i + 1].startswith(("s_cmov", "s_cselect")):
                i += 1; grp.append(ls[i])
        out.append(I(a, "\n".join(grp), len(grp)))
        i += 1
    return out
def VM(a, fmt, tag=None, w=1.0):
    def fn(): a.vmem(fmt() if callable(fmt) else fmt, tag)
    fn.vm = w
    return (ityp(fmt), fn)
def run(fns):
    for c, fn in fns: fn()

def signal(a, soff_code, tag=None):
    return [I(a, soff_code),
            ("M", lambda: a.vmem("buffer_store_dword v%d, v%d, %s, s49 offen %s" % (vTK, vFS, WSR, SC), tag))]

LATER = []
NSLOW = []
def slow_path(a, body, name):
    ls, lb, lp = a.newlabel("Lslow"), a.newlabel("Lback"), a.newlabel("Lspin")
    a("s_cbranch_scc1 %s" % ls)
    a.label(lb)
    b = Asm()
    b.label(ls)
    b("s_mov_b32 s59, 40000")
    if CFG.stamp:
        NSLOW.append(name)
        b("s_or_b32 s85, s85, 0x%x" % (1 << (len(NSLOW) - 1)))
    b.label(lp)
    b("s_sleep 1")
    body(b)
    b("s_cbranch_scc0 %s" % lb)
    b("s_sub_u32 s59, s59, 1")
    b("s_cmp_lg_u32 s59, 0")
    b("s_cbranch_scc1 %s" % lp)
    b("s_branch %s" % lb)
    LATER.extend(b.lines)
def poll_issue(a, soff_code, tag, dst=None, off=None):
    return [I(a, soff_code),
            ("M", lambda: a.vmem("buffer_load_dword v%d, v%d, %s, s49 offen %s" % (dst or vPL, off or vFP, WSR, SC), tag))]
def poll_check(a, soff_code, tag, mask, dst=None, off=None):
    def f1():
        wvm(a, [tag])
        a("v_cmp_eq_u32 vcc, s%d, v%d" % (sTOK, dst or vPL))
    def f2():
        d = dst or vPL
        a("s_andn2_b32 s61, %s, vcc_lo" % mask)
        def body(b):
            b(soff_code)
            b("buffer_load_dword v%d, v%d, %s, s49 offen %s" % (d, off or vFP, WSR, SC))
            b("s_waitcnt vmcnt(0)")
            b("v_cmp_eq_u32 vcc, s%d, v%d" % (sTOK, d))
            b("s_andn2_b32 s61, %s, vcc_lo" % mask)
        slow_path(a, body, str(tag))
    return [("SV", f1), ("SS", f2)]
def poll_now(a, soff_code, mask):
    tag = ("poll", a.newlabel())
    run(poll_issue(a, soff_code, tag))
    run(poll_check(a, soff_code, tag, mask))

def stats_load(a):
    a("s_lshl_b32 s52, s2, 2")
    a("s_add_u32 s52, s52, s%d" % sWAVE)
    a("v_lshrrev_b32 v40, 5, v%d" % vL)
    a("v_lshl_add_u32 v40, s52, 1, v40")
    a("v_mul_u32_u24 v41, 1152, v40")
    a("v_and_b32 v42, 31, v%d" % vL)
    a("v_lshl_add_u32 v43, v42, 4, v41")
    a("v_cmp_gt_u32 vcc, 8, v42")
    a("v_mov_b32 v45, 0x%x" % OOB)
    a("v_lshlrev_b32 v40, 4, v40")
    a("v_cndmask_b32 v44, v45, v43, vcc")
    a("v_cmp_eq_u32 vcc, 0, v42")
def stats_issue(a):
    a.vmem("buffer_load_dwordx4 v[0:3], v43, %s, 0 offen" % XR, "ln")
    a.vmem("buffer_load_dwordx4 v[4:7], v43, %s, 0 offen offset:512" % XR, "ln")
    a.vmem("buffer_load_dwordx4 v[8:11], v44, %s, 0 offen offset:1024" % XR, "ln")
    a("v_cndmask_b32 v40, v45, v40, vcc")
def stats_compute(a):
    a("s_mov_b32 s49, 0x%x" % ONE2)
    a("s_waitcnt lgkmcnt(0)")
    a("s_add_u32 s%d, s%d, 1" % (sTOK, sTOK))
    a("v_mov_b32 v%d, s%d" % (vTK, sTOK))
    a("v_mov_b32 v17, s%d" % sTOK)
    a("v_mov_b32 v19, s%d" % sTOK)
    a.wait_vm(lambda t: t == "ln")
    for r in range(12):
        a("v_dot2_f32_bf16 v12, v%d, s49, %s" % (r, "0" if r == 0 else "v12"))
        a("v_dot2_f32_bf16 v13, v%d, v%d, %s" % (r, r, "0" if r == 0 else "v13"))
    a("s_mov_b32 s49, %d" % ST_OFF)
    a("s_nop 1")
    for ror in (1, 2, 4, 8):
        a("v_add_f32_dpp v12, v12, v12 row_ror:%d row_mask:0xf bank_mask:0xf" % ror)
        a("v_add_f32_dpp v13, v13, v13 row_ror:%d row_mask:0xf bank_mask:0xf" % ror)
        a("s_nop 0")
    a("v_mov_b32 v14, v12")
    a("v_mov_b32 v15, v13")
    a("s_nop 1")
    a("v_permlane16_swap_b32 v12, v14")
    a("v_permlane16_swap_b32 v13, v15")
    a("s_nop 0")
    a("v_add_f32 v12, v12, v14")
    a("v_add_f32 v13, v13, v15")
    a("v_mul_f32 v12, %s, v12" % f32(1.0 / 576))
    a("v_mul_f32 v13, %s, v13" % f32(1.0 / 576))
    a("v_fma_f32 v13, -v12, v12, v13")
    a("v_max_f32 v13, 0, v13")
    a("v_cvt_pk_bf16_f32 v13, v13, v13")
    a("v_cvt_pk_bf16_f32 v16, -v12, -v12")
    a("v_and_b32 v13, 0xffff0000, v13")
    a("v_add_f32 v13, %s, v13" % f32(1e-5))
    a("v_cvt_pk_bf16_f32 v13, v13, v13")
    a("v_and_b32 v13, 0xffff0000, v13")
    a("v_sqrt_f32 v13, v13")
    a("s_nop 0")
    a("v_cvt_pk_bf16_f32 v13, v13, v13")
    a("v_and_b32 v18, 0xffff0000, v13")
    a.vmem("buffer_store_dwordx4 v[16:19], v40, %s, s49 offen %s" % (WSR, SC), "st")

def lane_fields(a, vq, vrow, vc):
    a("v_lshrrev_b32 v%d, 4, v%d" % (vq, vL))
    a("v_bfe_u32 v%d, v%d, 2, 3" % (vrow, vL))
    a("v_and_b32 v%d, 3, v%d" % (vc, vL))

def dma_lane_off(a, vD, t0, t1, rowbytes, perm=False):
    return [I(a, "v_lshrrev_b32 v%d, 3, v%d" % (t0, vL)),
            I(a, "v_and_b32 v%d, 6, v%d" % (t1, t0)),
            I(a, "v_xor_b32 v%d, v%d, v%d" % (t1, t1, vL)),
            I(a, "v_and_b32 v%d, 7, v%d" % (t1, t1))] + \
           ([I(a, "v_and_b32 v%d, 4, v%d" % (vD, t0)), I(a, "v_add_u32 v%d, v%d, v%d" % (t0, t0, vD))] if perm else []) + [
            I(a, "v_mul_u32_u24 v%d, %d, v%d" % (t0, rowbytes, t0)),
            I(a, "v_lshl_add_u32 v%d, v%d, 4, v%d" % (vD, t1, t0))]

RA = 160
def tr_addrs(a, t0, t1, t2):
    lane_fields(a, t0, t1, t2)
    a("v_lshrrev_b32 v%d, 1, v%d" % (t0, t0))
    a("v_lshlrev_b32 v%d, 10, v%d" % (t0, t0))
    a("v_lshl_add_u32 v%d, v%d, 7, v%d" % (t0, t1, t0))
    a("v_lshl_add_u32 v%d, v%d, 3, v%d" % (t0, t2, t0))
    a("v_lshrrev_b32 v%d, 1, v%d" % (t1, t1))
    for u in range(4):
        a("v_xor_b32 v%d, %d, v%d" % (t2, u, t1))
        a("v_lshl_add_u32 v%d, v%d, 5, v%d" % (RA + u, t2, t0))
        a("v_add_u32 v%d, 0x10000, v%d" % (RA + 4 + u, RA + u))
        a("v_add_u32 v%d, 0x20000, v%d" % (RA + 8 + u, RA + u))

class XStage:
    def __init__(self, a, XO, XA, base, R, reg):
        self.a, self.XO, self.XA, self.base, self.R, self.reg = a, XO, XA, base, R, reg
    def setup_dma(self, t0, t1):
        a = self.a
        a("v_lshrrev_b32 v%d, 3, v%d" % (t0, vL))
        a("v_lshrrev_b32 v%d, 1, v%d" % (t1, t0))
        a("v_xor_b32 v%d, v%d, v%d" % (t1, t1, vL))
        a("v_and_b32 v%d, 7, v%d" % (t1, t1))
        a("s_lshl_b32 s52, s%d, 8" % sI)
        a("s_lshl_b32 s49, s%d, 6" % sWAVE)
        a("s_add_u32 s52, s52, s49")
        a("v_add_u32 v%d, s52, v%d" % (t0, t0))
        a("v_mul_u32_u24 v%d, 1152, v%d" % (t0, t0))
        a("v_lshl_add_u32 v%d, v%d, 4, v%d" % (self.XO, t1, t0))
        a("v_xor_b32 v%d, 64, v%d" % (self.XO + 1, self.XO))
        a("v_add_u32 v%d, %d, v%d" % (self.XO + 2, 2 * (8 * 1152 - 1024), self.XO))
        a("v_add_u32 v%d, %d, v%d" % (self.XO + 3, 3 * (8 * 1152 - 1024), self.XO + 1))
        a("v_add_u32 v%d, %d, v%d" % (self.XO + 1, 8 * 1152 - 1024, self.XO + 1))
        a("s_mul_i32 s%d, s%d, %d" % (sXL, sWAVE, self.R * 8192))
        a("s_add_u32 s%d, s%d, %d" % (sXL, sXL, self.base))
        a("s_lshl_b32 s%d, s%d, 7" % (sXo, sROT))
    def setup_read(self, t0, t1, t2):
        a = self.a
        a("v_and_b32 v%d, 15, v%d" % (t0, vL))
        a("v_lshrrev_b32 v%d, 1, v%d" % (t1, t0))
        a("v_lshrrev_b32 v%d, 4, v%d" % (t2, vL))
        a("v_xor_b32 v%d, v%d, v%d" % (t1, t1, t2))
        a("v_lshlrev_b32 v%d, 7, v%d" % (t0, t0))
        a("v_lshl_add_u32 v%d, v%d, 4, v%d" % (t0, t1, t0))
        a("v_add_u32 v%d, s%d, v%d" % (self.XA, sXL, t0))
        a("v_xor_b32 v%d, 64, v%d" % (self.XA + 1, self.XA))
    def dma(self, p):
        a = self.a
        fns = []
        if p >= self.R: fns.append(("S", lambda: wlg(a, [("xr", p - self.R)])))
        for hf in range(2):
            fns.append(I(a, "s_add_u32 m0, s%d, %d" % (sXL, (p % self.R) * 8192 + hf * 4096)))
            fns.append(I(a, "s_add_u32 s54, s%d, %d" % (sXo, hf * 32 * 1152)))
            for b in range(4):
                fns.append(VM(a, "buffer_load_dwordx4 v%d, %s, s54 offen offset:%d lds" % (self.XO + b, XR, b * 1024), ("x", p)))
        fns.append(I(a, "s_add_u32 s%d, s%d, 128\ns_cmp_ge_u32 s%d, 1152\ns_cmov_b32 s%d, 0" % (sXo, sXo, sXo, sXo), 3))
        return fns
    def job(self, p):
        return ("x", lambda: p < self.R or self.a.cnt.get(("xr", p - self.R), 0) == 8, lambda: self.dma(p))
    def reads(self, p):
        a = self.a
        fns = [("S", lambda: wvm(a, [("x", p)]))]
        for e in range(2):
            for tt in range(4):
                k, b = self.reg(2 * p + e, tt)
                fns.append(("D", lambda k=k, b=b, e=e, tt=tt: a.lds("ds_read_b128 %s, v%d offset:%d" % (R(k, b, 4), self.XA + e, (p % self.R) * 8192 + tt * 2048), ("xr", p))))
        return fns

class Stream:
    def __init__(self, a, kind, base):
        self.a, self.kind, self.base = a, kind, base
        self.slots = []; self.ring = []
        self.nring = 0
        self.next_rd = 0
        self.epi = []; self.deadline = 0; self.epiP = None; self.hold = 0; self.edone = {}; self.short = False
        self.extra = []
        self.inbar = False
        CUR[0] = self
        self.vmacc = 1.0; self.vmrate = CFG.vmrate / 100.0
        self.jobs = []; self.mem = []
        self.pos = 0
    def refill(self):
        if self.mem: return
        blocked = set()
        for j, (cl, ready, make) in enumerate(self.jobs):
            if cl in blocked: continue
            if len(self.a.vm) <= 50 and ready():
                self.mem = make(); self.jobs.pop(j); return
            blocked.add(cl)
    def head(self, q):
        if q and "\n" in getattr(q[0][1], "code", "") and not getattr(q[0][1], "atom", False):
            parts = Q(self.a, q[0][1].code)
            for c, f in parts: f.atom = True
            q[0:1] = parts
        return q[0] if q else None
    def add(self, rd, mf):
        self.slots.append((rd, mf))
        self.ring.append(self.nring if rd else None)
        if rd: self.nring += 1
    def cur_ring(self, s):
        while s < len(self.slots) and self.ring[s] is None: s += 1
        return self.ring[s] if s < len(self.slots) else self.nring
    def read_limit(self, s):
        return self.cur_ring(s) + 4
    def pending_reads(self, lim):
        out = []
        while self.next_rd < len(self.slots):
            n = self.next_rd
            if self.ring[n] is None: self.next_rd += 1; continue
            if self.ring[n] > lim: break
            out += self.slots[n][0](self.kind, self.base + 4 * (self.ring[n] % 8), ("f", self.ring[n]))
            self.next_rd += 1
        return out
    def prime(self): run(self.pending_reads(self.cur_ring(self.pos) + 3))
    def set_epi(self, items, deadline, hold=0, ordered=True):
        assert not self.epi
        ops = []
        for n, it in enumerate(items):
            deps = set()
            if ordered:
                if n: deps.add(n - 1)
            else:
                rd, wr = set(it[2]), set(it[3])
                for m in range(n):
                    if (rd | wr) & set(items[m][3]) or wr & set(items[m][2]): deps.add(m)
            ops.append([it[0], it[1], deps, n])
        self.epi = ops; self.edone = {}; self.deadline = deadline; self.hold = self.pos + hold
    def epi_cost(self): return sum(2 if o[0] in "TMOX" and o[0] else len(o[0]) for o in self.epi)
    def epi_pick(self, fits, strict=True):
        if self.pos < self.hold or (strict and self.short): return None
        for o in self.epi[:CFG.window]:
            ok = True
            for d in o[2]:
                if d not in self.edone: ok = False; break
                t, at = self.edone[d]
                if (t == "T" or strict) and t in ("T", "V") and o[0] in ("T", "V") and self.a.n - at < 1: ok = False; break
            if ok and fits(o[0]): return o
        return None
    def epi_run(self, o):
        self.epi.remove(o); o[1](); self.edone[o[3]] = (o[0], self.a.n)
    def flush_epi(self):
        while self.epi:
            o = self.epi_pick(lambda t: True, False)
            if o is None: self.a("s_nop 0"); continue
            self.epi_run(o)
    def emit(self, pre=(), push=0):
        a = self.a
        s = self.pos
        rd, mf = self.slots[s]
        r = self.ring[s]
        if r is not None: a.wait_lg(lambda t: t == ("f", r))
        mfmas = mf(R(self.kind, self.base + 4 * (r % 8), 4) if r is not None else None)
        n = len(mfmas)
        must = list(pre) + (self.pending_reads(self.read_limit(s)) if n == 4 else [])
        self.short = n < 4
        force = 0
        if self.epi and s >= self.hold and (n == 4 or self.deadline - s <= 1):
            left = max(self.deadline - s, 1)
            force = self.epi_cost() - int((left - 1) * CFG.epirate)
            if left * CFG.epirate < self.epi_cost(): force = math.ceil(self.epi_cost() / left)
        if n == 4: self.vmacc = min(self.vmacc + self.vmrate, 2.0)
        cost0 = self.epi_cost()
        for g, m in enumerate(mfmas):
            a(m)
            st = {"pos": 0, "vec": False, "bar": False}
            def place(t, commit=False):
                pos, vec, bar = st["pos"], st["vec"], st["bar"]
                for c in t:
                    if c == "B": pos += 2; bar = True
                    elif c == "S": pos += 1
                    elif c == "D":
                        if vec or bar: return False
                        pos = max(pos, 1) + 1; vec = True
                    elif c == "V": pos = max(pos, 1) + 1; vec = True
                    elif c == "T":
                        pos = max(pos, 1) + 2; vec = True
                    elif c == "M":
                        if pos: return False
                        pos = 3; vec = True
                    elif c == "O":
                        if pos: return False
                        pos = 2; vec = True
                    elif c == "X":
                        if vec or pos > 1: return False
                        pos = 3; vec = True
                if pos > 3: return False
                if commit: st["pos"], st["vec"], st["bar"] = pos, vec, bar
                return True
            def take(lst):
                t, f = lst.pop(0); place(t, True); f()
                if getattr(f, "vm", False): self.vmacc -= f.vm
            free_q = n == 4 and not any(t == "B" for t, f in must)
            nd = sum(1 for t, f in must if t == "D")
            want_d = nd > 0 and (nd >= n - g or g % 2 == 0 or nd > (n - g) // 2)
            def heads():
                out = []
                if not any(t == "B" for t, f in must):
                    self.refill()
                    for lst in (self.mem, self.extra):
                        h = self.head(lst)
                        if h is None: continue
                        if lst is self.mem and getattr(h[1], "vm", False) and self.vmacc < 1: continue
                        out.append(lst)
                return out
            def drop_free():
                ch = True
                while ch:
                    ch = False
                    for lst in heads():
                        if lst[0][0] == "": take(lst); ch = True
                    o = self.epi_pick(lambda t: t == "") if free_q or not must or must[0][0] != "B" else None
                    if o: self.epi_run(o); ch = True
            while must and must[0][0] == "B":
                self.inbar = True; take(must); self.inbar = False
            st["w"] = False
            if g == n - 1 and n == 4:
                nx = self.cur_ring(s + 1)
                if ("f", nx) in a.lg and a.cnt.get(("f", nx), 0) % 2 == 0:
                    two = a.cnt.get(("f", nx + 1), 0) == 2
                    a.wait_lg(lambda t: t == ("f", nx) or (two and t == ("f", nx + 1))); st["w"] = True
            drop_free()
            done_heavy = False
            if not want_d and not (must and must[0][0] == "V"):
                for lst in heads():
                    if lst[0][0] in ("M", "O", "X") and place(lst[0][0]): take(lst); done_heavy = True; break
                if not done_heavy:
                    o = self.epi_pick(lambda t: t in ("O", "M", "X") and place(t))
                    if o: place(o[0], True); self.epi_run(o); done_heavy = True
            if not done_heavy:
                if st["w"]: place("S", True)
                if st["pos"] == 0:
                    for lst in heads():
                        if lst[0][0] == "S" or (lst[0][0] in ("SS", "SV") and not want_d): take(lst); break
                    else:
                        o = self.epi_pick(lambda t: t == "S")
                        if o: place("S", True); self.epi_run(o)
                    drop_free()
                if must and must[0][0] == "D" and want_d and place("D"): take(must)
                elif not want_d:
                    for lst in heads():
                        if lst[0][0] == "D" and place("D"): take(lst); break
                    else:
                        o = self.epi_pick(lambda t: t == "D" and place(t))
                        if o: place("D", True); self.epi_run(o)
            while True:
                drop_free()
                if must and must[0][0] == "V" and place("V"): take(must); continue
                for lst in heads():
                    if lst[0][0] and set(lst[0][0]) <= set("SVT") and place(lst[0][0]): take(lst); break
                else:
                    o = self.epi_pick(lambda t: t == "T" and place(t)) or self.epi_pick(lambda t: t in ("V", "S") and place(t))
                    if o is None: break
                    place(o[0], True); self.epi_run(o)
            want = force * (g + 1) / n
            while self.epi and cost0 - self.epi_cost() < want:
                o = self.epi_pick(lambda t: t in ("V", "T", "S", "") or g == n - 1, False)
                if o is None: break
                self.epi_run(o)
            if g == n - 1:
                while must: must.pop(0)[1]()
                k = push
                while k > 0 and self.head(self.extra): self.extra.pop(0)[1](); k -= 1
        self.pos += 1

def tr_read(a, off_fn, u):
    def rd(kind, reg, tag):
        off = off_fn()
        return [("D", lambda h=h: a.lds("ds_read_b64_tr_b16 %s, v%d offset:%d" % (R(kind, reg + 2 * h, 2), RA + 4 * (off >> 16) + u, (off & 0xffff) + h * 2048), tag)) for h in range(2)]
    return rd

WF = 128
HRING = 10
GORDER = [2, 1, 0]
def acc2(c, tt):
    m = c >> 1
    if c & 1: return ("a", 160 + 16 * m + 4 * tt)
    return ("v", (16 * m if m < 4 else 224 + 16 * (m - 4)) + 4 * tt)
def hr(st, tt): return A(16 * (st % HRING) + 4 * tt, 4)
sPX = 56
vEW, vER, vXP, vOU = 195, 196, 192, 193
sLS = 74
TS = [4, 5, 6, 10, 11, 20]
HB = {0: 12, 1: 13, 2: 62}
WB = {0: 14, 1: 15, 2: 3}
def rot_bases(a, other):
    if CFG.hrot == 2:
        a("s_add_u32 s61, s68, s%d" % other)
        a("s_mul_i32 s60, s61, 43")
        a("s_lshr_b32 s60, s60, 7")
        a("s_mul_i32 s60, s60, 3")
        a("s_sub_u32 s61, s61, s60")
    else: a("s_mov_b32 s61, s68")
    for k in range(3):
        if CFG.hrot:
            a("s_add_u32 s52, s61, %d" % k)
            a("s_cmp_ge_u32 s52, 3")
            a("s_cselect_b32 s60, 3, 0")
            a("s_sub_u32 s52, s52, s60")
        else: a("s_mov_b32 s52, %d" % k)
        a("s_mul_i32 s60, s52, %d" % (192 * 1152))
        a("s_add_u32 s%d, s63, s60" % WB[k])
        a("s_mul_i32 s60, s52, %d" % (6 * KSTRIDE))
        a("s_add_u32 s%d, s62, s60" % HB[k])

class P2:
    def __init__(self, a, steps, VO, VS, VX, atype):
        self.a = a; self.steps = steps; self.VO = VO; self.VS = VS; self.VX = VX; self.atype = atype
        self.loc = {}
        self.free = []
        self.visible = set()
        self.cur = 0
        NS, K = len(steps), (CFG.ka if atype else CFG.kseq)
        D = K if atype else CFG.defer
        self.order = [(st, c) for st in range(NS - K) for c in range(0 if st < NS - D else 2, 12)]
        self.seq0 = len(self.order)
        self.groups = []
        for keep, n in [((8, 10), K), ((4, 6), K)] + ([((0, 2), K)] if atype else [((2,), K), ((0,), D)]):
            self.order += [(st, c + 1) for st in range(NS - n, NS) for c in keep]
            e1 = len(self.order)
            self.order += [(st, c) for st in range(NS - n, NS) for c in keep]
            self.groups.append((keep, e1, len(self.order)))
        self.units = []
        for st, c in self.order:
            if (st, c >> 2) not in self.units: self.units.append((st, c >> 2))
    def setup_s(self):
        a = self.a
        srd(a, rW2, sW2, 4608 * 1152)
        srd(a, rWO, sWO, 576 * 1152)
        a("s_lshl_b32 s66, s%d, 11" % sWAVE)
    def setup_vo(self, t0, t1, half_code, sTile=sI):
        a = self.a
        return dma_lane_off(a, self.VO, t0, t1, 1152) + Q(a, """s_mul_i32 s52, s68, 384
            s_and_b32 s60, s{W}, 1
            s_mul_i32 s60, s60, {R16}
            s_add_u32 s52, s52, s60
            v_add_u32 v{VO}, s52, v{VO}
            v_add_u32 v{VO1}, {D}, v{VO}
            {HALF}
            s_lshl1_add_u32 s52, s{I}, s52
            s_mul_i32 s9, s52, 3
            s_add_u32 s9, s9, s68
            s_lshl_b32 s9, s9, 7
            s_add_u32 s9, s9, {FP}
            s_and_b32 s60, s{W}, 1
            s_lshl1_add_u32 s52, s52, s60
            s_lshl_b32 s52, s52, 12
            v_lshl_add_u32 v{VX}, v{L}, 4, s52""".format(W=sWAVE, R16=16 * 1152, VO=self.VO, VO1=self.VO + 1, D=8 * 1152 - 1024, HALF=half_code, FP=FL(FP), I=sTile, VX=self.VX, L=vL))
    def setup_special(self, t0, t1, t3):
        a = self.a
        for k in range(2):
            a("s_and_b32 s49, s%d, 1" % sWAVE)
            a("s_lshl_b32 s49, s49, 4")
            a("v_lshrrev_b32 v%d, 3, v%d" % (t0, vL))
            a("v_add3_u32 v%d, s49, v%d, %d" % (t0, t0, 8 * k))
            a("v_lshrrev_b32 v%d, 4, v%d" % (t1, t0))
            a("v_mul_u32_u24 v%d, 72, v%d" % (t1, t1))
            a("v_bfe_u32 v%d, v%d, 2, 2" % (t3, t0))
            a("v_lshl_add_u32 v%d, v%d, 4, v%d" % (t1, t3, t1))
            a("v_lshrrev_b32 v%d, 1, v%d" % (t3, t3))
            a("v_lshl_add_u32 v%d, v%d, 2, v%d" % (t1, t3, t1))
            a("v_and_b32 v%d, 3, v%d" % (t3, t0))
            a("v_add3_u32 v%d, v%d, v%d, 16" % (t1, t1, t3))
            a("v_sub_u32 v%d, v%d, v%d" % (t1, t1, t0))
            a("v_mul_u32_u24 v%d, 1152, v%d" % (t1, t1))
            a("v_add_u32 v%d, v%d, v%d" % (self.VS + k, self.VO + k, t1))
    def h_issue(self, st):
        a = self.a
        pl, row, kind = self.steps[st]
        fns = [I(a, "s_add_u32 s54, s%d, %d" % (HB[kind] if kind in HB else (7 if kind == "woa" else 64), pl * KSTRIDE))]
        for tt in range(4):
            fns.append(VM(a, "buffer_load_dwordx4 %s, v%d, %s, s54 offen offset:%d %s" % (hr(st, tt), self.VX, WSR, tt * 1024, SC), ("h2", st), CFG.hw))
        return fns
    def dma_issue(self, st, ln):
        a = self.a
        pl, row, kind = self.steps[st]
        r = rW2 if kind in HB else rWO
        vo = self.VS if kind == "wos" else self.VO
        sl = self.free.pop(0)
        self.loc[(st, ln)] = sl
        return [I(a, "s_add_u32 m0, s66, %d" % (sl * 8192)),
                I(a, "s_add_u32 s55, s%d, %d" % (WB[kind] if kind in WB else 65, row * 1152 + ([2, 0, 1][ln] if self.atype else ln) * 128))] + \
               ([I(a, "%s s55, s55, s%d" % (["s_add_u32", "s_sub_u32"][ln], sLS))] if ln < 2 and not self.atype else []) + [
                VM(a, "buffer_load_dwordx4 v%d, s[%d:%d], s55 offen lds" % (vo, r, r + 3), ("w2", st, ln)),
                VM(a, "buffer_load_dwordx4 v%d, s[%d:%d], s55 offen offset:1024 lds" % (vo + 1, r, r + 3), ("w2", st, ln))]
    def jobs(self, first, w_ok, h_ok):
        out = []; hs = set(range(first))
        for st, ln in self.units:
            if st < first: continue
            if st not in hs:
                hs.add(st)
                def mk(st=st):
                    self.hpos = CUR[0].pos
                    return self.h_issue(st)
                out.append(("h2", lambda st=st: st - HRING < self.cur and h_ok(st) and CUR[0].pos >= self.hpos + CFG.hgap, mk))
            out.append(("w2", lambda st=st: len(self.free) > self.reserve and w_ok(st), lambda st=st, ln=ln: self.dma_issue(st, ln)))
        return out
    reserve = 0
    hpos = -100
    def add_slots(self, S_):
        a = self.a
        self.s0 = len(S_.slots)
        fixed = set()
        for st, c in self.order:
            def rd(kind, reg, tag, st=st, c=c):
                assert (st, c >> 2) in self.visible, (st, c)
                off = self.loc[(st, c >> 2)] * 8192
                ra = RA + 4 * (off >> 16) + (c & 3)
                out = []
                if ra not in fixed:
                    fixed.add(ra); out.append(I(a, "v_xor_b32 v%d, s%d, v%d" % (ra, sPX, ra)))
                return out + tr_read(a, lambda: off, c & 3)(kind, reg, tag)
            def mf(w, st=st, c=c):
                return ["%s %s, %s, %s, %s" % (MF, R(*acc2(c, tt), 4), w, hr(st, tt), "0" if st == 0 else R(*acc2(c, tt), 4)) for tt in range(4)]
            S_.add(rd, mf)
    def exchange(self, g, tmp):
        a = self.a
        keep = self.groups[g][0]
        send = []; recv = []; fin = []
        def adj(q, reg, cur, want):
            if cur[0] != want: q.append(I(a, "v_add_u32 v%d, 0x%x, v%d" % (reg, (want - cur[0]) & 0xffffffff, reg))); cur[0] = want
        for k, (c, tt) in enumerate([(c, tt) for c in keep for tt in range(4)]):
            off = self.scratch[k >> 1] * 8192 + (k & 1) * 4096
            adj(send, vEW, self.ew, off & ~0xffff)
            send.append(("X", lambda c=c, tt=tt, off=off: a.lds("ds_write_b128 v%d, %s offset:%d" % (vEW, R(*acc2(c + 1, tt), 4), off & 0xffff), ("ex", g))))
            adj(recv, vER, self.er, off & ~0xffff)
            recv.append(("D", lambda k=k, off=off: a.lds("ds_read_b128 %s, v%d offset:%d" % (V(tmp + 4 * k, 4), vER, off & 0xffff), ("er", g))))
        for n, c in enumerate(keep):
            for tp in range(2):
                r0 = acc2(c, 2 * tp)[1]; t = tmp + 16 * n + 8 * tp
                for i in range(8): fin.append(I(a, "v_add_f32 v%d, v%d, v%d" % (r0 + i, r0 + i, t + i)) + ([r0 + i, t + i], [r0 + i]))
                for i in range(4): fin.append(I(a, "v_cvt_pk_bf16_f32 v%d, v%d, v%d" % (r0 + i, r0 + 2 * i, r0 + 2 * i + 1)) + ([r0 + 2 * i, r0 + 2 * i + 1], [r0 + i]))
                fin.append(VM(a, "buffer_store_dwordx4 %s, v%d, %s, s%d offen offset:%d %s" % (V(r0, 4), vXP, WSR, TS[c >> 1], tp * 1024, SC), ("part", g)) + ([r0, r0 + 1, r0 + 2, r0 + 3], []))
        return send, recv, fin
    def fin_setup(self):
        a = self.a
        code = """s_mul_i32 s75, s67, 36
            s_mul_i32 s52, s68, 12
            s_lshr_b32 s60, s{W}, 1
            s_add_u32 s52, s52, s60
            s_add_u32 s75, s75, s52
            s_lshl_b32 s75, s75, 16
            s_add_u32 s75, s75, {PART}
            """.format(W=sWAVE, PART=PART_OFF)
        if self.atype:
            for m in range(6): code += "s_add_u32 s%d, s75, %d\n" % (TS[m], ([2, 0, 1][m >> 1] * 4 + 2 * (m & 1)) * 65536)
        else:
            code += "s_lshl_b32 s60, s%d, 11\ns_and_b32 s61, s67, 1\ns_lshl_b32 s61, s61, 17\n" % sLS
            for m in range(6):
                code += "s_add_u32 s%d, s75, %d\n" % (TS[m], ((m >> 1) * 4 + 2 * (m & 1)) * 65536)
                if m >> 1 < 2: code += "%s s%d, s%d, s60\n" % (["s_add_u32", "s_sub_u32"][m >> 1], TS[m], TS[m])
                code += "%s s%d, s%d, s61\n" % (["s_add_u32", "s_sub_u32"][m & 1], TS[m], TS[m])
        code += """s_mul_i32 s60, s67, {PSL}
            s_sub_u32 s73, s{T0}, s60
            s_sub_u32 s75, s73, {PART}
            s_lshr_b32 s75, s75, 11
            v_lshlrev_b32 v194, 4, v{L}
            v_sub_u32 v{XP}, v{VX}, v194
            v_lshrrev_b32 v{OU}, 6, v{XP}
            v_lshrrev_b32 v{XP}, 1, v{XP}
            v_add_u32 v{XP}, v{XP}, v194
            s_lshl_b32 s52, s{W}, 10
            v_add_u32 v{EW}, s52, v194
            v_xor_b32 v{ER}, 0x800, v{EW}
            v_and_b32 v194, 15, v{L}
            v_add_u32 v{OU}, v{OU}, v194
            v_mul_u32_u24 v{OU}, 1152, v{OU}
            v_lshrrev_b32 v194, 4, v{L}
            v_lshl_add_u32 v{OU}, v194, 3, v{OU}
            s_mov_b32 s76, 0x3f80
            s_mov_b32 s77, 0x3f800000""".format(PSL=PSL, T0=TS[0], PART=PART_OFF, L=vL, XP=vXP, VX=self.VX, OU=vOU, W=sWAVE, EW=vEW, ER=vER)
        b_ = Asm(); srd(b_, rWA, sOUT, 2048 * 1152)
        q = Q(a, code + "\n" + "\n".join(b_.lines))
        for n in range(len(self.groups[-1][0])):
            for tt in range(4):
                q.append(I(a, "s_add_u32 s52, s75, %d" % (tt * 16 * 1152)))
                q.append(VM(a, "buffer_load_dwordx2 %s, v%d, %s, s52 offen offset:%d" % (V(XB + 8 * n + 2 * tt, 2), vOU, XR, 64 * n), "x3"))
        return q
    def main(self, S_, hooks, dead0):
        a = self.a
        NG = len(self.groups)
        seen = set()
        self.ew = [0]; self.er = [0]
        def psig(k): return signal(a, "s_lshl2_add_u32 s49, s67, s9\ns_add_u32 s49, s49, %d" % (32 * k))
        N = len(self.order)
        stepend = {}
        for s, (st, c) in enumerate(self.order[:self.seq0]): stepend[st] = s
        bars = {e - 4: None for e in stepend.values()}
        ev = {}
        tmp = [64, 96, 64, 80]
        t = 0
        for g, (keep, e1, e2) in enumerate(self.groups):
            n = len(keep)
            s_send = max(e1 + 2, t)
            s_bar = s_send + (CFG.exs if n == 2 else (CFG.exs + 1) // 2)
            s_fin = max(e2 + 2, s_bar + 2 * n + 1)
            ev.setdefault(s_send, []).append(("send", g)); ev.setdefault(s_bar, []).append(("recv", g)); ev.setdefault(s_fin, []).append(("fin", g))
            bars[s_send] = None; bars[s_bar] = None
            t = s_bar + 2 * n + 1
        assert max(s for s in ev if ("fin", NG - 1) not in ev[s]) < N, (ev, N)
        s_early = N - CFG.early
        if not self.atype: bars[s_early] = None
        s_mid = N - CFG.mid if CFG.mid and not self.atype else -1
        if s_mid > 0: bars[s_mid] = None
        keep = self.groups[-1][0]
        def pb(r, n):
            k = r * len(keep) + n
            return 96 + 8 * k if k < 4 else 32 + 8 * (k - 4)
        s_af = N - CFG.af if CFG.af and self.atype else -1
        if s_af > 0: bars[s_af] = None
        def ploads(r):
            q = []
            if self.atype: q.append(I(a, "s_add_u32 s58, s73, %d" % (r * PSL)))
            elif r == 0: q.append(I(a, "s_add_u32 s58, s73, %d" % (4 * PSL)))
            else: q += Q(a, "s_xor_b32 s52, s67, %d\ns_mul_i32 s52, s52, %d\ns_add_u32 s58, s73, s52" % (4 - r, PSL))
            for n in range(len(keep)):
                if n: q.append(I(a, "s_add_u32 s58, s58, %d" % (2 * 65536)))
                for tp in range(2):
                    q.append(VM(a, "buffer_load_dwordx4 %s, v%d, %s, s58 offen offset:%d %s" % (V(pb(r, n) + 4 * tp, 4), vXP, WSR, tp * 1024, SC), ("p", r)))
            return q
        last = {}
        for s, (st, c) in enumerate(self.order): last[(st, c >> 2)] = s
        freed = set()
        ex = {}
        cnt = lambda g: dict(ex=4 * len(self.groups[g][0]), er=4 * len(self.groups[g][0]), part=2 * len(self.groups[g][0]))
        first_bar = min(bars)
        for s, (st, c) in enumerate(self.order):
            if st not in seen:
                seen.add(st)
                self.cur = st
                if VERB: a.cm("HS p2 step %d" % st)
                if st < 11: stamp(a, 4 + st, 3)
                wvm(a, [("h2", st)])
                if st in (0, 8): stamp(a, 10 + st // 8)
            pre = []
            r = s - self.seq0
            if VERB and r > 0 and r % 10 == 0: a.cm("HS p2 tail %d" % r)
            if r >= 0 and r % 8 == 0 and r < 64: stamp(a, 4 + r // 8, 4)
            if r == -CFG.rsv: self.reserve = 4
            evs = ev.get(s, [])
            if s in bars:
                nxt = min([b for b in bars if b > s] + [N])
                lim = S_.read_limit(self.s0 + nxt - 1) - S_.ring[self.s0]
                need = []
                for st2, c2 in self.order[:lim + 1]:
                    u = (st2, c2 >> 2)
                    if u not in self.visible and u not in need: need.append(u)
                hk = hooks.get(st, {}) if r < 0 else {}
                tags = [("w2",) + u for u in need] + hk.get("bar", [])
                lg = []; ptags = []
                aft = list(hk.get("after", []))
                dead = [u for u in last if last[u] < s and u not in freed]
                newfree = [self.loc[u] for u in dead] + (dead0 if s == first_bar else [])
                for kind, g in evs:
                    if kind == "send" and g > 0: lg.append(("er", g - 1))
                    if kind == "recv": lg.append(("ex", g)); aft += ex[g][1]
                if s == s_early and not self.atype:
                    ptags.append(("part", 0)); aft += psig(0)
                if s == s_af:
                    ptags.append(("part", 1))
                    aft += psig(1) + poll_check(a, "s_mov_b32 s49, s9", "pla", "0xf") + ploads(0) + ploads(1) + ploads(2) + ploads(3)
                if s == s_mid:
                    ptags.append(("part", 1)); aft += psig(2)
                if tags or lg or ptags or aft or (newfree and S_.jobs):
                    def bar(tags=tags, lg=lg, ptags=ptags):
                        for t_ in lg: wlg(a, [t_], **cnt(t_[1]))
                        for t_ in ptags: wvm(a, [t_], **cnt(t_[1]))
                        wvm(a, tags)
                        a("s_barrier")
                    pre.append(("B", bar))
                    self.visible.update(need); freed.update(dead); self.free += newfree
                    S_.extra += aft
            for kind, g in evs:
                if kind == "send":
                    if g == 0:
                        self.scratch = sorted(self.free[:4]); self.free = self.free[4:]; self.reserve = 0
                        assert len(self.scratch) == 4
                    ex[g] = self.exchange(g, tmp[g])
                    S_.extra += ex[g][0]
                if kind == "recv" and g >= 2: chk(a, ("part", 0), **cnt(0))
                if kind == "fin":
                    wlg(a, [("er", g)], **cnt(g))
                    S_.flush_epi()
                    S_.set_epi(ex[g][2], S_.pos + CFG.findl * len(self.groups[g][0]), 0, False)
            if r == -CFG.fsat: S_.extra += self.fin_setup()
            if s_af > 0 and s == s_af - CFG.ap: S_.extra += poll_issue(a, "s_mov_b32 s49, s9", "pla")
            if s_mid > 0 and s == N - CFG.pmid:
                S_.extra += Q(a, "s_and_b32 s8, s67, 2\ns_lshr_b32 s8, 0xc0000, s8\ns_or_b32 s8, s8, 0x1000") + poll_issue(a, "s_mov_b32 s49, s9", "plm")
            S_.emit(pre)
        assert not S_.jobs and not S_.mem
        run(S_.extra); S_.extra = []
        S_.flush_epi()
        if VERB: a.cm("END")
        stamp(a, 12); stamp(a, 12, 4)
        CUR[0] = None
        if s_af < 0:
            wvm(a, [("part", NG - 2)], **cnt(NG - 2))
            a("s_barrier")
            run(psig(1))
        stamp(a, 13)
        done = [0, 1, 2, 3] if s_af > 0 else []
        if s_mid > 0:
            run(poll_check(a, "s_mov_b32 s49, s9", "plm", "s8"))
            done = [0, 1, 2]
            for r in done: run(ploads(r))
        vmkeep = [t_ for t_ in a.vm if t_ is not None and t_[0] == "p"]
        lw = a.newlabel("Lfw")
        if s_af < 0:
            a("s_cmp_lg_u32 s%d, 3" % sWAVE)
            a("s_cbranch_scc1 %s" % lw)
        if s_af > 0: a("s_nop 7")
        elif self.atype: spin(a, "s_mov_b32 s49, s9", "0xf", CFG.slp0)
        else:
            if s_mid > 0:
                a("s_xor_b32 s52, s67, 1")
                a("s_lshl_b32 s52, 0x100, s52")
            else:
                a("s_lshl_b32 s52, 0x100, s67")
                a("s_andn2_b32 s52, 0x1f00, s52")
            spin(a, "s_mov_b32 s49, s9", "s52", CFG.slp1)
            a("s_cmp_lg_u32 s2, 0")
            a("s_cbranch_scc1 %s" % lw)
            a("s_mov_b32 s49, 0x%x" % FL(0))
            a("buffer_store_dword v%d, v%d, %s, s49 offen" % (vTK, vFS, WSR))
        a.label(lw)
        if s_af < 0: a("s_barrier")
        stamp(a, 14)
        assert "x3" not in a.vm
        if s_af < 0: a.vm = vmkeep
        for r in range(4):
            if r not in done: run(ploads(r))
        wlg(a, [("er", NG - 1)], **cnt(NG - 1))
        for n, c in enumerate(keep):
            r0 = acc2(c, 0)[1]
            for i in range(0, 16, 2): a("v_pk_add_f32 %s, %s, %s" % (V(r0 + i, 2), V(r0 + i, 2), V(tmp[NG - 1] + 16 * n + i, 2)))
            for i in range(8):
                a("v_dot2_f32_bf16 v%d, v%d, s76, v%d" % (r0 + 2 * i, XB + 8 * n + i, r0 + 2 * i))
                a("v_dot2_f32_bf16 v%d, v%d, s77, v%d" % (r0 + 2 * i + 1, XB + 8 * n + i, r0 + 2 * i + 1))
        for r in range(4):
            a.wait_vm(lambda t_: t_ == ("p", r))
            for n, c in enumerate(keep):
                r0 = acc2(c, 0)[1]
                for i in range(8):
                    p = pb(r, n) + i
                    a("v_dot2_f32_bf16 v%d, v%d, s76, v%d" % (r0 + 2 * i, p, r0 + 2 * i))
                    a("v_dot2_f32_bf16 v%d, v%d, s77, v%d" % (r0 + 2 * i + 1, p, r0 + 2 * i + 1))
        a("s_nop 2")
        for n, c in enumerate(keep):
            r0 = acc2(c, 0)[1]
            for i in range(8): a("v_cvt_pk_bf16_f32 v%d, v%d, v%d" % (r0 + i, r0 + 2 * i, r0 + 2 * i + 1))
            for tt in range(4):
                a("s_add_u32 s52, s75, %d" % (tt * 16 * 1152))
                a("buffer_store_dwordx2 %s, v%d, s[%d:%d], s52 offen offset:%d" % (V(r0 + 2 * tt, 2), vOU, rWA, rWA + 3, 64 * n))

XB = 176

def hilo(a, v, t0, t1):
    return [I(a, "v_cvt_pk_bf16_f32 v%d, v%d, v%d" % (t0, v, v)),
            I(a, "v_and_b32 v%d, 0xffff0000, v%d" % (t0, t0)),
            I(a, "v_sub_f32 v%d, v%d, v%d" % (t1, v, t0)),
            I(a, "v_cvt_pk_bf16_f32 v%d, v%d, v%d" % (v, t0, t1))]

def stats_fetch(a, kind, base, vaddr):
    fns = [I(a, "s_mov_b32 s49, %d" % ST_OFF)]
    for tt in range(4):
        fns.append(("M", lambda tt=tt: a.vmem("buffer_load_dwordx4 %s, v%d, %s, s49 offen offset:%d %s" % (R(kind, base + 4 * tt, 4), vaddr, WSR, 256 * tt, SC), "stf")))
    return fns
def stats_check(a, kind, base, vaddr, t0):
    code = []
    for n, r in enumerate([base + 4 * tt + k for tt in range(4) for k in (1, 3)]):
        if kind == "a":
            code.append("v_accvgpr_read_b32 v%d, a%d" % (t0, r)); r = t0
        if n == 0: code.append("v_cmp_eq_u32 s[60:61], s%d, v%d" % (sTOK, r))
        else: code += ["v_cmp_eq_u32 vcc, s%d, v%d" % (sTOK, r), "s_and_b64 s[60:61], s[60:61], vcc"]
    def last():
        a("s_cmp_lg_u64 s[60:61], -1")
        def body(b):
            b("s_mov_b32 s49, %d" % ST_OFF)
            for tt in range(4):
                b("buffer_load_dwordx4 %s, v%d, %s, s49 offen offset:%d %s" % (R(kind, base + 4 * tt, 4), vaddr, WSR, 256 * tt, SC))
            b("s_waitcnt vmcnt(0)")
            b("\n".join(code))
            b("s_cmp_lg_u64 s[60:61], -1")
        slow_path(a, body, "stats")
    return [("S", lambda: wvm(a, ["stf"]))] + [I(a, c) for c in code] + [("SS", last)]
def stats_addr(a, dst):
    return [I(a, "v_and_b32 v%d, 15, v%d" % (dst, vL)),
            I(a, "s_lshl_b32 s52, s%d, 12\ns_lshl_b32 s60, s%d, 10\ns_add_u32 s52, s52, s60\nv_lshl_add_u32 v%d, v%d, 4, s52" % (sI, sWAVE, dst, dst), 4)]

def path_mlp(a):
    vD, TMP, HS, ONES, CSA, ST = 172, 176, 184, 188, 192, 200
    vCSR, vCSW, vCSL, vP2 = 220, 221, 222, 223
    def xreg(kk, tt):
        i = kk * 4 + tt
        return ("a", 4 * i) if i < 64 else ("v", 224 + 4 * (i - 64))
    def xr(kk, tt): return R(*xreg(kk, tt), 4)
    def acc(P, ti, tt): return 64 * P + 16 * ti + 4 * tt
    t0, t1, t2, t3 = 64, 65, 66, 67
    XS = XStage(a, TMP, TMP + 4, 8 * 8192, 3, xreg)
    WLIM = 576 * 9216
    loc = {}
    WT = [sWo, 4, 5, 6, 7, 10, 11, 20, 21]
    issued_at = {}; now = [0]
    free = list(range(8))
    def dma_issue(L, kk):
        sl = free.pop(0); loc[(L, kk)] = sl
        fns = [I(a, "s_add_u32 m0, s53, %d" % (sl * 8192)),
               I(a, "s_add_u32 s55, s%d, %d" % (WT[kk >> 1], (kk & 1) * 32 * 9216 + L * 128)),
               VM(a, "buffer_load_dwordx4 v%d, s[%d:%d], s55 offen lds" % (vD, rWA, rWA + 3), ("w", L, kk)),
               VM(a, "buffer_load_dwordx4 v%d, s[%d:%d], s55 offen offset:1024 lds" % (vD + 1, rWA, rWA + 3), ("w", L, kk))]
        if kk & 1 and L == 0 and kk < 17:
            o, n_ = WT[kk >> 1], WT[(kk >> 1) + 1]
            fns.append(I(a, "s_add_u32 s%d, s%d, %d\ns_cmp_ge_u32 s%d, %d\ns_cmov_b32 s%d, 0" % (n_, o, 64 * 9216, n_, WLIM, n_), 3))
        issued_at[(L, kk)] = now[0]
        return fns
    def c_issue(L, k):
        key = (10 + L, k)
        sl = free.pop(0); loc[key] = sl
        issued_at[key] = now[0]
        ld = lambda v, o: VM(a, "buffer_load_dwordx4 v%d, s[%d:%d], s55 offen%s lds" % (v, rWA, rWA + 3, o), ("w",) + key)
        if k < 2:
            return [I(a, "s_add_u32 m0, s53, %d" % (sl * 8192)), I(a, "s_add_u32 s55, s%d, %d" % (sWo, k * 32 * 9216 + L * 128)), ld(vD, ""), ld(vD + 1, " offset:1024")]
        return [I(a, "s_add_u32 m0, s53, %d" % (sl * 8192)), I(a, "s_lshr_b32 s55, s%d, 2" % sWo), I(a, "s_add_u32 s55, s55, %d" % (512 * 9216 + 128)), ld(vD, ""),
                I(a, "s_sub_u32 s55, s55, %d" % (16 * 9216 - 128)), ld(vD + 1, " offset:1024")]
    assert CFG.rotc == 0
    XS.setup_dma(t0, t1)
    run(XS.dma(0))
    a("s_cmp_ge_u32 s%d, 2" % sWAVE)
    a("s_cselect_b32 s%d, s%d, s%d" % (rWA, sW3, sW1))
    a("s_cselect_b32 s%d, s%d, s%d" % (rWA + 1, sW3 + 1, sW1 + 1))
    a("s_and_b32 s%d, s%d, 0xffff" % (rWA + 1, rWA + 1))
    a("s_mov_b32 s%d, %d" % (rWA + 2, WLIM))
    a("s_mov_b32 s%d, 0x20000" % (rWA + 3))
    a("s_mul_i32 s70, s%d, 3" % sXG)
    a("s_add_u32 s70, s70, s%d" % sC)
    run(dma_lane_off(a, vD, t0, t1, 9216, True))
    a("s_mul_i32 s52, s70, 384")
    a("s_and_b32 s49, s%d, 1" % sWAVE)
    a("s_mul_i32 s49, s49, %d" % (4 * 9216))
    a("s_add_u32 s52, s52, s49")
    a("v_add_u32 v%d, s52, v%d" % (vD, vD))
    a("v_add_u32 v%d, %d, v%d" % (vD + 1, 16 * 9216 - 1024, vD))
    a("s_lshl_b32 s53, s%d, 11" % sWAVE)
    a("s_mul_i32 s%d, s%d, %d" % (sWo, sROT, 64 * 9216))
    for kk in range(2 if CFG.lean else 4): run(dma_issue(0, kk))
    code_prefetch(a)
    if not CFG.lean: run(XS.dma(1))
    if CFG.init >= 1: run(c_issue(1, 0) + c_issue(1, 1) + c_issue(0, 2))
    if CFG.init >= 2: run(XS.dma(2))
    stamp(a, 4, 1)
    st_ = [(r, 32 * r, k) for r in range(1, 6) for k in range(3)]; so_ = [(0, 0, "wo"), (1, 36, "wo")][:2 - CFG.osplit]
    p2 = P2(a, st_[:12] + so_ + st_[12:] if CFG.ofirst else st_ + so_, vD, None, vCSR, False)
    XS.setup_read(t0, t1, t2)
    tr_addrs(a, t0, t1, t2)
    a("v_xor_b32 v%d, s%d, v%d" % (t2, sWAVE, t1))
    a("v_lshl_add_u32 v%d, v%d, 5, v%d" % (vCSR, t2, t0))
    a("s_mov_b32 s68, s%d" % sC)
    p2.setup_s()
    a("s_lshr_b32 s60, s%d, 1" % sWAVE)
    a("s_lshr_b32 s67, s%d, 1" % sXG)
    a("s_mul_i32 s%d, s60, 4128" % sPX)
    a("s_and_b32 s52, s67, 1")
    a("s_lshl_b32 s52, s52, 6")
    a("s_add_u32 s%d, s%d, s52" % (sPX, sPX))
    a("s_lshr_b32 s%d, s67, 1" % sLS)
    a("s_lshl_b32 s%d, s%d, 7" % (sLS, sLS))
    a("s_and_b32 s49, s%d, 6" % sXG)
    a("s_add_u32 s49, s49, s60")
    a("s_mul_i32 s62, s49, %d" % (18 * KSTRIDE))
    a("s_add_u32 s62, s62, %d" % H_OFF)
    a("s_mul_i32 s63, s49, %d" % (576 * 1152))
    a("s_mul_i32 s64, s49, %d" % (2 * KSTRIDE))
    a("s_add_u32 s64, s64, %d" % (H_OFF + 144 * KSTRIDE))
    a("s_mul_i32 s65, s49, %d" % (72 * 1152))
    a("s_mul_i32 s57, s70, %d" % (6 * KSTRIDE))
    a("s_add_u32 s57, s57, %d" % H_OFF)
    a("s_lshl_b32 s52, s%d, 7" % sXG)
    a("s_add_u32 s69, s52, s%d" % sFI)
    a("s_lshl2_add_u32 s69, s%d, s69" % sC)
    a("s_lshl_b32 s52, s49, 7")
    a("s_add_u32 s71, s52, s%d" % sFI)
    a("s_mul_i32 s%d, s70, 12288" % sCSB)
    a("s_add_u32 s%d, s%d, %d" % (sCSB, sCSB, CS_OFF))
    a("s_lshl_b32 s%d, s70, 7" % sFC)
    a("s_add_u32 s%d, s%d, 0x%x" % (sFC, sFC, FL(FC)))
    b_ = Asm(); rot_bases(b_, sI)
    late2 = Q(a, "\n".join(b_.lines))
    late = []
    L_ = lambda s, c=1: late.append(I(a, s, c))
    u0, u1 = CSA, CSA + 1
    L_("v_and_b32 v%d, 15, v%d" % (u0, vL))
    L_("v_lshlrev_b32 v%d, 4, v%d" % (u0, u0))
    L_("v_lshrrev_b32 v%d, 4, v%d" % (u1, vL))
    L_("v_lshlrev_b32 v%d, 4, v%d" % (vCSL, vL))
    L_("v_lshl_add_u32 v%d, v%d, 10, v%d" % (vCSW, u1, u0))
    L_("s_lshr_b32 s52, s%d, 1\ns_lshl_b32 s52, s52, 11\ns_and_b32 s60, s%d, 1\ns_lshl_b32 s60, s60, 3\ns_add_u32 s52, s52, s60\n"
       "s_lshr_b32 s60, s%d, 1\ns_lshl_b32 s60, s60, 8\ns_add_u32 s52, s52, s60\ns_and_b32 s60, s%d, 1\ns_lshl2_add_u32 s52, s60, s52\n"
       "v_add_u32 v%d, s52, v%d" % (sWAVE, sWAVE, sI, sI, vCSW, vCSW), 11)
    L_("v_cmp_gt_u32 vcc, 32, v%d\nv_mov_b32 v%d, 0x%x\ns_nop 0\nv_cndmask_b32 v%d, v%d, v%d, vcc" % (vL, u0, OOB, vCSW, u0, vCSW), 4)
    L_("s_cmp_eq_u32 s%d, 7\ns_cselect_b32 s%d, 0x%x, 0" % (sI, sOne2, ONE2), 2)
    CSL, ONL, ONH, ON7 = [224, 240, 248], HS, 232, 236
    for i in range(4):
        late.insert(0, I(a, "v_mov_b32 v%d, 0x%x" % (ONES + i, ONE2)))
        L_("v_mov_b32 v%d, s%d" % (ON7 + i, sOne2))
    for i in range(4):
        L_("v_cndmask_b32 v%d, 0, v%d, vcc" % (ONL + i, ONES))
        L_("v_xor_b32 v%d, v%d, v%d" % (ONH + i, ONL + i, ONES))
    run(late); run(late2)
    if CFG.lean == 1: run(XS.dma(1) + dma_issue(0, 2) + dma_issue(0, 3))
    stamp(a, 7, 1)
    stats_compute(a)
    stamp(a, 5, 1)
    run(XS.reads(0))
    a.wait_vm(lambda t: t == ("w", 0, 1))
    a("s_barrier")
    SPLIT = CFG.split
    seq = []
    for kk in range(SPLIT): seq += [("mm", 0, 0, kk), ("mm", 0, 1, kk)]
    seq += [("mm", 0, 0, kk) for kk in range(SPLIT, 18)] + [("mm", 0, 1, kk) for kk in range(SPLIT, 18)]
    for L in (1, 2):
        for P in (0, 1): seq += [("mm", L, P, kk) for kk in range(18)]
    def after(key, new): seq.insert(seq.index(key) + 1, new)
    after(("mm", 0, 0, CFG.c00), ("corr", 0, 0))
    for L in range(3): after(("mm", L, 1, 17), ("corr", L, 1))
    if CFG.cmode == 1 and CFG.cdel >= 0: after(("mm", 1, 1, CFG.cdel), ("corr", 1, 0))
    else: after(("mm", 1, 0, 17), ("corr", 1, 0))
    after(("mm", 2, 0, 17), ("corr", 2, 0))
    cs_steps = {0: [((0, 0), ONES), ((0, 1), ONES), ((0, 2), ON7), ((0, 3), ON7)],
                1: [((11, 0), ONES), ((11, 1), ONES), ((10, 2), ONL)], 2: [((12, 0), ONES), ((12, 1), ONES), ((10, 2), ONH)]}
    cs_at = {0: CFG.cs0, 1: CFG.cs1, 2: CFG.cs2}
    attach = {}
    if CFG.cmode == 1:
        CSL[1], CSL[2] = TMP, CSA
        n1 = seq.index(("corr", 0, 1)) + 1
        cs_at[1] = cs_at[2] = n1 + 1
        attach[seq[n1]] = [(1, k, (1, k), ONES, mat) for k in range(2) for mat in range(2)]
        attach[seq[n1 + 1]] = [(2, k, (2, k), ONES, mat) for k in range(2) for mat in range(2)]
        attach[seq[n1 + 2]] = [(1, 2, (10, 2), ONL, 0), (1, 2, (10, 2), ONL, 1), (2, 2, (10, 2), -ONES, 0), (2, 2, (10, 2), ONES, 1)]
    for L in range(3 if CFG.cmode == 0 else 1):
        its = [(L, k, sl, on, mat) for k, (sl, on) in enumerate(cs_steps[L]) for mat in range(2)]
        attach[seq[cs_at[L]]] = its[:4]; attach[seq[cs_at[L] + 1]] = its[4:]
    NH = len(seq)
    idx = {k: n for n, k in enumerate(seq)}
    visible = set([(0, 0), (0, 1)])
    S_ = Stream(a, "v", WF)
    first_slot = []
    csr = [0]
    def slabs_of(e):
        if e[0] == "mm": return [(e[1], e[3])] + [x[2] for x in attach.get(e, [])]
        return []
    for e in seq:
        first_slot.append(len(S_.slots))
        if e[0] == "mm":
            _, L, P, kk = e
            att = list(attach.get(e, []))
            for ti in (0, 2, 1, 3):
                def off(L=L, kk=kk, ti=ti):
                    assert (L, kk) in visible, (L, kk)
                    return loc[(L, kk)] * 8192 + (ti >> 1) * 4096
                def mf(w, P=P, ti=ti, kk=kk):
                    return ["%s %s, %s, %s, %s" % (MF, V(acc(P, ti, tt), 4), w, xr(kk, tt), "0" if kk == 0 else V(acc(P, ti, tt), 4)) for tt in range(4)]
                S_.add(tr_read(a, off, 2 * P + (ti & 1)), mf)
                if att:
                    cl, k, sl, on, mat = att.pop(0); CS = CSL[cl]
                    def rd(kind, reg, tag, sl=sl, mat=mat):
                        assert sl in visible
                        out = []
                        d = loc[sl] * 8192 - csr[0]; csr[0] += d
                        if d: out.append(I(a, "v_add_u32 v%d, 0x%x, v%d" % (vCSR, d & 0xffffffff, vCSR)))
                        return out + [("D", lambda h=h: a.lds("ds_read_b64_tr_b16 %s, v%d offset:%d" % (V(reg + 2 * h, 2), vCSR, mat * 4096 + h * 2048), tag)) for h in range(2)]
                    S_.add(rd, lambda w, k=k, on=on, mat=mat, CS=CS: [("".join("v_xor_b32 v%d, v%d, v%d\n" % (ONES + i, ONES + i, ONL) for i in range(4)) + "s_nop 1\n" if on < 0 else "") + "%s %s, %s, %s, %s" % (MF, V(CS + 4 * mat, 4), V(abs(on), 4), w, "0" if k == 0 else V(CS + 4 * mat, 4))])
        elif e[0] == "corr":
            _, L, P = e
            for ti in range(4):
                S_.add(None, lambda w, P=P, ti=ti: ["%s %s, %s, %s, %s" % (MF16, V(acc(P, ti, tt), 4), V(CSA + 2 * ti, 2), V(ST + 4 * tt, 2), V(acc(P, ti, tt), 4)) for tt in range(4)])
    first_slot.append(len(S_.slots))
    p2.add_slots(S_)
    def epilogue(L, P):
        q = [I(a, "s_add_u32 s58, s57, %d" % ((2 * L + P) * KSTRIDE)) + ([], ["s58"])]
        for tt in range(4):
            rs, cc = ST + 4 * tt + 2, ST + 4 * tt + 3
            o = acc(P, 2, tt)
            gu = [(acc(P, half, tt) + i, acc(P, 2 + half, tt) + i) for half in range(2) for i in range(4)]
            for g, u in gu:
                q.append(I(a, "v_mul_f32 v%d, v%d, v%d" % (u, g, u)) + ([g, u], [u]))
                q.append(I(a, "v_mul_f32 v%d, v%d, v%d" % (g, g, rs)) + ([g], [g]))
            for g, u in gu: q.append(I(a, "v_exp_f32 v%d, v%d" % (g, g)) + ([g], [g]))
            for g, u in gu: q.append(I(a, "v_fma_f32 v%d, v%d, v%d, v%d" % (g, g, cc, cc)) + ([g], [g]))
            for g, u in gu: q.append(I(a, "v_rcp_f32 v%d, v%d" % (g, g)) + ([g], [g]))
            for g, u in gu: q.append(I(a, "v_mul_f32 v%d, v%d, v%d" % (g, g, u)) + ([g, u], [g]))
            for k in range(4):
                g = gu[2 * k][0]
                q.append(I(a, "v_cvt_pk_bf16_f32 v%d, v%d, v%d" % (o + k, g, g + 1)) + ([g, g + 1], [o + k]))
            q.append(VM(a, "buffer_store_dwordx4 %s, v%d, %s, s58 offen offset:%d %s" % (V(o, 4), vX, WSR, tt * 1024, SC), ("h", L, P)) + ([o, o + 1, o + 2, o + 3, "s58"], []))
        return q
    last_use = {}
    for n, e in enumerate(seq):
        for sl in slabs_of(e): last_use[sl] = n
    lastP = {}
    for n, e in enumerate(seq):
        if e[0] != "cs": lastP[e[1:3]] = n
    marks = set()
    def mark(m): return ("", lambda: marks.add(m))
    released = set()
    def hsig(stage): return signal(a, "s_add_u32 s49, s69, %d" % (128 * (FH + 64 * stage)))
    def hoff(stage): return "s_add_u32 s49, s71, %d" % (128 * (FH + 64 * stage))
    coff = "s_mov_b32 s49, s%d" % sFC
    def csa_load(L, P):
        return [I(a, "s_add_u32 s49, s%d, %d" % (sCSB, L * 4096 + P * 2048))] + \
               [("M", lambda k=k: a.vmem("buffer_load_dwordx4 %s, v%d, %s, s49 offen offset:%d %s" % (V(CSA + 4 * k, 4), vCSL, WSR, 1024 * k, SC), ("csa", L, P))) for k in range(2)]
    def cs_publish(L):
        CS = CSL[L]
        return [I(a, "s_mov_b32 vcc_lo, 0xffff0000\ns_mov_b32 vcc_hi, 0\nv_cndmask_b32 v%d, v%d, v%d, vcc" % (CS, CS, CS + 4), 3)] + hilo(a, CS, CS + 1, CS + 2) + \
               [I(a, "s_add_u32 s49, s%d, %d" % (sCSB, L * 4096)),
                ("M", lambda: a.vmem("buffer_store_dword v%d, v%d, %s, s49 offen %s" % (CS, vCSW, WSR, SC), ("cs", L))), mark(("pub", L))]
    ev = {}
    bar_tags = {}
    def at(n, fns): ev.setdefault(n, []).extend(fns)
    def sig_after(n, tag, fns):
        n |= 1
        bar_tags.setdefault(n, ([], []))
        bar_tags[n][0].append(tag); bar_tags[n][1].extend(fns)
    marks.add("late")
    csig = lambda L: signal(a, "s_lshl2_add_u32 s49, s%d, s%d\ns_add_u32 s49, s49, %d" % (sI, sFC, 32 * L))
    for L in range(3):
        at(cs_at[L] + 3, cs_publish(L))
        at(idx[("corr", L, 0)] + 1, csa_load(L, 1))
        if L > CFG.cmode: at(idx[("corr", L - 1, 1)] + 1, csa_load(L, 0))
    sig_after(cs_at[0] + CFG.sig0, ("cs", 0), csig(0))
    sig_after(cs_at[2] + (8 if CFG.cmode == 0 else CFG.sigd), ("cs", 2), csig(1))
    c0 = idx[("corr", 0, 0)]
    at(c0 - CFG.p0, poll_issue(a, coff, ("plc", 0)))
    at(c0 - CFG.k0, poll_check(a, coff, ("plc", 0), "0xff") + csa_load(0, 0))
    if CFG.cmode == 0:
        at(idx[("corr", 0, 1)] - 5, poll_issue(a, coff, ("plc", 1)))
        at(idx[("corr", 0, 1)], poll_check(a, coff, ("plc", 1), "0xff00"))
    else:
        at(idx[("corr", 1, 0)] - CFG.pc1, poll_issue(a, coff, ("plc", 1)))
        at(idx[("corr", 1, 0)] - CFG.kc1, poll_check(a, coff, ("plc", 1), "0xff00") + csa_load(1, 0))
    c0 = idx[("corr", 0, 0)]
    at(c0 - 12, stats_addr(a, vP2) + stats_fetch(a, "v", ST, vP2))
    fx = stats_check(a, "v", ST, vP2, None)
    for tt in range(4):
        b = ST + 4 * tt
        fx += [I(a, "v_mov_b32 v%d, v%d" % (b + 1, b)), I(a, "v_mul_f32 v%d, v%d, v%d" % (b + 3, b + 2, b + 2)), I(a, "v_rcp_f32 v%d, v%d" % (b + 2, b + 2), 2)]
    for tt in range(4): fx.append(I(a, "v_mul_f32 v%d, %s, v%d" % (ST + 4 * tt + 2, f32(-LOG2E), ST + 4 * tt + 2)))
    at(c0 - 5, fx + [mark("stats")])
    xread_at = {}
    for p in range(8, 0, -1): xread_at[p] = max(min(idx[("mm", 0, 0, 2 * p)] - CFG.xlead, xread_at.get(p + 1, 99) - 3), 0)
    for p, n in xread_at.items():
        at(n, XS.reads(p))
    mm = lambda L, P, kk: idx[("mm", L, P, kk)]
    sig_after(mm(1, 1, 2), ("h", 0, 1), hsig(0))
    sig_after(mm(2, 0, CFG.s1), ("h", 1, 0), hsig(1))
    sig_after(mm(2, 1, 2), ("h", 1, 1), hsig(2))
    at(mm(2, 0, 0) + CFG.p1, poll_issue(a, hoff(1), "pl1", vP2))
    at(mm(2, 0, 0) + CFG.c1, poll_check(a, hoff(1), "pl1", "7", vP2) + [mark("h1")])
    at(NH - 5, poll_issue(a, hoff(2), "pl2"))
    at(mm(2, 0, 6), p2.setup_vo(vCSR, vCSW, "s_and_b32 s52, s%d, 1" % sXG) + [mark("vo")])
    if CFG.pf == 1:
        pf = Q(a, """s_and_b32 s52, s{W}, 1
            s_mul_i32 s52, s52, 36
            s_mul_i32 s60, s{I}, 72
            s_add_u32 s52, s52, s60
            v_mul_u32_u24 v{P}, 43, v{L}
            v_lshrrev_b32 v{P}, 7, v{P}
            v_mul_u32_u24 v{T}, 3, v{P}
            v_sub_u32 v{T}, v{L}, v{T}
            v_add_u32 v{P}, s52, v{P}
            v_mul_u32_u24 v{P}, 1152, v{P}
            v_lshl_add_u32 v{P}, v{T}, 7, v{P}
            s_mul_i32 s52, s68, 384
            s_add_u32 s52, s52, s63""".format(W=sWAVE, I=sI, P=vP2, L=vL, T=vPL))
        pf += [VM(a, "buffer_load_dword v%d, v%d, s[%d:%d], s52 offen" % (vPL, vP2, rW2, rW2 + 3)),
               I(a, "s_add_u32 s52, s52, %d" % (18 * 1152)),
               VM(a, "buffer_load_dword v%d, v%d, s[%d:%d], s52 offen" % (vPL, vP2, rW2, rW2 + 3))]
        at(idx[("corr", 1, 0)] + 1 + CFG.pfw, pf)
    if CFG.pf == 4:
        pf = Q(a, """s_lshl2_add_u32 s52, s2, s{W}
            s_lshl_b32 s52, s52, 13
            v_lshlrev_b32 v{P}, 7, v{L}""".format(W=sWAVE, P=vP2, L=vL))
        pf += [VM(a, "buffer_load_dword v%d, v%d, s[%d:%d], s52 offen" % (vPL, vP2, rW2, rW2 + 3))]
        pf += Q(a, """s_cmp_lt_u32 s52, {N}
            s_cmov_b32 s52, 0x{O:x}
            s_sub_u32 s52, s52, {N}""".format(N=4608 * 1152, O=OOB))
        pf += [VM(a, "buffer_load_dword v%d, v%d, s[%d:%d], s52 offen" % (vPL, vP2, rWO, rWO + 3))]
        at((mm(1, 0, 2) if CFG.cmode == 0 else idx[("corr", 1, 0)] - CFG.kc1 + 1) + CFG.pfw, pf)
    def wjob(L, kk):
        def make():
            if VERB: print("hs", now[0], seq[now[0]], "issue W", (L, kk), file=sys.stderr)
            return dma_issue(L, kk)
        gate = 0
        if CFG.cmode == 1 and kk >= 2: gate = (0, CFG.gate1, CFG.gate2)[L]
        return ("w", lambda: len(free) > 0 and now[0] >= gate, make)
    def cjob(L, k):
        def make():
            if VERB: print("hs", now[0], seq[now[0]], "issue C", (L, k), file=sys.stderr)
            return c_issue(L, k)
        return ("w", lambda: len(free) > 0, make)
    cj = {CFG.cj1: [cjob(1, 0), cjob(1, 1), cjob(0, 2)], CFG.cj2: [cjob(2, 0), cjob(2, 1)]}
    if CFG.init >= 1: del cj[CFG.cj1]
    if CFG.cmode == 1: cj = {CFG.cj1: [wjob(1, 0), wjob(1, 1)], 9: [cjob(0, 2), wjob(2, 0), wjob(2, 1)]}
    for p in range(1 if CFG.lean == 2 else 2, 9): S_.jobs += ([XS.job(p)] if p > 2 or CFG.init < 2 else []) + [wjob(0, 2 * p), wjob(0, 2 * p + 1)] + cj.get(p, [])
    S_.jobs += cj.get(9, [])
    S_.jobs += [wjob(L, kk) for L in (1, 2) for kk in range(2 * CFG.cmode, 18)]
    hmark = lambda st: "h1" if st < 6 else ("h2" if st < 9 else ("h3" if st < 12 else ("o" if p2.steps[st][2] == "wo" else "h4")))
    S_.jobs += p2.jobs(0, lambda st: "vo" in marks,
                       lambda st: hmark(st) in marks and now[0] > mm(2, 1, min(st, 9)))
    xdead = {}
    S_.prime()
    for n, e in enumerate(seq):
        pre = []
        now[0] = n
        S_.vmrate = 2.0 if n < CFG.boost else CFG.vmrate / 100.0
        if VERB: a.cm("HS %d %s" % (n, e))
        if n >= CFG.sbase and (n - CFG.sbase) % CFG.sstep == 0 and (n - CFG.sbase) // CFG.sstep < 11: stamp(a, 4 + (n - CFG.sbase) // CFG.sstep, 2)
        if e[0] == "mm" and e[1] == 0 and e[2] == 0 and e[3] % 2 == 0:
            wlg(a, [("xr", e[3] // 2)])
        if n == xread_at[8]: assert ("pub", 2 if CFG.cmode == 0 else 0) in marks
        if e[0] == "corr": assert "stats" in marks
        if n == mm(2, 0, 5): assert a.cnt.get(("w", 2, 17)) == 2
        if e[0] == "corr": wvm(a, [("csa", e[1], e[2])])
        if e[0] == "mm" and e[3] == 0 and (e[1] > 0 or e[2] == 0): stamp(a, 3 if e[1] == 0 else 3 + 2 * e[1] + e[2])
        if e == ("mm", 0, 0, 9): stamp(a, 4)
        if n % 2 == 1:
            rmax = S_.read_limit(first_slot[min(n + 2, NH)] - 1)
            need = []
            for m in range(n, NH):
                if S_.cur_ring(first_slot[m]) <= rmax:
                    need += [x for x in slabs_of(seq[m]) if x not in visible and x not in need]
            rel_ = [x for x, lu in last_use.items() if lu < n and x not in released]
            tags, aft = bar_tags.pop(n, ([], []))
            tags = list(tags)
            if S_.cur_ring(first_slot[NH]) <= rmax and not p2.visible:
                tags += [("w2", 0, k_) for k_ in range(3)]; p2.visible.update((0, k_) for k_ in range(3))
            xrel = [p for p, m in xread_at.items() if p >= 6 and m + 3 <= n and p not in xdead]
            want_space = S_.jobs and S_.jobs[0][0] in ("w", "w2", "x") or any(j[0] in ("w", "w2") for j in S_.jobs[:3])
            if rel_ and not (need or tags or xrel) and (not want_space or (n > 40 and len(rel_) < CFG.relper)): rel_ = []
            if need or rel_ or tags or xrel:
                need += [x for x, t_ in issued_at.items() if x not in visible and x not in need and
                         (t_ + CFG.age <= n or (a.cnt.get(("w",) + x, 0) == 2 and ("w",) + x not in a.vm))]
                for x in need: assert x in loc, ("slab not issued", n, x)
                def bar(need=need, tags=tags, xrel=xrel):
                    wlg(a, [("xr", p) for p in xrel])
                    wvm(a, [("w",) + x for x in need] + tags)
                    a("s_barrier")
                pre.append(("B", bar))
                visible.update(need); released.update(rel_)
                for x in rel_: free.append(loc[x])
                for p in xrel:
                    xdead[p] = 1
                    free.extend(8 + 3 * w + p % 3 for w in range(4))
            S_.extra += aft
        S_.extra += ev.pop(n, [])
        if (2, 17) in loc:
            while free:
                p2.free.append(free.pop(0))
        ns = first_slot[n + 1] - first_slot[n]
        for k in range(ns):
            if e[0] == "mm" and e[3] == 0 and k == 0:
                assert not (S_.epi and S_.epiP == e[2]), "epilogue not finished"
            S_.emit(pre if k == 0 else (), 1 if len(S_.extra) > 20 else 0)
            if k == 1 and n > 0:
                pe = seq[n - 1]
                if pe[0] != "cs" and lastP[pe[1:3]] == n - 1:
                    assert not S_.epi
                    S_.set_epi(epilogue(pe[1], pe[2]), first_slot[mm(pe[1] + 1, pe[2], 0)] - 1 if pe[1] < 2 else first_slot[NH] - 1, 0, False)
                    S_.epiP = pe[2]
    assert not S_.epi and not ev and not bar_tags, (ev.keys(), bar_tags.keys())
    now[0] = NH
    if VERB: print("; left for phase 2:", [j[0] for j in S_.jobs], "extra", len(S_.extra), file=sys.stderr)
    stamp(a, 9)
    S_.set_epi(epilogue(2, 1), S_.pos + CFG.edl, 2, False)
    ooff = "s_add_u32 s49, s71, %d" % (128 * FO)
    hooks = {}
    def add(st, key, v): hooks.setdefault(st, {}).setdefault(key, []).extend(v)
    add(CFG.s3, "bar", [("h", 2, 0)]); add(CFG.s3, "after", hsig(3))
    add(0, "after", poll_check(a, hoff(2), "pl2", "7") + [mark("h2")])
    add(CFG.s3 + 2, "after", poll_issue(a, hoff(3), "pl3"))
    add(CFG.s4, "bar", [("h", 2, 1)]); add(CFG.s4, "after", hsig(4))
    add(CFG.s3 + 4, "after", poll_check(a, hoff(3), "pl3", "7") + [mark("h3")])
    if CFG.osplit < 2:
        add(CFG.po, "after", poll_issue(a, ooff, "plo", vP2))
        add(CFG.po + 2, "after", poll_check(a, ooff, "plo", "1", vP2) + [mark("o")])
    add(CFG.p4, "after", poll_issue(a, hoff(4), "pl4"))
    add(CFG.c4, "after", poll_check(a, hoff(4), "pl4", "7") + [mark("h4")])
    dead0 = [loc[x] for x in last_use if x not in released]
    p2.main(S_, hooks, dead0)

C0 = [0, 4, 9, 13]
def path_attn(a):
    global vL, vX, vFS, vFP, vTK, vPL
    keep = (vL, vX, vFS, vFP, vTK, vPL)
    a.cnt = {}
    RB, VO, XO, XA = 224, 230, 236, 240
    vCS0, vCS1, vCSW, vP2, u0, u1 = 250, 251, 252, 253, 254, 255
    aONE, aCS, aST, aCSA, aX = 32, 36, 52, 68, 96
    t0, t1, t2, t3, t4 = 64, 65, 66, 67, 68
    new = (244, 245, 246, 247, 248, 249)
    for o_, n_ in zip(keep[:4], new[:4]): a("v_mov_b32 v%d, v%d" % (n_, o_))
    vL, vX, vFS, vFP, vTK, vPL = new
    def xreg(kk, tt): return ("a", aX + 16 * (kk % 10) + 4 * tt)
    def xr(kk, tt): return R(*xreg(kk, tt), 4)
    def acc(T, tt): return 16 * T + 4 * tt
    XS = XStage(a, XO, XA, 98304, 2, xreg)
    WLIM = 576 * 3456
    def dma_issue(kk):
        fns = [I(a, "s_add_u32 s55, s%d, %d" % (sWo, (kk & 1) * 32 * 3456))]
        for idx in range(6):
            if idx % 3 == 0:
                fns.append(I(a, "s_add_u32 m0, s53, %d" % ((kk % 4) * 24576 + (idx // 3) * 3072)))
            fns.append(VM(a, "buffer_load_dwordx4 v%d, s[%d:%d], s55 offen offset:%d lds" % (VO + idx, rWA, rWA + 3, (idx % 3) * 1024), ("w", kk)))
        if kk & 1: fns.append(I(a, "s_add_u32 s%d, s%d, %d\ns_cmp_ge_u32 s%d, %d\ns_cmov_b32 s%d, 0" % (sWo, sWo, 64 * 3456, sWo, WLIM, sWo), 3))
        return fns
    XS.setup_dma(t0, t1)
    run(XS.dma(0))
    srd(a, rWA, sWQKV, WLIM, bias=2048)
    run(dma_lane_off(a, t2, t0, t1, 3456, True))
    for idx in range(6):
        a("s_mul_i32 s52, s%d, 6" % sWAVE)
        a("s_add_u32 s52, s52, %d" % idx)
        a("s_and_b32 s49, s52, 1")
        a("s_bfe_u32 s60, s52, 0x10001")
        a("s_lshl2_add_u32 s49, s49, s60")
        a("s_mul_i32 s49, s49, %d" % (4 * 3456))
        a("s_bfe_u32 s60, s52, 0x10002")
        a("s_add_u32 s60, s60, s%d" % sXG)
        a("s_lshl_b32 s60, s60, 7")
        a("s_add_u32 s49, s49, s60")
        a("s_lshr_b32 s60, s52, 3")
        a("s_mul_i32 s60, s60, 1152")
        a("s_add_u32 s49, s49, s60")
        a("s_add_u32 s49, s49, %d" % (2048 - (idx % 3) * 1024))
        a("v_add_u32 v%d, s49, v%d" % (VO + idx, t2))
    a("s_mul_i32 s53, s%d, 6144" % sWAVE)
    a("s_mul_i32 s%d, s%d, %d" % (sWo, sROT, 64 * 3456))
    run(dma_issue(0))
    if not CFG.lean: run(dma_issue(1))
    code_prefetch(a)
    if not CFG.lean: run(XS.dma(1))
    stamp(a, 4, 1)
    XS.setup_read(t0, t1, t2)
    lane_fields(a, t0, t1, t2)
    a("v_lshrrev_b32 v%d, 1, v%d" % (t0, t0))
    a("v_lshlrev_b32 v%d, 10, v%d" % (t0, t0))
    a("v_lshl_add_u32 v%d, v%d, 7, v%d" % (t0, t1, t0))
    a("v_lshrrev_b32 v%d, 1, v%d" % (t1, t1))
    a("s_lshl_b32 s52, s%d, 1" % sXG)
    for p in range(6):
        r = RB + p
        if p < 4:
            a("v_add_u32 v%d, %d, v%d" % (t3, C0[p], t2))
        elif p == 4:
            a("v_lshrrev_b32 v%d, 1, v%d" % (t3, t2))
            a("v_lshl_add_u32 v%d, v%d, 2, v%d" % (t3, t2, t3))
            a("v_add_u32 v%d, 4, v%d" % (t3, t3))
        else:
            a("v_and_b32 v%d, 1, v%d" % (t3, t2))
            a("v_mul_u32_u24 v%d, 9, v%d" % (t3, t3))
            a("v_add_u32 v%d, 8, v%d" % (t3, t3))
        a("v_add_u32 v%d, s52, v%d" % (t3, t3))
        a("v_lshrrev_b32 v%d, 4, v%d" % (t4, t3))
        a("v_lshl_add_u32 v%d, v%d, 12, v%d" % (r, t4, t0))
        a("v_bfe_u32 v%d, v%d, 2, 2" % (t4, t3))
        a("v_xor_b32 v%d, v%d, v%d" % (t4, t4, t1))
        a("v_lshl_add_u32 v%d, v%d, 5, v%d" % (r, t4, r))
        a("v_and_b32 v%d, 3, v%d" % (t4, t3))
        a("v_lshl_add_u32 v%d, v%d, 3, v%d" % (r, t4, r))
        if p == 5:
            a("v_lshrrev_b32 v%d, 1, v%d" % (t4, t2))
            a("v_add_u32 v%d, 1, v%d" % (t4, t4))
            a("v_lshl_add_u32 v%d, v%d, 13, v%d" % (r, t4, r))
    a("s_bitcmp1_b32 s%d, 0" % sWAVE)
    a("s_cselect_b64 vcc, -1, 0")
    a("v_cndmask_b32 v%d, v%d, v%d, vcc" % (t3, RB, RB + 1))
    a("v_cndmask_b32 v%d, v%d, v%d, vcc" % (t4, RB + 2, RB + 3))
    a("v_cndmask_b32 v%d, v%d, v%d, vcc" % (vCS1, RB + 4, RB + 5))
    a("s_bitcmp1_b32 s%d, 1" % sWAVE)
    a("s_cselect_b64 vcc, -1, 0")
    a("v_cndmask_b32 v%d, v%d, v%d, vcc" % (vCS0, t3, t4))
    a("v_mov_b32 v%d, 0x%x" % (t3, ONE2))
    for i in range(4): a("v_accvgpr_write_b32 a%d, v%d" % (aONE + i, t3))
    steps = [(18 * x_, 576 * x_, k) for x_ in range(4) for k in range(3)] + [(2 * x_ + P, 36 * (2 * x_ + P), "woa") for x_ in range(4) for P in range(2 - CFG.osplit, 2)] + [(0, 0, "wos"), (1, 144, "wos")]
    p2 = P2(a, steps, 220, 197, 222, True)
    a("s_cmp_ge_u32 s%d, 3" % sI)
    a("s_cselect_b32 s4, 1, 0")
    a("s_mul_i32 s52, s4, 3")
    a("s_sub_u32 s68, s%d, s52" % sI)
    a("s_lshr_b32 s70, s%d, 1" % sWAVE)
    a("s_lshl_b32 s72, s%d, 10" % sXG)
    a("s_lshl_b32 s52, s70, 9")
    a("s_add_u32 s72, s72, s52")
    a("s_add_u32 s72, s72, 0x%x" % FLG_OFF)
    p2.setup_s()
    a("s_mul_i32 s62, s70, %d" % (72 * KSTRIDE))
    a("s_add_u32 s62, s62, %d" % H_OFF)
    a("s_mul_i32 s63, s70, %d" % (2304 * 1152))
    a("s_mul_i32 s64, s70, %d" % (2 * KSTRIDE))
    a("s_add_u32 s64, s64, %d" % (H_OFF + 160 * KSTRIDE))
    a("s_mul_i32 s65, s70, %d" % (288 * 1152))
    a("s_mul_i32 s7, s70, %d" % (8 * KSTRIDE))
    a("s_add_u32 s7, s7, %d" % (H_OFF + 144 * KSTRIDE))
    a("s_mov_b32 s67, 4")
    a("s_add_u32 s52, s%d, 24" % sXG)
    a("s_lshl_b32 s%d, s52, 7" % sFC)
    a("s_add_u32 s%d, s%d, 0x%x" % (sFC, sFC, FL(FC)))
    a("s_mov_b32 s71, 0x07070707")
    a("s_cmp_ge_u32 s%d, 6" % sI)
    a("s_cmov_b32 s62, 0x%x" % OOB)
    a("s_cmov_b32 s63, 0x%x" % OOB)
    a("s_cmov_b32 s71, 0")
    a("s_lshl_b32 s%d, s%d, 13" % (sCSB, sXG))
    a("s_add_u32 s%d, s%d, %d" % (sCSB, sCSB, CS_OFF + 24 * 12288))
    a("s_cmp_eq_u32 s%d, 7" % sI)
    a("s_cselect_b32 s%d, 0x%x, 0" % (sOne2, ONE2))
    if CFG.lean: run(dma_issue(1) + XS.dma(1))
    stamp(a, 7, 1)
    stats_compute(a)
    stamp(a, 5, 1)
    run(XS.reads(0))
    wvm(a, [("w", 0)], w=6)
    a("s_barrier")
    TL = [(0, 0), (1, 0), (2, 0), (3, 0), (4, 0)] + [(p, 1) for p in range(4)] + [(p, 2) for p in range(4)] + [(5, 0)]
    S_ = Stream(a, "a", 0)
    visible = set([0])
    cur = [0] * 6
    csr = [0]
    info = []
    for kk in range(18):
        for T in range(14):
            def rd(kind, reg, tag, kk=kk, T=T):
                assert kk in visible
                p, win = TL[T]
                want = ((kk % 4) // 2) * 49152
                out = []
                if cur[p] != want:
                    out.append(I(a, "v_add_u32 v%d, 0x%x, v%d" % (RB + p, (want - cur[p]) & 0xffffffff, RB + p))); cur[p] = want
                return out + [("D", lambda h=h: a.lds("ds_read_b64_tr_b16 %s, v%d offset:%d" % (A(reg + 2 * h, 2), RB + p, (kk % 2) * 24576 + win * 8192 + h * 2048), tag)) for h in range(2)]
            def mf(w, kk=kk, T=T):
                return ["%s %s, %s, %s, %s" % (MF, V(acc(T, tt), 4), w, xr(kk, tt), "0" if kk == 0 else V(acc(T, tt), 4)) for tt in range(4)]
            S_.add(rd, mf); info.append((kk, T))
            if kk < 4 and T in (1, 3, 5, 7):
                k = T // 2
                def rd(kind, reg, tag, kk=kk, k=k):
                    out = []
                    if k == 0 and kk > 0:
                        out += [I(a, "v_add_u32 v%d, 24576, v%d" % (vCS0, vCS0)), I(a, "v_add_u32 v%d, 24576, v%d" % (vCS1, vCS1))]
                    return out + [("D", lambda h=h: a.lds("ds_read_b64_tr_b16 %s, v%d offset:%d" % (A(reg + 2 * h, 2), vCS0 if k < 3 else vCS1, (k * 8192 if k < 3 else 0) + h * 2048), tag)) for h in range(2)]
                def mf(w, kk=kk, k=k):
                    pre = ""
                    if kk == 2 and k == 0:
                        pre = "v_mov_b32 v%d, s%d\n" % (u0, sOne2) + "".join("v_accvgpr_write_b32 a%d, v%d\n" % (aONE + i, u0) for i in range(4)) + "s_nop 1\n"
                    return [pre + "%s %s, %s, %s, %s" % (MF, A(aCS + 4 * k, 4), A(aONE, 4), w, "0" if kk == 0 else A(aCS + 4 * k, 4))]
                S_.add(rd, mf); info.append((kk, -1))
    for T in list(range(9, 13)) + list(range(5, 9)) + [13] + list(range(5)):
        S_.add(None, lambda w, T=T: ["%s %s, %s, %s, %s" % (MF16, V(acc(T, tt), 4), A(aCSA + 2 * T, 2), A(aST + 4 * tt, 2), V(acc(T, tt), 4)) for tt in range(4)])
        info.append((18, T))
    ev = {}; bt = {}
    def at(kk, fns): ev.setdefault(kk, []).extend(fns)
    w_ = [I(a, "v_lshrrev_b32 v%d, 4, v%d" % (u0, vL)),
          I(a, "v_mul_u32_u24 v%d, 9, v%d\nv_add_u32 v%d, 1, v%d\nv_lshrrev_b32 v%d, 1, v%d\nv_add_u32 v%d, s%d, v%d" % (vCSW, u0, vCSW, vCSW, vCSW, vCSW, vCSW, sWAVE, vCSW), 4),
          I(a, "s_mul_i32 s52, s%d, 9\ns_add_u32 s52, s52, 4\ns_cmp_ge_u32 s%d, 2\ns_cmov_b32 s52, 0x%x\nv_mov_b32 v%d, s52\nv_cmp_eq_u32 vcc, 3, v%d\ns_nop 1\nv_cndmask_b32 v%d, v%d, v%d, vcc"
            % (sWAVE, sWAVE, OOB >> 9, u1, u0, vCSW, vCSW, u1), 8),
          I(a, "v_and_b32 v%d, 15, v%d\nv_lshlrev_b32 v%d, 4, v%d\nv_and_b32 v%d, 1, v%d\nv_lshl_add_u32 v%d, v%d, 3, v%d\nv_lshrrev_b32 v%d, 1, v%d\nv_lshl_add_u32 v%d, v%d, 10, v%d"
            % (u0, vL, u0, u0, u1, vCSW, u0, u1, u0, vCSW, vCSW, vCSW, vCSW, u0), 6),
          I(a, "s_lshr_b32 s52, s%d, 1\ns_lshl_b32 s52, s52, 8\ns_and_b32 s60, s%d, 1\ns_lshl2_add_u32 s52, s60, s52\nv_add_u32 v%d, s52, v%d" % (sI, sI, vCSW, vCSW), 5)]
    marks = set()
    at(0, w_ + [("", lambda: marks.add(1))])
    pub = [I(a, "v_accvgpr_read_b32 v%d, a%d" % (u0, aCS))]
    for k, (lo, hi) in enumerate([("0xffff0000", "0"), ("0", "0xffff"), ("0", "0xffff0000")]):
        pub.append(I(a, "v_accvgpr_read_b32 v%d, a%d\ns_mov_b32 vcc_lo, %s\ns_mov_b32 vcc_hi, %s\nv_cndmask_b32 v%d, v%d, v%d, vcc" % (u1, aCS + 4 * (k + 1), lo, hi, u0, u0, u1), 4))
    pub += hilo(a, u0, u1, vCS0)
    pub.append(("M", lambda: a.vmem("buffer_store_dword v%d, v%d, %s, s%d offen %s" % (u0, vCSW, WSR, sCSB, SC), ("cs", 0))))
    at(3, pub)
    b_ = Asm(); rot_bases(b_, 4)
    at(7, Q(a, "\n".join(b_.lines)))
    bt[5] = ([("cs", 0)], signal(a, "s_lshl2_add_u32 s49, s%d, s%d" % (sI, sFC)))
    coff = "s_mov_b32 s49, s%d" % sFC
    at(10, poll_issue(a, coff, "plc") + stats_addr(a, vCS0) + stats_fetch(a, "a", aST, vCS0))
    ld = poll_check(a, coff, "plc", "0xff") + [I(a, "v_lshlrev_b32 v%d, 4, v%d" % (u0, vL))]
    for k in range(7):
        if k == 4: ld.append(I(a, "s_add_u32 s%d, s%d, 4096" % (sCSB, sCSB)))
        ld.append(("M", lambda k=k: a.vmem("buffer_load_dwordx4 %s, v%d, %s, s%d offen offset:%d %s" % (A(aCSA + 4 * k, 4), u0, WSR, sCSB, 1024 * (k % 4), SC), ("csa", 0))))
    ld += stats_check(a, "a", aST, vCS0, u1)
    for tt in range(4): ld.append(I(a, "v_accvgpr_mov_b32 a%d, a%d" % (aST + 4 * tt + 1, aST + 4 * tt)))
    at(13, ld)
    if CFG.pf in (1, 2, 3):
        pf = Q(a, """s_mul_i32 s52, s{I}, 3
            s_add_u32 s52, s52, s{W}
            s_mul_i32 s52, s52, {B}
            s_cmp_eq_u32 s{W}, 3
            s_cmov_b32 s52, 0x{O:x}
            v_lshlrev_b32 v{P}, 7, v{L}""".format(I=sI, P=vP2, L=vL, B=192 * 1152, W=sWAVE, O=OOB))
        pf = [(c, f) for c, f in Q(a, "\n".join(f.code for c, f in pf).replace("s52", "s7"))]
        at(CFG.pfa, pf)
        for k in range(5):
            at(min(CFG.pfa + (k + 1) // 2, 16), [VM(a, "buffer_load_dword a%d, v%d, s[%d:%d], s7 offen" % (aONE, vP2, rW2, rW2 + 3)), I(a, "s_add_u32 s7, s7, %d" % (8192 if k < 3 else 4096))])
    S_.prime()
    wjob = lambda kk: ("w", lambda: kk - 2 in visible, lambda: dma_issue(kk))
    S_.jobs += [wjob(2), wjob(3)]
    for p in range(2, 9): S_.jobs += [XS.job(p), wjob(2 * p), wjob(2 * p + 1)]
    for s, (kk, T) in enumerate(info):
        pre = []
        if T == 0 and kk < 18 and kk % 2 == 0: wlg(a, [("xr", kk // 2)])
        if VERB and T == 0: a.cm("HS attn %d" % kk)
        if T == 0 and kk % 2 == 0: stamp(a, 4 + kk // 2, 6)
        if s == 0: stamp(a, 3)
        if kk == 2: assert marks
        if kk == 18 and T == 9:
            assert not S_.extra
            wvm(a, [("csa", 0)], csa=7)
        if T == 9 and kk < 17:
            tags, aft = bt.pop(kk, ([], []))
            def bar(kk=kk, tags=tags):
                wvm(a, [("w", kk + 1)] + tags, w=6)
                a("s_barrier")
            pre.append(("B", bar))
            visible.add(kk + 1)
            S_.extra += aft
            if kk % 2 == 0 and kk // 2 + 1 < 9:
                p = kk // 2 + 1
                S_.extra += XS.reads(p)
            S_.extra += ev.pop(kk, [])
        S_.emit(pre)
    assert not S_.extra and not ev and not S_.jobs and not S_.mem
    if VERB: a.cm("END")
    RS = 296
    vq, vn, vI0, vI1 = 224, 225, 226, 227
    T8 = 232
    t0, t1, t2, t3 = 242, 243, 254, 255
    SCL = 250
    a("s_barrier")
    stamp(a, 4, 5)
    stamp(a, 2)
    for tt in range(4): a("v_accvgpr_read_b32 v%d, a%d" % (SCL + tt, aST + 4 * tt + 2))
    a("v_lshrrev_b32 v%d, 4, v%d" % (vq, vL))
    a("v_and_b32 v%d, 15, v%d" % (vn, vL))
    for tt in range(4): a("v_rcp_f32 v%d, v%d" % (SCL + tt, SCL + tt))
    a("s_lshl_b32 s52, s%d, 6" % sWAVE)
    a("v_add_u32 v%d, s52, v%d" % (t0, vn))
    a("v_mul_u32_u24 v%d, %d, v%d" % (t0, RS, t0))
    a("v_lshl_add_u32 v%d, v%d, 3, v%d" % (vI0, vq, t0))
    a("v_mul_u32_u24 v%d, 72, v%d" % (t1, vq))
    a("v_add3_u32 v%d, v%d, v%d, 64" % (vI1, t0, t1))
    for tt in range(4): a("v_mul_f32 v%d, %s, v%d" % (SCL + tt, f32(LOG2E), SCL + tt))
    a("s_mov_b32 s56, %s" % f32(1.0 / LOG2E))
    a("s_mov_b32 s57, s56")
    a("v_mov_b32 v228, %s" % f32(1e-6 * LOG2E))
    a("v_cmp_gt_u32 s[32:33], 2, v%d" % vq)
    def scale4(r, tt):
        b, o = SCL + (tt & 2), tt & 1
        for i in (0, 2): a("v_pk_mul_f32 v[%d:%d], v[%d:%d], v[%d:%d] op_sel:[0,%d] op_sel_hi:[1,%d]" % (r + i, r + i + 1, r + i, r + i + 1, b, b + 1, o, o))
    def phi4(r, t, keepm=None):
        for i in range(4): a("v_exp_f32_e64 v%d, v%d clamp" % (t + i, r + i))
        for i in range(4): a("v_max_f32 v%d, v%d, v228" % (t + 4 + i, r + i))
        d = r if keepm is None else t
        for i in range(0, 4, 2): a("v_pk_fma_f32 v[%d:%d], v[%d:%d], s[56:57], v[%d:%d]" % (d + i, d + i + 1, t + 4 + i, t + 5 + i, t + i, t + i + 1))
        if keepm is not None:
            for i in range(4): a("v_cndmask_b32 v%d, v%d, v%d, %s" % (r + i, r + i, t + i, keepm))
    def pack2(dst, r):
        a("v_cvt_pk_bf16_f32 v%d, v%d, v%d" % (dst, r, r + 1))
        a("v_cvt_pk_bf16_f32 v%d, v%d, v%d" % (dst + 1, r + 2, r + 3))
    h0off = "s_add_u32 s49, s72, %d" % (128 * FH)
    side = []
    def sprinkle():
        while side:
            t, f = side.pop(0); f()
            if t == "M": break
    a("v_mov_b32 v%d, 0x%x" % (t2, ONE2))
    a("v_mov_b32 v%d, 0x%x" % (t3, ONE2))
    for tt in range(4): a("ds_write_b64 v%d, v[%d:%d] offset:%d" % (t0, t2, t3, tt * 16 * RS + 288))
    for T in [13] + list(range(9, 13)) + list(range(5, 9)):
        for tt in (3, 2, 1, 0):
            r = acc(T, tt)
            if T != 13 and (T < 9 or tt % 2 == 0): sprinkle()
            scale4(r, tt)
            if 5 <= T < 9: phi4(r, T8)
            elif T == 13: phi4(r, T8, keepm="s[32:33]")
            pack2(r, r)
            if T == 13: a("ds_write_b64 v%d, v[%d:%d] offset:%d" % (vI1, r, r + 1, tt * 16 * RS))
            else:
                off = C0[(T - 5) % 4] * 8 + (144 if T >= 9 else 0)
                a("ds_write_b64 v%d, v[%d:%d] offset:%d" % (vI0, r, r + 1, tt * 16 * RS + off))
        if T == 13:
            run(p2.setup_vo(240, 241, "s_mov_b32 s52, s4", sXG))
            p2.free = list(range(10, 18))
            for u in p2.units[:8]: side += p2.dma_issue(*u)
            a("v_bfe_u32 v223, v%d, 3, 2" % vL)
            a("v_and_b32 v240, 7, v%d" % vL)
            a("v_lshlrev_b32 v240, 2, v240")
            a("v_lshl_add_u32 v223, v223, 7, v240")
            side += poll_issue(a, h0off, "pl0", 231, 223)
    run(side); side = []
    stamp(a, 5, 5)
    vM, vLf, vB2 = 229, 230, 226
    a("v_bfe_u32 v%d, v%d, 2, 4" % (t0, vL))
    a("v_mul_u32_u24 v%d, %d, v%d" % (t0, RS, t0))
    a("v_and_b32 v%d, 3, v%d" % (t2, vL))
    a("s_lshl_b32 s52, s%d, 2" % sWAVE)
    a("s_lshr_b32 s49, s%d, 1" % sWAVE)
    a("s_add_u32 s52, s52, s49")
    a("v_cmp_eq_u32 vcc, s%d, v%d" % (sWAVE, t2))
    a("v_add_u32 v%d, s52, v%d" % (t3, t2))
    a("v_lshl_add_u32 v%d, v%d, 3, v%d" % (vM, t3, t0))
    a("s_lshl_b32 s52, s52, 3")
    a("s_add_u32 s52, s52, 32")
    a("v_add_u32 v%d, s52, v%d" % (vLf, t0))
    a("v_add_u32 v%d, 144, v%d" % (t3, t0))
    a("v_cndmask_b32 v%d, v%d, v%d, vcc" % (vB2, t3, vLf))
    a("v_cmp_eq_u32 s[34:35], s%d, v%d" % (sWAVE, vq))
    a.lg0()
    a("s_barrier")
    KC = 80
    FR = 96
    for k8 in range(8):
        if k8 == 4:
            for v_ in (vM, vLf, vB2): a("v_add_u32 v%d, %d, v%d" % (v_, 128 * RS, v_))
        if k8 == 7: a.wait_lg(lambda t: t == 0)
        for f, (base, off) in enumerate([(vM, 0), (vLf, 0), (vM, 144), (vB2, 144)]):
            for rd in range(2):
                r = FR + 16 * (k8 % 7) + 4 * f + 2 * rd
                a.lds("ds_read_b64_tr_b16 v[%d:%d], v%d offset:%d" % (r, r + 1, base, (32 * (k8 % 4) + 16 * rd) * RS + off), k8)
        for kq in ([k8 - 1] if k8 else []) + ([7] if k8 == 7 else []):
            a.wait_lg(lambda t: t == kq)
            b = FR + 16 * (kq % 7)
            for ci, (fa, fb) in enumerate([(b, b + 8), (b, b + 12), (b + 4, b + 8), (b + 4, b + 12)]):
                d = KC + 4 * ci
                a("%s %s, %s, %s, %s" % (MF, V(d, 4), V(fa, 4), V(fb, 4), "0" if kq == 0 else V(d, 4)))
    stamp(a, 6, 5)
    a("s_lshl_b32 s52, s%d, 5" % sXG)
    a("s_add_u32 s52, s52, s%d" % sWAVE)
    a("s_mul_i32 s6, s52, 3072")
    a("s_add_u32 s6, s6, %d" % KVP_OFF)
    a("s_mul_i32 s52, s%d, 12288" % sI)
    a("s_add_u32 s58, s6, s52")
    a("v_lshlrev_b32 v%d, 4, v%d" % (t0, vL))
    a("s_lshl_b32 s81, s%d, 7" % sXG)
    a("s_add_u32 s81, s81, %d" % FL(FKV))
    for i in range(4): a("v_cndmask_b32 v%d, v%d, v%d, s[34:35]" % (KC + 8 + i, KC + 12 + i, KC + 8 + i))
    for ci in range(3):
        a.vmem("buffer_store_dwordx4 %s, v%d, %s, s58 offen offset:%d %s" % (V(KC + 4 * ci, 4), t0, WSR, ci * 1024, SC), "kvp")
    run(poll_check(a, h0off, "pl0", "s71", 231, 223))
    for st in range(CFG.ah): side += p2.h_issue(st)
    QF = 104
    def qphi(tt):
        for T in range(5):
            sprinkle()
            scale4(acc(T, tt), tt)
            phi4(acc(T, tt), T8)
        for h in range(4):
            if h % 2: sprinkle()
            pack2(QF + 16 * tt + 4 * h, acc(h, tt))
            pack2(QF + 16 * tt + 4 * h + 2, acc(4, tt))
    qphi(0); qphi(1)
    stamp(a, 7, 5)
    a.wait_vm(lambda t: t == "kvp")
    a("s_barrier")
    run(signal(a, "s_lshl2_add_u32 s49, s%d, s81" % sI))
    p2.free += list(range(10))
    for u in p2.units[8:3 * CFG.ah]: side += p2.dma_issue(*u)
    stamp(a, 8, 5)
    qphi(2); qphi(3)
    run(side); side = []
    run(poll_issue(a, "s_mov_b32 s49, s81", "plkv"))
    a("s_and_b32 s52, s%d, 1" % sWAVE)
    a("s_lshl_b32 s49, s52, 1")
    a("v_cmp_le_u32 s[32:33], s49, v%d" % vn)
    a("v_lshrrev_b32 v%d, 2, v%d" % (t2, vn))
    a("v_cmp_eq_u32 s[16:17], s%d, v%d" % (sWAVE, t2))
    a("v_and_b32 v%d, 3, v%d" % (t2, vn))
    a("s_add_u32 s49, s49, 2")
    a("v_cmp_gt_u32 vcc, s49, v%d" % t2)
    a("v_cmp_eq_u32 s[20:21], s%d, v%d" % (sWAVE, t2))
    a("s_and_b64 s[10:11], s[16:17], vcc")
    a("v_cmp_le_u32 s[74:75], s52, v%d" % vq)
    a("s_cmp_eq_u32 s52, 1")
    a("s_cselect_b64 s[76:77], s[34:35], 0")
    stamp(a, 9, 5)
    run(poll_check(a, "s_mov_b32 s49, s81", "plkv", "0xff"))
    stamp(a, 5)
    stamp(a, 10, 5)
    for i in range(8):
        a("s_add_u32 s58, s6, %d" % (i * 12288))
        for ci in range(3):
            a.vmem("buffer_load_dwordx4 %s, v%d, %s, s58 offen offset:%d %s" % (V(12 * i + 4 * ci, 4), t0, WSR, ci * 1024, SC), ("kv", i))
    for i in range(1, 8):
        a.wait_vm(lambda t: t == ("kv", i))
        if i == 1: stamp(a, 11, 5)
        for r in range(12): a("v_add_f32 v%d, v%d, v%d" % (r, r, 12 * i + r))
    stamp(a, 12, 5)
    pack2(12, 0); pack2(14, 4); pack2(16, 8)
    a("v_mov_b32 v18, v16"); a("v_mov_b32 v19, v17"); a("v_mov_b32 v20, v16"); a("v_mov_b32 v21, v17")
    a("s_bitcmp1_b32 s%d, 0" % sWAVE)
    a("s_cselect_b64 vcc, -1, 0")
    a("v_permlane16_swap_b32 v18, v20")
    a("v_permlane16_swap_b32 v19, v21")
    a("v_mov_b32_dpp v22, v14 row_ror:4 row_mask:0xf bank_mask:0xf")
    a("v_mov_b32_dpp v23, v15 row_ror:4 row_mask:0xf bank_mask:0xf")
    a("v_cndmask_b32 v18, v20, v18, vcc")
    a("v_cndmask_b32 v19, v21, v19, vcc")
    a("v_cndmask_b32 v22, v14, v22, s[16:17]")
    a("v_cndmask_b32 v23, v15, v23, s[16:17]")
    a("v_mov_b32_dpp v20, v18 row_ror:4 row_mask:0xf bank_mask:0xf")
    a("v_mov_b32_dpp v21, v19 row_ror:4 row_mask:0xf bank_mask:0xf")
    a("v_cndmask_b32 v20, v18, v20, s[16:17]")
    a("v_cndmask_b32 v21, v19, v21, s[16:17]")
    for f, (m, mainr, leftr) in enumerate([(32, 12, 16), (10, 14, 18), (20, 22, 20)]):
        for k, (src, extra) in enumerate([(mainr, 74), (mainr + 1, m), (leftr, 34), (leftr + 1, 76)]):
            a("s_and_b64 vcc, s[%d:%d], s[%d:%d]" % (m, m + 1, extra, extra + 1))
            a("v_cndmask_b32 v%d, 0, v%d, vcc" % (24 + 4 * f + k, src))
    a("s_mul_i32 s52, s%d, 3072" % sWAVE)
    a("v_add_u32 v%d, 0x25000, v%d" % (t0, t0))
    a("v_add_u32 v%d, s52, v%d" % (t1, t0))
    for f in range(3):
        a("ds_write_b128 v%d, %s offset:%d" % (t1, V(24 + 4 * f, 4), f * 1024))
    a("s_waitcnt lgkmcnt(0)")
    a("s_barrier")
    AF = 168
    for i in range(12):
        a("ds_read_b128 %s, v%d offset:%d" % (V(AF + 4 * i, 4), t0, i * 1024))
    a("s_lshl_b32 s52, s%d, 1" % sXG)
    a("s_add_u32 s52, s52, 144")
    a("s_mul_i32 s58, s52, %d" % KSTRIDE)
    a("s_add_u32 s58, s58, %d" % H_OFF)
    a("s_add_u32 s59, s58, %d" % KSTRIDE)
    a("s_lshr_b32 s52, s%d, 1" % sXG)
    a("s_add_u32 s52, s52, 160")
    a("s_mul_i32 s57, s52, %d" % KSTRIDE)
    a("s_and_b32 s52, s%d, 1" % sXG)
    a("s_lshl_b32 s52, s52, 3")
    a("s_add_u32 s57, s57, s52")
    a("s_add_u32 s57, s57, %d" % H_OFF)
    a("s_mov_b32 s56, %s" % f32(LOG2E))
    a("v_cmp_eq_u32 s[32:33], 1, v%d" % vq)
    a("v_cmp_eq_u32 s[34:35], 2, v%d" % vq)
    a("v_cmp_eq_u32 s[10:11], 3, v%d" % vq)
    a("s_waitcnt lgkmcnt(0)")
    for tt in range(4):
        o = 24 * tt
        for h in range(4):
            qf = V(QF + 16 * tt + 4 * h, 4)
            a("%s %s, %s, %s, 0" % (MF, V(o + 4 * h, 4), V(AF + 12 * h, 4), qf))
            a("%s %s, %s, %s, %s" % (MF, V(o + 16, 4), V(AF + 12 * h + 4, 4), qf, "0" if h == 0 else V(o + 16, 4)))
            a("%s %s, %s, %s, %s" % (MF, V(o + 20, 4), V(AF + 12 * h + 8, 4), qf, "0" if h == 0 else V(o + 20, 4)))
    stamp(a, 13, 5)
    a("s_nop 7")
    for tt in range(4):
        o = 24 * tt
        for h in range(4): a("v_fma_f32 v%d, v%d, s56, v228" % (o + 20 + h, o + 20 + h))
        for h in range(4): a("v_rcp_f32 v%d, v%d" % (o + 20 + h, o + 20 + h))
        a("s_nop 0")
        a("v_cndmask_b32 v%d, v%d, v%d, s[32:33]" % (T8 + 8, o + 20, o + 21))
        a("v_cndmask_b32 v%d, v%d, v%d, s[34:35]" % (T8 + 8, T8 + 8, o + 22))
        a("v_cndmask_b32 v%d, v%d, v%d, s[10:11]" % (T8 + 8, T8 + 8, o + 23))
        for h in range(4):
            b, sel = o + 20 + (h & 2), h & 1
            for i in (0, 2): a("v_pk_mul_f32 v[%d:%d], v[%d:%d], v[%d:%d] op_sel:[0,%d] op_sel_hi:[1,%d]" % (o + 4 * h + i, o + 4 * h + i + 1, o + 4 * h + i, o + 4 * h + i + 1, b, b + 1, sel, sel))
        for i in (0, 2): a("v_pk_mul_f32 v[%d:%d], v[%d:%d], v[%d:%d] op_sel_hi:[1,0]" % (o + 16 + i, o + 17 + i, o + 16 + i, o + 17 + i, T8 + 8, T8 + 9))
        pack2(o, o); pack2(o + 2, o + 4)
        pack2(o + 4, o + 8); pack2(o + 6, o + 12)
        pack2(o + 8, o + 16)
        a.vmem("buffer_store_dwordx4 %s, v%d, %s, s58 offen offset:%d %s" % (V(o, 4), vX, WSR, tt * 1024, SC), "o")
        a.vmem("buffer_store_dwordx4 %s, v%d, %s, s59 offen offset:%d %s" % (V(o + 4, 4), vX, WSR, tt * 1024, SC), "o")
        a.vmem("buffer_store_dwordx2 %s, v%d, %s, s57 offen offset:%d %s" % (V(o + 8, 2), vX, WSR, tt * 1024, SC), "o")
    for o_, n_ in zip(keep[:5], new[:5]): a("v_mov_b32 v%d, v%d" % (o_, n_))
    vL, vX, vFS, vFP, vTK, vPL = keep
    p2.setup_special(176, 177, 178)
    tr_addrs(a, 176, 177, 178)
    a("s_mul_i32 s%d, s70, 4128" % sPX)
    a("s_lshl_b32 s81, s%d, 7" % sXG)
    a("s_add_u32 s81, s81, s%d" % sFI)
    a("s_mov_b32 s52, s%d" % sI)
    a("s_mov_b32 s%d, s%d" % (sI, sXG))
    a("s_mov_b32 s%d, s52" % sXG)
    osig = lambda: signal(a, "s_add_u32 s49, s81, %d" % (128 * FO))
    stamp(a, 14, 5)
    stamp(a, 6)
    lgo = a.newlabel("Lp2a")
    a("s_cmp_lt_u32 s%d, 6" % sXG)
    a("s_cbranch_scc1 %s" % lgo)
    a("s_waitcnt vmcnt(0)")
    a("s_barrier")
    keepvm = list(a.vm)
    run(osig())
    a.vm = keepvm
    a("s_branch L_final")
    a.label(lgo)
    hooks = {}
    def add(st, key, v): hooks.setdefault(st, {}).setdefault(key, []).extend(v)
    add(1, "bar", ["o"]); add(1, "after", osig())
    ooff = "s_add_u32 s49, s72, %d" % (128 * FO)
    NSA = len(steps)
    add(3, "after", poll_issue(a, ooff, "plo", None, 223))
    add(5, "after", poll_check(a, ooff, "plo", "0x01010101", None, 223) + [("", lambda: marks.add("o"))])
    wvm(a, [("w2", 0, k_) for k_ in range(3)])
    a("s_barrier")
    p2.visible.update((0, k_) for k_ in range(3))
    for k_ in [k_ for k_ in a.cnt if isinstance(k_, tuple) and k_[0] == "f"]: del a.cnt[k_]
    S_ = Stream(a, "v", WF)
    p2.add_slots(S_)
    S_.prime()
    S_.jobs += p2.jobs(CFG.ah, lambda st: True, lambda st: st < 12 or "o" in marks)
    p2.main(S_, hooks, [18, 19])

def spin(a, soff_code, mask, sleep):
    lp, ld = a.newlabel("Lw"), a.newlabel("Lw")
    a(soff_code)
    a("s_mov_b32 s59, 40000")
    a.label(lp)
    a("buffer_load_dword v%d, v%d, %s, s49 offen %s" % (vPL, vFP, WSR, SC))
    a("s_waitcnt vmcnt(0)")
    a("v_cmp_eq_u32 vcc, s%d, v%d" % (sTOK, vPL))
    a("s_andn2_b32 s61, %s, vcc_lo" % mask)
    a("s_cbranch_scc0 %s" % ld)
    a("s_sleep %d" % sleep)
    a("s_sub_u32 s59, s59, 1")
    a("s_cmp_lg_u32 s59, 0")
    a("s_cbranch_scc1 %s" % lp)
    a.label(ld)

def code_prefetch(a):
    a("s_getpc_b64 s[60:61]")
    l = a.newlabel("Lpc")
    a.label(l)
    a("s_sub_u32 s%d, s60, %s-%s" % (rW2, l, NAME))
    a("s_subb_u32 s%d, s61, 0" % (rW2 + 1))
    a("s_and_b32 s%d, s%d, 0xffff" % (rW2 + 1, rW2 + 1))
    a("s_mov_b32 s%d, L_code_end-%s" % (rW2 + 2, NAME))
    a("s_mov_b32 s%d, 0x20000" % (rW2 + 3))
    a("s_lshr_b32 s52, s2, 3")
    a("s_lshl_b32 s52, s52, 12")
    a("s_lshl_b32 s49, s%d, 10" % sWAVE)
    a("s_add_u32 s52, s52, s49")
    a("v_lshlrev_b32 v63, 4, v%d" % vL)
    a.vmem("buffer_load_dword v%d, v63, s[%d:%d], s52 offen" % (vPL, rW2, rW2 + 3), "pf")
    if CFG.tlb:
        a("s_lshl_b32 s49, s%d, 1" % sWAVE)
        a("s_cmp_eq_u32 s%d, 1" % sWAVE)
        a("s_cselect_b32 s60, s%d, s%d" % (sW2, sWS)); a("s_cselect_b32 s61, s%d, s%d" % (sW2 + 1, sWS + 1))
        a("s_mov_b32 s%d, %d" % (rWO + 2, PART_OFF + 5 * PSL)); a("s_cmov_b32 s%d, %d" % (rWO + 2, 4608 * 1152))
        a("s_cmp_eq_u32 s%d, 2" % sWAVE)
        a("s_cmov_b32 s60, s%d" % sWO); a("s_cmov_b32 s61, s%d" % (sWO + 1)); a("s_cmov_b32 s%d, %d" % (rWO + 2, 576 * 1152))
        a("s_cmp_eq_u32 s%d, 3" % sWAVE)
        a("s_cmov_b32 s60, s%d" % sOUT); a("s_cmov_b32 s61, s%d" % (sOUT + 1)); a("s_cmov_b32 s%d, %d" % (rWO + 2, 2048 * 1152))
        a("s_mov_b32 s%d, s60" % rWO)
        a("s_and_b32 s%d, s61, 0xffff" % (rWO + 1))
        a("s_mov_b32 s%d, 0x20000" % (rWO + 3))
        a("v_lshlrev_b32 v63, %d, v%d" % (CFG.tlb, vL))
        a("s_lshl_b32 s52, s2, 7")
        a.vmem("buffer_load_dword v%d, v63, s[%d:%d], s52 offen %s" % (vPL, rWO, rWO + 3, SC), "pf")

def build():
    a = Asm()
    a.raw("; @launch grid=(256,1,1) block=(256,1,1) lds=%d" % LDS_BYTES)
    a.raw('.amdgcn_target "amdgcn-amd-amdhsa--gfx950"')
    a.raw(".text")
    kernel_begin(a, NAME)
    a("s_cmp_ge_u32 s2, 256")
    a("s_cbranch_scc1 L_end")
    a("s_load_dwordx16 s[4:19], s[0:1], 0")
    a("s_load_dwordx4 s[20:23], s[0:1], 64")
    if CFG.stamp:
        for i in range(16): a("s_mov_b32 s%d, 0" % (84 + i))
        a("s_memtime s[100:101]" if CFG.clk else "s_memrealtime s[100:101]")
    a("v_and_b32 v%d, 63, v0" % vL)
    a("v_lshrrev_b32 v1, 6, v0")
    a("v_cmp_eq_u32 vcc, 0xc0, v0")
    a("v_readfirstlane_b32 s%d, v1" % sWAVE)
    a("v_mov_b32 v1, 0x%x" % OOB)
    a("s_lshr_b32 s%d, s2, 6" % sC)
    a("v_cndmask_b32 v%d, v1, v%d, vcc" % (vFS, vL))
    a("v_and_b32 v1, 31, v0")
    a("v_lshlrev_b32 v%d, 2, v1" % vFP)
    if CFG.mapping == 0:
        a("s_and_b32 s%d, s2, 7" % sXG)
        a("s_bfe_u32 s%d, s2, 0x30003" % sI)
    elif CFG.mapping == 1:
        a("s_and_b32 s%d, s2, 3" % sXG)
        a("s_bfe_u32 s52, s2, 0x10003")
        a("s_lshl1_add_u32 s%d, s%d, s52" % (sXG, sXG))
        a("s_and_b32 s%d, s2, 4" % sI)
        a("s_bfe_u32 s52, s2, 0x20004")
        a("s_add_u32 s%d, s%d, s52" % (sI, sI))
    elif CFG.mapping == 4:
        a("s_and_b32 s%d, s2, 3" % sXG)
        a("s_bfe_u32 s52, s2, 0x10003")
        a("s_lshl1_add_u32 s%d, s%d, s52" % (sXG, sXG))
        a("s_bfe_u32 s%d, s2, 0x20004" % sI)
        a("s_bfe_u32 s52, s2, 0x10002")
        a("s_lshl1_add_u32 s%d, s%d, s52" % (sI, sI))
    a("s_mul_i32 s%d, s%d, %d" % (sROT, sC, CFG.rotc))
    a("s_add_u32 s%d, s%d, s%d" % (sROT, sROT, sI))
    if CFG.mapping != 0 and CFG.rotc:
        a("s_and_b32 s52, s%d, 1" % sXG)
        a("s_add_u32 s%d, s%d, s52" % (sROT, sROT))
    a("s_cmp_ge_u32 s%d, 9" % sROT)
    a("s_cselect_b32 s52, 9, 0")
    a("s_sub_u32 s%d, s%d, s52" % (sROT, sROT))
    a("s_lshl_b32 s52, s%d, 14" % sI)
    a("s_lshl_b32 s49, s%d, 12" % sWAVE)
    a("s_add_u32 s52, s52, s49")
    a("v_lshl_add_u32 v%d, v%d, 4, s52" % (vX, vL))
    a("s_lshl_b32 s%d, s%d, 10" % (sFI, sI))
    a("s_add_u32 s%d, s%d, 0x%x" % (sFI, sFI, FLG_OFF))
    stats_load(a)
    a("s_mov_b32 s%d, 0x%x" % (rX + 2, 2048 * 1152))
    a("s_mov_b32 s%d, 0x20000" % (rX + 3))
    a("s_waitcnt lgkmcnt(0)")
    if CFG.stamp: a("s_mov_b32 s84, s100")
    a("s_mov_b32 s%d, s%d" % (rX, sX))
    a("s_and_b32 s%d, s%d, 0xffff" % (rX + 1, sX + 1))
    stats_issue(a)
    a("s_add_u32 s60, s%d, 0x%x" % (sWS, FL(0)))
    a("s_addc_u32 s61, s%d, 0" % (sWS + 1))
    a("s_load_dword s%d, s[60:61], 0" % sTOK)
    stamp(a, 6, 1)
    srd(a, rWS, sWS, WS_BYTES)
    vm0 = list(a.vm)
    a("s_cmp_eq_u32 s%d, 3" % sC)
    a("s_cbranch_scc1 L_attn")
    path_mlp(a)
    a.label("L_final")
    stamp_out(a)
    a.label("L_end")
    a("s_endpgm")
    a.vm = vm0; a.lg = []
    a.label("L_attn")
    path_attn(a)
    a("s_branch L_final")
    a.lines += LATER
    a.label("L_code_end")
    a("s_endpgm")
    a.raw('.section .rodata,"a"')
    a.raw(kernel_desc(NAME, 512, 256))
    return a.text()

if __name__ == "__main__":
    args = sys.argv[1:]
    out = "parallel_sum__linear_attn_block__glu_gated_swiglu__prompt.s"
    for x in args:
        if x == "--stamp": CFG.stamp = True
        elif x == "-v": VERB = True
        elif x == "--sc1": SC = "sc1"
        elif x == "--dsc1": DFL = "sc1"
        elif x == "--dnt": DFL = "nt"
        elif x == "--osc": OSC = " sc1"
        elif x == "--ont": OSC = " nt"
        elif "=" in x:
            k, v = x.split("="); assert hasattr(CFG, k), k; setattr(CFG, k, float(v) if "." in v else int(v))
        else: out = x
    txt = build()
    if CFG.abl:
        import re
        L = txt.split("\n"); i0 = next(i for i, l in enumerate(L) if "v_mfma" in l); i1 = L.index("L_final:")
        def drop(l):
            l = l.strip()
            if CFG.abl & 1 and re.match(r"v_(mul_f32|exp_f32|rcp_f32) v\d+, v\d+", l) and int(re.search(r"v(\d+)", l.split(" ")[1]).group(1)) < 128: return True
            if CFG.abl & 1 and re.match(r"v_fma_f32", l): return True
            if CFG.abl & 2 and l.startswith("ds_read_b64_tr_b16"): return True
            if CFG.abl & 4 and l.startswith("v_mfma_f32_16x16x16"): return True
            if CFG.abl & 8 and l.endswith(" lds"): return True
            if CFG.abl & 16 and l.startswith("buffer_load_dwordx4 a["): return True
            return False
        txt = "\n".join(l for i, l in enumerate(L) if not (i0 < i < i1 and drop(l)))
    if DFL: txt = txt.replace(" lds\n", " %s lds\n" % DFL)
    open(out, "w").write(txt)
    if CFG.stamp: open(out + ".slow", "w").write("\n".join(NSLOW))
```

```python
import sys, math
from lib import *

NAME = "parallel_sum__linear_attn_block__glu_gated_swiglu__prompt_kernel"
LOG2E = 1.4426950408889634
KSTRIDE = 131072
H_OFF = 18 * KSTRIDE
KVP_OFF = H_OFF + 164 * KSTRIDE
PART_OFF = KVP_OFF + 8 * 8 * 4 * 6 * 1024
PSL = 18 * KSTRIDE
FLG_OFF = 0x80000
ST_OFF = 0
CS_OFF = 0x10000
WS_BYTES = 268435456
OOB = 0x7f000000
LDS_BYTES = 163840
SC = "sc0 sc1"
OSC = ""
DFL = ""
def FL(line): return FLG_OFF + 128 * line
FKV, FC, FP, FO, FH = 56, 96, 128, 192, 256

sX, sWQKV, sWO, sW1, sW3, sW2, sOUT, sDBG, sWS = 4, 6, 8, 12, 14, 16, 18, 20, 22
rWS, rWA, rX, rW2, rWO = 24, 28, 36, 40, 44
sWAVE, sI, sXG, sC, sTOK = 48, 50, 51, 78, 79
sFI = 80
sXo, sWo, sXL, sOne2, sCSB, sFC, sROT = 32, 33, 34, 35, 82, 83, 81
MF = "v_mfma_f32_16x16x32_bf16"
MF16 = "v_mfma_f32_16x16x16_bf16"
WSR = "s[%d:%d]" % (rWS, rWS + 3)
XR = "s[%d:%d]" % (rX, rX + 3)
ONE2 = 0x3f803f80

VERB = False
class Cfg:
    stamp = False
    clk = 0
    mapping = 0
    split = 12
    kseq = 5
    sset = 0
    swave = 0
    pf = 4
    rotc = 0
    vmrate = 85
    epirate = 4.5
    age = 16
    window = 60
    defer = 10
    cpf = 1
    af = 6
    ap = 8
    ka = 5
    s1 = 3
    p1 = 13
    c1 = 17
    s3 = 0
    pc1 = 9
    kc1 = 5
    rsv = 30
    hgap = 0
    mid = 0
    pmid = 3
    fsat = 56
    early = 30
    findl = 5
    abl = 0
    tlb = 0
    ah = 4
    osplit = 1
    po = 5
    lean = 2
    boost = 3
    one = 0
    slp0 = 8
    slp1 = 2
    sum0 = 0
    hw = 1.0
    hrot = 2
    xlead = 2
    cs0 = 4
    cs1 = 4
    cs2 = 18
    cj1 = 8
    cj2 = 3
    pfw = 0
    pfa = 14
    pfs = 3
    init = 0
    cmode = 1
    cdel = 3
    sigd = 7
    gate1 = 35
    c00 = 16
    sig0 = 9
    p0 = 11
    k0 = 6
    gate2 = 68
    dbgwg = -1
    sbase = 0
    sstep = 2
    exs = 5
    edl = 56
    s4 = 6
    p4 = 8
    c4 = 9
    ofirst = 1
    relper = 4
    pfat = -2
CFG = Cfg()

def stamp(a, i, sset=0):
    if CFG.stamp and (sset == CFG.sset or i in (3, 15)):
        a("s_memtime s[100:101]" if CFG.clk else "s_memrealtime s[100:101]")
        a.lg0()
        a("s_mov_b32 s%d, s100" % (84 + i))
def stamp_out(a):
    if not CFG.stamp: return
    a("s_waitcnt vmcnt(0)")
    stamp(a, 15)
    l = a.newlabel("Lst")
    a("s_cmp_lg_u32 s%d, %d" % (sWAVE, CFG.swave))
    a("s_cbranch_scc1 %s" % l)
    a("s_lshl_b32 s3, s2, 6")
    a("s_add_u32 s3, s3, 0xF000000")
    a("v_mov_b32 v1, s3")
    a("s_mov_b64 exec, 1")
    for i in range(8):
        a("v_mov_b32 v2, s%d" % (84 + 2 * i))
        a("v_mov_b32 v3, s%d" % (85 + 2 * i))
        a("global_store_dwordx2 v1, v[2:3], s[%d:%d] offset:%d" % (sWS, sWS + 1, i * 8))
    if CFG.dbgwg >= 0:
        a("s_cmp_lg_u32 s2, %d" % CFG.dbgwg)
        a("s_cbranch_scc1 %s" % l)
        a("s_load_dwordx2 s[20:21], s[0:1], 64")
        a("s_waitcnt lgkmcnt(0)")
        a("v_mov_b32 v1, 0")
        for i in range(16):
            a("s_sub_u32 s3, s%d, s84" % (84 + i)) if i != 1 else a("s_mov_b32 s3, s85")
            a("v_mov_b32 v2, s3")
            a("global_store_dword v1, v2, s[20:21] offset:%d" % (4 * i))
    a.label(l)

vL, vX, vFS, vFP, vTK, vPL = 174, 175, 216, 217, 218, 219

NOPS = {"w": 2, "x": 8, "xr": 8, "csa": 2, "cs": 1, "h": 4, "w2": 2, "h2": 4, "part": 4, "ex": 8, "er": 8, "o": 12, "stf": 4}
CUR = [None]
def chk(a, tag, **over):
    k = tag if isinstance(tag, str) else tag[0]
    n = over.get(k, NOPS.get(k, 1))
    S_ = CUR[0]
    if a.cnt.get(tag, 0) < n and S_ is not None:
        if VERB: print("LATE", tag, a.cnt.get(tag, 0), file=sys.stderr)
        while a.cnt.get(tag, 0) < n:
            if k in ("x", "w", "w2", "h2"):
                assert not S_.inbar or S_.mem, ("needs space behind this barrier", tag)
                S_.refill()
                q = S_.mem
            elif k in ("h", "part"):
                S_.flush_epi(); continue
            else: q = S_.extra
            assert q, ("cannot produce", tag)
            q.pop(0)[1]()
    a.expect(tag, n)
def wvm(a, tags, **over):
    for t in tags: chk(a, t, **over)
    a.wait_vm(lambda t: t in tags)
def wlg(a, tags, **over):
    for t in tags: chk(a, t, **over)
    a.wait_lg(lambda t: t in tags)

def ityp(code):
    out = ""
    for l in code.split("\n"):
        op = l.strip().split(" ")[0]
        if not op: continue
        if op == "s_waitcnt": continue
        if op.startswith("s_"): out += "S"
        elif op.startswith(("v_exp", "v_rcp", "v_sqrt")): out += "T"
        elif op.startswith("v_"): out += "V"
        elif op.startswith("ds_read"): out += "D"
        elif op.startswith("ds_write"): out += "X"
        elif op.startswith("buffer_store_dwordx"): out += "O"
        else: out += "M"
    return out
def I(a, s, c=1):
    def fn(): a(s)
    fn.code = s
    return (ityp(s), fn)
def Q(a, code):
    out = []; ls = [l.strip() for l in code.split("\n") if l.strip()]
    i = 0
    while i < len(ls):
        grp = [ls[i]]
        if ls[i].startswith(("s_cmp", "s_bitcmp")):
            while i + 1 < len(ls) and ls[i + 1].startswith(("s_cmov", "s_cselect")):
                i += 1; grp.append(ls[i])
        out.append(I(a, "\n".join(grp), len(grp)))
        i += 1
    return out
def VM(a, fmt, tag=None, w=1.0):
    def fn(): a.vmem(fmt() if callable(fmt) else fmt, tag)
    fn.vm = w
    return (ityp(fmt), fn)
def run(fns):
    for c, fn in fns: fn()

def signal(a, soff_code, tag=None):
    return [I(a, soff_code),
            ("M", lambda: a.vmem("buffer_store_dword v%d, v%d, %s, s49 offen %s" % (vTK, vFS, WSR, SC), tag))]

LATER = []
NSLOW = []
def slow_path(a, body, name):
    ls, lb, lp = a.newlabel("Lslow"), a.newlabel("Lback"), a.newlabel("Lspin")
    a("s_cbranch_scc1 %s" % ls)
    a.label(lb)
    b = Asm()
    b.label(ls)
    b("s_mov_b32 s59, 40000")
    if CFG.stamp:
        NSLOW.append(name)
        b("s_or_b32 s85, s85, 0x%x" % (1 << (len(NSLOW) - 1)))
    b.label(lp)
    b("s_sleep 1")
    body(b)
    b("s_cbranch_scc0 %s" % lb)
    b("s_sub_u32 s59, s59, 1")
    b("s_cmp_lg_u32 s59, 0")
    b("s_cbranch_scc1 %s" % lp)
    b("s_branch %s" % lb)
    LATER.extend(b.lines)
def poll_issue(a, soff_code, tag, dst=None, off=None):
    return [I(a, soff_code),
            ("M", lambda: a.vmem("buffer_load_dword v%d, v%d, %s, s49 offen %s" % (dst or vPL, off or vFP, WSR, SC), tag))]
def poll_check(a, soff_code, tag, mask, dst=None, off=None):
    def f1():
        wvm(a, [tag])
        a("v_cmp_eq_u32 vcc, s%d, v%d" % (sTOK, dst or vPL))
    def f2():
        d = dst or vPL
        a("s_andn2_b32 s61, %s, vcc_lo" % mask)
        def body(b):
            b(soff_code)
            b("buffer_load_dword v%d, v%d, %s, s49 offen %s" % (d, off or vFP, WSR, SC))
            b("s_waitcnt vmcnt(0)")
            b("v_cmp_eq_u32 vcc, s%d, v%d" % (sTOK, d))
            b("s_andn2_b32 s61, %s, vcc_lo" % mask)
        slow_path(a, body, str(tag))
    return [("SV", f1), ("SS", f2)]
def poll_now(a, soff_code, mask):
    tag = ("poll", a.newlabel())
    run(poll_issue(a, soff_code, tag))
    run(poll_check(a, soff_code, tag, mask))

def stats_load(a):
    a("s_lshl_b32 s52, s2, 2")
    a("s_add_u32 s52, s52, s%d" % sWAVE)
    a("v_lshrrev_b32 v40, 5, v%d" % vL)
    a("v_lshl_add_u32 v40, s52, 1, v40")
    a("v_mul_u32_u24 v41, 1152, v40")
    a("v_and_b32 v42, 31, v%d" % vL)
    a("v_lshl_add_u32 v43, v42, 4, v41")
    a("v_cmp_gt_u32 vcc, 8, v42")
    a("v_mov_b32 v45, 0x%x" % OOB)
    a("v_lshlrev_b32 v40, 4, v40")
    a("v_cndmask_b32 v44, v45, v43, vcc")
    a("v_cmp_eq_u32 vcc, 0, v42")
def stats_issue(a):
    a.vmem("buffer_load_dwordx4 v[0:3], v43, %s, 0 offen" % XR, "ln")
    a.vmem("buffer_load_dwordx4 v[4:7], v43, %s, 0 offen offset:512" % XR, "ln")
    a.vmem("buffer_load_dwordx4 v[8:11], v44, %s, 0 offen offset:1024" % XR, "ln")
    a("v_cndmask_b32 v40, v45, v40, vcc")
def stats_compute(a):
    a("s_mov_b32 s49, 0x%x" % ONE2)
    a("s_waitcnt lgkmcnt(0)")
    a("s_add_u32 s%d, s%d, 1" % (sTOK, sTOK))
    a("v_mov_b32 v%d, s%d" % (vTK, sTOK))
    a("v_mov_b32 v17, s%d" % sTOK)
    a("v_mov_b32 v19, s%d" % sTOK)
    a.wait_vm(lambda t: t == "ln")
    for r in range(12):
        a("v_dot2_f32_bf16 v12, v%d, s49, %s" % (r, "0" if r == 0 else "v12"))
        a("v_dot2_f32_bf16 v13, v%d, v%d, %s" % (r, r, "0" if r == 0 else "v13"))
    a("s_mov_b32 s49, %d" % ST_OFF)
    a("s_nop 1")
    for ror in (1, 2, 4, 8):
        a("v_add_f32_dpp v12, v12, v12 row_ror:%d row_mask:0xf bank_mask:0xf" % ror)
        a("v_add_f32_dpp v13, v13, v13 row_ror:%d row_mask:0xf bank_mask:0xf" % ror)
        a("s_nop 0")
    a("v_mov_b32 v14, v12")
    a("v_mov_b32 v15, v13")
    a("s_nop 1")
    a("v_permlane16_swap_b32 v12, v14")
    a("v_permlane16_swap_b32 v13, v15")
    a("s_nop 0")
    a("v_add_f32 v12, v12, v14")
    a("v_add_f32 v13, v13, v15")
    a("v_mul_f32 v12, %s, v12" % f32(1.0 / 576))
    a("v_mul_f32 v13, %s, v13" % f32(1.0 / 576))
    a("v_fma_f32 v13, -v12, v12, v13")
    a("v_max_f32 v13, 0, v13")
    a("v_cvt_pk_bf16_f32 v13, v13, v13")
    a("v_cvt_pk_bf16_f32 v16, -v12, -v12")
    a("v_and_b32 v13, 0xffff0000, v13")
    a("v_add_f32 v13, %s, v13" % f32(1e-5))
    a("v_cvt_pk_bf16_f32 v13, v13, v13")
    a("v_and_b32 v13, 0xffff0000, v13")
    a("v_sqrt_f32 v13, v13")
    a("s_nop 0")
    a("v_cvt_pk_bf16_f32 v13, v13, v13")
    a("v_and_b32 v18, 0xffff0000, v13")
    a.vmem("buffer_store_dwordx4 v[16:19], v40, %s, s49 offen %s" % (WSR, SC), "st")

def lane_fields(a, vq, vrow, vc):
    a("v_lshrrev_b32 v%d, 4, v%d" % (vq, vL))
    a("v_bfe_u32 v%d, v%d, 2, 3" % (vrow, vL))
    a("v_and_b32 v%d, 3, v%d" % (vc, vL))

def dma_lane_off(a, vD, t0, t1, rowbytes, perm=False):
    return [I(a, "v_lshrrev_b32 v%d, 3, v%d" % (t0, vL)),
            I(a, "v_and_b32 v%d, 6, v%d" % (t1, t0)),
            I(a, "v_xor_b32 v%d, v%d, v%d" % (t1, t1, vL)),
            I(a, "v_and_b32 v%d, 7, v%d" % (t1, t1))] + \
           ([I(a, "v_and_b32 v%d, 4, v%d" % (vD, t0)), I(a, "v_add_u32 v%d, v%d, v%d" % (t0, t0, vD))] if perm else []) + [
            I(a, "v_mul_u32_u24 v%d, %d, v%d" % (t0, rowbytes, t0)),
            I(a, "v_lshl_add_u32 v%d, v%d, 4, v%d" % (vD, t1, t0))]

RA = 160
def tr_addrs(a, t0, t1, t2):
    lane_fields(a, t0, t1, t2)
    a("v_lshrrev_b32 v%d, 1, v%d" % (t0, t0))
    a("v_lshlrev_b32 v%d, 10, v%d" % (t0, t0))
    a("v_lshl_add_u32 v%d, v%d, 7, v%d" % (t0, t1, t0))
    a("v_lshl_add_u32 v%d, v%d, 3, v%d" % (t0, t2, t0))
    a("v_lshrrev_b32 v%d, 1, v%d" % (t1, t1))
    for u in range(4):
        a("v_xor_b32 v%d, %d, v%d" % (t2, u, t1))
        a("v_lshl_add_u32 v%d, v%d, 5, v%d" % (RA + u, t2, t0))
        a("v_add_u32 v%d, 0x10000, v%d" % (RA + 4 + u, RA + u))
        a("v_add_u32 v%d, 0x20000, v%d" % (RA + 8 + u, RA + u))

class XStage:
    def __init__(self, a, XO, XA, base, R, reg):
        self.a, self.XO, self.XA, self.base, self.R, self.reg = a, XO, XA, base, R, reg
    def setup_dma(self, t0, t1):
        a = self.a
        a("v_lshrrev_b32 v%d, 3, v%d" % (t0, vL))
        a("v_lshrrev_b32 v%d, 1, v%d" % (t1, t0))
        a("v_xor_b32 v%d, v%d, v%d" % (t1, t1, vL))
        a("v_and_b32 v%d, 7, v%d" % (t1, t1))
        a("s_lshl_b32 s52, s%d, 8" % sI)
        a("s_lshl_b32 s49, s%d, 6" % sWAVE)
        a("s_add_u32 s52, s52, s49")
        a("v_add_u32 v%d, s52, v%d" % (t0, t0))
        a("v_mul_u32_u24 v%d, 1152, v%d" % (t0, t0))
        a("v_lshl_add_u32 v%d, v%d, 4, v%d" % (self.XO, t1, t0))
        a("v_xor_b32 v%d, 64, v%d" % (self.XO + 1, self.XO))
        a("v_add_u32 v%d, %d, v%d" % (self.XO + 2, 2 * (8 * 1152 - 1024), self.XO))
        a("v_add_u32 v%d, %d, v%d" % (self.XO + 3, 3 * (8 * 1152 - 1024), self.XO + 1))
        a("v_add_u32 v%d, %d, v%d" % (self.XO + 1, 8 * 1152 - 1024, self.XO + 1))
        a("s_mul_i32 s%d, s%d, %d" % (sXL, sWAVE, self.R * 8192))
        a("s_add_u32 s%d, s%d, %d" % (sXL, sXL, self.base))
        a("s_lshl_b32 s%d, s%d, 7" % (sXo, sROT))
    def setup_read(self, t0, t1, t2):
        a = self.a
        a("v_and_b32 v%d, 15, v%d" % (t0, vL))
        a("v_lshrrev_b32 v%d, 1, v%d" % (t1, t0))
        a("v_lshrrev_b32 v%d, 4, v%d" % (t2, vL))
        a("v_xor_b32 v%d, v%d, v%d" % (t1, t1, t2))
        a("v_lshlrev_b32 v%d, 7, v%d" % (t0, t0))
        a("v_lshl_add_u32 v%d, v%d, 4, v%d" % (t0, t1, t0))
        a("v_add_u32 v%d, s%d, v%d" % (self.XA, sXL, t0))
        a("v_xor_b32 v%d, 64, v%d" % (self.XA + 1, self.XA))
    def dma(self, p):
        a = self.a
        fns = []
        if p >= self.R: fns.append(("S", lambda: wlg(a, [("xr", p - self.R)])))
        for hf in range(2):
            fns.append(I(a, "s_add_u32 m0, s%d, %d" % (sXL, (p % self.R) * 8192 + hf * 4096)))
            fns.append(I(a, "s_add_u32 s54, s%d, %d" % (sXo, hf * 32 * 1152)))
            for b in range(4):
                fns.append(VM(a, "buffer_load_dwordx4 v%d, %s, s54 offen offset:%d lds" % (self.XO + b, XR, b * 1024), ("x", p)))
        fns.append(I(a, "s_add_u32 s%d, s%d, 128\ns_cmp_ge_u32 s%d, 1152\ns_cmov_b32 s%d, 0" % (sXo, sXo, sXo, sXo), 3))
        return fns
    def job(self, p):
        return ("x", lambda: p < self.R or self.a.cnt.get(("xr", p - self.R), 0) == 8, lambda: self.dma(p))
    def reads(self, p):
        a = self.a
        fns = [("S", lambda: wvm(a, [("x", p)]))]
        for e in range(2):
            for tt in range(4):
                k, b = self.reg(2 * p + e, tt)
                fns.append(("D", lambda k=k, b=b, e=e, tt=tt: a.lds("ds_read_b128 %s, v%d offset:%d" % (R(k, b, 4), self.XA + e, (p % self.R) * 8192 + tt * 2048), ("xr", p))))
        return fns

class Stream:
    def __init__(self, a, kind, base):
        self.a, self.kind, self.base = a, kind, base
        self.slots = []; self.ring = []
        self.nring = 0
        self.next_rd = 0
        self.epi = []; self.deadline = 0; self.epiP = None; self.hold = 0; self.edone = {}; self.short = False
        self.extra = []
        self.inbar = False
        CUR[0] = self
        self.vmacc = 1.0; self.vmrate = CFG.vmrate / 100.0
        self.jobs = []; self.mem = []
        self.pos = 0
    def refill(self):
        if self.mem: return
        blocked = set()
        for j, (cl, ready, make) in enumerate(self.jobs):
            if cl in blocked: continue
            if len(self.a.vm) <= 50 and ready():
                self.mem = make(); self.jobs.pop(j); return
            blocked.add(cl)
    def head(self, q):
        if q and "\n" in getattr(q[0][1], "code", "") and not getattr(q[0][1], "atom", False):
            parts = Q(self.a, q[0][1].code)
            for c, f in parts: f.atom = True
            q[0:1] = parts
        return q[0] if q else None
    def add(self, rd, mf):
        self.slots.append((rd, mf))
        self.ring.append(self.nring if rd else None)
        if rd: self.nring += 1
    def cur_ring(self, s):
        while s < len(self.slots) and self.ring[s] is None: s += 1
        return self.ring[s] if s < len(self.slots) else self.nring
    def read_limit(self, s):
        return self.cur_ring(s) + 4
    def pending_reads(self, lim):
        out = []
        while self.next_rd < len(self.slots):
            n = self.next_rd
            if self.ring[n] is None: self.next_rd += 1; continue
            if self.ring[n] > lim: break
            out += self.slots[n][0](self.kind, self.base + 4 * (self.ring[n] % 8), ("f", self.ring[n]))
            self.next_rd += 1
        return out
    def prime(self): run(self.pending_reads(self.cur_ring(self.pos) + 3))
    def set_epi(self, items, deadline, hold=0, ordered=True):
        assert not self.epi
        ops = []
        for n, it in enumerate(items):
            deps = set()
            if ordered:
                if n: deps.add(n - 1)
            else:
                rd, wr = set(it[2]), set(it[3])
                for m in range(n):
                    if (rd | wr) & set(items[m][3]) or wr & set(items[m][2]): deps.add(m)
            ops.append([it[0], it[1], deps, n])
        self.epi = ops; self.edone = {}; self.deadline = deadline; self.hold = self.pos + hold
    def epi_cost(self): return sum(2 if o[0] in "TMOX" and o[0] else len(o[0]) for o in self.epi)
    def epi_pick(self, fits, strict=True):
        if self.pos < self.hold or (strict and self.short): return None
        for o in self.epi[:CFG.window]:
            ok = True
            for d in o[2]:
                if d not in self.edone: ok = False; break
                t, at = self.edone[d]
                if (t == "T" or strict) and t in ("T", "V") and o[0] in ("T", "V") and self.a.n - at < 1: ok = False; break
            if ok and fits(o[0]): return o
        return None
    def epi_run(self, o):
        self.epi.remove(o); o[1](); self.edone[o[3]] = (o[0], self.a.n)
    def flush_epi(self):
        while self.epi:
            o = self.epi_pick(lambda t: True, False)
            if o is None: self.a("s_nop 0"); continue
            self.epi_run(o)
    def emit(self, pre=(), push=0):
        a = self.a
        s = self.pos
        rd, mf = self.slots[s]
        r = self.ring[s]
        if r is not None: a.wait_lg(lambda t: t == ("f", r))
        mfmas = mf(R(self.kind, self.base + 4 * (r % 8), 4) if r is not None else None)
        n = len(mfmas)
        must = list(pre) + (self.pending_reads(self.read_limit(s)) if n == 4 else [])
        self.short = n < 4
        force = 0
        if self.epi and s >= self.hold and (n == 4 or self.deadline - s <= 1):
            left = max(self.deadline - s, 1)
            force = self.epi_cost() - int((left - 1) * CFG.epirate)
            if left * CFG.epirate < self.epi_cost(): force = math.ceil(self.epi_cost() / left)
        if n == 4: self.vmacc = min(self.vmacc + self.vmrate, 2.0)
        cost0 = self.epi_cost()
        for g, m in enumerate(mfmas):
            a(m)
            st = {"pos": 0, "vec": False, "bar": False}
            def place(t, commit=False):
                pos, vec, bar = st["pos"], st["vec"], st["bar"]
                for c in t:
                    if c == "B": pos += 2; bar = True
                    elif c == "S": pos += 1
                    elif c == "D":
                        if vec or bar: return False
                        pos = max(pos, 1) + 1; vec = True
                    elif c == "V": pos = max(pos, 1) + 1; vec = True
                    elif c == "T":
                        pos = max(pos, 1) + 2; vec = True
                    elif c == "M":
                        if pos: return False
                        pos = 3; vec = True
                    elif c == "O":
                        if pos: return False
                        pos = 2; vec = True
                    elif c == "X":
                        if vec or pos > 1: return False
                        pos = 3; vec = True
                if pos > 3: return False
                if commit: st["pos"], st["vec"], st["bar"] = pos, vec, bar
                return True
            def take(lst):
                t, f = lst.pop(0); place(t, True); f()
                if getattr(f, "vm", False): self.vmacc -= f.vm
            free_q = n == 4 and not any(t == "B" for t, f in must)
            nd = sum(1 for t, f in must if t == "D")
            want_d = nd > 0 and (nd >= n - g or g % 2 == 0 or nd > (n - g) // 2)
            def heads():
                out = []
                if not any(t == "B" for t, f in must):
                    self.refill()
                    for lst in (self.mem, self.extra):
                        h = self.head(lst)
                        if h is None: continue
                        if lst is self.mem and getattr(h[1], "vm", False) and self.vmacc < 1: continue
                        out.append(lst)
                return out
            def drop_free():
                ch = True
                while ch:
                    ch = False
                    for lst in heads():
                        if lst[0][0] == "": take(lst); ch = True
                    o = self.epi_pick(lambda t: t == "") if free_q or not must or must[0][0] != "B" else None
                    if o: self.epi_run(o); ch = True
            while must and must[0][0] == "B":
                self.inbar = True; take(must); self.inbar = False
            st["w"] = False
            if g == n - 1 and n == 4:
                nx = self.cur_ring(s + 1)
                if ("f", nx) in a.lg and a.cnt.get(("f", nx), 0) % 2 == 0:
                    two = a.cnt.get(("f", nx + 1), 0) == 2
                    a.wait_lg(lambda t: t == ("f", nx) or (two and t == ("f", nx + 1))); st["w"] = True
            drop_free()
            done_heavy = False
            if not want_d and not (must and must[0][0] == "V"):
                for lst in heads():
                    if lst[0][0] in ("M", "O", "X") and place(lst[0][0]): take(lst); done_heavy = True; break
                if not done_heavy:
                    o = self.epi_pick(lambda t: t in ("O", "M", "X") and place(t))
                    if o: place(o[0], True); self.epi_run(o); done_heavy = True
            if not done_heavy:
                if st["w"]: place("S", True)
                if st["pos"] == 0:
                    for lst in heads():
                        if lst[0][0] == "S" or (lst[0][0] in ("SS", "SV") and not want_d): take(lst); break
                    else:
                        o = self.epi_pick(lambda t: t == "S")
                        if o: place("S", True); self.epi_run(o)
                    drop_free()
                if must and must[0][0] == "D" and want_d and place("D"): take(must)
                elif not want_d:
                    for lst in heads():
                        if lst[0][0] == "D" and place("D"): take(lst); break
                    else:
                        o = self.epi_pick(lambda t: t == "D" and place(t))
                        if o: place("D", True); self.epi_run(o)
            while True:
                drop_free()
                if must and must[0][0] == "V" and place("V"): take(must); continue
                for lst in heads():
                    if lst[0][0] and set(lst[0][0]) <= set("SVT") and place(lst[0][0]): take(lst); break
                else:
                    o = self.epi_pick(lambda t: t == "T" and place(t)) or self.epi_pick(lambda t: t in ("V", "S") and place(t))
                    if o is None: break
                    place(o[0], True); self.epi_run(o)
            want = force * (g + 1) / n
            while self.epi and cost0 - self.epi_cost() < want:
                o = self.epi_pick(lambda t: t in ("V", "T", "S", "") or g == n - 1, False)
                if o is None: break
                self.epi_run(o)
            if g == n - 1:
                while must: must.pop(0)[1]()
                k = push
                while k > 0 and self.head(self.extra): self.extra.pop(0)[1](); k -= 1
        self.pos += 1

def tr_read(a, off_fn, u):
    def rd(kind, reg, tag):
        off = off_fn()
        return [("D", lambda h=h: a.lds("ds_read_b64_tr_b16 %s, v%d offset:%d" % (R(kind, reg + 2 * h, 2), RA + 4 * (off >> 16) + u, (off & 0xffff) + h * 2048), tag)) for h in range(2)]
    return rd

WF = 128
HRING = 10
GORDER = [2, 1, 0]
def acc2(c, tt):
    m = c >> 1
    if c & 1: return ("a", 160 + 16 * m + 4 * tt)
    return ("v", (16 * m if m < 4 else 224 + 16 * (m - 4)) + 4 * tt)
def hr(st, tt): return A(16 * (st % HRING) + 4 * tt, 4)
sPX = 56
vEW, vER, vXP, vOU = 195, 196, 192, 193
sLS = 74
TS = [4, 5, 6, 10, 11, 20]
HB = {0: 12, 1: 13, 2: 62}
WB = {0: 14, 1: 15, 2: 3}
def rot_bases(a, other):
    if CFG.hrot == 2:
        a("s_add_u32 s61, s68, s%d" % other)
        a("s_mul_i32 s60, s61, 43")
        a("s_lshr_b32 s60, s60, 7")
        a("s_mul_i32 s60, s60, 3")
        a("s_sub_u32 s61, s61, s60")
    else: a("s_mov_b32 s61, s68")
    for k in range(3):
        if CFG.hrot:
            a("s_add_u32 s52, s61, %d" % k)
            a("s_cmp_ge_u32 s52, 3")
            a("s_cselect_b32 s60, 3, 0")
            a("s_sub_u32 s52, s52, s60")
        else: a("s_mov_b32 s52, %d" % k)
        a("s_mul_i32 s60, s52, %d" % (192 * 1152))
        a("s_add_u32 s%d, s63, s60" % WB[k])
        a("s_mul_i32 s60, s52, %d" % (6 * KSTRIDE))
        a("s_add_u32 s%d, s62, s60" % HB[k])

class P2:
    def __init__(self, a, steps, VO, VS, VX, atype):
        self.a = a; self.steps = steps; self.VO = VO; self.VS = VS; self.VX = VX; self.atype = atype
        self.loc = {}
        self.free = []
        self.visible = set()
        self.cur = 0
        NS, K = len(steps), (CFG.ka if atype else CFG.kseq)
        D = K if atype else CFG.defer
        self.order = [(st, c) for st in range(NS - K) for c in range(0 if st < NS - D else 2, 12)]
        self.seq0 = len(self.order)
        self.groups = []
        for keep, n in [((8, 10), K), ((4, 6), K)] + ([((0, 2), K)] if atype else [((2,), K), ((0,), D)]):
            self.order += [(st, c + 1) for st in range(NS - n, NS) for c in keep]
            e1 = len(self.order)
            self.order += [(st, c) for st in range(NS - n, NS) for c in keep]
            self.groups.append((keep, e1, len(self.order)))
        self.units = []
        for st, c in self.order:
            if (st, c >> 2) not in self.units: self.units.append((st, c >> 2))
    def setup_s(self):
        a = self.a
        srd(a, rW2, sW2, 4608 * 1152)
        srd(a, rWO, sWO, 576 * 1152)
        a("s_lshl_b32 s66, s%d, 11" % sWAVE)
    def setup_vo(self, t0, t1, half_code, sTile=sI):
        a = self.a
        return dma_lane_off(a, self.VO, t0, t1, 1152) + Q(a, """s_mul_i32 s52, s68, 384
            s_and_b32 s60, s{W}, 1
            s_mul_i32 s60, s60, {R16}
            s_add_u32 s52, s52, s60
            v_add_u32 v{VO}, s52, v{VO}
            v_add_u32 v{VO1}, {D}, v{VO}
            {HALF}
            s_lshl1_add_u32 s52, s{I}, s52
            s_mul_i32 s9, s52, 3
            s_add_u32 s9, s9, s68
            s_lshl_b32 s9, s9, 7
            s_add_u32 s9, s9, {FP}
            s_and_b32 s60, s{W}, 1
            s_lshl1_add_u32 s52, s52, s60
            s_lshl_b32 s52, s52, 12
            v_lshl_add_u32 v{VX}, v{L}, 4, s52""".format(W=sWAVE, R16=16 * 1152, VO=self.VO, VO1=self.VO + 1, D=8 * 1152 - 1024, HALF=half_code, FP=FL(FP), I=sTile, VX=self.VX, L=vL))
    def setup_special(self, t0, t1, t3):
        a = self.a
        for k in range(2):
            a("s_and_b32 s49, s%d, 1" % sWAVE)
            a("s_lshl_b32 s49, s49, 4")
            a("v_lshrrev_b32 v%d, 3, v%d" % (t0, vL))
            a("v_add3_u32 v%d, s49, v%d, %d" % (t0, t0, 8 * k))
            a("v_lshrrev_b32 v%d, 4, v%d" % (t1, t0))
            a("v_mul_u32_u24 v%d, 72, v%d" % (t1, t1))
            a("v_bfe_u32 v%d, v%d, 2, 2" % (t3, t0))
            a("v_lshl_add_u32 v%d, v%d, 4, v%d" % (t1, t3, t1))
            a("v_lshrrev_b32 v%d, 1, v%d" % (t3, t3))
            a("v_lshl_add_u32 v%d, v%d, 2, v%d" % (t1, t3, t1))
            a("v_and_b32 v%d, 3, v%d" % (t3, t0))
            a("v_add3_u32 v%d, v%d, v%d, 16" % (t1, t1, t3))
            a("v_sub_u32 v%d, v%d, v%d" % (t1, t1, t0))
            a("v_mul_u32_u24 v%d, 1152, v%d" % (t1, t1))
            a("v_add_u32 v%d, v%d, v%d" % (self.VS + k, self.VO + k, t1))
    def h_issue(self, st):
        a = self.a
        pl, row, kind = self.steps[st]
        fns = [I(a, "s_add_u32 s54, s%d, %d" % (HB[kind] if kind in HB else (7 if kind == "woa" else 64), pl * KSTRIDE))]
        for tt in range(4):
            fns.append(VM(a, "buffer_load_dwordx4 %s, v%d, %s, s54 offen offset:%d %s" % (hr(st, tt), self.VX, WSR, tt * 1024, SC), ("h2", st), CFG.hw))
        return fns
    def dma_issue(self, st, ln):
        a = self.a
        pl, row, kind = self.steps[st]
        r = rW2 if kind in HB else rWO
        vo = self.VS if kind == "wos" else self.VO
        sl = self.free.pop(0)
        self.loc[(st, ln)] = sl
        return [I(a, "s_add_u32 m0, s66, %d" % (sl * 8192)),
                I(a, "s_add_u32 s55, s%d, %d" % (WB[kind] if kind in WB else 65, row * 1152 + ([2, 0, 1][ln] if self.atype else ln) * 128))] + \
               ([I(a, "%s s55, s55, s%d" % (["s_add_u32", "s_sub_u32"][ln], sLS))] if ln < 2 and not self.atype else []) + [
                VM(a, "buffer_load_dwordx4 v%d, s[%d:%d], s55 offen lds" % (vo, r, r + 3), ("w2", st, ln)),
                VM(a, "buffer_load_dwordx4 v%d, s[%d:%d], s55 offen offset:1024 lds" % (vo + 1, r, r + 3), ("w2", st, ln))]
    def jobs(self, first, w_ok, h_ok):
        out = []; hs = set(range(first))
        for st, ln in self.units:
            if st < first: continue
            if st not in hs:
                hs.add(st)
                def mk(st=st):
                    self.hpos = CUR[0].pos
                    return self.h_issue(st)
                out.append(("h2", lambda st=st: st - HRING < self.cur and h_ok(st) and CUR[0].pos >= self.hpos + CFG.hgap, mk))
            out.append(("w2", lambda st=st: len(self.free) > self.reserve and w_ok(st), lambda st=st, ln=ln: self.dma_issue(st, ln)))
        return out
    reserve = 0
    hpos = -100
    def add_slots(self, S_):
        a = self.a
        self.s0 = len(S_.slots)
        fixed = set()
        for st, c in self.order:
            def rd(kind, reg, tag, st=st, c=c):
                assert (st, c >> 2) in self.visible, (st, c)
                off = self.loc[(st, c >> 2)] * 8192
                ra = RA + 4 * (off >> 16) + (c & 3)
                out = []
                if ra not in fixed:
                    fixed.add(ra); out.append(I(a, "v_xor_b32 v%d, s%d, v%d" % (ra, sPX, ra)))
                return out + tr_read(a, lambda: off, c & 3)(kind, reg, tag)
            def mf(w, st=st, c=c):
                return ["%s %s, %s, %s, %s" % (MF, R(*acc2(c, tt), 4), w, hr(st, tt), "0" if st == 0 else R(*acc2(c, tt), 4)) for tt in range(4)]
            S_.add(rd, mf)
    def exchange(self, g, tmp):
        a = self.a
        keep = self.groups[g][0]
        send = []; recv = []; fin = []
        def adj(q, reg, cur, want):
            if cur[0] != want: q.append(I(a, "v_add_u32 v%d, 0x%x, v%d" % (reg, (want - cur[0]) & 0xffffffff, reg))); cur[0] = want
        for k, (c, tt) in enumerate([(c, tt) for c in keep for tt in range(4)]):
            off = self.scratch[k >> 1] * 8192 + (k & 1) * 4096
            adj(send, vEW, self.ew, off & ~0xffff)
            send.append(("X", lambda c=c, tt=tt, off=off: a.lds("ds_write_b128 v%d, %s offset:%d" % (vEW, R(*acc2(c + 1, tt), 4), off & 0xffff), ("ex", g))))
            adj(recv, vER, self.er, off & ~0xffff)
            recv.append(("D", lambda k=k, off=off: a.lds("ds_read_b128 %s, v%d offset:%d" % (V(tmp + 4 * k, 4), vER, off & 0xffff), ("er", g))))
        for n, c in enumerate(keep):
            for tp in range(2):
                r0 = acc2(c, 2 * tp)[1]; t = tmp + 16 * n + 8 * tp
                for i in range(8): fin.append(I(a, "v_add_f32 v%d, v%d, v%d" % (r0 + i, r0 + i, t + i)) + ([r0 + i, t + i], [r0 + i]))
                for i in range(4): fin.append(I(a, "v_cvt_pk_bf16_f32 v%d, v%d, v%d" % (r0 + i, r0 + 2 * i, r0 + 2 * i + 1)) + ([r0 + 2 * i, r0 + 2 * i + 1], [r0 + i]))
                fin.append(VM(a, "buffer_store_dwordx4 %s, v%d, %s, s%d offen offset:%d %s" % (V(r0, 4), vXP, WSR, TS[c >> 1], tp * 1024, SC), ("part", g)) + ([r0, r0 + 1, r0 + 2, r0 + 3], []))
        return send, recv, fin
    def fin_setup(self):
        a = self.a
        code = """s_mul_i32 s75, s67, 36
            s_mul_i32 s52, s68, 12
            s_lshr_b32 s60, s{W}, 1
            s_add_u32 s52, s52, s60
            s_add_u32 s75, s75, s52
            s_lshl_b32 s75, s75, 16
            s_add_u32 s75, s75, {PART}
            """.format(W=sWAVE, PART=PART_OFF)
        if self.atype:
            for m in range(6): code += "s_add_u32 s%d, s75, %d\n" % (TS[m], ([2, 0, 1][m >> 1] * 4 + 2 * (m & 1)) * 65536)
        else:
            code += "s_lshl_b32 s60, s%d, 11\ns_and_b32 s61, s67, 1\ns_lshl_b32 s61, s61, 17\n" % sLS
            for m in range(6):
                code += "s_add_u32 s%d, s75, %d\n" % (TS[m], ((m >> 1) * 4 + 2 * (m & 1)) * 65536)
                if m >> 1 < 2: code += "%s s%d, s%d, s60\n" % (["s_add_u32", "s_sub_u32"][m >> 1], TS[m], TS[m])
                code += "%s s%d, s%d, s61\n" % (["s_add_u32", "s_sub_u32"][m & 1], TS[m], TS[m])
        code += """s_mul_i32 s60, s67, {PSL}
            s_sub_u32 s73, s{T0}, s60
            s_sub_u32 s75, s73, {PART}
            s_lshr_b32 s75, s75, 11
            v_lshlrev_b32 v194, 4, v{L}
            v_sub_u32 v{XP}, v{VX}, v194
            v_lshrrev_b32 v{OU}, 6, v{XP}
            v_lshrrev_b32 v{XP}, 1, v{XP}
            v_add_u32 v{XP}, v{XP}, v194
            s_lshl_b32 s52, s{W}, 10
            v_add_u32 v{EW}, s52, v194
            v_xor_b32 v{ER}, 0x800, v{EW}
            v_and_b32 v194, 15, v{L}
            v_add_u32 v{OU}, v{OU}, v194
            v_mul_u32_u24 v{OU}, 1152, v{OU}
            v_lshrrev_b32 v194, 4, v{L}
            v_lshl_add_u32 v{OU}, v194, 3, v{OU}
            s_mov_b32 s76, 0x3f80
            s_mov_b32 s77, 0x3f800000""".format(PSL=PSL, T0=TS[0], PART=PART_OFF, L=vL, XP=vXP, VX=self.VX, OU=vOU, W=sWAVE, EW=vEW, ER=vER)
        b_ = Asm(); srd(b_, rWA, sOUT, 2048 * 1152)
        q = Q(a, code + "\n" + "\n".join(b_.lines))
        for n in range(len(self.groups[-1][0])):
            for tt in range(4):
                q.append(I(a, "s_add_u32 s52, s75, %d" % (tt * 16 * 1152)))
                q.append(VM(a, "buffer_load_dwordx2 %s, v%d, %s, s52 offen offset:%d" % (V(XB + 8 * n + 2 * tt, 2), vOU, XR, 64 * n), "x3"))
        return q
    def main(self, S_, hooks, dead0):
        a = self.a
        NG = len(self.groups)
        seen = set()
        self.ew = [0]; self.er = [0]
        def psig(k): return signal(a, "s_lshl2_add_u32 s49, s67, s9\ns_add_u32 s49, s49, %d" % (32 * k))
        N = len(self.order)
        stepend = {}
        for s, (st, c) in enumerate(self.order[:self.seq0]): stepend[st] = s
        bars = {e - 4: None for e in stepend.values()}
        ev = {}
        tmp = [64, 96, 64, 80]
        t = 0
        for g, (keep, e1, e2) in enumerate(self.groups):
            n = len(keep)
            s_send = max(e1 + 2, t)
            s_bar = s_send + (CFG.exs if n == 2 else (CFG.exs + 1) // 2)
            s_fin = max(e2 + 2, s_bar + 2 * n + 1)
            ev.setdefault(s_send, []).append(("send", g)); ev.setdefault(s_bar, []).append(("recv", g)); ev.setdefault(s_fin, []).append(("fin", g))
            bars[s_send] = None; bars[s_bar] = None
            t = s_bar + 2 * n + 1
        assert max(s for s in ev if ("fin", NG - 1) not in ev[s]) < N, (ev, N)
        s_early = N - CFG.early
        if not self.atype: bars[s_early] = None
        s_mid = N - CFG.mid if CFG.mid and not self.atype else -1
        if s_mid > 0: bars[s_mid] = None
        keep = self.groups[-1][0]
        def pb(r, n):
            k = r * len(keep) + n
            return 96 + 8 * k if k < 4 else 32 + 8 * (k - 4)
        s_af = N - CFG.af if CFG.af and self.atype else -1
        if s_af > 0: bars[s_af] = None
        def ploads(r):
            q = []
            if self.atype: q.append(I(a, "s_add_u32 s58, s73, %d" % (r * PSL)))
            elif r == 0: q.append(I(a, "s_add_u32 s58, s73, %d" % (4 * PSL)))
            else: q += Q(a, "s_xor_b32 s52, s67, %d\ns_mul_i32 s52, s52, %d\ns_add_u32 s58, s73, s52" % (4 - r, PSL))
            for n in range(len(keep)):
                if n: q.append(I(a, "s_add_u32 s58, s58, %d" % (2 * 65536)))
                for tp in range(2):
                    q.append(VM(a, "buffer_load_dwordx4 %s, v%d, %s, s58 offen offset:%d %s" % (V(pb(r, n) + 4 * tp, 4), vXP, WSR, tp * 1024, SC), ("p", r)))
            return q
        last = {}
        for s, (st, c) in enumerate(self.order): last[(st, c >> 2)] = s
        freed = set()
        ex = {}
        cnt = lambda g: dict(ex=4 * len(self.groups[g][0]), er=4 * len(self.groups[g][0]), part=2 * len(self.groups[g][0]))
        first_bar = min(bars)
        for s, (st, c) in enumerate(self.order):
            if st not in seen:
                seen.add(st)
                self.cur = st
                if VERB: a.cm("HS p2 step %d" % st)
                if st < 11: stamp(a, 4 + st, 3)
                wvm(a, [("h2", st)])
                if st in (0, 8): stamp(a, 10 + st // 8)
            pre = []
            r = s - self.seq0
            if VERB and r > 0 and r % 10 == 0: a.cm("HS p2 tail %d" % r)
            if r >= 0 and r % 8 == 0 and r < 64: stamp(a, 4 + r // 8, 4)
            if r == -CFG.rsv: self.reserve = 4
            evs = ev.get(s, [])
            if s in bars:
                nxt = min([b for b in bars if b > s] + [N])
                lim = S_.read_limit(self.s0 + nxt - 1) - S_.ring[self.s0]
                need = []
                for st2, c2 in self.order[:lim + 1]:
                    u = (st2, c2 >> 2)
                    if u not in self.visible and u not in need: need.append(u)
                hk = hooks.get(st, {}) if r < 0 else {}
                tags = [("w2",) + u for u in need] + hk.get("bar", [])
                lg = []; ptags = []
                aft = list(hk.get("after", []))
                dead = [u for u in last if last[u] < s and u not in freed]
                newfree = [self.loc[u] for u in dead] + (dead0 if s == first_bar else [])
                for kind, g in evs:
                    if kind == "send" and g > 0: lg.append(("er", g - 1))
                    if kind == "recv": lg.append(("ex", g)); aft += ex[g][1]
                if s == s_early and not self.atype:
                    ptags.append(("part", 0)); aft += psig(0)
                if s == s_af:
                    ptags.append(("part", 1))
                    aft += psig(1) + poll_check(a, "s_mov_b32 s49, s9", "pla", "0xf") + ploads(0) + ploads(1) + ploads(2) + ploads(3)
                if s == s_mid:
                    ptags.append(("part", 1)); aft += psig(2)
                if tags or lg or ptags or aft or (newfree and S_.jobs):
                    def bar(tags=tags, lg=lg, ptags=ptags):
                        for t_ in lg: wlg(a, [t_], **cnt(t_[1]))
                        for t_ in ptags: wvm(a, [t_], **cnt(t_[1]))
                        wvm(a, tags)
                        a("s_barrier")
                    pre.append(("B", bar))
                    self.visible.update(need); freed.update(dead); self.free += newfree
                    S_.extra += aft
            for kind, g in evs:
                if kind == "send":
                    if g == 0:
                        self.scratch = sorted(self.free[:4]); self.free = self.free[4:]; self.reserve = 0
                        assert len(self.scratch) == 4
                    ex[g] = self.exchange(g, tmp[g])
                    S_.extra += ex[g][0]
                if kind == "recv" and g >= 2: chk(a, ("part", 0), **cnt(0))
                if kind == "fin":
                    wlg(a, [("er", g)], **cnt(g))
                    S_.flush_epi()
                    S_.set_epi(ex[g][2], S_.pos + CFG.findl * len(self.groups[g][0]), 0, False)
            if r == -CFG.fsat: S_.extra += self.fin_setup()
            if s_af > 0 and s == s_af - CFG.ap: S_.extra += poll_issue(a, "s_mov_b32 s49, s9", "pla")
            if s_mid > 0 and s == N - CFG.pmid:
                S_.extra += Q(a, "s_and_b32 s8, s67, 2\ns_lshr_b32 s8, 0xc0000, s8\ns_or_b32 s8, s8, 0x1000") + poll_issue(a, "s_mov_b32 s49, s9", "plm")
            S_.emit(pre)
        assert not S_.jobs and not S_.mem
        run(S_.extra); S_.extra = []
        S_.flush_epi()
        if VERB: a.cm("END")
        stamp(a, 12); stamp(a, 12, 4)
        CUR[0] = None
        if s_af < 0:
            wvm(a, [("part", NG - 2)], **cnt(NG - 2))
            a("s_barrier")
            run(psig(1))
        stamp(a, 13)
        done = [0, 1, 2, 3] if s_af > 0 else []
        if s_mid > 0:
            run(poll_check(a, "s_mov_b32 s49, s9", "plm", "s8"))
            done = [0, 1, 2]
            for r in done: run(ploads(r))
        vmkeep = [t_ for t_ in a.vm if t_ is not None and t_[0] == "p"]
        lw = a.newlabel("Lfw")
        if s_af < 0:
            a("s_cmp_lg_u32 s%d, 3" % sWAVE)
            a("s_cbranch_scc1 %s" % lw)
        if s_af > 0: a("s_nop 7")
        elif self.atype: spin(a, "s_mov_b32 s49, s9", "0xf", CFG.slp0)
        else:
            if s_mid > 0:
                a("s_xor_b32 s52, s67, 1")
                a("s_lshl_b32 s52, 0x100, s52")
            else:
                a("s_lshl_b32 s52, 0x100, s67")
                a("s_andn2_b32 s52, 0x1f00, s52")
            spin(a, "s_mov_b32 s49, s9", "s52", CFG.slp1)
            a("s_cmp_lg_u32 s2, 0")
            a("s_cbranch_scc1 %s" % lw)
            a("s_mov_b32 s49, 0x%x" % FL(0))
            a("buffer_store_dword v%d, v%d, %s, s49 offen" % (vTK, vFS, WSR))
        a.label(lw)
        if s_af < 0: a("s_barrier")
        stamp(a, 14)
        assert "x3" not in a.vm
        if s_af < 0: a.vm = vmkeep
        for r in range(4):
            if r not in done: run(ploads(r))
        wlg(a, [("er", NG - 1)], **cnt(NG - 1))
        for n, c in enumerate(keep):
            r0 = acc2(c, 0)[1]
            for i in range(0, 16, 2): a("v_pk_add_f32 %s, %s, %s" % (V(r0 + i, 2), V(r0 + i, 2), V(tmp[NG - 1] + 16 * n + i, 2)))
            for i in range(8):
                a("v_dot2_f32_bf16 v%d, v%d, s76, v%d" % (r0 + 2 * i, XB + 8 * n + i, r0 + 2 * i))
                a("v_dot2_f32_bf16 v%d, v%d, s77, v%d" % (r0 + 2 * i + 1, XB + 8 * n + i, r0 + 2 * i + 1))
        for r in range(4):
            a.wait_vm(lambda t_: t_ == ("p", r))
            for n, c in enumerate(keep):
                r0 = acc2(c, 0)[1]
                for i in range(8):
                    p = pb(r, n) + i
                    a("v_dot2_f32_bf16 v%d, v%d, s76, v%d" % (r0 + 2 * i, p, r0 + 2 * i))
                    a("v_dot2_f32_bf16 v%d, v%d, s77, v%d" % (r0 + 2 * i + 1, p, r0 + 2 * i + 1))
        a("s_nop 2")
        for n, c in enumerate(keep):
            r0 = acc2(c, 0)[1]
            for i in range(8): a("v_cvt_pk_bf16_f32 v%d, v%d, v%d" % (r0 + i, r0 + 2 * i, r0 + 2 * i + 1))
            for tt in range(4):
                a("s_add_u32 s52, s75, %d" % (tt * 16 * 1152))
                a("buffer_store_dwordx2 %s, v%d, s[%d:%d], s52 offen offset:%d" % (V(r0 + 2 * tt, 2), vOU, rWA, rWA + 3, 64 * n))

XB = 176

def hilo(a, v, t0, t1):
    return [I(a, "v_cvt_pk_bf16_f32 v%d, v%d, v%d" % (t0, v, v)),
            I(a, "v_and_b32 v%d, 0xffff0000, v%d" % (t0, t0)),
            I(a, "v_sub_f32 v%d, v%d, v%d" % (t1, v, t0)),
            I(a, "v_cvt_pk_bf16_f32 v%d, v%d, v%d" % (v, t0, t1))]

def stats_fetch(a, kind, base, vaddr):
    fns = [I(a, "s_mov_b32 s49, %d" % ST_OFF)]
    for tt in range(4):
        fns.append(("M", lambda tt=tt: a.vmem("buffer_load_dwordx4 %s, v%d, %s, s49 offen offset:%d %s" % (R(kind, base + 4 * tt, 4), vaddr, WSR, 256 * tt, SC), "stf")))
    return fns
def stats_check(a, kind, base, vaddr, t0):
    code = []
    for n, r in enumerate([base + 4 * tt + k for tt in range(4) for k in (1, 3)]):
        if kind == "a":
            code.append("v_accvgpr_read_b32 v%d, a%d" % (t0, r)); r = t0
        if n == 0: code.append("v_cmp_eq_u32 s[60:61], s%d, v%d" % (sTOK, r))
        else: code += ["v_cmp_eq_u32 vcc, s%d, v%d" % (sTOK, r), "s_and_b64 s[60:61], s[60:61], vcc"]
    def last():
        a("s_cmp_lg_u64 s[60:61], -1")
        def body(b):
            b("s_mov_b32 s49, %d" % ST_OFF)
            for tt in range(4):
                b("buffer_load_dwordx4 %s, v%d, %s, s49 offen offset:%d %s" % (R(kind, base + 4 * tt, 4), vaddr, WSR, 256 * tt, SC))
            b("s_waitcnt vmcnt(0)")
            b("\n".join(code))
            b("s_cmp_lg_u64 s[60:61], -1")
        slow_path(a, body, "stats")
    return [("S", lambda: wvm(a, ["stf"]))] + [I(a, c) for c in code] + [("SS", last)]
def stats_addr(a, dst):
    return [I(a, "v_and_b32 v%d, 15, v%d" % (dst, vL)),
            I(a, "s_lshl_b32 s52, s%d, 12\ns_lshl_b32 s60, s%d, 10\ns_add_u32 s52, s52, s60\nv_lshl_add_u32 v%d, v%d, 4, s52" % (sI, sWAVE, dst, dst), 4)]

def path_mlp(a):
    vD, TMP, HS, ONES, CSA, ST = 172, 176, 184, 188, 192, 200
    vCSR, vCSW, vCSL, vP2 = 220, 221, 222, 223
    def xreg(kk, tt):
        i = kk * 4 + tt
        return ("a", 4 * i) if i < 64 else ("v", 224 + 4 * (i - 64))
    def xr(kk, tt): return R(*xreg(kk, tt), 4)
    def acc(P, ti, tt): return 64 * P + 16 * ti + 4 * tt
    t0, t1, t2, t3 = 64, 65, 66, 67
    XS = XStage(a, TMP, TMP + 4, 8 * 8192, 3, xreg)
    WLIM = 576 * 9216
    loc = {}
    WT = [sWo, 4, 5, 6, 7, 10, 11, 20, 21]
    issued_at = {}; now = [0]
    free = list(range(8))
    def dma_issue(L, kk):
        sl = free.pop(0); loc[(L, kk)] = sl
        fns = [I(a, "s_add_u32 m0, s53, %d" % (sl * 8192)),
               I(a, "s_add_u32 s55, s%d, %d" % (WT[kk >> 1], (kk & 1) * 32 * 9216 + L * 128)),
               VM(a, "buffer_load_dwordx4 v%d, s[%d:%d], s55 offen lds" % (vD, rWA, rWA + 3), ("w", L, kk)),
               VM(a, "buffer_load_dwordx4 v%d, s[%d:%d], s55 offen offset:1024 lds" % (vD + 1, rWA, rWA + 3), ("w", L, kk))]
        if kk & 1 and L == 0 and kk < 17:
            o, n_ = WT[kk >> 1], WT[(kk >> 1) + 1]
            fns.append(I(a, "s_add_u32 s%d, s%d, %d\ns_cmp_ge_u32 s%d, %d\ns_cmov_b32 s%d, 0" % (n_, o, 64 * 9216, n_, WLIM, n_), 3))
        issued_at[(L, kk)] = now[0]
        return fns
    def c_issue(L, k):
        key = (10 + L, k)
        sl = free.pop(0); loc[key] = sl
        issued_at[key] = now[0]
        ld = lambda v, o: VM(a, "buffer_load_dwordx4 v%d, s[%d:%d], s55 offen%s lds" % (v, rWA, rWA + 3, o), ("w",) + key)
        if k < 2:
            return [I(a, "s_add_u32 m0, s53, %d" % (sl * 8192)), I(a, "s_add_u32 s55, s%d, %d" % (sWo, k * 32 * 9216 + L * 128)), ld(vD, ""), ld(vD + 1, " offset:1024")]
        return [I(a, "s_add_u32 m0, s53, %d" % (sl * 8192)), I(a, "s_lshr_b32 s55, s%d, 2" % sWo), I(a, "s_add_u32 s55, s55, %d" % (512 * 9216 + 128)), ld(vD, ""),
                I(a, "s_sub_u32 s55, s55, %d" % (16 * 9216 - 128)), ld(vD + 1, " offset:1024")]
    assert CFG.rotc == 0
    XS.setup_dma(t0, t1)
    run(XS.dma(0))
    a("s_cmp_ge_u32 s%d, 2" % sWAVE)
    a("s_cselect_b32 s%d, s%d, s%d" % (rWA, sW3, sW1))
    a("s_cselect_b32 s%d, s%d, s%d" % (rWA + 1, sW3 + 1, sW1 + 1))
    a("s_and_b32 s%d, s%d, 0xffff" % (rWA + 1, rWA + 1))
    a("s_mov_b32 s%d, %d" % (rWA + 2, WLIM))
    a("s_mov_b32 s%d, 0x20000" % (rWA + 3))
    a("s_mul_i32 s70, s%d, 3" % sXG)
    a("s_add_u32 s70, s70, s%d" % sC)
    run(dma_lane_off(a, vD, t0, t1, 9216, True))
    a("s_mul_i32 s52, s70, 384")
    a("s_and_b32 s49, s%d, 1" % sWAVE)
    a("s_mul_i32 s49, s49, %d" % (4 * 9216))
    a("s_add_u32 s52, s52, s49")
    a("v_add_u32 v%d, s52, v%d" % (vD, vD))
    a("v_add_u32 v%d, %d, v%d" % (vD + 1, 16 * 9216 - 1024, vD))
    a("s_lshl_b32 s53, s%d, 11" % sWAVE)
    a("s_mul_i32 s%d, s%d, %d" % (sWo, sROT, 64 * 9216))
    for kk in range(2 if CFG.lean else 4): run(dma_issue(0, kk))
    code_prefetch(a)
    if not CFG.lean: run(XS.dma(1))
    if CFG.init >= 1: run(c_issue(1, 0) + c_issue(1, 1) + c_issue(0, 2))
    if CFG.init >= 2: run(XS.dma(2))
    stamp(a, 4, 1)
    st_ = [(r, 32 * r, k) for r in range(1, 6) for k in range(3)]; so_ = [(0, 0, "wo"), (1, 36, "wo")][:2 - CFG.osplit]
    p2 = P2(a, st_[:12] + so_ + st_[12:] if CFG.ofirst else st_ + so_, vD, None, vCSR, False)
    XS.setup_read(t0, t1, t2)
    tr_addrs(a, t0, t1, t2)
    a("v_xor_b32 v%d, s%d, v%d" % (t2, sWAVE, t1))
    a("v_lshl_add_u32 v%d, v%d, 5, v%d" % (vCSR, t2, t0))
    a("s_mov_b32 s68, s%d" % sC)
    p2.setup_s()
    a("s_lshr_b32 s60, s%d, 1" % sWAVE)
    a("s_lshr_b32 s67, s%d, 1" % sXG)
    a("s_mul_i32 s%d, s60, 4128" % sPX)
    a("s_and_b32 s52, s67, 1")
    a("s_lshl_b32 s52, s52, 6")
    a("s_add_u32 s%d, s%d, s52" % (sPX, sPX))
    a("s_lshr_b32 s%d, s67, 1" % sLS)
    a("s_lshl_b32 s%d, s%d, 7" % (sLS, sLS))
    a("s_and_b32 s49, s%d, 6" % sXG)
    a("s_add_u32 s49, s49, s60")
    a("s_mul_i32 s62, s49, %d" % (18 * KSTRIDE))
    a("s_add_u32 s62, s62, %d" % H_OFF)
    a("s_mul_i32 s63, s49, %d" % (576 * 1152))
    a("s_mul_i32 s64, s49, %d" % (2 * KSTRIDE))
    a("s_add_u32 s64, s64, %d" % (H_OFF + 144 * KSTRIDE))
    a("s_mul_i32 s65, s49, %d" % (72 * 1152))
    a("s_mul_i32 s57, s70, %d" % (6 * KSTRIDE))
    a("s_add_u32 s57, s57, %d" % H_OFF)
    a("s_lshl_b32 s52, s%d, 7" % sXG)
    a("s_add_u32 s69, s52, s%d" % sFI)
    a("s_lshl2_add_u32 s69, s%d, s69" % sC)
    a("s_lshl_b32 s52, s49, 7")
    a("s_add_u32 s71, s52, s%d" % sFI)
    a("s_mul_i32 s%d, s70, 12288" % sCSB)
    a("s_add_u32 s%d, s%d, %d" % (sCSB, sCSB, CS_OFF))
    a("s_lshl_b32 s%d, s70, 7" % sFC)
    a("s_add_u32 s%d, s%d, 0x%x" % (sFC, sFC, FL(FC)))
    b_ = Asm(); rot_bases(b_, sI)
    late2 = Q(a, "\n".join(b_.lines))
    late = []
    L_ = lambda s, c=1: late.append(I(a, s, c))
    u0, u1 = CSA, CSA + 1
    L_("v_and_b32 v%d, 15, v%d" % (u0, vL))
    L_("v_lshlrev_b32 v%d, 4, v%d" % (u0, u0))
    L_("v_lshrrev_b32 v%d, 4, v%d" % (u1, vL))
    L_("v_lshlrev_b32 v%d, 4, v%d" % (vCSL, vL))
    L_("v_lshl_add_u32 v%d, v%d, 10, v%d" % (vCSW, u1, u0))
    L_("s_lshr_b32 s52, s%d, 1\ns_lshl_b32 s52, s52, 11\ns_and_b32 s60, s%d, 1\ns_lshl_b32 s60, s60, 3\ns_add_u32 s52, s52, s60\n"
       "s_lshr_b32 s60, s%d, 1\ns_lshl_b32 s60, s60, 8\ns_add_u32 s52, s52, s60\ns_and_b32 s60, s%d, 1\ns_lshl2_add_u32 s52, s60, s52\n"
       "v_add_u32 v%d, s52, v%d" % (sWAVE, sWAVE, sI, sI, vCSW, vCSW), 11)
    L_("v_cmp_gt_u32 vcc, 32, v%d\nv_mov_b32 v%d, 0x%x\ns_nop 0\nv_cndmask_b32 v%d, v%d, v%d, vcc" % (vL, u0, OOB, vCSW, u0, vCSW), 4)
    L_("s_cmp_eq_u32 s%d, 7\ns_cselect_b32 s%d, 0x%x, 0" % (sI, sOne2, ONE2), 2)
    CSL, ONL, ONH, ON7 = [224, 240, 248], HS, 232, 236
    for i in range(4):
        late.insert(0, I(a, "v_mov_b32 v%d, 0x%x" % (ONES + i, ONE2)))
        L_("v_mov_b32 v%d, s%d" % (ON7 + i, sOne2))
    for i in range(4):
        L_("v_cndmask_b32 v%d, 0, v%d, vcc" % (ONL + i, ONES))
        L_("v_xor_b32 v%d, v%d, v%d" % (ONH + i, ONL + i, ONES))
    run(late); run(late2)
    if CFG.lean == 1: run(XS.dma(1) + dma_issue(0, 2) + dma_issue(0, 3))
    stamp(a, 7, 1)
    stats_compute(a)
    stamp(a, 5, 1)
    run(XS.reads(0))
    a.wait_vm(lambda t: t == ("w", 0, 1))
    a("s_barrier")
    SPLIT = CFG.split
    seq = []
    for kk in range(SPLIT): seq += [("mm", 0, 0, kk), ("mm", 0, 1, kk)]
    seq += [("mm", 0, 0, kk) for kk in range(SPLIT, 18)] + [("mm", 0, 1, kk) for kk in range(SPLIT, 18)]
    for L in (1, 2):
        for P in (0, 1): seq += [("mm", L, P, kk) for kk in range(18)]
    def after(key, new): seq.insert(seq.index(key) + 1, new)
    after(("mm", 0, 0, CFG.c00), ("corr", 0, 0))
    for L in range(3): after(("mm", L, 1, 17), ("corr", L, 1))
    if CFG.cmode == 1 and CFG.cdel >= 0: after(("mm", 1, 1, CFG.cdel), ("corr", 1, 0))
    else: after(("mm", 1, 0, 17), ("corr", 1, 0))
    after(("mm", 2, 0, 17), ("corr", 2, 0))
    cs_steps = {0: [((0, 0), ONES), ((0, 1), ONES), ((0, 2), ON7), ((0, 3), ON7)],
                1: [((11, 0), ONES), ((11, 1), ONES), ((10, 2), ONL)], 2: [((12, 0), ONES), ((12, 1), ONES), ((10, 2), ONH)]}
    cs_at = {0: CFG.cs0, 1: CFG.cs1, 2: CFG.cs2}
    attach = {}
    if CFG.cmode == 1:
        CSL[1], CSL[2] = TMP, CSA
        n1 = seq.index(("corr", 0, 1)) + 1
        cs_at[1] = cs_at[2] = n1 + 1
        attach[seq[n1]] = [(1, k, (1, k), ONES, mat) for k in range(2) for mat in range(2)]
        attach[seq[n1 + 1]] = [(2, k, (2, k), ONES, mat) for k in range(2) for mat in range(2)]
        attach[seq[n1 + 2]] = [(1, 2, (10, 2), ONL, 0), (1, 2, (10, 2), ONL, 1), (2, 2, (10, 2), -ONES, 0), (2, 2, (10, 2), ONES, 1)]
    for L in range(3 if CFG.cmode == 0 else 1):
        its = [(L, k, sl, on, mat) for k, (sl, on) in enumerate(cs_steps[L]) for mat in range(2)]
        attach[seq[cs_at[L]]] = its[:4]; attach[seq[cs_at[L] + 1]] = its[4:]
    NH = len(seq)
    idx = {k: n for n, k in enumerate(seq)}
    visible = set([(0, 0), (0, 1)])
    S_ = Stream(a, "v", WF)
    first_slot = []
    csr = [0]
    def slabs_of(e):
        if e[0] == "mm": return [(e[1], e[3])] + [x[2] for x in attach.get(e, [])]
        return []
    for e in seq:
        first_slot.append(len(S_.slots))
        if e[0] == "mm":
            _, L, P, kk = e
            att = list(attach.get(e, []))
            for ti in (0, 2, 1, 3):
                def off(L=L, kk=kk, ti=ti):
                    assert (L, kk) in visible, (L, kk)
                    return loc[(L, kk)] * 8192 + (ti >> 1) * 4096
                def mf(w, P=P, ti=ti, kk=kk):
                    return ["%s %s, %s, %s, %s" % (MF, V(acc(P, ti, tt), 4), w, xr(kk, tt), "0" if kk == 0 else V(acc(P, ti, tt), 4)) for tt in range(4)]
                S_.add(tr_read(a, off, 2 * P + (ti & 1)), mf)
                if att:
                    cl, k, sl, on, mat = att.pop(0); CS = CSL[cl]
                    def rd(kind, reg, tag, sl=sl, mat=mat):
                        assert sl in visible
                        out = []
                        d = loc[sl] * 8192 - csr[0]; csr[0] += d
                        if d: out.append(I(a, "v_add_u32 v%d, 0x%x, v%d" % (vCSR, d & 0xffffffff, vCSR)))
                        return out + [("D", lambda h=h: a.lds("ds_read_b64_tr_b16 %s, v%d offset:%d" % (V(reg + 2 * h, 2), vCSR, mat * 4096 + h * 2048), tag)) for h in range(2)]
                    S_.add(rd, lambda w, k=k, on=on, mat=mat, CS=CS: [("".join("v_xor_b32 v%d, v%d, v%d\n" % (ONES + i, ONES + i, ONL) for i in range(4)) + "s_nop 1\n" if on < 0 else "") + "%s %s, %s, %s, %s" % (MF, V(CS + 4 * mat, 4), V(abs(on), 4), w, "0" if k == 0 else V(CS + 4 * mat, 4))])
        elif e[0] == "corr":
            _, L, P = e
            for ti in range(4):
                S_.add(None, lambda w, P=P, ti=ti: ["%s %s, %s, %s, %s" % (MF16, V(acc(P, ti, tt), 4), V(CSA + 2 * ti, 2), V(ST + 4 * tt, 2), V(acc(P, ti, tt), 4)) for tt in range(4)])
    first_slot.append(len(S_.slots))
    p2.add_slots(S_)
    def epilogue(L, P):
        q = [I(a, "s_add_u32 s58, s57, %d" % ((2 * L + P) * KSTRIDE)) + ([], ["s58"])]
        for tt in range(4):
            rs, cc = ST + 4 * tt + 2, ST + 4 * tt + 3
            o = acc(P, 2, tt)
            gu = [(acc(P, half, tt) + i, acc(P, 2 + half, tt) + i) for half in range(2) for i in range(4)]
            for g, u in gu:
                q.append(I(a, "v_mul_f32 v%d, v%d, v%d" % (u, g, u)) + ([g, u], [u]))
                q.append(I(a, "v_mul_f32 v%d, v%d, v%d" % (g, g, rs)) + ([g], [g]))
            for g, u in gu: q.append(I(a, "v_exp_f32 v%d, v%d" % (g, g)) + ([g], [g]))
            for g, u in gu: q.append(I(a, "v_fma_f32 v%d, v%d, v%d, v%d" % (g, g, cc, cc)) + ([g], [g]))
            for g, u in gu: q.append(I(a, "v_rcp_f32 v%d, v%d" % (g, g)) + ([g], [g]))
            for g, u in gu: q.append(I(a, "v_mul_f32 v%d, v%d, v%d" % (g, g, u)) + ([g, u], [g]))
            for k in range(4):
                g = gu[2 * k][0]
                q.append(I(a, "v_cvt_pk_bf16_f32 v%d, v%d, v%d" % (o + k, g, g + 1)) + ([g, g + 1], [o + k]))
            q.append(VM(a, "buffer_store_dwordx4 %s, v%d, %s, s58 offen offset:%d %s" % (V(o, 4), vX, WSR, tt * 1024, SC), ("h", L, P)) + ([o, o + 1, o + 2, o + 3, "s58"], []))
        return q
    last_use = {}
    for n, e in enumerate(seq):
        for sl in slabs_of(e): last_use[sl] = n
    lastP = {}
    for n, e in enumerate(seq):
        if e[0] != "cs": lastP[e[1:3]] = n
    marks = set()
    def mark(m): return ("", lambda: marks.add(m))
    released = set()
    def hsig(stage): return signal(a, "s_add_u32 s49, s69, %d" % (128 * (FH + 64 * stage)))
    def hoff(stage): return "s_add_u32 s49, s71, %d" % (128 * (FH + 64 * stage))
    coff = "s_mov_b32 s49, s%d" % sFC
    def csa_load(L, P):
        return [I(a, "s_add_u32 s49, s%d, %d" % (sCSB, L * 4096 + P * 2048))] + \
               [("M", lambda k=k: a.vmem("buffer_load_dwordx4 %s, v%d, %s, s49 offen offset:%d %s" % (V(CSA + 4 * k, 4), vCSL, WSR, 1024 * k, SC), ("csa", L, P))) for k in range(2)]
    def cs_publish(L):
        CS = CSL[L]
        return [I(a, "s_mov_b32 vcc_lo, 0xffff0000\ns_mov_b32 vcc_hi, 0\nv_cndmask_b32 v%d, v%d, v%d, vcc" % (CS, CS, CS + 4), 3)] + hilo(a, CS, CS + 1, CS + 2) + \
               [I(a, "s_add_u32 s49, s%d, %d" % (sCSB, L * 4096)),
                ("M", lambda: a.vmem("buffer_store_dword v%d, v%d, %s, s49 offen %s" % (CS, vCSW, WSR, SC), ("cs", L))), mark(("pub", L))]
    ev = {}
    bar_tags = {}
    def at(n, fns): ev.setdefault(n, []).extend(fns)
    def sig_after(n, tag, fns):
        n |= 1
        bar_tags.setdefault(n, ([], []))
        bar_tags[n][0].append(tag); bar_tags[n][1].extend(fns)
    marks.add("late")
    csig = lambda L: signal(a, "s_lshl2_add_u32 s49, s%d, s%d\ns_add_u32 s49, s49, %d" % (sI, sFC, 32 * L))
    for L in range(3):
        at(cs_at[L] + 3, cs_publish(L))
        at(idx[("corr", L, 0)] + 1, csa_load(L, 1))
        if L > CFG.cmode: at(idx[("corr", L - 1, 1)] + 1, csa_load(L, 0))
    sig_after(cs_at[0] + CFG.sig0, ("cs", 0), csig(0))
    sig_after(cs_at[2] + (8 if CFG.cmode == 0 else CFG.sigd), ("cs", 2), csig(1))
    c0 = idx[("corr", 0, 0)]
    at(c0 - CFG.p0, poll_issue(a, coff, ("plc", 0)))
    at(c0 - CFG.k0, poll_check(a, coff, ("plc", 0), "0xff") + csa_load(0, 0))
    if CFG.cmode == 0:
        at(idx[("corr", 0, 1)] - 5, poll_issue(a, coff, ("plc", 1)))
        at(idx[("corr", 0, 1)], poll_check(a, coff, ("plc", 1), "0xff00"))
    else:
        at(idx[("corr", 1, 0)] - CFG.pc1, poll_issue(a, coff, ("plc", 1)))
        at(idx[("corr", 1, 0)] - CFG.kc1, poll_check(a, coff, ("plc", 1), "0xff00") + csa_load(1, 0))
    c0 = idx[("corr", 0, 0)]
    at(c0 - 12, stats_addr(a, vP2) + stats_fetch(a, "v", ST, vP2))
    fx = stats_check(a, "v", ST, vP2, None)
    for tt in range(4):
        b = ST + 4 * tt
        fx += [I(a, "v_mov_b32 v%d, v%d" % (b + 1, b)), I(a, "v_mul_f32 v%d, v%d, v%d" % (b + 3, b + 2, b + 2)), I(a, "v_rcp_f32 v%d, v%d" % (b + 2, b + 2), 2)]
    for tt in range(4): fx.append(I(a, "v_mul_f32 v%d, %s, v%d" % (ST + 4 * tt + 2, f32(-LOG2E), ST + 4 * tt + 2)))
    at(c0 - 5, fx + [mark("stats")])
    xread_at = {}
    for p in range(8, 0, -1): xread_at[p] = max(min(idx[("mm", 0, 0, 2 * p)] - CFG.xlead, xread_at.get(p + 1, 99) - 3), 0)
    for p, n in xread_at.items():
        at(n, XS.reads(p))
    mm = lambda L, P, kk: idx[("mm", L, P, kk)]
    sig_after(mm(1, 1, 2), ("h", 0, 1), hsig(0))
    sig_after(mm(2, 0, CFG.s1), ("h", 1, 0), hsig(1))
    sig_after(mm(2, 1, 2), ("h", 1, 1), hsig(2))
    at(mm(2, 0, 0) + CFG.p1, poll_issue(a, hoff(1), "pl1", vP2))
    at(mm(2, 0, 0) + CFG.c1, poll_check(a, hoff(1), "pl1", "7", vP2) + [mark("h1")])
    at(NH - 5, poll_issue(a, hoff(2), "pl2"))
    at(mm(2, 0, 6), p2.setup_vo(vCSR, vCSW, "s_and_b32 s52, s%d, 1" % sXG) + [mark("vo")])
    if CFG.pf == 1:
        pf = Q(a, """s_and_b32 s52, s{W}, 1
            s_mul_i32 s52, s52, 36
            s_mul_i32 s60, s{I}, 72
            s_add_u32 s52, s52, s60
            v_mul_u32_u24 v{P}, 43, v{L}
            v_lshrrev_b32 v{P}, 7, v{P}
            v_mul_u32_u24 v{T}, 3, v{P}
            v_sub_u32 v{T}, v{L}, v{T}
            v_add_u32 v{P}, s52, v{P}
            v_mul_u32_u24 v{P}, 1152, v{P}
            v_lshl_add_u32 v{P}, v{T}, 7, v{P}
            s_mul_i32 s52, s68, 384
            s_add_u32 s52, s52, s63""".format(W=sWAVE, I=sI, P=vP2, L=vL, T=vPL))
        pf += [VM(a, "buffer_load_dword v%d, v%d, s[%d:%d], s52 offen" % (vPL, vP2, rW2, rW2 + 3)),
               I(a, "s_add_u32 s52, s52, %d" % (18 * 1152)),
               VM(a, "buffer_load_dword v%d, v%d, s[%d:%d], s52 offen" % (vPL, vP2, rW2, rW2 + 3))]
        at(idx[("corr", 1, 0)] + 1 + CFG.pfw, pf)
    if CFG.pf == 4:
        pf = Q(a, """s_lshl2_add_u32 s52, s2, s{W}
            s_lshl_b32 s52, s52, 13
            v_lshlrev_b32 v{P}, 7, v{L}""".format(W=sWAVE, P=vP2, L=vL))
        pf += [VM(a, "buffer_load_dword v%d, v%d, s[%d:%d], s52 offen" % (vPL, vP2, rW2, rW2 + 3))]
        pf += Q(a, """s_cmp_lt_u32 s52, {N}
            s_cmov_b32 s52, 0x{O:x}
            s_sub_u32 s52, s52, {N}""".format(N=4608 * 1152, O=OOB))
        pf += [VM(a, "buffer_load_dword v%d, v%d, s[%d:%d], s52 offen" % (vPL, vP2, rWO, rWO + 3))]
        at((mm(1, 0, 2) if CFG.cmode == 0 else idx[("corr", 1, 0)] - CFG.kc1 + 1) + CFG.pfw, pf)
    def wjob(L, kk):
        def make():
            if VERB: print("hs", now[0], seq[now[0]], "issue W", (L, kk), file=sys.stderr)
            return dma_issue(L, kk)
        gate = 0
        if CFG.cmode == 1 and kk >= 2: gate = (0, CFG.gate1, CFG.gate2)[L]
        return ("w", lambda: len(free) > 0 and now[0] >= gate, make)
    def cjob(L, k):
        def make():
            if VERB: print("hs", now[0], seq[now[0]], "issue C", (L, k), file=sys.stderr)
            return c_issue(L, k)
        return ("w", lambda: len(free) > 0, make)
    cj = {CFG.cj1: [cjob(1, 0), cjob(1, 1), cjob(0, 2)], CFG.cj2: [cjob(2, 0), cjob(2, 1)]}
    if CFG.init >= 1: del cj[CFG.cj1]
    if CFG.cmode == 1: cj = {CFG.cj1: [wjob(1, 0), wjob(1, 1)], 9: [cjob(0, 2), wjob(2, 0), wjob(2, 1)]}
    for p in range(1 if CFG.lean == 2 else 2, 9): S_.jobs += ([XS.job(p)] if p > 2 or CFG.init < 2 else []) + [wjob(0, 2 * p), wjob(0, 2 * p + 1)] + cj.get(p, [])
    S_.jobs += cj.get(9, [])
    S_.jobs += [wjob(L, kk) for L in (1, 2) for kk in range(2 * CFG.cmode, 18)]
    hmark = lambda st: "h1" if st < 6 else ("h2" if st < 9 else ("h3" if st < 12 else ("o" if p2.steps[st][2] == "wo" else "h4")))
    S_.jobs += p2.jobs(0, lambda st: "vo" in marks,
                       lambda st: hmark(st) in marks and now[0] > mm(2, 1, min(st, 9)))
    xdead = {}
    S_.prime()
    for n, e in enumerate(seq):
        pre = []
        now[0] = n
        S_.vmrate = 2.0 if n < CFG.boost else CFG.vmrate / 100.0
        if VERB: a.cm("HS %d %s" % (n, e))
        if n >= CFG.sbase and (n - CFG.sbase) % CFG.sstep == 0 and (n - CFG.sbase) // CFG.sstep < 11: stamp(a, 4 + (n - CFG.sbase) // CFG.sstep, 2)
        if e[0] == "mm" and e[1] == 0 and e[2] == 0 and e[3] % 2 == 0:
            wlg(a, [("xr", e[3] // 2)])
        if n == xread_at[8]: assert ("pub", 2 if CFG.cmode == 0 else 0) in marks
        if e[0] == "corr": assert "stats" in marks
        if n == mm(2, 0, 5): assert a.cnt.get(("w", 2, 17)) == 2
        if e[0] == "corr": wvm(a, [("csa", e[1], e[2])])
        if e[0] == "mm" and e[3] == 0 and (e[1] > 0 or e[2] == 0): stamp(a, 3 if e[1] == 0 else 3 + 2 * e[1] + e[2])
        if e == ("mm", 0, 0, 9): stamp(a, 4)
        if n % 2 == 1:
            rmax = S_.read_limit(first_slot[min(n + 2, NH)] - 1)
            need = []
            for m in range(n, NH):
                if S_.cur_ring(first_slot[m]) <= rmax:
                    need += [x for x in slabs_of(seq[m]) if x not in visible and x not in need]
            rel_ = [x for x, lu in last_use.items() if lu < n and x not in released]
            tags, aft = bar_tags.pop(n, ([], []))
            tags = list(tags)
            if S_.cur_ring(first_slot[NH]) <= rmax and not p2.visible:
                tags += [("w2", 0, k_) for k_ in range(3)]; p2.visible.update((0, k_) for k_ in range(3))
            xrel = [p for p, m in xread_at.items() if p >= 6 and m + 3 <= n and p not in xdead]
            want_space = S_.jobs and S_.jobs[0][0] in ("w", "w2", "x") or any(j[0] in ("w", "w2") for j in S_.jobs[:3])
            if rel_ and not (need or tags or xrel) and (not want_space or (n > 40 and len(rel_) < CFG.relper)): rel_ = []
            if need or rel_ or tags or xrel:
                need += [x for x, t_ in issued_at.items() if x not in visible and x not in need and
                         (t_ + CFG.age <= n or (a.cnt.get(("w",) + x, 0) == 2 and ("w",) + x not in a.vm))]
                for x in need: assert x in loc, ("slab not issued", n, x)
                def bar(need=need, tags=tags, xrel=xrel):
                    wlg(a, [("xr", p) for p in xrel])
                    wvm(a, [("w",) + x for x in need] + tags)
                    a("s_barrier")
                pre.append(("B", bar))
                visible.update(need); released.update(rel_)
                for x in rel_: free.append(loc[x])
                for p in xrel:
                    xdead[p] = 1
                    free.extend(8 + 3 * w + p % 3 for w in range(4))
            S_.extra += aft
        S_.extra += ev.pop(n, [])
        if (2, 17) in loc:
            while free:
                p2.free.append(free.pop(0))
        ns = first_slot[n + 1] - first_slot[n]
        for k in range(ns):
            if e[0] == "mm" and e[3] == 0 and k == 0:
                assert not (S_.epi and S_.epiP == e[2]), "epilogue not finished"
            S_.emit(pre if k == 0 else (), 1 if len(S_.extra) > 20 else 0)
            if k == 1 and n > 0:
                pe = seq[n - 1]
                if pe[0] != "cs" and lastP[pe[1:3]] == n - 1:
                    assert not S_.epi
                    S_.set_epi(epilogue(pe[1], pe[2]), first_slot[mm(pe[1] + 1, pe[2], 0)] - 1 if pe[1] < 2 else first_slot[NH] - 1, 0, False)
                    S_.epiP = pe[2]
    assert not S_.epi and not ev and not bar_tags, (ev.keys(), bar_tags.keys())
    now[0] = NH
    if VERB: print("; left for phase 2:", [j[0] for j in S_.jobs], "extra", len(S_.extra), file=sys.stderr)
    stamp(a, 9)
    S_.set_epi(epilogue(2, 1), S_.pos + CFG.edl, 2, False)
    ooff = "s_add_u32 s49, s71, %d" % (128 * FO)
    hooks = {}
    def add(st, key, v): hooks.setdefault(st, {}).setdefault(key, []).extend(v)
    add(CFG.s3, "bar", [("h", 2, 0)]); add(CFG.s3, "after", hsig(3))
    add(0, "after", poll_check(a, hoff(2), "pl2", "7") + [mark("h2")])
    add(CFG.s3 + 2, "after", poll_issue(a, hoff(3), "pl3"))
    add(CFG.s4, "bar", [("h", 2, 1)]); add(CFG.s4, "after", hsig(4))
    add(CFG.s3 + 4, "after", poll_check(a, hoff(3), "pl3", "7") + [mark("h3")])
    if CFG.osplit < 2:
        add(CFG.po, "after", poll_issue(a, ooff, "plo", vP2))
        add(CFG.po + 2, "after", poll_check(a, ooff, "plo", "1", vP2) + [mark("o")])
    add(CFG.p4, "after", poll_issue(a, hoff(4), "pl4"))
    add(CFG.c4, "after", poll_check(a, hoff(4), "pl4", "7") + [mark("h4")])
    dead0 = [loc[x] for x in last_use if x not in released]
    p2.main(S_, hooks, dead0)

C0 = [0, 4, 9, 13]
def path_attn(a):
    global vL, vX, vFS, vFP, vTK, vPL
    keep = (vL, vX, vFS, vFP, vTK, vPL)
    a.cnt = {}
    RB, VO, XO, XA = 224, 230, 236, 240
    vCS0, vCS1, vCSW, vP2, u0, u1 = 250, 251, 252, 253, 254, 255
    aONE, aCS, aST, aCSA, aX = 32, 36, 52, 68, 96
    t0, t1, t2, t3, t4 = 64, 65, 66, 67, 68
    new = (244, 245, 246, 247, 248, 249)
    for o_, n_ in zip(keep[:4], new[:4]): a("v_mov_b32 v%d, v%d" % (n_, o_))
    vL, vX, vFS, vFP, vTK, vPL = new
    def xreg(kk, tt): return ("a", aX + 16 * (kk % 10) + 4 * tt)
    def xr(kk, tt): return R(*xreg(kk, tt), 4)
    def acc(T, tt): return 16 * T + 4 * tt
    XS = XStage(a, XO, XA, 98304, 2, xreg)
    WLIM = 576 * 3456
    def dma_issue(kk):
        fns = [I(a, "s_add_u32 s55, s%d, %d" % (sWo, (kk & 1) * 32 * 3456))]
        for idx in range(6):
            if idx % 3 == 0:
                fns.append(I(a, "s_add_u32 m0, s53, %d" % ((kk % 4) * 24576 + (idx // 3) * 3072)))
            fns.append(VM(a, "buffer_load_dwordx4 v%d, s[%d:%d], s55 offen offset:%d lds" % (VO + idx, rWA, rWA + 3, (idx % 3) * 1024), ("w", kk)))
        if kk & 1: fns.append(I(a, "s_add_u32 s%d, s%d, %d\ns_cmp_ge_u32 s%d, %d\ns_cmov_b32 s%d, 0" % (sWo, sWo, 64 * 3456, sWo, WLIM, sWo), 3))
        return fns
    XS.setup_dma(t0, t1)
    run(XS.dma(0))
    srd(a, rWA, sWQKV, WLIM, bias=2048)
    run(dma_lane_off(a, t2, t0, t1, 3456, True))
    for idx in range(6):
        a("s_mul_i32 s52, s%d, 6" % sWAVE)
        a("s_add_u32 s52, s52, %d" % idx)
        a("s_and_b32 s49, s52, 1")
        a("s_bfe_u32 s60, s52, 0x10001")
        a("s_lshl2_add_u32 s49, s49, s60")
        a("s_mul_i32 s49, s49, %d" % (4 * 3456))
        a("s_bfe_u32 s60, s52, 0x10002")
        a("s_add_u32 s60, s60, s%d" % sXG)
        a("s_lshl_b32 s60, s60, 7")
        a("s_add_u32 s49, s49, s60")
        a("s_lshr_b32 s60, s52, 3")
        a("s_mul_i32 s60, s60, 1152")
        a("s_add_u32 s49, s49, s60")
        a("s_add_u32 s49, s49, %d" % (2048 - (idx % 3) * 1024))
        a("v_add_u32 v%d, s49, v%d" % (VO + idx, t2))
    a("s_mul_i32 s53, s%d, 6144" % sWAVE)
    a("s_mul_i32 s%d, s%d, %d" % (sWo, sROT, 64 * 3456))
    run(dma_issue(0))
    if not CFG.lean: run(dma_issue(1))
    code_prefetch(a)
    if not CFG.lean: run(XS.dma(1))
    stamp(a, 4, 1)
    XS.setup_read(t0, t1, t2)
    lane_fields(a, t0, t1, t2)
    a("v_lshrrev_b32 v%d, 1, v%d" % (t0, t0))
    a("v_lshlrev_b32 v%d, 10, v%d" % (t0, t0))
    a("v_lshl_add_u32 v%d, v%d, 7, v%d" % (t0, t1, t0))
    a("v_lshrrev_b32 v%d, 1, v%d" % (t1, t1))
    a("s_lshl_b32 s52, s%d, 1" % sXG)
    for p in range(6):
        r = RB + p
        if p < 4:
            a("v_add_u32 v%d, %d, v%d" % (t3, C0[p], t2))
        elif p == 4:
            a("v_lshrrev_b32 v%d, 1, v%d" % (t3, t2))
            a("v_lshl_add_u32 v%d, v%d, 2, v%d" % (t3, t2, t3))
            a("v_add_u32 v%d, 4, v%d" % (t3, t3))
        else:
            a("v_and_b32 v%d, 1, v%d" % (t3, t2))
            a("v_mul_u32_u24 v%d, 9, v%d" % (t3, t3))
            a("v_add_u32 v%d, 8, v%d" % (t3, t3))
        a("v_add_u32 v%d, s52, v%d" % (t3, t3))
        a("v_lshrrev_b32 v%d, 4, v%d" % (t4, t3))
        a("v_lshl_add_u32 v%d, v%d, 12, v%d" % (r, t4, t0))
        a("v_bfe_u32 v%d, v%d, 2, 2" % (t4, t3))
        a("v_xor_b32 v%d, v%d, v%d" % (t4, t4, t1))
        a("v_lshl_add_u32 v%d, v%d, 5, v%d" % (r, t4, r))
        a("v_and_b32 v%d, 3, v%d" % (t4, t3))
        a("v_lshl_add_u32 v%d, v%d, 3, v%d" % (r, t4, r))
        if p == 5:
            a("v_lshrrev_b32 v%d, 1, v%d" % (t4, t2))
            a("v_add_u32 v%d, 1, v%d" % (t4, t4))
            a("v_lshl_add_u32 v%d, v%d, 13, v%d" % (r, t4, r))
    a("s_bitcmp1_b32 s%d, 0" % sWAVE)
    a("s_cselect_b64 vcc, -1, 0")
    a("v_cndmask_b32 v%d, v%d, v%d, vcc" % (t3, RB, RB + 1))
    a("v_cndmask_b32 v%d, v%d, v%d, vcc" % (t4, RB + 2, RB + 3))
    a("v_cndmask_b32 v%d, v%d, v%d, vcc" % (vCS1, RB + 4, RB + 5))
    a("s_bitcmp1_b32 s%d, 1" % sWAVE)
    a("s_cselect_b64 vcc, -1, 0")
    a("v_cndmask_b32 v%d, v%d, v%d, vcc" % (vCS0, t3, t4))
    a("v_mov_b32 v%d, 0x%x" % (t3, ONE2))
    for i in range(4): a("v_accvgpr_write_b32 a%d, v%d" % (aONE + i, t3))
    steps = [(18 * x_, 576 * x_, k) for x_ in range(4) for k in range(3)] + [(2 * x_ + P, 36 * (2 * x_ + P), "woa") for x_ in range(4) for P in range(2 - CFG.osplit, 2)] + [(0, 0, "wos"), (1, 144, "wos")]
    p2 = P2(a, steps, 220, 197, 222, True)
    a("s_cmp_ge_u32 s%d, 3" % sI)
    a("s_cselect_b32 s4, 1, 0")
    a("s_mul_i32 s52, s4, 3")
    a("s_sub_u32 s68, s%d, s52" % sI)
    a("s_lshr_b32 s70, s%d, 1" % sWAVE)
    a("s_lshl_b32 s72, s%d, 10" % sXG)
    a("s_lshl_b32 s52, s70, 9")
    a("s_add_u32 s72, s72, s52")
    a("s_add_u32 s72, s72, 0x%x" % FLG_OFF)
    p2.setup_s()
    a("s_mul_i32 s62, s70, %d" % (72 * KSTRIDE))
    a("s_add_u32 s62, s62, %d" % H_OFF)
    a("s_mul_i32 s63, s70, %d" % (2304 * 1152))
    a("s_mul_i32 s64, s70, %d" % (2 * KSTRIDE))
    a("s_add_u32 s64, s64, %d" % (H_OFF + 160 * KSTRIDE))
    a("s_mul_i32 s65, s70, %d" % (288 * 1152))
    a("s_mul_i32 s7, s70, %d" % (8 * KSTRIDE))
    a("s_add_u32 s7, s7, %d" % (H_OFF + 144 * KSTRIDE))
    a("s_mov_b32 s67, 4")
    a("s_add_u32 s52, s%d, 24" % sXG)
    a("s_lshl_b32 s%d, s52, 7" % sFC)
    a("s_add_u32 s%d, s%d, 0x%x" % (sFC, sFC, FL(FC)))
    a("s_mov_b32 s71, 0x07070707")
    a("s_cmp_ge_u32 s%d, 6" % sI)
    a("s_cmov_b32 s62, 0x%x" % OOB)
    a("s_cmov_b32 s63, 0x%x" % OOB)
    a("s_cmov_b32 s71, 0")
    a("s_lshl_b32 s%d, s%d, 13" % (sCSB, sXG))
    a("s_add_u32 s%d, s%d, %d" % (sCSB, sCSB, CS_OFF + 24 * 12288))
    a("s_cmp_eq_u32 s%d, 7" % sI)
    a("s_cselect_b32 s%d, 0x%x, 0" % (sOne2, ONE2))
    if CFG.lean: run(dma_issue(1) + XS.dma(1))
    stamp(a, 7, 1)
    stats_compute(a)
    stamp(a, 5, 1)
    run(XS.reads(0))
    wvm(a, [("w", 0)], w=6)
    a("s_barrier")
    TL = [(0, 0), (1, 0), (2, 0), (3, 0), (4, 0)] + [(p, 1) for p in range(4)] + [(p, 2) for p in range(4)] + [(5, 0)]
    S_ = Stream(a, "a", 0)
    visible = set([0])
    cur = [0] * 6
    csr = [0]
    info = []
    for kk in range(18):
        for T in range(14):
            def rd(kind, reg, tag, kk=kk, T=T):
                assert kk in visible
                p, win = TL[T]
                want = ((kk % 4) // 2) * 49152
                out = []
                if cur[p] != want:
                    out.append(I(a, "v_add_u32 v%d, 0x%x, v%d" % (RB + p, (want - cur[p]) & 0xffffffff, RB + p))); cur[p] = want
                return out + [("D", lambda h=h: a.lds("ds_read_b64_tr_b16 %s, v%d offset:%d" % (A(reg + 2 * h, 2), RB + p, (kk % 2) * 24576 + win * 8192 + h * 2048), tag)) for h in range(2)]
            def mf(w, kk=kk, T=T):
                return ["%s %s, %s, %s, %s" % (MF, V(acc(T, tt), 4), w, xr(kk, tt), "0" if kk == 0 else V(acc(T, tt), 4)) for tt in range(4)]
            S_.add(rd, mf); info.append((kk, T))
            if kk < 4 and T in (1, 3, 5, 7):
                k = T // 2
                def rd(kind, reg, tag, kk=kk, k=k):
                    out = []
                    if k == 0 and kk > 0:
                        out += [I(a, "v_add_u32 v%d, 24576, v%d" % (vCS0, vCS0)), I(a, "v_add_u32 v%d, 24576, v%d" % (vCS1, vCS1))]
                    return out + [("D", lambda h=h: a.lds("ds_read_b64_tr_b16 %s, v%d offset:%d" % (A(reg + 2 * h, 2), vCS0 if k < 3 else vCS1, (k * 8192 if k < 3 else 0) + h * 2048), tag)) for h in range(2)]
                def mf(w, kk=kk, k=k):
                    pre = ""
                    if kk == 2 and k == 0:
                        pre = "v_mov_b32 v%d, s%d\n" % (u0, sOne2) + "".join("v_accvgpr_write_b32 a%d, v%d\n" % (aONE + i, u0) for i in range(4)) + "s_nop 1\n"
                    return [pre + "%s %s, %s, %s, %s" % (MF, A(aCS + 4 * k, 4), A(aONE, 4), w, "0" if kk == 0 else A(aCS + 4 * k, 4))]
                S_.add(rd, mf); info.append((kk, -1))
    for T in list(range(9, 13)) + list(range(5, 9)) + [13] + list(range(5)):
        S_.add(None, lambda w, T=T: ["%s %s, %s, %s, %s" % (MF16, V(acc(T, tt), 4), A(aCSA + 2 * T, 2), A(aST + 4 * tt, 2), V(acc(T, tt), 4)) for tt in range(4)])
        info.append((18, T))
    ev = {}; bt = {}
    def at(kk, fns): ev.setdefault(kk, []).extend(fns)
    w_ = [I(a, "v_lshrrev_b32 v%d, 4, v%d" % (u0, vL)),
          I(a, "v_mul_u32_u24 v%d, 9, v%d\nv_add_u32 v%d, 1, v%d\nv_lshrrev_b32 v%d, 1, v%d\nv_add_u32 v%d, s%d, v%d" % (vCSW, u0, vCSW, vCSW, vCSW, vCSW, vCSW, sWAVE, vCSW), 4),
          I(a, "s_mul_i32 s52, s%d, 9\ns_add_u32 s52, s52, 4\ns_cmp_ge_u32 s%d, 2\ns_cmov_b32 s52, 0x%x\nv_mov_b32 v%d, s52\nv_cmp_eq_u32 vcc, 3, v%d\ns_nop 1\nv_cndmask_b32 v%d, v%d, v%d, vcc"
            % (sWAVE, sWAVE, OOB >> 9, u1, u0, vCSW, vCSW, u1), 8),
          I(a, "v_and_b32 v%d, 15, v%d\nv_lshlrev_b32 v%d, 4, v%d\nv_and_b32 v%d, 1, v%d\nv_lshl_add_u32 v%d, v%d, 3, v%d\nv_lshrrev_b32 v%d, 1, v%d\nv_lshl_add_u32 v%d, v%d, 10, v%d"
            % (u0, vL, u0, u0, u1, vCSW, u0, u1, u0, vCSW, vCSW, vCSW, vCSW, u0), 6),
          I(a, "s_lshr_b32 s52, s%d, 1\ns_lshl_b32 s52, s52, 8\ns_and_b32 s60, s%d, 1\ns_lshl2_add_u32 s52, s60, s52\nv_add_u32 v%d, s52, v%d" % (sI, sI, vCSW, vCSW), 5)]
    marks = set()
    at(0, w_ + [("", lambda: marks.add(1))])
    pub = [I(a, "v_accvgpr_read_b32 v%d, a%d" % (u0, aCS))]
    for k, (lo, hi) in enumerate([("0xffff0000", "0"), ("0", "0xffff"), ("0", "0xffff0000")]):
        pub.append(I(a, "v_accvgpr_read_b32 v%d, a%d\ns_mov_b32 vcc_lo, %s\ns_mov_b32 vcc_hi, %s\nv_cndmask_b32 v%d, v%d, v%d, vcc" % (u1, aCS + 4 * (k + 1), lo, hi, u0, u0, u1), 4))
    pub += hilo(a, u0, u1, vCS0)
    pub.append(("M", lambda: a.vmem("buffer_store_dword v%d, v%d, %s, s%d offen %s" % (u0, vCSW, WSR, sCSB, SC), ("cs", 0))))
    at(3, pub)
    b_ = Asm(); rot_bases(b_, 4)
    at(7, Q(a, "\n".join(b_.lines)))
    bt[5] = ([("cs", 0)], signal(a, "s_lshl2_add_u32 s49, s%d, s%d" % (sI, sFC)))
    coff = "s_mov_b32 s49, s%d" % sFC
    at(10, poll_issue(a, coff, "plc") + stats_addr(a, vCS0) + stats_fetch(a, "a", aST, vCS0))
    ld = poll_check(a, coff, "plc", "0xff") + [I(a, "v_lshlrev_b32 v%d, 4, v%d" % (u0, vL))]
    for k in range(7):
        if k == 4: ld.append(I(a, "s_add_u32 s%d, s%d, 4096" % (sCSB, sCSB)))
        ld.append(("M", lambda k=k: a.vmem("buffer_load_dwordx4 %s, v%d, %s, s%d offen offset:%d %s" % (A(aCSA + 4 * k, 4), u0, WSR, sCSB, 1024 * (k % 4), SC), ("csa", 0))))
    ld += stats_check(a, "a", aST, vCS0, u1)
    for tt in range(4): ld.append(I(a, "v_accvgpr_mov_b32 a%d, a%d" % (aST + 4 * tt + 1, aST + 4 * tt)))
    at(13, ld)
    if CFG.pf in (1, 2, 3):
        pf = Q(a, """s_mul_i32 s52, s{I}, 3
            s_add_u32 s52, s52, s{W}
            s_mul_i32 s52, s52, {B}
            s_cmp_eq_u32 s{W}, 3
            s_cmov_b32 s52, 0x{O:x}
            v_lshlrev_b32 v{P}, 7, v{L}""".format(I=sI, P=vP2, L=vL, B=192 * 1152, W=sWAVE, O=OOB))
        pf = [(c, f) for c, f in Q(a, "\n".join(f.code for c, f in pf).replace("s52", "s7"))]
        at(CFG.pfa, pf)
        for k in range(5):
            at(min(CFG.pfa + (k + 1) // 2, 16), [VM(a, "buffer_load_dword a%d, v%d, s[%d:%d], s7 offen" % (aONE, vP2, rW2, rW2 + 3)), I(a, "s_add_u32 s7, s7, %d" % (8192 if k < 3 else 4096))])
    S_.prime()
    wjob = lambda kk: ("w", lambda: kk - 2 in visible, lambda: dma_issue(kk))
    S_.jobs += [wjob(2), wjob(3)]
    for p in range(2, 9): S_.jobs += [XS.job(p), wjob(2 * p), wjob(2 * p + 1)]
    for s, (kk, T) in enumerate(info):
        pre = []
        if T == 0 and kk < 18 and kk % 2 == 0: wlg(a, [("xr", kk // 2)])
        if VERB and T == 0: a.cm("HS attn %d" % kk)
        if T == 0 and kk % 2 == 0: stamp(a, 4 + kk // 2, 6)
        if s == 0: stamp(a, 3)
        if kk == 2: assert marks
        if kk == 18 and T == 9:
            assert not S_.extra
            wvm(a, [("csa", 0)], csa=7)
        if T == 9 and kk < 17:
            tags, aft = bt.pop(kk, ([], []))
            def bar(kk=kk, tags=tags):
                wvm(a, [("w", kk + 1)] + tags, w=6)
                a("s_barrier")
            pre.append(("B", bar))
            visible.add(kk + 1)
            S_.extra += aft
            if kk % 2 == 0 and kk // 2 + 1 < 9:
                p = kk // 2 + 1
                S_.extra += XS.reads(p)
            S_.extra += ev.pop(kk, [])
        S_.emit(pre)
    assert not S_.extra and not ev and not S_.jobs and not S_.mem
    if VERB: a.cm("END")
    RS = 296
    vq, vn, vI0, vI1 = 224, 225, 226, 227
    T8 = 232
    t0, t1, t2, t3 = 242, 243, 254, 255
    SCL = 250
    a("s_barrier")
    stamp(a, 4, 5)
    stamp(a, 2)
    for tt in range(4): a("v_accvgpr_read_b32 v%d, a%d" % (SCL + tt, aST + 4 * tt + 2))
    a("v_lshrrev_b32 v%d, 4, v%d" % (vq, vL))
    a("v_and_b32 v%d, 15, v%d" % (vn, vL))
    for tt in range(4): a("v_rcp_f32 v%d, v%d" % (SCL + tt, SCL + tt))
    a("s_lshl_b32 s52, s%d, 6" % sWAVE)
    a("v_add_u32 v%d, s52, v%d" % (t0, vn))
    a("v_mul_u32_u24 v%d, %d, v%d" % (t0, RS, t0))
    a("v_lshl_add_u32 v%d, v%d, 3, v%d" % (vI0, vq, t0))
    a("v_mul_u32_u24 v%d, 72, v%d" % (t1, vq))
    a("v_add3_u32 v%d, v%d, v%d, 64" % (vI1, t0, t1))
    for tt in range(4): a("v_mul_f32 v%d, %s, v%d" % (SCL + tt, f32(LOG2E), SCL + tt))
    a("s_mov_b32 s56, %s" % f32(1.0 / LOG2E))
    a("s_mov_b32 s57, s56")
    a("v_mov_b32 v228, %s" % f32(1e-6 * LOG2E))
    a("v_cmp_gt_u32 s[32:33], 2, v%d" % vq)
    def scale4(r, tt):
        b, o = SCL + (tt & 2), tt & 1
        for i in (0, 2): a("v_pk_mul_f32 v[%d:%d], v[%d:%d], v[%d:%d] op_sel:[0,%d] op_sel_hi:[1,%d]" % (r + i, r + i + 1, r + i, r + i + 1, b, b + 1, o, o))
    def phi4(r, t, keepm=None):
        for i in range(4): a("v_exp_f32_e64 v%d, v%d clamp" % (t + i, r + i))
        for i in range(4): a("v_max_f32 v%d, v%d, v228" % (t + 4 + i, r + i))
        d = r if keepm is None else t
        for i in range(0, 4, 2): a("v_pk_fma_f32 v[%d:%d], v[%d:%d], s[56:57], v[%d:%d]" % (d + i, d + i + 1, t + 4 + i, t + 5 + i, t + i, t + i + 1))
        if keepm is not None:
            for i in range(4): a("v_cndmask_b32 v%d, v%d, v%d, %s" % (r + i, r + i, t + i, keepm))
    def pack2(dst, r):
        a("v_cvt_pk_bf16_f32 v%d, v%d, v%d" % (dst, r, r + 1))
        a("v_cvt_pk_bf16_f32 v%d, v%d, v%d" % (dst + 1, r + 2, r + 3))
    h0off = "s_add_u32 s49, s72, %d" % (128 * FH)
    side = []
    def sprinkle():
        while side:
            t, f = side.pop(0); f()
            if t == "M": break
    a("v_mov_b32 v%d, 0x%x" % (t2, ONE2))
    a("v_mov_b32 v%d, 0x%x" % (t3, ONE2))
    for tt in range(4): a("ds_write_b64 v%d, v[%d:%d] offset:%d" % (t0, t2, t3, tt * 16 * RS + 288))
    for T in [13] + list(range(9, 13)) + list(range(5, 9)):
        for tt in (3, 2, 1, 0):
            r = acc(T, tt)
            if T != 13 and (T < 9 or tt % 2 == 0): sprinkle()
            scale4(r, tt)
            if 5 <= T < 9: phi4(r, T8)
            elif T == 13: phi4(r, T8, keepm="s[32:33]")
            pack2(r, r)
            if T == 13: a("ds_write_b64 v%d, v[%d:%d] offset:%d" % (vI1, r, r + 1, tt * 16 * RS))
            else:
                off = C0[(T - 5) % 4] * 8 + (144 if T >= 9 else 0)
                a("ds_write_b64 v%d, v[%d:%d] offset:%d" % (vI0, r, r + 1, tt * 16 * RS + off))
        if T == 13:
            run(p2.setup_vo(240, 241, "s_mov_b32 s52, s4", sXG))
            p2.free = list(range(10, 18))
            for u in p2.units[:8]: side += p2.dma_issue(*u)
            a("v_bfe_u32 v223, v%d, 3, 2" % vL)
            a("v_and_b32 v240, 7, v%d" % vL)
            a("v_lshlrev_b32 v240, 2, v240")
            a("v_lshl_add_u32 v223, v223, 7, v240")
            side += poll_issue(a, h0off, "pl0", 231, 223)
    run(side); side = []
    stamp(a, 5, 5)
    vM, vLf, vB2 = 229, 230, 226
    a("v_bfe_u32 v%d, v%d, 2, 4" % (t0, vL))
    a("v_mul_u32_u24 v%d, %d, v%d" % (t0, RS, t0))
    a("v_and_b32 v%d, 3, v%d" % (t2, vL))
    a("s_lshl_b32 s52, s%d, 2" % sWAVE)
    a("s_lshr_b32 s49, s%d, 1" % sWAVE)
    a("s_add_u32 s52, s52, s49")
    a("v_cmp_eq_u32 vcc, s%d, v%d" % (sWAVE, t2))
    a("v_add_u32 v%d, s52, v%d" % (t3, t2))
    a("v_lshl_add_u32 v%d, v%d, 3, v%d" % (vM, t3, t0))
    a("s_lshl_b32 s52, s52, 3")
    a("s_add_u32 s52, s52, 32")
    a("v_add_u32 v%d, s52, v%d" % (vLf, t0))
    a("v_add_u32 v%d, 144, v%d" % (t3, t0))
    a("v_cndmask_b32 v%d, v%d, v%d, vcc" % (vB2, t3, vLf))
    a("v_cmp_eq_u32 s[34:35], s%d, v%d" % (sWAVE, vq))
    a.lg0()
    a("s_barrier")
    KC = 80
    FR = 96
    for k8 in range(8):
        if k8 == 4:
            for v_ in (vM, vLf, vB2): a("v_add_u32 v%d, %d, v%d" % (v_, 128 * RS, v_))
        if k8 == 7: a.wait_lg(lambda t: t == 0)
        for f, (base, off) in enumerate([(vM, 0), (vLf, 0), (vM, 144), (vB2, 144)]):
            for rd in range(2):
                r = FR + 16 * (k8 % 7) + 4 * f + 2 * rd
                a.lds("ds_read_b64_tr_b16 v[%d:%d], v%d offset:%d" % (r, r + 1, base, (32 * (k8 % 4) + 16 * rd) * RS + off), k8)
        for kq in ([k8 - 1] if k8 else []) + ([7] if k8 == 7 else []):
            a.wait_lg(lambda t: t == kq)
            b = FR + 16 * (kq % 7)
            for ci, (fa, fb) in enumerate([(b, b + 8), (b, b + 12), (b + 4, b + 8), (b + 4, b + 12)]):
                d = KC + 4 * ci
                a("%s %s, %s, %s, %s" % (MF, V(d, 4), V(fa, 4), V(fb, 4), "0" if kq == 0 else V(d, 4)))
    stamp(a, 6, 5)
    a("s_lshl_b32 s52, s%d, 5" % sXG)
    a("s_add_u32 s52, s52, s%d" % sWAVE)
    a("s_mul_i32 s6, s52, 3072")
    a("s_add_u32 s6, s6, %d" % KVP_OFF)
    a("s_mul_i32 s52, s%d, 12288" % sI)
    a("s_add_u32 s58, s6, s52")
    a("v_lshlrev_b32 v%d, 4, v%d" % (t0, vL))
    a("s_lshl_b32 s81, s%d, 7" % sXG)
    a("s_add_u32 s81, s81, %d" % FL(FKV))
    for i in range(4): a("v_cndmask_b32 v%d, v%d, v%d, s[34:35]" % (KC + 8 + i, KC + 12 + i, KC + 8 + i))
    for ci in range(3):
        a.vmem("buffer_store_dwordx4 %s, v%d, %s, s58 offen offset:%d %s" % (V(KC + 4 * ci, 4), t0, WSR, ci * 1024, SC), "kvp")
    run(poll_check(a, h0off, "pl0", "s71", 231, 223))
    for st in range(CFG.ah): side += p2.h_issue(st)
    QF = 104
    def qphi(tt):
        for T in range(5):
            sprinkle()
            scale4(acc(T, tt), tt)
            phi4(acc(T, tt), T8)
        for h in range(4):
            if h % 2: sprinkle()
            pack2(QF + 16 * tt + 4 * h, acc(h, tt))
            pack2(QF + 16 * tt + 4 * h + 2, acc(4, tt))
    qphi(0); qphi(1)
    stamp(a, 7, 5)
    a.wait_vm(lambda t: t == "kvp")
    a("s_barrier")
    run(signal(a, "s_lshl2_add_u32 s49, s%d, s81" % sI))
    p2.free += list(range(10))
    for u in p2.units[8:3 * CFG.ah]: side += p2.dma_issue(*u)
    stamp(a, 8, 5)
    qphi(2); qphi(3)
    run(side); side = []
    run(poll_issue(a, "s_mov_b32 s49, s81", "plkv"))
    a("s_and_b32 s52, s%d, 1" % sWAVE)
    a("s_lshl_b32 s49, s52, 1")
    a("v_cmp_le_u32 s[32:33], s49, v%d" % vn)
    a("v_lshrrev_b32 v%d, 2, v%d" % (t2, vn))
    a("v_cmp_eq_u32 s[16:17], s%d, v%d" % (sWAVE, t2))
    a("v_and_b32 v%d, 3, v%d" % (t2, vn))
    a("s_add_u32 s49, s49, 2")
    a("v_cmp_gt_u32 vcc, s49, v%d" % t2)
    a("v_cmp_eq_u32 s[20:21], s%d, v%d" % (sWAVE, t2))
    a("s_and_b64 s[10:11], s[16:17], vcc")
    a("v_cmp_le_u32 s[74:75], s52, v%d" % vq)
    a("s_cmp_eq_u32 s52, 1")
    a("s_cselect_b64 s[76:77], s[34:35], 0")
    stamp(a, 9, 5)
    run(poll_check(a, "s_mov_b32 s49, s81", "plkv", "0xff"))
    stamp(a, 5)
    stamp(a, 10, 5)
    for i in range(8):
        a("s_add_u32 s58, s6, %d" % (i * 12288))
        for ci in range(3):
            a.vmem("buffer_load_dwordx4 %s, v%d, %s, s58 offen offset:%d %s" % (V(12 * i + 4 * ci, 4), t0, WSR, ci * 1024, SC), ("kv", i))
    for i in range(1, 8):
        a.wait_vm(lambda t: t == ("kv", i))
        if i == 1: stamp(a, 11, 5)
        for r in range(12): a("v_add_f32 v%d, v%d, v%d" % (r, r, 12 * i + r))
    stamp(a, 12, 5)
    pack2(12, 0); pack2(14, 4); pack2(16, 8)
    a("v_mov_b32 v18, v16"); a("v_mov_b32 v19, v17"); a("v_mov_b32 v20, v16"); a("v_mov_b32 v21, v17")
    a("s_bitcmp1_b32 s%d, 0" % sWAVE)
    a("s_cselect_b64 vcc, -1, 0")
    a("v_permlane16_swap_b32 v18, v20")
    a("v_permlane16_swap_b32 v19, v21")
    a("v_mov_b32_dpp v22, v14 row_ror:4 row_mask:0xf bank_mask:0xf")
    a("v_mov_b32_dpp v23, v15 row_ror:4 row_mask:0xf bank_mask:0xf")
    a("v_cndmask_b32 v18, v20, v18, vcc")
    a("v_cndmask_b32 v19, v21, v19, vcc")
    a("v_cndmask_b32 v22, v14, v22, s[16:17]")
    a("v_cndmask_b32 v23, v15, v23, s[16:17]")
    a("v_mov_b32_dpp v20, v18 row_ror:4 row_mask:0xf bank_mask:0xf")
    a("v_mov_b32_dpp v21, v19 row_ror:4 row_mask:0xf bank_mask:0xf")
    a("v_cndmask_b32 v20, v18, v20, s[16:17]")
    a("v_cndmask_b32 v21, v19, v21, s[16:17]")
    for f, (m, mainr, leftr) in enumerate([(32, 12, 16), (10, 14, 18), (20, 22, 20)]):
        for k, (src, extra) in enumerate([(mainr, 74), (mainr + 1, m), (leftr, 34), (leftr + 1, 76)]):
            a("s_and_b64 vcc, s[%d:%d], s[%d:%d]" % (m, m + 1, extra, extra + 1))
            a("v_cndmask_b32 v%d, 0, v%d, vcc" % (24 + 4 * f + k, src))
    a("s_mul_i32 s52, s%d, 3072" % sWAVE)
    a("v_add_u32 v%d, 0x25000, v%d" % (t0, t0))
    a("v_add_u32 v%d, s52, v%d" % (t1, t0))
    for f in range(3):
        a("ds_write_b128 v%d, %s offset:%d" % (t1, V(24 + 4 * f, 4), f * 1024))
    a("s_waitcnt lgkmcnt(0)")
    a("s_barrier")
    AF = 168
    for i in range(12):
        a("ds_read_b128 %s, v%d offset:%d" % (V(AF + 4 * i, 4), t0, i * 1024))
    a("s_lshl_b32 s52, s%d, 1" % sXG)
    a("s_add_u32 s52, s52, 144")
    a("s_mul_i32 s58, s52, %d" % KSTRIDE)
    a("s_add_u32 s58, s58, %d" % H_OFF)
    a("s_add_u32 s59, s58, %d" % KSTRIDE)
    a("s_lshr_b32 s52, s%d, 1" % sXG)
    a("s_add_u32 s52, s52, 160")
    a("s_mul_i32 s57, s52, %d" % KSTRIDE)
    a("s_and_b32 s52, s%d, 1" % sXG)
    a("s_lshl_b32 s52, s52, 3")
    a("s_add_u32 s57, s57, s52")
    a("s_add_u32 s57, s57, %d" % H_OFF)
    a("s_mov_b32 s56, %s" % f32(LOG2E))
    a("v_cmp_eq_u32 s[32:33], 1, v%d" % vq)
    a("v_cmp_eq_u32 s[34:35], 2, v%d" % vq)
    a("v_cmp_eq_u32 s[10:11], 3, v%d" % vq)
    a("s_waitcnt lgkmcnt(0)")
    for tt in range(4):
        o = 24 * tt
        for h in range(4):
            qf = V(QF + 16 * tt + 4 * h, 4)
            a("%s %s, %s, %s, 0" % (MF, V(o + 4 * h, 4), V(AF + 12 * h, 4), qf))
            a("%s %s, %s, %s, %s" % (MF, V(o + 16, 4), V(AF + 12 * h + 4, 4), qf, "0" if h == 0 else V(o + 16, 4)))
            a("%s %s, %s, %s, %s" % (MF, V(o + 20, 4), V(AF + 12 * h + 8, 4), qf, "0" if h == 0 else V(o + 20, 4)))
    stamp(a, 13, 5)
    a("s_nop 7")
    for tt in range(4):
        o = 24 * tt
        for h in range(4): a("v_fma_f32 v%d, v%d, s56, v228" % (o + 20 + h, o + 20 + h))
        for h in range(4): a("v_rcp_f32 v%d, v%d" % (o + 20 + h, o + 20 + h))
        a("s_nop 0")
        a("v_cndmask_b32 v%d, v%d, v%d, s[32:33]" % (T8 + 8, o + 20, o + 21))
        a("v_cndmask_b32 v%d, v%d, v%d, s[34:35]" % (T8 + 8, T8 + 8, o + 22))
        a("v_cndmask_b32 v%d, v%d, v%d, s[10:11]" % (T8 + 8, T8 + 8, o + 23))
        for h in range(4):
            b, sel = o + 20 + (h & 2), h & 1
            for i in (0, 2): a("v_pk_mul_f32 v[%d:%d], v[%d:%d], v[%d:%d] op_sel:[0,%d] op_sel_hi:[1,%d]" % (o + 4 * h + i, o + 4 * h + i + 1, o + 4 * h + i, o + 4 * h + i + 1, b, b + 1, sel, sel))
        for i in (0, 2): a("v_pk_mul_f32 v[%d:%d], v[%d:%d], v[%d:%d] op_sel_hi:[1,0]" % (o + 16 + i, o + 17 + i, o + 16 + i, o + 17 + i, T8 + 8, T8 + 9))
        pack2(o, o); pack2(o + 2, o + 4)
        pack2(o + 4, o + 8); pack2(o + 6, o + 12)
        pack2(o + 8, o + 16)
        a.vmem("buffer_store_dwordx4 %s, v%d, %s, s58 offen offset:%d %s" % (V(o, 4), vX, WSR, tt * 1024, SC), "o")
        a.vmem("buffer_store_dwordx4 %s, v%d, %s, s59 offen offset:%d %s" % (V(o + 4, 4), vX, WSR, tt * 1024, SC), "o")
        a.vmem("buffer_store_dwordx2 %s, v%d, %s, s57 offen offset:%d %s" % (V(o + 8, 2), vX, WSR, tt * 1024, SC), "o")
    for o_, n_ in zip(keep[:5], new[:5]): a("v_mov_b32 v%d, v%d" % (o_, n_))
    vL, vX, vFS, vFP, vTK, vPL = keep
    p2.setup_special(176, 177, 178)
    tr_addrs(a, 176, 177, 178)
    a("s_mul_i32 s%d, s70, 4128" % sPX)
    a("s_lshl_b32 s81, s%d, 7" % sXG)
    a("s_add_u32 s81, s81, s%d" % sFI)
    a("s_mov_b32 s52, s%d" % sI)
    a("s_mov_b32 s%d, s%d" % (sI, sXG))
    a("s_mov_b32 s%d, s52" % sXG)
    osig = lambda: signal(a, "s_add_u32 s49, s81, %d" % (128 * FO))
    stamp(a, 14, 5)
    stamp(a, 6)
    lgo = a.newlabel("Lp2a")
    a("s_cmp_lt_u32 s%d, 6" % sXG)
    a("s_cbranch_scc1 %s" % lgo)
    a("s_waitcnt vmcnt(0)")
    a("s_barrier")
    keepvm = list(a.vm)
    run(osig())
    a.vm = keepvm
    a("s_branch L_final")
    a.label(lgo)
    hooks = {}
    def add(st, key, v): hooks.setdefault(st, {}).setdefault(key, []).extend(v)
    add(1, "bar", ["o"]); add(1, "after", osig())
    ooff = "s_add_u32 s49, s72, %d" % (128 * FO)
    NSA = len(steps)
    add(3, "after", poll_issue(a, ooff, "plo", None, 223))
    add(5, "after", poll_check(a, ooff, "plo", "0x01010101", None, 223) + [("", lambda: marks.add("o"))])
    wvm(a, [("w2", 0, k_) for k_ in range(3)])
    a("s_barrier")
    p2.visible.update((0, k_) for k_ in range(3))
    for k_ in [k_ for k_ in a.cnt if isinstance(k_, tuple) and k_[0] == "f"]: del a.cnt[k_]
    S_ = Stream(a, "v", WF)
    p2.add_slots(S_)
    S_.prime()
    S_.jobs += p2.jobs(CFG.ah, lambda st: True, lambda st: st < 12 or "o" in marks)
    p2.main(S_, hooks, [18, 19])

def spin(a, soff_code, mask, sleep):
    lp, ld = a.newlabel("Lw"), a.newlabel("Lw")
    a(soff_code)
    a("s_mov_b32 s59, 40000")
    a.label(lp)
    a("buffer_load_dword v%d, v%d, %s, s49 offen %s" % (vPL, vFP, WSR, SC))
    a("s_waitcnt vmcnt(0)")
    a("v_cmp_eq_u32 vcc, s%d, v%d" % (sTOK, vPL))
    a("s_andn2_b32 s61, %s, vcc_lo" % mask)
    a("s_cbranch_scc0 %s" % ld)
    a("s_sleep %d" % sleep)
    a("s_sub_u32 s59, s59, 1")
    a("s_cmp_lg_u32 s59, 0")
    a("s_cbranch_scc1 %s" % lp)
    a.label(ld)

def code_prefetch(a, top=False):
    if CFG.cpf == 0 or (CFG.cpf >= 2) != top: return
    if top:
        a("s_getpc_b64 s[60:61]")
        l = a.newlabel("Lpc")
        a.label(l)
        a("s_sub_u32 s%d, s60, %s-%s" % (rW2, l, NAME))
        a("s_subb_u32 s%d, s61, 0" % (rW2 + 1))
        a("s_and_b32 s%d, s%d, 0xffff" % (rW2 + 1, rW2 + 1))
        a("s_mov_b32 s%d, L_code_end-%s" % (rW2 + 2, NAME))
        a("s_mov_b32 s%d, 0x20000" % (rW2 + 3))
        if CFG.cpf == 2:
            a("s_lshr_b32 s52, s2, 3")
            a("s_lshl_b32 s52, s52, 12")
            a("v_lshlrev_b32 v63, 4, v0")
        else:
            a("s_bfe_u32 s52, s2, 0x20003")
            a("s_lshl_b32 s52, s52, 15")
            a("v_lshlrev_b32 v63, 7, v0")
        a.vmem("buffer_load_dword v62, v63, s[%d:%d], s52 offen" % (rW2, rW2 + 3), "pf")
        return
    a("s_getpc_b64 s[60:61]")
    l = a.newlabel("Lpc")
    a.label(l)
    a("s_sub_u32 s%d, s60, %s-%s" % (rW2, l, NAME))
    a("s_subb_u32 s%d, s61, 0" % (rW2 + 1))
    a("s_and_b32 s%d, s%d, 0xffff" % (rW2 + 1, rW2 + 1))
    a("s_mov_b32 s%d, L_code_end-%s" % (rW2 + 2, NAME))
    a("s_mov_b32 s%d, 0x20000" % (rW2 + 3))
    a("s_lshr_b32 s52, s2, 3")
    a("s_lshl_b32 s52, s52, 12")
    a("s_lshl_b32 s49, s%d, 10" % sWAVE)
    a("s_add_u32 s52, s52, s49")
    a("v_lshlrev_b32 v63, 4, v%d" % vL)
    a.vmem("buffer_load_dword v%d, v63, s[%d:%d], s52 offen" % (vPL, rW2, rW2 + 3), "pf")
    if CFG.tlb:
        a("s_lshl_b32 s49, s%d, 1" % sWAVE)
        a("s_cmp_eq_u32 s%d, 1" % sWAVE)
        a("s_cselect_b32 s60, s%d, s%d" % (sW2, sWS)); a("s_cselect_b32 s61, s%d, s%d" % (sW2 + 1, sWS + 1))
        a("s_mov_b32 s%d, %d" % (rWO + 2, PART_OFF + 5 * PSL)); a("s_cmov_b32 s%d, %d" % (rWO + 2, 4608 * 1152))
        a("s_cmp_eq_u32 s%d, 2" % sWAVE)
        a("s_cmov_b32 s60, s%d" % sWO); a("s_cmov_b32 s61, s%d" % (sWO + 1)); a("s_cmov_b32 s%d, %d" % (rWO + 2, 576 * 1152))
        a("s_cmp_eq_u32 s%d, 3" % sWAVE)
        a("s_cmov_b32 s60, s%d" % sOUT); a("s_cmov_b32 s61, s%d" % (sOUT + 1)); a("s_cmov_b32 s%d, %d" % (rWO + 2, 2048 * 1152))
        a("s_mov_b32 s%d, s60" % rWO)
        a("s_and_b32 s%d, s61, 0xffff" % (rWO + 1))
        a("s_mov_b32 s%d, 0x20000" % (rWO + 3))
        a("v_lshlrev_b32 v63, %d, v%d" % (CFG.tlb, vL))
        a("s_lshl_b32 s52, s2, 7")
        a.vmem("buffer_load_dword v%d, v63, s[%d:%d], s52 offen %s" % (vPL, rWO, rWO + 3, SC), "pf")

def build():
    a = Asm()
    a.raw("; @launch grid=(256,1,1) block=(256,1,1) lds=%d" % LDS_BYTES)
    a.raw('.amdgcn_target "amdgcn-amd-amdhsa--gfx950"')
    a.raw(".text")
    kernel_begin(a, NAME)
    a("s_cmp_ge_u32 s2, 256")
    a("s_cbranch_scc1 L_end")
    a("s_load_dwordx16 s[4:19], s[0:1], 0")
    a("s_load_dwordx4 s[20:23], s[0:1], 64")
    code_prefetch(a, True)
    if CFG.stamp:
        for i in range(16): a("s_mov_b32 s%d, 0" % (84 + i))
        a("s_memtime s[100:101]" if CFG.clk else "s_memrealtime s[100:101]")
    a("v_and_b32 v%d, 63, v0" % vL)
    a("v_lshrrev_b32 v1, 6, v0")
    a("v_cmp_eq_u32 vcc, 0xc0, v0")
    a("v_readfirstlane_b32 s%d, v1" % sWAVE)
    a("v_mov_b32 v1, 0x%x" % OOB)
    a("s_lshr_b32 s%d, s2, 6" % sC)
    a("v_cndmask_b32 v%d, v1, v%d, vcc" % (vFS, vL))
    a("v_and_b32 v1, 31, v0")
    a("v_lshlrev_b32 v%d, 2, v1" % vFP)
    if CFG.mapping == 0:
        a("s_and_b32 s%d, s2, 7" % sXG)
        a("s_bfe_u32 s%d, s2, 0x30003" % sI)
    elif CFG.mapping == 1:
        a("s_and_b32 s%d, s2, 3" % sXG)
        a("s_bfe_u32 s52, s2, 0x10003")
        a("s_lshl1_add_u32 s%d, s%d, s52" % (sXG, sXG))
        a("s_and_b32 s%d, s2, 4" % sI)
        a("s_bfe_u32 s52, s2, 0x20004")
        a("s_add_u32 s%d, s%d, s52" % (sI, sI))
    elif CFG.mapping == 4:
        a("s_and_b32 s%d, s2, 3" % sXG)
        a("s_bfe_u32 s52, s2, 0x10003")
        a("s_lshl1_add_u32 s%d, s%d, s52" % (sXG, sXG))
        a("s_bfe_u32 s%d, s2, 0x20004" % sI)
        a("s_bfe_u32 s52, s2, 0x10002")
        a("s_lshl1_add_u32 s%d, s%d, s52" % (sI, sI))
    a("s_mul_i32 s%d, s%d, %d" % (sROT, sC, CFG.rotc))
    a("s_add_u32 s%d, s%d, s%d" % (sROT, sROT, sI))
    if CFG.mapping != 0 and CFG.rotc:
        a("s_and_b32 s52, s%d, 1" % sXG)
        a("s_add_u32 s%d, s%d, s52" % (sROT, sROT))
    a("s_cmp_ge_u32 s%d, 9" % sROT)
    a("s_cselect_b32 s52, 9, 0")
    a("s_sub_u32 s%d, s%d, s52" % (sROT, sROT))
    a("s_lshl_b32 s52, s%d, 14" % sI)
    a("s_lshl_b32 s49, s%d, 12" % sWAVE)
    a("s_add_u32 s52, s52, s49")
    a("v_lshl_add_u32 v%d, v%d, 4, s52" % (vX, vL))
    a("s_lshl_b32 s%d, s%d, 10" % (sFI, sI))
    a("s_add_u32 s%d, s%d, 0x%x" % (sFI, sFI, FLG_OFF))
    stats_load(a)
    a("s_mov_b32 s%d, 0x%x" % (rX + 2, 2048 * 1152))
    a("s_mov_b32 s%d, 0x20000" % (rX + 3))
    a("s_waitcnt lgkmcnt(0)")
    if CFG.stamp: a("s_mov_b32 s84, s100")
    a("s_mov_b32 s%d, s%d" % (rX, sX))
    a("s_and_b32 s%d, s%d, 0xffff" % (rX + 1, sX + 1))
    stats_issue(a)
    a("s_add_u32 s60, s%d, 0x%x" % (sWS, FL(0)))
    a("s_addc_u32 s61, s%d, 0" % (sWS + 1))
    a("s_load_dword s%d, s[60:61], 0" % sTOK)
    stamp(a, 6, 1)
    srd(a, rWS, sWS, WS_BYTES)
    vm0 = list(a.vm)
    a("s_cmp_eq_u32 s%d, 3" % sC)
    a("s_cbranch_scc1 L_attn")
    path_mlp(a)
    a.label("L_final")
    stamp_out(a)
    a.label("L_end")
    a("s_endpgm")
    a.vm = vm0; a.lg = []
    a.label("L_attn")
    path_attn(a)
    a("s_branch L_final")
    a.lines += LATER
    a.label("L_code_end")
    a("s_endpgm")
    a.raw('.section .rodata,"a"')
    a.raw(kernel_desc(NAME, 512, 256))
    return a.text()

if __name__ == "__main__":
    args = sys.argv[1:]
    out = "parallel_sum__linear_attn_block__glu_gated_swiglu__prompt.s"
    for x in args:
        if x == "--stamp": CFG.stamp = True
        elif x == "-v": VERB = True
        elif x == "--sc1": SC = "sc1"
        elif x == "--dsc1": DFL = "sc1"
        elif x == "--dnt": DFL = "nt"
        elif x == "--osc": OSC = " sc1"
        elif x == "--ont": OSC = " nt"
        elif "=" in x:
            k, v = x.split("="); assert hasattr(CFG, k), k; setattr(CFG, k, float(v) if "." in v else int(v))
        else: out = x
    txt = build()
    if CFG.abl:
        import re
        L = txt.split("\n"); i0 = next(i for i, l in enumerate(L) if "v_mfma" in l); i1 = L.index("L_final:")
        def drop(l):
            l = l.strip()
            if CFG.abl & 1 and re.match(r"v_(mul_f32|exp_f32|rcp_f32) v\d+, v\d+", l) and int(re.search(r"v(\d+)", l.split(" ")[1]).group(1)) < 128: return True
            if CFG.abl & 1 and re.match(r"v_fma_f32", l): return True
            if CFG.abl & 2 and l.startswith("ds_read_b64_tr_b16"): return True
            if CFG.abl & 4 and l.startswith("v_mfma_f32_16x16x16"): return True
            if CFG.abl & 8 and l.endswith(" lds"): return True
            if CFG.abl & 16 and l.startswith("buffer_load_dwordx4 a["): return True
            return False
        txt = "\n".join(l for i, l in enumerate(L) if not (i0 < i < i1 and drop(l)))
    if DFL: txt = txt.replace(" lds\n", " %s lds\n" % DFL)
    open(out, "w").write(txt)
    if CFG.stamp: open(out + ".slow", "w").write("\n".join(NSLOW))
```

```python
import sys, math
from lib import *

NAME = "parallel_sum__linear_attn_block__glu_gated_swiglu__prompt_kernel"
LOG2E = 1.4426950408889634
KSTRIDE = 131072
H_OFF = 18 * KSTRIDE
KVP_OFF = H_OFF + 164 * KSTRIDE
PART_OFF = KVP_OFF + 8 * 8 * 4 * 6 * 1024
PSL = 18 * KSTRIDE
FLG_OFF = 0x80000
ST_OFF = 0
CS_OFF = 0x10000
WS_BYTES = 268435456
OOB = 0x7f000000
LDS_BYTES = 163840
SC = "sc0 sc1"
OSC = ""
DFL = ""
def FL(line): return FLG_OFF + 128 * line
FKV, FC, FP, FO, FH = 56, 96, 128, 192, 256

sX, sWQKV, sWO, sW1, sW3, sW2, sOUT, sDBG, sWS = 4, 6, 8, 12, 14, 16, 18, 20, 22
rWS, rWA, rX, rW2, rWO = 24, 28, 36, 40, 44
sWAVE, sI, sXG, sC, sTOK = 48, 50, 51, 78, 79
sFI = 80
sXo, sWo, sXL, sOne2, sCSB, sFC, sROT = 32, 33, 34, 35, 82, 83, 81
MF = "v_mfma_f32_16x16x32_bf16"
MF16 = "v_mfma_f32_16x16x16_bf16"
WSR = "s[%d:%d]" % (rWS, rWS + 3)
XR = "s[%d:%d]" % (rX, rX + 3)
ONE2 = 0x3f803f80

VERB = False
class Cfg:
    stamp = False
    clk = 0
    mapping = 0
    split = 12
    kseq = 5
    sset = 0
    swave = 0
    pf = 4
    rotc = 0
    vmrate = 85
    epirate = 4.5
    age = 16
    window = 60
    defer = 10
    cpf = 4
    afirst = 0
    af = 6
    ap = 8
    ka = 5
    s1 = 3
    p1 = 13
    c1 = 17
    s3 = 0
    pc1 = 9
    kc1 = 5
    rsv = 30
    hgap = 0
    mid = 0
    pmid = 3
    fsat = 56
    early = 30
    findl = 5
    abl = 0
    tlb = 0
    ah = 4
    osplit = 1
    po = 5
    lean = 2
    boost = 3
    one = 0
    slp0 = 8
    slp1 = 2
    sum0 = 0
    hw = 1.0
    hrot = 2
    xlead = 2
    cs0 = 4
    cs1 = 4
    cs2 = 18
    cj1 = 8
    cj2 = 3
    pfw = 0
    pfa = 14
    pfs = 3
    init = 0
    cmode = 1
    cdel = 3
    sigd = 7
    gate1 = 35
    c00 = 16
    sig0 = 9
    p0 = 11
    k0 = 6
    gate2 = 68
    dbgwg = -1
    sbase = 0
    sstep = 2
    exs = 5
    edl = 56
    s4 = 6
    p4 = 8
    c4 = 9
    ofirst = 1
    relper = 4
    pfat = -2
CFG = Cfg()

def stamp(a, i, sset=0):
    if CFG.stamp and (sset == CFG.sset or i in (3, 15)):
        a("s_memtime s[100:101]" if CFG.clk else "s_memrealtime s[100:101]")
        a.lg0()
        a("s_mov_b32 s%d, s100" % (84 + i))
def stamp_out(a):
    if not CFG.stamp: return
    a("s_waitcnt vmcnt(0)")
    stamp(a, 15)
    l = a.newlabel("Lst")
    a("s_cmp_lg_u32 s%d, %d" % (sWAVE, CFG.swave))
    a("s_cbranch_scc1 %s" % l)
    a("s_lshl_b32 s3, s2, 6")
    a("s_add_u32 s3, s3, 0xF000000")
    a("v_mov_b32 v1, s3")
    a("s_mov_b64 exec, 1")
    for i in range(8):
        a("v_mov_b32 v2, s%d" % (84 + 2 * i))
        a("v_mov_b32 v3, s%d" % (85 + 2 * i))
        a("global_store_dwordx2 v1, v[2:3], s[%d:%d] offset:%d" % (sWS, sWS + 1, i * 8))
    if CFG.dbgwg >= 0:
        a("s_cmp_lg_u32 s2, %d" % CFG.dbgwg)
        a("s_cbranch_scc1 %s" % l)
        a("s_load_dwordx2 s[20:21], s[0:1], 64")
        a("s_waitcnt lgkmcnt(0)")
        a("v_mov_b32 v1, 0")
        for i in range(16):
            a("s_sub_u32 s3, s%d, s84" % (84 + i)) if i != 1 else a("s_mov_b32 s3, s85")
            a("v_mov_b32 v2, s3")
            a("global_store_dword v1, v2, s[20:21] offset:%d" % (4 * i))
    a.label(l)

vL, vX, vFS, vFP, vTK, vPL = 174, 175, 216, 217, 218, 219

NOPS = {"w": 2, "x": 8, "xr": 8, "csa": 2, "cs": 1, "h": 4, "w2": 2, "h2": 4, "part": 4, "ex": 8, "er": 8, "o": 12, "stf": 4}
CUR = [None]
def chk(a, tag, **over):
    k = tag if isinstance(tag, str) else tag[0]
    n = over.get(k, NOPS.get(k, 1))
    S_ = CUR[0]
    if a.cnt.get(tag, 0) < n and S_ is not None:
        if VERB: print("LATE", tag, a.cnt.get(tag, 0), file=sys.stderr)
        while a.cnt.get(tag, 0) < n:
            if k in ("x", "w", "w2", "h2"):
                assert not S_.inbar or S_.mem, ("needs space behind this barrier", tag)
                S_.refill()
                q = S_.mem
            elif k in ("h", "part"):
                S_.flush_epi(); continue
            else: q = S_.extra
            assert q, ("cannot produce", tag)
            q.pop(0)[1]()
    a.expect(tag, n)
def wvm(a, tags, **over):
    for t in tags: chk(a, t, **over)
    a.wait_vm(lambda t: t in tags)
def wlg(a, tags, **over):
    for t in tags: chk(a, t, **over)
    a.wait_lg(lambda t: t in tags)

def ityp(code):
    out = ""
    for l in code.split("\n"):
        op = l.strip().split(" ")[0]
        if not op: continue
        if op == "s_waitcnt": continue
        if op.startswith("s_"): out += "S"
        elif op.startswith(("v_exp", "v_rcp", "v_sqrt")): out += "T"
        elif op.startswith("v_"): out += "V"
        elif op.startswith("ds_read"): out += "D"
        elif op.startswith("ds_write"): out += "X"
        elif op.startswith("buffer_store_dwordx"): out += "O"
        else: out += "M"
    return out
def I(a, s, c=1):
    def fn(): a(s)
    fn.code = s
    return (ityp(s), fn)
def Q(a, code):
    out = []; ls = [l.strip() for l in code.split("\n") if l.strip()]
    i = 0
    while i < len(ls):
        grp = [ls[i]]
        if ls[i].startswith(("s_cmp", "s_bitcmp")):
            while i + 1 < len(ls) and ls[i + 1].startswith(("s_cmov", "s_cselect")):
                i += 1; grp.append(ls[i])
        out.append(I(a, "\n".join(grp), len(grp)))
        i += 1
    return out
def VM(a, fmt, tag=None, w=1.0):
    def fn(): a.vmem(fmt() if callable(fmt) else fmt, tag)
    fn.vm = w
    return (ityp(fmt), fn)
def run(fns):
    for c, fn in fns: fn()

def signal(a, soff_code, tag=None):
    return [I(a, soff_code),
            ("M", lambda: a.vmem("buffer_store_dword v%d, v%d, %s, s49 offen %s" % (vTK, vFS, WSR, SC), tag))]

LATER = []
NSLOW = []
def slow_path(a, body, name):
    ls, lb, lp = a.newlabel("Lslow"), a.newlabel("Lback"), a.newlabel("Lspin")
    a("s_cbranch_scc1 %s" % ls)
    a.label(lb)
    b = Asm()
    b.label(ls)
    b("s_mov_b32 s59, 40000")
    if CFG.stamp:
        NSLOW.append(name)
        b("s_or_b32 s85, s85, 0x%x" % (1 << (len(NSLOW) - 1)))
    b.label(lp)
    b("s_sleep 1")
    body(b)
    b("s_cbranch_scc0 %s" % lb)
    b("s_sub_u32 s59, s59, 1")
    b("s_cmp_lg_u32 s59, 0")
    b("s_cbranch_scc1 %s" % lp)
    b("s_branch %s" % lb)
    LATER.extend(b.lines)
def poll_issue(a, soff_code, tag, dst=None, off=None):
    return [I(a, soff_code),
            ("M", lambda: a.vmem("buffer_load_dword v%d, v%d, %s, s49 offen %s" % (dst or vPL, off or vFP, WSR, SC), tag))]
def poll_check(a, soff_code, tag, mask, dst=None, off=None):
    def f1():
        wvm(a, [tag])
        a("v_cmp_eq_u32 vcc, s%d, v%d" % (sTOK, dst or vPL))
    def f2():
        d = dst or vPL
        a("s_andn2_b32 s61, %s, vcc_lo" % mask)
        def body(b):
            b(soff_code)
            b("buffer_load_dword v%d, v%d, %s, s49 offen %s" % (d, off or vFP, WSR, SC))
            b("s_waitcnt vmcnt(0)")
            b("v_cmp_eq_u32 vcc, s%d, v%d" % (sTOK, d))
            b("s_andn2_b32 s61, %s, vcc_lo" % mask)
        slow_path(a, body, str(tag))
    return [("SV", f1), ("SS", f2)]
def poll_now(a, soff_code, mask):
    tag = ("poll", a.newlabel())
    run(poll_issue(a, soff_code, tag))
    run(poll_check(a, soff_code, tag, mask))

def stats_load(a):
    a("s_lshl_b32 s52, s2, 2")
    a("s_add_u32 s52, s52, s%d" % sWAVE)
    a("v_lshrrev_b32 v40, 5, v%d" % vL)
    a("v_lshl_add_u32 v40, s52, 1, v40")
    a("v_mul_u32_u24 v41, 1152, v40")
    a("v_and_b32 v42, 31, v%d" % vL)
    a("v_lshl_add_u32 v43, v42, 4, v41")
    a("v_cmp_gt_u32 vcc, 8, v42")
    a("v_mov_b32 v45, 0x%x" % OOB)
    a("v_lshlrev_b32 v40, 4, v40")
    a("v_cndmask_b32 v44, v45, v43, vcc")
    a("v_cmp_eq_u32 vcc, 0, v42")
def stats_issue(a):
    a.vmem("buffer_load_dwordx4 v[0:3], v43, %s, 0 offen" % XR, "ln")
    a.vmem("buffer_load_dwordx4 v[4:7], v43, %s, 0 offen offset:512" % XR, "ln")
    a.vmem("buffer_load_dwordx4 v[8:11], v44, %s, 0 offen offset:1024" % XR, "ln")
    a("v_cndmask_b32 v40, v45, v40, vcc")
def stats_compute(a):
    a("s_mov_b32 s49, 0x%x" % ONE2)
    a("s_waitcnt lgkmcnt(0)")
    a("s_add_u32 s%d, s%d, 1" % (sTOK, sTOK))
    a("v_mov_b32 v%d, s%d" % (vTK, sTOK))
    a("v_mov_b32 v17, s%d" % sTOK)
    a("v_mov_b32 v19, s%d" % sTOK)
    a.wait_vm(lambda t: t == "ln")
    for r in range(12):
        a("v_dot2_f32_bf16 v12, v%d, s49, %s" % (r, "0" if r == 0 else "v12"))
        a("v_dot2_f32_bf16 v13, v%d, v%d, %s" % (r, r, "0" if r == 0 else "v13"))
    a("s_mov_b32 s49, %d" % ST_OFF)
    a("s_nop 1")
    for ror in (1, 2, 4, 8):
        a("v_add_f32_dpp v12, v12, v12 row_ror:%d row_mask:0xf bank_mask:0xf" % ror)
        a("v_add_f32_dpp v13, v13, v13 row_ror:%d row_mask:0xf bank_mask:0xf" % ror)
        a("s_nop 0")
    a("v_mov_b32 v14, v12")
    a("v_mov_b32 v15, v13")
    a("s_nop 1")
    a("v_permlane16_swap_b32 v12, v14")
    a("v_permlane16_swap_b32 v13, v15")
    a("s_nop 0")
    a("v_add_f32 v12, v12, v14")
    a("v_add_f32 v13, v13, v15")
    a("v_mul_f32 v12, %s, v12" % f32(1.0 / 576))
    a("v_mul_f32 v13, %s, v13" % f32(1.0 / 576))
    a("v_fma_f32 v13, -v12, v12, v13")
    a("v_max_f32 v13, 0, v13")
    a("v_cvt_pk_bf16_f32 v13, v13, v13")
    a("v_cvt_pk_bf16_f32 v16, -v12, -v12")
    a("v_and_b32 v13, 0xffff0000, v13")
    a("v_add_f32 v13, %s, v13" % f32(1e-5))
    a("v_cvt_pk_bf16_f32 v13, v13, v13")
    a("v_and_b32 v13, 0xffff0000, v13")
    a("v_sqrt_f32 v13, v13")
    a("s_nop 0")
    a("v_cvt_pk_bf16_f32 v13, v13, v13")
    a("v_and_b32 v18, 0xffff0000, v13")
    a.vmem("buffer_store_dwordx4 v[16:19], v40, %s, s49 offen %s" % (WSR, SC), "st")

def lane_fields(a, vq, vrow, vc):
    a("v_lshrrev_b32 v%d, 4, v%d" % (vq, vL))
    a("v_bfe_u32 v%d, v%d, 2, 3" % (vrow, vL))
    a("v_and_b32 v%d, 3, v%d" % (vc, vL))

def dma_lane_off(a, vD, t0, t1, rowbytes, perm=False):
    return [I(a, "v_lshrrev_b32 v%d, 3, v%d" % (t0, vL)),
            I(a, "v_and_b32 v%d, 6, v%d" % (t1, t0)),
            I(a, "v_xor_b32 v%d, v%d, v%d" % (t1, t1, vL)),
            I(a, "v_and_b32 v%d, 7, v%d" % (t1, t1))] + \
           ([I(a, "v_and_b32 v%d, 4, v%d" % (vD, t0)), I(a, "v_add_u32 v%d, v%d, v%d" % (t0, t0, vD))] if perm else []) + [
            I(a, "v_mul_u32_u24 v%d, %d, v%d" % (t0, rowbytes, t0)),
            I(a, "v_lshl_add_u32 v%d, v%d, 4, v%d" % (vD, t1, t0))]

RA = 160
def tr_addrs(a, t0, t1, t2):
    lane_fields(a, t0, t1, t2)
    a("v_lshrrev_b32 v%d, 1, v%d" % (t0, t0))
    a("v_lshlrev_b32 v%d, 10, v%d" % (t0, t0))
    a("v_lshl_add_u32 v%d, v%d, 7, v%d" % (t0, t1, t0))
    a("v_lshl_add_u32 v%d, v%d, 3, v%d" % (t0, t2, t0))
    a("v_lshrrev_b32 v%d, 1, v%d" % (t1, t1))
    for u in range(4):
        a("v_xor_b32 v%d, %d, v%d" % (t2, u, t1))
        a("v_lshl_add_u32 v%d, v%d, 5, v%d" % (RA + u, t2, t0))
        a("v_add_u32 v%d, 0x10000, v%d" % (RA + 4 + u, RA + u))
        a("v_add_u32 v%d, 0x20000, v%d" % (RA + 8 + u, RA + u))

class XStage:
    def __init__(self, a, XO, XA, base, R, reg):
        self.a, self.XO, self.XA, self.base, self.R, self.reg = a, XO, XA, base, R, reg
    def setup_dma(self, t0, t1):
        a = self.a
        a("v_lshrrev_b32 v%d, 3, v%d" % (t0, vL))
        a("v_lshrrev_b32 v%d, 1, v%d" % (t1, t0))
        a("v_xor_b32 v%d, v%d, v%d" % (t1, t1, vL))
        a("v_and_b32 v%d, 7, v%d" % (t1, t1))
        a("s_lshl_b32 s52, s%d, 8" % sI)
        a("s_lshl_b32 s49, s%d, 6" % sWAVE)
        a("s_add_u32 s52, s52, s49")
        a("v_add_u32 v%d, s52, v%d" % (t0, t0))
        a("v_mul_u32_u24 v%d, 1152, v%d" % (t0, t0))
        a("v_lshl_add_u32 v%d, v%d, 4, v%d" % (self.XO, t1, t0))
        a("v_xor_b32 v%d, 64, v%d" % (self.XO + 1, self.XO))
        a("v_add_u32 v%d, %d, v%d" % (self.XO + 2, 2 * (8 * 1152 - 1024), self.XO))
        a("v_add_u32 v%d, %d, v%d" % (self.XO + 3, 3 * (8 * 1152 - 1024), self.XO + 1))
        a("v_add_u32 v%d, %d, v%d" % (self.XO + 1, 8 * 1152 - 1024, self.XO + 1))
        a("s_mul_i32 s%d, s%d, %d" % (sXL, sWAVE, self.R * 8192))
        a("s_add_u32 s%d, s%d, %d" % (sXL, sXL, self.base))
        a("s_lshl_b32 s%d, s%d, 7" % (sXo, sROT))
    def setup_read(self, t0, t1, t2):
        a = self.a
        a("v_and_b32 v%d, 15, v%d" % (t0, vL))
        a("v_lshrrev_b32 v%d, 1, v%d" % (t1, t0))
        a("v_lshrrev_b32 v%d, 4, v%d" % (t2, vL))
        a("v_xor_b32 v%d, v%d, v%d" % (t1, t1, t2))
        a("v_lshlrev_b32 v%d, 7, v%d" % (t0, t0))
        a("v_lshl_add_u32 v%d, v%d, 4, v%d" % (t0, t1, t0))
        a("v_add_u32 v%d, s%d, v%d" % (self.XA, sXL, t0))
        a("v_xor_b32 v%d, 64, v%d" % (self.XA + 1, self.XA))
    def dma(self, p):
        a = self.a
        fns = []
        if p >= self.R: fns.append(("S", lambda: wlg(a, [("xr", p - self.R)])))
        for hf in range(2):
            fns.append(I(a, "s_add_u32 m0, s%d, %d" % (sXL, (p % self.R) * 8192 + hf * 4096)))
            fns.append(I(a, "s_add_u32 s54, s%d, %d" % (sXo, hf * 32 * 1152)))
            for b in range(4):
                fns.append(VM(a, "buffer_load_dwordx4 v%d, %s, s54 offen offset:%d lds" % (self.XO + b, XR, b * 1024), ("x", p)))
        fns.append(I(a, "s_add_u32 s%d, s%d, 128\ns_cmp_ge_u32 s%d, 1152\ns_cmov_b32 s%d, 0" % (sXo, sXo, sXo, sXo), 3))
        return fns
    def job(self, p):
        return ("x", lambda: p < self.R or self.a.cnt.get(("xr", p - self.R), 0) == 8, lambda: self.dma(p))
    def reads(self, p):
        a = self.a
        fns = [("S", lambda: wvm(a, [("x", p)]))]
        for e in range(2):
            for tt in range(4):
                k, b = self.reg(2 * p + e, tt)
                fns.append(("D", lambda k=k, b=b, e=e, tt=tt: a.lds("ds_read_b128 %s, v%d offset:%d" % (R(k, b, 4), self.XA + e, (p % self.R) * 8192 + tt * 2048), ("xr", p))))
        return fns

class Stream:
    def __init__(self, a, kind, base):
        self.a, self.kind, self.base = a, kind, base
        self.slots = []; self.ring = []
        self.nring = 0
        self.next_rd = 0
        self.epi = []; self.deadline = 0; self.epiP = None; self.hold = 0; self.edone = {}; self.short = False
        self.extra = []
        self.inbar = False
        CUR[0] = self
        self.vmacc = 1.0; self.vmrate = CFG.vmrate / 100.0
        self.jobs = []; self.mem = []
        self.pos = 0
    def refill(self):
        if self.mem: return
        blocked = set()
        for j, (cl, ready, make) in enumerate(self.jobs):
            if cl in blocked: continue
            if len(self.a.vm) <= 50 and ready():
                self.mem = make(); self.jobs.pop(j); return
            blocked.add(cl)
    def head(self, q):
        if q and "\n" in getattr(q[0][1], "code", "") and not getattr(q[0][1], "atom", False):
            parts = Q(self.a, q[0][1].code)
            for c, f in parts: f.atom = True
            q[0:1] = parts
        return q[0] if q else None
    def add(self, rd, mf):
        self.slots.append((rd, mf))
        self.ring.append(self.nring if rd else None)
        if rd: self.nring += 1
    def cur_ring(self, s):
        while s < len(self.slots) and self.ring[s] is None: s += 1
        return self.ring[s] if s < len(self.slots) else self.nring
    def read_limit(self, s):
        return self.cur_ring(s) + 4
    def pending_reads(self, lim):
        out = []
        while self.next_rd < len(self.slots):
            n = self.next_rd
            if self.ring[n] is None: self.next_rd += 1; continue
            if self.ring[n] > lim: break
            out += self.slots[n][0](self.kind, self.base + 4 * (self.ring[n] % 8), ("f", self.ring[n]))
            self.next_rd += 1
        return out
    def prime(self): run(self.pending_reads(self.cur_ring(self.pos) + 3))
    def set_epi(self, items, deadline, hold=0, ordered=True):
        assert not self.epi
        ops = []
        for n, it in enumerate(items):
            deps = set()
            if ordered:
                if n: deps.add(n - 1)
            else:
                rd, wr = set(it[2]), set(it[3])
                for m in range(n):
                    if (rd | wr) & set(items[m][3]) or wr & set(items[m][2]): deps.add(m)
            ops.append([it[0], it[1], deps, n])
        self.epi = ops; self.edone = {}; self.deadline = deadline; self.hold = self.pos + hold
    def epi_cost(self): return sum(2 if o[0] in "TMOX" and o[0] else len(o[0]) for o in self.epi)
    def epi_pick(self, fits, strict=True):
        if self.pos < self.hold or (strict and self.short): return None
        for o in self.epi[:CFG.window]:
            ok = True
            for d in o[2]:
                if d not in self.edone: ok = False; break
                t, at = self.edone[d]
                if (t == "T" or strict) and t in ("T", "V") and o[0] in ("T", "V") and self.a.n - at < 1: ok = False; break
            if ok and fits(o[0]): return o
        return None
    def epi_run(self, o):
        self.epi.remove(o); o[1](); self.edone[o[3]] = (o[0], self.a.n)
    def flush_epi(self):
        while self.epi:
            o = self.epi_pick(lambda t: True, False)
            if o is None: self.a("s_nop 0"); continue
            self.epi_run(o)
    def emit(self, pre=(), push=0):
        a = self.a
        s = self.pos
        rd, mf = self.slots[s]
        r = self.ring[s]
        if r is not None: a.wait_lg(lambda t: t == ("f", r))
        mfmas = mf(R(self.kind, self.base + 4 * (r % 8), 4) if r is not None else None)
        n = len(mfmas)
        must = list(pre) + (self.pending_reads(self.read_limit(s)) if n == 4 else [])
        self.short = n < 4
        force = 0
        if self.epi and s >= self.hold and (n == 4 or self.deadline - s <= 1):
            left = max(self.deadline - s, 1)
            force = self.epi_cost() - int((left - 1) * CFG.epirate)
            if left * CFG.epirate < self.epi_cost(): force = math.ceil(self.epi_cost() / left)
        if n == 4: self.vmacc = min(self.vmacc + self.vmrate, 2.0)
        cost0 = self.epi_cost()
        for g, m in enumerate(mfmas):
            a(m)
            st = {"pos": 0, "vec": False, "bar": False}
            def place(t, commit=False):
                pos, vec, bar = st["pos"], st["vec"], st["bar"]
                for c in t:
                    if c == "B": pos += 2; bar = True
                    elif c == "S": pos += 1
                    elif c == "D":
                        if vec or bar: return False
                        pos = max(pos, 1) + 1; vec = True
                    elif c == "V": pos = max(pos, 1) + 1; vec = True
                    elif c == "T":
                        pos = max(pos, 1) + 2; vec = True
                    elif c == "M":
                        if pos: return False
                        pos = 3; vec = True
                    elif c == "O":
                        if pos: return False
                        pos = 2; vec = True
                    elif c == "X":
                        if vec or pos > 1: return False
                        pos = 3; vec = True
                if pos > 3: return False
                if commit: st["pos"], st["vec"], st["bar"] = pos, vec, bar
                return True
            def take(lst):
                t, f = lst.pop(0); place(t, True); f()
                if getattr(f, "vm", False): self.vmacc -= f.vm
            free_q = n == 4 and not any(t == "B" for t, f in must)
            nd = sum(1 for t, f in must if t == "D")
            want_d = nd > 0 and (nd >= n - g or g % 2 == 0 or nd > (n - g) // 2)
            def heads():
                out = []
                if not any(t == "B" for t, f in must):
                    self.refill()
                    for lst in (self.mem, self.extra):
                        h = self.head(lst)
                        if h is None: continue
                        if lst is self.mem and getattr(h[1], "vm", False) and self.vmacc < 1: continue
                        out.append(lst)
                return out
            def drop_free():
                ch = True
                while ch:
                    ch = False
                    for lst in heads():
                        if lst[0][0] == "": take(lst); ch = True
                    o = self.epi_pick(lambda t: t == "") if free_q or not must or must[0][0] != "B" else None
                    if o: self.epi_run(o); ch = True
            while must and must[0][0] == "B":
                self.inbar = True; take(must); self.inbar = False
            st["w"] = False
            if g == n - 1 and n == 4:
                nx = self.cur_ring(s + 1)
                if ("f", nx) in a.lg and a.cnt.get(("f", nx), 0) % 2 == 0:
                    two = a.cnt.get(("f", nx + 1), 0) == 2
                    a.wait_lg(lambda t: t == ("f", nx) or (two and t == ("f", nx + 1))); st["w"] = True
            drop_free()
            done_heavy = False
            if not want_d and not (must and must[0][0] == "V"):
                for lst in heads():
                    if lst[0][0] in ("M", "O", "X") and place(lst[0][0]): take(lst); done_heavy = True; break
                if not done_heavy:
                    o = self.epi_pick(lambda t: t in ("O", "M", "X") and place(t))
                    if o: place(o[0], True); self.epi_run(o); done_heavy = True
            if not done_heavy:
                if st["w"]: place("S", True)
                if st["pos"] == 0:
                    for lst in heads():
                        if lst[0][0] == "S" or (lst[0][0] in ("SS", "SV") and not want_d): take(lst); break
                    else:
                        o = self.epi_pick(lambda t: t == "S")
                        if o: place("S", True); self.epi_run(o)
                    drop_free()
                if must and must[0][0] == "D" and want_d and place("D"): take(must)
                elif not want_d:
                    for lst in heads():
                        if lst[0][0] == "D" and place("D"): take(lst); break
                    else:
                        o = self.epi_pick(lambda t: t == "D" and place(t))
                        if o: place("D", True); self.epi_run(o)
            while True:
                drop_free()
                if must and must[0][0] == "V" and place("V"): take(must); continue
                for lst in heads():
                    if lst[0][0] and set(lst[0][0]) <= set("SVT") and place(lst[0][0]): take(lst); break
                else:
                    o = self.epi_pick(lambda t: t == "T" and place(t)) or self.epi_pick(lambda t: t in ("V", "S") and place(t))
                    if o is None: break
                    place(o[0], True); self.epi_run(o)
            want = force * (g + 1) / n
            while self.epi and cost0 - self.epi_cost() < want:
                o = self.epi_pick(lambda t: t in ("V", "T", "S", "") or g == n - 1, False)
                if o is None: break
                self.epi_run(o)
            if g == n - 1:
                while must: must.pop(0)[1]()
                k = push
                while k > 0 and self.head(self.extra): self.extra.pop(0)[1](); k -= 1
        self.pos += 1

def tr_read(a, off_fn, u):
    def rd(kind, reg, tag):
        off = off_fn()
        return [("D", lambda h=h: a.lds("ds_read_b64_tr_b16 %s, v%d offset:%d" % (R(kind, reg + 2 * h, 2), RA + 4 * (off >> 16) + u, (off & 0xffff) + h * 2048), tag)) for h in range(2)]
    return rd

WF = 128
HRING = 10
GORDER = [2, 1, 0]
def acc2(c, tt):
    m = c >> 1
    if c & 1: return ("a", 160 + 16 * m + 4 * tt)
    return ("v", (16 * m if m < 4 else 224 + 16 * (m - 4)) + 4 * tt)
def hr(st, tt): return A(16 * (st % HRING) + 4 * tt, 4)
sPX = 56
vEW, vER, vXP, vOU = 195, 196, 192, 193
sLS = 74
TS = [4, 5, 6, 10, 11, 20]
HB = {0: 12, 1: 13, 2: 62}
WB = {0: 14, 1: 15, 2: 3}
def rot_bases(a, other):
    if CFG.hrot == 2:
        a("s_add_u32 s61, s68, s%d" % other)
        a("s_mul_i32 s60, s61, 43")
        a("s_lshr_b32 s60, s60, 7")
        a("s_mul_i32 s60, s60, 3")
        a("s_sub_u32 s61, s61, s60")
    else: a("s_mov_b32 s61, s68")
    for k in range(3):
        if CFG.hrot:
            a("s_add_u32 s52, s61, %d" % k)
            a("s_cmp_ge_u32 s52, 3")
            a("s_cselect_b32 s60, 3, 0")
            a("s_sub_u32 s52, s52, s60")
        else: a("s_mov_b32 s52, %d" % k)
        a("s_mul_i32 s60, s52, %d" % (192 * 1152))
        a("s_add_u32 s%d, s63, s60" % WB[k])
        a("s_mul_i32 s60, s52, %d" % (6 * KSTRIDE))
        a("s_add_u32 s%d, s62, s60" % HB[k])

class P2:
    def __init__(self, a, steps, VO, VS, VX, atype):
        self.a = a; self.steps = steps; self.VO = VO; self.VS = VS; self.VX = VX; self.atype = atype
        self.loc = {}
        self.free = []
        self.visible = set()
        self.cur = 0
        NS, K = len(steps), (CFG.ka if atype else CFG.kseq)
        D = K if atype else CFG.defer
        self.order = [(st, c) for st in range(NS - K) for c in range(0 if st < NS - D else 2, 12)]
        self.seq0 = len(self.order)
        self.groups = []
        for keep, n in [((8, 10), K), ((4, 6), K)] + ([((0, 2), K)] if atype else [((2,), K), ((0,), D)]):
            self.order += [(st, c + 1) for st in range(NS - n, NS) for c in keep]
            e1 = len(self.order)
            self.order += [(st, c) for st in range(NS - n, NS) for c in keep]
            self.groups.append((keep, e1, len(self.order)))
        self.units = []
        for st, c in self.order:
            if (st, c >> 2) not in self.units: self.units.append((st, c >> 2))
    def setup_s(self):
        a = self.a
        srd(a, rW2, sW2, 4608 * 1152)
        srd(a, rWO, sWO, 576 * 1152)
        a("s_lshl_b32 s66, s%d, 11" % sWAVE)
    def setup_vo(self, t0, t1, half_code, sTile=sI):
        a = self.a
        return dma_lane_off(a, self.VO, t0, t1, 1152) + Q(a, """s_mul_i32 s52, s68, 384
            s_and_b32 s60, s{W}, 1
            s_mul_i32 s60, s60, {R16}
            s_add_u32 s52, s52, s60
            v_add_u32 v{VO}, s52, v{VO}
            v_add_u32 v{VO1}, {D}, v{VO}
            {HALF}
            s_lshl1_add_u32 s52, s{I}, s52
            s_mul_i32 s9, s52, 3
            s_add_u32 s9, s9, s68
            s_lshl_b32 s9, s9, 7
            s_add_u32 s9, s9, {FP}
            s_and_b32 s60, s{W}, 1
            s_lshl1_add_u32 s52, s52, s60
            s_lshl_b32 s52, s52, 12
            v_lshl_add_u32 v{VX}, v{L}, 4, s52""".format(W=sWAVE, R16=16 * 1152, VO=self.VO, VO1=self.VO + 1, D=8 * 1152 - 1024, HALF=half_code, FP=FL(FP), I=sTile, VX=self.VX, L=vL))
    def setup_special(self, t0, t1, t3):
        a = self.a
        for k in range(2):
            a("s_and_b32 s49, s%d, 1" % sWAVE)
            a("s_lshl_b32 s49, s49, 4")
            a("v_lshrrev_b32 v%d, 3, v%d" % (t0, vL))
            a("v_add3_u32 v%d, s49, v%d, %d" % (t0, t0, 8 * k))
            a("v_lshrrev_b32 v%d, 4, v%d" % (t1, t0))
            a("v_mul_u32_u24 v%d, 72, v%d" % (t1, t1))
            a("v_bfe_u32 v%d, v%d, 2, 2" % (t3, t0))
            a("v_lshl_add_u32 v%d, v%d, 4, v%d" % (t1, t3, t1))
            a("v_lshrrev_b32 v%d, 1, v%d" % (t3, t3))
            a("v_lshl_add_u32 v%d, v%d, 2, v%d" % (t1, t3, t1))
            a("v_and_b32 v%d, 3, v%d" % (t3, t0))
            a("v_add3_u32 v%d, v%d, v%d, 16" % (t1, t1, t3))
            a("v_sub_u32 v%d, v%d, v%d" % (t1, t1, t0))
            a("v_mul_u32_u24 v%d, 1152, v%d" % (t1, t1))
            a("v_add_u32 v%d, v%d, v%d" % (self.VS + k, self.VO + k, t1))
    def h_issue(self, st):
        a = self.a
        pl, row, kind = self.steps[st]
        fns = [I(a, "s_add_u32 s54, s%d, %d" % (HB[kind] if kind in HB else (7 if kind == "woa" else 64), pl * KSTRIDE))]
        for tt in range(4):
            fns.append(VM(a, "buffer_load_dwordx4 %s, v%d, %s, s54 offen offset:%d %s" % (hr(st, tt), self.VX, WSR, tt * 1024, SC), ("h2", st), CFG.hw))
        return fns
    def dma_issue(self, st, ln):
        a = self.a
        pl, row, kind = self.steps[st]
        r = rW2 if kind in HB else rWO
        vo = self.VS if kind == "wos" else self.VO
        sl = self.free.pop(0)
        self.loc[(st, ln)] = sl
        return [I(a, "s_add_u32 m0, s66, %d" % (sl * 8192)),
                I(a, "s_add_u32 s55, s%d, %d" % (WB[kind] if kind in WB else 65, row * 1152 + ([2, 0, 1][ln] if self.atype else ln) * 128))] + \
               ([I(a, "%s s55, s55, s%d" % (["s_add_u32", "s_sub_u32"][ln], sLS))] if ln < 2 and not self.atype else []) + [
                VM(a, "buffer_load_dwordx4 v%d, s[%d:%d], s55 offen lds" % (vo, r, r + 3), ("w2", st, ln)),
                VM(a, "buffer_load_dwordx4 v%d, s[%d:%d], s55 offen offset:1024 lds" % (vo + 1, r, r + 3), ("w2", st, ln))]
    def jobs(self, first, w_ok, h_ok):
        out = []; hs = set(range(first))
        for st, ln in self.units:
            if st < first: continue
            if st not in hs:
                hs.add(st)
                def mk(st=st):
                    self.hpos = CUR[0].pos
                    return self.h_issue(st)
                out.append(("h2", lambda st=st: st - HRING < self.cur and h_ok(st) and CUR[0].pos >= self.hpos + CFG.hgap, mk))
            out.append(("w2", lambda st=st: len(self.free) > self.reserve and w_ok(st), lambda st=st, ln=ln: self.dma_issue(st, ln)))
        return out
    reserve = 0
    hpos = -100
    def add_slots(self, S_):
        a = self.a
        self.s0 = len(S_.slots)
        fixed = set()
        for st, c in self.order:
            def rd(kind, reg, tag, st=st, c=c):
                assert (st, c >> 2) in self.visible, (st, c)
                off = self.loc[(st, c >> 2)] * 8192
                ra = RA + 4 * (off >> 16) + (c & 3)
                out = []
                if ra not in fixed:
                    fixed.add(ra); out.append(I(a, "v_xor_b32 v%d, s%d, v%d" % (ra, sPX, ra)))
                return out + tr_read(a, lambda: off, c & 3)(kind, reg, tag)
            def mf(w, st=st, c=c):
                return ["%s %s, %s, %s, %s" % (MF, R(*acc2(c, tt), 4), w, hr(st, tt), "0" if st == 0 else R(*acc2(c, tt), 4)) for tt in range(4)]
            S_.add(rd, mf)
    def exchange(self, g, tmp):
        a = self.a
        keep = self.groups[g][0]
        send = []; recv = []; fin = []
        def adj(q, reg, cur, want):
            if cur[0] != want: q.append(I(a, "v_add_u32 v%d, 0x%x, v%d" % (reg, (want - cur[0]) & 0xffffffff, reg))); cur[0] = want
        for k, (c, tt) in enumerate([(c, tt) for c in keep for tt in range(4)]):
            off = self.scratch[k >> 1] * 8192 + (k & 1) * 4096
            adj(send, vEW, self.ew, off & ~0xffff)
            send.append(("X", lambda c=c, tt=tt, off=off: a.lds("ds_write_b128 v%d, %s offset:%d" % (vEW, R(*acc2(c + 1, tt), 4), off & 0xffff), ("ex", g))))
            adj(recv, vER, self.er, off & ~0xffff)
            recv.append(("D", lambda k=k, off=off: a.lds("ds_read_b128 %s, v%d offset:%d" % (V(tmp + 4 * k, 4), vER, off & 0xffff), ("er", g))))
        for n, c in enumerate(keep):
            for tp in range(2):
                r0 = acc2(c, 2 * tp)[1]; t = tmp + 16 * n + 8 * tp
                for i in range(8): fin.append(I(a, "v_add_f32 v%d, v%d, v%d" % (r0 + i, r0 + i, t + i)) + ([r0 + i, t + i], [r0 + i]))
                for i in range(4): fin.append(I(a, "v_cvt_pk_bf16_f32 v%d, v%d, v%d" % (r0 + i, r0 + 2 * i, r0 + 2 * i + 1)) + ([r0 + 2 * i, r0 + 2 * i + 1], [r0 + i]))
                fin.append(VM(a, "buffer_store_dwordx4 %s, v%d, %s, s%d offen offset:%d %s" % (V(r0, 4), vXP, WSR, TS[c >> 1], tp * 1024, SC), ("part", g)) + ([r0, r0 + 1, r0 + 2, r0 + 3], []))
        return send, recv, fin
    def fin_setup(self):
        a = self.a
        code = """s_mul_i32 s75, s67, 36
            s_mul_i32 s52, s68, 12
            s_lshr_b32 s60, s{W}, 1
            s_add_u32 s52, s52, s60
            s_add_u32 s75, s75, s52
            s_lshl_b32 s75, s75, 16
            s_add_u32 s75, s75, {PART}
            """.format(W=sWAVE, PART=PART_OFF)
        if self.atype:
            for m in range(6): code += "s_add_u32 s%d, s75, %d\n" % (TS[m], ([2, 0, 1][m >> 1] * 4 + 2 * (m & 1)) * 65536)
        else:
            code += "s_lshl_b32 s60, s%d, 11\ns_and_b32 s61, s67, 1\ns_lshl_b32 s61, s61, 17\n" % sLS
            for m in range(6):
                code += "s_add_u32 s%d, s75, %d\n" % (TS[m], ((m >> 1) * 4 + 2 * (m & 1)) * 65536)
                if m >> 1 < 2: code += "%s s%d, s%d, s60\n" % (["s_add_u32", "s_sub_u32"][m >> 1], TS[m], TS[m])
                code += "%s s%d, s%d, s61\n" % (["s_add_u32", "s_sub_u32"][m & 1], TS[m], TS[m])
        code += """s_mul_i32 s60, s67, {PSL}
            s_sub_u32 s73, s{T0}, s60
            s_sub_u32 s75, s73, {PART}
            s_lshr_b32 s75, s75, 11
            v_lshlrev_b32 v194, 4, v{L}
            v_sub_u32 v{XP}, v{VX}, v194
            v_lshrrev_b32 v{OU}, 6, v{XP}
            v_lshrrev_b32 v{XP}, 1, v{XP}
            v_add_u32 v{XP}, v{XP}, v194
            s_lshl_b32 s52, s{W}, 10
            v_add_u32 v{EW}, s52, v194
            v_xor_b32 v{ER}, 0x800, v{EW}
            v_and_b32 v194, 15, v{L}
            v_add_u32 v{OU}, v{OU}, v194
            v_mul_u32_u24 v{OU}, 1152, v{OU}
            v_lshrrev_b32 v194, 4, v{L}
            v_lshl_add_u32 v{OU}, v194, 3, v{OU}
            s_mov_b32 s76, 0x3f80
            s_mov_b32 s77, 0x3f800000""".format(PSL=PSL, T0=TS[0], PART=PART_OFF, L=vL, XP=vXP, VX=self.VX, OU=vOU, W=sWAVE, EW=vEW, ER=vER)
        b_ = Asm(); srd(b_, rWA, sOUT, 2048 * 1152)
        q = Q(a, code + "\n" + "\n".join(b_.lines))
        for n in range(len(self.groups[-1][0])):
            for tt in range(4):
                q.append(I(a, "s_add_u32 s52, s75, %d" % (tt * 16 * 1152)))
                q.append(VM(a, "buffer_load_dwordx2 %s, v%d, %s, s52 offen offset:%d" % (V(XB + 8 * n + 2 * tt, 2), vOU, XR, 64 * n), "x3"))
        return q
    def main(self, S_, hooks, dead0):
        a = self.a
        NG = len(self.groups)
        seen = set()
        self.ew = [0]; self.er = [0]
        def psig(k): return signal(a, "s_lshl2_add_u32 s49, s67, s9\ns_add_u32 s49, s49, %d" % (32 * k))
        N = len(self.order)
        stepend = {}
        for s, (st, c) in enumerate(self.order[:self.seq0]): stepend[st] = s
        bars = {e - 4: None for e in stepend.values()}
        ev = {}
        tmp = [64, 96, 64, 80]
        t = 0
        for g, (keep, e1, e2) in enumerate(self.groups):
            n = len(keep)
            s_send = max(e1 + 2, t)
            s_bar = s_send + (CFG.exs if n == 2 else (CFG.exs + 1) // 2)
            s_fin = max(e2 + 2, s_bar + 2 * n + 1)
            ev.setdefault(s_send, []).append(("send", g)); ev.setdefault(s_bar, []).append(("recv", g)); ev.setdefault(s_fin, []).append(("fin", g))
            bars[s_send] = None; bars[s_bar] = None
            t = s_bar + 2 * n + 1
        assert max(s for s in ev if ("fin", NG - 1) not in ev[s]) < N, (ev, N)
        s_early = N - CFG.early
        if not self.atype: bars[s_early] = None
        s_mid = N - CFG.mid if CFG.mid and not self.atype else -1
        if s_mid > 0: bars[s_mid] = None
        keep = self.groups[-1][0]
        def pb(r, n):
            k = r * len(keep) + n
            return 96 + 8 * k if k < 4 else 32 + 8 * (k - 4)
        s_af = N - CFG.af if CFG.af and self.atype else -1
        if s_af > 0: bars[s_af] = None
        def ploads(r):
            q = []
            if self.atype: q.append(I(a, "s_add_u32 s58, s73, %d" % (r * PSL)))
            elif r == 0: q.append(I(a, "s_add_u32 s58, s73, %d" % (4 * PSL)))
            else: q += Q(a, "s_xor_b32 s52, s67, %d\ns_mul_i32 s52, s52, %d\ns_add_u32 s58, s73, s52" % (4 - r, PSL))
            for n in range(len(keep)):
                if n: q.append(I(a, "s_add_u32 s58, s58, %d" % (2 * 65536)))
                for tp in range(2):
                    q.append(VM(a, "buffer_load_dwordx4 %s, v%d, %s, s58 offen offset:%d %s" % (V(pb(r, n) + 4 * tp, 4), vXP, WSR, tp * 1024, SC), ("p", r)))
            return q
        last = {}
        for s, (st, c) in enumerate(self.order): last[(st, c >> 2)] = s
        freed = set()
        ex = {}
        cnt = lambda g: dict(ex=4 * len(self.groups[g][0]), er=4 * len(self.groups[g][0]), part=2 * len(self.groups[g][0]))
        first_bar = min(bars)
        for s, (st, c) in enumerate(self.order):
            if st not in seen:
                seen.add(st)
                self.cur = st
                if VERB: a.cm("HS p2 step %d" % st)
                if st < 11: stamp(a, 4 + st, 3)
                wvm(a, [("h2", st)])
                if st in (0, 8): stamp(a, 10 + st // 8)
            pre = []
            r = s - self.seq0
            if VERB and r > 0 and r % 10 == 0: a.cm("HS p2 tail %d" % r)
            if r >= 0 and r % 8 == 0 and r < 64: stamp(a, 4 + r // 8, 4)
            if r == -CFG.rsv: self.reserve = 4
            evs = ev.get(s, [])
            if s in bars:
                nxt = min([b for b in bars if b > s] + [N])
                lim = S_.read_limit(self.s0 + nxt - 1) - S_.ring[self.s0]
                need = []
                for st2, c2 in self.order[:lim + 1]:
                    u = (st2, c2 >> 2)
                    if u not in self.visible and u not in need: need.append(u)
                hk = hooks.get(st, {}) if r < 0 else {}
                tags = [("w2",) + u for u in need] + hk.get("bar", [])
                lg = []; ptags = []
                aft = list(hk.get("after", []))
                dead = [u for u in last if last[u] < s and u not in freed]
                newfree = [self.loc[u] for u in dead] + (dead0 if s == first_bar else [])
                for kind, g in evs:
                    if kind == "send" and g > 0: lg.append(("er", g - 1))
                    if kind == "recv": lg.append(("ex", g)); aft += ex[g][1]
                if s == s_early and not self.atype:
                    ptags.append(("part", 0)); aft += psig(0)
                if s == s_af:
                    ptags.append(("part", 1))
                    aft += psig(1) + poll_check(a, "s_mov_b32 s49, s9", "pla", "0xf") + ploads(0) + ploads(1) + ploads(2) + ploads(3)
                if s == s_mid:
                    ptags.append(("part", 1)); aft += psig(2)
                if tags or lg or ptags or aft or (newfree and S_.jobs):
                    def bar(tags=tags, lg=lg, ptags=ptags):
                        for t_ in lg: wlg(a, [t_], **cnt(t_[1]))
                        for t_ in ptags: wvm(a, [t_], **cnt(t_[1]))
                        wvm(a, tags)
                        a("s_barrier")
                    pre.append(("B", bar))
                    self.visible.update(need); freed.update(dead); self.free += newfree
                    S_.extra += aft
            for kind, g in evs:
                if kind == "send":
                    if g == 0:
                        self.scratch = sorted(self.free[:4]); self.free = self.free[4:]; self.reserve = 0
                        assert len(self.scratch) == 4
                    ex[g] = self.exchange(g, tmp[g])
                    S_.extra += ex[g][0]
                if kind == "recv" and g >= 2: chk(a, ("part", 0), **cnt(0))
                if kind == "fin":
                    wlg(a, [("er", g)], **cnt(g))
                    S_.flush_epi()
                    S_.set_epi(ex[g][2], S_.pos + CFG.findl * len(self.groups[g][0]), 0, False)
            if r == -CFG.fsat: S_.extra += self.fin_setup()
            if s_af > 0 and s == s_af - CFG.ap: S_.extra += poll_issue(a, "s_mov_b32 s49, s9", "pla")
            if s_mid > 0 and s == N - CFG.pmid:
                S_.extra += Q(a, "s_and_b32 s8, s67, 2\ns_lshr_b32 s8, 0xc0000, s8\ns_or_b32 s8, s8, 0x1000") + poll_issue(a, "s_mov_b32 s49, s9", "plm")
            S_.emit(pre)
        assert not S_.jobs and not S_.mem
        run(S_.extra); S_.extra = []
        S_.flush_epi()
        if VERB: a.cm("END")
        stamp(a, 12); stamp(a, 12, 4)
        CUR[0] = None
        if s_af < 0:
            wvm(a, [("part", NG - 2)], **cnt(NG - 2))
            a("s_barrier")
            run(psig(1))
        stamp(a, 13)
        done = [0, 1, 2, 3] if s_af > 0 else []
        if s_mid > 0:
            run(poll_check(a, "s_mov_b32 s49, s9", "plm", "s8"))
            done = [0, 1, 2]
            for r in done: run(ploads(r))
        vmkeep = [t_ for t_ in a.vm if t_ is not None and t_[0] == "p"]
        lw = a.newlabel("Lfw")
        if s_af < 0:
            a("s_cmp_lg_u32 s%d, 3" % sWAVE)
            a("s_cbranch_scc1 %s" % lw)
        if s_af > 0: a("s_nop 7")
        elif self.atype: spin(a, "s_mov_b32 s49, s9", "0xf", CFG.slp0)
        else:
            if s_mid > 0:
                a("s_xor_b32 s52, s67, 1")
                a("s_lshl_b32 s52, 0x100, s52")
            else:
                a("s_lshl_b32 s52, 0x100, s67")
                a("s_andn2_b32 s52, 0x1f00, s52")
            spin(a, "s_mov_b32 s49, s9", "s52", CFG.slp1)
            a("s_cmp_lg_u32 s2, 64")
            a("s_cbranch_scc1 %s" % lw)
            a("s_mov_b32 s49, 0x%x" % FL(0))
            a("buffer_store_dword v%d, v%d, %s, s49 offen" % (vTK, vFS, WSR))
        a.label(lw)
        if s_af < 0: a("s_barrier")
        stamp(a, 14)
        assert "x3" not in a.vm
        if s_af < 0: a.vm = vmkeep
        for r in range(4):
            if r not in done: run(ploads(r))
        wlg(a, [("er", NG - 1)], **cnt(NG - 1))
        for n, c in enumerate(keep):
            r0 = acc2(c, 0)[1]
            for i in range(0, 16, 2): a("v_pk_add_f32 %s, %s, %s" % (V(r0 + i, 2), V(r0 + i, 2), V(tmp[NG - 1] + 16 * n + i, 2)))
            for i in range(8):
                a("v_dot2_f32_bf16 v%d, v%d, s76, v%d" % (r0 + 2 * i, XB + 8 * n + i, r0 + 2 * i))
                a("v_dot2_f32_bf16 v%d, v%d, s77, v%d" % (r0 + 2 * i + 1, XB + 8 * n + i, r0 + 2 * i + 1))
        for r in range(4):
            a.wait_vm(lambda t_: t_ == ("p", r))
            for n, c in enumerate(keep):
                r0 = acc2(c, 0)[1]
                for i in range(8):
                    p = pb(r, n) + i
                    a("v_dot2_f32_bf16 v%d, v%d, s76, v%d" % (r0 + 2 * i, p, r0 + 2 * i))
                    a("v_dot2_f32_bf16 v%d, v%d, s77, v%d" % (r0 + 2 * i + 1, p, r0 + 2 * i + 1))
        a("s_nop 2")
        for n, c in enumerate(keep):
            r0 = acc2(c, 0)[1]
            for i in range(8): a("v_cvt_pk_bf16_f32 v%d, v%d, v%d" % (r0 + i, r0 + 2 * i, r0 + 2 * i + 1))
            for tt in range(4):
                a("s_add_u32 s52, s75, %d" % (tt * 16 * 1152))
                a("buffer_store_dwordx2 %s, v%d, s[%d:%d], s52 offen offset:%d" % (V(r0 + 2 * tt, 2), vOU, rWA, rWA + 3, 64 * n))

XB = 176

def hilo(a, v, t0, t1):
    return [I(a, "v_cvt_pk_bf16_f32 v%d, v%d, v%d" % (t0, v, v)),
            I(a, "v_and_b32 v%d, 0xffff0000, v%d" % (t0, t0)),
            I(a, "v_sub_f32 v%d, v%d, v%d" % (t1, v, t0)),
            I(a, "v_cvt_pk_bf16_f32 v%d, v%d, v%d" % (v, t0, t1))]

def stats_fetch(a, kind, base, vaddr):
    fns = [I(a, "s_mov_b32 s49, %d" % ST_OFF)]
    for tt in range(4):
        fns.append(("M", lambda tt=tt: a.vmem("buffer_load_dwordx4 %s, v%d, %s, s49 offen offset:%d %s" % (R(kind, base + 4 * tt, 4), vaddr, WSR, 256 * tt, SC), "stf")))
    return fns
def stats_check(a, kind, base, vaddr, t0):
    code = []
    for n, r in enumerate([base + 4 * tt + k for tt in range(4) for k in (1, 3)]):
        if kind == "a":
            code.append("v_accvgpr_read_b32 v%d, a%d" % (t0, r)); r = t0
        if n == 0: code.append("v_cmp_eq_u32 s[60:61], s%d, v%d" % (sTOK, r))
        else: code += ["v_cmp_eq_u32 vcc, s%d, v%d" % (sTOK, r), "s_and_b64 s[60:61], s[60:61], vcc"]
    def last():
        a("s_cmp_lg_u64 s[60:61], -1")
        def body(b):
            b("s_mov_b32 s49, %d" % ST_OFF)
            for tt in range(4):
                b("buffer_load_dwordx4 %s, v%d, %s, s49 offen offset:%d %s" % (R(kind, base + 4 * tt, 4), vaddr, WSR, 256 * tt, SC))
            b("s_waitcnt vmcnt(0)")
            b("\n".join(code))
            b("s_cmp_lg_u64 s[60:61], -1")
        slow_path(a, body, "stats")
    return [("S", lambda: wvm(a, ["stf"]))] + [I(a, c) for c in code] + [("SS", last)]
def stats_addr(a, dst):
    return [I(a, "v_and_b32 v%d, 15, v%d" % (dst, vL)),
            I(a, "s_lshl_b32 s52, s%d, 12\ns_lshl_b32 s60, s%d, 10\ns_add_u32 s52, s52, s60\nv_lshl_add_u32 v%d, v%d, 4, s52" % (sI, sWAVE, dst, dst), 4)]

def path_mlp(a):
    vD, TMP, HS, ONES, CSA, ST = 172, 176, 184, 188, 192, 200
    vCSR, vCSW, vCSL, vP2 = 220, 221, 222, 223
    def xreg(kk, tt):
        i = kk * 4 + tt
        return ("a", 4 * i) if i < 64 else ("v", 224 + 4 * (i - 64))
    def xr(kk, tt): return R(*xreg(kk, tt), 4)
    def acc(P, ti, tt): return 64 * P + 16 * ti + 4 * tt
    t0, t1, t2, t3 = 64, 65, 66, 67
    XS = XStage(a, TMP, TMP + 4, 8 * 8192, 3, xreg)
    WLIM = 576 * 9216
    loc = {}
    WT = [sWo, 4, 5, 6, 7, 10, 11, 20, 21]
    issued_at = {}; now = [0]
    free = list(range(8))
    def dma_issue(L, kk):
        sl = free.pop(0); loc[(L, kk)] = sl
        fns = [I(a, "s_add_u32 m0, s53, %d" % (sl * 8192)),
               I(a, "s_add_u32 s55, s%d, %d" % (WT[kk >> 1], (kk & 1) * 32 * 9216 + L * 128)),
               VM(a, "buffer_load_dwordx4 v%d, s[%d:%d], s55 offen lds" % (vD, rWA, rWA + 3), ("w", L, kk)),
               VM(a, "buffer_load_dwordx4 v%d, s[%d:%d], s55 offen offset:1024 lds" % (vD + 1, rWA, rWA + 3), ("w", L, kk))]
        if kk & 1 and L == 0 and kk < 17:
            o, n_ = WT[kk >> 1], WT[(kk >> 1) + 1]
            fns.append(I(a, "s_add_u32 s%d, s%d, %d\ns_cmp_ge_u32 s%d, %d\ns_cmov_b32 s%d, 0" % (n_, o, 64 * 9216, n_, WLIM, n_), 3))
        issued_at[(L, kk)] = now[0]
        return fns
    def c_issue(L, k):
        key = (10 + L, k)
        sl = free.pop(0); loc[key] = sl
        issued_at[key] = now[0]
        ld = lambda v, o: VM(a, "buffer_load_dwordx4 v%d, s[%d:%d], s55 offen%s lds" % (v, rWA, rWA + 3, o), ("w",) + key)
        if k < 2:
            return [I(a, "s_add_u32 m0, s53, %d" % (sl * 8192)), I(a, "s_add_u32 s55, s%d, %d" % (sWo, k * 32 * 9216 + L * 128)), ld(vD, ""), ld(vD + 1, " offset:1024")]
        return [I(a, "s_add_u32 m0, s53, %d" % (sl * 8192)), I(a, "s_lshr_b32 s55, s%d, 2" % sWo), I(a, "s_add_u32 s55, s55, %d" % (512 * 9216 + 128)), ld(vD, ""),
                I(a, "s_sub_u32 s55, s55, %d" % (16 * 9216 - 128)), ld(vD + 1, " offset:1024")]
    assert CFG.rotc == 0
    XS.setup_dma(t0, t1)
    run(XS.dma(0))
    a("s_cmp_ge_u32 s%d, 2" % sWAVE)
    a("s_cselect_b32 s%d, s%d, s%d" % (rWA, sW3, sW1))
    a("s_cselect_b32 s%d, s%d, s%d" % (rWA + 1, sW3 + 1, sW1 + 1))
    a("s_and_b32 s%d, s%d, 0xffff" % (rWA + 1, rWA + 1))
    a("s_mov_b32 s%d, %d" % (rWA + 2, WLIM))
    a("s_mov_b32 s%d, 0x20000" % (rWA + 3))
    a("s_mul_i32 s70, s%d, 3" % sXG)
    a("s_add_u32 s70, s70, s%d" % sC)
    run(dma_lane_off(a, vD, t0, t1, 9216, True))
    a("s_mul_i32 s52, s70, 384")
    a("s_and_b32 s49, s%d, 1" % sWAVE)
    a("s_mul_i32 s49, s49, %d" % (4 * 9216))
    a("s_add_u32 s52, s52, s49")
    a("v_add_u32 v%d, s52, v%d" % (vD, vD))
    a("v_add_u32 v%d, %d, v%d" % (vD + 1, 16 * 9216 - 1024, vD))
    a("s_lshl_b32 s53, s%d, 11" % sWAVE)
    a("s_mul_i32 s%d, s%d, %d" % (sWo, sROT, 64 * 9216))
    for kk in range(2 if CFG.lean else 4): run(dma_issue(0, kk))
    code_prefetch(a)
    if not CFG.lean: run(XS.dma(1))
    if CFG.init >= 1: run(c_issue(1, 0) + c_issue(1, 1) + c_issue(0, 2))
    if CFG.init >= 2: run(XS.dma(2))
    stamp(a, 4, 1)
    st_ = [(r, 32 * r, k) for r in range(1, 6) for k in range(3)]; so_ = [(0, 0, "wo"), (1, 36, "wo")][:2 - CFG.osplit]
    p2 = P2(a, st_[:12] + so_ + st_[12:] if CFG.ofirst else st_ + so_, vD, None, vCSR, False)
    XS.setup_read(t0, t1, t2)
    tr_addrs(a, t0, t1, t2)
    a("v_xor_b32 v%d, s%d, v%d" % (t2, sWAVE, t1))
    a("v_lshl_add_u32 v%d, v%d, 5, v%d" % (vCSR, t2, t0))
    a("s_mov_b32 s68, s%d" % sC)
    p2.setup_s()
    a("s_lshr_b32 s60, s%d, 1" % sWAVE)
    a("s_lshr_b32 s67, s%d, 1" % sXG)
    a("s_mul_i32 s%d, s60, 4128" % sPX)
    a("s_and_b32 s52, s67, 1")
    a("s_lshl_b32 s52, s52, 6")
    a("s_add_u32 s%d, s%d, s52" % (sPX, sPX))
    a("s_lshr_b32 s%d, s67, 1" % sLS)
    a("s_lshl_b32 s%d, s%d, 7" % (sLS, sLS))
    a("s_and_b32 s49, s%d, 6" % sXG)
    a("s_add_u32 s49, s49, s60")
    a("s_mul_i32 s62, s49, %d" % (18 * KSTRIDE))
    a("s_add_u32 s62, s62, %d" % H_OFF)
    a("s_mul_i32 s63, s49, %d" % (576 * 1152))
    a("s_mul_i32 s64, s49, %d" % (2 * KSTRIDE))
    a("s_add_u32 s64, s64, %d" % (H_OFF + 144 * KSTRIDE))
    a("s_mul_i32 s65, s49, %d" % (72 * 1152))
    a("s_mul_i32 s57, s70, %d" % (6 * KSTRIDE))
    a("s_add_u32 s57, s57, %d" % H_OFF)
    a("s_lshl_b32 s52, s%d, 7" % sXG)
    a("s_add_u32 s69, s52, s%d" % sFI)
    a("s_lshl2_add_u32 s69, s%d, s69" % sC)
    a("s_lshl_b32 s52, s49, 7")
    a("s_add_u32 s71, s52, s%d" % sFI)
    a("s_mul_i32 s%d, s70, 12288" % sCSB)
    a("s_add_u32 s%d, s%d, %d" % (sCSB, sCSB, CS_OFF))
    a("s_lshl_b32 s%d, s70, 7" % sFC)
    a("s_add_u32 s%d, s%d, 0x%x" % (sFC, sFC, FL(FC)))
    b_ = Asm(); rot_bases(b_, sI)
    late2 = Q(a, "\n".join(b_.lines))
    late = []
    L_ = lambda s, c=1: late.append(I(a, s, c))
    u0, u1 = CSA, CSA + 1
    L_("v_and_b32 v%d, 15, v%d" % (u0, vL))
    L_("v_lshlrev_b32 v%d, 4, v%d" % (u0, u0))
    L_("v_lshrrev_b32 v%d, 4, v%d" % (u1, vL))
    L_("v_lshlrev_b32 v%d, 4, v%d" % (vCSL, vL))
    L_("v_lshl_add_u32 v%d, v%d, 10, v%d" % (vCSW, u1, u0))
    L_("s_lshr_b32 s52, s%d, 1\ns_lshl_b32 s52, s52, 11\ns_and_b32 s60, s%d, 1\ns_lshl_b32 s60, s60, 3\ns_add_u32 s52, s52, s60\n"
       "s_lshr_b32 s60, s%d, 1\ns_lshl_b32 s60, s60, 8\ns_add_u32 s52, s52, s60\ns_and_b32 s60, s%d, 1\ns_lshl2_add_u32 s52, s60, s52\n"
       "v_add_u32 v%d, s52, v%d" % (sWAVE, sWAVE, sI, sI, vCSW, vCSW), 11)
    L_("v_cmp_gt_u32 vcc, 32, v%d\nv_mov_b32 v%d, 0x%x\ns_nop 0\nv_cndmask_b32 v%d, v%d, v%d, vcc" % (vL, u0, OOB, vCSW, u0, vCSW), 4)
    L_("s_cmp_eq_u32 s%d, 7\ns_cselect_b32 s%d, 0x%x, 0" % (sI, sOne2, ONE2), 2)
    CSL, ONL, ONH, ON7 = [224, 240, 248], HS, 232, 236
    for i in range(4):
        late.insert(0, I(a, "v_mov_b32 v%d, 0x%x" % (ONES + i, ONE2)))
        L_("v_mov_b32 v%d, s%d" % (ON7 + i, sOne2))
    for i in range(4):
        L_("v_cndmask_b32 v%d, 0, v%d, vcc" % (ONL + i, ONES))
        L_("v_xor_b32 v%d, v%d, v%d" % (ONH + i, ONL + i, ONES))
    run(late); run(late2)
    if CFG.lean == 1: run(XS.dma(1) + dma_issue(0, 2) + dma_issue(0, 3))
    stamp(a, 7, 1)
    stats_compute(a)
    stamp(a, 5, 1)
    run(XS.reads(0))
    a.wait_vm(lambda t: t == ("w", 0, 1))
    a("s_barrier")
    SPLIT = CFG.split
    seq = []
    for kk in range(SPLIT): seq += [("mm", 0, 0, kk), ("mm", 0, 1, kk)]
    seq += [("mm", 0, 0, kk) for kk in range(SPLIT, 18)] + [("mm", 0, 1, kk) for kk in range(SPLIT, 18)]
    for L in (1, 2):
        for P in (0, 1): seq += [("mm", L, P, kk) for kk in range(18)]
    def after(key, new): seq.insert(seq.index(key) + 1, new)
    after(("mm", 0, 0, CFG.c00), ("corr", 0, 0))
    for L in range(3): after(("mm", L, 1, 17), ("corr", L, 1))
    if CFG.cmode == 1 and CFG.cdel >= 0: after(("mm", 1, 1, CFG.cdel), ("corr", 1, 0))
    else: after(("mm", 1, 0, 17), ("corr", 1, 0))
    after(("mm", 2, 0, 17), ("corr", 2, 0))
    cs_steps = {0: [((0, 0), ONES), ((0, 1), ONES), ((0, 2), ON7), ((0, 3), ON7)],
                1: [((11, 0), ONES), ((11, 1), ONES), ((10, 2), ONL)], 2: [((12, 0), ONES), ((12, 1), ONES), ((10, 2), ONH)]}
    cs_at = {0: CFG.cs0, 1: CFG.cs1, 2: CFG.cs2}
    attach = {}
    if CFG.cmode == 1:
        CSL[1], CSL[2] = TMP, CSA
        n1 = seq.index(("corr", 0, 1)) + 1
        cs_at[1] = cs_at[2] = n1 + 1
        attach[seq[n1]] = [(1, k, (1, k), ONES, mat) for k in range(2) for mat in range(2)]
        attach[seq[n1 + 1]] = [(2, k, (2, k), ONES, mat) for k in range(2) for mat in range(2)]
        attach[seq[n1 + 2]] = [(1, 2, (10, 2), ONL, 0), (1, 2, (10, 2), ONL, 1), (2, 2, (10, 2), -ONES, 0), (2, 2, (10, 2), ONES, 1)]
    for L in range(3 if CFG.cmode == 0 else 1):
        its = [(L, k, sl, on, mat) for k, (sl, on) in enumerate(cs_steps[L]) for mat in range(2)]
        attach[seq[cs_at[L]]] = its[:4]; attach[seq[cs_at[L] + 1]] = its[4:]
    NH = len(seq)
    idx = {k: n for n, k in enumerate(seq)}
    visible = set([(0, 0), (0, 1)])
    S_ = Stream(a, "v", WF)
    first_slot = []
    csr = [0]
    def slabs_of(e):
        if e[0] == "mm": return [(e[1], e[3])] + [x[2] for x in attach.get(e, [])]
        return []
    for e in seq:
        first_slot.append(len(S_.slots))
        if e[0] == "mm":
            _, L, P, kk = e
            att = list(attach.get(e, []))
            for ti in (0, 2, 1, 3):
                def off(L=L, kk=kk, ti=ti):
                    assert (L, kk) in visible, (L, kk)
                    return loc[(L, kk)] * 8192 + (ti >> 1) * 4096
                def mf(w, P=P, ti=ti, kk=kk):
                    return ["%s %s, %s, %s, %s" % (MF, V(acc(P, ti, tt), 4), w, xr(kk, tt), "0" if kk == 0 else V(acc(P, ti, tt), 4)) for tt in range(4)]
                S_.add(tr_read(a, off, 2 * P + (ti & 1)), mf)
                if att:
                    cl, k, sl, on, mat = att.pop(0); CS = CSL[cl]
                    def rd(kind, reg, tag, sl=sl, mat=mat):
                        assert sl in visible
                        out = []
                        d = loc[sl] * 8192 - csr[0]; csr[0] += d
                        if d: out.append(I(a, "v_add_u32 v%d, 0x%x, v%d" % (vCSR, d & 0xffffffff, vCSR)))
                        return out + [("D", lambda h=h: a.lds("ds_read_b64_tr_b16 %s, v%d offset:%d" % (V(reg + 2 * h, 2), vCSR, mat * 4096 + h * 2048), tag)) for h in range(2)]
                    S_.add(rd, lambda w, k=k, on=on, mat=mat, CS=CS: [("".join("v_xor_b32 v%d, v%d, v%d\n" % (ONES + i, ONES + i, ONL) for i in range(4)) + "s_nop 1\n" if on < 0 else "") + "%s %s, %s, %s, %s" % (MF, V(CS + 4 * mat, 4), V(abs(on), 4), w, "0" if k == 0 else V(CS + 4 * mat, 4))])
        elif e[0] == "corr":
            _, L, P = e
            for ti in range(4):
                S_.add(None, lambda w, P=P, ti=ti: ["%s %s, %s, %s, %s" % (MF16, V(acc(P, ti, tt), 4), V(CSA + 2 * ti, 2), V(ST + 4 * tt, 2), V(acc(P, ti, tt), 4)) for tt in range(4)])
    first_slot.append(len(S_.slots))
    p2.add_slots(S_)
    def epilogue(L, P):
        q = [I(a, "s_add_u32 s58, s57, %d" % ((2 * L + P) * KSTRIDE)) + ([], ["s58"])]
        for tt in range(4):
            rs, cc = ST + 4 * tt + 2, ST + 4 * tt + 3
            o = acc(P, 2, tt)
            gu = [(acc(P, half, tt) + i, acc(P, 2 + half, tt) + i) for half in range(2) for i in range(4)]
            for g, u in gu:
                q.append(I(a, "v_mul_f32 v%d, v%d, v%d" % (u, g, u)) + ([g, u], [u]))
                q.append(I(a, "v_mul_f32 v%d, v%d, v%d" % (g, g, rs)) + ([g], [g]))
            for g, u in gu: q.append(I(a, "v_exp_f32 v%d, v%d" % (g, g)) + ([g], [g]))
            for g, u in gu: q.append(I(a, "v_fma_f32 v%d, v%d, v%d, v%d" % (g, g, cc, cc)) + ([g], [g]))
            for g, u in gu: q.append(I(a, "v_rcp_f32 v%d, v%d" % (g, g)) + ([g], [g]))
            for g, u in gu: q.append(I(a, "v_mul_f32 v%d, v%d, v%d" % (g, g, u)) + ([g, u], [g]))
            for k in range(4):
                g = gu[2 * k][0]
                q.append(I(a, "v_cvt_pk_bf16_f32 v%d, v%d, v%d" % (o + k, g, g + 1)) + ([g, g + 1], [o + k]))
            q.append(VM(a, "buffer_store_dwordx4 %s, v%d, %s, s58 offen offset:%d %s" % (V(o, 4), vX, WSR, tt * 1024, SC), ("h", L, P)) + ([o, o + 1, o + 2, o + 3, "s58"], []))
        return q
    last_use = {}
    for n, e in enumerate(seq):
        for sl in slabs_of(e): last_use[sl] = n
    lastP = {}
    for n, e in enumerate(seq):
        if e[0] != "cs": lastP[e[1:3]] = n
    marks = set()
    def mark(m): return ("", lambda: marks.add(m))
    released = set()
    def hsig(stage): return signal(a, "s_add_u32 s49, s69, %d" % (128 * (FH + 64 * stage)))
    def hoff(stage): return "s_add_u32 s49, s71, %d" % (128 * (FH + 64 * stage))
    coff = "s_mov_b32 s49, s%d" % sFC
    def csa_load(L, P):
        return [I(a, "s_add_u32 s49, s%d, %d" % (sCSB, L * 4096 + P * 2048))] + \
               [("M", lambda k=k: a.vmem("buffer_load_dwordx4 %s, v%d, %s, s49 offen offset:%d %s" % (V(CSA + 4 * k, 4), vCSL, WSR, 1024 * k, SC), ("csa", L, P))) for k in range(2)]
    def cs_publish(L):
        CS = CSL[L]
        return [I(a, "s_mov_b32 vcc_lo, 0xffff0000\ns_mov_b32 vcc_hi, 0\nv_cndmask_b32 v%d, v%d, v%d, vcc" % (CS, CS, CS + 4), 3)] + hilo(a, CS, CS + 1, CS + 2) + \
               [I(a, "s_add_u32 s49, s%d, %d" % (sCSB, L * 4096)),
                ("M", lambda: a.vmem("buffer_store_dword v%d, v%d, %s, s49 offen %s" % (CS, vCSW, WSR, SC), ("cs", L))), mark(("pub", L))]
    ev = {}
    bar_tags = {}
    def at(n, fns): ev.setdefault(n, []).extend(fns)
    def sig_after(n, tag, fns):
        n |= 1
        bar_tags.setdefault(n, ([], []))
        bar_tags[n][0].append(tag); bar_tags[n][1].extend(fns)
    marks.add("late")
    csig = lambda L: signal(a, "s_lshl2_add_u32 s49, s%d, s%d\ns_add_u32 s49, s49, %d" % (sI, sFC, 32 * L))
    for L in range(3):
        at(cs_at[L] + 3, cs_publish(L))
        at(idx[("corr", L, 0)] + 1, csa_load(L, 1))
        if L > CFG.cmode: at(idx[("corr", L - 1, 1)] + 1, csa_load(L, 0))
    sig_after(cs_at[0] + CFG.sig0, ("cs", 0), csig(0))
    sig_after(cs_at[2] + (8 if CFG.cmode == 0 else CFG.sigd), ("cs", 2), csig(1))
    c0 = idx[("corr", 0, 0)]
    at(c0 - CFG.p0, poll_issue(a, coff, ("plc", 0)))
    at(c0 - CFG.k0, poll_check(a, coff, ("plc", 0), "0xff") + csa_load(0, 0))
    if CFG.cmode == 0:
        at(idx[("corr", 0, 1)] - 5, poll_issue(a, coff, ("plc", 1)))
        at(idx[("corr", 0, 1)], poll_check(a, coff, ("plc", 1), "0xff00"))
    else:
        at(idx[("corr", 1, 0)] - CFG.pc1, poll_issue(a, coff, ("plc", 1)))
        at(idx[("corr", 1, 0)] - CFG.kc1, poll_check(a, coff, ("plc", 1), "0xff00") + csa_load(1, 0))
    c0 = idx[("corr", 0, 0)]
    at(c0 - 12, stats_addr(a, vP2) + stats_fetch(a, "v", ST, vP2))
    fx = stats_check(a, "v", ST, vP2, None)
    for tt in range(4):
        b = ST + 4 * tt
        fx += [I(a, "v_mov_b32 v%d, v%d" % (b + 1, b)), I(a, "v_mul_f32 v%d, v%d, v%d" % (b + 3, b + 2, b + 2)), I(a, "v_rcp_f32 v%d, v%d" % (b + 2, b + 2), 2)]
    for tt in range(4): fx.append(I(a, "v_mul_f32 v%d, %s, v%d" % (ST + 4 * tt + 2, f32(-LOG2E), ST + 4 * tt + 2)))
    at(c0 - 5, fx + [mark("stats")])
    xread_at = {}
    for p in range(8, 0, -1): xread_at[p] = max(min(idx[("mm", 0, 0, 2 * p)] - CFG.xlead, xread_at.get(p + 1, 99) - 3), 0)
    for p, n in xread_at.items():
        at(n, XS.reads(p))
    mm = lambda L, P, kk: idx[("mm", L, P, kk)]
    sig_after(mm(1, 1, 2), ("h", 0, 1), hsig(0))
    sig_after(mm(2, 0, CFG.s1), ("h", 1, 0), hsig(1))
    sig_after(mm(2, 1, 2), ("h", 1, 1), hsig(2))
    at(mm(2, 0, 0) + CFG.p1, poll_issue(a, hoff(1), "pl1", vP2))
    at(mm(2, 0, 0) + CFG.c1, poll_check(a, hoff(1), "pl1", "7", vP2) + [mark("h1")])
    at(NH - 5, poll_issue(a, hoff(2), "pl2"))
    at(mm(2, 0, 6), p2.setup_vo(vCSR, vCSW, "s_and_b32 s52, s%d, 1" % sXG) + [mark("vo")])
    if CFG.pf == 1:
        pf = Q(a, """s_and_b32 s52, s{W}, 1
            s_mul_i32 s52, s52, 36
            s_mul_i32 s60, s{I}, 72
            s_add_u32 s52, s52, s60
            v_mul_u32_u24 v{P}, 43, v{L}
            v_lshrrev_b32 v{P}, 7, v{P}
            v_mul_u32_u24 v{T}, 3, v{P}
            v_sub_u32 v{T}, v{L}, v{T}
            v_add_u32 v{P}, s52, v{P}
            v_mul_u32_u24 v{P}, 1152, v{P}
            v_lshl_add_u32 v{P}, v{T}, 7, v{P}
            s_mul_i32 s52, s68, 384
            s_add_u32 s52, s52, s63""".format(W=sWAVE, I=sI, P=vP2, L=vL, T=vPL))
        pf += [VM(a, "buffer_load_dword v%d, v%d, s[%d:%d], s52 offen" % (vPL, vP2, rW2, rW2 + 3)),
               I(a, "s_add_u32 s52, s52, %d" % (18 * 1152)),
               VM(a, "buffer_load_dword v%d, v%d, s[%d:%d], s52 offen" % (vPL, vP2, rW2, rW2 + 3))]
        at(idx[("corr", 1, 0)] + 1 + CFG.pfw, pf)
    if CFG.pf == 4:
        pf = Q(a, """s_sub_u32 s52, s2, {AF}
            s_lshl2_add_u32 s52, s52, s{W}
            s_lshl_b32 s52, s52, 13
            v_lshlrev_b32 v{P}, 7, v{L}""".format(W=sWAVE, P=vP2, L=vL, AF=64 * CFG.afirst))
        pf += [VM(a, "buffer_load_dword v%d, v%d, s[%d:%d], s52 offen" % (vPL, vP2, rW2, rW2 + 3))]
        pf += Q(a, """s_cmp_lt_u32 s52, {N}
            s_cmov_b32 s52, 0x{O:x}
            s_sub_u32 s52, s52, {N}""".format(N=4608 * 1152, O=OOB))
        pf += [VM(a, "buffer_load_dword v%d, v%d, s[%d:%d], s52 offen" % (vPL, vP2, rWO, rWO + 3))]
        at((mm(1, 0, 2) if CFG.cmode == 0 else idx[("corr", 1, 0)] - CFG.kc1 + 1) + CFG.pfw, pf)
    def wjob(L, kk):
        def make():
            if VERB: print("hs", now[0], seq[now[0]], "issue W", (L, kk), file=sys.stderr)
            return dma_issue(L, kk)
        gate = 0
        if CFG.cmode == 1 and kk >= 2: gate = (0, CFG.gate1, CFG.gate2)[L]
        return ("w", lambda: len(free) > 0 and now[0] >= gate, make)
    def cjob(L, k):
        def make():
            if VERB: print("hs", now[0], seq[now[0]], "issue C", (L, k), file=sys.stderr)
            return c_issue(L, k)
        return ("w", lambda: len(free) > 0, make)
    cj = {CFG.cj1: [cjob(1, 0), cjob(1, 1), cjob(0, 2)], CFG.cj2: [cjob(2, 0), cjob(2, 1)]}
    if CFG.init >= 1: del cj[CFG.cj1]
    if CFG.cmode == 1: cj = {CFG.cj1: [wjob(1, 0), wjob(1, 1)], 9: [cjob(0, 2), wjob(2, 0), wjob(2, 1)]}
    for p in range(1 if CFG.lean == 2 else 2, 9): S_.jobs += ([XS.job(p)] if p > 2 or CFG.init < 2 else []) + [wjob(0, 2 * p), wjob(0, 2 * p + 1)] + cj.get(p, [])
    S_.jobs += cj.get(9, [])
    S_.jobs += [wjob(L, kk) for L in (1, 2) for kk in range(2 * CFG.cmode, 18)]
    hmark = lambda st: "h1" if st < 6 else ("h2" if st < 9 else ("h3" if st < 12 else ("o" if p2.steps[st][2] == "wo" else "h4")))
    S_.jobs += p2.jobs(0, lambda st: "vo" in marks,
                       lambda st: hmark(st) in marks and now[0] > mm(2, 1, min(st, 9)))
    xdead = {}
    S_.prime()
    for n, e in enumerate(seq):
        pre = []
        now[0] = n
        S_.vmrate = 2.0 if n < CFG.boost else CFG.vmrate / 100.0
        if VERB: a.cm("HS %d %s" % (n, e))
        if n >= CFG.sbase and (n - CFG.sbase) % CFG.sstep == 0 and (n - CFG.sbase) // CFG.sstep < 11: stamp(a, 4 + (n - CFG.sbase) // CFG.sstep, 2)
        if e[0] == "mm" and e[1] == 0 and e[2] == 0 and e[3] % 2 == 0:
            wlg(a, [("xr", e[3] // 2)])
        if n == xread_at[8]: assert ("pub", 2 if CFG.cmode == 0 else 0) in marks
        if e[0] == "corr": assert "stats" in marks
        if n == mm(2, 0, 5): assert a.cnt.get(("w", 2, 17)) == 2
        if e[0] == "corr": wvm(a, [("csa", e[1], e[2])])
        if e[0] == "mm" and e[3] == 0 and (e[1] > 0 or e[2] == 0): stamp(a, 3 if e[1] == 0 else 3 + 2 * e[1] + e[2])
        if e == ("mm", 0, 0, 9): stamp(a, 4)
        if n % 2 == 1:
            rmax = S_.read_limit(first_slot[min(n + 2, NH)] - 1)
            need = []
            for m in range(n, NH):
                if S_.cur_ring(first_slot[m]) <= rmax:
                    need += [x for x in slabs_of(seq[m]) if x not in visible and x not in need]
            rel_ = [x for x, lu in last_use.items() if lu < n and x not in released]
            tags, aft = bar_tags.pop(n, ([], []))
            tags = list(tags)
            if S_.cur_ring(first_slot[NH]) <= rmax and not p2.visible:
                tags += [("w2", 0, k_) for k_ in range(3)]; p2.visible.update((0, k_) for k_ in range(3))
            xrel = [p for p, m in xread_at.items() if p >= 6 and m + 3 <= n and p not in xdead]
            want_space = S_.jobs and S_.jobs[0][0] in ("w", "w2", "x") or any(j[0] in ("w", "w2") for j in S_.jobs[:3])
            if rel_ and not (need or tags or xrel) and (not want_space or (n > 40 and len(rel_) < CFG.relper)): rel_ = []
            if need or rel_ or tags or xrel:
                need += [x for x, t_ in issued_at.items() if x not in visible and x not in need and
                         (t_ + CFG.age <= n or (a.cnt.get(("w",) + x, 0) == 2 and ("w",) + x not in a.vm))]
                for x in need: assert x in loc, ("slab not issued", n, x)
                def bar(need=need, tags=tags, xrel=xrel):
                    wlg(a, [("xr", p) for p in xrel])
                    wvm(a, [("w",) + x for x in need] + tags)
                    a("s_barrier")
                pre.append(("B", bar))
                visible.update(need); released.update(rel_)
                for x in rel_: free.append(loc[x])
                for p in xrel:
                    xdead[p] = 1
                    free.extend(8 + 3 * w + p % 3 for w in range(4))
            S_.extra += aft
        S_.extra += ev.pop(n, [])
        if (2, 17) in loc:
            while free:
                p2.free.append(free.pop(0))
        ns = first_slot[n + 1] - first_slot[n]
        for k in range(ns):
            if e[0] == "mm" and e[3] == 0 and k == 0:
                assert not (S_.epi and S_.epiP == e[2]), "epilogue not finished"
            S_.emit(pre if k == 0 else (), 1 if len(S_.extra) > 20 else 0)
            if k == 1 and n > 0:
                pe = seq[n - 1]
                if pe[0] != "cs" and lastP[pe[1:3]] == n - 1:
                    assert not S_.epi
                    S_.set_epi(epilogue(pe[1], pe[2]), first_slot[mm(pe[1] + 1, pe[2], 0)] - 1 if pe[1] < 2 else first_slot[NH] - 1, 0, False)
                    S_.epiP = pe[2]
    assert not S_.epi and not ev and not bar_tags, (ev.keys(), bar_tags.keys())
    now[0] = NH
    if VERB: print("; left for phase 2:", [j[0] for j in S_.jobs], "extra", len(S_.extra), file=sys.stderr)
    stamp(a, 9)
    S_.set_epi(epilogue(2, 1), S_.pos + CFG.edl, 2, False)
    ooff = "s_add_u32 s49, s71, %d" % (128 * FO)
    hooks = {}
    def add(st, key, v): hooks.setdefault(st, {}).setdefault(key, []).extend(v)
    add(CFG.s3, "bar", [("h", 2, 0)]); add(CFG.s3, "after", hsig(3))
    add(0, "after", poll_check(a, hoff(2), "pl2", "7") + [mark("h2")])
    add(CFG.s3 + 2, "after", poll_issue(a, hoff(3), "pl3"))
    add(CFG.s4, "bar", [("h", 2, 1)]); add(CFG.s4, "after", hsig(4))
    add(CFG.s3 + 4, "after", poll_check(a, hoff(3), "pl3", "7") + [mark("h3")])
    if CFG.osplit < 2:
        add(CFG.po, "after", poll_issue(a, ooff, "plo", vP2))
        add(CFG.po + 2, "after", poll_check(a, ooff, "plo", "1", vP2) + [mark("o")])
    add(CFG.p4, "after", poll_issue(a, hoff(4), "pl4"))
    add(CFG.c4, "after", poll_check(a, hoff(4), "pl4", "7") + [mark("h4")])
    dead0 = [loc[x] for x in last_use if x not in released]
    p2.main(S_, hooks, dead0)

C0 = [0, 4, 9, 13]
def path_attn(a):
    global vL, vX, vFS, vFP, vTK, vPL
    keep = (vL, vX, vFS, vFP, vTK, vPL)
    a.cnt = {}
    RB, VO, XO, XA = 224, 230, 236, 240
    vCS0, vCS1, vCSW, vP2, u0, u1 = 250, 251, 252, 253, 254, 255
    aONE, aCS, aST, aCSA, aX = 32, 36, 52, 68, 96
    t0, t1, t2, t3, t4 = 64, 65, 66, 67, 68
    new = (244, 245, 246, 247, 248, 249)
    for o_, n_ in zip(keep[:4], new[:4]): a("v_mov_b32 v%d, v%d" % (n_, o_))
    vL, vX, vFS, vFP, vTK, vPL = new
    def xreg(kk, tt): return ("a", aX + 16 * (kk % 10) + 4 * tt)
    def xr(kk, tt): return R(*xreg(kk, tt), 4)
    def acc(T, tt): return 16 * T + 4 * tt
    XS = XStage(a, XO, XA, 98304, 2, xreg)
    WLIM = 576 * 3456
    def dma_issue(kk):
        fns = [I(a, "s_add_u32 s55, s%d, %d" % (sWo, (kk & 1) * 32 * 3456))]
        for idx in range(6):
            if idx % 3 == 0:
                fns.append(I(a, "s_add_u32 m0, s53, %d" % ((kk % 4) * 24576 + (idx // 3) * 3072)))
            fns.append(VM(a, "buffer_load_dwordx4 v%d, s[%d:%d], s55 offen offset:%d lds" % (VO + idx, rWA, rWA + 3, (idx % 3) * 1024), ("w", kk)))
        if kk & 1: fns.append(I(a, "s_add_u32 s%d, s%d, %d\ns_cmp_ge_u32 s%d, %d\ns_cmov_b32 s%d, 0" % (sWo, sWo, 64 * 3456, sWo, WLIM, sWo), 3))
        return fns
    XS.setup_dma(t0, t1)
    run(XS.dma(0))
    srd(a, rWA, sWQKV, WLIM, bias=2048)
    run(dma_lane_off(a, t2, t0, t1, 3456, True))
    for idx in range(6):
        a("s_mul_i32 s52, s%d, 6" % sWAVE)
        a("s_add_u32 s52, s52, %d" % idx)
        a("s_and_b32 s49, s52, 1")
        a("s_bfe_u32 s60, s52, 0x10001")
        a("s_lshl2_add_u32 s49, s49, s60")
        a("s_mul_i32 s49, s49, %d" % (4 * 3456))
        a("s_bfe_u32 s60, s52, 0x10002")
        a("s_add_u32 s60, s60, s%d" % sXG)
        a("s_lshl_b32 s60, s60, 7")
        a("s_add_u32 s49, s49, s60")
        a("s_lshr_b32 s60, s52, 3")
        a("s_mul_i32 s60, s60, 1152")
        a("s_add_u32 s49, s49, s60")
        a("s_add_u32 s49, s49, %d" % (2048 - (idx % 3) * 1024))
        a("v_add_u32 v%d, s49, v%d" % (VO + idx, t2))
    a("s_mul_i32 s53, s%d, 6144" % sWAVE)
    a("s_mul_i32 s%d, s%d, %d" % (sWo, sROT, 64 * 3456))
    run(dma_issue(0))
    if not CFG.lean: run(dma_issue(1))
    code_prefetch(a)
    if not CFG.lean: run(XS.dma(1))
    stamp(a, 4, 1)
    XS.setup_read(t0, t1, t2)
    lane_fields(a, t0, t1, t2)
    a("v_lshrrev_b32 v%d, 1, v%d" % (t0, t0))
    a("v_lshlrev_b32 v%d, 10, v%d" % (t0, t0))
    a("v_lshl_add_u32 v%d, v%d, 7, v%d" % (t0, t1, t0))
    a("v_lshrrev_b32 v%d, 1, v%d" % (t1, t1))
    a("s_lshl_b32 s52, s%d, 1" % sXG)
    for p in range(6):
        r = RB + p
        if p < 4:
            a("v_add_u32 v%d, %d, v%d" % (t3, C0[p], t2))
        elif p == 4:
            a("v_lshrrev_b32 v%d, 1, v%d" % (t3, t2))
            a("v_lshl_add_u32 v%d, v%d, 2, v%d" % (t3, t2, t3))
            a("v_add_u32 v%d, 4, v%d" % (t3, t3))
        else:
            a("v_and_b32 v%d, 1, v%d" % (t3, t2))
            a("v_mul_u32_u24 v%d, 9, v%d" % (t3, t3))
            a("v_add_u32 v%d, 8, v%d" % (t3, t3))
        a("v_add_u32 v%d, s52, v%d" % (t3, t3))
        a("v_lshrrev_b32 v%d, 4, v%d" % (t4, t3))
        a("v_lshl_add_u32 v%d, v%d, 12, v%d" % (r, t4, t0))
        a("v_bfe_u32 v%d, v%d, 2, 2" % (t4, t3))
        a("v_xor_b32 v%d, v%d, v%d" % (t4, t4, t1))
        a("v_lshl_add_u32 v%d, v%d, 5, v%d" % (r, t4, r))
        a("v_and_b32 v%d, 3, v%d" % (t4, t3))
        a("v_lshl_add_u32 v%d, v%d, 3, v%d" % (r, t4, r))
        if p == 5:
            a("v_lshrrev_b32 v%d, 1, v%d" % (t4, t2))
            a("v_add_u32 v%d, 1, v%d" % (t4, t4))
            a("v_lshl_add_u32 v%d, v%d, 13, v%d" % (r, t4, r))
    a("s_bitcmp1_b32 s%d, 0" % sWAVE)
    a("s_cselect_b64 vcc, -1, 0")
    a("v_cndmask_b32 v%d, v%d, v%d, vcc" % (t3, RB, RB + 1))
    a("v_cndmask_b32 v%d, v%d, v%d, vcc" % (t4, RB + 2, RB + 3))
    a("v_cndmask_b32 v%d, v%d, v%d, vcc" % (vCS1, RB + 4, RB + 5))
    a("s_bitcmp1_b32 s%d, 1" % sWAVE)
    a("s_cselect_b64 vcc, -1, 0")
    a("v_cndmask_b32 v%d, v%d, v%d, vcc" % (vCS0, t3, t4))
    a("v_mov_b32 v%d, 0x%x" % (t3, ONE2))
    for i in range(4): a("v_accvgpr_write_b32 a%d, v%d" % (aONE + i, t3))
    steps = [(18 * x_, 576 * x_, k) for x_ in range(4) for k in range(3)] + [(2 * x_ + P, 36 * (2 * x_ + P), "woa") for x_ in range(4) for P in range(2 - CFG.osplit, 2)] + [(0, 0, "wos"), (1, 144, "wos")]
    p2 = P2(a, steps, 220, 197, 222, True)
    a("s_cmp_ge_u32 s%d, 3" % sI)
    a("s_cselect_b32 s4, 1, 0")
    a("s_mul_i32 s52, s4, 3")
    a("s_sub_u32 s68, s%d, s52" % sI)
    a("s_lshr_b32 s70, s%d, 1" % sWAVE)
    a("s_lshl_b32 s72, s%d, 10" % sXG)
    a("s_lshl_b32 s52, s70, 9")
    a("s_add_u32 s72, s72, s52")
    a("s_add_u32 s72, s72, 0x%x" % FLG_OFF)
    p2.setup_s()
    a("s_mul_i32 s62, s70, %d" % (72 * KSTRIDE))
    a("s_add_u32 s62, s62, %d" % H_OFF)
    a("s_mul_i32 s63, s70, %d" % (2304 * 1152))
    a("s_mul_i32 s64, s70, %d" % (2 * KSTRIDE))
    a("s_add_u32 s64, s64, %d" % (H_OFF + 160 * KSTRIDE))
    a("s_mul_i32 s65, s70, %d" % (288 * 1152))
    a("s_mul_i32 s7, s70, %d" % (8 * KSTRIDE))
    a("s_add_u32 s7, s7, %d" % (H_OFF + 144 * KSTRIDE))
    a("s_mov_b32 s67, 4")
    a("s_add_u32 s52, s%d, 24" % sXG)
    a("s_lshl_b32 s%d, s52, 7" % sFC)
    a("s_add_u32 s%d, s%d, 0x%x" % (sFC, sFC, FL(FC)))
    a("s_mov_b32 s71, 0x07070707")
    a("s_cmp_ge_u32 s%d, 6" % sI)
    a("s_cmov_b32 s62, 0x%x" % OOB)
    a("s_cmov_b32 s63, 0x%x" % OOB)
    a("s_cmov_b32 s71, 0")
    a("s_lshl_b32 s%d, s%d, 13" % (sCSB, sXG))
    a("s_add_u32 s%d, s%d, %d" % (sCSB, sCSB, CS_OFF + 24 * 12288))
    a("s_cmp_eq_u32 s%d, 7" % sI)
    a("s_cselect_b32 s%d, 0x%x, 0" % (sOne2, ONE2))
    if CFG.lean: run(dma_issue(1) + XS.dma(1))
    stamp(a, 7, 1)
    stats_compute(a)
    stamp(a, 5, 1)
    run(XS.reads(0))
    wvm(a, [("w", 0)], w=6)
    a("s_barrier")
    TL = [(0, 0), (1, 0), (2, 0), (3, 0), (4, 0)] + [(p, 1) for p in range(4)] + [(p, 2) for p in range(4)] + [(5, 0)]
    S_ = Stream(a, "a", 0)
    visible = set([0])
    cur = [0] * 6
    csr = [0]
    info = []
    for kk in range(18):
        for T in range(14):
            def rd(kind, reg, tag, kk=kk, T=T):
                assert kk in visible
                p, win = TL[T]
                want = ((kk % 4) // 2) * 49152
                out = []
                if cur[p] != want:
                    out.append(I(a, "v_add_u32 v%d, 0x%x, v%d" % (RB + p, (want - cur[p]) & 0xffffffff, RB + p))); cur[p] = want
                return out + [("D", lambda h=h: a.lds("ds_read_b64_tr_b16 %s, v%d offset:%d" % (A(reg + 2 * h, 2), RB + p, (kk % 2) * 24576 + win * 8192 + h * 2048), tag)) for h in range(2)]
            def mf(w, kk=kk, T=T):
                return ["%s %s, %s, %s, %s" % (MF, V(acc(T, tt), 4), w, xr(kk, tt), "0" if kk == 0 else V(acc(T, tt), 4)) for tt in range(4)]
            S_.add(rd, mf); info.append((kk, T))
            if kk < 4 and T in (1, 3, 5, 7):
                k = T // 2
                def rd(kind, reg, tag, kk=kk, k=k):
                    out = []
                    if k == 0 and kk > 0:
                        out += [I(a, "v_add_u32 v%d, 24576, v%d" % (vCS0, vCS0)), I(a, "v_add_u32 v%d, 24576, v%d" % (vCS1, vCS1))]
                    return out + [("D", lambda h=h: a.lds("ds_read_b64_tr_b16 %s, v%d offset:%d" % (A(reg + 2 * h, 2), vCS0 if k < 3 else vCS1, (k * 8192 if k < 3 else 0) + h * 2048), tag)) for h in range(2)]
                def mf(w, kk=kk, k=k):
                    pre = ""
                    if kk == 2 and k == 0:
                        pre = "v_mov_b32 v%d, s%d\n" % (u0, sOne2) + "".join("v_accvgpr_write_b32 a%d, v%d\n" % (aONE + i, u0) for i in range(4)) + "s_nop 1\n"
                    return [pre + "%s %s, %s, %s, %s" % (MF, A(aCS + 4 * k, 4), A(aONE, 4), w, "0" if kk == 0 else A(aCS + 4 * k, 4))]
                S_.add(rd, mf); info.append((kk, -1))
    for T in list(range(9, 13)) + list(range(5, 9)) + [13] + list(range(5)):
        S_.add(None, lambda w, T=T: ["%s %s, %s, %s, %s" % (MF16, V(acc(T, tt), 4), A(aCSA + 2 * T, 2), A(aST + 4 * tt, 2), V(acc(T, tt), 4)) for tt in range(4)])
        info.append((18, T))
    ev = {}; bt = {}
    def at(kk, fns): ev.setdefault(kk, []).extend(fns)
    w_ = [I(a, "v_lshrrev_b32 v%d, 4, v%d" % (u0, vL)),
          I(a, "v_mul_u32_u24 v%d, 9, v%d\nv_add_u32 v%d, 1, v%d\nv_lshrrev_b32 v%d, 1, v%d\nv_add_u32 v%d, s%d, v%d" % (vCSW, u0, vCSW, vCSW, vCSW, vCSW, vCSW, sWAVE, vCSW), 4),
          I(a, "s_mul_i32 s52, s%d, 9\ns_add_u32 s52, s52, 4\ns_cmp_ge_u32 s%d, 2\ns_cmov_b32 s52, 0x%x\nv_mov_b32 v%d, s52\nv_cmp_eq_u32 vcc, 3, v%d\ns_nop 1\nv_cndmask_b32 v%d, v%d, v%d, vcc"
            % (sWAVE, sWAVE, OOB >> 9, u1, u0, vCSW, vCSW, u1), 8),
          I(a, "v_and_b32 v%d, 15, v%d\nv_lshlrev_b32 v%d, 4, v%d\nv_and_b32 v%d, 1, v%d\nv_lshl_add_u32 v%d, v%d, 3, v%d\nv_lshrrev_b32 v%d, 1, v%d\nv_lshl_add_u32 v%d, v%d, 10, v%d"
            % (u0, vL, u0, u0, u1, vCSW, u0, u1, u0, vCSW, vCSW, vCSW, vCSW, u0), 6),
          I(a, "s_lshr_b32 s52, s%d, 1\ns_lshl_b32 s52, s52, 8\ns_and_b32 s60, s%d, 1\ns_lshl2_add_u32 s52, s60, s52\nv_add_u32 v%d, s52, v%d" % (sI, sI, vCSW, vCSW), 5)]
    marks = set()
    at(0, w_ + [("", lambda: marks.add(1))])
    pub = [I(a, "v_accvgpr_read_b32 v%d, a%d" % (u0, aCS))]
    for k, (lo, hi) in enumerate([("0xffff0000", "0"), ("0", "0xffff"), ("0", "0xffff0000")]):
        pub.append(I(a, "v_accvgpr_read_b32 v%d, a%d\ns_mov_b32 vcc_lo, %s\ns_mov_b32 vcc_hi, %s\nv_cndmask_b32 v%d, v%d, v%d, vcc" % (u1, aCS + 4 * (k + 1), lo, hi, u0, u0, u1), 4))
    pub += hilo(a, u0, u1, vCS0)
    pub.append(("M", lambda: a.vmem("buffer_store_dword v%d, v%d, %s, s%d offen %s" % (u0, vCSW, WSR, sCSB, SC), ("cs", 0))))
    at(3, pub)
    b_ = Asm(); rot_bases(b_, 4)
    at(7, Q(a, "\n".join(b_.lines)))
    bt[5] = ([("cs", 0)], signal(a, "s_lshl2_add_u32 s49, s%d, s%d" % (sI, sFC)))
    coff = "s_mov_b32 s49, s%d" % sFC
    at(10, poll_issue(a, coff, "plc") + stats_addr(a, vCS0) + stats_fetch(a, "a", aST, vCS0))
    ld = poll_check(a, coff, "plc", "0xff") + [I(a, "v_lshlrev_b32 v%d, 4, v%d" % (u0, vL))]
    for k in range(7):
        if k == 4: ld.append(I(a, "s_add_u32 s%d, s%d, 4096" % (sCSB, sCSB)))
        ld.append(("M", lambda k=k: a.vmem("buffer_load_dwordx4 %s, v%d, %s, s%d offen offset:%d %s" % (A(aCSA + 4 * k, 4), u0, WSR, sCSB, 1024 * (k % 4), SC), ("csa", 0))))
    ld += stats_check(a, "a", aST, vCS0, u1)
    for tt in range(4): ld.append(I(a, "v_accvgpr_mov_b32 a%d, a%d" % (aST + 4 * tt + 1, aST + 4 * tt)))
    at(13, ld)
    if CFG.pf in (1, 2, 3):
        pf = Q(a, """s_mul_i32 s52, s{I}, 3
            s_add_u32 s52, s52, s{W}
            s_mul_i32 s52, s52, {B}
            s_cmp_eq_u32 s{W}, 3
            s_cmov_b32 s52, 0x{O:x}
            v_lshlrev_b32 v{P}, 7, v{L}""".format(I=sI, P=vP2, L=vL, B=192 * 1152, W=sWAVE, O=OOB))
        pf = [(c, f) for c, f in Q(a, "\n".join(f.code for c, f in pf).replace("s52", "s7"))]
        at(CFG.pfa, pf)
        for k in range(5):
            at(min(CFG.pfa + (k + 1) // 2, 16), [VM(a, "buffer_load_dword a%d, v%d, s[%d:%d], s7 offen" % (aONE, vP2, rW2, rW2 + 3)), I(a, "s_add_u32 s7, s7, %d" % (8192 if k < 3 else 4096))])
    S_.prime()
    wjob = lambda kk: ("w", lambda: kk - 2 in visible, lambda: dma_issue(kk))
    S_.jobs += [wjob(2), wjob(3)]
    for p in range(2, 9): S_.jobs += [XS.job(p), wjob(2 * p), wjob(2 * p + 1)]
    for s, (kk, T) in enumerate(info):
        pre = []
        if T == 0 and kk < 18 and kk % 2 == 0: wlg(a, [("xr", kk // 2)])
        if VERB and T == 0: a.cm("HS attn %d" % kk)
        if T == 0 and kk % 2 == 0: stamp(a, 4 + kk // 2, 6)
        if s == 0: stamp(a, 3)
        if kk == 2: assert marks
        if kk == 18 and T == 9:
            assert not S_.extra
            wvm(a, [("csa", 0)], csa=7)
        if T == 9 and kk < 17:
            tags, aft = bt.pop(kk, ([], []))
            def bar(kk=kk, tags=tags):
                wvm(a, [("w", kk + 1)] + tags, w=6)
                a("s_barrier")
            pre.append(("B", bar))
            visible.add(kk + 1)
            S_.extra += aft
            if kk % 2 == 0 and kk // 2 + 1 < 9:
                p = kk // 2 + 1
                S_.extra += XS.reads(p)
            S_.extra += ev.pop(kk, [])
        S_.emit(pre)
    assert not S_.extra and not ev and not S_.jobs and not S_.mem
    if VERB: a.cm("END")
    RS = 296
    vq, vn, vI0, vI1 = 224, 225, 226, 227
    T8 = 232
    t0, t1, t2, t3 = 242, 243, 254, 255
    SCL = 250
    a("s_barrier")
    stamp(a, 4, 5)
    stamp(a, 2)
    for tt in range(4): a("v_accvgpr_read_b32 v%d, a%d" % (SCL + tt, aST + 4 * tt + 2))
    a("v_lshrrev_b32 v%d, 4, v%d" % (vq, vL))
    a("v_and_b32 v%d, 15, v%d" % (vn, vL))
    for tt in range(4): a("v_rcp_f32 v%d, v%d" % (SCL + tt, SCL + tt))
    a("s_lshl_b32 s52, s%d, 6" % sWAVE)
    a("v_add_u32 v%d, s52, v%d" % (t0, vn))
    a("v_mul_u32_u24 v%d, %d, v%d" % (t0, RS, t0))
    a("v_lshl_add_u32 v%d, v%d, 3, v%d" % (vI0, vq, t0))
    a("v_mul_u32_u24 v%d, 72, v%d" % (t1, vq))
    a("v_add3_u32 v%d, v%d, v%d, 64" % (vI1, t0, t1))
    for tt in range(4): a("v_mul_f32 v%d, %s, v%d" % (SCL + tt, f32(LOG2E), SCL + tt))
    a("s_mov_b32 s56, %s" % f32(1.0 / LOG2E))
    a("s_mov_b32 s57, s56")
    a("v_mov_b32 v228, %s" % f32(1e-6 * LOG2E))
    a("v_cmp_gt_u32 s[32:33], 2, v%d" % vq)
    def scale4(r, tt):
        b, o = SCL + (tt & 2), tt & 1
        for i in (0, 2): a("v_pk_mul_f32 v[%d:%d], v[%d:%d], v[%d:%d] op_sel:[0,%d] op_sel_hi:[1,%d]" % (r + i, r + i + 1, r + i, r + i + 1, b, b + 1, o, o))
    def phi4(r, t, keepm=None):
        for i in range(4): a("v_exp_f32_e64 v%d, v%d clamp" % (t + i, r + i))
        for i in range(4): a("v_max_f32 v%d, v%d, v228" % (t + 4 + i, r + i))
        d = r if keepm is None else t
        for i in range(0, 4, 2): a("v_pk_fma_f32 v[%d:%d], v[%d:%d], s[56:57], v[%d:%d]" % (d + i, d + i + 1, t + 4 + i, t + 5 + i, t + i, t + i + 1))
        if keepm is not None:
            for i in range(4): a("v_cndmask_b32 v%d, v%d, v%d, %s" % (r + i, r + i, t + i, keepm))
    def pack2(dst, r):
        a("v_cvt_pk_bf16_f32 v%d, v%d, v%d" % (dst, r, r + 1))
        a("v_cvt_pk_bf16_f32 v%d, v%d, v%d" % (dst + 1, r + 2, r + 3))
    h0off = "s_add_u32 s49, s72, %d" % (128 * FH)
    side = []
    def sprinkle():
        while side:
            t, f = side.pop(0); f()
            if t == "M": break
    a("v_mov_b32 v%d, 0x%x" % (t2, ONE2))
    a("v_mov_b32 v%d, 0x%x" % (t3, ONE2))
    for tt in range(4): a("ds_write_b64 v%d, v[%d:%d] offset:%d" % (t0, t2, t3, tt * 16 * RS + 288))
    for T in [13] + list(range(9, 13)) + list(range(5, 9)):
        for tt in (3, 2, 1, 0):
            r = acc(T, tt)
            if T != 13 and (T < 9 or tt % 2 == 0): sprinkle()
            scale4(r, tt)
            if 5 <= T < 9: phi4(r, T8)
            elif T == 13: phi4(r, T8, keepm="s[32:33]")
            pack2(r, r)
            if T == 13: a("ds_write_b64 v%d, v[%d:%d] offset:%d" % (vI1, r, r + 1, tt * 16 * RS))
            else:
                off = C0[(T - 5) % 4] * 8 + (144 if T >= 9 else 0)
                a("ds_write_b64 v%d, v[%d:%d] offset:%d" % (vI0, r, r + 1, tt * 16 * RS + off))
        if T == 13:
            run(p2.setup_vo(240, 241, "s_mov_b32 s52, s4", sXG))
            p2.free = list(range(10, 18))
            for u in p2.units[:8]: side += p2.dma_issue(*u)
            a("v_bfe_u32 v223, v%d, 3, 2" % vL)
            a("v_and_b32 v240, 7, v%d" % vL)
            a("v_lshlrev_b32 v240, 2, v240")
            a("v_lshl_add_u32 v223, v223, 7, v240")
            side += poll_issue(a, h0off, "pl0", 231, 223)
    run(side); side = []
    stamp(a, 5, 5)
    vM, vLf, vB2 = 229, 230, 226
    a("v_bfe_u32 v%d, v%d, 2, 4" % (t0, vL))
    a("v_mul_u32_u24 v%d, %d, v%d" % (t0, RS, t0))
    a("v_and_b32 v%d, 3, v%d" % (t2, vL))
    a("s_lshl_b32 s52, s%d, 2" % sWAVE)
    a("s_lshr_b32 s49, s%d, 1" % sWAVE)
    a("s_add_u32 s52, s52, s49")
    a("v_cmp_eq_u32 vcc, s%d, v%d" % (sWAVE, t2))
    a("v_add_u32 v%d, s52, v%d" % (t3, t2))
    a("v_lshl_add_u32 v%d, v%d, 3, v%d" % (vM, t3, t0))
    a("s_lshl_b32 s52, s52, 3")
    a("s_add_u32 s52, s52, 32")
    a("v_add_u32 v%d, s52, v%d" % (vLf, t0))
    a("v_add_u32 v%d, 144, v%d" % (t3, t0))
    a("v_cndmask_b32 v%d, v%d, v%d, vcc" % (vB2, t3, vLf))
    a("v_cmp_eq_u32 s[34:35], s%d, v%d" % (sWAVE, vq))
    a.lg0()
    a("s_barrier")
    KC = 80
    FR = 96
    for k8 in range(8):
        if k8 == 4:
            for v_ in (vM, vLf, vB2): a("v_add_u32 v%d, %d, v%d" % (v_, 128 * RS, v_))
        if k8 == 7: a.wait_lg(lambda t: t == 0)
        for f, (base, off) in enumerate([(vM, 0), (vLf, 0), (vM, 144), (vB2, 144)]):
            for rd in range(2):
                r = FR + 16 * (k8 % 7) + 4 * f + 2 * rd
                a.lds("ds_read_b64_tr_b16 v[%d:%d], v%d offset:%d" % (r, r + 1, base, (32 * (k8 % 4) + 16 * rd) * RS + off), k8)
        for kq in ([k8 - 1] if k8 else []) + ([7] if k8 == 7 else []):
            a.wait_lg(lambda t: t == kq)
            b = FR + 16 * (kq % 7)
            for ci, (fa, fb) in enumerate([(b, b + 8), (b, b + 12), (b + 4, b + 8), (b + 4, b + 12)]):
                d = KC + 4 * ci
                a("%s %s, %s, %s, %s" % (MF, V(d, 4), V(fa, 4), V(fb, 4), "0" if kq == 0 else V(d, 4)))
    stamp(a, 6, 5)
    a("s_lshl_b32 s52, s%d, 5" % sXG)
    a("s_add_u32 s52, s52, s%d" % sWAVE)
    a("s_mul_i32 s6, s52, 3072")
    a("s_add_u32 s6, s6, %d" % KVP_OFF)
    a("s_mul_i32 s52, s%d, 12288" % sI)
    a("s_add_u32 s58, s6, s52")
    a("v_lshlrev_b32 v%d, 4, v%d" % (t0, vL))
    a("s_lshl_b32 s81, s%d, 7" % sXG)
    a("s_add_u32 s81, s81, %d" % FL(FKV))
    for i in range(4): a("v_cndmask_b32 v%d, v%d, v%d, s[34:35]" % (KC + 8 + i, KC + 12 + i, KC + 8 + i))
    for ci in range(3):
        a.vmem("buffer_store_dwordx4 %s, v%d, %s, s58 offen offset:%d %s" % (V(KC + 4 * ci, 4), t0, WSR, ci * 1024, SC), "kvp")
    run(poll_check(a, h0off, "pl0", "s71", 231, 223))
    for st in range(CFG.ah): side += p2.h_issue(st)
    QF = 104
    def qphi(tt):
        for T in range(5):
            sprinkle()
            scale4(acc(T, tt), tt)
            phi4(acc(T, tt), T8)
        for h in range(4):
            if h % 2: sprinkle()
            pack2(QF + 16 * tt + 4 * h, acc(h, tt))
            pack2(QF + 16 * tt + 4 * h + 2, acc(4, tt))
    qphi(0); qphi(1)
    stamp(a, 7, 5)
    a.wait_vm(lambda t: t == "kvp")
    a("s_barrier")
    run(signal(a, "s_lshl2_add_u32 s49, s%d, s81" % sI))
    p2.free += list(range(10))
    for u in p2.units[8:3 * CFG.ah]: side += p2.dma_issue(*u)
    stamp(a, 8, 5)
    qphi(2); qphi(3)
    run(side); side = []
    run(poll_issue(a, "s_mov_b32 s49, s81", "plkv"))
    a("s_and_b32 s52, s%d, 1" % sWAVE)
    a("s_lshl_b32 s49, s52, 1")
    a("v_cmp_le_u32 s[32:33], s49, v%d" % vn)
    a("v_lshrrev_b32 v%d, 2, v%d" % (t2, vn))
    a("v_cmp_eq_u32 s[16:17], s%d, v%d" % (sWAVE, t2))
    a("v_and_b32 v%d, 3, v%d" % (t2, vn))
    a("s_add_u32 s49, s49, 2")
    a("v_cmp_gt_u32 vcc, s49, v%d" % t2)
    a("v_cmp_eq_u32 s[20:21], s%d, v%d" % (sWAVE, t2))
    a("s_and_b64 s[10:11], s[16:17], vcc")
    a("v_cmp_le_u32 s[74:75], s52, v%d" % vq)
    a("s_cmp_eq_u32 s52, 1")
    a("s_cselect_b64 s[76:77], s[34:35], 0")
    stamp(a, 9, 5)
    run(poll_check(a, "s_mov_b32 s49, s81", "plkv", "0xff"))
    stamp(a, 5)
    stamp(a, 10, 5)
    for i in range(8):
        a("s_add_u32 s58, s6, %d" % (i * 12288))
        for ci in range(3):
            a.vmem("buffer_load_dwordx4 %s, v%d, %s, s58 offen offset:%d %s" % (V(12 * i + 4 * ci, 4), t0, WSR, ci * 1024, SC), ("kv", i))
    for i in range(1, 8):
        a.wait_vm(lambda t: t == ("kv", i))
        if i == 1: stamp(a, 11, 5)
        for r in range(12): a("v_add_f32 v%d, v%d, v%d" % (r, r, 12 * i + r))
    stamp(a, 12, 5)
    pack2(12, 0); pack2(14, 4); pack2(16, 8)
    a("v_mov_b32 v18, v16"); a("v_mov_b32 v19, v17"); a("v_mov_b32 v20, v16"); a("v_mov_b32 v21, v17")
    a("s_bitcmp1_b32 s%d, 0" % sWAVE)
    a("s_cselect_b64 vcc, -1, 0")
    a("v_permlane16_swap_b32 v18, v20")
    a("v_permlane16_swap_b32 v19, v21")
    a("v_mov_b32_dpp v22, v14 row_ror:4 row_mask:0xf bank_mask:0xf")
    a("v_mov_b32_dpp v23, v15 row_ror:4 row_mask:0xf bank_mask:0xf")
    a("v_cndmask_b32 v18, v20, v18, vcc")
    a("v_cndmask_b32 v19, v21, v19, vcc")
    a("v_cndmask_b32 v22, v14, v22, s[16:17]")
    a("v_cndmask_b32 v23, v15, v23, s[16:17]")
    a("v_mov_b32_dpp v20, v18 row_ror:4 row_mask:0xf bank_mask:0xf")
    a("v_mov_b32_dpp v21, v19 row_ror:4 row_mask:0xf bank_mask:0xf")
    a("v_cndmask_b32 v20, v18, v20, s[16:17]")
    a("v_cndmask_b32 v21, v19, v21, s[16:17]")
    for f, (m, mainr, leftr) in enumerate([(32, 12, 16), (10, 14, 18), (20, 22, 20)]):
        for k, (src, extra) in enumerate([(mainr, 74), (mainr + 1, m), (leftr, 34), (leftr + 1, 76)]):
            a("s_and_b64 vcc, s[%d:%d], s[%d:%d]" % (m, m + 1, extra, extra + 1))
            a("v_cndmask_b32 v%d, 0, v%d, vcc" % (24 + 4 * f + k, src))
    a("s_mul_i32 s52, s%d, 3072" % sWAVE)
    a("v_add_u32 v%d, 0x25000, v%d" % (t0, t0))
    a("v_add_u32 v%d, s52, v%d" % (t1, t0))
    for f in range(3):
        a("ds_write_b128 v%d, %s offset:%d" % (t1, V(24 + 4 * f, 4), f * 1024))
    a("s_waitcnt lgkmcnt(0)")
    a("s_barrier")
    AF = 168
    for i in range(12):
        a("ds_read_b128 %s, v%d offset:%d" % (V(AF + 4 * i, 4), t0, i * 1024))
    a("s_lshl_b32 s52, s%d, 1" % sXG)
    a("s_add_u32 s52, s52, 144")
    a("s_mul_i32 s58, s52, %d" % KSTRIDE)
    a("s_add_u32 s58, s58, %d" % H_OFF)
    a("s_add_u32 s59, s58, %d" % KSTRIDE)
    a("s_lshr_b32 s52, s%d, 1" % sXG)
    a("s_add_u32 s52, s52, 160")
    a("s_mul_i32 s57, s52, %d" % KSTRIDE)
    a("s_and_b32 s52, s%d, 1" % sXG)
    a("s_lshl_b32 s52, s52, 3")
    a("s_add_u32 s57, s57, s52")
    a("s_add_u32 s57, s57, %d" % H_OFF)
    a("s_mov_b32 s56, %s" % f32(LOG2E))
    a("v_cmp_eq_u32 s[32:33], 1, v%d" % vq)
    a("v_cmp_eq_u32 s[34:35], 2, v%d" % vq)
    a("v_cmp_eq_u32 s[10:11], 3, v%d" % vq)
    a("s_waitcnt lgkmcnt(0)")
    for tt in range(4):
        o = 24 * tt
        for h in range(4):
            qf = V(QF + 16 * tt + 4 * h, 4)
            a("%s %s, %s, %s, 0" % (MF, V(o + 4 * h, 4), V(AF + 12 * h, 4), qf))
            a("%s %s, %s, %s, %s" % (MF, V(o + 16, 4), V(AF + 12 * h + 4, 4), qf, "0" if h == 0 else V(o + 16, 4)))
            a("%s %s, %s, %s, %s" % (MF, V(o + 20, 4), V(AF + 12 * h + 8, 4), qf, "0" if h == 0 else V(o + 20, 4)))
    stamp(a, 13, 5)
    a("s_nop 7")
    for tt in range(4):
        o = 24 * tt
        for h in range(4): a("v_fma_f32 v%d, v%d, s56, v228" % (o + 20 + h, o + 20 + h))
        for h in range(4): a("v_rcp_f32 v%d, v%d" % (o + 20 + h, o + 20 + h))
        a("s_nop 0")
        a("v_cndmask_b32 v%d, v%d, v%d, s[32:33]" % (T8 + 8, o + 20, o + 21))
        a("v_cndmask_b32 v%d, v%d, v%d, s[34:35]" % (T8 + 8, T8 + 8, o + 22))
        a("v_cndmask_b32 v%d, v%d, v%d, s[10:11]" % (T8 + 8, T8 + 8, o + 23))
        for h in range(4):
            b, sel = o + 20 + (h & 2), h & 1
            for i in (0, 2): a("v_pk_mul_f32 v[%d:%d], v[%d:%d], v[%d:%d] op_sel:[0,%d] op_sel_hi:[1,%d]" % (o + 4 * h + i, o + 4 * h + i + 1, o + 4 * h + i, o + 4 * h + i + 1, b, b + 1, sel, sel))
        for i in (0, 2): a("v_pk_mul_f32 v[%d:%d], v[%d:%d], v[%d:%d] op_sel_hi:[1,0]" % (o + 16 + i, o + 17 + i, o + 16 + i, o + 17 + i, T8 + 8, T8 + 9))
        pack2(o, o); pack2(o + 2, o + 4)
        pack2(o + 4, o + 8); pack2(o + 6, o + 12)
        pack2(o + 8, o + 16)
        a.vmem("buffer_store_dwordx4 %s, v%d, %s, s58 offen offset:%d %s" % (V(o, 4), vX, WSR, tt * 1024, SC), "o")
        a.vmem("buffer_store_dwordx4 %s, v%d, %s, s59 offen offset:%d %s" % (V(o + 4, 4), vX, WSR, tt * 1024, SC), "o")
        a.vmem("buffer_store_dwordx2 %s, v%d, %s, s57 offen offset:%d %s" % (V(o + 8, 2), vX, WSR, tt * 1024, SC), "o")
    for o_, n_ in zip(keep[:5], new[:5]): a("v_mov_b32 v%d, v%d" % (o_, n_))
    vL, vX, vFS, vFP, vTK, vPL = keep
    p2.setup_special(176, 177, 178)
    tr_addrs(a, 176, 177, 178)
    a("s_mul_i32 s%d, s70, 4128" % sPX)
    a("s_lshl_b32 s81, s%d, 7" % sXG)
    a("s_add_u32 s81, s81, s%d" % sFI)
    a("s_mov_b32 s52, s%d" % sI)
    a("s_mov_b32 s%d, s%d" % (sI, sXG))
    a("s_mov_b32 s%d, s52" % sXG)
    osig = lambda: signal(a, "s_add_u32 s49, s81, %d" % (128 * FO))
    stamp(a, 14, 5)
    stamp(a, 6)
    lgo = a.newlabel("Lp2a")
    a("s_cmp_lt_u32 s%d, 6" % sXG)
    a("s_cbranch_scc1 %s" % lgo)
    a("s_waitcnt vmcnt(0)")
    a("s_barrier")
    keepvm = list(a.vm)
    run(osig())
    a.vm = keepvm
    a("s_branch L_final")
    a.label(lgo)
    hooks = {}
    def add(st, key, v): hooks.setdefault(st, {}).setdefault(key, []).extend(v)
    add(1, "bar", ["o"]); add(1, "after", osig())
    ooff = "s_add_u32 s49, s72, %d" % (128 * FO)
    NSA = len(steps)
    add(3, "after", poll_issue(a, ooff, "plo", None, 223))
    add(5, "after", poll_check(a, ooff, "plo", "0x01010101", None, 223) + [("", lambda: marks.add("o"))])
    wvm(a, [("w2", 0, k_) for k_ in range(3)])
    a("s_barrier")
    p2.visible.update((0, k_) for k_ in range(3))
    for k_ in [k_ for k_ in a.cnt if isinstance(k_, tuple) and k_[0] == "f"]: del a.cnt[k_]
    S_ = Stream(a, "v", WF)
    p2.add_slots(S_)
    S_.prime()
    S_.jobs += p2.jobs(CFG.ah, lambda st: True, lambda st: st < 12 or "o" in marks)
    p2.main(S_, hooks, [18, 19])

def spin(a, soff_code, mask, sleep):
    lp, ld = a.newlabel("Lw"), a.newlabel("Lw")
    a(soff_code)
    a("s_mov_b32 s59, 40000")
    a.label(lp)
    a("buffer_load_dword v%d, v%d, %s, s49 offen %s" % (vPL, vFP, WSR, SC))
    a("s_waitcnt vmcnt(0)")
    a("v_cmp_eq_u32 vcc, s%d, v%d" % (sTOK, vPL))
    a("s_andn2_b32 s61, %s, vcc_lo" % mask)
    a("s_cbranch_scc0 %s" % ld)
    a("s_sleep %d" % sleep)
    a("s_sub_u32 s59, s59, 1")
    a("s_cmp_lg_u32 s59, 0")
    a("s_cbranch_scc1 %s" % lp)
    a.label(ld)

def code_prefetch(a, top=False):
    if CFG.cpf == 0 or (CFG.cpf >= 2) != top: return
    if top:
        a("s_getpc_b64 s[60:61]")
        l = a.newlabel("Lpc")
        a.label(l)
        a("s_sub_u32 s%d, s60, %s-%s" % (rW2, l, NAME))
        a("s_subb_u32 s%d, s61, 0" % (rW2 + 1))
        a("s_and_b32 s%d, s%d, 0xffff" % (rW2 + 1, rW2 + 1))
        a("s_mov_b32 s%d, L_code_end-%s" % (rW2 + 2, NAME))
        a("s_mov_b32 s%d, 0x20000" % (rW2 + 3))
        if CFG.cpf == 2:
            a("s_lshr_b32 s52, s2, 3")
            a("s_lshl_b32 s52, s52, 12")
            a("v_lshlrev_b32 v63, 4, v0")
        elif CFG.cpf == 4:
            a("s_lshr_b32 s52, s2, 4")
            a("s_lshl_b32 s52, s52, 12")
            a("s_bitcmp1_b32 s2, 3")
            a("s_cselect_b32 s49, (L_attn-%s)&0xffffff80, 0" % NAME)
            a("s_add_u32 s52, s52, s49")
            a("v_lshlrev_b32 v63, 4, v0")
        else:
            a("s_bfe_u32 s52, s2, 0x20003")
            a("s_lshl_b32 s52, s52, 15")
            a("v_lshlrev_b32 v63, 7, v0")
        a.vmem("buffer_load_dword v62, v63, s[%d:%d], s52 offen" % (rW2, rW2 + 3), "pf")
        return
    a("s_getpc_b64 s[60:61]")
    l = a.newlabel("Lpc")
    a.label(l)
    a("s_sub_u32 s%d, s60, %s-%s" % (rW2, l, NAME))
    a("s_subb_u32 s%d, s61, 0" % (rW2 + 1))
    a("s_and_b32 s%d, s%d, 0xffff" % (rW2 + 1, rW2 + 1))
    a("s_mov_b32 s%d, L_code_end-%s" % (rW2 + 2, NAME))
    a("s_mov_b32 s%d, 0x20000" % (rW2 + 3))
    a("s_lshr_b32 s52, s2, 3")
    a("s_lshl_b32 s52, s52, 12")
    a("s_lshl_b32 s49, s%d, 10" % sWAVE)
    a("s_add_u32 s52, s52, s49")
    a("v_lshlrev_b32 v63, 4, v%d" % vL)
    a.vmem("buffer_load_dword v%d, v63, s[%d:%d], s52 offen" % (vPL, rW2, rW2 + 3), "pf")
    if CFG.tlb:
        a("s_lshl_b32 s49, s%d, 1" % sWAVE)
        a("s_cmp_eq_u32 s%d, 1" % sWAVE)
        a("s_cselect_b32 s60, s%d, s%d" % (sW2, sWS)); a("s_cselect_b32 s61, s%d, s%d" % (sW2 + 1, sWS + 1))
        a("s_mov_b32 s%d, %d" % (rWO + 2, PART_OFF + 5 * PSL)); a("s_cmov_b32 s%d, %d" % (rWO + 2, 4608 * 1152))
        a("s_cmp_eq_u32 s%d, 2" % sWAVE)
        a("s_cmov_b32 s60, s%d" % sWO); a("s_cmov_b32 s61, s%d" % (sWO + 1)); a("s_cmov_b32 s%d, %d" % (rWO + 2, 576 * 1152))
        a("s_cmp_eq_u32 s%d, 3" % sWAVE)
        a("s_cmov_b32 s60, s%d" % sOUT); a("s_cmov_b32 s61, s%d" % (sOUT + 1)); a("s_cmov_b32 s%d, %d" % (rWO + 2, 2048 * 1152))
        a("s_mov_b32 s%d, s60" % rWO)
        a("s_and_b32 s%d, s61, 0xffff" % (rWO + 1))
        a("s_mov_b32 s%d, 0x20000" % (rWO + 3))
        a("v_lshlrev_b32 v63, %d, v%d" % (CFG.tlb, vL))
        a("s_lshl_b32 s52, s2, 7")
        a.vmem("buffer_load_dword v%d, v63, s[%d:%d], s52 offen %s" % (vPL, rWO, rWO + 3, SC), "pf")

def build():
    a = Asm()
    a.raw("; @launch grid=(256,1,1) block=(256,1,1) lds=%d" % LDS_BYTES)
    a.raw('.amdgcn_target "amdgcn-amd-amdhsa--gfx950"')
    a.raw(".text")
    kernel_begin(a, NAME)
    a("s_cmp_ge_u32 s2, 256")
    a("s_cbranch_scc1 L_end")
    a("s_load_dwordx16 s[4:19], s[0:1], 0")
    a("s_load_dwordx4 s[20:23], s[0:1], 64")
    code_prefetch(a, True)
    if CFG.stamp:
        for i in range(16): a("s_mov_b32 s%d, 0" % (84 + i))
        a("s_memtime s[100:101]" if CFG.clk else "s_memrealtime s[100:101]")
    a("v_and_b32 v%d, 63, v0" % vL)
    a("v_lshrrev_b32 v1, 6, v0")
    a("v_cmp_eq_u32 vcc, 0xc0, v0")
    a("v_readfirstlane_b32 s%d, v1" % sWAVE)
    a("v_mov_b32 v1, 0x%x" % OOB)
    a("s_lshr_b32 s%d, s2, 6" % sC)
    if CFG.afirst:
        a("s_add_u32 s%d, s%d, 3" % (sC, sC))
        a("s_and_b32 s%d, s%d, 3" % (sC, sC))
    a("v_cndmask_b32 v%d, v1, v%d, vcc" % (vFS, vL))
    a("v_and_b32 v1, 31, v0")
    a("v_lshlrev_b32 v%d, 2, v1" % vFP)
    if CFG.mapping == 0:
        a("s_and_b32 s%d, s2, 7" % sXG)
        a("s_bfe_u32 s%d, s2, 0x30003" % sI)
    elif CFG.mapping == 1:
        a("s_and_b32 s%d, s2, 3" % sXG)
        a("s_bfe_u32 s52, s2, 0x10003")
        a("s_lshl1_add_u32 s%d, s%d, s52" % (sXG, sXG))
        a("s_and_b32 s%d, s2, 4" % sI)
        a("s_bfe_u32 s52, s2, 0x20004")
        a("s_add_u32 s%d, s%d, s52" % (sI, sI))
    elif CFG.mapping == 4:
        a("s_and_b32 s%d, s2, 3" % sXG)
        a("s_bfe_u32 s52, s2, 0x10003")
        a("s_lshl1_add_u32 s%d, s%d, s52" % (sXG, sXG))
        a("s_bfe_u32 s%d, s2, 0x20004" % sI)
        a("s_bfe_u32 s52, s2, 0x10002")
        a("s_lshl1_add_u32 s%d, s%d, s52" % (sI, sI))
    a("s_mul_i32 s%d, s%d, %d" % (sROT, sC, CFG.rotc))
    a("s_add_u32 s%d, s%d, s%d" % (sROT, sROT, sI))
    if CFG.mapping != 0 and CFG.rotc:
        a("s_and_b32 s52, s%d, 1" % sXG)
        a("s_add_u32 s%d, s%d, s52" % (sROT, sROT))
    a("s_cmp_ge_u32 s%d, 9" % sROT)
    a("s_cselect_b32 s52, 9, 0")
    a("s_sub_u32 s%d, s%d, s52" % (sROT, sROT))
    a("s_lshl_b32 s52, s%d, 14" % sI)
    a("s_lshl_b32 s49, s%d, 12" % sWAVE)
    a("s_add_u32 s52, s52, s49")
    a("v_lshl_add_u32 v%d, v%d, 4, s52" % (vX, vL))
    a("s_lshl_b32 s%d, s%d, 10" % (sFI, sI))
    a("s_add_u32 s%d, s%d, 0x%x" % (sFI, sFI, FLG_OFF))
    stats_load(a)
    a("s_mov_b32 s%d, 0x%x" % (rX + 2, 2048 * 1152))
    a("s_mov_b32 s%d, 0x20000" % (rX + 3))
    a("s_waitcnt lgkmcnt(0)")
    if CFG.stamp: a("s_mov_b32 s84, s100")
    a("s_mov_b32 s%d, s%d" % (rX, sX))
    a("s_and_b32 s%d, s%d, 0xffff" % (rX + 1, sX + 1))
    stats_issue(a)
    a("s_add_u32 s60, s%d, 0x%x" % (sWS, FL(0)))
    a("s_addc_u32 s61, s%d, 0" % (sWS + 1))
    a("s_load_dword s%d, s[60:61], 0" % sTOK)
    stamp(a, 6, 1)
    srd(a, rWS, sWS, WS_BYTES)
    vm0 = list(a.vm)
    a("s_cmp_eq_u32 s%d, 3" % sC)
    a("s_cbranch_scc1 L_attn")
    path_mlp(a)
    a.label("L_final")
    stamp_out(a)
    a.label("L_end")
    a("s_endpgm")
    a.vm = vm0; a.lg = []
    a.label("L_attn")
    path_attn(a)
    a("s_branch L_final")
    a.lines += LATER
    a.label("L_code_end")
    a("s_endpgm")
    a.raw('.section .rodata,"a"')
    a.raw(kernel_desc(NAME, 512, 256))
    return a.text()

if __name__ == "__main__":
    args = sys.argv[1:]
    out = "parallel_sum__linear_attn_block__glu_gated_swiglu__prompt.s"
    for x in args:
        if x == "--stamp": CFG.stamp = True
        elif x == "-v": VERB = True
        elif x == "--sc1": SC = "sc1"
        elif x == "--dsc1": DFL = "sc1"
        elif x == "--dnt": DFL = "nt"
        elif x == "--osc": OSC = " sc1"
        elif x == "--ont": OSC = " nt"
        elif "=" in x:
            k, v = x.split("="); assert hasattr(CFG, k), k; setattr(CFG, k, float(v) if "." in v else int(v))
        else: out = x
    txt = build()
    if CFG.abl:
        import re
        L = txt.split("\n"); i0 = next(i for i, l in enumerate(L) if "v_mfma" in l); i1 = L.index("L_final:")
        def drop(l):
            l = l.strip()
            if CFG.abl & 1 and re.match(r"v_(mul_f32|exp_f32|rcp_f32) v\d+, v\d+", l) and int(re.search(r"v(\d+)", l.split(" ")[1]).group(1)) < 128: return True
            if CFG.abl & 1 and re.match(r"v_fma_f32", l): return True
            if CFG.abl & 2 and l.startswith("ds_read_b64_tr_b16"): return True
            if CFG.abl & 4 and l.startswith("v_mfma_f32_16x16x16"): return True
            if CFG.abl & 8 and l.endswith(" lds"): return True
            if CFG.abl & 16 and l.startswith("buffer_load_dwordx4 a["): return True
            return False
        txt = "\n".join(l for i, l in enumerate(L) if not (i0 < i < i1 and drop(l)))
    if DFL: txt = txt.replace(" lds\n", " %s lds\n" % DFL)
    open(out, "w").write(txt)
    if CFG.stamp: open(out + ".slow", "w").write("\n".join(NSLOW))
```

```python
import sys, math
from lib import *

NAME = "parallel_sum__linear_attn_block__glu_gated_swiglu__prompt_kernel"
LOG2E = 1.4426950408889634
KSTRIDE = 131072
H_OFF = 18 * KSTRIDE
KVP_OFF = H_OFF + 164 * KSTRIDE
PART_OFF = KVP_OFF + 8 * 8 * 4 * 6 * 1024
PSL = 18 * KSTRIDE
FLG_OFF = 0x80000
ST_OFF = 0
CS_OFF = 0x10000
WS_BYTES = 268435456
OOB = 0x7f000000
LDS_BYTES = 163840
SC = "sc0 sc1"
OSC = ""
DFL = ""
def FL(line): return FLG_OFF + 128 * line
FKV, FC, FP, FO, FH = 56, 96, 128, 192, 256

sX, sWQKV, sWO, sW1, sW3, sW2, sOUT, sDBG, sWS = 4, 6, 8, 12, 14, 16, 18, 20, 22
rWS, rWA, rX, rW2, rWO = 24, 28, 36, 40, 44
sWAVE, sI, sXG, sC, sTOK = 48, 50, 51, 78, 79
sFI = 80
sXo, sWo, sXL, sOne2, sCSB, sFC, sROT = 32, 33, 34, 35, 82, 83, 81
MF = "v_mfma_f32_16x16x32_bf16"
MF16 = "v_mfma_f32_16x16x16_bf16"
WSR = "s[%d:%d]" % (rWS, rWS + 3)
XR = "s[%d:%d]" % (rX, rX + 3)
ONE2 = 0x3f803f80

VERB = False
class Cfg:
    stamp = False
    clk = 0
    mapping = 0
    split = 12
    kseq = 4
    sset = 0
    swave = 0
    pf = 4
    rotc = 0
    vmrate = 85
    epirate = 4.5
    age = 16
    window = 60
    defer = 10
    chain = 1
    ipf = 0
    xsp = 12
    so = 1
    abar = (1, 6, 10)
    aboost = 0
    axb = 1
    cpf = 4
    afirst = 0
    af = 14
    ag = 8
    ap = 14
    da = 10
    ka = 4
    s1 = 3
    p1 = 13
    c1 = 17
    s3 = 0
    pc1 = 9
    kc1 = 5
    rsv = 30
    hgap = 0
    mid = 0
    pmid = 3
    fsat = 56
    early = 24
    findl = 5
    abl = 0
    tlb = 0
    ah = 6
    osplit = 1
    po = 5
    lean = 2
    boost = 3
    one = 0
    slp0 = 8
    slp1 = 2
    sum0 = 0
    hw = 1.0
    hrot = 2
    xlead = 2
    cs0 = 4
    cs1 = 4
    cs2 = 18
    cj1 = 8
    cj2 = 3
    pfw = 0
    pfa = 14
    pfs = 3
    init = 0
    cmode = 1
    cdel = 3
    sigd = 7
    gate1 = 35
    c00 = 16
    sig0 = 9
    p0 = 11
    k0 = 6
    gate2 = 68
    dbgwg = -1
    sbase = 0
    sstep = 2
    exs = 5
    edl = 56
    s4 = 6
    p4 = 8
    c4 = 9
    ofirst = 1
    relper = 4
    pfat = -2
CFG = Cfg()

def stamp(a, i, sset=0):
    if CFG.stamp and (sset == CFG.sset or i in (3, 15)):
        a("s_memtime s[100:101]" if CFG.clk else "s_memrealtime s[100:101]")
        a.lg0()
        a("s_mov_b32 s%d, s100" % (84 + i))
def stamp_out(a):
    if not CFG.stamp: return
    a("s_waitcnt vmcnt(0)")
    stamp(a, 15)
    l = a.newlabel("Lst")
    a("s_cmp_lg_u32 s%d, %d" % (sWAVE, CFG.swave))
    a("s_cbranch_scc1 %s" % l)
    a("s_lshl_b32 s3, s2, 6")
    a("s_add_u32 s3, s3, 0xF000000")
    a("v_mov_b32 v1, s3")
    a("s_mov_b64 exec, 1")
    for i in range(8):
        a("v_mov_b32 v2, s%d" % (84 + 2 * i))
        a("v_mov_b32 v3, s%d" % (85 + 2 * i))
        a("global_store_dwordx2 v1, v[2:3], s[%d:%d] offset:%d" % (sWS, sWS + 1, i * 8))
    if CFG.dbgwg >= 0:
        a("s_cmp_lg_u32 s2, %d" % CFG.dbgwg)
        a("s_cbranch_scc1 %s" % l)
        a("s_load_dwordx2 s[20:21], s[0:1], 64")
        a("s_waitcnt lgkmcnt(0)")
        a("v_mov_b32 v1, 0")
        for i in range(16):
            a("s_sub_u32 s3, s%d, s84" % (84 + i)) if i != 1 else a("s_mov_b32 s3, s85")
            a("v_mov_b32 v2, s3")
            a("global_store_dword v1, v2, s[20:21] offset:%d" % (4 * i))
    a.label(l)

vL, vX, vFS, vFP, vTK, vPL = 174, 175, 216, 217, 218, 219

NOPS = {"w": 2, "x": 8, "xr": 8, "csa": 2, "cs": 1, "h": 4, "w2": 2, "h2": 4, "part": 4, "ex": 8, "er": 8, "o": 12, "stf": 4}
CUR = [None]
def chk(a, tag, **over):
    k = tag if isinstance(tag, str) else tag[0]
    n = over.get(k, NOPS.get(k, 1))
    S_ = CUR[0]
    if a.cnt.get(tag, 0) < n and S_ is not None:
        if VERB: print("LATE", tag, a.cnt.get(tag, 0), file=sys.stderr)
        while a.cnt.get(tag, 0) < n:
            if k in ("x", "w", "w2", "h2"):
                assert not S_.inbar or S_.mem, ("needs space behind this barrier", tag)
                S_.refill()
                q = S_.mem
            elif k in ("h", "part"):
                S_.flush_epi(); continue
            else: q = S_.extra
            assert q, ("cannot produce", tag)
            q.pop(0)[1]()
    a.expect(tag, n)
def wvm(a, tags, **over):
    for t in tags: chk(a, t, **over)
    a.wait_vm(lambda t: t in tags)
def wlg(a, tags, **over):
    for t in tags: chk(a, t, **over)
    a.wait_lg(lambda t: t in tags)

def ityp(code):
    out = ""
    for l in code.split("\n"):
        op = l.strip().split(" ")[0]
        if not op: continue
        if op == "s_waitcnt": continue
        if op.startswith("s_"): out += "S"
        elif op.startswith(("v_exp", "v_rcp", "v_sqrt")): out += "T"
        elif op.startswith("v_"): out += "V"
        elif op.startswith("ds_read"): out += "D"
        elif op.startswith("ds_write"): out += "X"
        elif op.startswith("buffer_store_dwordx"): out += "O"
        else: out += "M"
    return out
def I(a, s, c=1):
    def fn(): a(s)
    fn.code = s
    return (ityp(s), fn)
def Q(a, code):
    out = []; ls = [l.strip() for l in code.split("\n") if l.strip()]
    i = 0
    while i < len(ls):
        grp = [ls[i]]
        if ls[i].startswith(("s_cmp", "s_bitcmp")):
            while i + 1 < len(ls) and ls[i + 1].startswith(("s_cmov", "s_cselect")):
                i += 1; grp.append(ls[i])
        out.append(I(a, "\n".join(grp), len(grp)))
        i += 1
    return out
def VM(a, fmt, tag=None, w=1.0):
    def fn(): a.vmem(fmt() if callable(fmt) else fmt, tag)
    fn.vm = w
    return (ityp(fmt), fn)
def run(fns):
    for c, fn in fns: fn()

def signal(a, soff_code, tag=None):
    return [I(a, soff_code),
            ("M", lambda: a.vmem("buffer_store_dword v%d, v%d, %s, s49 offen %s" % (vTK, vFS, WSR, SC), tag))]

LATER = []
NSLOW = []
def slow_path(a, body, name):
    ls, lb, lp = a.newlabel("Lslow"), a.newlabel("Lback"), a.newlabel("Lspin")
    a("s_cbranch_scc1 %s" % ls)
    a.label(lb)
    b = Asm()
    b.label(ls)
    b("s_mov_b32 s59, 40000")
    if CFG.stamp:
        NSLOW.append(name)
        b("s_or_b32 s85, s85, 0x%x" % (1 << (len(NSLOW) - 1)))
    b.label(lp)
    b("s_sleep 1")
    body(b)
    b("s_cbranch_scc0 %s" % lb)
    b("s_sub_u32 s59, s59, 1")
    b("s_cmp_lg_u32 s59, 0")
    b("s_cbranch_scc1 %s" % lp)
    b("s_branch %s" % lb)
    LATER.extend(b.lines)
def poll_issue(a, soff_code, tag, dst=None, off=None):
    return [I(a, soff_code),
            ("M", lambda: a.vmem("buffer_load_dword v%d, v%d, %s, s49 offen %s" % (dst or vPL, off or vFP, WSR, SC), tag))]
def poll_check(a, soff_code, tag, mask, dst=None, off=None):
    def f1():
        wvm(a, [tag])
        a("v_cmp_eq_u32 vcc, s%d, v%d" % (sTOK, dst or vPL))
    def f2():
        d = dst or vPL
        a("s_andn2_b32 s61, %s, vcc_lo" % mask)
        def body(b):
            b(soff_code)
            b("buffer_load_dword v%d, v%d, %s, s49 offen %s" % (d, off or vFP, WSR, SC))
            b("s_waitcnt vmcnt(0)")
            b("v_cmp_eq_u32 vcc, s%d, v%d" % (sTOK, d))
            b("s_andn2_b32 s61, %s, vcc_lo" % mask)
        slow_path(a, body, str(tag))
    return [("SV", f1), ("SS", f2)]
def poll_now(a, soff_code, mask):
    tag = ("poll", a.newlabel())
    run(poll_issue(a, soff_code, tag))
    run(poll_check(a, soff_code, tag, mask))

def stats_load(a):
    a("s_lshl_b32 s52, s2, 2")
    a("s_add_u32 s52, s52, s%d" % sWAVE)
    a("v_lshrrev_b32 v40, 5, v%d" % vL)
    a("v_lshl_add_u32 v40, s52, 1, v40")
    a("v_mul_u32_u24 v41, 1152, v40")
    a("v_and_b32 v42, 31, v%d" % vL)
    a("v_lshl_add_u32 v43, v42, 4, v41")
    a("v_cmp_gt_u32 vcc, 8, v42")
    a("v_mov_b32 v45, 0x%x" % OOB)
    a("v_lshlrev_b32 v40, 4, v40")
    a("v_cndmask_b32 v44, v45, v43, vcc")
    a("v_cmp_eq_u32 vcc, 0, v42")
def stats_issue(a):
    a.vmem("buffer_load_dwordx4 v[0:3], v43, %s, 0 offen" % XR, "ln")
    a.vmem("buffer_load_dwordx4 v[4:7], v43, %s, 0 offen offset:512" % XR, "ln")
    a.vmem("buffer_load_dwordx4 v[8:11], v44, %s, 0 offen offset:1024" % XR, "ln")
    a("v_cndmask_b32 v40, v45, v40, vcc")
def stats_compute(a):
    a("s_mov_b32 s49, 0x%x" % ONE2)
    a("s_waitcnt lgkmcnt(0)")
    a("s_add_u32 s%d, s%d, 1" % (sTOK, sTOK))
    a("v_mov_b32 v%d, s%d" % (vTK, sTOK))
    a("v_mov_b32 v17, s%d" % sTOK)
    a("v_mov_b32 v19, s%d" % sTOK)
    a.wait_vm(lambda t: t == "ln")
    for r in range(12):
        a("v_dot2_f32_bf16 v12, v%d, s49, %s" % (r, "0" if r == 0 else "v12"))
        a("v_dot2_f32_bf16 v13, v%d, v%d, %s" % (r, r, "0" if r == 0 else "v13"))
    a("s_mov_b32 s49, %d" % ST_OFF)
    a("s_nop 1")
    for ror in (1, 2, 4, 8):
        a("v_add_f32_dpp v12, v12, v12 row_ror:%d row_mask:0xf bank_mask:0xf" % ror)
        a("v_add_f32_dpp v13, v13, v13 row_ror:%d row_mask:0xf bank_mask:0xf" % ror)
        a("s_nop 0")
    a("v_mov_b32 v14, v12")
    a("v_mov_b32 v15, v13")
    a("s_nop 1")
    a("v_permlane16_swap_b32 v12, v14")
    a("v_permlane16_swap_b32 v13, v15")
    a("s_nop 0")
    a("v_add_f32 v12, v12, v14")
    a("v_add_f32 v13, v13, v15")
    a("v_mul_f32 v12, %s, v12" % f32(1.0 / 576))
    a("v_mul_f32 v13, %s, v13" % f32(1.0 / 576))
    a("v_fma_f32 v13, -v12, v12, v13")
    a("v_max_f32 v13, 0, v13")
    a("v_cvt_pk_bf16_f32 v13, v13, v13")
    a("v_cvt_pk_bf16_f32 v16, -v12, -v12")
    a("v_and_b32 v13, 0xffff0000, v13")
    a("v_add_f32 v13, %s, v13" % f32(1e-5))
    a("v_cvt_pk_bf16_f32 v13, v13, v13")
    a("v_and_b32 v13, 0xffff0000, v13")
    a("v_sqrt_f32 v13, v13")
    a("s_nop 0")
    a("v_cvt_pk_bf16_f32 v13, v13, v13")
    a("v_and_b32 v18, 0xffff0000, v13")
    a.vmem("buffer_store_dwordx4 v[16:19], v40, %s, s49 offen %s" % (WSR, SC), "st")

def lane_fields(a, vq, vrow, vc):
    a("v_lshrrev_b32 v%d, 4, v%d" % (vq, vL))
    a("v_bfe_u32 v%d, v%d, 2, 3" % (vrow, vL))
    a("v_and_b32 v%d, 3, v%d" % (vc, vL))

def dma_lane_off(a, vD, t0, t1, rowbytes, perm=False):
    return [I(a, "v_lshrrev_b32 v%d, 3, v%d" % (t0, vL)),
            I(a, "v_and_b32 v%d, 6, v%d" % (t1, t0)),
            I(a, "v_xor_b32 v%d, v%d, v%d" % (t1, t1, vL)),
            I(a, "v_and_b32 v%d, 7, v%d" % (t1, t1))] + \
           ([I(a, "v_and_b32 v%d, 4, v%d" % (vD, t0)), I(a, "v_add_u32 v%d, v%d, v%d" % (t0, t0, vD))] if perm else []) + [
            I(a, "v_mul_u32_u24 v%d, %d, v%d" % (t0, rowbytes, t0)),
            I(a, "v_lshl_add_u32 v%d, v%d, 4, v%d" % (vD, t1, t0))]

RA = 160
def tr_addrs(a, t0, t1, t2):
    lane_fields(a, t0, t1, t2)
    a("v_lshrrev_b32 v%d, 1, v%d" % (t0, t0))
    a("v_lshlrev_b32 v%d, 10, v%d" % (t0, t0))
    a("v_lshl_add_u32 v%d, v%d, 7, v%d" % (t0, t1, t0))
    a("v_lshl_add_u32 v%d, v%d, 3, v%d" % (t0, t2, t0))
    a("v_lshrrev_b32 v%d, 1, v%d" % (t1, t1))
    for u in range(4):
        a("v_xor_b32 v%d, %d, v%d" % (t2, u, t1))
        a("v_lshl_add_u32 v%d, v%d, 5, v%d" % (RA + u, t2, t0))
        a("v_add_u32 v%d, 0x10000, v%d" % (RA + 4 + u, RA + u))
        a("v_add_u32 v%d, 0x20000, v%d" % (RA + 8 + u, RA + u))

class XStage:
    def __init__(self, a, XO, XA, base, R, reg):
        self.a, self.XO, self.XA, self.base, self.R, self.reg = a, XO, XA, base, R, reg
    def setup_dma(self, t0, t1):
        a = self.a
        a("v_lshrrev_b32 v%d, 3, v%d" % (t0, vL))
        a("v_lshrrev_b32 v%d, 1, v%d" % (t1, t0))
        a("v_xor_b32 v%d, v%d, v%d" % (t1, t1, vL))
        a("v_and_b32 v%d, 7, v%d" % (t1, t1))
        a("s_lshl_b32 s52, s%d, 8" % sI)
        a("s_lshl_b32 s49, s%d, 6" % sWAVE)
        a("s_add_u32 s52, s52, s49")
        a("v_add_u32 v%d, s52, v%d" % (t0, t0))
        a("v_mul_u32_u24 v%d, 1152, v%d" % (t0, t0))
        a("v_lshl_add_u32 v%d, v%d, 4, v%d" % (self.XO, t1, t0))
        a("v_xor_b32 v%d, 64, v%d" % (self.XO + 1, self.XO))
        a("v_add_u32 v%d, %d, v%d" % (self.XO + 2, 2 * (8 * 1152 - 1024), self.XO))
        a("v_add_u32 v%d, %d, v%d" % (self.XO + 3, 3 * (8 * 1152 - 1024), self.XO + 1))
        a("v_add_u32 v%d, %d, v%d" % (self.XO + 1, 8 * 1152 - 1024, self.XO + 1))
        a("s_mul_i32 s%d, s%d, %d" % (sXL, sWAVE, self.R * 8192))
        a("s_add_u32 s%d, s%d, %d" % (sXL, sXL, self.base))
        a("s_lshl_b32 s%d, s%d, 7" % (sXo, sROT))
    def setup_read(self, t0, t1, t2):
        a = self.a
        a("v_and_b32 v%d, 15, v%d" % (t0, vL))
        a("v_lshrrev_b32 v%d, 1, v%d" % (t1, t0))
        a("v_lshrrev_b32 v%d, 4, v%d" % (t2, vL))
        a("v_xor_b32 v%d, v%d, v%d" % (t1, t1, t2))
        a("v_lshlrev_b32 v%d, 7, v%d" % (t0, t0))
        a("v_lshl_add_u32 v%d, v%d, 4, v%d" % (t0, t1, t0))
        a("v_add_u32 v%d, s%d, v%d" % (self.XA, sXL, t0))
        a("v_xor_b32 v%d, 64, v%d" % (self.XA + 1, self.XA))
    def dma(self, p):
        a = self.a
        fns = []
        if p >= self.R: fns.append(("S", lambda: wlg(a, [("xr", p - self.R)])))
        for hf in range(2):
            fns.append(I(a, "s_add_u32 m0, s%d, %d" % (sXL, (p % self.R) * 8192 + hf * 4096)))
            fns.append(I(a, "s_add_u32 s54, s%d, %d" % (sXo, hf * 32 * 1152)))
            for b in range(4):
                fns.append(VM(a, "buffer_load_dwordx4 v%d, %s, s54 offen offset:%d lds" % (self.XO + b, XR, b * 1024), ("x", p)))
        fns.append(I(a, "s_add_u32 s%d, s%d, 128\ns_cmp_ge_u32 s%d, 1152\ns_cmov_b32 s%d, 0" % (sXo, sXo, sXo, sXo), 3))
        return fns
    def job(self, p):
        return ("x", lambda: p < self.R or self.a.cnt.get(("xr", p - self.R), 0) == 8, lambda: self.dma(p))
    def reads(self, p):
        a = self.a
        fns = [("S", lambda: wvm(a, [("x", p)]))]
        for e in range(2):
            for tt in range(4):
                k, b = self.reg(2 * p + e, tt)
                fns.append(("D", lambda k=k, b=b, e=e, tt=tt: a.lds("ds_read_b128 %s, v%d offset:%d" % (R(k, b, 4), self.XA + e, (p % self.R) * 8192 + tt * 2048), ("xr", p))))
        return fns

class Stream:
    def __init__(self, a, kind, base):
        self.a, self.kind, self.base = a, kind, base
        self.slots = []; self.ring = []
        self.nring = 0
        self.pair = set()
        self.next_rd = 0
        self.epi = []; self.deadline = 0; self.epiP = None; self.hold = 0; self.edone = {}; self.short = False
        self.extra = []
        self.inbar = False
        CUR[0] = self
        self.vmacc = 1.0; self.vmrate = CFG.vmrate / 100.0
        self.jobs = []; self.mem = []
        self.pos = 0
    def refill(self):
        if self.mem: return
        blocked = set()
        for j, (cl, ready, make) in enumerate(self.jobs):
            if cl in blocked: continue
            if len(self.a.vm) <= 50 and ready():
                self.mem = make(); self.jobs.pop(j); return
            blocked.add(cl)
    def head(self, q):
        if q and "\n" in getattr(q[0][1], "code", "") and not getattr(q[0][1], "atom", False):
            parts = Q(self.a, q[0][1].code)
            for c, f in parts: f.atom = True
            q[0:1] = parts
        return q[0] if q else None
    def add(self, rd, mf, pair=False):
        if pair and CFG.chain: self.pair.add(len(self.slots))
        self.slots.append((rd, mf))
        self.ring.append(self.nring if rd else None)
        if rd: self.nring += 1
    def cur_ring(self, s):
        while s < len(self.slots) and self.ring[s] is None: s += 1
        return self.ring[s] if s < len(self.slots) else self.nring
    def read_limit(self, s):
        return self.cur_ring(s) + 4
    def pending_reads(self, lim):
        out = []
        while self.next_rd < len(self.slots):
            n = self.next_rd
            if self.ring[n] is None: self.next_rd += 1; continue
            if self.ring[n] > lim: break
            out += self.slots[n][0](self.kind, self.base + 4 * (self.ring[n] % 8), ("f", self.ring[n]))
            self.next_rd += 1
        return out
    def prime(self): run(self.pending_reads(self.cur_ring(self.pos) + 3))
    def set_epi(self, items, deadline, hold=0, ordered=True):
        assert not self.epi
        ops = []
        for n, it in enumerate(items):
            deps = set()
            if ordered:
                if n: deps.add(n - 1)
            else:
                rd, wr = set(it[2]), set(it[3])
                for m in range(n):
                    if (rd | wr) & set(items[m][3]) or wr & set(items[m][2]): deps.add(m)
            ops.append([it[0], it[1], deps, n])
        self.epi = ops; self.edone = {}; self.deadline = deadline; self.hold = self.pos + hold
    def epi_cost(self): return sum(2 if o[0] in "TMOX" and o[0] else len(o[0]) for o in self.epi)
    def epi_pick(self, fits, strict=True):
        if self.pos < self.hold or (strict and self.short): return None
        for o in self.epi[:CFG.window]:
            ok = True
            for d in o[2]:
                if d not in self.edone: ok = False; break
                t, at = self.edone[d]
                if (t == "T" or strict) and t in ("T", "V") and o[0] in ("T", "V") and self.a.n - at < 1: ok = False; break
            if ok and fits(o[0]): return o
        return None
    def epi_run(self, o):
        self.epi.remove(o); o[1](); self.edone[o[3]] = (o[0], self.a.n)
    def flush_epi(self):
        while self.epi:
            o = self.epi_pick(lambda t: True, False)
            if o is None: self.a("s_nop 0"); continue
            self.epi_run(o)
    def emit(self, pre=(), push=0):
        a = self.a
        s = self.pos
        rd, mf = self.slots[s]
        r = self.ring[s]
        if r is not None: a.wait_lg(lambda t: t == ("f", r) or (s in self.pair and t == ("f", r + 1)))
        frag = lambda q: R(self.kind, self.base + 4 * (q % 8), 4)
        mfmas = mf(frag(r) if r is not None else None)
        if s in self.pair:
            assert a.cnt.get(("f", r + 1), 0) == 2
            o = self.slots[s + 1][1](frag(r + 1)); mfmas = [mfmas[0], o[0], mfmas[1], o[1]]
        elif s - 1 in self.pair:
            o = self.slots[s - 1][1](frag(r - 1)); mfmas = [o[2], mfmas[2], o[3], mfmas[3]]
        n = len(mfmas)
        must = list(pre) + (self.pending_reads(self.read_limit(s)) if n == 4 else [])
        self.short = n < 4
        force = 0
        if self.epi and s >= self.hold and (n == 4 or self.deadline - s <= 1):
            left = max(self.deadline - s, 1)
            force = self.epi_cost() - int((left - 1) * CFG.epirate)
            if left * CFG.epirate < self.epi_cost(): force = math.ceil(self.epi_cost() / left)
        if n == 4: self.vmacc = min(self.vmacc + self.vmrate, 2.0)
        cost0 = self.epi_cost()
        for g, m in enumerate(mfmas):
            a(m)
            st = {"pos": 0, "vec": False, "bar": False}
            def place(t, commit=False):
                pos, vec, bar = st["pos"], st["vec"], st["bar"]
                for c in t:
                    if c == "B": pos += 2; bar = True
                    elif c == "S": pos += 1
                    elif c == "D":
                        if vec or bar: return False
                        pos = max(pos, 1) + 1; vec = True
                    elif c == "V": pos = max(pos, 1) + 1; vec = True
                    elif c == "T":
                        pos = max(pos, 1) + 2; vec = True
                    elif c == "M":
                        if pos: return False
                        pos = 3; vec = True
                    elif c == "O":
                        if pos: return False
                        pos = 2; vec = True
                    elif c == "X":
                        if vec or pos > 1: return False
                        pos = 3; vec = True
                if pos > 3: return False
                if commit: st["pos"], st["vec"], st["bar"] = pos, vec, bar
                return True
            def take(lst):
                t, f = lst.pop(0); place(t, True); f()
                if getattr(f, "vm", False): self.vmacc -= f.vm
            free_q = n == 4 and not any(t == "B" for t, f in must)
            nd = sum(1 for t, f in must if t == "D")
            want_d = nd > 0 and (nd >= n - g or g % 2 == 0 or nd > (n - g) // 2)
            def heads():
                out = []
                if not any(t == "B" for t, f in must):
                    self.refill()
                    for lst in (self.mem, self.extra):
                        h = self.head(lst)
                        if h is None: continue
                        if lst is self.mem and getattr(h[1], "vm", False) and self.vmacc < 1: continue
                        out.append(lst)
                return out
            def drop_free():
                ch = True
                while ch:
                    ch = False
                    for lst in heads():
                        if lst[0][0] == "": take(lst); ch = True
                    o = self.epi_pick(lambda t: t == "") if free_q or not must or must[0][0] != "B" else None
                    if o: self.epi_run(o); ch = True
            while must and must[0][0] == "B":
                self.inbar = True; take(must); self.inbar = False
            st["w"] = False
            if g == n - 1 and n == 4:
                nx = self.cur_ring(s + 1)
                if (("f", nx) in a.lg or (s + 1 in self.pair and ("f", nx + 1) in a.lg)) and a.cnt.get(("f", nx), 0) % 2 == 0:
                    two = a.cnt.get(("f", nx + 1), 0) == 2
                    a.wait_lg(lambda t: t == ("f", nx) or (two and t == ("f", nx + 1))); st["w"] = True
            drop_free()
            done_heavy = False
            if not want_d and not (must and must[0][0] == "V"):
                for lst in heads():
                    if lst[0][0] in ("M", "O", "X") and place(lst[0][0]): take(lst); done_heavy = True; break
                if not done_heavy:
                    o = self.epi_pick(lambda t: t in ("O", "M", "X") and place(t))
                    if o: place(o[0], True); self.epi_run(o); done_heavy = True
            if not done_heavy:
                if st["w"]: place("S", True)
                if st["pos"] == 0:
                    for lst in heads():
                        if lst[0][0] == "S" or (lst[0][0] in ("SS", "SV") and not want_d): take(lst); break
                    else:
                        o = self.epi_pick(lambda t: t == "S")
                        if o: place("S", True); self.epi_run(o)
                    drop_free()
                if must and must[0][0] == "D" and want_d and place("D"): take(must)
                elif not want_d:
                    for lst in heads():
                        if lst[0][0] == "D" and place("D"): take(lst); break
                    else:
                        o = self.epi_pick(lambda t: t == "D" and place(t))
                        if o: place("D", True); self.epi_run(o)
            while True:
                drop_free()
                if must and must[0][0] == "V" and place("V"): take(must); continue
                for lst in heads():
                    if lst[0][0] and set(lst[0][0]) <= set("SVT") and place(lst[0][0]): take(lst); break
                else:
                    o = self.epi_pick(lambda t: t == "T" and place(t)) or self.epi_pick(lambda t: t in ("V", "S") and place(t))
                    if o is None: break
                    place(o[0], True); self.epi_run(o)
            want = force * (g + 1) / n
            while self.epi and cost0 - self.epi_cost() < want:
                o = self.epi_pick(lambda t: t in ("V", "T", "S", "") or g == n - 1, False)
                if o is None: break
                self.epi_run(o)
            if g == n - 1:
                while must: must.pop(0)[1]()
                k = push
                while k > 0 and self.head(self.extra): self.extra.pop(0)[1](); k -= 1
        self.pos += 1

def tr_read(a, off_fn, u):
    def rd(kind, reg, tag):
        off = off_fn()
        return [("D", lambda h=h: a.lds("ds_read_b64_tr_b16 %s, v%d offset:%d" % (R(kind, reg + 2 * h, 2), RA + 4 * (off >> 16) + u, (off & 0xffff) + h * 2048), tag)) for h in range(2)]
    return rd

WF = 128
HRING = 10
GORDER = [2, 1, 0]
def acc2(c, tt):
    m = c >> 1
    if c & 1: return ("a", 160 + 16 * m + 4 * tt)
    return ("v", (16 * m if m < 4 else 224 + 16 * (m - 4)) + 4 * tt)
def hr(st, tt): return A(16 * (st % HRING) + 4 * tt, 4)
sPX = 56
vEW, vER, vXP, vOU = 195, 196, 192, 193
sLS = 74
TS = [4, 5, 6, 10, 11, 20]
HB = {0: 12, 1: 13, 2: 62}
WB = {0: 14, 1: 15, 2: 3}
def rot_bases(a, other):
    if CFG.hrot == 2:
        a("s_add_u32 s61, s68, s%d" % other)
        a("s_mul_i32 s60, s61, 43")
        a("s_lshr_b32 s60, s60, 7")
        a("s_mul_i32 s60, s60, 3")
        a("s_sub_u32 s61, s61, s60")
    else: a("s_mov_b32 s61, s68")
    for k in range(3):
        if CFG.hrot:
            a("s_add_u32 s52, s61, %d" % k)
            a("s_cmp_ge_u32 s52, 3")
            a("s_cselect_b32 s60, 3, 0")
            a("s_sub_u32 s52, s52, s60")
        else: a("s_mov_b32 s52, %d" % k)
        a("s_mul_i32 s60, s52, %d" % (192 * 1152))
        a("s_add_u32 s%d, s63, s60" % WB[k])
        a("s_mul_i32 s60, s52, %d" % (6 * KSTRIDE))
        a("s_add_u32 s%d, s62, s60" % HB[k])

class P2:
    def __init__(self, a, steps, VO, VS, VX, atype):
        self.a = a; self.steps = steps; self.VO = VO; self.VS = VS; self.VX = VX; self.atype = atype
        self.loc = {}
        self.free = []
        self.visible = set()
        self.cur = 0
        NS, K = len(steps), (CFG.ka if atype else CFG.kseq)
        D = CFG.da if atype else CFG.defer
        def block(s0, s1, cs):
            out = []
            for st in range(s0, s1, 2): out += [(k, c) for c in cs for k in range(st, min(st + 2, s1))]
            return out
        self.order = block(0, NS - D, range(12)) + block(NS - D, NS - K, range(4 if atype else 2, 12))
        self.seq0 = len(self.order)
        self.groups = []
        for keep, n in [((8, 10), K), ((4, 6), K)] + ([((0, 2), D)] if atype else [((2,), K), ((0,), D)]):
            self.order += block(NS - n, NS, [c + 1 for c in keep])
            e1 = len(self.order)
            self.order += block(NS - n, NS, keep)
            self.groups.append((keep, e1, len(self.order)))
        self.units = []
        for st, c in self.order:
            if (st, c >> 2) not in self.units: self.units.append((st, c >> 2))
    def setup_s(self):
        a = self.a
        srd(a, rW2, sW2, 4608 * 1152)
        srd(a, rWO, sWO, 576 * 1152)
        a("s_lshl_b32 s66, s%d, 11" % sWAVE)
    def setup_vo(self, t0, t1, half_code, sTile=sI):
        a = self.a
        return dma_lane_off(a, self.VO, t0, t1, 1152) + Q(a, """s_mul_i32 s52, s68, 384
            s_and_b32 s60, s{W}, 1
            s_mul_i32 s60, s60, {R16}
            s_add_u32 s52, s52, s60
            v_add_u32 v{VO}, s52, v{VO}
            v_add_u32 v{VO1}, {D}, v{VO}
            {HALF}
            s_lshl1_add_u32 s52, s{I}, s52
            s_mul_i32 s9, s52, 3
            s_add_u32 s9, s9, s68
            s_lshl_b32 s9, s9, 7
            s_add_u32 s9, s9, {FP}
            s_and_b32 s60, s{W}, 1
            s_lshl1_add_u32 s52, s52, s60
            s_lshl_b32 s52, s52, 12
            v_lshl_add_u32 v{VX}, v{L}, 4, s52""".format(W=sWAVE, R16=16 * 1152, VO=self.VO, VO1=self.VO + 1, D=8 * 1152 - 1024, HALF=half_code, FP=FL(FP), I=sTile, VX=self.VX, L=vL))
    def setup_special(self, t0, t1, t3):
        a = self.a
        for k in range(2):
            a("s_and_b32 s49, s%d, 1" % sWAVE)
            a("s_lshl_b32 s49, s49, 4")
            a("v_lshrrev_b32 v%d, 3, v%d" % (t0, vL))
            a("v_add3_u32 v%d, s49, v%d, %d" % (t0, t0, 8 * k))
            a("v_lshrrev_b32 v%d, 4, v%d" % (t1, t0))
            a("v_mul_u32_u24 v%d, 72, v%d" % (t1, t1))
            a("v_bfe_u32 v%d, v%d, 2, 2" % (t3, t0))
            a("v_lshl_add_u32 v%d, v%d, 4, v%d" % (t1, t3, t1))
            a("v_lshrrev_b32 v%d, 1, v%d" % (t3, t3))
            a("v_lshl_add_u32 v%d, v%d, 2, v%d" % (t1, t3, t1))
            a("v_and_b32 v%d, 3, v%d" % (t3, t0))
            a("v_add3_u32 v%d, v%d, v%d, 16" % (t1, t1, t3))
            a("v_sub_u32 v%d, v%d, v%d" % (t1, t1, t0))
            a("v_mul_u32_u24 v%d, 1152, v%d" % (t1, t1))
            a("v_add_u32 v%d, v%d, v%d" % (self.VS + k, self.VO + k, t1))
    def h_issue(self, st):
        a = self.a
        pl, row, kind = self.steps[st]
        fns = [I(a, "s_add_u32 s54, s%d, %d" % (HB[kind] if kind in HB else (7 if kind == "woa" else 64), pl * KSTRIDE))]
        for tt in range(4):
            fns.append(VM(a, "buffer_load_dwordx4 %s, v%d, %s, s54 offen offset:%d %s" % (hr(st, tt), self.VX, WSR, tt * 1024, SC), ("h2", st), CFG.hw))
        return fns
    def dma_issue(self, st, ln):
        a = self.a
        pl, row, kind = self.steps[st]
        r = rW2 if kind in HB else rWO
        vo = self.VS if kind == "wos" else self.VO
        sl = self.free.pop(0)
        self.loc[(st, ln)] = sl
        return [I(a, "s_add_u32 m0, s66, %d" % (sl * 8192)),
                I(a, "s_add_u32 s55, s%d, %d" % (WB[kind] if kind in WB else 65, row * 1152 + ([2, 0, 1][ln] if self.atype else ln) * 128))] + \
               ([I(a, "%s s55, s55, s%d" % (["s_add_u32", "s_sub_u32"][ln], sLS))] if ln < 2 and not self.atype else []) + [
                VM(a, "buffer_load_dwordx4 v%d, s[%d:%d], s55 offen lds" % (vo, r, r + 3), ("w2", st, ln)),
                VM(a, "buffer_load_dwordx4 v%d, s[%d:%d], s55 offen offset:1024 lds" % (vo + 1, r, r + 3), ("w2", st, ln))]
    def jobs(self, first, w_ok, h_ok):
        out = []; hs = set(range(first))
        for st, ln in self.units:
            if st not in hs:
                hs.add(st)
                def mk(st=st):
                    self.hpos = CUR[0].pos
                    return self.h_issue(st)
                out.append(("h2", lambda st=st: st - HRING < self.cur and h_ok(st) and CUR[0].pos >= self.hpos + CFG.hgap, mk))
            if (st, ln) in self.loc: continue
            out.append(("w2", lambda st=st: len(self.free) > self.reserve and w_ok(st), lambda st=st, ln=ln: self.dma_issue(st, ln)))
        return out
    reserve = 0
    hpos = -100
    def add_slots(self, S_):
        a = self.a
        self.s0 = len(S_.slots)
        fixed = set()
        self.first = set()
        n_ = 0
        while n_ + 1 < len(self.order):
            if self.order[n_ + 1] == (self.order[n_][0] + 1, self.order[n_][1]): self.first.add(n_); n_ += 2
            else: n_ += 1
        for n_, (st, c) in enumerate(self.order):
            def rd(kind, reg, tag, st=st, c=c):
                assert (st, c >> 2) in self.visible, (st, c)
                off = self.loc[(st, c >> 2)] * 8192
                ra = RA + 4 * (off >> 16) + (c & 3)
                out = []
                if ra not in fixed:
                    fixed.add(ra); out.append(I(a, "v_xor_b32 v%d, s%d, v%d" % (ra, sPX, ra)))
                return out + tr_read(a, lambda: off, c & 3)(kind, reg, tag)
            def mf(w, st=st, c=c):
                return ["%s %s, %s, %s, %s" % (MF, R(*acc2(c, tt), 4), w, hr(st, tt), "0" if st == 0 else R(*acc2(c, tt), 4)) for tt in range(4)]
            S_.add(rd, mf, n_ in self.first)
    def exchange(self, g, tmp):
        a = self.a
        keep = self.groups[g][0]
        send = []; recv = []; fin = []
        def adj(q, reg, cur, want):
            if cur[0] != want: q.append(I(a, "v_add_u32 v%d, 0x%x, v%d" % (reg, (want - cur[0]) & 0xffffffff, reg))); cur[0] = want
        for k, (c, tt) in enumerate([(c, tt) for c in keep for tt in range(4)]):
            off = self.scratch[k >> 1] * 8192 + (k & 1) * 4096
            adj(send, vEW, self.ew, off & ~0xffff)
            send.append(("X", lambda c=c, tt=tt, off=off: a.lds("ds_write_b128 v%d, %s offset:%d" % (vEW, R(*acc2(c + 1, tt), 4), off & 0xffff), ("ex", g))))
            adj(recv, vER, self.er, off & ~0xffff)
            recv.append(("D", lambda k=k, off=off: a.lds("ds_read_b128 %s, v%d offset:%d" % (V(tmp + 4 * k, 4), vER, off & 0xffff), ("er", g))))
        for n, c in enumerate(keep):
            for tp in range(2):
                r0 = acc2(c, 2 * tp)[1]; t = tmp + 16 * n + 8 * tp
                for i in range(8): fin.append(I(a, "v_add_f32 v%d, v%d, v%d" % (r0 + i, r0 + i, t + i)) + ([r0 + i, t + i], [r0 + i]))
                for i in range(4): fin.append(I(a, "v_cvt_pk_bf16_f32 v%d, v%d, v%d" % (r0 + i, r0 + 2 * i, r0 + 2 * i + 1)) + ([r0 + 2 * i, r0 + 2 * i + 1], [r0 + i]))
                fin.append(VM(a, "buffer_store_dwordx4 %s, v%d, %s, s%d offen offset:%d %s" % (V(r0, 4), vXP, WSR, TS[c >> 1], tp * 1024, SC), ("part", g)) + ([r0, r0 + 1, r0 + 2, r0 + 3], []))
        return send, recv, fin
    def fin_setup(self):
        a = self.a
        code = """s_mul_i32 s75, s67, 36
            s_mul_i32 s52, s68, 12
            s_lshr_b32 s60, s{W}, 1
            s_add_u32 s52, s52, s60
            s_add_u32 s75, s75, s52
            s_lshl_b32 s75, s75, 16
            s_add_u32 s75, s75, {PART}
            """.format(W=sWAVE, PART=PART_OFF)
        if self.atype:
            for m in range(6): code += "s_add_u32 s%d, s75, %d\n" % (TS[m], ([2, 0, 1][m >> 1] * 4 + 2 * (m & 1)) * 65536)
        else:
            code += "s_lshl_b32 s60, s%d, 11\ns_and_b32 s61, s67, 1\ns_lshl_b32 s61, s61, 17\n" % sLS
            for m in range(6):
                code += "s_add_u32 s%d, s75, %d\n" % (TS[m], ((m >> 1) * 4 + 2 * (m & 1)) * 65536)
                if m >> 1 < 2: code += "%s s%d, s%d, s60\n" % (["s_add_u32", "s_sub_u32"][m >> 1], TS[m], TS[m])
                code += "%s s%d, s%d, s61\n" % (["s_add_u32", "s_sub_u32"][m & 1], TS[m], TS[m])
        code += """s_mul_i32 s60, s67, {PSL}
            s_sub_u32 s73, s{T0}, s60
            s_sub_u32 s75, s73, {PART}
            s_lshr_b32 s75, s75, 11
            v_lshlrev_b32 v194, 4, v{L}
            v_sub_u32 v{XP}, v{VX}, v194
            v_lshrrev_b32 v{OU}, 6, v{XP}
            v_lshrrev_b32 v{XP}, 1, v{XP}
            v_add_u32 v{XP}, v{XP}, v194
            s_lshl_b32 s52, s{W}, 10
            v_add_u32 v{EW}, s52, v194
            v_xor_b32 v{ER}, 0x800, v{EW}
            v_and_b32 v194, 15, v{L}
            v_add_u32 v{OU}, v{OU}, v194
            v_mul_u32_u24 v{OU}, 1152, v{OU}
            v_lshrrev_b32 v194, 4, v{L}
            v_lshl_add_u32 v{OU}, v194, 3, v{OU}
            s_mov_b32 s76, 0x3f80
            s_mov_b32 s77, 0x3f800000""".format(PSL=PSL, T0=TS[0], PART=PART_OFF, L=vL, XP=vXP, VX=self.VX, OU=vOU, W=sWAVE, EW=vEW, ER=vER)
        b_ = Asm(); srd(b_, rWA, sOUT, 2048 * 1152)
        q = Q(a, code + "\n" + "\n".join(b_.lines))
        self.xl = []
        for tt in range(4):
            self.xl.append([I(a, "s_add_u32 s52, s75, %d" % (tt * 16 * 1152))] +
                           [VM(a, "buffer_load_dwordx2 %s, v%d, %s, s52 offen offset:%d" % (V(XB + 8 * n + 2 * tt, 2), vOU, XR, 64 * n), "x3") for n in range(len(self.groups[-1][0]))])
        return q
    def main(self, S_, hooks, dead0):
        a = self.a
        NG = len(self.groups)
        seen = set()
        self.ew = [0]; self.er = [0]
        def psig(k): return signal(a, "s_lshl2_add_u32 s49, s67, s9\ns_add_u32 s49, s49, %d" % (32 * k))
        N = len(self.order)
        nst = {}
        for st, c in self.order[:self.seq0]: nst[st] = nst.get(st, 0) + 1
        bars = {}; e = 0
        for st in sorted(nst):
            e += nst[st]; bars[e - 5] = st
        bars[self.seq0 + 2] = None
        if self.atype:
            for x in range(self.groups[1][2], self.groups[2][1], 8): bars[x] = None
        ev = {}
        tmp = [64, 96, 64, 80]
        t = 0
        for g, (keep, e1, e2) in enumerate(self.groups):
            n = len(keep)
            s_send = max(e1 + 2, t)
            s_bar = s_send + (CFG.exs if n == 2 else (CFG.exs + 1) // 2)
            s_fin = max(e2 + 2, s_bar + 2 * n + 1)
            ev.setdefault(s_send, []).append(("send", g)); ev.setdefault(s_bar, []).append(("recv", g)); ev.setdefault(s_fin, []).append(("fin", g))
            bars[s_send] = None; bars[s_bar] = None
            t = s_bar + 2 * n + 1
        assert max(s for s in ev if ("fin", NG - 1) not in ev[s]) < N, (ev, N)
        s_early = N - CFG.early
        if not self.atype: bars[s_early] = None
        s_mid = N - CFG.mid if CFG.mid and not self.atype else -1
        if s_mid > 0: bars[s_mid] = None
        keep = self.groups[-1][0]
        def pb(r, n):
            k = r * len(keep) + n
            return 96 + 8 * k if k < 4 else 32 + 8 * (k - 4)
        s_af = N - CFG.af if CFG.af and self.atype else -1
        if s_af > 0: bars[s_af] = None
        def ploads(r):
            q = []
            if self.atype: q.append(I(a, "s_add_u32 s58, s73, %d" % (r * PSL)))
            elif r == 0: q.append(I(a, "s_add_u32 s58, s73, %d" % (4 * PSL)))
            else: q += Q(a, "s_xor_b32 s52, s67, %d\ns_mul_i32 s52, s52, %d\ns_add_u32 s58, s73, s52" % (4 - r, PSL))
            for n in range(len(keep)):
                if n: q.append(I(a, "s_add_u32 s58, s58, %d" % (2 * 65536)))
                for tp in range(2):
                    q.append(VM(a, "buffer_load_dwordx4 %s, v%d, %s, s58 offen offset:%d %s" % (V(pb(r, n) + 4 * tp, 4), vXP, WSR, tp * 1024, SC), ("p", r)))
            return q
        last = {}
        for s, (st, c) in enumerate(self.order): last[(st, c >> 2)] = s + 1
        freed = set()
        ex = {}
        cnt = lambda g: dict(ex=4 * len(self.groups[g][0]), er=4 * len(self.groups[g][0]), part=2 * len(self.groups[g][0]))
        first_bar = min(bars)
        for s, (st, c) in enumerate(self.order):
            if st not in seen:
                seen.add(st)
                self.cur = st
                if VERB: a.cm("HS p2 step %d" % st)
                if st < 22: stamp(a, 4 + st // 2, 3)
                wvm(a, [("h2", st)])
                if s in self.first: seen.add(st + 1); wvm(a, [("h2", st + 1)])
                if st in (0, 8): stamp(a, 10 + st // 8)
            pre = []
            r = s - self.seq0
            if VERB and r > 0 and r % 10 == 0: a.cm("HS p2 tail %d" % r)
            if r >= 0 and r % 8 == 0 and r < 64: stamp(a, 4 + r // 8, 4)
            if r == -CFG.rsv: self.reserve = 4
            evs = ev.get(s, [])
            if s in bars:
                nxt = min([b for b in bars if b > s] + [N])
                lim = S_.read_limit(self.s0 + nxt - 1) - S_.ring[self.s0]
                need = []
                for st2, c2 in self.order[:lim + 1]:
                    u = (st2, c2 >> 2)
                    if u not in self.visible and u not in need: need.append(u)
                hk = hooks.get(bars[s], {})
                tags = [("w2",) + u for u in need] + hk.get("bar", [])
                lg = []; ptags = []
                aft = list(hk.get("after", []))
                dead = [u for u in last if last[u] < s and u not in freed]
                newfree = [self.loc[u] for u in dead] + (dead0 if s == first_bar else [])
                for kind, g in evs:
                    if kind == "send" and g > 0: lg.append(("er", g - 1))
                    if kind == "recv": lg.append(("ex", g)); aft += ex[g][1]
                if s == s_early and not self.atype:
                    ptags.append(("part", 0)); aft += psig(0)
                if s == s_af:
                    ptags.append(("part", 1))
                    aft += psig(1)
                if s == s_mid:
                    ptags.append(("part", 1)); aft += psig(2)
                if tags or lg or ptags or aft or (newfree and S_.jobs):
                    def bar(tags=tags, lg=lg, ptags=ptags):
                        for t_ in lg: wlg(a, [t_], **cnt(t_[1]))
                        for t_ in ptags: wvm(a, [t_], **cnt(t_[1]))
                        wvm(a, tags)
                        a("s_barrier")
                    pre.append(("B", bar))
                    self.visible.update(need); freed.update(dead); self.free += newfree
                    S_.extra += aft
            for kind, g in evs:
                if kind == "send":
                    if g == 0:
                        self.scratch = sorted(self.free[:4]); self.free = self.free[4:]; self.reserve = 0
                        assert len(self.scratch) == 4
                    ex[g] = self.exchange(g, tmp[g])
                    S_.extra += ex[g][0]
                if kind == "recv" and g >= 2: chk(a, ("part", 0), **cnt(0))
                if kind == "fin":
                    wlg(a, [("er", g)], **cnt(g))
                    S_.flush_epi()
                    S_.set_epi(ex[g][2], S_.pos + CFG.findl * len(self.groups[g][0]), 0, False)
            if r == -CFG.fsat: S_.extra += self.fin_setup()
            if r > -CFG.fsat and (r + CFG.fsat) % CFG.xsp == 0 and self.xl: S_.extra += self.xl.pop(0)
            if s_af > 0 and s == N - CFG.ag - CFG.ap: S_.extra += poll_issue(a, "s_mov_b32 s49, s9", "pla")
            if s_af > 0 and s == N - CFG.ag:
                S_.extra += poll_check(a, "s_mov_b32 s49, s9", "pla", "0xf") + ploads(0) + ploads(1) + ploads(2) + ploads(3)
            if s_mid > 0 and s == N - CFG.pmid:
                S_.extra += Q(a, "s_and_b32 s8, s67, 2\ns_lshr_b32 s8, 0xc0000, s8\ns_or_b32 s8, s8, 0x1000") + poll_issue(a, "s_mov_b32 s49, s9", "plm")
            S_.emit(pre)
        assert not S_.jobs and not S_.mem
        run(S_.extra); S_.extra = []
        S_.flush_epi()
        if VERB: a.cm("END")
        stamp(a, 12); stamp(a, 12, 4)
        CUR[0] = None
        if s_af < 0:
            wvm(a, [("part", NG - 2)], **cnt(NG - 2))
            a("s_barrier")
            run(psig(1))
        stamp(a, 13)
        done = [0, 1, 2, 3] if s_af > 0 else []
        if s_mid > 0:
            run(poll_check(a, "s_mov_b32 s49, s9", "plm", "s8"))
            done = [0, 1, 2]
            for r in done: run(ploads(r))
        vmkeep = [t_ for t_ in a.vm if t_ is not None and t_[0] == "p"]
        lw = a.newlabel("Lfw")
        if s_af < 0:
            a("s_cmp_lg_u32 s%d, 3" % sWAVE)
            a("s_cbranch_scc1 %s" % lw)
        if s_af > 0: a("s_nop 7")
        elif self.atype: spin(a, "s_mov_b32 s49, s9", "0xf", CFG.slp0)
        else:
            if s_mid > 0:
                a("s_xor_b32 s52, s67, 1")
                a("s_lshl_b32 s52, 0x100, s52")
            else:
                a("s_lshl_b32 s52, 0x100, s67")
                a("s_andn2_b32 s52, 0x1f00, s52")
            spin(a, "s_mov_b32 s49, s9", "s52", CFG.slp1)
            a("s_cmp_lg_u32 s2, 64")
            a("s_cbranch_scc1 %s" % lw)
            a("s_mov_b32 s49, 0x%x" % FL(0))
            a("buffer_store_dword v%d, v%d, %s, s49 offen" % (vTK, vFS, WSR))
        a.label(lw)
        if s_af < 0: a("s_barrier")
        stamp(a, 14)
        assert "x3" not in a.vm
        if s_af < 0: a.vm = vmkeep
        for r in range(4):
            if r not in done: run(ploads(r))
        wlg(a, [("er", NG - 1)], **cnt(NG - 1))
        for n, c in enumerate(keep):
            r0 = acc2(c, 0)[1]
            for i in range(0, 16, 2): a("v_pk_add_f32 %s, %s, %s" % (V(r0 + i, 2), V(r0 + i, 2), V(tmp[NG - 1] + 16 * n + i, 2)))
            for i in range(8):
                a("v_dot2_f32_bf16 v%d, v%d, s76, v%d" % (r0 + 2 * i, XB + 8 * n + i, r0 + 2 * i))
                a("v_dot2_f32_bf16 v%d, v%d, s77, v%d" % (r0 + 2 * i + 1, XB + 8 * n + i, r0 + 2 * i + 1))
        for r in range(4):
            a.wait_vm(lambda t_: t_ == ("p", r))
            for n, c in enumerate(keep):
                r0 = acc2(c, 0)[1]
                for i in range(8):
                    p = pb(r, n) + i
                    a("v_dot2_f32_bf16 v%d, v%d, s76, v%d" % (r0 + 2 * i, p, r0 + 2 * i))
                    a("v_dot2_f32_bf16 v%d, v%d, s77, v%d" % (r0 + 2 * i + 1, p, r0 + 2 * i + 1))
        a("s_nop 2")
        for n, c in enumerate(keep):
            r0 = acc2(c, 0)[1]
            for i in range(8): a("v_cvt_pk_bf16_f32 v%d, v%d, v%d" % (r0 + i, r0 + 2 * i, r0 + 2 * i + 1))
            for tt in range(4):
                a("s_add_u32 s52, s75, %d" % (tt * 16 * 1152))
                a("buffer_store_dwordx2 %s, v%d, s[%d:%d], s52 offen offset:%d" % (V(r0 + 2 * tt, 2), vOU, rWA, rWA + 3, 64 * n))

XB = 176

def hilo(a, v, t0, t1):
    return [I(a, "v_cvt_pk_bf16_f32 v%d, v%d, v%d" % (t0, v, v)),
            I(a, "v_and_b32 v%d, 0xffff0000, v%d" % (t0, t0)),
            I(a, "v_sub_f32 v%d, v%d, v%d" % (t1, v, t0)),
            I(a, "v_cvt_pk_bf16_f32 v%d, v%d, v%d" % (v, t0, t1))]

def stats_fetch(a, kind, base, vaddr):
    fns = [I(a, "s_mov_b32 s49, %d" % ST_OFF)]
    for tt in range(4):
        fns.append(("M", lambda tt=tt: a.vmem("buffer_load_dwordx4 %s, v%d, %s, s49 offen offset:%d %s" % (R(kind, base + 4 * tt, 4), vaddr, WSR, 256 * tt, SC), "stf")))
    return fns
def stats_check(a, kind, base, vaddr, t0):
    code = []
    for n, r in enumerate([base + 4 * tt + k for tt in range(4) for k in (1, 3)]):
        if kind == "a":
            code.append("v_accvgpr_read_b32 v%d, a%d" % (t0, r)); r = t0
        if n == 0: code.append("v_cmp_eq_u32 s[60:61], s%d, v%d" % (sTOK, r))
        else: code += ["v_cmp_eq_u32 vcc, s%d, v%d" % (sTOK, r), "s_and_b64 s[60:61], s[60:61], vcc"]
    def last():
        a("s_cmp_lg_u64 s[60:61], -1")
        def body(b):
            b("s_mov_b32 s49, %d" % ST_OFF)
            for tt in range(4):
                b("buffer_load_dwordx4 %s, v%d, %s, s49 offen offset:%d %s" % (R(kind, base + 4 * tt, 4), vaddr, WSR, 256 * tt, SC))
            b("s_waitcnt vmcnt(0)")
            b("\n".join(code))
            b("s_cmp_lg_u64 s[60:61], -1")
        slow_path(a, body, "stats")
    return [("S", lambda: wvm(a, ["stf"]))] + [I(a, c) for c in code] + [("SS", last)]
def stats_addr(a, dst):
    return [I(a, "v_and_b32 v%d, 15, v%d" % (dst, vL)),
            I(a, "s_lshl_b32 s52, s%d, 12\ns_lshl_b32 s60, s%d, 10\ns_add_u32 s52, s52, s60\nv_lshl_add_u32 v%d, v%d, 4, s52" % (sI, sWAVE, dst, dst), 4)]

def path_mlp(a):
    vD, TMP, HS, ONES, CSA, ST = 172, 176, 184, 188, 192, 200
    vCSR, vCSW, vCSL, vP2 = 220, 221, 222, 223
    def xreg(kk, tt):
        i = kk * 4 + tt
        return ("a", 4 * i) if i < 64 else ("v", 224 + 4 * (i - 64))
    def xr(kk, tt): return R(*xreg(kk, tt), 4)
    def acc(P, ti, tt): return 64 * P + 16 * ti + 4 * tt
    t0, t1, t2, t3 = 64, 65, 66, 67
    XS = XStage(a, TMP, TMP + 4, 8 * 8192, 3, xreg)
    WLIM = 576 * 9216
    loc = {}
    WT = [sWo, 4, 5, 6, 7, 10, 11, 20, 21]
    issued_at = {}; now = [0]
    free = list(range(8))
    def dma_issue(L, kk):
        sl = free.pop(0); loc[(L, kk)] = sl
        fns = [I(a, "s_add_u32 m0, s53, %d" % (sl * 8192)),
               I(a, "s_add_u32 s55, s%d, %d" % (WT[kk >> 1], (kk & 1) * 32 * 9216 + L * 128)),
               VM(a, "buffer_load_dwordx4 v%d, s[%d:%d], s55 offen lds" % (vD, rWA, rWA + 3), ("w", L, kk)),
               VM(a, "buffer_load_dwordx4 v%d, s[%d:%d], s55 offen offset:1024 lds" % (vD + 1, rWA, rWA + 3), ("w", L, kk))]
        if kk & 1 and L == 0 and kk < 17:
            o, n_ = WT[kk >> 1], WT[(kk >> 1) + 1]
            fns.append(I(a, "s_add_u32 s%d, s%d, %d\ns_cmp_ge_u32 s%d, %d\ns_cmov_b32 s%d, 0" % (n_, o, 64 * 9216, n_, WLIM, n_), 3))
        issued_at[(L, kk)] = now[0]
        return fns
    def c_issue(L, k):
        key = (10 + L, k)
        sl = free.pop(0); loc[key] = sl
        issued_at[key] = now[0]
        ld = lambda v, o: VM(a, "buffer_load_dwordx4 v%d, s[%d:%d], s55 offen%s lds" % (v, rWA, rWA + 3, o), ("w",) + key)
        if k < 2:
            return [I(a, "s_add_u32 m0, s53, %d" % (sl * 8192)), I(a, "s_add_u32 s55, s%d, %d" % (sWo, k * 32 * 9216 + L * 128)), ld(vD, ""), ld(vD + 1, " offset:1024")]
        return [I(a, "s_add_u32 m0, s53, %d" % (sl * 8192)), I(a, "s_lshr_b32 s55, s%d, 2" % sWo), I(a, "s_add_u32 s55, s55, %d" % (512 * 9216 + 128)), ld(vD, ""),
                I(a, "s_sub_u32 s55, s55, %d" % (16 * 9216 - 128)), ld(vD + 1, " offset:1024")]
    assert CFG.rotc == 0
    XS.setup_dma(t0, t1)
    run(XS.dma(0))
    a("s_cmp_ge_u32 s%d, 2" % sWAVE)
    a("s_cselect_b32 s%d, s%d, s%d" % (rWA, sW3, sW1))
    a("s_cselect_b32 s%d, s%d, s%d" % (rWA + 1, sW3 + 1, sW1 + 1))
    a("s_and_b32 s%d, s%d, 0xffff" % (rWA + 1, rWA + 1))
    a("s_mov_b32 s%d, %d" % (rWA + 2, WLIM))
    a("s_mov_b32 s%d, 0x20000" % (rWA + 3))
    a("s_mul_i32 s70, s%d, 3" % sXG)
    a("s_add_u32 s70, s70, s%d" % sC)
    run(dma_lane_off(a, vD, t0, t1, 9216, True))
    a("s_mul_i32 s52, s70, 384")
    a("s_and_b32 s49, s%d, 1" % sWAVE)
    a("s_mul_i32 s49, s49, %d" % (4 * 9216))
    a("s_add_u32 s52, s52, s49")
    a("v_add_u32 v%d, s52, v%d" % (vD, vD))
    a("v_add_u32 v%d, %d, v%d" % (vD + 1, 16 * 9216 - 1024, vD))
    a("s_lshl_b32 s53, s%d, 11" % sWAVE)
    a("s_mul_i32 s%d, s%d, %d" % (sWo, sROT, 64 * 9216))
    for kk in range(2 if CFG.lean else 4): run(dma_issue(0, kk))
    code_prefetch(a)
    if not CFG.lean: run(XS.dma(1))
    if CFG.init >= 1: run(c_issue(1, 0) + c_issue(1, 1) + c_issue(0, 2))
    if CFG.init >= 2: run(XS.dma(2))
    stamp(a, 4, 1)
    st_ = [(r, 32 * r, k) for r in range(1, 6) for k in range(3)]; so_ = [(0, 0, "wo"), (1, 36, "wo")][:2 - CFG.osplit]
    p2 = P2(a, st_[:12] + so_ + st_[12:] if CFG.ofirst else st_ + so_, vD, None, vCSR, False)
    XS.setup_read(t0, t1, t2)
    tr_addrs(a, t0, t1, t2)
    a("v_xor_b32 v%d, s%d, v%d" % (t2, sWAVE, t1))
    a("v_lshl_add_u32 v%d, v%d, 5, v%d" % (vCSR, t2, t0))
    a("s_mov_b32 s68, s%d" % sC)
    p2.setup_s()
    a("s_lshr_b32 s60, s%d, 1" % sWAVE)
    a("s_lshr_b32 s67, s%d, 1" % sXG)
    a("s_mul_i32 s%d, s60, 4128" % sPX)
    a("s_and_b32 s52, s67, 1")
    a("s_lshl_b32 s52, s52, 6")
    a("s_add_u32 s%d, s%d, s52" % (sPX, sPX))
    a("s_lshr_b32 s%d, s67, 1" % sLS)
    a("s_lshl_b32 s%d, s%d, 7" % (sLS, sLS))
    a("s_and_b32 s49, s%d, 6" % sXG)
    a("s_add_u32 s49, s49, s60")
    a("s_mul_i32 s62, s49, %d" % (18 * KSTRIDE))
    a("s_add_u32 s62, s62, %d" % H_OFF)
    a("s_mul_i32 s63, s49, %d" % (576 * 1152))
    a("s_mul_i32 s64, s49, %d" % (2 * KSTRIDE))
    a("s_add_u32 s64, s64, %d" % (H_OFF + 144 * KSTRIDE))
    a("s_mul_i32 s65, s49, %d" % (72 * 1152))
    a("s_mul_i32 s57, s70, %d" % (6 * KSTRIDE))
    a("s_add_u32 s57, s57, %d" % H_OFF)
    a("s_lshl_b32 s52, s%d, 7" % sXG)
    a("s_add_u32 s69, s52, s%d" % sFI)
    a("s_lshl2_add_u32 s69, s%d, s69" % sC)
    a("s_lshl_b32 s52, s49, 7")
    a("s_add_u32 s71, s52, s%d" % sFI)
    a("s_mul_i32 s%d, s70, 12288" % sCSB)
    a("s_add_u32 s%d, s%d, %d" % (sCSB, sCSB, CS_OFF))
    a("s_lshl_b32 s%d, s70, 7" % sFC)
    a("s_add_u32 s%d, s%d, 0x%x" % (sFC, sFC, FL(FC)))
    b_ = Asm(); rot_bases(b_, sI)
    late2 = Q(a, "\n".join(b_.lines))
    late = []
    L_ = lambda s, c=1: late.append(I(a, s, c))
    u0, u1 = CSA, CSA + 1
    L_("v_and_b32 v%d, 15, v%d" % (u0, vL))
    L_("v_lshlrev_b32 v%d, 4, v%d" % (u0, u0))
    L_("v_lshrrev_b32 v%d, 4, v%d" % (u1, vL))
    L_("v_lshlrev_b32 v%d, 4, v%d" % (vCSL, vL))
    L_("v_lshl_add_u32 v%d, v%d, 10, v%d" % (vCSW, u1, u0))
    L_("s_lshr_b32 s52, s%d, 1\ns_lshl_b32 s52, s52, 11\ns_and_b32 s60, s%d, 1\ns_lshl_b32 s60, s60, 3\ns_add_u32 s52, s52, s60\n"
       "s_lshr_b32 s60, s%d, 1\ns_lshl_b32 s60, s60, 8\ns_add_u32 s52, s52, s60\ns_and_b32 s60, s%d, 1\ns_lshl2_add_u32 s52, s60, s52\n"
       "v_add_u32 v%d, s52, v%d" % (sWAVE, sWAVE, sI, sI, vCSW, vCSW), 11)
    L_("v_cmp_gt_u32 vcc, 32, v%d\nv_mov_b32 v%d, 0x%x\ns_nop 0\nv_cndmask_b32 v%d, v%d, v%d, vcc" % (vL, u0, OOB, vCSW, u0, vCSW), 4)
    L_("s_cmp_eq_u32 s%d, 7\ns_cselect_b32 s%d, 0x%x, 0" % (sI, sOne2, ONE2), 2)
    CSL, ONL, ONH, ON7 = [224, 240, 248], HS, 232, 236
    for i in range(4):
        late.insert(0, I(a, "v_mov_b32 v%d, 0x%x" % (ONES + i, ONE2)))
        L_("v_mov_b32 v%d, s%d" % (ON7 + i, sOne2))
    for i in range(4):
        L_("v_cndmask_b32 v%d, 0, v%d, vcc" % (ONL + i, ONES))
        L_("v_xor_b32 v%d, v%d, v%d" % (ONH + i, ONL + i, ONES))
    run(late); run(late2)
    if CFG.lean == 1: run(XS.dma(1) + dma_issue(0, 2) + dma_issue(0, 3))
    stamp(a, 7, 1)
    stats_compute(a)
    stamp(a, 5, 1)
    run(XS.reads(0))
    a.wait_vm(lambda t: t == ("w", 0, 1))
    a("s_barrier")
    SPLIT = CFG.split
    seq = []
    for kk in range(SPLIT): seq += [("mm", 0, 0, kk), ("mm", 0, 1, kk)]
    seq += [("mm", 0, 0, kk) for kk in range(SPLIT, 18)] + [("mm", 0, 1, kk) for kk in range(SPLIT, 18)]
    for L in (1, 2):
        for P in (0, 1): seq += [("mm", L, P, kk) for kk in range(18)]
    def after(key, new): seq.insert(seq.index(key) + 1, new)
    after(("mm", 0, 0, CFG.c00), ("corr", 0, 0))
    for L in range(3): after(("mm", L, 1, 17), ("corr", L, 1))
    if CFG.cmode == 1 and CFG.cdel >= 0: after(("mm", 1, 1, CFG.cdel), ("corr", 1, 0))
    else: after(("mm", 1, 0, 17), ("corr", 1, 0))
    after(("mm", 2, 0, 17), ("corr", 2, 0))
    cs_steps = {0: [((0, 0), ONES), ((0, 1), ONES), ((0, 2), ON7), ((0, 3), ON7)],
                1: [((11, 0), ONES), ((11, 1), ONES), ((10, 2), ONL)], 2: [((12, 0), ONES), ((12, 1), ONES), ((10, 2), ONH)]}
    cs_at = {0: CFG.cs0, 1: CFG.cs1, 2: CFG.cs2}
    attach = {}
    if CFG.cmode == 1:
        CSL[1], CSL[2] = TMP, CSA
        n1 = seq.index(("corr", 0, 1)) + 1
        cs_at[1] = cs_at[2] = n1 + 1
        attach[seq[n1]] = [(1, k, (1, k), ONES, mat) for k in range(2) for mat in range(2)]
        attach[seq[n1 + 1]] = [(2, k, (2, k), ONES, mat) for k in range(2) for mat in range(2)]
        attach[seq[n1 + 2]] = [(1, 2, (10, 2), ONL, 0), (1, 2, (10, 2), ONL, 1), (2, 2, (10, 2), -ONES, 0), (2, 2, (10, 2), ONES, 1)]
    for L in range(3 if CFG.cmode == 0 else 1):
        its = [(L, k, sl, on, mat) for k, (sl, on) in enumerate(cs_steps[L]) for mat in range(2)]
        attach[seq[cs_at[L]]] = its[:4]; attach[seq[cs_at[L] + 1]] = its[4:]
    NH = len(seq)
    idx = {k: n for n, k in enumerate(seq)}
    visible = set([(0, 0), (0, 1)])
    S_ = Stream(a, "v", WF)
    first_slot = []
    csr = [0]
    def slabs_of(e):
        if e[0] == "mm": return [(e[1], e[3] & ~1), (e[1], e[3] | 1)] + [x[2] for x in attach.get(e, [])]
        return []
    for e in seq:
        first_slot.append(len(S_.slots))
        if e[0] == "mm":
            _, L, P, kk = e
            att = list(attach.get(e, []))
            for ti, kk in [(t_ + (kk & 1), k_) for t_ in (0, 2) for k_ in (kk & ~1, kk | 1)]:
                def off(L=L, kk=kk, ti=ti):
                    assert (L, kk) in visible, (L, kk)
                    return loc[(L, kk)] * 8192 + (ti >> 1) * 4096
                def mf(w, P=P, ti=ti, kk=kk):
                    return ["%s %s, %s, %s, %s" % (MF, V(acc(P, ti, tt), 4), w, xr(kk, tt), "0" if kk == 0 else V(acc(P, ti, tt), 4)) for tt in range(4)]
                S_.add(tr_read(a, off, 2 * P + (ti & 1)), mf, kk % 2 == 0)
                for _ in range(2 if kk % 2 else 0):
                    if not att: break
                    cl, k, sl, on, mat = att.pop(0); CS = CSL[cl]
                    def rd(kind, reg, tag, sl=sl, mat=mat):
                        assert sl in visible
                        out = []
                        d = loc[sl] * 8192 - csr[0]; csr[0] += d
                        if d: out.append(I(a, "v_add_u32 v%d, 0x%x, v%d" % (vCSR, d & 0xffffffff, vCSR)))
                        return out + [("D", lambda h=h: a.lds("ds_read_b64_tr_b16 %s, v%d offset:%d" % (V(reg + 2 * h, 2), vCSR, mat * 4096 + h * 2048), tag)) for h in range(2)]
                    S_.add(rd, lambda w, k=k, on=on, mat=mat, CS=CS: [("".join("v_xor_b32 v%d, v%d, v%d\n" % (ONES + i, ONES + i, ONL) for i in range(4)) + "s_nop 1\n" if on < 0 else "") + "%s %s, %s, %s, %s" % (MF, V(CS + 4 * mat, 4), V(abs(on), 4), w, "0" if k == 0 else V(CS + 4 * mat, 4))])
        elif e[0] == "corr":
            _, L, P = e
            for ti in range(4):
                S_.add(None, lambda w, P=P, ti=ti: ["%s %s, %s, %s, %s" % (MF16, V(acc(P, ti, tt), 4), V(CSA + 2 * ti, 2), V(ST + 4 * tt, 2), V(acc(P, ti, tt), 4)) for tt in range(4)])
    first_slot.append(len(S_.slots))
    p2.add_slots(S_)
    def epilogue(L, P):
        q = [I(a, "s_add_u32 s58, s57, %d" % ((2 * L + P) * KSTRIDE)) + ([], ["s58"])]
        for tt in range(4):
            rs, cc = ST + 4 * tt + 2, ST + 4 * tt + 3
            o = acc(P, 2, tt)
            gu = [(acc(P, half, tt) + i, acc(P, 2 + half, tt) + i) for half in range(2) for i in range(4)]
            for g, u in gu:
                q.append(I(a, "v_mul_f32 v%d, v%d, v%d" % (u, g, u)) + ([g, u], [u]))
                q.append(I(a, "v_mul_f32 v%d, v%d, v%d" % (g, g, rs)) + ([g], [g]))
            for g, u in gu: q.append(I(a, "v_exp_f32 v%d, v%d" % (g, g)) + ([g], [g]))
            for g, u in gu: q.append(I(a, "v_fma_f32 v%d, v%d, v%d, v%d" % (g, g, cc, cc)) + ([g], [g]))
            for g, u in gu: q.append(I(a, "v_rcp_f32 v%d, v%d" % (g, g)) + ([g], [g]))
            for g, u in gu: q.append(I(a, "v_mul_f32 v%d, v%d, v%d" % (g, g, u)) + ([g, u], [g]))
            for k in range(4):
                g = gu[2 * k][0]
                q.append(I(a, "v_cvt_pk_bf16_f32 v%d, v%d, v%d" % (o + k, g, g + 1)) + ([g, g + 1], [o + k]))
            q.append(VM(a, "buffer_store_dwordx4 %s, v%d, %s, s58 offen offset:%d %s" % (V(o, 4), vX, WSR, tt * 1024, SC), ("h", L, P)) + ([o, o + 1, o + 2, o + 3, "s58"], []))
        return q
    last_use = {}
    for n, e in enumerate(seq):
        for sl in slabs_of(e): last_use[sl] = n
    lastP = {}
    for n, e in enumerate(seq):
        if e[0] != "cs": lastP[e[1:3]] = n
    marks = set()
    def mark(m): return ("", lambda: marks.add(m))
    released = set()
    def hsig(stage): return signal(a, "s_add_u32 s49, s69, %d" % (128 * (FH + 64 * stage)))
    def hoff(stage): return "s_add_u32 s49, s71, %d" % (128 * (FH + 64 * stage))
    coff = "s_mov_b32 s49, s%d" % sFC
    def csa_load(L, P):
        return [I(a, "s_add_u32 s49, s%d, %d" % (sCSB, L * 4096 + P * 2048))] + \
               [("M", lambda k=k: a.vmem("buffer_load_dwordx4 %s, v%d, %s, s49 offen offset:%d %s" % (V(CSA + 4 * k, 4), vCSL, WSR, 1024 * k, SC), ("csa", L, P))) for k in range(2)]
    def cs_publish(L):
        CS = CSL[L]
        return [I(a, "s_mov_b32 vcc_lo, 0xffff0000\ns_mov_b32 vcc_hi, 0\nv_cndmask_b32 v%d, v%d, v%d, vcc" % (CS, CS, CS + 4), 3)] + hilo(a, CS, CS + 1, CS + 2) + \
               [I(a, "s_add_u32 s49, s%d, %d" % (sCSB, L * 4096)),
                ("M", lambda: a.vmem("buffer_store_dword v%d, v%d, %s, s49 offen %s" % (CS, vCSW, WSR, SC), ("cs", L))), mark(("pub", L))]
    ev = {}
    bar_tags = {}
    def at(n, fns): ev.setdefault(n, []).extend(fns)
    def sig_after(n, tag, fns):
        n |= 1
        bar_tags.setdefault(n, ([], []))
        bar_tags[n][0].append(tag); bar_tags[n][1].extend(fns)
    marks.add("late")
    csig = lambda L: signal(a, "s_lshl2_add_u32 s49, s%d, s%d\ns_add_u32 s49, s49, %d" % (sI, sFC, 32 * L))
    for L in range(3):
        at(cs_at[L] + 3, cs_publish(L))
        at(idx[("corr", L, 0)] + 1, csa_load(L, 1))
        if L > CFG.cmode: at(idx[("corr", L - 1, 1)] + 1, csa_load(L, 0))
    sig_after(cs_at[0] + CFG.sig0, ("cs", 0), csig(0))
    sig_after(cs_at[2] + (8 if CFG.cmode == 0 else CFG.sigd), ("cs", 2), csig(1))
    c0 = idx[("corr", 0, 0)]
    at(c0 - CFG.p0, poll_issue(a, coff, ("plc", 0)))
    at(c0 - CFG.k0, poll_check(a, coff, ("plc", 0), "0xff") + csa_load(0, 0))
    if CFG.cmode == 0:
        at(idx[("corr", 0, 1)] - 5, poll_issue(a, coff, ("plc", 1)))
        at(idx[("corr", 0, 1)], poll_check(a, coff, ("plc", 1), "0xff00"))
    else:
        at(idx[("corr", 1, 0)] - CFG.pc1, poll_issue(a, coff, ("plc", 1)))
        at(idx[("corr", 1, 0)] - CFG.kc1, poll_check(a, coff, ("plc", 1), "0xff00") + csa_load(1, 0))
    c0 = idx[("corr", 0, 0)]
    at(c0 - 12, stats_addr(a, vP2) + stats_fetch(a, "v", ST, vP2))
    fx = stats_check(a, "v", ST, vP2, None)
    for tt in range(4):
        b = ST + 4 * tt
        fx += [I(a, "v_mov_b32 v%d, v%d" % (b + 1, b)), I(a, "v_mul_f32 v%d, v%d, v%d" % (b + 3, b + 2, b + 2)), I(a, "v_rcp_f32 v%d, v%d" % (b + 2, b + 2), 2)]
    for tt in range(4): fx.append(I(a, "v_mul_f32 v%d, %s, v%d" % (ST + 4 * tt + 2, f32(-LOG2E), ST + 4 * tt + 2)))
    at(c0 - 5, fx + [mark("stats")])
    xread_at = {}
    for p in range(8, 0, -1): xread_at[p] = max(min(idx[("mm", 0, 0, 2 * p)] - CFG.xlead, xread_at.get(p + 1, 99) - 3), 0)
    for p, n in xread_at.items():
        at(n, XS.reads(p))
    mm = lambda L, P, kk: idx[("mm", L, P, kk)]
    sig_after(mm(1, 1, 2), ("h", 0, 1), hsig(0))
    sig_after(mm(2, 0, CFG.s1), ("h", 1, 0), hsig(1))
    sig_after(mm(2, 1, 2), ("h", 1, 1), hsig(2))
    at(mm(2, 0, 0) + CFG.p1, poll_issue(a, hoff(1), "pl1", vP2))
    at(mm(2, 0, 0) + CFG.c1, poll_check(a, hoff(1), "pl1", "7", vP2) + [mark("h1")])
    at(NH - 5, poll_issue(a, hoff(2), "pl2"))
    at(mm(2, 0, 6), p2.setup_vo(vCSR, vCSW, "s_and_b32 s52, s%d, 1" % sXG) + [mark("vo")])
    if CFG.pf == 1:
        pf = Q(a, """s_and_b32 s52, s{W}, 1
            s_mul_i32 s52, s52, 36
            s_mul_i32 s60, s{I}, 72
            s_add_u32 s52, s52, s60
            v_mul_u32_u24 v{P}, 43, v{L}
            v_lshrrev_b32 v{P}, 7, v{P}
            v_mul_u32_u24 v{T}, 3, v{P}
            v_sub_u32 v{T}, v{L}, v{T}
            v_add_u32 v{P}, s52, v{P}
            v_mul_u32_u24 v{P}, 1152, v{P}
            v_lshl_add_u32 v{P}, v{T}, 7, v{P}
            s_mul_i32 s52, s68, 384
            s_add_u32 s52, s52, s63""".format(W=sWAVE, I=sI, P=vP2, L=vL, T=vPL))
        pf += [VM(a, "buffer_load_dword v%d, v%d, s[%d:%d], s52 offen" % (vPL, vP2, rW2, rW2 + 3)),
               I(a, "s_add_u32 s52, s52, %d" % (18 * 1152)),
               VM(a, "buffer_load_dword v%d, v%d, s[%d:%d], s52 offen" % (vPL, vP2, rW2, rW2 + 3))]
        at(idx[("corr", 1, 0)] + 1 + CFG.pfw, pf)
    if CFG.pf == 4:
        pf = Q(a, """s_sub_u32 s52, s2, {AF}
            s_lshl2_add_u32 s52, s52, s{W}
            s_lshl_b32 s52, s52, 13
            v_lshlrev_b32 v{P}, 7, v{L}""".format(W=sWAVE, P=vP2, L=vL, AF=64 * CFG.afirst))
        pf += [VM(a, "buffer_load_dword v%d, v%d, s[%d:%d], s52 offen" % (vPL, vP2, rW2, rW2 + 3))]
        pf += Q(a, """s_cmp_lt_u32 s52, {N}
            s_cmov_b32 s52, 0x{O:x}
            s_sub_u32 s52, s52, {N}""".format(N=4608 * 1152, O=OOB))
        pf += [VM(a, "buffer_load_dword v%d, v%d, s[%d:%d], s52 offen" % (vPL, vP2, rWO, rWO + 3))]
        at((mm(1, 0, 2) if CFG.cmode == 0 else idx[("corr", 1, 0)] - CFG.kc1 + 1) + CFG.pfw, pf)
    def wjob(L, kk):
        def make():
            if VERB: print("hs", now[0], seq[now[0]], "issue W", (L, kk), file=sys.stderr)
            return dma_issue(L, kk)
        gate = 0
        if CFG.cmode == 1 and kk >= 2: gate = (0, CFG.gate1, CFG.gate2)[L]
        return ("w", lambda: len(free) > 0 and now[0] >= gate, make)
    def cjob(L, k):
        def make():
            if VERB: print("hs", now[0], seq[now[0]], "issue C", (L, k), file=sys.stderr)
            return c_issue(L, k)
        return ("w", lambda: len(free) > 0, make)
    cj = {CFG.cj1: [cjob(1, 0), cjob(1, 1), cjob(0, 2)], CFG.cj2: [cjob(2, 0), cjob(2, 1)]}
    if CFG.init >= 1: del cj[CFG.cj1]
    if CFG.cmode == 1: cj = {CFG.cj1: [wjob(1, 0), wjob(1, 1)], 9: [cjob(0, 2), wjob(2, 0), wjob(2, 1)]}
    for p in range(1 if CFG.lean == 2 else 2, 9): S_.jobs += ([XS.job(p)] if p > 2 or CFG.init < 2 else []) + [wjob(0, 2 * p), wjob(0, 2 * p + 1)] + cj.get(p, [])
    S_.jobs += cj.get(9, [])
    S_.jobs += [wjob(L, kk) for L in (1, 2) for kk in range(2 * CFG.cmode, 18)]
    hmark = lambda st: "h1" if st < 6 else ("h2" if st < 9 else ("h3" if st < 12 else ("o" if p2.steps[st][2] == "wo" else "h4")))
    S_.jobs += p2.jobs(0, lambda st: "vo" in marks,
                       lambda st: hmark(st) in marks and now[0] > mm(2, 1, min(st, 9) | 1))
    xdead = {}
    S_.prime()
    for n, e in enumerate(seq):
        pre = []
        now[0] = n
        S_.vmrate = 2.0 if n < CFG.boost else CFG.vmrate / 100.0
        if VERB: a.cm("HS %d %s" % (n, e))
        if n >= CFG.sbase and (n - CFG.sbase) % CFG.sstep == 0 and (n - CFG.sbase) // CFG.sstep < 11: stamp(a, 4 + (n - CFG.sbase) // CFG.sstep, 2)
        if e[0] == "mm" and e[1] == 0 and e[2] == 0 and e[3] % 2 == 0:
            wlg(a, [("xr", e[3] // 2)])
        if n == xread_at[8]: assert ("pub", 2 if CFG.cmode == 0 else 0) in marks
        if e[0] == "corr": assert "stats" in marks
        if n == mm(2, 0, 5): assert a.cnt.get(("w", 2, 17)) == 2
        if e[0] == "corr": wvm(a, [("csa", e[1], e[2])])
        if e[0] == "mm" and e[3] == 0 and (e[1] > 0 or e[2] == 0): stamp(a, 3 if e[1] == 0 else 3 + 2 * e[1] + e[2])
        if e == ("mm", 0, 0, 9): stamp(a, 4)
        if n % 2 == 1:
            rmax = S_.read_limit(first_slot[min(n + 2, NH)] - 1)
            need = []
            for m in range(n, NH):
                if S_.cur_ring(first_slot[m]) <= rmax:
                    need += [x for x in slabs_of(seq[m]) if x not in visible and x not in need]
            rel_ = [x for x, lu in last_use.items() if lu < n and x not in released]
            tags, aft = bar_tags.pop(n, ([], []))
            tags = list(tags)
            if S_.cur_ring(first_slot[NH]) <= rmax and not p2.visible:
                tags += [("w2",) + u for u in p2.units[:4]]; p2.visible.update(p2.units[:4])
            xrel = [p for p, m in xread_at.items() if p >= 6 and m + 3 <= n and p not in xdead]
            want_space = S_.jobs and S_.jobs[0][0] in ("w", "w2", "x") or any(j[0] in ("w", "w2") for j in S_.jobs[:3])
            if rel_ and not (need or tags or xrel) and (not want_space or (n > 40 and len(rel_) < CFG.relper)): rel_ = []
            if need or rel_ or tags or xrel:
                need += [x for x, t_ in issued_at.items() if x not in visible and x not in need and
                         (t_ + CFG.age <= n or (a.cnt.get(("w",) + x, 0) == 2 and ("w",) + x not in a.vm))]
                for x in need: assert x in loc, ("slab not issued", n, x)
                def bar(need=need, tags=tags, xrel=xrel):
                    wlg(a, [("xr", p) for p in xrel])
                    wvm(a, [("w",) + x for x in need] + tags)
                    a("s_barrier")
                pre.append(("B", bar))
                visible.update(need); released.update(rel_)
                for x in rel_: free.append(loc[x])
                for p in xrel:
                    xdead[p] = 1
                    free.extend(8 + 3 * w + p % 3 for w in range(4))
            S_.extra += aft
        S_.extra += ev.pop(n, [])
        if (2, 17) in loc:
            while free:
                p2.free.append(free.pop(0))
        ns = first_slot[n + 1] - first_slot[n]
        for k in range(ns):
            if e[0] == "mm" and e[3] == 0 and k == 0:
                assert not (S_.epi and S_.epiP == e[2]), "epilogue not finished"
            S_.emit(pre if k == 0 else (), 1 if len(S_.extra) > 20 else 0)
            if k == 1 and n > 0:
                pe = seq[n - 1]
                if pe[0] != "cs" and lastP[pe[1:3]] == n - 1:
                    assert not S_.epi
                    S_.set_epi(epilogue(pe[1], pe[2]), first_slot[mm(pe[1] + 1, pe[2], 0)] - 1 if pe[1] < 2 else first_slot[NH] - 1, 0, False)
                    S_.epiP = pe[2]
    assert not S_.epi and not ev and not bar_tags, (ev.keys(), bar_tags.keys())
    now[0] = NH
    if VERB: print("; left for phase 2:", [j[0] for j in S_.jobs], "extra", len(S_.extra), file=sys.stderr)
    stamp(a, 9)
    S_.set_epi(epilogue(2, 1), S_.pos + CFG.edl, 2, False)
    ooff = "s_add_u32 s49, s71, %d" % (128 * FO)
    hooks = {}
    def add(st, key, v): hooks.setdefault(st, {}).setdefault(key, []).extend(v)
    add(CFG.s3, "bar", [("h", 2, 0)]); add(CFG.s3, "after", hsig(3))
    add(0, "after", poll_check(a, hoff(2), "pl2", "7") + [mark("h2")])
    add(CFG.s3 + 2, "after", poll_issue(a, hoff(3), "pl3"))
    add(CFG.s4, "bar", [("h", 2, 1)]); add(CFG.s4, "after", hsig(4))
    add(CFG.s3 + 4, "after", poll_check(a, hoff(3), "pl3", "7") + [mark("h3")])
    if CFG.osplit < 2:
        add(CFG.po, "after", poll_issue(a, ooff, "plo", vP2))
        add(CFG.po + 2, "after", poll_check(a, ooff, "plo", "1", vP2) + [mark("o")])
    add(CFG.p4, "after", poll_issue(a, hoff(4), "pl4"))
    add(CFG.c4, "after", poll_check(a, hoff(4), "pl4", "7") + [mark("h4")])
    dead0 = [loc[x] for x in last_use if x not in released]
    p2.main(S_, hooks, dead0)

C0 = [0, 4, 9, 13]
def path_attn(a):
    global vL, vX, vFS, vFP, vTK, vPL
    keep = (vL, vX, vFS, vFP, vTK, vPL)
    a.cnt = {}
    RB, VO, XO, XA = 224, 230, 236, 240
    vCS0, vCS1, vCSW, vP2, u0, u1 = 250, 251, 252, 253, 254, 255
    aONE, aCS, aST, aCSA, aX = 32, 36, 52, 68, 96
    t0, t1, t2, t3, t4 = 64, 65, 66, 67, 68
    new = (244, 245, 246, 247, 248, 249)
    for o_, n_ in zip(keep[:4], new[:4]): a("v_mov_b32 v%d, v%d" % (n_, o_))
    vL, vX, vFS, vFP, vTK, vPL = new
    def xreg(kk, tt): return ("a", aX + 16 * (kk % 10) + 4 * tt)
    def xr(kk, tt): return R(*xreg(kk, tt), 4)
    def acc(T, tt): return 16 * T + 4 * tt
    XS = XStage(a, XO, XA, 98304, 2, xreg)
    WLIM = 576 * 3456
    def dma_issue(p, win):
        fns = []
        for e in range(2):
            fns += [I(a, "s_add_u32 m0, s53, %d" % (((2 * p + e) % 4) * 24576 + win * 8192)),
                    I(a, "s_add_u32 s55, s%d, %d" % (sWo, e * 32 * 3456 + win * 1152)),
                    VM(a, "buffer_load_dwordx4 v%d, s[%d:%d], s55 offen lds" % (VO, rWA, rWA + 3), ("w", p, win)),
                    VM(a, "buffer_load_dwordx4 v%d, s[%d:%d], s55 offen offset:1024 lds" % (VO + 1, rWA, rWA + 3), ("w", p, win))]
        if win == 2: fns.append(I(a, "s_add_u32 s%d, s%d, %d\ns_cmp_ge_u32 s%d, %d\ns_cmov_b32 s%d, 0" % (sWo, sWo, 64 * 3456, sWo, WLIM, sWo), 3))
        return fns
    XS.setup_dma(t0, t1)
    run(XS.dma(0))
    srd(a, rWA, sWQKV, WLIM)
    run(dma_lane_off(a, VO, t0, t1, 3456, True))
    a("s_lshr_b32 s52, s%d, 1" % sWAVE)
    a("s_add_u32 s52, s52, s%d" % sXG)
    a("s_lshl_b32 s52, s52, 7")
    a("s_and_b32 s49, s%d, 1" % sWAVE)
    a("s_mul_i32 s49, s49, %d" % (4 * 3456))
    a("s_add_u32 s52, s52, s49")
    a("v_add_u32 v%d, s52, v%d" % (VO, VO))
    a("v_add_u32 v%d, %d, v%d" % (VO + 1, 16 * 3456 - 1024, VO))
    a("s_lshl_b32 s53, s%d, 11" % sWAVE)
    a("s_mul_i32 s%d, s%d, %d" % (sWo, sROT, 64 * 3456))
    run(dma_issue(0, 0))
    stamp(a, 4, 1)
    XS.setup_read(t0, t1, t2)
    lane_fields(a, t0, t1, t2)
    a("v_lshrrev_b32 v%d, 1, v%d" % (t0, t0))
    a("v_lshlrev_b32 v%d, 10, v%d" % (t0, t0))
    a("v_lshl_add_u32 v%d, v%d, 7, v%d" % (t0, t1, t0))
    a("v_lshrrev_b32 v%d, 1, v%d" % (t1, t1))
    a("s_lshl_b32 s52, s%d, 1" % sXG)
    for p in range(6):
        r = RB + p
        if p < 4:
            a("v_add_u32 v%d, %d, v%d" % (t3, C0[p], t2))
        elif p == 4:
            a("v_lshrrev_b32 v%d, 1, v%d" % (t3, t2))
            a("v_lshl_add_u32 v%d, v%d, 2, v%d" % (t3, t2, t3))
            a("v_add_u32 v%d, 4, v%d" % (t3, t3))
        else:
            a("v_and_b32 v%d, 1, v%d" % (t3, t2))
            a("v_mul_u32_u24 v%d, 9, v%d" % (t3, t3))
            a("v_add_u32 v%d, 8, v%d" % (t3, t3))
        a("v_add_u32 v%d, s52, v%d" % (t3, t3))
        a("v_lshrrev_b32 v%d, 4, v%d" % (t4, t3))
        a("v_lshl_add_u32 v%d, v%d, 12, v%d" % (r, t4, t0))
        a("v_bfe_u32 v%d, v%d, 2, 2" % (t4, t3))
        a("v_xor_b32 v%d, v%d, v%d" % (t4, t4, t1))
        a("v_lshl_add_u32 v%d, v%d, 5, v%d" % (r, t4, r))
        a("v_and_b32 v%d, 3, v%d" % (t4, t3))
        a("v_lshl_add_u32 v%d, v%d, 3, v%d" % (r, t4, r))
        if p == 5:
            a("v_lshrrev_b32 v%d, 1, v%d" % (t4, t2))
            a("v_add_u32 v%d, 1, v%d" % (t4, t4))
            a("v_lshl_add_u32 v%d, v%d, 13, v%d" % (r, t4, r))
    a("s_bitcmp1_b32 s%d, 0" % sWAVE)
    a("s_cselect_b64 vcc, -1, 0")
    a("v_cndmask_b32 v%d, v%d, v%d, vcc" % (t3, RB, RB + 1))
    a("v_cndmask_b32 v%d, v%d, v%d, vcc" % (t4, RB + 2, RB + 3))
    a("v_cndmask_b32 v%d, v%d, v%d, vcc" % (vCS1, RB + 4, RB + 5))
    a("s_bitcmp1_b32 s%d, 1" % sWAVE)
    a("s_cselect_b64 vcc, -1, 0")
    a("v_cndmask_b32 v%d, v%d, v%d, vcc" % (vCS0, t3, t4))
    a("v_mov_b32 v%d, 0x%x" % (t3, ONE2))
    for i in range(4): a("v_accvgpr_write_b32 a%d, v%d" % (aONE + i, t3))
    steps = [(18 * x_, 576 * x_, k) for x_ in range(4) for k in range(3)] + [(2 * x_ + P, 36 * (2 * x_ + P), "woa") for x_ in range(4) for P in range(2 - CFG.osplit, 2)] + [(0, 0, "wos"), (1, 144, "wos")]
    p2 = P2(a, steps, 220, 197, 222, True)
    a("s_cmp_ge_u32 s%d, 3" % sI)
    a("s_cselect_b32 s4, 1, 0")
    a("s_mul_i32 s52, s4, 3")
    a("s_sub_u32 s68, s%d, s52" % sI)
    a("s_lshr_b32 s70, s%d, 1" % sWAVE)
    a("s_lshl_b32 s72, s%d, 10" % sXG)
    a("s_lshl_b32 s52, s70, 9")
    a("s_add_u32 s72, s72, s52")
    a("s_add_u32 s72, s72, 0x%x" % FLG_OFF)
    p2.setup_s()
    a("s_mul_i32 s62, s70, %d" % (72 * KSTRIDE))
    a("s_add_u32 s62, s62, %d" % H_OFF)
    a("s_mul_i32 s63, s70, %d" % (2304 * 1152))
    a("s_mul_i32 s64, s70, %d" % (2 * KSTRIDE))
    a("s_add_u32 s64, s64, %d" % (H_OFF + 160 * KSTRIDE))
    a("s_mul_i32 s65, s70, %d" % (288 * 1152))
    a("s_mul_i32 s7, s70, %d" % (8 * KSTRIDE))
    a("s_add_u32 s7, s7, %d" % (H_OFF + 144 * KSTRIDE))
    a("s_mov_b32 s67, 4")
    a("s_add_u32 s52, s%d, 24" % sXG)
    a("s_lshl_b32 s%d, s52, 7" % sFC)
    a("s_add_u32 s%d, s%d, 0x%x" % (sFC, sFC, FL(FC)))
    a("s_mov_b32 s71, 0x07070707")
    a("s_cmp_ge_u32 s%d, 6" % sI)
    a("s_cmov_b32 s62, 0x%x" % OOB)
    a("s_cmov_b32 s63, 0x%x" % OOB)
    a("s_cmov_b32 s71, 0")
    a("s_lshl_b32 s%d, s%d, 13" % (sCSB, sXG))
    a("s_add_u32 s%d, s%d, %d" % (sCSB, sCSB, CS_OFF + 24 * 12288))
    a("s_cmp_eq_u32 s%d, 7" % sI)
    a("s_cselect_b32 s%d, 0x%x, 0" % (sOne2, ONE2))
    run(dma_issue(0, 1) + dma_issue(0, 2))
    stamp(a, 7, 1)
    stats_compute(a)
    stamp(a, 5, 1)
    run(XS.reads(0))
    wvm(a, [("w", 0, 0)], w=4)
    a("s_barrier")
    TL = [(0, 0), (1, 0), (2, 0), (3, 0), (4, 0)] + [(p, 1) for p in range(4)] + [(p, 2) for p in range(4)] + [(5, 0)]
    S_ = Stream(a, "a", 0)
    visible = set([(0, 0)])
    cur = [0] * 6
    csr = [0]
    info = []
    csat = {0: (0, 0), 1: (0, 1), 5: (1, 0), 6: (1, 1), 8: (3, 0), 13: (3, 1), 9: (2, 0), 10: (2, 1)}
    for pp in range(9):
        for T in [0, 1, 2, 3, 4, 5, 6, 7, 8, 13, 9, 10, 11, 12]:
            wins = (1, 2) if T == 13 else (TL[T][1],)
            for kk in (2 * pp, 2 * pp + 1):
                def rd(kind, reg, tag, kk=kk, T=T, wins=wins):
                    for w_ in wins: assert (kk // 2, w_) in visible
                    p, win = TL[T]
                    want = ((kk % 4) // 2) * 49152
                    out = []
                    if cur[p] != want:
                        out.append(I(a, "v_add_u32 v%d, 0x%x, v%d" % (RB + p, (want - cur[p]) & 0xffffffff, RB + p))); cur[p] = want
                    return out + [("D", lambda h=h: a.lds("ds_read_b64_tr_b16 %s, v%d offset:%d" % (A(reg + 2 * h, 2), RB + p, (kk % 2) * 24576 + win * 8192 + h * 2048), tag)) for h in range(2)]
                def mf(w, kk=kk, T=T):
                    return ["%s %s, %s, %s, %s" % (MF, V(acc(T, tt), 4), w, xr(kk, tt), "0" if kk == 0 else V(acc(T, tt), 4)) for tt in range(4)]
                S_.add(rd, mf, kk % 2 == 0); info.append((pp, T, wins))
            if pp < 2 and T in csat:
                k, e = csat[T]
                wins = (k,) if k < 3 else (0, 1, 2)
                def rd(kind, reg, tag, pp=pp, k=k, e=e, wins=wins):
                    for w_ in wins: assert (pp, w_) in visible
                    out = []
                    if pp == 1 and k == 0 and e == 0:
                        out += [I(a, "v_add_u32 v%d, 49152, v%d" % (vCS0, vCS0)), I(a, "v_add_u32 v%d, 49152, v%d" % (vCS1, vCS1))]
                    return out + [("D", lambda h=h: a.lds("ds_read_b64_tr_b16 %s, v%d offset:%d" % (A(reg + 2 * h, 2), vCS0 if k < 3 else vCS1, e * 24576 + (k * 8192 if k < 3 else 0) + h * 2048), tag)) for h in range(2)]
                def mf(w, pp=pp, k=k, e=e):
                    pre = ""
                    if pp == 1 and k == 0 and e == 0:
                        pre = "v_mov_b32 v%d, s%d\n" % (vP2, sOne2) + "".join("v_accvgpr_write_b32 a%d, v%d\n" % (aONE + i, vP2) for i in range(4)) + "s_nop 1\n"
                    return [pre + "%s %s, %s, %s, %s" % (MF, A(aCS + 4 * k, 4), A(aONE, 4), w, "0" if pp + e == 0 else A(aCS + 4 * k, 4))]
                S_.add(rd, mf); info.append((pp, -1, wins))
    for T in list(range(9, 13)) + list(range(5, 9)) + [13] + list(range(5)):
        S_.add(None, lambda w, T=T: ["%s %s, %s, %s, %s" % (MF16, V(acc(T, tt), 4), A(aCSA + 2 * T, 2), A(aST + 4 * tt, 2), V(acc(T, tt), 4)) for tt in range(4)])
        info.append((9, T, ()))
    ev = {}; bt = {}
    def at(kk, fns): ev.setdefault(kk, []).extend(fns)
    w_ = [I(a, "v_lshrrev_b32 v%d, 4, v%d" % (u0, vL)),
          I(a, "v_mul_u32_u24 v%d, 9, v%d\nv_add_u32 v%d, 1, v%d\nv_lshrrev_b32 v%d, 1, v%d\nv_add_u32 v%d, s%d, v%d" % (vCSW, u0, vCSW, vCSW, vCSW, vCSW, vCSW, sWAVE, vCSW), 4),
          I(a, "s_mul_i32 s52, s%d, 9\ns_add_u32 s52, s52, 4\ns_cmp_ge_u32 s%d, 2\ns_cmov_b32 s52, 0x%x\nv_mov_b32 v%d, s52\nv_cmp_eq_u32 vcc, 3, v%d\ns_nop 1\nv_cndmask_b32 v%d, v%d, v%d, vcc"
            % (sWAVE, sWAVE, OOB >> 9, u1, u0, vCSW, vCSW, u1), 8),
          I(a, "v_and_b32 v%d, 15, v%d\nv_lshlrev_b32 v%d, 4, v%d\nv_and_b32 v%d, 1, v%d\nv_lshl_add_u32 v%d, v%d, 3, v%d\nv_lshrrev_b32 v%d, 1, v%d\nv_lshl_add_u32 v%d, v%d, 10, v%d"
            % (u0, vL, u0, u0, u1, vCSW, u0, u1, u0, vCSW, vCSW, vCSW, vCSW, u0), 6),
          I(a, "s_lshr_b32 s52, s%d, 1\ns_lshl_b32 s52, s52, 8\ns_and_b32 s60, s%d, 1\ns_lshl2_add_u32 s52, s60, s52\nv_add_u32 v%d, s52, v%d" % (sI, sI, vCSW, vCSW), 5)]
    marks = set()
    at(0, w_ + [("", lambda: marks.add(1))])
    pub = [I(a, "v_accvgpr_read_b32 v%d, a%d" % (u0, aCS))]
    for k, (lo, hi) in enumerate([("0xffff0000", "0"), ("0", "0xffff"), ("0", "0xffff0000")]):
        pub.append(I(a, "v_accvgpr_read_b32 v%d, a%d\ns_mov_b32 vcc_lo, %s\ns_mov_b32 vcc_hi, %s\nv_cndmask_b32 v%d, v%d, v%d, vcc" % (u1, aCS + 4 * (k + 1), lo, hi, u0, u0, u1), 4))
    pub += hilo(a, u0, u1, vCS0)
    pub.append(("M", lambda: a.vmem("buffer_store_dword v%d, v%d, %s, s%d offen %s" % (u0, vCSW, WSR, sCSB, SC), ("cs", 0))))
    at(6, pub)
    b_ = Asm(); rot_bases(b_, 4)
    at(10, Q(a, "\n".join(b_.lines)))
    bt[9] = ([("cs", 0)], signal(a, "s_lshl2_add_u32 s49, s%d, s%d" % (sI, sFC)))
    coff = "s_mov_b32 s49, s%d" % sFC
    at(16, poll_issue(a, coff, "plc") + stats_addr(a, vCS0) + stats_fetch(a, "a", aST, vCS0))
    ld = poll_check(a, coff, "plc", "0xff") + [I(a, "v_lshlrev_b32 v%d, 4, v%d" % (u0, vL))]
    for k in range(7):
        if k == 4: ld.append(I(a, "s_add_u32 s%d, s%d, 4096" % (sCSB, sCSB)))
        ld.append(("M", lambda k=k: a.vmem("buffer_load_dwordx4 %s, v%d, %s, s%d offen offset:%d %s" % (A(aCSA + 4 * k, 4), u0, WSR, sCSB, 1024 * (k % 4), SC), ("csa", 0))))
    ld += stats_check(a, "a", aST, vCS0, u1)
    for tt in range(4): ld.append(I(a, "v_accvgpr_mov_b32 a%d, a%d" % (aST + 4 * tt + 1, aST + 4 * tt)))
    at(20, ld)
    S_.prime()
    dead = set()
    wjob = lambda p, w_: ("w", lambda: p < 2 or (p - 2, w_) in dead, lambda: dma_issue(p, w_))
    for p in range(1, 9): S_.jobs += [XS.job(p), wjob(p, 0), wjob(p, 1), wjob(p, 2)]
    last = {}
    for s, (pp, T, wins) in enumerate(info):
        for w_ in wins: last[(pp, w_)] = s + 1
    bars = [s for s, (pp, T, wins) in enumerate(info) if pp < 9 and T in CFG.abar and info[s - 1][1] != T]
    for s, (pp, T, wins) in enumerate(info):
        pre = []
        begin = T == 0 and info[s - 1][1] != 0
        if begin and pp < 9: wlg(a, [("xr", pp)])
        if VERB and begin: a.cm("HS attn %d" % pp)
        if begin: stamp(a, 4 + pp, 6)
        if s == 0: stamp(a, 3)
        S_.vmrate = 2.0 if s < CFG.aboost else CFG.vmrate / 100.0
        if pp == 9 and T == 9:
            run(S_.extra); S_.extra = []
            wvm(a, [("csa", 0)], csa=7)
            a("s_nop 1")
        if s in bars:
            b = bars.index(s)
            nxt = bars[b + 1] if b + 1 < len(bars) else len(info)
            lim = S_.read_limit(nxt - 1)
            need = []
            for s2, (p2_, T2, w2_) in enumerate(info):
                if S_.ring[s2] is not None and S_.ring[s2] <= lim:
                    need += [(p2_, w_) for w_ in w2_ if (p2_, w_) not in visible and (p2_, w_) not in need]
            tags, aft = bt.pop(b, ([], []))
            def bar(need=need, tags=tags):
                wvm(a, [("w",) + u for u in need] + tags, w=4)
                a("s_barrier")
            pre.append(("B", bar))
            visible.update(need); dead.update(u for u in last if last[u] < s)
            S_.extra += aft
            if b % 3 == CFG.axb and pp + 1 < 9: S_.extra += XS.reads(pp + 1)
            S_.extra += ev.pop(b, [])
        S_.emit(pre)
    assert not S_.extra and not ev and not S_.jobs and not S_.mem
    if VERB: a.cm("END")
    RS = 296
    vq, vn, vI0, vI1 = 224, 225, 226, 227
    T8 = 232
    t0, t1, t2, t3 = 242, 243, 254, 255
    SCL = 250
    a("s_barrier")
    stamp(a, 4, 5)
    stamp(a, 2)
    for tt in range(4): a("v_accvgpr_read_b32 v%d, a%d" % (SCL + tt, aST + 4 * tt + 2))
    a("v_lshrrev_b32 v%d, 4, v%d" % (vq, vL))
    a("v_and_b32 v%d, 15, v%d" % (vn, vL))
    for tt in range(4): a("v_rcp_f32 v%d, v%d" % (SCL + tt, SCL + tt))
    a("s_lshl_b32 s52, s%d, 6" % sWAVE)
    a("v_add_u32 v%d, s52, v%d" % (t0, vn))
    a("v_mul_u32_u24 v%d, %d, v%d" % (t0, RS, t0))
    a("v_lshl_add_u32 v%d, v%d, 3, v%d" % (vI0, vq, t0))
    a("v_mul_u32_u24 v%d, 72, v%d" % (t1, vq))
    a("v_add3_u32 v%d, v%d, v%d, 64" % (vI1, t0, t1))
    for tt in range(4): a("v_mul_f32 v%d, %s, v%d" % (SCL + tt, f32(LOG2E), SCL + tt))
    a("s_mov_b32 s56, %s" % f32(1.0 / LOG2E))
    a("s_mov_b32 s57, s56")
    a("v_mov_b32 v228, %s" % f32(1e-6 * LOG2E))
    a("v_cmp_gt_u32 s[32:33], 2, v%d" % vq)
    def scale4(r, tt):
        b, o = SCL + (tt & 2), tt & 1
        for i in (0, 2): a("v_pk_mul_f32 v[%d:%d], v[%d:%d], v[%d:%d] op_sel:[0,%d] op_sel_hi:[1,%d]" % (r + i, r + i + 1, r + i, r + i + 1, b, b + 1, o, o))
    def phi4(r, t, keepm=None):
        for i in range(4): a("v_exp_f32_e64 v%d, v%d clamp" % (t + i, r + i))
        for i in range(4): a("v_max_f32 v%d, v%d, v228" % (t + 4 + i, r + i))
        d = r if keepm is None else t
        for i in range(0, 4, 2): a("v_pk_fma_f32 v[%d:%d], v[%d:%d], s[56:57], v[%d:%d]" % (d + i, d + i + 1, t + 4 + i, t + 5 + i, t + i, t + i + 1))
        if keepm is not None:
            for i in range(4): a("v_cndmask_b32 v%d, v%d, v%d, %s" % (r + i, r + i, t + i, keepm))
    def pack2(dst, r):
        a("v_cvt_pk_bf16_f32 v%d, v%d, v%d" % (dst, r, r + 1))
        a("v_cvt_pk_bf16_f32 v%d, v%d, v%d" % (dst + 1, r + 2, r + 3))
    h0off = "s_add_u32 s49, s72, %d" % (128 * FH)
    side = []
    def sprinkle():
        while side:
            t, f = side.pop(0); f()
            if t == "M": break
    a("v_mov_b32 v%d, 0x%x" % (t2, ONE2))
    a("v_mov_b32 v%d, 0x%x" % (t3, ONE2))
    for tt in range(4): a("ds_write_b64 v%d, v[%d:%d] offset:%d" % (t0, t2, t3, tt * 16 * RS + 288))
    for T in [13] + list(range(9, 13)) + list(range(5, 9)):
        for tt in (3, 2, 1, 0):
            r = acc(T, tt)
            if T != 13 and (T < 9 or tt % 2 == 0): sprinkle()
            scale4(r, tt)
            if 5 <= T < 9: phi4(r, T8)
            elif T == 13: phi4(r, T8, keepm="s[32:33]")
            pack2(r, r)
            if T == 13: a("ds_write_b64 v%d, v[%d:%d] offset:%d" % (vI1, r, r + 1, tt * 16 * RS))
            else:
                off = C0[(T - 5) % 4] * 8 + (144 if T >= 9 else 0)
                a("ds_write_b64 v%d, v[%d:%d] offset:%d" % (vI0, r, r + 1, tt * 16 * RS + off))
        if T == 13:
            run(p2.setup_vo(240, 241, "s_mov_b32 s52, s4", sXG))
            p2.free = list(range(10, 18))
            for u in p2.units[:8]: side += p2.dma_issue(*u)
            a("v_bfe_u32 v223, v%d, 3, 2" % vL)
            a("v_and_b32 v240, 7, v%d" % vL)
            a("v_lshlrev_b32 v240, 2, v240")
            a("v_lshl_add_u32 v223, v223, 7, v240")
            side += poll_issue(a, h0off, "pl0", 231, 223)
    run(side); side = []
    stamp(a, 5, 5)
    vM, vLf, vB2 = 229, 230, 226
    a("v_bfe_u32 v%d, v%d, 2, 4" % (t0, vL))
    a("v_mul_u32_u24 v%d, %d, v%d" % (t0, RS, t0))
    a("v_and_b32 v%d, 3, v%d" % (t2, vL))
    a("s_lshl_b32 s52, s%d, 2" % sWAVE)
    a("s_lshr_b32 s49, s%d, 1" % sWAVE)
    a("s_add_u32 s52, s52, s49")
    a("v_cmp_eq_u32 vcc, s%d, v%d" % (sWAVE, t2))
    a("v_add_u32 v%d, s52, v%d" % (t3, t2))
    a("v_lshl_add_u32 v%d, v%d, 3, v%d" % (vM, t3, t0))
    a("s_lshl_b32 s52, s52, 3")
    a("s_add_u32 s52, s52, 32")
    a("v_add_u32 v%d, s52, v%d" % (vLf, t0))
    a("v_add_u32 v%d, 144, v%d" % (t3, t0))
    a("v_cndmask_b32 v%d, v%d, v%d, vcc" % (vB2, t3, vLf))
    a("v_cmp_eq_u32 s[34:35], s%d, v%d" % (sWAVE, vq))
    a.lg0()
    a("s_barrier")
    KC = 80
    FR = 96
    for k8 in range(8):
        if k8 == 4:
            for v_ in (vM, vLf, vB2): a("v_add_u32 v%d, %d, v%d" % (v_, 128 * RS, v_))
        if k8 == 7: a.wait_lg(lambda t: t == 0)
        for f, (base, off) in enumerate([(vM, 0), (vLf, 0), (vM, 144), (vB2, 144)]):
            for rd in range(2):
                r = FR + 16 * (k8 % 7) + 4 * f + 2 * rd
                a.lds("ds_read_b64_tr_b16 v[%d:%d], v%d offset:%d" % (r, r + 1, base, (32 * (k8 % 4) + 16 * rd) * RS + off), k8)
        for kq in ([k8 - 1] if k8 else []) + ([7] if k8 == 7 else []):
            a.wait_lg(lambda t: t == kq)
            b = FR + 16 * (kq % 7)
            for ci, (fa, fb) in enumerate([(b, b + 8), (b, b + 12), (b + 4, b + 8), (b + 4, b + 12)]):
                d = KC + 4 * ci
                a("%s %s, %s, %s, %s" % (MF, V(d, 4), V(fa, 4), V(fb, 4), "0" if kq == 0 else V(d, 4)))
    stamp(a, 6, 5)
    a("s_lshl_b32 s52, s%d, 5" % sXG)
    a("s_add_u32 s52, s52, s%d" % sWAVE)
    a("s_mul_i32 s6, s52, 3072")
    a("s_add_u32 s6, s6, %d" % KVP_OFF)
    a("s_mul_i32 s52, s%d, 12288" % sI)
    a("s_add_u32 s58, s6, s52")
    a("v_lshlrev_b32 v%d, 4, v%d" % (t0, vL))
    a("s_lshl_b32 s81, s%d, 7" % sXG)
    a("s_add_u32 s81, s81, %d" % FL(FKV))
    for i in range(4): a("v_cndmask_b32 v%d, v%d, v%d, s[34:35]" % (KC + 8 + i, KC + 12 + i, KC + 8 + i))
    for ci in range(3):
        a.vmem("buffer_store_dwordx4 %s, v%d, %s, s58 offen offset:%d %s" % (V(KC + 4 * ci, 4), t0, WSR, ci * 1024, SC), "kvp")
    run(poll_check(a, h0off, "pl0", "s71", 231, 223))
    for st in range(CFG.ah): side += p2.h_issue(st)
    QF = 104
    def qphi(tt):
        for T in range(5):
            sprinkle()
            scale4(acc(T, tt), tt)
            phi4(acc(T, tt), T8)
        for h in range(4):
            if h % 2: sprinkle()
            pack2(QF + 16 * tt + 4 * h, acc(h, tt))
            pack2(QF + 16 * tt + 4 * h + 2, acc(4, tt))
    qphi(0); qphi(1)
    stamp(a, 7, 5)
    a.wait_vm(lambda t: t == "kvp")
    a("s_barrier")
    run(signal(a, "s_lshl2_add_u32 s49, s%d, s81" % sI))
    p2.free += list(range(10))
    for u in p2.units[8:3 * CFG.ah]: side += p2.dma_issue(*u)
    stamp(a, 8, 5)
    qphi(2); qphi(3)
    run(poll_issue(a, "s_mov_b32 s49, s81", "plkv"))
    a("s_and_b32 s52, s%d, 1" % sWAVE)
    a("s_lshl_b32 s49, s52, 1")
    a("v_cmp_le_u32 s[32:33], s49, v%d" % vn)
    a("v_lshrrev_b32 v%d, 2, v%d" % (t2, vn))
    a("v_cmp_eq_u32 s[16:17], s%d, v%d" % (sWAVE, t2))
    a("v_and_b32 v%d, 3, v%d" % (t2, vn))
    a("s_add_u32 s49, s49, 2")
    a("v_cmp_gt_u32 vcc, s49, v%d" % t2)
    a("v_cmp_eq_u32 s[20:21], s%d, v%d" % (sWAVE, t2))
    a("s_and_b64 s[10:11], s[16:17], vcc")
    a("v_cmp_le_u32 s[74:75], s52, v%d" % vq)
    a("s_cmp_eq_u32 s52, 1")
    a("s_cselect_b64 s[76:77], s[34:35], 0")
    stamp(a, 9, 5)
    run(poll_check(a, "s_mov_b32 s49, s81", "plkv", "0xff"))
    stamp(a, 5)
    stamp(a, 10, 5)
    for i in range(8):
        a("s_add_u32 s58, s6, %d" % (i * 12288))
        for ci in range(3):
            a.vmem("buffer_load_dwordx4 %s, v%d, %s, s58 offen offset:%d %s" % (V(12 * i + 4 * ci, 4), t0, WSR, ci * 1024, SC), ("kv", i))
    run(side); side = []
    for i in range(1, 8):
        a.wait_vm(lambda t: t == ("kv", i))
        if i == 1: stamp(a, 11, 5)
        for r in range(12): a("v_add_f32 v%d, v%d, v%d" % (r, r, 12 * i + r))
    stamp(a, 12, 5)
    pack2(12, 0); pack2(14, 4); pack2(16, 8)
    a("v_mov_b32 v18, v16"); a("v_mov_b32 v19, v17"); a("v_mov_b32 v20, v16"); a("v_mov_b32 v21, v17")
    a("s_bitcmp1_b32 s%d, 0" % sWAVE)
    a("s_cselect_b64 vcc, -1, 0")
    a("v_permlane16_swap_b32 v18, v20")
    a("v_permlane16_swap_b32 v19, v21")
    a("v_mov_b32_dpp v22, v14 row_ror:4 row_mask:0xf bank_mask:0xf")
    a("v_mov_b32_dpp v23, v15 row_ror:4 row_mask:0xf bank_mask:0xf")
    a("v_cndmask_b32 v18, v20, v18, vcc")
    a("v_cndmask_b32 v19, v21, v19, vcc")
    a("v_cndmask_b32 v22, v14, v22, s[16:17]")
    a("v_cndmask_b32 v23, v15, v23, s[16:17]")
    a("v_mov_b32_dpp v20, v18 row_ror:4 row_mask:0xf bank_mask:0xf")
    a("v_mov_b32_dpp v21, v19 row_ror:4 row_mask:0xf bank_mask:0xf")
    a("v_cndmask_b32 v20, v18, v20, s[16:17]")
    a("v_cndmask_b32 v21, v19, v21, s[16:17]")
    for f, (m, mainr, leftr) in enumerate([(32, 12, 16), (10, 14, 18), (20, 22, 20)]):
        for k, (src, extra) in enumerate([(mainr, 74), (mainr + 1, m), (leftr, 34), (leftr + 1, 76)]):
            a("s_and_b64 vcc, s[%d:%d], s[%d:%d]" % (m, m + 1, extra, extra + 1))
            a("v_cndmask_b32 v%d, 0, v%d, vcc" % (24 + 4 * f + k, src))
    a("s_mul_i32 s52, s%d, 3072" % sWAVE)
    a("v_add_u32 v%d, 0x25000, v%d" % (t0, t0))
    a("v_add_u32 v%d, s52, v%d" % (t1, t0))
    for f in range(3):
        a("ds_write_b128 v%d, %s offset:%d" % (t1, V(24 + 4 * f, 4), f * 1024))
    a("s_waitcnt lgkmcnt(0)")
    a("s_barrier")
    AF = 168
    for i in range(12):
        a("ds_read_b128 %s, v%d offset:%d" % (V(AF + 4 * i, 4), t0, i * 1024))
    a("s_lshl_b32 s52, s%d, 1" % sXG)
    a("s_add_u32 s52, s52, 144")
    a("s_mul_i32 s58, s52, %d" % KSTRIDE)
    a("s_add_u32 s58, s58, %d" % H_OFF)
    a("s_add_u32 s59, s58, %d" % KSTRIDE)
    a("s_lshr_b32 s52, s%d, 1" % sXG)
    a("s_add_u32 s52, s52, 160")
    a("s_mul_i32 s57, s52, %d" % KSTRIDE)
    a("s_and_b32 s52, s%d, 1" % sXG)
    a("s_lshl_b32 s52, s52, 3")
    a("s_add_u32 s57, s57, s52")
    a("s_add_u32 s57, s57, %d" % H_OFF)
    a("s_mov_b32 s56, %s" % f32(LOG2E))
    a("v_cmp_eq_u32 s[32:33], 1, v%d" % vq)
    a("v_cmp_eq_u32 s[34:35], 2, v%d" % vq)
    a("v_cmp_eq_u32 s[10:11], 3, v%d" % vq)
    a("s_waitcnt lgkmcnt(0)")
    for tt in range(4):
        o = 24 * tt
        for h in range(4):
            qf = V(QF + 16 * tt + 4 * h, 4)
            a("%s %s, %s, %s, 0" % (MF, V(o + 4 * h, 4), V(AF + 12 * h, 4), qf))
            a("%s %s, %s, %s, %s" % (MF, V(o + 16, 4), V(AF + 12 * h + 4, 4), qf, "0" if h == 0 else V(o + 16, 4)))
            a("%s %s, %s, %s, %s" % (MF, V(o + 20, 4), V(AF + 12 * h + 8, 4), qf, "0" if h == 0 else V(o + 20, 4)))
    stamp(a, 13, 5)
    a("s_nop 7")
    for tt in range(4):
        o = 24 * tt
        for h in range(4): a("v_fma_f32 v%d, v%d, s56, v228" % (o + 20 + h, o + 20 + h))
        for h in range(4): a("v_rcp_f32 v%d, v%d" % (o + 20 + h, o + 20 + h))
        a("s_nop 0")
        a("v_cndmask_b32 v%d, v%d, v%d, s[32:33]" % (T8 + 8, o + 20, o + 21))
        a("v_cndmask_b32 v%d, v%d, v%d, s[34:35]" % (T8 + 8, T8 + 8, o + 22))
        a("v_cndmask_b32 v%d, v%d, v%d, s[10:11]" % (T8 + 8, T8 + 8, o + 23))
        for h in range(4):
            b, sel = o + 20 + (h & 2), h & 1
            for i in (0, 2): a("v_pk_mul_f32 v[%d:%d], v[%d:%d], v[%d:%d] op_sel:[0,%d] op_sel_hi:[1,%d]" % (o + 4 * h + i, o + 4 * h + i + 1, o + 4 * h + i, o + 4 * h + i + 1, b, b + 1, sel, sel))
        for i in (0, 2): a("v_pk_mul_f32 v[%d:%d], v[%d:%d], v[%d:%d] op_sel_hi:[1,0]" % (o + 16 + i, o + 17 + i, o + 16 + i, o + 17 + i, T8 + 8, T8 + 9))
        pack2(o, o); pack2(o + 2, o + 4)
        pack2(o + 4, o + 8); pack2(o + 6, o + 12)
        pack2(o + 8, o + 16)
        a.vmem("buffer_store_dwordx4 %s, v%d, %s, s58 offen offset:%d %s" % (V(o, 4), vX, WSR, tt * 1024, SC), "o")
        a.vmem("buffer_store_dwordx4 %s, v%d, %s, s59 offen offset:%d %s" % (V(o + 4, 4), vX, WSR, tt * 1024, SC), "o")
        a.vmem("buffer_store_dwordx2 %s, v%d, %s, s57 offen offset:%d %s" % (V(o + 8, 2), vX, WSR, tt * 1024, SC), "o")
    for o_, n_ in zip(keep[:5], new[:5]): a("v_mov_b32 v%d, v%d" % (o_, n_))
    vL, vX, vFS, vFP, vTK, vPL = keep
    p2.setup_special(176, 177, 178)
    tr_addrs(a, 176, 177, 178)
    a("s_mul_i32 s%d, s70, 4128" % sPX)
    a("s_lshl_b32 s81, s%d, 7" % sXG)
    a("s_add_u32 s81, s81, s%d" % sFI)
    a("s_mov_b32 s52, s%d" % sI)
    a("s_mov_b32 s%d, s%d" % (sI, sXG))
    a("s_mov_b32 s%d, s52" % sXG)
    osig = lambda: signal(a, "s_add_u32 s49, s81, %d" % (128 * FO))
    stamp(a, 14, 5)
    stamp(a, 6)
    lgo = a.newlabel("Lp2a")
    a("s_cmp_lt_u32 s%d, 6" % sXG)
    a("s_cbranch_scc1 %s" % lgo)
    a("s_waitcnt vmcnt(0)")
    a("s_barrier")
    keepvm = list(a.vm)
    run(osig())
    if CFG.ipf:
        a("s_sub_u32 s52, s%d, 6" % sXG)
        a("s_mul_i32 s60, s%d, 9216" % sWAVE)
        a("s_mul_i32 s54, s52, %d" % (2304 * 1152))
        a("s_add_u32 s54, s54, s60")
        a("s_mul_i32 s55, s52, %d" % (288 * 1152))
        a("s_add_u32 s55, s55, s60")
        a("v_lshlrev_b32 v0, 7, v%d" % vL)
        for base, r, rows in [(54, rW2, [576 * x_ + 192 * k for x_ in range(CFG.ah // 3, 4) for k in range(3)]), (55, rWO, [32 * k for k in range(9)])]:
            for row in rows:
                a("s_add_u32 s52, s%d, %d" % (base, row * 1152))
                a("buffer_load_dword v1, v0, s[%d:%d], s52 offen" % (r, r + 3))
    a.vm = keepvm
    a("s_branch L_final")
    a.label(lgo)
    hooks = {}
    def add(st, key, v): hooks.setdefault(st, {}).setdefault(key, []).extend(v)
    add(CFG.so, "bar", ["o"]); add(CFG.so, "after", osig())
    ooff = "s_add_u32 s49, s72, %d" % (128 * FO)
    NSA = len(steps)
    add(CFG.so + 2, "after", poll_issue(a, ooff, "plo", None, 223))
    add(CFG.so + 4, "after", poll_check(a, ooff, "plo", "0x01010101", None, 223) + [("", lambda: marks.add("o"))])
    wvm(a, [("w2",) + u for u in p2.units[:4]])
    a("s_barrier")
    p2.visible.update(p2.units[:4])
    for k_ in [k_ for k_ in a.cnt if isinstance(k_, tuple) and k_[0] == "f"]: del a.cnt[k_]
    S_ = Stream(a, "v", WF)
    p2.add_slots(S_)
    S_.prime()
    S_.jobs += p2.jobs(CFG.ah, lambda st: True, lambda st: st < 12 or "o" in marks)
    p2.main(S_, hooks, [18, 19])

def spin(a, soff_code, mask, sleep):
    lp, ld = a.newlabel("Lw"), a.newlabel("Lw")
    a(soff_code)
    a("s_mov_b32 s59, 40000")
    a.label(lp)
    a("buffer_load_dword v%d, v%d, %s, s49 offen %s" % (vPL, vFP, WSR, SC))
    a("s_waitcnt vmcnt(0)")
    a("v_cmp_eq_u32 vcc, s%d, v%d" % (sTOK, vPL))
    a("s_andn2_b32 s61, %s, vcc_lo" % mask)
    a("s_cbranch_scc0 %s" % ld)
    a("s_sleep %d" % sleep)
    a("s_sub_u32 s59, s59, 1")
    a("s_cmp_lg_u32 s59, 0")
    a("s_cbranch_scc1 %s" % lp)
    a.label(ld)

def code_prefetch(a, top=False):
    if CFG.cpf == 0 or (CFG.cpf >= 2) != top: return
    if top:
        a("s_getpc_b64 s[60:61]")
        l = a.newlabel("Lpc")
        a.label(l)
        a("s_sub_u32 s%d, s60, %s-%s" % (rW2, l, NAME))
        a("s_subb_u32 s%d, s61, 0" % (rW2 + 1))
        a("s_and_b32 s%d, s%d, 0xffff" % (rW2 + 1, rW2 + 1))
        a("s_mov_b32 s%d, L_code_end-%s" % (rW2 + 2, NAME))
        a("s_mov_b32 s%d, 0x20000" % (rW2 + 3))
        if CFG.cpf == 2:
            a("s_lshr_b32 s52, s2, 3")
            a("s_lshl_b32 s52, s52, 12")
            a("v_lshlrev_b32 v63, 4, v0")
        elif CFG.cpf == 4:
            a("s_lshr_b32 s52, s2, 4")
            a("s_lshl_b32 s52, s52, 12")
            a("s_bitcmp1_b32 s2, 3")
            a("s_cselect_b32 s49, (L_attn-%s)&0xffffff80, 0" % NAME)
            a("s_add_u32 s52, s52, s49")
            a("v_lshlrev_b32 v63, 4, v0")
        else:
            a("s_bfe_u32 s52, s2, 0x20003")
            a("s_lshl_b32 s52, s52, 15")
            a("v_lshlrev_b32 v63, 7, v0")
        a.vmem("buffer_load_dword v62, v63, s[%d:%d], s52 offen" % (rW2, rW2 + 3), "pf")
        return
    a("s_getpc_b64 s[60:61]")
    l = a.newlabel("Lpc")
    a.label(l)
    a("s_sub_u32 s%d, s60, %s-%s" % (rW2, l, NAME))
    a("s_subb_u32 s%d, s61, 0" % (rW2 + 1))
    a("s_and_b32 s%d, s%d, 0xffff" % (rW2 + 1, rW2 + 1))
    a("s_mov_b32 s%d, L_code_end-%s" % (rW2 + 2, NAME))
    a("s_mov_b32 s%d, 0x20000" % (rW2 + 3))
    a("s_lshr_b32 s52, s2, 3")
    a("s_lshl_b32 s52, s52, 12")
    a("s_lshl_b32 s49, s%d, 10" % sWAVE)
    a("s_add_u32 s52, s52, s49")
    a("v_lshlrev_b32 v63, 4, v%d" % vL)
    a.vmem("buffer_load_dword v%d, v63, s[%d:%d], s52 offen" % (vPL, rW2, rW2 + 3), "pf")
    if CFG.tlb:
        a("s_lshl_b32 s49, s%d, 1" % sWAVE)
        a("s_cmp_eq_u32 s%d, 1" % sWAVE)
        a("s_cselect_b32 s60, s%d, s%d" % (sW2, sWS)); a("s_cselect_b32 s61, s%d, s%d" % (sW2 + 1, sWS + 1))
        a("s_mov_b32 s%d, %d" % (rWO + 2, PART_OFF + 5 * PSL)); a("s_cmov_b32 s%d, %d" % (rWO + 2, 4608 * 1152))
        a("s_cmp_eq_u32 s%d, 2" % sWAVE)
        a("s_cmov_b32 s60, s%d" % sWO); a("s_cmov_b32 s61, s%d" % (sWO + 1)); a("s_cmov_b32 s%d, %d" % (rWO + 2, 576 * 1152))
        a("s_cmp_eq_u32 s%d, 3" % sWAVE)
        a("s_cmov_b32 s60, s%d" % sOUT); a("s_cmov_b32 s61, s%d" % (sOUT + 1)); a("s_cmov_b32 s%d, %d" % (rWO + 2, 2048 * 1152))
        a("s_mov_b32 s%d, s60" % rWO)
        a("s_and_b32 s%d, s61, 0xffff" % (rWO + 1))
        a("s_mov_b32 s%d, 0x20000" % (rWO + 3))
        a("v_lshlrev_b32 v63, %d, v%d" % (CFG.tlb, vL))
        a("s_lshl_b32 s52, s2, 7")
        a.vmem("buffer_load_dword v%d, v63, s[%d:%d], s52 offen %s" % (vPL, rWO, rWO + 3, SC), "pf")

def build():
    a = Asm()
    a.raw("; @launch grid=(256,1,1) block=(256,1,1) lds=%d" % LDS_BYTES)
    a.raw('.amdgcn_target "amdgcn-amd-amdhsa--gfx950"')
    a.raw(".text")
    kernel_begin(a, NAME)
    a("s_cmp_ge_u32 s2, 256")
    a("s_cbranch_scc1 L_end")
    a("s_load_dwordx16 s[4:19], s[0:1], 0")
    a("s_load_dwordx4 s[20:23], s[0:1], 64")
    code_prefetch(a, True)
    if CFG.stamp:
        for i in range(16): a("s_mov_b32 s%d, 0" % (84 + i))
        a("s_memtime s[100:101]" if CFG.clk else "s_memrealtime s[100:101]")
    a("v_and_b32 v%d, 63, v0" % vL)
    a("v_lshrrev_b32 v1, 6, v0")
    a("v_cmp_eq_u32 vcc, 0xc0, v0")
    a("v_readfirstlane_b32 s%d, v1" % sWAVE)
    a("v_mov_b32 v1, 0x%x" % OOB)
    a("s_lshr_b32 s%d, s2, 6" % sC)
    if CFG.afirst:
        a("s_add_u32 s%d, s%d, 3" % (sC, sC))
        a("s_and_b32 s%d, s%d, 3" % (sC, sC))
    a("v_cndmask_b32 v%d, v1, v%d, vcc" % (vFS, vL))
    a("v_and_b32 v1, 31, v0")
    a("v_lshlrev_b32 v%d, 2, v1" % vFP)
    if CFG.mapping == 0:
        a("s_and_b32 s%d, s2, 7" % sXG)
        a("s_bfe_u32 s%d, s2, 0x30003" % sI)
    elif CFG.mapping == 1:
        a("s_and_b32 s%d, s2, 3" % sXG)
        a("s_bfe_u32 s52, s2, 0x10003")
        a("s_lshl1_add_u32 s%d, s%d, s52" % (sXG, sXG))
        a("s_and_b32 s%d, s2, 4" % sI)
        a("s_bfe_u32 s52, s2, 0x20004")
        a("s_add_u32 s%d, s%d, s52" % (sI, sI))
    elif CFG.mapping == 4:
        a("s_and_b32 s%d, s2, 3" % sXG)
        a("s_bfe_u32 s52, s2, 0x10003")
        a("s_lshl1_add_u32 s%d, s%d, s52" % (sXG, sXG))
        a("s_bfe_u32 s%d, s2, 0x20004" % sI)
        a("s_bfe_u32 s52, s2, 0x10002")
        a("s_lshl1_add_u32 s%d, s%d, s52" % (sI, sI))
    a("s_mul_i32 s%d, s%d, %d" % (sROT, sC, CFG.rotc))
    a("s_add_u32 s%d, s%d, s%d" % (sROT, sROT, sI))
    if CFG.mapping != 0 and CFG.rotc:
        a("s_and_b32 s52, s%d, 1" % sXG)
        a("s_add_u32 s%d, s%d, s52" % (sROT, sROT))
    a("s_cmp_ge_u32 s%d, 9" % sROT)
    a("s_cselect_b32 s52, 9, 0")
    a("s_sub_u32 s%d, s%d, s52" % (sROT, sROT))
    a("s_lshl_b32 s52, s%d, 14" % sI)
    a("s_lshl_b32 s49, s%d, 12" % sWAVE)
    a("s_add_u32 s52, s52, s49")
    a("v_lshl_add_u32 v%d, v%d, 4, s52" % (vX, vL))
    a("s_lshl_b32 s%d, s%d, 10" % (sFI, sI))
    a("s_add_u32 s%d, s%d, 0x%x" % (sFI, sFI, FLG_OFF))
    stats_load(a)
    a("s_mov_b32 s%d, 0x%x" % (rX + 2, 2048 * 1152))
    a("s_mov_b32 s%d, 0x20000" % (rX + 3))
    a("s_waitcnt lgkmcnt(0)")
    if CFG.stamp: a("s_mov_b32 s84, s100")
    a("s_mov_b32 s%d, s%d" % (rX, sX))
    a("s_and_b32 s%d, s%d, 0xffff" % (rX + 1, sX + 1))
    stats_issue(a)
    a("s_add_u32 s60, s%d, 0x%x" % (sWS, FL(0)))
    a("s_addc_u32 s61, s%d, 0" % (sWS + 1))
    a("s_load_dword s%d, s[60:61], 0" % sTOK)
    stamp(a, 6, 1)
    srd(a, rWS, sWS, WS_BYTES)
    vm0 = list(a.vm)
    a("s_cmp_eq_u32 s%d, 3" % sC)
    a("s_cbranch_scc1 L_attn")
    path_mlp(a)
    a.label("L_final")
    stamp_out(a)
    a.label("L_end")
    a("s_endpgm")
    a.vm = vm0; a.lg = []
    a.label("L_attn")
    path_attn(a)
    a("s_branch L_final")
    a.lines += LATER
    a.label("L_code_end")
    a("s_endpgm")
    a.raw('.section .rodata,"a"')
    a.raw(kernel_desc(NAME, 512, 256))
    return a.text()

if __name__ == "__main__":
    args = sys.argv[1:]
    out = "parallel_sum__linear_attn_block__glu_gated_swiglu__prompt.s"
    for x in args:
        if x == "--stamp": CFG.stamp = True
        elif x == "-v": VERB = True
        elif x == "--sc1": SC = "sc1"
        elif x == "--dsc1": DFL = "sc1"
        elif x == "--dnt": DFL = "nt"
        elif x == "--osc": OSC = " sc1"
        elif x == "--ont": OSC = " nt"
        elif "=" in x:
            k, v = x.split("="); assert hasattr(CFG, k), k; setattr(CFG, k, float(v) if "." in v else int(v))
        else: out = x
    txt = build()
    if CFG.abl:
        import re
        L = txt.split("\n"); i0 = next(i for i, l in enumerate(L) if "v_mfma" in l); i1 = L.index("L_final:")
        def drop(l):
            l = l.strip()
            if CFG.abl & 1 and re.match(r"v_(mul_f32|exp_f32|rcp_f32) v\d+, v\d+", l) and int(re.search(r"v(\d+)", l.split(" ")[1]).group(1)) < 128: return True
            if CFG.abl & 1 and re.match(r"v_fma_f32", l): return True
            if CFG.abl & 2 and l.startswith("ds_read_b64_tr_b16"): return True
            if CFG.abl & 4 and l.startswith("v_mfma_f32_16x16x16"): return True
            if CFG.abl & 8 and l.endswith(" lds"): return True
            if CFG.abl & 16 and l.startswith("buffer_load_dwordx4 a["): return True
            return False
        txt = "\n".join(l for i, l in enumerate(L) if not (i0 < i < i1 and drop(l)))
    if DFL: txt = txt.replace(" lds\n", " %s lds\n" % DFL)
    open(out, "w").write(txt)
    if CFG.stamp: open(out + ".slow", "w").write("\n".join(NSLOW))
```

```python
import sys, math
from lib import *

NAME = "parallel_sum__linear_attn_block__glu_gated_swiglu__prompt_kernel"
LOG2E = 1.4426950408889634
KSTRIDE = 131072
H_OFF = 18 * KSTRIDE
KVP_OFF = H_OFF + 164 * KSTRIDE
PART_OFF = KVP_OFF + 8 * 8 * 4 * 6 * 1024
PSL = 18 * KSTRIDE
FLG_OFF = 0x80000
ST_OFF = 0
CS_OFF = 0x10000
WS_BYTES = 268435456
OOB = 0x7f000000
LDS_BYTES = 163840
SC = "sc0 sc1"
OSC = ""
DFL = ""
def FL(line): return FLG_OFF + 128 * line
FKV, FC, FP, FO, FH = 56, 96, 128, 192, 256

sX, sWQKV, sWO, sW1, sW3, sW2, sOUT, sDBG, sWS = 4, 6, 8, 12, 14, 16, 18, 20, 22
rWS, rWA, rX, rW2, rWO = 24, 28, 36, 40, 44
sWAVE, sI, sXG, sC, sTOK = 48, 50, 51, 78, 79
sFI = 80
sXo, sWo, sXL, sOne2, sCSB, sFC, sROT = 32, 33, 34, 35, 82, 83, 81
MF = "v_mfma_f32_16x16x32_bf16"
MF16 = "v_mfma_f32_16x16x16_bf16"
WSR = "s[%d:%d]" % (rWS, rWS + 3)
XR = "s[%d:%d]" % (rX, rX + 3)
ONE2 = 0x3f803f80

VERB = False
class Cfg:
    stamp = False
    clk = 0
    mapping = 0
    split = 12
    kseq = 4
    sset = 0
    swave = 0
    pf = 4
    rotc = 0
    vmrate = 85
    epirate = 4.5
    age = 16
    window = 60
    defer = 10
    chain = 1
    qord = 0
    slow = 1
    ipf = 0
    xsp = 12
    so = 1
    abar = (1, 6, 10)
    aboost = 0
    axb = 1
    cpf = 4
    afirst = 0
    af = 14
    ag = 8
    ap = 14
    da = 10
    ka = 4
    s1 = 3
    p1 = 13
    c1 = 17
    s3 = 0
    pc1 = 9
    kc1 = 5
    rsv = 30
    hgap = 0
    mid = 0
    pmid = 3
    fsat = 56
    early = 24
    findl = 5
    abl = 0
    tlb = 0
    ah = 5
    osplit = 1
    po = 5
    lean = 2
    boost = 3
    one = 0
    slp0 = 8
    slp1 = 2
    sum0 = 0
    hw = 1.0
    hrot = 2
    xlead = 2
    cs0 = 4
    cs1 = 4
    cs2 = 18
    cj1 = 8
    cj2 = 3
    pfw = 0
    pfa = 14
    pfs = 3
    init = 0
    cmode = 1
    cdel = 3
    sigd = 7
    gate1 = 35
    c00 = 16
    sig0 = 9
    p0 = 11
    k0 = 6
    gate2 = 68
    dbgwg = -1
    sbase = 0
    sstep = 2
    exs = 5
    edl = 56
    s4 = 6
    p4 = 8
    c4 = 9
    ofirst = 1
    relper = 4
    pfat = -2
CFG = Cfg()

def stamp(a, i, sset=0):
    if CFG.stamp and (sset == CFG.sset or i in (3, 15)):
        a("s_memtime s[100:101]" if CFG.clk else "s_memrealtime s[100:101]")
        a.lg0()
        a("s_mov_b32 s%d, s100" % (84 + i))
def stamp_out(a):
    if not CFG.stamp: return
    a("s_waitcnt vmcnt(0)")
    stamp(a, 15)
    l = a.newlabel("Lst")
    a("s_cmp_lg_u32 s%d, %d" % (sWAVE, CFG.swave))
    a("s_cbranch_scc1 %s" % l)
    a("s_lshl_b32 s3, s2, 6")
    a("s_add_u32 s3, s3, 0xF000000")
    a("v_mov_b32 v1, s3")
    a("s_mov_b64 exec, 1")
    for i in range(8):
        a("v_mov_b32 v2, s%d" % (84 + 2 * i))
        a("v_mov_b32 v3, s%d" % (85 + 2 * i))
        a("global_store_dwordx2 v1, v[2:3], s[%d:%d] offset:%d" % (sWS, sWS + 1, i * 8))
    if CFG.dbgwg >= 0:
        a("s_cmp_lg_u32 s2, %d" % CFG.dbgwg)
        a("s_cbranch_scc1 %s" % l)
        a("s_load_dwordx2 s[20:21], s[0:1], 64")
        a("s_waitcnt lgkmcnt(0)")
        a("v_mov_b32 v1, 0")
        for i in range(16):
            a("s_sub_u32 s3, s%d, s84" % (84 + i)) if i != 1 else a("s_mov_b32 s3, s85")
            a("v_mov_b32 v2, s3")
            a("global_store_dword v1, v2, s[20:21] offset:%d" % (4 * i))
    a.label(l)

vL, vX, vFS, vFP, vTK, vPL = 174, 175, 216, 217, 218, 219

NOPS = {"w": 2, "x": 8, "xr": 8, "csa": 2, "cs": 1, "h": 4, "w2": 2, "h2": 4, "part": 4, "ex": 8, "er": 8, "o": 12, "stf": 4}
CUR = [None]
def chk(a, tag, **over):
    k = tag if isinstance(tag, str) else tag[0]
    n = over.get(k, NOPS.get(k, 1))
    S_ = CUR[0]
    if a.cnt.get(tag, 0) < n and S_ is not None:
        if VERB: print("LATE", tag, a.cnt.get(tag, 0), file=sys.stderr)
        while a.cnt.get(tag, 0) < n:
            if k in ("x", "w", "w2", "h2"):
                assert not S_.inbar or S_.mem, ("needs space behind this barrier", tag)
                S_.refill()
                q = S_.mem
            elif k in ("h", "part"):
                S_.flush_epi(); continue
            else: q = S_.extra
            assert q, ("cannot produce", tag)
            q.pop(0)[1]()
    a.expect(tag, n)
def wvm(a, tags, **over):
    for t in tags: chk(a, t, **over)
    a.wait_vm(lambda t: t in tags)
def wlg(a, tags, **over):
    for t in tags: chk(a, t, **over)
    a.wait_lg(lambda t: t in tags)

def ityp(code):
    out = ""
    for l in code.split("\n"):
        op = l.strip().split(" ")[0]
        if not op: continue
        if op == "s_waitcnt": continue
        if op.startswith("s_"): out += "S"
        elif op.startswith(("v_exp", "v_rcp", "v_sqrt")): out += "T"
        elif op.startswith("v_"): out += "V"
        elif op.startswith("ds_read"): out += "D"
        elif op.startswith("ds_write"): out += "X"
        elif op.startswith("buffer_store_dwordx"): out += "O"
        else: out += "M"
    return out
def I(a, s, c=1):
    def fn(): a(s)
    fn.code = s
    return (ityp(s), fn)
def Q(a, code):
    out = []; ls = [l.strip() for l in code.split("\n") if l.strip()]
    i = 0
    while i < len(ls):
        grp = [ls[i]]
        if ls[i].startswith(("s_cmp", "s_bitcmp")):
            while i + 1 < len(ls) and ls[i + 1].startswith(("s_cmov", "s_cselect")):
                i += 1; grp.append(ls[i])
        out.append(I(a, "\n".join(grp), len(grp)))
        i += 1
    return out
def VM(a, fmt, tag=None, w=1.0):
    def fn(): a.vmem(fmt() if callable(fmt) else fmt, tag)
    fn.vm = w
    return (ityp(fmt), fn)
def run(fns):
    for c, fn in fns: fn()

def signal(a, soff_code, tag=None):
    return [I(a, soff_code),
            ("M", lambda: a.vmem("buffer_store_dword v%d, v%d, %s, s49 offen %s" % (vTK, vFS, WSR, SC), tag))]

LATER = []
NSLOW = []
def slow_path(a, body, name):
    ls, lb, lp = a.newlabel("Lslow"), a.newlabel("Lback"), a.newlabel("Lspin")
    a("s_cbranch_scc1 %s" % ls)
    a.label(lb)
    b = Asm()
    b.label(ls)
    b("s_mov_b32 s59, 40000")
    if CFG.stamp:
        NSLOW.append(name)
        b("s_or_b32 s85, s85, 0x%x" % (1 << (len(NSLOW) - 1)))
    b.label(lp)
    b("s_sleep %d" % CFG.slow)
    body(b)
    b("s_cbranch_scc0 %s" % lb)
    b("s_sub_u32 s59, s59, 1")
    b("s_cmp_lg_u32 s59, 0")
    b("s_cbranch_scc1 %s" % lp)
    b("s_branch %s" % lb)
    LATER.extend(b.lines)
def poll_issue(a, soff_code, tag, dst=None, off=None):
    return [I(a, soff_code),
            ("M", lambda: a.vmem("buffer_load_dword v%d, v%d, %s, s49 offen %s" % (dst or vPL, off or vFP, WSR, SC), tag))]
def poll_check(a, soff_code, tag, mask, dst=None, off=None):
    def f1():
        wvm(a, [tag])
        a("v_cmp_eq_u32 vcc, s%d, v%d" % (sTOK, dst or vPL))
    def f2():
        d = dst or vPL
        a("s_andn2_b32 s61, %s, vcc_lo" % mask)
        def body(b):
            b(soff_code)
            b("buffer_load_dword v%d, v%d, %s, s49 offen %s" % (d, off or vFP, WSR, SC))
            b("s_waitcnt vmcnt(0)")
            b("v_cmp_eq_u32 vcc, s%d, v%d" % (sTOK, d))
            b("s_andn2_b32 s61, %s, vcc_lo" % mask)
        slow_path(a, body, str(tag))
    return [("SV", f1), ("SS", f2)]
def poll_now(a, soff_code, mask):
    tag = ("poll", a.newlabel())
    run(poll_issue(a, soff_code, tag))
    run(poll_check(a, soff_code, tag, mask))

def stats_load(a):
    a("s_lshl_b32 s52, s2, 2")
    a("s_add_u32 s52, s52, s%d" % sWAVE)
    a("v_lshrrev_b32 v40, 5, v%d" % vL)
    a("v_lshl_add_u32 v40, s52, 1, v40")
    a("v_mul_u32_u24 v41, 1152, v40")
    a("v_and_b32 v42, 31, v%d" % vL)
    a("v_lshl_add_u32 v43, v42, 4, v41")
    a("v_cmp_gt_u32 vcc, 8, v42")
    a("v_mov_b32 v45, 0x%x" % OOB)
    a("v_lshlrev_b32 v40, 4, v40")
    a("v_cndmask_b32 v44, v45, v43, vcc")
    a("v_cmp_eq_u32 vcc, 0, v42")
def stats_issue(a):
    a.vmem("buffer_load_dwordx4 v[0:3], v43, %s, 0 offen" % XR, "ln")
    a.vmem("buffer_load_dwordx4 v[4:7], v43, %s, 0 offen offset:512" % XR, "ln")
    a.vmem("buffer_load_dwordx4 v[8:11], v44, %s, 0 offen offset:1024" % XR, "ln")
    a("v_cndmask_b32 v40, v45, v40, vcc")
def stats_compute(a):
    a("s_mov_b32 s49, 0x%x" % ONE2)
    a("s_waitcnt lgkmcnt(0)")
    a("s_add_u32 s%d, s%d, 1" % (sTOK, sTOK))
    a("v_mov_b32 v%d, s%d" % (vTK, sTOK))
    a("v_mov_b32 v17, s%d" % sTOK)
    a("v_mov_b32 v19, s%d" % sTOK)
    a.wait_vm(lambda t: t == "ln")
    for r in range(12):
        a("v_dot2_f32_bf16 v12, v%d, s49, %s" % (r, "0" if r == 0 else "v12"))
        a("v_dot2_f32_bf16 v13, v%d, v%d, %s" % (r, r, "0" if r == 0 else "v13"))
    a("s_mov_b32 s49, %d" % ST_OFF)
    a("s_nop 1")
    for ror in (1, 2, 4, 8):
        a("v_add_f32_dpp v12, v12, v12 row_ror:%d row_mask:0xf bank_mask:0xf" % ror)
        a("v_add_f32_dpp v13, v13, v13 row_ror:%d row_mask:0xf bank_mask:0xf" % ror)
        a("s_nop 0")
    a("v_mov_b32 v14, v12")
    a("v_mov_b32 v15, v13")
    a("s_nop 1")
    a("v_permlane16_swap_b32 v12, v14")
    a("v_permlane16_swap_b32 v13, v15")
    a("s_nop 0")
    a("v_add_f32 v12, v12, v14")
    a("v_add_f32 v13, v13, v15")
    a("v_mul_f32 v12, %s, v12" % f32(1.0 / 576))
    a("v_mul_f32 v13, %s, v13" % f32(1.0 / 576))
    a("v_fma_f32 v13, -v12, v12, v13")
    a("v_max_f32 v13, 0, v13")
    a("v_cvt_pk_bf16_f32 v13, v13, v13")
    a("v_cvt_pk_bf16_f32 v16, -v12, -v12")
    a("v_and_b32 v13, 0xffff0000, v13")
    a("v_add_f32 v13, %s, v13" % f32(1e-5))
    a("v_cvt_pk_bf16_f32 v13, v13, v13")
    a("v_and_b32 v13, 0xffff0000, v13")
    a("v_sqrt_f32 v13, v13")
    a("s_nop 0")
    a("v_cvt_pk_bf16_f32 v13, v13, v13")
    a("v_and_b32 v18, 0xffff0000, v13")
    a.vmem("buffer_store_dwordx4 v[16:19], v40, %s, s49 offen %s" % (WSR, SC), "st")

def lane_fields(a, vq, vrow, vc):
    a("v_lshrrev_b32 v%d, 4, v%d" % (vq, vL))
    a("v_bfe_u32 v%d, v%d, 2, 3" % (vrow, vL))
    a("v_and_b32 v%d, 3, v%d" % (vc, vL))

def dma_lane_off(a, vD, t0, t1, rowbytes, perm=False):
    return [I(a, "v_lshrrev_b32 v%d, 3, v%d" % (t0, vL)),
            I(a, "v_and_b32 v%d, 6, v%d" % (t1, t0)),
            I(a, "v_xor_b32 v%d, v%d, v%d" % (t1, t1, vL)),
            I(a, "v_and_b32 v%d, 7, v%d" % (t1, t1))] + \
           ([I(a, "v_and_b32 v%d, 4, v%d" % (vD, t0)), I(a, "v_add_u32 v%d, v%d, v%d" % (t0, t0, vD))] if perm else []) + [
            I(a, "v_mul_u32_u24 v%d, %d, v%d" % (t0, rowbytes, t0)),
            I(a, "v_lshl_add_u32 v%d, v%d, 4, v%d" % (vD, t1, t0))]

RA = 160
def tr_addrs(a, t0, t1, t2):
    lane_fields(a, t0, t1, t2)
    a("v_lshrrev_b32 v%d, 1, v%d" % (t0, t0))
    a("v_lshlrev_b32 v%d, 10, v%d" % (t0, t0))
    a("v_lshl_add_u32 v%d, v%d, 7, v%d" % (t0, t1, t0))
    a("v_lshl_add_u32 v%d, v%d, 3, v%d" % (t0, t2, t0))
    a("v_lshrrev_b32 v%d, 1, v%d" % (t1, t1))
    for u in range(4):
        a("v_xor_b32 v%d, %d, v%d" % (t2, u, t1))
        a("v_lshl_add_u32 v%d, v%d, 5, v%d" % (RA + u, t2, t0))
        a("v_add_u32 v%d, 0x10000, v%d" % (RA + 4 + u, RA + u))
        a("v_add_u32 v%d, 0x20000, v%d" % (RA + 8 + u, RA + u))

class XStage:
    def __init__(self, a, XO, XA, base, R, reg):
        self.a, self.XO, self.XA, self.base, self.R, self.reg = a, XO, XA, base, R, reg
    def setup_dma(self, t0, t1):
        a = self.a
        a("v_lshrrev_b32 v%d, 3, v%d" % (t0, vL))
        a("v_lshrrev_b32 v%d, 1, v%d" % (t1, t0))
        a("v_xor_b32 v%d, v%d, v%d" % (t1, t1, vL))
        a("v_and_b32 v%d, 7, v%d" % (t1, t1))
        a("s_lshl_b32 s52, s%d, 8" % sI)
        a("s_lshl_b32 s49, s%d, 6" % sWAVE)
        a("s_add_u32 s52, s52, s49")
        a("v_add_u32 v%d, s52, v%d" % (t0, t0))
        a("v_mul_u32_u24 v%d, 1152, v%d" % (t0, t0))
        a("v_lshl_add_u32 v%d, v%d, 4, v%d" % (self.XO, t1, t0))
        a("v_xor_b32 v%d, 64, v%d" % (self.XO + 1, self.XO))
        a("v_add_u32 v%d, %d, v%d" % (self.XO + 2, 2 * (8 * 1152 - 1024), self.XO))
        a("v_add_u32 v%d, %d, v%d" % (self.XO + 3, 3 * (8 * 1152 - 1024), self.XO + 1))
        a("v_add_u32 v%d, %d, v%d" % (self.XO + 1, 8 * 1152 - 1024, self.XO + 1))
        a("s_mul_i32 s%d, s%d, %d" % (sXL, sWAVE, self.R * 8192))
        a("s_add_u32 s%d, s%d, %d" % (sXL, sXL, self.base))
        a("s_lshl_b32 s%d, s%d, 7" % (sXo, sROT))
    def setup_read(self, t0, t1, t2):
        a = self.a
        a("v_and_b32 v%d, 15, v%d" % (t0, vL))
        a("v_lshrrev_b32 v%d, 1, v%d" % (t1, t0))
        a("v_lshrrev_b32 v%d, 4, v%d" % (t2, vL))
        a("v_xor_b32 v%d, v%d, v%d" % (t1, t1, t2))
        a("v_lshlrev_b32 v%d, 7, v%d" % (t0, t0))
        a("v_lshl_add_u32 v%d, v%d, 4, v%d" % (t0, t1, t0))
        a("v_add_u32 v%d, s%d, v%d" % (self.XA, sXL, t0))
        a("v_xor_b32 v%d, 64, v%d" % (self.XA + 1, self.XA))
    def dma(self, p):
        a = self.a
        fns = []
        if p >= self.R: fns.append(("S", lambda: wlg(a, [("xr", p - self.R)])))
        for hf in range(2):
            fns.append(I(a, "s_add_u32 m0, s%d, %d" % (sXL, (p % self.R) * 8192 + hf * 4096)))
            fns.append(I(a, "s_add_u32 s54, s%d, %d" % (sXo, hf * 32 * 1152)))
            for b in range(4):
                fns.append(VM(a, "buffer_load_dwordx4 v%d, %s, s54 offen offset:%d lds" % (self.XO + b, XR, b * 1024), ("x", p)))
        fns.append(I(a, "s_add_u32 s%d, s%d, 128\ns_cmp_ge_u32 s%d, 1152\ns_cmov_b32 s%d, 0" % (sXo, sXo, sXo, sXo), 3))
        return fns
    def job(self, p):
        return ("x", lambda: p < self.R or self.a.cnt.get(("xr", p - self.R), 0) == 8, lambda: self.dma(p))
    def reads(self, p):
        a = self.a
        fns = [("S", lambda: wvm(a, [("x", p)]))]
        for e in range(2):
            for tt in range(4):
                k, b = self.reg(2 * p + e, tt)
                fns.append(("D", lambda k=k, b=b, e=e, tt=tt: a.lds("ds_read_b128 %s, v%d offset:%d" % (R(k, b, 4), self.XA + e, (p % self.R) * 8192 + tt * 2048), ("xr", p))))
        return fns

class Stream:
    def __init__(self, a, kind, base):
        self.a, self.kind, self.base = a, kind, base
        self.slots = []; self.ring = []
        self.nring = 0
        self.pair = set()
        self.next_rd = 0
        self.epi = []; self.deadline = 0; self.epiP = None; self.hold = 0; self.edone = {}; self.short = False
        self.extra = []
        self.inbar = False
        CUR[0] = self
        self.vmacc = 1.0; self.vmrate = CFG.vmrate / 100.0
        self.jobs = []; self.mem = []
        self.pos = 0
    def refill(self):
        if self.mem: return
        blocked = set()
        for j, (cl, ready, make) in enumerate(self.jobs):
            if cl in blocked: continue
            if len(self.a.vm) <= 50 and ready():
                self.mem = make(); self.jobs.pop(j); return
            blocked.add(cl)
    def head(self, q):
        if q and "\n" in getattr(q[0][1], "code", "") and not getattr(q[0][1], "atom", False):
            parts = Q(self.a, q[0][1].code)
            for c, f in parts: f.atom = True
            q[0:1] = parts
        return q[0] if q else None
    def add(self, rd, mf, pair=False):
        if pair and CFG.chain: self.pair.add(len(self.slots))
        self.slots.append((rd, mf))
        self.ring.append(self.nring if rd else None)
        if rd: self.nring += 1
    def cur_ring(self, s):
        while s < len(self.slots) and self.ring[s] is None: s += 1
        return self.ring[s] if s < len(self.slots) else self.nring
    def read_limit(self, s):
        return self.cur_ring(s) + 4
    def pending_reads(self, lim):
        out = []
        while self.next_rd < len(self.slots):
            n = self.next_rd
            if self.ring[n] is None: self.next_rd += 1; continue
            if self.ring[n] > lim: break
            out += self.slots[n][0](self.kind, self.base + 4 * (self.ring[n] % 8), ("f", self.ring[n]))
            self.next_rd += 1
        return out
    def prime(self): run(self.pending_reads(self.cur_ring(self.pos) + 3))
    def set_epi(self, items, deadline, hold=0, ordered=True):
        assert not self.epi
        ops = []
        for n, it in enumerate(items):
            deps = set()
            if ordered:
                if n: deps.add(n - 1)
            else:
                rd, wr = set(it[2]), set(it[3])
                for m in range(n):
                    if (rd | wr) & set(items[m][3]) or wr & set(items[m][2]): deps.add(m)
            ops.append([it[0], it[1], deps, n])
        self.epi = ops; self.edone = {}; self.deadline = deadline; self.hold = self.pos + hold
    def epi_cost(self): return sum(2 if o[0] in "TMOX" and o[0] else len(o[0]) for o in self.epi)
    def epi_pick(self, fits, strict=True):
        if self.pos < self.hold or (strict and self.short): return None
        for o in self.epi[:CFG.window]:
            ok = True
            for d in o[2]:
                if d not in self.edone: ok = False; break
                t, at = self.edone[d]
                if (t == "T" or strict) and t in ("T", "V") and o[0] in ("T", "V") and self.a.n - at < 1: ok = False; break
            if ok and fits(o[0]): return o
        return None
    def epi_run(self, o):
        self.epi.remove(o); o[1](); self.edone[o[3]] = (o[0], self.a.n)
    def flush_epi(self):
        while self.epi:
            o = self.epi_pick(lambda t: True, False)
            if o is None: self.a("s_nop 0"); continue
            self.epi_run(o)
    def emit(self, pre=(), push=0):
        a = self.a
        s = self.pos
        rd, mf = self.slots[s]
        r = self.ring[s]
        if r is not None: a.wait_lg(lambda t: t == ("f", r) or (s in self.pair and t == ("f", r + 1)))
        frag = lambda q: R(self.kind, self.base + 4 * (q % 8), 4)
        mfmas = mf(frag(r) if r is not None else None)
        if s in self.pair:
            assert a.cnt.get(("f", r + 1), 0) == 2
            o = self.slots[s + 1][1](frag(r + 1)); mfmas = [mfmas[0], o[0], mfmas[1], o[1]]
        elif s - 1 in self.pair:
            o = self.slots[s - 1][1](frag(r - 1)); mfmas = [o[2], mfmas[2], o[3], mfmas[3]]
        n = len(mfmas)
        must = list(pre) + (self.pending_reads(self.read_limit(s)) if n == 4 else [])
        self.short = n < 4
        force = 0
        if self.epi and s >= self.hold and (n == 4 or self.deadline - s <= 1):
            left = max(self.deadline - s, 1)
            force = self.epi_cost() - int((left - 1) * CFG.epirate)
            if left * CFG.epirate < self.epi_cost(): force = math.ceil(self.epi_cost() / left)
        if n == 4: self.vmacc = min(self.vmacc + self.vmrate, 2.0)
        cost0 = self.epi_cost()
        for g, m in enumerate(mfmas):
            a(m)
            st = {"pos": 0, "vec": False, "bar": False}
            def place(t, commit=False):
                pos, vec, bar = st["pos"], st["vec"], st["bar"]
                for c in t:
                    if c == "B": pos += 2; bar = True
                    elif c == "S": pos += 1
                    elif c == "D":
                        if vec or bar: return False
                        pos = max(pos, 1) + 1; vec = True
                    elif c == "V": pos = max(pos, 1) + 1; vec = True
                    elif c == "T":
                        pos = max(pos, 1) + 2; vec = True
                    elif c == "M":
                        if pos: return False
                        pos = 3; vec = True
                    elif c == "O":
                        if pos: return False
                        pos = 2; vec = True
                    elif c == "X":
                        if vec or pos > 1: return False
                        pos = 3; vec = True
                if pos > 3: return False
                if commit: st["pos"], st["vec"], st["bar"] = pos, vec, bar
                return True
            def take(lst):
                t, f = lst.pop(0); place(t, True); f()
                if getattr(f, "vm", False): self.vmacc -= f.vm
            free_q = n == 4 and not any(t == "B" for t, f in must)
            nd = sum(1 for t, f in must if t == "D")
            want_d = nd > 0 and (nd >= n - g or g % 2 == 0 or nd > (n - g) // 2)
            def heads():
                out = []
                if not any(t == "B" for t, f in must):
                    self.refill()
                    for lst in (self.mem, self.extra):
                        h = self.head(lst)
                        if h is None: continue
                        if lst is self.mem and getattr(h[1], "vm", False) and self.vmacc < 1: continue
                        out.append(lst)
                return out
            def drop_free():
                ch = True
                while ch:
                    ch = False
                    for lst in heads():
                        if lst[0][0] == "": take(lst); ch = True
                    o = self.epi_pick(lambda t: t == "") if free_q or not must or must[0][0] != "B" else None
                    if o: self.epi_run(o); ch = True
            while must and must[0][0] == "B":
                self.inbar = True; take(must); self.inbar = False
            st["w"] = False
            if g == n - 1 and n == 4:
                nx = self.cur_ring(s + 1)
                if (("f", nx) in a.lg or (s + 1 in self.pair and ("f", nx + 1) in a.lg)) and a.cnt.get(("f", nx), 0) % 2 == 0:
                    two = a.cnt.get(("f", nx + 1), 0) == 2
                    a.wait_lg(lambda t: t == ("f", nx) or (two and t == ("f", nx + 1))); st["w"] = True
            drop_free()
            done_heavy = False
            if not want_d and not (must and must[0][0] == "V"):
                for lst in heads():
                    if lst[0][0] in ("M", "O", "X") and place(lst[0][0]): take(lst); done_heavy = True; break
                if not done_heavy:
                    o = self.epi_pick(lambda t: t in ("O", "M", "X") and place(t))
                    if o: place(o[0], True); self.epi_run(o); done_heavy = True
            if not done_heavy:
                if st["w"]: place("S", True)
                if st["pos"] == 0:
                    for lst in heads():
                        if lst[0][0] == "S" or (lst[0][0] in ("SS", "SV") and not want_d): take(lst); break
                    else:
                        o = self.epi_pick(lambda t: t == "S")
                        if o: place("S", True); self.epi_run(o)
                    drop_free()
                if must and must[0][0] == "D" and want_d and place("D"): take(must)
                elif not want_d:
                    for lst in heads():
                        if lst[0][0] == "D" and place("D"): take(lst); break
                    else:
                        o = self.epi_pick(lambda t: t == "D" and place(t))
                        if o: place("D", True); self.epi_run(o)
            while True:
                drop_free()
                if must and must[0][0] == "V" and place("V"): take(must); continue
                for lst in heads():
                    if lst[0][0] and set(lst[0][0]) <= set("SVT") and place(lst[0][0]): take(lst); break
                else:
                    o = self.epi_pick(lambda t: t == "T" and place(t)) or self.epi_pick(lambda t: t in ("V", "S") and place(t))
                    if o is None: break
                    place(o[0], True); self.epi_run(o)
            want = force * (g + 1) / n
            while self.epi and cost0 - self.epi_cost() < want:
                o = self.epi_pick(lambda t: t in ("V", "T", "S", "") or g == n - 1, False)
                if o is None: break
                self.epi_run(o)
            if g == n - 1:
                while must: must.pop(0)[1]()
                k = push
                while k > 0 and self.head(self.extra): self.extra.pop(0)[1](); k -= 1
        self.pos += 1

def tr_read(a, off_fn, u):
    def rd(kind, reg, tag):
        off = off_fn()
        return [("D", lambda h=h: a.lds("ds_read_b64_tr_b16 %s, v%d offset:%d" % (R(kind, reg + 2 * h, 2), RA + 4 * (off >> 16) + u, (off & 0xffff) + h * 2048), tag)) for h in range(2)]
    return rd

WF = 128
HRING = 10
GORDER = [2, 1, 0]
def acc2(c, tt):
    m = c >> 1
    if c & 1: return ("a", 160 + 16 * m + 4 * tt)
    return ("v", (16 * m if m < 4 else 224 + 16 * (m - 4)) + 4 * tt)
def hr(st, tt): return A(16 * (st % HRING) + 4 * tt, 4)
sPX = 56
vEW, vER, vXP, vOU = 195, 196, 192, 193
sLS = 74
TS = [4, 5, 6, 10, 11, 20]
HB = {0: 12, 1: 13, 2: 62}
WB = {0: 14, 1: 15, 2: 3}
def rot_bases(a, other):
    if CFG.hrot == 2:
        a("s_add_u32 s61, s68, s%d" % other)
        a("s_mul_i32 s60, s61, 43")
        a("s_lshr_b32 s60, s60, 7")
        a("s_mul_i32 s60, s60, 3")
        a("s_sub_u32 s61, s61, s60")
    else: a("s_mov_b32 s61, s68")
    for k in range(3):
        if CFG.hrot:
            a("s_add_u32 s52, s61, %d" % k)
            a("s_cmp_ge_u32 s52, 3")
            a("s_cselect_b32 s60, 3, 0")
            a("s_sub_u32 s52, s52, s60")
        else: a("s_mov_b32 s52, %d" % k)
        a("s_mul_i32 s60, s52, %d" % (192 * 1152))
        a("s_add_u32 s%d, s63, s60" % WB[k])
        a("s_mul_i32 s60, s52, %d" % (6 * KSTRIDE))
        a("s_add_u32 s%d, s62, s60" % HB[k])

class P2:
    def __init__(self, a, steps, VO, VS, VX, atype):
        self.a = a; self.steps = steps; self.VO = VO; self.VS = VS; self.VX = VX; self.atype = atype
        self.loc = {}
        self.free = []
        self.visible = set()
        self.cur = 0
        NS, K = len(steps), (CFG.ka if atype else CFG.kseq)
        D = CFG.da if atype else CFG.defer
        def block(s0, s1, cs):
            out = []
            for st in range(s0, s1, 2): out += [(k, c) for c in cs for k in range(st, min(st + 2, s1))]
            return out
        self.order = block(0, NS - D, range(12)) + block(NS - D, NS - K, range(4 if atype else 2, 12))
        self.seq0 = len(self.order)
        self.groups = []
        for keep, n in [((8, 10), K), ((4, 6), K)] + ([((0, 2), D)] if atype else [((2,), K), ((0,), D)]):
            self.order += block(NS - n, NS, [c + 1 for c in keep])
            e1 = len(self.order)
            self.order += block(NS - n, NS, keep)
            self.groups.append((keep, e1, len(self.order)))
        self.units = []
        for st, c in self.order:
            if (st, c >> 2) not in self.units: self.units.append((st, c >> 2))
    def setup_s(self):
        a = self.a
        srd(a, rW2, sW2, 4608 * 1152)
        srd(a, rWO, sWO, 576 * 1152)
        a("s_lshl_b32 s66, s%d, 11" % sWAVE)
    def setup_vo(self, t0, t1, half_code, sTile=sI):
        a = self.a
        return dma_lane_off(a, self.VO, t0, t1, 1152) + Q(a, """s_mul_i32 s52, s68, 384
            s_and_b32 s60, s{W}, 1
            s_mul_i32 s60, s60, {R16}
            s_add_u32 s52, s52, s60
            v_add_u32 v{VO}, s52, v{VO}
            v_add_u32 v{VO1}, {D}, v{VO}
            {HALF}
            s_lshl1_add_u32 s52, s{I}, s52
            s_mul_i32 s9, s52, 3
            s_add_u32 s9, s9, s68
            s_lshl_b32 s9, s9, 7
            s_add_u32 s9, s9, {FP}
            s_and_b32 s60, s{W}, 1
            s_lshl1_add_u32 s52, s52, s60
            s_lshl_b32 s52, s52, 12
            v_lshl_add_u32 v{VX}, v{L}, 4, s52""".format(W=sWAVE, R16=16 * 1152, VO=self.VO, VO1=self.VO + 1, D=8 * 1152 - 1024, HALF=half_code, FP=FL(FP), I=sTile, VX=self.VX, L=vL))
    def setup_special(self, t0, t1, t3):
        a = self.a
        for k in range(2):
            a("s_and_b32 s49, s%d, 1" % sWAVE)
            a("s_lshl_b32 s49, s49, 4")
            a("v_lshrrev_b32 v%d, 3, v%d" % (t0, vL))
            a("v_add3_u32 v%d, s49, v%d, %d" % (t0, t0, 8 * k))
            a("v_lshrrev_b32 v%d, 4, v%d" % (t1, t0))
            a("v_mul_u32_u24 v%d, 72, v%d" % (t1, t1))
            a("v_bfe_u32 v%d, v%d, 2, 2" % (t3, t0))
            a("v_lshl_add_u32 v%d, v%d, 4, v%d" % (t1, t3, t1))
            a("v_lshrrev_b32 v%d, 1, v%d" % (t3, t3))
            a("v_lshl_add_u32 v%d, v%d, 2, v%d" % (t1, t3, t1))
            a("v_and_b32 v%d, 3, v%d" % (t3, t0))
            a("v_add3_u32 v%d, v%d, v%d, 16" % (t1, t1, t3))
            a("v_sub_u32 v%d, v%d, v%d" % (t1, t1, t0))
            a("v_mul_u32_u24 v%d, 1152, v%d" % (t1, t1))
            a("v_add_u32 v%d, v%d, v%d" % (self.VS + k, self.VO + k, t1))
    def h_issue(self, st):
        a = self.a
        pl, row, kind = self.steps[st]
        fns = [I(a, "s_add_u32 s54, s%d, %d" % (HB[kind] if kind in HB else (7 if kind == "woa" else 64), pl * KSTRIDE))]
        for tt in range(4):
            fns.append(VM(a, "buffer_load_dwordx4 %s, v%d, %s, s54 offen offset:%d %s" % (hr(st, tt), self.VX, WSR, tt * 1024, SC), ("h2", st), CFG.hw))
        return fns
    def dma_issue(self, st, ln):
        a = self.a
        pl, row, kind = self.steps[st]
        r = rW2 if kind in HB else rWO
        vo = self.VS if kind == "wos" else self.VO
        sl = self.free.pop(0)
        self.loc[(st, ln)] = sl
        return [I(a, "s_add_u32 m0, s66, %d" % (sl * 8192)),
                I(a, "s_add_u32 s55, s%d, %d" % (WB[kind] if kind in WB else 65, row * 1152 + ([2, 0, 1][ln] if self.atype else ln) * 128))] + \
               ([I(a, "%s s55, s55, s%d" % (["s_add_u32", "s_sub_u32"][ln], sLS))] if ln < 2 and not self.atype else []) + [
                VM(a, "buffer_load_dwordx4 v%d, s[%d:%d], s55 offen lds" % (vo, r, r + 3), ("w2", st, ln)),
                VM(a, "buffer_load_dwordx4 v%d, s[%d:%d], s55 offen offset:1024 lds" % (vo + 1, r, r + 3), ("w2", st, ln))]
    def jobs(self, first, w_ok, h_ok):
        out = []; hs = set(range(first))
        for st, ln in self.units:
            if st not in hs:
                hs.add(st)
                def mk(st=st):
                    self.hpos = CUR[0].pos
                    return self.h_issue(st)
                out.append(("h2", lambda st=st: st - HRING < self.cur and h_ok(st) and CUR[0].pos >= self.hpos + CFG.hgap, mk))
            if (st, ln) in self.loc: continue
            out.append(("w2", lambda st=st: len(self.free) > self.reserve and w_ok(st), lambda st=st, ln=ln: self.dma_issue(st, ln)))
        return out
    reserve = 0
    hpos = -100
    def add_slots(self, S_):
        a = self.a
        self.s0 = len(S_.slots)
        fixed = set()
        self.first = set()
        n_ = 0
        while n_ + 1 < len(self.order):
            if self.order[n_ + 1] == (self.order[n_][0] + 1, self.order[n_][1]): self.first.add(n_); n_ += 2
            else: n_ += 1
        for n_, (st, c) in enumerate(self.order):
            def rd(kind, reg, tag, st=st, c=c):
                assert (st, c >> 2) in self.visible, (st, c)
                off = self.loc[(st, c >> 2)] * 8192
                ra = RA + 4 * (off >> 16) + (c & 3)
                out = []
                if ra not in fixed:
                    fixed.add(ra); out.append(I(a, "v_xor_b32 v%d, s%d, v%d" % (ra, sPX, ra)))
                return out + tr_read(a, lambda: off, c & 3)(kind, reg, tag)
            def mf(w, st=st, c=c):
                return ["%s %s, %s, %s, %s" % (MF, R(*acc2(c, tt), 4), w, hr(st, tt), "0" if st == 0 else R(*acc2(c, tt), 4)) for tt in range(4)]
            S_.add(rd, mf, n_ in self.first)
    def exchange(self, g, tmp):
        a = self.a
        keep = self.groups[g][0]
        send = []; recv = []; fin = []
        def adj(q, reg, cur, want):
            if cur[0] != want: q.append(I(a, "v_add_u32 v%d, 0x%x, v%d" % (reg, (want - cur[0]) & 0xffffffff, reg))); cur[0] = want
        for k, (c, tt) in enumerate([(c, tt) for c in keep for tt in range(4)]):
            off = self.scratch[k >> 1] * 8192 + (k & 1) * 4096
            adj(send, vEW, self.ew, off & ~0xffff)
            send.append(("X", lambda c=c, tt=tt, off=off: a.lds("ds_write_b128 v%d, %s offset:%d" % (vEW, R(*acc2(c + 1, tt), 4), off & 0xffff), ("ex", g))))
            adj(recv, vER, self.er, off & ~0xffff)
            recv.append(("D", lambda k=k, off=off: a.lds("ds_read_b128 %s, v%d offset:%d" % (V(tmp + 4 * k, 4), vER, off & 0xffff), ("er", g))))
        for n, c in enumerate(keep):
            for tp in range(2):
                r0 = acc2(c, 2 * tp)[1]; t = tmp + 16 * n + 8 * tp
                for i in range(8): fin.append(I(a, "v_add_f32 v%d, v%d, v%d" % (r0 + i, r0 + i, t + i)) + ([r0 + i, t + i], [r0 + i]))
                for i in range(4): fin.append(I(a, "v_cvt_pk_bf16_f32 v%d, v%d, v%d" % (r0 + i, r0 + 2 * i, r0 + 2 * i + 1)) + ([r0 + 2 * i, r0 + 2 * i + 1], [r0 + i]))
                fin.append(VM(a, "buffer_store_dwordx4 %s, v%d, %s, s%d offen offset:%d %s" % (V(r0, 4), vXP, WSR, TS[c >> 1], tp * 1024, SC), ("part", g)) + ([r0, r0 + 1, r0 + 2, r0 + 3], []))
        return send, recv, fin
    def fin_setup(self):
        a = self.a
        code = """s_mul_i32 s75, s67, 36
            s_mul_i32 s52, s68, 12
            s_lshr_b32 s60, s{W}, 1
            s_add_u32 s52, s52, s60
            s_add_u32 s75, s75, s52
            s_lshl_b32 s75, s75, 16
            s_add_u32 s75, s75, {PART}
            """.format(W=sWAVE, PART=PART_OFF)
        if self.atype:
            for m in range(6): code += "s_add_u32 s%d, s75, %d\n" % (TS[m], ([2, 0, 1][m >> 1] * 4 + 2 * (m & 1)) * 65536)
        else:
            code += "s_lshl_b32 s60, s%d, 11\ns_and_b32 s61, s67, 1\ns_lshl_b32 s61, s61, 17\n" % sLS
            for m in range(6):
                code += "s_add_u32 s%d, s75, %d\n" % (TS[m], ((m >> 1) * 4 + 2 * (m & 1)) * 65536)
                if m >> 1 < 2: code += "%s s%d, s%d, s60\n" % (["s_add_u32", "s_sub_u32"][m >> 1], TS[m], TS[m])
                code += "%s s%d, s%d, s61\n" % (["s_add_u32", "s_sub_u32"][m & 1], TS[m], TS[m])
        code += """s_mul_i32 s60, s67, {PSL}
            s_sub_u32 s73, s{T0}, s60
            s_sub_u32 s75, s73, {PART}
            s_lshr_b32 s75, s75, 11
            v_lshlrev_b32 v194, 4, v{L}
            v_sub_u32 v{XP}, v{VX}, v194
            v_lshrrev_b32 v{OU}, 6, v{XP}
            v_lshrrev_b32 v{XP}, 1, v{XP}
            v_add_u32 v{XP}, v{XP}, v194
            s_lshl_b32 s52, s{W}, 10
            v_add_u32 v{EW}, s52, v194
            v_xor_b32 v{ER}, 0x800, v{EW}
            v_and_b32 v194, 15, v{L}
            v_add_u32 v{OU}, v{OU}, v194
            v_mul_u32_u24 v{OU}, 1152, v{OU}
            v_lshrrev_b32 v194, 4, v{L}
            v_lshl_add_u32 v{OU}, v194, 3, v{OU}
            s_mov_b32 s76, 0x3f80
            s_mov_b32 s77, 0x3f800000""".format(PSL=PSL, T0=TS[0], PART=PART_OFF, L=vL, XP=vXP, VX=self.VX, OU=vOU, W=sWAVE, EW=vEW, ER=vER)
        b_ = Asm(); srd(b_, rWA, sOUT, 2048 * 1152)
        q = Q(a, code + "\n" + "\n".join(b_.lines))
        self.xl = []
        for tt in range(4):
            self.xl.append([I(a, "s_add_u32 s52, s75, %d" % (tt * 16 * 1152))] +
                           [VM(a, "buffer_load_dwordx2 %s, v%d, %s, s52 offen offset:%d" % (V(XB + 8 * n + 2 * tt, 2), vOU, XR, 64 * n), "x3") for n in range(len(self.groups[-1][0]))])
        return q
    def main(self, S_, hooks, dead0):
        a = self.a
        NG = len(self.groups)
        seen = set()
        self.ew = [0]; self.er = [0]
        def psig(k): return signal(a, "s_lshl2_add_u32 s49, s67, s9\ns_add_u32 s49, s49, %d" % (32 * k))
        N = len(self.order)
        nst = {}
        for st, c in self.order[:self.seq0]: nst[st] = nst.get(st, 0) + 1
        bars = {}; e = 0
        for st in sorted(nst):
            e += nst[st]; bars[e - 5] = st
        bars[self.seq0 + 2] = None
        if self.atype:
            for x in range(self.groups[1][2], self.groups[2][1], 8): bars[x] = None
        ev = {}
        tmp = [64, 96, 64, 80]
        t = 0
        for g, (keep, e1, e2) in enumerate(self.groups):
            n = len(keep)
            s_send = max(e1 + 2, t)
            s_bar = s_send + (CFG.exs if n == 2 else (CFG.exs + 1) // 2)
            s_fin = max(e2 + 2, s_bar + 2 * n + 1)
            ev.setdefault(s_send, []).append(("send", g)); ev.setdefault(s_bar, []).append(("recv", g)); ev.setdefault(s_fin, []).append(("fin", g))
            bars[s_send] = None; bars[s_bar] = None
            t = s_bar + 2 * n + 1
        assert max(s for s in ev if ("fin", NG - 1) not in ev[s]) < N, (ev, N)
        s_early = N - CFG.early
        if not self.atype: bars[s_early] = None
        s_mid = N - CFG.mid if CFG.mid and not self.atype else -1
        if s_mid > 0: bars[s_mid] = None
        keep = self.groups[-1][0]
        def pb(r, n):
            k = r * len(keep) + n
            return 96 + 8 * k if k < 4 else 32 + 8 * (k - 4)
        s_af = N - CFG.af if CFG.af and self.atype else -1
        if s_af > 0: bars[s_af] = None
        def ploads(r):
            q = []
            if self.atype: q.append(I(a, "s_add_u32 s58, s73, %d" % (r * PSL)))
            elif r == 0: q.append(I(a, "s_add_u32 s58, s73, %d" % (4 * PSL)))
            else: q += Q(a, "s_xor_b32 s52, s67, %d\ns_mul_i32 s52, s52, %d\ns_add_u32 s58, s73, s52" % (4 - r, PSL))
            for n in range(len(keep)):
                if n: q.append(I(a, "s_add_u32 s58, s58, %d" % (2 * 65536)))
                for tp in range(2):
                    q.append(VM(a, "buffer_load_dwordx4 %s, v%d, %s, s58 offen offset:%d %s" % (V(pb(r, n) + 4 * tp, 4), vXP, WSR, tp * 1024, SC), ("p", r)))
            return q
        last = {}
        for s, (st, c) in enumerate(self.order): last[(st, c >> 2)] = s + 1
        freed = set()
        ex = {}
        cnt = lambda g: dict(ex=4 * len(self.groups[g][0]), er=4 * len(self.groups[g][0]), part=2 * len(self.groups[g][0]))
        first_bar = min(bars)
        for s, (st, c) in enumerate(self.order):
            if st not in seen:
                seen.add(st)
                self.cur = st
                if VERB: a.cm("HS p2 step %d" % st)
                if st < 22: stamp(a, 4 + st // 2, 3)
                wvm(a, [("h2", st)])
                if s in self.first: seen.add(st + 1); wvm(a, [("h2", st + 1)])
                if st in (0, 8): stamp(a, 10 + st // 8)
            pre = []
            r = s - self.seq0
            if VERB and r > 0 and r % 10 == 0: a.cm("HS p2 tail %d" % r)
            if r >= 0 and r % 8 == 0 and r < 64: stamp(a, 4 + r // 8, 4)
            if r == -CFG.rsv: self.reserve = 4
            evs = ev.get(s, [])
            if s in bars:
                nxt = min([b for b in bars if b > s] + [N])
                lim = S_.read_limit(self.s0 + nxt - 1) - S_.ring[self.s0]
                need = []
                for st2, c2 in self.order[:lim + 1]:
                    u = (st2, c2 >> 2)
                    if u not in self.visible and u not in need: need.append(u)
                hk = hooks.get(bars[s], {})
                tags = [("w2",) + u for u in need] + hk.get("bar", [])
                lg = []; ptags = []
                aft = list(hk.get("after", []))
                dead = [u for u in last if last[u] < s and u not in freed]
                newfree = [self.loc[u] for u in dead] + (dead0 if s == first_bar else [])
                for kind, g in evs:
                    if kind == "send" and g > 0: lg.append(("er", g - 1))
                    if kind == "recv": lg.append(("ex", g)); aft += ex[g][1]
                if s == s_early and not self.atype:
                    ptags.append(("part", 0)); aft += psig(0)
                if s == s_af:
                    ptags.append(("part", 1))
                    aft += psig(1)
                if s == s_mid:
                    ptags.append(("part", 1)); aft += psig(2)
                if tags or lg or ptags or aft or (newfree and S_.jobs):
                    def bar(tags=tags, lg=lg, ptags=ptags):
                        for t_ in lg: wlg(a, [t_], **cnt(t_[1]))
                        for t_ in ptags: wvm(a, [t_], **cnt(t_[1]))
                        wvm(a, tags)
                        a("s_barrier")
                    pre.append(("B", bar))
                    self.visible.update(need); freed.update(dead); self.free += newfree
                    S_.extra += aft
            for kind, g in evs:
                if kind == "send":
                    if g == 0:
                        self.scratch = sorted(self.free[:4]); self.free = self.free[4:]; self.reserve = 0
                        assert len(self.scratch) == 4
                    ex[g] = self.exchange(g, tmp[g])
                    S_.extra += ex[g][0]
                if kind == "recv" and g >= 2: chk(a, ("part", 0), **cnt(0))
                if kind == "fin":
                    wlg(a, [("er", g)], **cnt(g))
                    S_.flush_epi()
                    S_.set_epi(ex[g][2], S_.pos + CFG.findl * len(self.groups[g][0]), 0, False)
            if r == -CFG.fsat: S_.extra += self.fin_setup()
            if r > -CFG.fsat and (r + CFG.fsat) % CFG.xsp == 0 and self.xl: S_.extra += self.xl.pop(0)
            if s_af > 0 and s == N - CFG.ag - CFG.ap: S_.extra += poll_issue(a, "s_mov_b32 s49, s9", "pla")
            if s_af > 0 and s == N - CFG.ag:
                S_.extra += poll_check(a, "s_mov_b32 s49, s9", "pla", "0xf") + ploads(0) + ploads(1) + ploads(2) + ploads(3)
            if s_mid > 0 and s == N - CFG.pmid:
                S_.extra += Q(a, "s_and_b32 s8, s67, 2\ns_lshr_b32 s8, 0xc0000, s8\ns_or_b32 s8, s8, 0x1000") + poll_issue(a, "s_mov_b32 s49, s9", "plm")
            S_.emit(pre)
        assert not S_.jobs and not S_.mem
        run(S_.extra); S_.extra = []
        S_.flush_epi()
        if VERB: a.cm("END")
        stamp(a, 12); stamp(a, 12, 4)
        CUR[0] = None
        if s_af < 0:
            wvm(a, [("part", NG - 2)], **cnt(NG - 2))
            a("s_barrier")
            run(psig(1))
        stamp(a, 13)
        done = [0, 1, 2, 3] if s_af > 0 else []
        if s_mid > 0:
            run(poll_check(a, "s_mov_b32 s49, s9", "plm", "s8"))
            done = [0, 1, 2]
            for r in done: run(ploads(r))
        vmkeep = [t_ for t_ in a.vm if t_ is not None and t_[0] == "p"]
        lw = a.newlabel("Lfw")
        if s_af < 0:
            a("s_cmp_lg_u32 s%d, 3" % sWAVE)
            a("s_cbranch_scc1 %s" % lw)
        if s_af > 0: a("s_nop 7")
        elif self.atype: spin(a, "s_mov_b32 s49, s9", "0xf", CFG.slp0)
        else:
            if s_mid > 0:
                a("s_xor_b32 s52, s67, 1")
                a("s_lshl_b32 s52, 0x100, s52")
            else:
                a("s_lshl_b32 s52, 0x100, s67")
                a("s_andn2_b32 s52, 0x1f00, s52")
            spin(a, "s_mov_b32 s49, s9", "s52", CFG.slp1)
            a("s_cmp_lg_u32 s2, 64")
            a("s_cbranch_scc1 %s" % lw)
            a("s_mov_b32 s49, 0x%x" % FL(0))
            a("buffer_store_dword v%d, v%d, %s, s49 offen" % (vTK, vFS, WSR))
        a.label(lw)
        if s_af < 0: a("s_barrier")
        stamp(a, 14)
        assert "x3" not in a.vm
        if s_af < 0: a.vm = vmkeep
        for r in range(4):
            if r not in done: run(ploads(r))
        wlg(a, [("er", NG - 1)], **cnt(NG - 1))
        for n, c in enumerate(keep):
            r0 = acc2(c, 0)[1]
            for i in range(0, 16, 2): a("v_pk_add_f32 %s, %s, %s" % (V(r0 + i, 2), V(r0 + i, 2), V(tmp[NG - 1] + 16 * n + i, 2)))
            for i in range(8):
                a("v_dot2_f32_bf16 v%d, v%d, s76, v%d" % (r0 + 2 * i, XB + 8 * n + i, r0 + 2 * i))
                a("v_dot2_f32_bf16 v%d, v%d, s77, v%d" % (r0 + 2 * i + 1, XB + 8 * n + i, r0 + 2 * i + 1))
        for r in range(4):
            a.wait_vm(lambda t_: t_ == ("p", r))
            for n, c in enumerate(keep):
                r0 = acc2(c, 0)[1]
                for i in range(8):
                    p = pb(r, n) + i
                    a("v_dot2_f32_bf16 v%d, v%d, s76, v%d" % (r0 + 2 * i, p, r0 + 2 * i))
                    a("v_dot2_f32_bf16 v%d, v%d, s77, v%d" % (r0 + 2 * i + 1, p, r0 + 2 * i + 1))
        a("s_nop 2")
        for n, c in enumerate(keep):
            r0 = acc2(c, 0)[1]
            for i in range(8): a("v_cvt_pk_bf16_f32 v%d, v%d, v%d" % (r0 + i, r0 + 2 * i, r0 + 2 * i + 1))
            for tt in range(4):
                a("s_add_u32 s52, s75, %d" % (tt * 16 * 1152))
                a("buffer_store_dwordx2 %s, v%d, s[%d:%d], s52 offen offset:%d" % (V(r0 + 2 * tt, 2), vOU, rWA, rWA + 3, 64 * n))

XB = 176

def hilo(a, v, t0, t1):
    return [I(a, "v_cvt_pk_bf16_f32 v%d, v%d, v%d" % (t0, v, v)),
            I(a, "v_and_b32 v%d, 0xffff0000, v%d" % (t0, t0)),
            I(a, "v_sub_f32 v%d, v%d, v%d" % (t1, v, t0)),
            I(a, "v_cvt_pk_bf16_f32 v%d, v%d, v%d" % (v, t0, t1))]

def stats_fetch(a, kind, base, vaddr):
    fns = [I(a, "s_mov_b32 s49, %d" % ST_OFF)]
    for tt in range(4):
        fns.append(("M", lambda tt=tt: a.vmem("buffer_load_dwordx4 %s, v%d, %s, s49 offen offset:%d %s" % (R(kind, base + 4 * tt, 4), vaddr, WSR, 256 * tt, SC), "stf")))
    return fns
def stats_check(a, kind, base, vaddr, t0):
    code = []
    for n, r in enumerate([base + 4 * tt + k for tt in range(4) for k in (1, 3)]):
        if kind == "a":
            code.append("v_accvgpr_read_b32 v%d, a%d" % (t0, r)); r = t0
        if n == 0: code.append("v_cmp_eq_u32 s[60:61], s%d, v%d" % (sTOK, r))
        else: code += ["v_cmp_eq_u32 vcc, s%d, v%d" % (sTOK, r), "s_and_b64 s[60:61], s[60:61], vcc"]
    def last():
        a("s_cmp_lg_u64 s[60:61], -1")
        def body(b):
            b("s_mov_b32 s49, %d" % ST_OFF)
            for tt in range(4):
                b("buffer_load_dwordx4 %s, v%d, %s, s49 offen offset:%d %s" % (R(kind, base + 4 * tt, 4), vaddr, WSR, 256 * tt, SC))
            b("s_waitcnt vmcnt(0)")
            b("\n".join(code))
            b("s_cmp_lg_u64 s[60:61], -1")
        slow_path(a, body, "stats")
    return [("S", lambda: wvm(a, ["stf"]))] + [I(a, c) for c in code] + [("SS", last)]
def stats_addr(a, dst):
    return [I(a, "v_and_b32 v%d, 15, v%d" % (dst, vL)),
            I(a, "s_lshl_b32 s52, s%d, 12\ns_lshl_b32 s60, s%d, 10\ns_add_u32 s52, s52, s60\nv_lshl_add_u32 v%d, v%d, 4, s52" % (sI, sWAVE, dst, dst), 4)]

def path_mlp(a):
    vD, TMP, HS, ONES, CSA, ST = 172, 176, 184, 188, 192, 200
    vCSR, vCSW, vCSL, vP2 = 220, 221, 222, 223
    def xreg(kk, tt):
        i = kk * 4 + tt
        return ("a", 4 * i) if i < 64 else ("v", 224 + 4 * (i - 64))
    def xr(kk, tt): return R(*xreg(kk, tt), 4)
    def acc(P, ti, tt): return 64 * P + 16 * ti + 4 * tt
    t0, t1, t2, t3 = 64, 65, 66, 67
    XS = XStage(a, TMP, TMP + 4, 8 * 8192, 3, xreg)
    WLIM = 576 * 9216
    loc = {}
    WT = [sWo, 4, 5, 6, 7, 10, 11, 20, 21]
    issued_at = {}; now = [0]
    free = list(range(8))
    def dma_issue(L, kk):
        sl = free.pop(0); loc[(L, kk)] = sl
        fns = [I(a, "s_add_u32 m0, s53, %d" % (sl * 8192)),
               I(a, "s_add_u32 s55, s%d, %d" % (WT[kk >> 1], (kk & 1) * 32 * 9216 + L * 128)),
               VM(a, "buffer_load_dwordx4 v%d, s[%d:%d], s55 offen lds" % (vD, rWA, rWA + 3), ("w", L, kk)),
               VM(a, "buffer_load_dwordx4 v%d, s[%d:%d], s55 offen offset:1024 lds" % (vD + 1, rWA, rWA + 3), ("w", L, kk))]
        if kk & 1 and L == 0 and kk < 17:
            o, n_ = WT[kk >> 1], WT[(kk >> 1) + 1]
            fns.append(I(a, "s_add_u32 s%d, s%d, %d\ns_cmp_ge_u32 s%d, %d\ns_cmov_b32 s%d, 0" % (n_, o, 64 * 9216, n_, WLIM, n_), 3))
        issued_at[(L, kk)] = now[0]
        return fns
    def c_issue(L, k):
        key = (10 + L, k)
        sl = free.pop(0); loc[key] = sl
        issued_at[key] = now[0]
        ld = lambda v, o: VM(a, "buffer_load_dwordx4 v%d, s[%d:%d], s55 offen%s lds" % (v, rWA, rWA + 3, o), ("w",) + key)
        if k < 2:
            return [I(a, "s_add_u32 m0, s53, %d" % (sl * 8192)), I(a, "s_add_u32 s55, s%d, %d" % (sWo, k * 32 * 9216 + L * 128)), ld(vD, ""), ld(vD + 1, " offset:1024")]
        return [I(a, "s_add_u32 m0, s53, %d" % (sl * 8192)), I(a, "s_lshr_b32 s55, s%d, 2" % sWo), I(a, "s_add_u32 s55, s55, %d" % (512 * 9216 + 128)), ld(vD, ""),
                I(a, "s_sub_u32 s55, s55, %d" % (16 * 9216 - 128)), ld(vD + 1, " offset:1024")]
    assert CFG.rotc == 0
    XS.setup_dma(t0, t1)
    run(XS.dma(0))
    a("s_cmp_ge_u32 s%d, 2" % sWAVE)
    a("s_cselect_b32 s%d, s%d, s%d" % (rWA, sW3, sW1))
    a("s_cselect_b32 s%d, s%d, s%d" % (rWA + 1, sW3 + 1, sW1 + 1))
    a("s_and_b32 s%d, s%d, 0xffff" % (rWA + 1, rWA + 1))
    a("s_mov_b32 s%d, %d" % (rWA + 2, WLIM))
    a("s_mov_b32 s%d, 0x20000" % (rWA + 3))
    a("s_mul_i32 s70, s%d, 3" % sXG)
    a("s_add_u32 s70, s70, s%d" % sC)
    run(dma_lane_off(a, vD, t0, t1, 9216, True))
    a("s_mul_i32 s52, s70, 384")
    a("s_and_b32 s49, s%d, 1" % sWAVE)
    a("s_mul_i32 s49, s49, %d" % (4 * 9216))
    a("s_add_u32 s52, s52, s49")
    a("v_add_u32 v%d, s52, v%d" % (vD, vD))
    a("v_add_u32 v%d, %d, v%d" % (vD + 1, 16 * 9216 - 1024, vD))
    a("s_lshl_b32 s53, s%d, 11" % sWAVE)
    a("s_mul_i32 s%d, s%d, %d" % (sWo, sROT, 64 * 9216))
    for kk in range(2 if CFG.lean else 4): run(dma_issue(0, kk))
    code_prefetch(a)
    if not CFG.lean: run(XS.dma(1))
    if CFG.init >= 1: run(c_issue(1, 0) + c_issue(1, 1) + c_issue(0, 2))
    if CFG.init >= 2: run(XS.dma(2))
    stamp(a, 4, 1)
    st_ = [(r, 32 * r, k) for r in range(1, 6) for k in range(3)]; so_ = [(0, 0, "wo"), (1, 36, "wo")][:2 - CFG.osplit]
    p2 = P2(a, st_[:12] + so_ + st_[12:] if CFG.ofirst else st_ + so_, vD, None, vCSR, False)
    XS.setup_read(t0, t1, t2)
    tr_addrs(a, t0, t1, t2)
    a("v_xor_b32 v%d, s%d, v%d" % (t2, sWAVE, t1))
    a("v_lshl_add_u32 v%d, v%d, 5, v%d" % (vCSR, t2, t0))
    a("s_mov_b32 s68, s%d" % sC)
    p2.setup_s()
    a("s_lshr_b32 s60, s%d, 1" % sWAVE)
    a("s_lshr_b32 s67, s%d, 1" % sXG)
    a("s_mul_i32 s%d, s60, 4128" % sPX)
    a("s_and_b32 s52, s67, 1")
    a("s_lshl_b32 s52, s52, 6")
    a("s_add_u32 s%d, s%d, s52" % (sPX, sPX))
    a("s_lshr_b32 s%d, s67, 1" % sLS)
    a("s_lshl_b32 s%d, s%d, 7" % (sLS, sLS))
    a("s_and_b32 s49, s%d, 6" % sXG)
    a("s_add_u32 s49, s49, s60")
    a("s_mul_i32 s62, s49, %d" % (18 * KSTRIDE))
    a("s_add_u32 s62, s62, %d" % H_OFF)
    a("s_mul_i32 s63, s49, %d" % (576 * 1152))
    a("s_mul_i32 s64, s49, %d" % (2 * KSTRIDE))
    a("s_add_u32 s64, s64, %d" % (H_OFF + 144 * KSTRIDE))
    a("s_mul_i32 s65, s49, %d" % (72 * 1152))
    a("s_mul_i32 s57, s70, %d" % (6 * KSTRIDE))
    a("s_add_u32 s57, s57, %d" % H_OFF)
    a("s_lshl_b32 s52, s%d, 7" % sXG)
    a("s_add_u32 s69, s52, s%d" % sFI)
    a("s_lshl2_add_u32 s69, s%d, s69" % sC)
    a("s_lshl_b32 s52, s49, 7")
    a("s_add_u32 s71, s52, s%d" % sFI)
    a("s_mul_i32 s%d, s70, 12288" % sCSB)
    a("s_add_u32 s%d, s%d, %d" % (sCSB, sCSB, CS_OFF))
    a("s_lshl_b32 s%d, s70, 7" % sFC)
    a("s_add_u32 s%d, s%d, 0x%x" % (sFC, sFC, FL(FC)))
    b_ = Asm(); rot_bases(b_, sI)
    late2 = Q(a, "\n".join(b_.lines))
    late = []
    L_ = lambda s, c=1: late.append(I(a, s, c))
    u0, u1 = CSA, CSA + 1
    L_("v_and_b32 v%d, 15, v%d" % (u0, vL))
    L_("v_lshlrev_b32 v%d, 4, v%d" % (u0, u0))
    L_("v_lshrrev_b32 v%d, 4, v%d" % (u1, vL))
    L_("v_lshlrev_b32 v%d, 4, v%d" % (vCSL, vL))
    L_("v_lshl_add_u32 v%d, v%d, 10, v%d" % (vCSW, u1, u0))
    L_("s_lshr_b32 s52, s%d, 1\ns_lshl_b32 s52, s52, 11\ns_and_b32 s60, s%d, 1\ns_lshl_b32 s60, s60, 3\ns_add_u32 s52, s52, s60\n"
       "s_lshr_b32 s60, s%d, 1\ns_lshl_b32 s60, s60, 8\ns_add_u32 s52, s52, s60\ns_and_b32 s60, s%d, 1\ns_lshl2_add_u32 s52, s60, s52\n"
       "v_add_u32 v%d, s52, v%d" % (sWAVE, sWAVE, sI, sI, vCSW, vCSW), 11)
    L_("v_cmp_gt_u32 vcc, 32, v%d\nv_mov_b32 v%d, 0x%x\ns_nop 0\nv_cndmask_b32 v%d, v%d, v%d, vcc" % (vL, u0, OOB, vCSW, u0, vCSW), 4)
    L_("s_cmp_eq_u32 s%d, 7\ns_cselect_b32 s%d, 0x%x, 0" % (sI, sOne2, ONE2), 2)
    CSL, ONL, ONH, ON7 = [224, 240, 248], HS, 232, 236
    for i in range(4):
        late.insert(0, I(a, "v_mov_b32 v%d, 0x%x" % (ONES + i, ONE2)))
        L_("v_mov_b32 v%d, s%d" % (ON7 + i, sOne2))
    for i in range(4):
        L_("v_cndmask_b32 v%d, 0, v%d, vcc" % (ONL + i, ONES))
        L_("v_xor_b32 v%d, v%d, v%d" % (ONH + i, ONL + i, ONES))
    run(late); run(late2)
    if CFG.lean == 1: run(XS.dma(1) + dma_issue(0, 2) + dma_issue(0, 3))
    stamp(a, 7, 1)
    stats_compute(a)
    stamp(a, 5, 1)
    run(XS.reads(0))
    a.wait_vm(lambda t: t == ("w", 0, 1))
    a("s_barrier")
    SPLIT = CFG.split
    seq = []
    for kk in range(SPLIT): seq += [("mm", 0, 0, kk), ("mm", 0, 1, kk)]
    seq += [("mm", 0, 0, kk) for kk in range(SPLIT, 18)] + [("mm", 0, 1, kk) for kk in range(SPLIT, 18)]
    for L in (1, 2):
        for P in (0, 1): seq += [("mm", L, P, kk) for kk in range(18)]
    def after(key, new): seq.insert(seq.index(key) + 1, new)
    after(("mm", 0, 0, CFG.c00), ("corr", 0, 0))
    for L in range(3): after(("mm", L, 1, 17), ("corr", L, 1))
    if CFG.cmode == 1 and CFG.cdel >= 0: after(("mm", 1, 1, CFG.cdel), ("corr", 1, 0))
    else: after(("mm", 1, 0, 17), ("corr", 1, 0))
    after(("mm", 2, 0, 17), ("corr", 2, 0))
    cs_steps = {0: [((0, 0), ONES), ((0, 1), ONES), ((0, 2), ON7), ((0, 3), ON7)],
                1: [((11, 0), ONES), ((11, 1), ONES), ((10, 2), ONL)], 2: [((12, 0), ONES), ((12, 1), ONES), ((10, 2), ONH)]}
    cs_at = {0: CFG.cs0, 1: CFG.cs1, 2: CFG.cs2}
    attach = {}
    if CFG.cmode == 1:
        CSL[1], CSL[2] = TMP, CSA
        n1 = seq.index(("corr", 0, 1)) + 1
        cs_at[1] = cs_at[2] = n1 + 1
        attach[seq[n1]] = [(1, k, (1, k), ONES, mat) for k in range(2) for mat in range(2)]
        attach[seq[n1 + 1]] = [(2, k, (2, k), ONES, mat) for k in range(2) for mat in range(2)]
        attach[seq[n1 + 2]] = [(1, 2, (10, 2), ONL, 0), (1, 2, (10, 2), ONL, 1), (2, 2, (10, 2), -ONES, 0), (2, 2, (10, 2), ONES, 1)]
    for L in range(3 if CFG.cmode == 0 else 1):
        its = [(L, k, sl, on, mat) for k, (sl, on) in enumerate(cs_steps[L]) for mat in range(2)]
        attach[seq[cs_at[L]]] = its[:4]; attach[seq[cs_at[L] + 1]] = its[4:]
    NH = len(seq)
    idx = {k: n for n, k in enumerate(seq)}
    visible = set([(0, 0), (0, 1)])
    S_ = Stream(a, "v", WF)
    first_slot = []
    csr = [0]
    def slabs_of(e):
        if e[0] == "mm": return [(e[1], e[3] & ~1), (e[1], e[3] | 1)] + [x[2] for x in attach.get(e, [])]
        return []
    for e in seq:
        first_slot.append(len(S_.slots))
        if e[0] == "mm":
            _, L, P, kk = e
            att = list(attach.get(e, []))
            for ti, kk in [(t_ + (kk & 1), k_) for t_ in (0, 2) for k_ in (kk & ~1, kk | 1)]:
                def off(L=L, kk=kk, ti=ti):
                    assert (L, kk) in visible, (L, kk)
                    return loc[(L, kk)] * 8192 + (ti >> 1) * 4096
                def mf(w, P=P, ti=ti, kk=kk):
                    return ["%s %s, %s, %s, %s" % (MF, V(acc(P, ti, tt), 4), w, xr(kk, tt), "0" if kk == 0 else V(acc(P, ti, tt), 4)) for tt in range(4)]
                S_.add(tr_read(a, off, 2 * P + (ti & 1)), mf, kk % 2 == 0)
                for _ in range(2 if kk % 2 else 0):
                    if not att: break
                    cl, k, sl, on, mat = att.pop(0); CS = CSL[cl]
                    def rd(kind, reg, tag, sl=sl, mat=mat):
                        assert sl in visible
                        out = []
                        d = loc[sl] * 8192 - csr[0]; csr[0] += d
                        if d: out.append(I(a, "v_add_u32 v%d, 0x%x, v%d" % (vCSR, d & 0xffffffff, vCSR)))
                        return out + [("D", lambda h=h: a.lds("ds_read_b64_tr_b16 %s, v%d offset:%d" % (V(reg + 2 * h, 2), vCSR, mat * 4096 + h * 2048), tag)) for h in range(2)]
                    S_.add(rd, lambda w, k=k, on=on, mat=mat, CS=CS: [("".join("v_xor_b32 v%d, v%d, v%d\n" % (ONES + i, ONES + i, ONL) for i in range(4)) + "s_nop 1\n" if on < 0 else "") + "%s %s, %s, %s, %s" % (MF, V(CS + 4 * mat, 4), V(abs(on), 4), w, "0" if k == 0 else V(CS + 4 * mat, 4))])
        elif e[0] == "corr":
            _, L, P = e
            for ti in range(4):
                S_.add(None, lambda w, P=P, ti=ti: ["%s %s, %s, %s, %s" % (MF16, V(acc(P, ti, tt), 4), V(CSA + 2 * ti, 2), V(ST + 4 * tt, 2), V(acc(P, ti, tt), 4)) for tt in range(4)])
    first_slot.append(len(S_.slots))
    p2.add_slots(S_)
    def epilogue(L, P):
        q = [I(a, "s_add_u32 s58, s57, %d" % ((2 * L + P) * KSTRIDE)) + ([], ["s58"])]
        for tt in range(4):
            rs, cc = ST + 4 * tt + 2, ST + 4 * tt + 3
            o = acc(P, 2, tt)
            gu = [(acc(P, half, tt) + i, acc(P, 2 + half, tt) + i) for half in range(2) for i in range(4)]
            for g, u in gu:
                q.append(I(a, "v_mul_f32 v%d, v%d, v%d" % (u, g, u)) + ([g, u], [u]))
                q.append(I(a, "v_mul_f32 v%d, v%d, v%d" % (g, g, rs)) + ([g], [g]))
            for g, u in gu: q.append(I(a, "v_exp_f32 v%d, v%d" % (g, g)) + ([g], [g]))
            for g, u in gu: q.append(I(a, "v_fma_f32 v%d, v%d, v%d, v%d" % (g, g, cc, cc)) + ([g], [g]))
            for g, u in gu: q.append(I(a, "v_rcp_f32 v%d, v%d" % (g, g)) + ([g], [g]))
            for g, u in gu: q.append(I(a, "v_mul_f32 v%d, v%d, v%d" % (g, g, u)) + ([g, u], [g]))
            for k in range(4):
                g = gu[2 * k][0]
                q.append(I(a, "v_cvt_pk_bf16_f32 v%d, v%d, v%d" % (o + k, g, g + 1)) + ([g, g + 1], [o + k]))
            q.append(VM(a, "buffer_store_dwordx4 %s, v%d, %s, s58 offen offset:%d %s" % (V(o, 4), vX, WSR, tt * 1024, SC), ("h", L, P)) + ([o, o + 1, o + 2, o + 3, "s58"], []))
        return q
    last_use = {}
    for n, e in enumerate(seq):
        for sl in slabs_of(e): last_use[sl] = n
    lastP = {}
    for n, e in enumerate(seq):
        if e[0] != "cs": lastP[e[1:3]] = n
    marks = set()
    def mark(m): return ("", lambda: marks.add(m))
    released = set()
    def hsig(stage): return signal(a, "s_add_u32 s49, s69, %d" % (128 * (FH + 64 * stage)))
    def hoff(stage): return "s_add_u32 s49, s71, %d" % (128 * (FH + 64 * stage))
    coff = "s_mov_b32 s49, s%d" % sFC
    def csa_load(L, P):
        return [I(a, "s_add_u32 s49, s%d, %d" % (sCSB, L * 4096 + P * 2048))] + \
               [("M", lambda k=k: a.vmem("buffer_load_dwordx4 %s, v%d, %s, s49 offen offset:%d %s" % (V(CSA + 4 * k, 4), vCSL, WSR, 1024 * k, SC), ("csa", L, P))) for k in range(2)]
    def cs_publish(L):
        CS = CSL[L]
        return [I(a, "s_mov_b32 vcc_lo, 0xffff0000\ns_mov_b32 vcc_hi, 0\nv_cndmask_b32 v%d, v%d, v%d, vcc" % (CS, CS, CS + 4), 3)] + hilo(a, CS, CS + 1, CS + 2) + \
               [I(a, "s_add_u32 s49, s%d, %d" % (sCSB, L * 4096)),
                ("M", lambda: a.vmem("buffer_store_dword v%d, v%d, %s, s49 offen %s" % (CS, vCSW, WSR, SC), ("cs", L))), mark(("pub", L))]
    ev = {}
    bar_tags = {}
    def at(n, fns): ev.setdefault(n, []).extend(fns)
    def sig_after(n, tag, fns):
        n |= 1
        bar_tags.setdefault(n, ([], []))
        bar_tags[n][0].append(tag); bar_tags[n][1].extend(fns)
    marks.add("late")
    csig = lambda L: signal(a, "s_lshl2_add_u32 s49, s%d, s%d\ns_add_u32 s49, s49, %d" % (sI, sFC, 32 * L))
    for L in range(3):
        at(cs_at[L] + 3, cs_publish(L))
        at(idx[("corr", L, 0)] + 1, csa_load(L, 1))
        if L > CFG.cmode: at(idx[("corr", L - 1, 1)] + 1, csa_load(L, 0))
    sig_after(cs_at[0] + CFG.sig0, ("cs", 0), csig(0))
    sig_after(cs_at[2] + (8 if CFG.cmode == 0 else CFG.sigd), ("cs", 2), csig(1))
    c0 = idx[("corr", 0, 0)]
    at(c0 - CFG.p0, poll_issue(a, coff, ("plc", 0)))
    at(c0 - CFG.k0, poll_check(a, coff, ("plc", 0), "0xff") + csa_load(0, 0))
    if CFG.cmode == 0:
        at(idx[("corr", 0, 1)] - 5, poll_issue(a, coff, ("plc", 1)))
        at(idx[("corr", 0, 1)], poll_check(a, coff, ("plc", 1), "0xff00"))
    else:
        at(idx[("corr", 1, 0)] - CFG.pc1, poll_issue(a, coff, ("plc", 1)))
        at(idx[("corr", 1, 0)] - CFG.kc1, poll_check(a, coff, ("plc", 1), "0xff00") + csa_load(1, 0))
    c0 = idx[("corr", 0, 0)]
    at(c0 - 12, stats_addr(a, vP2) + stats_fetch(a, "v", ST, vP2))
    fx = stats_check(a, "v", ST, vP2, None)
    for tt in range(4):
        b = ST + 4 * tt
        fx += [I(a, "v_mov_b32 v%d, v%d" % (b + 1, b)), I(a, "v_mul_f32 v%d, v%d, v%d" % (b + 3, b + 2, b + 2)), I(a, "v_rcp_f32 v%d, v%d" % (b + 2, b + 2), 2)]
    for tt in range(4): fx.append(I(a, "v_mul_f32 v%d, %s, v%d" % (ST + 4 * tt + 2, f32(-LOG2E), ST + 4 * tt + 2)))
    at(c0 - 5, fx + [mark("stats")])
    xread_at = {}
    for p in range(8, 0, -1): xread_at[p] = max(min(idx[("mm", 0, 0, 2 * p)] - CFG.xlead, xread_at.get(p + 1, 99) - 3), 0)
    for p, n in xread_at.items():
        at(n, XS.reads(p))
    mm = lambda L, P, kk: idx[("mm", L, P, kk)]
    sig_after(mm(1, 1, 2), ("h", 0, 1), hsig(0))
    sig_after(mm(2, 0, CFG.s1), ("h", 1, 0), hsig(1))
    sig_after(mm(2, 1, 2), ("h", 1, 1), hsig(2))
    at(mm(2, 0, 0) + CFG.p1, poll_issue(a, hoff(1), "pl1", vP2))
    at(mm(2, 0, 0) + CFG.c1, poll_check(a, hoff(1), "pl1", "7", vP2) + [mark("h1")])
    at(NH - 5, poll_issue(a, hoff(2), "pl2"))
    at(mm(2, 0, 6), p2.setup_vo(vCSR, vCSW, "s_and_b32 s52, s%d, 1" % sXG) + [mark("vo")])
    if CFG.pf == 1:
        pf = Q(a, """s_and_b32 s52, s{W}, 1
            s_mul_i32 s52, s52, 36
            s_mul_i32 s60, s{I}, 72
            s_add_u32 s52, s52, s60
            v_mul_u32_u24 v{P}, 43, v{L}
            v_lshrrev_b32 v{P}, 7, v{P}
            v_mul_u32_u24 v{T}, 3, v{P}
            v_sub_u32 v{T}, v{L}, v{T}
            v_add_u32 v{P}, s52, v{P}
            v_mul_u32_u24 v{P}, 1152, v{P}
            v_lshl_add_u32 v{P}, v{T}, 7, v{P}
            s_mul_i32 s52, s68, 384
            s_add_u32 s52, s52, s63""".format(W=sWAVE, I=sI, P=vP2, L=vL, T=vPL))
        pf += [VM(a, "buffer_load_dword v%d, v%d, s[%d:%d], s52 offen" % (vPL, vP2, rW2, rW2 + 3)),
               I(a, "s_add_u32 s52, s52, %d" % (18 * 1152)),
               VM(a, "buffer_load_dword v%d, v%d, s[%d:%d], s52 offen" % (vPL, vP2, rW2, rW2 + 3))]
        at(idx[("corr", 1, 0)] + 1 + CFG.pfw, pf)
    if CFG.pf == 4:
        pf = Q(a, """s_sub_u32 s52, s2, {AF}
            s_lshl2_add_u32 s52, s52, s{W}
            s_lshl_b32 s52, s52, 13
            v_lshlrev_b32 v{P}, 7, v{L}""".format(W=sWAVE, P=vP2, L=vL, AF=64 * CFG.afirst))
        pf += [VM(a, "buffer_load_dword v%d, v%d, s[%d:%d], s52 offen" % (vPL, vP2, rW2, rW2 + 3))]
        pf += Q(a, """s_cmp_lt_u32 s52, {N}
            s_cmov_b32 s52, 0x{O:x}
            s_sub_u32 s52, s52, {N}""".format(N=4608 * 1152, O=OOB))
        pf += [VM(a, "buffer_load_dword v%d, v%d, s[%d:%d], s52 offen" % (vPL, vP2, rWO, rWO + 3))]
        at((mm(1, 0, 2) if CFG.cmode == 0 else idx[("corr", 1, 0)] - CFG.kc1 + 1) + CFG.pfw, pf)
    def wjob(L, kk):
        def make():
            if VERB: print("hs", now[0], seq[now[0]], "issue W", (L, kk), file=sys.stderr)
            return dma_issue(L, kk)
        gate = 0
        if CFG.cmode == 1 and kk >= 2: gate = (0, CFG.gate1, CFG.gate2)[L]
        return ("w", lambda: len(free) > 0 and now[0] >= gate, make)
    def cjob(L, k):
        def make():
            if VERB: print("hs", now[0], seq[now[0]], "issue C", (L, k), file=sys.stderr)
            return c_issue(L, k)
        return ("w", lambda: len(free) > 0, make)
    cj = {CFG.cj1: [cjob(1, 0), cjob(1, 1), cjob(0, 2)], CFG.cj2: [cjob(2, 0), cjob(2, 1)]}
    if CFG.init >= 1: del cj[CFG.cj1]
    if CFG.cmode == 1: cj = {CFG.cj1: [wjob(1, 0), wjob(1, 1)], 9: [cjob(0, 2), wjob(2, 0), wjob(2, 1)]}
    for p in range(1 if CFG.lean == 2 else 2, 9): S_.jobs += ([XS.job(p)] if p > 2 or CFG.init < 2 else []) + [wjob(0, 2 * p), wjob(0, 2 * p + 1)] + cj.get(p, [])
    S_.jobs += cj.get(9, [])
    S_.jobs += [wjob(L, kk) for L in (1, 2) for kk in range(2 * CFG.cmode, 18)]
    hmark = lambda st: "h1" if st < 6 else ("h2" if st < 9 else ("h3" if st < 12 else ("o" if p2.steps[st][2] == "wo" else "h4")))
    S_.jobs += p2.jobs(0, lambda st: "vo" in marks,
                       lambda st: hmark(st) in marks and now[0] > mm(2, 1, min(st, 9) | 1))
    xdead = {}
    S_.prime()
    for n, e in enumerate(seq):
        pre = []
        now[0] = n
        S_.vmrate = 2.0 if n < CFG.boost else CFG.vmrate / 100.0
        if VERB: a.cm("HS %d %s" % (n, e))
        if n >= CFG.sbase and (n - CFG.sbase) % CFG.sstep == 0 and (n - CFG.sbase) // CFG.sstep < 11: stamp(a, 4 + (n - CFG.sbase) // CFG.sstep, 2)
        if e[0] == "mm" and e[1] == 0 and e[2] == 0 and e[3] % 2 == 0:
            wlg(a, [("xr", e[3] // 2)])
        if n == xread_at[8]: assert ("pub", 2 if CFG.cmode == 0 else 0) in marks
        if e[0] == "corr": assert "stats" in marks
        if n == mm(2, 0, 5): assert a.cnt.get(("w", 2, 17)) == 2
        if e[0] == "corr": wvm(a, [("csa", e[1], e[2])])
        if e[0] == "mm" and e[3] == 0 and (e[1] > 0 or e[2] == 0): stamp(a, 3 if e[1] == 0 else 3 + 2 * e[1] + e[2])
        if e == ("mm", 0, 0, 9): stamp(a, 4)
        if n % 2 == 1:
            rmax = S_.read_limit(first_slot[min(n + 2, NH)] - 1)
            need = []
            for m in range(n, NH):
                if S_.cur_ring(first_slot[m]) <= rmax:
                    need += [x for x in slabs_of(seq[m]) if x not in visible and x not in need]
            rel_ = [x for x, lu in last_use.items() if lu < n and x not in released]
            tags, aft = bar_tags.pop(n, ([], []))
            tags = list(tags)
            if S_.cur_ring(first_slot[NH]) <= rmax and not p2.visible:
                tags += [("w2",) + u for u in p2.units[:4]]; p2.visible.update(p2.units[:4])
            xrel = [p for p, m in xread_at.items() if p >= 6 and m + 3 <= n and p not in xdead]
            want_space = S_.jobs and S_.jobs[0][0] in ("w", "w2", "x") or any(j[0] in ("w", "w2") for j in S_.jobs[:3])
            if rel_ and not (need or tags or xrel) and (not want_space or (n > 40 and len(rel_) < CFG.relper)): rel_ = []
            if need or rel_ or tags or xrel:
                need += [x for x, t_ in issued_at.items() if x not in visible and x not in need and
                         (t_ + CFG.age <= n or (a.cnt.get(("w",) + x, 0) == 2 and ("w",) + x not in a.vm))]
                for x in need: assert x in loc, ("slab not issued", n, x)
                def bar(need=need, tags=tags, xrel=xrel):
                    wlg(a, [("xr", p) for p in xrel])
                    wvm(a, [("w",) + x for x in need] + tags)
                    a("s_barrier")
                pre.append(("B", bar))
                visible.update(need); released.update(rel_)
                for x in rel_: free.append(loc[x])
                for p in xrel:
                    xdead[p] = 1
                    free.extend(8 + 3 * w + p % 3 for w in range(4))
            S_.extra += aft
        S_.extra += ev.pop(n, [])
        if (2, 17) in loc:
            while free:
                p2.free.append(free.pop(0))
        ns = first_slot[n + 1] - first_slot[n]
        for k in range(ns):
            if e[0] == "mm" and e[3] == 0 and k == 0:
                assert not (S_.epi and S_.epiP == e[2]), "epilogue not finished"
            S_.emit(pre if k == 0 else (), 1 if len(S_.extra) > 20 else 0)
            if k == 1 and n > 0:
                pe = seq[n - 1]
                if pe[0] != "cs" and lastP[pe[1:3]] == n - 1:
                    assert not S_.epi
                    S_.set_epi(epilogue(pe[1], pe[2]), first_slot[mm(pe[1] + 1, pe[2], 0)] - 1 if pe[1] < 2 else first_slot[NH] - 1, 0, False)
                    S_.epiP = pe[2]
    assert not S_.epi and not ev and not bar_tags, (ev.keys(), bar_tags.keys())
    now[0] = NH
    if VERB: print("; left for phase 2:", [j[0] for j in S_.jobs], "extra", len(S_.extra), file=sys.stderr)
    stamp(a, 9)
    S_.set_epi(epilogue(2, 1), S_.pos + CFG.edl, 2, False)
    ooff = "s_add_u32 s49, s71, %d" % (128 * FO)
    hooks = {}
    def add(st, key, v): hooks.setdefault(st, {}).setdefault(key, []).extend(v)
    add(CFG.s3, "bar", [("h", 2, 0)]); add(CFG.s3, "after", hsig(3))
    add(0, "after", poll_check(a, hoff(2), "pl2", "7") + [mark("h2")])
    add(CFG.s3 + 2, "after", poll_issue(a, hoff(3), "pl3"))
    add(CFG.s4, "bar", [("h", 2, 1)]); add(CFG.s4, "after", hsig(4))
    add(CFG.s3 + 4, "after", poll_check(a, hoff(3), "pl3", "7") + [mark("h3")])
    if CFG.osplit < 2:
        add(CFG.po, "after", poll_issue(a, ooff, "plo", vP2))
        add(CFG.po + 2, "after", poll_check(a, ooff, "plo", "1", vP2) + [mark("o")])
    add(CFG.p4, "after", poll_issue(a, hoff(4), "pl4"))
    add(CFG.c4, "after", poll_check(a, hoff(4), "pl4", "7") + [mark("h4")])
    dead0 = [loc[x] for x in last_use if x not in released]
    p2.main(S_, hooks, dead0)

C0 = [0, 4, 9, 13]
def path_attn(a):
    global vL, vX, vFS, vFP, vTK, vPL
    keep = (vL, vX, vFS, vFP, vTK, vPL)
    a.cnt = {}
    RB, VO, XO, XA = 224, 230, 236, 240
    vCS0, vCS1, vCSW, vP2, u0, u1 = 250, 251, 252, 253, 254, 255
    aONE, aCS, aST, aCSA, aX = 32, 36, 52, 68, 96
    t0, t1, t2, t3, t4 = 64, 65, 66, 67, 68
    new = (244, 245, 246, 247, 248, 249)
    for o_, n_ in zip(keep[:4], new[:4]): a("v_mov_b32 v%d, v%d" % (n_, o_))
    vL, vX, vFS, vFP, vTK, vPL = new
    def xreg(kk, tt): return ("a", aX + 16 * (kk % 10) + 4 * tt)
    def xr(kk, tt): return R(*xreg(kk, tt), 4)
    def acc(T, tt): return 16 * T + 4 * tt
    XS = XStage(a, XO, XA, 98304, 2, xreg)
    WLIM = 576 * 3456
    def dma_issue(p, win):
        fns = []
        for e in range(2):
            fns += [I(a, "s_add_u32 m0, s53, %d" % (((2 * p + e) % 4) * 24576 + win * 8192)),
                    I(a, "s_add_u32 s55, s%d, %d" % (sWo, e * 32 * 3456 + win * 1152)),
                    VM(a, "buffer_load_dwordx4 v%d, s[%d:%d], s55 offen lds" % (VO, rWA, rWA + 3), ("w", p, win)),
                    VM(a, "buffer_load_dwordx4 v%d, s[%d:%d], s55 offen offset:1024 lds" % (VO + 1, rWA, rWA + 3), ("w", p, win))]
        if win == 2: fns.append(I(a, "s_add_u32 s%d, s%d, %d\ns_cmp_ge_u32 s%d, %d\ns_cmov_b32 s%d, 0" % (sWo, sWo, 64 * 3456, sWo, WLIM, sWo), 3))
        return fns
    XS.setup_dma(t0, t1)
    run(XS.dma(0))
    srd(a, rWA, sWQKV, WLIM)
    run(dma_lane_off(a, VO, t0, t1, 3456, True))
    a("s_lshr_b32 s52, s%d, 1" % sWAVE)
    a("s_add_u32 s52, s52, s%d" % sXG)
    a("s_lshl_b32 s52, s52, 7")
    a("s_and_b32 s49, s%d, 1" % sWAVE)
    a("s_mul_i32 s49, s49, %d" % (4 * 3456))
    a("s_add_u32 s52, s52, s49")
    a("v_add_u32 v%d, s52, v%d" % (VO, VO))
    a("v_add_u32 v%d, %d, v%d" % (VO + 1, 16 * 3456 - 1024, VO))
    a("s_lshl_b32 s53, s%d, 11" % sWAVE)
    a("s_mul_i32 s%d, s%d, %d" % (sWo, sROT, 64 * 3456))
    run(dma_issue(0, 0))
    stamp(a, 4, 1)
    XS.setup_read(t0, t1, t2)
    lane_fields(a, t0, t1, t2)
    a("v_lshrrev_b32 v%d, 1, v%d" % (t0, t0))
    a("v_lshlrev_b32 v%d, 10, v%d" % (t0, t0))
    a("v_lshl_add_u32 v%d, v%d, 7, v%d" % (t0, t1, t0))
    a("v_lshrrev_b32 v%d, 1, v%d" % (t1, t1))
    a("s_lshl_b32 s52, s%d, 1" % sXG)
    for p in range(6):
        r = RB + p
        if p < 4:
            a("v_add_u32 v%d, %d, v%d" % (t3, C0[p], t2))
        elif p == 4:
            a("v_lshrrev_b32 v%d, 1, v%d" % (t3, t2))
            a("v_lshl_add_u32 v%d, v%d, 2, v%d" % (t3, t2, t3))
            a("v_add_u32 v%d, 4, v%d" % (t3, t3))
        else:
            a("v_and_b32 v%d, 1, v%d" % (t3, t2))
            a("v_mul_u32_u24 v%d, 9, v%d" % (t3, t3))
            a("v_add_u32 v%d, 8, v%d" % (t3, t3))
        a("v_add_u32 v%d, s52, v%d" % (t3, t3))
        a("v_lshrrev_b32 v%d, 4, v%d" % (t4, t3))
        a("v_lshl_add_u32 v%d, v%d, 12, v%d" % (r, t4, t0))
        a("v_bfe_u32 v%d, v%d, 2, 2" % (t4, t3))
        a("v_xor_b32 v%d, v%d, v%d" % (t4, t4, t1))
        a("v_lshl_add_u32 v%d, v%d, 5, v%d" % (r, t4, r))
        a("v_and_b32 v%d, 3, v%d" % (t4, t3))
        a("v_lshl_add_u32 v%d, v%d, 3, v%d" % (r, t4, r))
        if p == 5:
            a("v_lshrrev_b32 v%d, 1, v%d" % (t4, t2))
            a("v_add_u32 v%d, 1, v%d" % (t4, t4))
            a("v_lshl_add_u32 v%d, v%d, 13, v%d" % (r, t4, r))
    a("s_bitcmp1_b32 s%d, 0" % sWAVE)
    a("s_cselect_b64 vcc, -1, 0")
    a("v_cndmask_b32 v%d, v%d, v%d, vcc" % (t3, RB, RB + 1))
    a("v_cndmask_b32 v%d, v%d, v%d, vcc" % (t4, RB + 2, RB + 3))
    a("v_cndmask_b32 v%d, v%d, v%d, vcc" % (vCS1, RB + 4, RB + 5))
    a("s_bitcmp1_b32 s%d, 1" % sWAVE)
    a("s_cselect_b64 vcc, -1, 0")
    a("v_cndmask_b32 v%d, v%d, v%d, vcc" % (vCS0, t3, t4))
    a("v_mov_b32 v%d, 0x%x" % (t3, ONE2))
    for i in range(4): a("v_accvgpr_write_b32 a%d, v%d" % (aONE + i, t3))
    steps = [(18 * x_, 576 * x_, k) for x_ in range(4) for k in range(3)] + [(2 * x_ + P, 36 * (2 * x_ + P), "woa") for x_ in range(4) for P in range(2 - CFG.osplit, 2)] + [(0, 0, "wos"), (1, 144, "wos")]
    p2 = P2(a, steps, 220, 197, 222, True)
    a("s_cmp_ge_u32 s%d, 3" % sI)
    a("s_cselect_b32 s4, 1, 0")
    a("s_mul_i32 s52, s4, 3")
    a("s_sub_u32 s68, s%d, s52" % sI)
    a("s_lshr_b32 s70, s%d, 1" % sWAVE)
    a("s_lshl_b32 s72, s%d, 10" % sXG)
    a("s_lshl_b32 s52, s70, 9")
    a("s_add_u32 s72, s72, s52")
    a("s_add_u32 s72, s72, 0x%x" % FLG_OFF)
    p2.setup_s()
    a("s_mul_i32 s62, s70, %d" % (72 * KSTRIDE))
    a("s_add_u32 s62, s62, %d" % H_OFF)
    a("s_mul_i32 s63, s70, %d" % (2304 * 1152))
    a("s_mul_i32 s64, s70, %d" % (2 * KSTRIDE))
    a("s_add_u32 s64, s64, %d" % (H_OFF + 160 * KSTRIDE))
    a("s_mul_i32 s65, s70, %d" % (288 * 1152))
    a("s_mul_i32 s7, s70, %d" % (8 * KSTRIDE))
    a("s_add_u32 s7, s7, %d" % (H_OFF + 144 * KSTRIDE))
    a("s_mov_b32 s67, 4")
    a("s_add_u32 s52, s%d, 24" % sXG)
    a("s_lshl_b32 s%d, s52, 7" % sFC)
    a("s_add_u32 s%d, s%d, 0x%x" % (sFC, sFC, FL(FC)))
    a("s_mov_b32 s71, 0x07070707")
    a("s_cmp_ge_u32 s%d, 6" % sI)
    a("s_cmov_b32 s62, 0x%x" % OOB)
    a("s_cmov_b32 s63, 0x%x" % OOB)
    a("s_cmov_b32 s71, 0")
    a("s_lshl_b32 s%d, s%d, 13" % (sCSB, sXG))
    a("s_add_u32 s%d, s%d, %d" % (sCSB, sCSB, CS_OFF + 24 * 12288))
    a("s_cmp_eq_u32 s%d, 7" % sI)
    a("s_cselect_b32 s%d, 0x%x, 0" % (sOne2, ONE2))
    run(dma_issue(0, 1) + dma_issue(0, 2))
    stamp(a, 7, 1)
    stats_compute(a)
    stamp(a, 5, 1)
    run(XS.reads(0))
    wvm(a, [("w", 0, 0)], w=4)
    a("s_barrier")
    TL = [(0, 0), (1, 0), (2, 0), (3, 0), (4, 0)] + [(p, 1) for p in range(4)] + [(p, 2) for p in range(4)] + [(5, 0)]
    S_ = Stream(a, "a", 0)
    visible = set([(0, 0)])
    cur = [0] * 6
    csr = [0]
    info = []
    csat = {0: (0, 0), 1: (0, 1), 5: (1, 0), 6: (1, 1), 8: (3, 0), 13: (3, 1), 9: (2, 0), 10: (2, 1)}
    for pp in range(9):
        for T in [0, 1, 2, 3, 4, 5, 6, 7, 8, 13, 9, 10, 11, 12]:
            wins = (1, 2) if T == 13 else (TL[T][1],)
            for kk in (2 * pp, 2 * pp + 1):
                def rd(kind, reg, tag, kk=kk, T=T, wins=wins):
                    for w_ in wins: assert (kk // 2, w_) in visible
                    p, win = TL[T]
                    want = ((kk % 4) // 2) * 49152
                    out = []
                    if cur[p] != want:
                        out.append(I(a, "v_add_u32 v%d, 0x%x, v%d" % (RB + p, (want - cur[p]) & 0xffffffff, RB + p))); cur[p] = want
                    return out + [("D", lambda h=h: a.lds("ds_read_b64_tr_b16 %s, v%d offset:%d" % (A(reg + 2 * h, 2), RB + p, (kk % 2) * 24576 + win * 8192 + h * 2048), tag)) for h in range(2)]
                def mf(w, kk=kk, T=T):
                    return ["%s %s, %s, %s, %s" % (MF, V(acc(T, tt), 4), w, xr(kk, tt), "0" if kk == 0 else V(acc(T, tt), 4)) for tt in range(4)]
                S_.add(rd, mf, kk % 2 == 0); info.append((pp, T, wins))
            if pp < 2 and T in csat:
                k, e = csat[T]
                wins = (k,) if k < 3 else (0, 1, 2)
                def rd(kind, reg, tag, pp=pp, k=k, e=e, wins=wins):
                    for w_ in wins: assert (pp, w_) in visible
                    out = []
                    if pp == 1 and k == 0 and e == 0:
                        out += [I(a, "v_add_u32 v%d, 49152, v%d" % (vCS0, vCS0)), I(a, "v_add_u32 v%d, 49152, v%d" % (vCS1, vCS1))]
                    return out + [("D", lambda h=h: a.lds("ds_read_b64_tr_b16 %s, v%d offset:%d" % (A(reg + 2 * h, 2), vCS0 if k < 3 else vCS1, e * 24576 + (k * 8192 if k < 3 else 0) + h * 2048), tag)) for h in range(2)]
                def mf(w, pp=pp, k=k, e=e):
                    pre = ""
                    if pp == 1 and k == 0 and e == 0:
                        pre = "v_mov_b32 v%d, s%d\n" % (vP2, sOne2) + "".join("v_accvgpr_write_b32 a%d, v%d\n" % (aONE + i, vP2) for i in range(4)) + "s_nop 1\n"
                    return [pre + "%s %s, %s, %s, %s" % (MF, A(aCS + 4 * k, 4), A(aONE, 4), w, "0" if pp + e == 0 else A(aCS + 4 * k, 4))]
                S_.add(rd, mf); info.append((pp, -1, wins))
    for T in list(range(9, 13)) + list(range(5, 9)) + [13] + list(range(5)):
        S_.add(None, lambda w, T=T: ["%s %s, %s, %s, %s" % (MF16, V(acc(T, tt), 4), A(aCSA + 2 * T, 2), A(aST + 4 * tt, 2), V(acc(T, tt), 4)) for tt in range(4)])
        info.append((9, T, ()))
    ev = {}; bt = {}
    def at(kk, fns): ev.setdefault(kk, []).extend(fns)
    w_ = [I(a, "v_lshrrev_b32 v%d, 4, v%d" % (u0, vL)),
          I(a, "v_mul_u32_u24 v%d, 9, v%d\nv_add_u32 v%d, 1, v%d\nv_lshrrev_b32 v%d, 1, v%d\nv_add_u32 v%d, s%d, v%d" % (vCSW, u0, vCSW, vCSW, vCSW, vCSW, vCSW, sWAVE, vCSW), 4),
          I(a, "s_mul_i32 s52, s%d, 9\ns_add_u32 s52, s52, 4\ns_cmp_ge_u32 s%d, 2\ns_cmov_b32 s52, 0x%x\nv_mov_b32 v%d, s52\nv_cmp_eq_u32 vcc, 3, v%d\ns_nop 1\nv_cndmask_b32 v%d, v%d, v%d, vcc"
            % (sWAVE, sWAVE, OOB >> 9, u1, u0, vCSW, vCSW, u1), 8),
          I(a, "v_and_b32 v%d, 15, v%d\nv_lshlrev_b32 v%d, 4, v%d\nv_and_b32 v%d, 1, v%d\nv_lshl_add_u32 v%d, v%d, 3, v%d\nv_lshrrev_b32 v%d, 1, v%d\nv_lshl_add_u32 v%d, v%d, 10, v%d"
            % (u0, vL, u0, u0, u1, vCSW, u0, u1, u0, vCSW, vCSW, vCSW, vCSW, u0), 6),
          I(a, "s_lshr_b32 s52, s%d, 1\ns_lshl_b32 s52, s52, 8\ns_and_b32 s60, s%d, 1\ns_lshl2_add_u32 s52, s60, s52\nv_add_u32 v%d, s52, v%d" % (sI, sI, vCSW, vCSW), 5)]
    marks = set()
    at(0, w_ + [("", lambda: marks.add(1))])
    pub = [I(a, "v_accvgpr_read_b32 v%d, a%d" % (u0, aCS))]
    for k, (lo, hi) in enumerate([("0xffff0000", "0"), ("0", "0xffff"), ("0", "0xffff0000")]):
        pub.append(I(a, "v_accvgpr_read_b32 v%d, a%d\ns_mov_b32 vcc_lo, %s\ns_mov_b32 vcc_hi, %s\nv_cndmask_b32 v%d, v%d, v%d, vcc" % (u1, aCS + 4 * (k + 1), lo, hi, u0, u0, u1), 4))
    pub += hilo(a, u0, u1, vCS0)
    pub.append(("M", lambda: a.vmem("buffer_store_dword v%d, v%d, %s, s%d offen %s" % (u0, vCSW, WSR, sCSB, SC), ("cs", 0))))
    at(6, pub)
    b_ = Asm(); rot_bases(b_, 4)
    at(10, Q(a, "\n".join(b_.lines)))
    bt[9] = ([("cs", 0)], signal(a, "s_lshl2_add_u32 s49, s%d, s%d" % (sI, sFC)))
    coff = "s_mov_b32 s49, s%d" % sFC
    at(16, poll_issue(a, coff, "plc") + stats_addr(a, vCS0) + stats_fetch(a, "a", aST, vCS0))
    ld = poll_check(a, coff, "plc", "0xff") + [I(a, "v_lshlrev_b32 v%d, 4, v%d" % (u0, vL))]
    for k in range(7):
        if k == 4: ld.append(I(a, "s_add_u32 s%d, s%d, 4096" % (sCSB, sCSB)))
        ld.append(("M", lambda k=k: a.vmem("buffer_load_dwordx4 %s, v%d, %s, s%d offen offset:%d %s" % (A(aCSA + 4 * k, 4), u0, WSR, sCSB, 1024 * (k % 4), SC), ("csa", 0))))
    ld += stats_check(a, "a", aST, vCS0, u1)
    for tt in range(4): ld.append(I(a, "v_accvgpr_mov_b32 a%d, a%d" % (aST + 4 * tt + 1, aST + 4 * tt)))
    at(20, ld)
    S_.prime()
    dead = set()
    wjob = lambda p, w_: ("w", lambda: p < 2 or (p - 2, w_) in dead, lambda: dma_issue(p, w_))
    for p in range(1, 9): S_.jobs += [XS.job(p), wjob(p, 0), wjob(p, 1), wjob(p, 2)]
    last = {}
    for s, (pp, T, wins) in enumerate(info):
        for w_ in wins: last[(pp, w_)] = s + 1
    bars = [s for s, (pp, T, wins) in enumerate(info) if pp < 9 and T in CFG.abar and info[s - 1][1] != T]
    for s, (pp, T, wins) in enumerate(info):
        pre = []
        begin = T == 0 and info[s - 1][1] != 0
        if begin and pp < 9: wlg(a, [("xr", pp)])
        if VERB and begin: a.cm("HS attn %d" % pp)
        if begin: stamp(a, 4 + pp, 6)
        if s == 0: stamp(a, 3)
        S_.vmrate = 2.0 if s < CFG.aboost else CFG.vmrate / 100.0
        if pp == 9 and T == 9:
            run(S_.extra); S_.extra = []
            wvm(a, [("csa", 0)], csa=7)
            a("s_nop 1")
        if s in bars:
            b = bars.index(s)
            nxt = bars[b + 1] if b + 1 < len(bars) else len(info)
            lim = S_.read_limit(nxt - 1)
            need = []
            for s2, (p2_, T2, w2_) in enumerate(info):
                if S_.ring[s2] is not None and S_.ring[s2] <= lim:
                    need += [(p2_, w_) for w_ in w2_ if (p2_, w_) not in visible and (p2_, w_) not in need]
            tags, aft = bt.pop(b, ([], []))
            def bar(need=need, tags=tags):
                wvm(a, [("w",) + u for u in need] + tags, w=4)
                a("s_barrier")
            pre.append(("B", bar))
            visible.update(need); dead.update(u for u in last if last[u] < s)
            S_.extra += aft
            if b % 3 == CFG.axb and pp + 1 < 9: S_.extra += XS.reads(pp + 1)
            S_.extra += ev.pop(b, [])
        S_.emit(pre)
    assert not S_.extra and not ev and not S_.jobs and not S_.mem
    if VERB: a.cm("END")
    RS = 296
    vq, vn, vI0, vI1 = 224, 225, 226, 227
    T8 = 232
    t0, t1, t2, t3 = 242, 243, 254, 255
    SCL = 250
    a("s_barrier")
    stamp(a, 4, 5)
    stamp(a, 2)
    for tt in range(4): a("v_accvgpr_read_b32 v%d, a%d" % (SCL + tt, aST + 4 * tt + 2))
    a("v_lshrrev_b32 v%d, 4, v%d" % (vq, vL))
    a("v_and_b32 v%d, 15, v%d" % (vn, vL))
    for tt in range(4): a("v_rcp_f32 v%d, v%d" % (SCL + tt, SCL + tt))
    a("s_lshl_b32 s52, s%d, 6" % sWAVE)
    a("v_add_u32 v%d, s52, v%d" % (t0, vn))
    a("v_mul_u32_u24 v%d, %d, v%d" % (t0, RS, t0))
    a("v_lshl_add_u32 v%d, v%d, 3, v%d" % (vI0, vq, t0))
    a("v_mul_u32_u24 v%d, 72, v%d" % (t1, vq))
    a("v_add3_u32 v%d, v%d, v%d, 64" % (vI1, t0, t1))
    for tt in range(4): a("v_mul_f32 v%d, %s, v%d" % (SCL + tt, f32(LOG2E), SCL + tt))
    a("s_mov_b32 s56, %s" % f32(1.0 / LOG2E))
    a("s_mov_b32 s57, s56")
    a("v_mov_b32 v228, %s" % f32(1e-6 * LOG2E))
    a("v_cmp_gt_u32 s[32:33], 2, v%d" % vq)
    def scale4(r, tt):
        b, o = SCL + (tt & 2), tt & 1
        for i in (0, 2): a("v_pk_mul_f32 v[%d:%d], v[%d:%d], v[%d:%d] op_sel:[0,%d] op_sel_hi:[1,%d]" % (r + i, r + i + 1, r + i, r + i + 1, b, b + 1, o, o))
    def phi4(r, t, keepm=None):
        for i in range(4): a("v_exp_f32_e64 v%d, v%d clamp" % (t + i, r + i))
        for i in range(4): a("v_max_f32 v%d, v%d, v228" % (t + 4 + i, r + i))
        d = r if keepm is None else t
        for i in range(0, 4, 2): a("v_pk_fma_f32 v[%d:%d], v[%d:%d], s[56:57], v[%d:%d]" % (d + i, d + i + 1, t + 4 + i, t + 5 + i, t + i, t + i + 1))
        if keepm is not None:
            for i in range(4): a("v_cndmask_b32 v%d, v%d, v%d, %s" % (r + i, r + i, t + i, keepm))
    def pack2(dst, r):
        a("v_cvt_pk_bf16_f32 v%d, v%d, v%d" % (dst, r, r + 1))
        a("v_cvt_pk_bf16_f32 v%d, v%d, v%d" % (dst + 1, r + 2, r + 3))
    h0off = "s_add_u32 s49, s72, %d" % (128 * FH)
    side = []
    def sprinkle():
        while side:
            t, f = side.pop(0); f()
            if t == "M": break
    a("v_mov_b32 v%d, 0x%x" % (t2, ONE2))
    a("v_mov_b32 v%d, 0x%x" % (t3, ONE2))
    for tt in range(4): a("ds_write_b64 v%d, v[%d:%d] offset:%d" % (t0, t2, t3, tt * 16 * RS + 288))
    for T in [13] + list(range(9, 13)) + list(range(5, 9)):
        for tt in (3, 2, 1, 0):
            r = acc(T, tt)
            if T != 13 and (T < 9 or tt % 2 == 0): sprinkle()
            scale4(r, tt)
            if 5 <= T < 9: phi4(r, T8)
            elif T == 13: phi4(r, T8, keepm="s[32:33]")
            pack2(r, r)
            if T == 13: a("ds_write_b64 v%d, v[%d:%d] offset:%d" % (vI1, r, r + 1, tt * 16 * RS))
            else:
                off = C0[(T - 5) % 4] * 8 + (144 if T >= 9 else 0)
                a("ds_write_b64 v%d, v[%d:%d] offset:%d" % (vI0, r, r + 1, tt * 16 * RS + off))
        if T == 13:
            run(p2.setup_vo(240, 241, "s_mov_b32 s52, s4", sXG))
            p2.free = list(range(10, 18))
            for u in p2.units[:8]: side += p2.dma_issue(*u)
            a("v_bfe_u32 v223, v%d, 3, 2" % vL)
            a("v_and_b32 v240, 7, v%d" % vL)
            a("v_lshlrev_b32 v240, 2, v240")
            a("v_lshl_add_u32 v223, v223, 7, v240")
            side += poll_issue(a, h0off, "pl0", 231, 223)
    run(side); side = []
    stamp(a, 5, 5)
    vM, vLf, vB2 = 229, 230, 226
    a("v_bfe_u32 v%d, v%d, 2, 4" % (t0, vL))
    a("v_mul_u32_u24 v%d, %d, v%d" % (t0, RS, t0))
    a("v_and_b32 v%d, 3, v%d" % (t2, vL))
    a("s_lshl_b32 s52, s%d, 2" % sWAVE)
    a("s_lshr_b32 s49, s%d, 1" % sWAVE)
    a("s_add_u32 s52, s52, s49")
    a("v_cmp_eq_u32 vcc, s%d, v%d" % (sWAVE, t2))
    a("v_add_u32 v%d, s52, v%d" % (t3, t2))
    a("v_lshl_add_u32 v%d, v%d, 3, v%d" % (vM, t3, t0))
    a("s_lshl_b32 s52, s52, 3")
    a("s_add_u32 s52, s52, 32")
    a("v_add_u32 v%d, s52, v%d" % (vLf, t0))
    a("v_add_u32 v%d, 144, v%d" % (t3, t0))
    a("v_cndmask_b32 v%d, v%d, v%d, vcc" % (vB2, t3, vLf))
    a("v_cmp_eq_u32 s[34:35], s%d, v%d" % (sWAVE, vq))
    a.lg0()
    a("s_barrier")
    KC = 80
    FR = 96
    for k8 in range(8):
        if k8 == 4:
            for v_ in (vM, vLf, vB2): a("v_add_u32 v%d, %d, v%d" % (v_, 128 * RS, v_))
        if k8 == 7: a.wait_lg(lambda t: t == 0)
        for f, (base, off) in enumerate([(vM, 0), (vLf, 0), (vM, 144), (vB2, 144)]):
            for rd in range(2):
                r = FR + 16 * (k8 % 7) + 4 * f + 2 * rd
                a.lds("ds_read_b64_tr_b16 v[%d:%d], v%d offset:%d" % (r, r + 1, base, (32 * (k8 % 4) + 16 * rd) * RS + off), k8)
        for kq in ([k8 - 1] if k8 else []) + ([7] if k8 == 7 else []):
            a.wait_lg(lambda t: t == kq)
            b = FR + 16 * (kq % 7)
            for ci, (fa, fb) in enumerate([(b, b + 8), (b, b + 12), (b + 4, b + 8), (b + 4, b + 12)]):
                d = KC + 4 * ci
                a("%s %s, %s, %s, %s" % (MF, V(d, 4), V(fa, 4), V(fb, 4), "0" if kq == 0 else V(d, 4)))
    stamp(a, 6, 5)
    a("s_lshl_b32 s52, s%d, 5" % sXG)
    a("s_add_u32 s52, s52, s%d" % sWAVE)
    a("s_mul_i32 s6, s52, 3072")
    a("s_add_u32 s6, s6, %d" % KVP_OFF)
    a("s_mul_i32 s52, s%d, 12288" % sI)
    a("s_add_u32 s58, s6, s52")
    a("v_lshlrev_b32 v%d, 4, v%d" % (t0, vL))
    a("s_lshl_b32 s81, s%d, 7" % sXG)
    a("s_add_u32 s81, s81, %d" % FL(FKV))
    for i in range(4): a("v_cndmask_b32 v%d, v%d, v%d, s[34:35]" % (KC + 8 + i, KC + 12 + i, KC + 8 + i))
    for ci in range(3):
        a.vmem("buffer_store_dwordx4 %s, v%d, %s, s58 offen offset:%d %s" % (V(KC + 4 * ci, 4), t0, WSR, ci * 1024, SC), "kvp")
    run(poll_check(a, h0off, "pl0", "s71", 231, 223))
    for st in range(CFG.ah): side += p2.h_issue(st)
    QF = 104
    def qphi(tt):
        for T in range(5):
            sprinkle()
            scale4(acc(T, tt), tt)
            phi4(acc(T, tt), T8)
        for h in range(4):
            if h % 2: sprinkle()
            pack2(QF + 16 * tt + 4 * h, acc(h, tt))
            pack2(QF + 16 * tt + 4 * h + 2, acc(4, tt))
    qphi(0)
    a("s_and_b32 s52, s%d, 1" % sWAVE)
    a("s_lshl_b32 s49, s52, 1")
    a("v_cmp_le_u32 s[32:33], s49, v%d" % vn)
    a("v_lshrrev_b32 v%d, 2, v%d" % (t2, vn))
    a("v_cmp_eq_u32 s[16:17], s%d, v%d" % (sWAVE, t2))
    a("v_and_b32 v%d, 3, v%d" % (t2, vn))
    a("s_add_u32 s49, s49, 2")
    a("v_cmp_gt_u32 vcc, s49, v%d" % t2)
    a("v_cmp_eq_u32 s[20:21], s%d, v%d" % (sWAVE, t2))
    a("s_and_b64 s[10:11], s[16:17], vcc")
    a("v_cmp_le_u32 s[74:75], s52, v%d" % vq)
    a("s_cmp_eq_u32 s52, 1")
    a("s_cselect_b64 s[76:77], s[34:35], 0")
    stamp(a, 7, 5)
    a.wait_vm(lambda t: t == "kvp")
    a("s_barrier")
    run(signal(a, "s_lshl2_add_u32 s49, s%d, s81" % sI))
    p2.free += list(range(10))
    for u in p2.units[8:3 * CFG.ah]: side += p2.dma_issue(*u)
    stamp(a, 8, 5)
    qphi(1)
    if CFG.qord == 0: qphi(2)
    run(poll_issue(a, "s_mov_b32 s49, s81", "plkv"))
    if CFG.qord == 1: qphi(2)
    stamp(a, 9, 5)
    run(poll_check(a, "s_mov_b32 s49, s81", "plkv", "0xff"))
    stamp(a, 5)
    stamp(a, 10, 5)
    KB = [80, 92, 168, 180, 192, 204, 0, 12]
    def ldp(i):
        a("s_add_u32 s58, s6, %d" % (i * 12288))
        for ci in range(3):
            a.vmem("buffer_load_dwordx4 %s, v%d, %s, s58 offen offset:%d %s" % (V(KB[i] + 4 * ci, 4), t0, WSR, ci * 1024, SC), ("kv", i))
    KB[6:] = [0, 16]
    for i in range(8): ldp(i)
    qphi(3)
    run(side); side = []
    for i in range(1, 8):
        a.wait_vm(lambda t: t == ("kv", i))
        if i == 1: stamp(a, 11, 5)
        d = 0 if i == 7 else 80
        for r in range(0, 12, 2): a("v_pk_add_f32 %s, %s, %s" % (V(d + r, 2), V(80 + r, 2), V(KB[i] + r, 2)))
    stamp(a, 12, 5)
    pack2(12, 0); pack2(14, 4); pack2(16, 8)
    a("v_mov_b32 v18, v16"); a("v_mov_b32 v19, v17"); a("v_mov_b32 v20, v16"); a("v_mov_b32 v21, v17")
    a("s_bitcmp1_b32 s%d, 0" % sWAVE)
    a("s_cselect_b64 vcc, -1, 0")
    a("v_permlane16_swap_b32 v18, v20")
    a("v_permlane16_swap_b32 v19, v21")
    a("v_mov_b32_dpp v22, v14 row_ror:4 row_mask:0xf bank_mask:0xf")
    a("v_mov_b32_dpp v23, v15 row_ror:4 row_mask:0xf bank_mask:0xf")
    a("v_cndmask_b32 v18, v20, v18, vcc")
    a("v_cndmask_b32 v19, v21, v19, vcc")
    a("v_cndmask_b32 v22, v14, v22, s[16:17]")
    a("v_cndmask_b32 v23, v15, v23, s[16:17]")
    a("v_mov_b32_dpp v20, v18 row_ror:4 row_mask:0xf bank_mask:0xf")
    a("v_mov_b32_dpp v21, v19 row_ror:4 row_mask:0xf bank_mask:0xf")
    a("v_cndmask_b32 v20, v18, v20, s[16:17]")
    a("v_cndmask_b32 v21, v19, v21, s[16:17]")
    for f, (m, mainr, leftr) in enumerate([(32, 12, 16), (10, 14, 18), (20, 22, 20)]):
        for k, (src, extra) in enumerate([(mainr, 74), (mainr + 1, m), (leftr, 34), (leftr + 1, 76)]):
            a("s_and_b64 vcc, s[%d:%d], s[%d:%d]" % (m, m + 1, extra, extra + 1))
            a("v_cndmask_b32 v%d, 0, v%d, vcc" % (24 + 4 * f + k, src))
    a("s_mul_i32 s52, s%d, 3072" % sWAVE)
    a("v_add_u32 v%d, 0x25000, v%d" % (t0, t0))
    a("v_add_u32 v%d, s52, v%d" % (t1, t0))
    for f in range(3):
        a("ds_write_b128 v%d, %s offset:%d" % (t1, V(24 + 4 * f, 4), f * 1024))
    a("s_waitcnt lgkmcnt(0)")
    a("s_barrier")
    AF = 168
    for i in range(12):
        a("ds_read_b128 %s, v%d offset:%d" % (V(AF + 4 * i, 4), t0, i * 1024))
    a("s_lshl_b32 s52, s%d, 1" % sXG)
    a("s_add_u32 s52, s52, 144")
    a("s_mul_i32 s58, s52, %d" % KSTRIDE)
    a("s_add_u32 s58, s58, %d" % H_OFF)
    a("s_add_u32 s59, s58, %d" % KSTRIDE)
    a("s_lshr_b32 s52, s%d, 1" % sXG)
    a("s_add_u32 s52, s52, 160")
    a("s_mul_i32 s57, s52, %d" % KSTRIDE)
    a("s_and_b32 s52, s%d, 1" % sXG)
    a("s_lshl_b32 s52, s52, 3")
    a("s_add_u32 s57, s57, s52")
    a("s_add_u32 s57, s57, %d" % H_OFF)
    a("s_mov_b32 s56, %s" % f32(LOG2E))
    a("v_cmp_eq_u32 s[32:33], 1, v%d" % vq)
    a("v_cmp_eq_u32 s[34:35], 2, v%d" % vq)
    a("v_cmp_eq_u32 s[10:11], 3, v%d" % vq)
    a("s_waitcnt lgkmcnt(0)")
    for tt in range(4):
        o = 24 * tt
        for h in range(4):
            qf = V(QF + 16 * tt + 4 * h, 4)
            a("%s %s, %s, %s, 0" % (MF, V(o + 4 * h, 4), V(AF + 12 * h, 4), qf))
            a("%s %s, %s, %s, %s" % (MF, V(o + 16, 4), V(AF + 12 * h + 4, 4), qf, "0" if h == 0 else V(o + 16, 4)))
            a("%s %s, %s, %s, %s" % (MF, V(o + 20, 4), V(AF + 12 * h + 8, 4), qf, "0" if h == 0 else V(o + 20, 4)))
    stamp(a, 13, 5)
    a("s_nop 7")
    for tt in range(4):
        o = 24 * tt
        for h in range(4): a("v_fma_f32 v%d, v%d, s56, v228" % (o + 20 + h, o + 20 + h))
        for h in range(4): a("v_rcp_f32 v%d, v%d" % (o + 20 + h, o + 20 + h))
        a("s_nop 0")
        a("v_cndmask_b32 v%d, v%d, v%d, s[32:33]" % (T8 + 8, o + 20, o + 21))
        a("v_cndmask_b32 v%d, v%d, v%d, s[34:35]" % (T8 + 8, T8 + 8, o + 22))
        a("v_cndmask_b32 v%d, v%d, v%d, s[10:11]" % (T8 + 8, T8 + 8, o + 23))
        for h in range(4):
            b, sel = o + 20 + (h & 2), h & 1
            for i in (0, 2): a("v_pk_mul_f32 v[%d:%d], v[%d:%d], v[%d:%d] op_sel:[0,%d] op_sel_hi:[1,%d]" % (o + 4 * h + i, o + 4 * h + i + 1, o + 4 * h + i, o + 4 * h + i + 1, b, b + 1, sel, sel))
        for i in (0, 2): a("v_pk_mul_f32 v[%d:%d], v[%d:%d], v[%d:%d] op_sel_hi:[1,0]" % (o + 16 + i, o + 17 + i, o + 16 + i, o + 17 + i, T8 + 8, T8 + 9))
        pack2(o, o); pack2(o + 2, o + 4)
        pack2(o + 4, o + 8); pack2(o + 6, o + 12)
        pack2(o + 8, o + 16)
        a.vmem("buffer_store_dwordx4 %s, v%d, %s, s58 offen offset:%d %s" % (V(o, 4), vX, WSR, tt * 1024, SC), "o")
        a.vmem("buffer_store_dwordx4 %s, v%d, %s, s59 offen offset:%d %s" % (V(o + 4, 4), vX, WSR, tt * 1024, SC), "o")
        a.vmem("buffer_store_dwordx2 %s, v%d, %s, s57 offen offset:%d %s" % (V(o + 8, 2), vX, WSR, tt * 1024, SC), "o")
    for o_, n_ in zip(keep[:5], new[:5]): a("v_mov_b32 v%d, v%d" % (o_, n_))
    vL, vX, vFS, vFP, vTK, vPL = keep
    p2.setup_special(176, 177, 178)
    tr_addrs(a, 176, 177, 178)
    a("s_mul_i32 s%d, s70, 4128" % sPX)
    a("s_lshl_b32 s81, s%d, 7" % sXG)
    a("s_add_u32 s81, s81, s%d" % sFI)
    a("s_mov_b32 s52, s%d" % sI)
    a("s_mov_b32 s%d, s%d" % (sI, sXG))
    a("s_mov_b32 s%d, s52" % sXG)
    osig = lambda: signal(a, "s_add_u32 s49, s81, %d" % (128 * FO))
    stamp(a, 14, 5)
    stamp(a, 6)
    lgo = a.newlabel("Lp2a")
    a("s_cmp_lt_u32 s%d, 6" % sXG)
    a("s_cbranch_scc1 %s" % lgo)
    a("s_waitcnt vmcnt(0)")
    a("s_barrier")
    keepvm = list(a.vm)
    run(osig())
    if CFG.ipf:
        a("s_sub_u32 s52, s%d, 6" % sXG)
        a("s_mul_i32 s60, s%d, 9216" % sWAVE)
        a("s_mul_i32 s54, s52, %d" % (2304 * 1152))
        a("s_add_u32 s54, s54, s60")
        a("s_mul_i32 s55, s52, %d" % (288 * 1152))
        a("s_add_u32 s55, s55, s60")
        a("v_lshlrev_b32 v0, 7, v%d" % vL)
        for base, r, rows in [(54, rW2, [576 * x_ + 192 * k for x_ in range(CFG.ah // 3, 4) for k in range(3)]), (55, rWO, [32 * k for k in range(9)])]:
            for row in rows:
                a("s_add_u32 s52, s%d, %d" % (base, row * 1152))
                a("buffer_load_dword v1, v0, s[%d:%d], s52 offen" % (r, r + 3))
    a.vm = keepvm
    a("s_branch L_final")
    a.label(lgo)
    hooks = {}
    def add(st, key, v): hooks.setdefault(st, {}).setdefault(key, []).extend(v)
    add(CFG.so, "bar", ["o"]); add(CFG.so, "after", osig())
    ooff = "s_add_u32 s49, s72, %d" % (128 * FO)
    NSA = len(steps)
    add(CFG.so + 2, "after", poll_issue(a, ooff, "plo", None, 223))
    add(CFG.so + 4, "after", poll_check(a, ooff, "plo", "0x01010101", None, 223) + [("", lambda: marks.add("o"))])
    wvm(a, [("w2",) + u for u in p2.units[:4]])
    a("s_barrier")
    p2.visible.update(p2.units[:4])
    for k_ in [k_ for k_ in a.cnt if isinstance(k_, tuple) and k_[0] == "f"]: del a.cnt[k_]
    S_ = Stream(a, "v", WF)
    p2.add_slots(S_)
    S_.prime()
    S_.jobs += p2.jobs(CFG.ah, lambda st: True, lambda st: st < 12 or "o" in marks)
    p2.main(S_, hooks, [18, 19])

def spin(a, soff_code, mask, sleep):
    lp, ld = a.newlabel("Lw"), a.newlabel("Lw")
    a(soff_code)
    a("s_mov_b32 s59, 40000")
    a.label(lp)
    a("buffer_load_dword v%d, v%d, %s, s49 offen %s" % (vPL, vFP, WSR, SC))
    a("s_waitcnt vmcnt(0)")
    a("v_cmp_eq_u32 vcc, s%d, v%d" % (sTOK, vPL))
    a("s_andn2_b32 s61, %s, vcc_lo" % mask)
    a("s_cbranch_scc0 %s" % ld)
    a("s_sleep %d" % sleep)
    a("s_sub_u32 s59, s59, 1")
    a("s_cmp_lg_u32 s59, 0")
    a("s_cbranch_scc1 %s" % lp)
    a.label(ld)

def code_prefetch(a, top=False):
    if CFG.cpf == 0 or (CFG.cpf >= 2) != top: return
    if top:
        a("s_getpc_b64 s[60:61]")
        l = a.newlabel("Lpc")
        a.label(l)
        a("s_sub_u32 s%d, s60, %s-%s" % (rW2, l, NAME))
        a("s_subb_u32 s%d, s61, 0" % (rW2 + 1))
        a("s_and_b32 s%d, s%d, 0xffff" % (rW2 + 1, rW2 + 1))
        a("s_mov_b32 s%d, L_code_end-%s" % (rW2 + 2, NAME))
        a("s_mov_b32 s%d, 0x20000" % (rW2 + 3))
        if CFG.cpf == 2:
            a("s_lshr_b32 s52, s2, 3")
            a("s_lshl_b32 s52, s52, 12")
            a("v_lshlrev_b32 v63, 4, v0")
        elif CFG.cpf == 4:
            a("s_lshr_b32 s52, s2, 4")
            a("s_lshl_b32 s52, s52, 12")
            a("s_bitcmp1_b32 s2, 3")
            a("s_cselect_b32 s49, (L_attn-%s)&0xffffff80, 0" % NAME)
            a("s_add_u32 s52, s52, s49")
            a("v_lshlrev_b32 v63, 4, v0")
        else:
            a("s_bfe_u32 s52, s2, 0x20003")
            a("s_lshl_b32 s52, s52, 15")
            a("v_lshlrev_b32 v63, 7, v0")
        a.vmem("buffer_load_dword v62, v63, s[%d:%d], s52 offen" % (rW2, rW2 + 3), "pf")
        return
    a("s_getpc_b64 s[60:61]")
    l = a.newlabel("Lpc")
    a.label(l)
    a("s_sub_u32 s%d, s60, %s-%s" % (rW2, l, NAME))
    a("s_subb_u32 s%d, s61, 0" % (rW2 + 1))
    a("s_and_b32 s%d, s%d, 0xffff" % (rW2 + 1, rW2 + 1))
    a("s_mov_b32 s%d, L_code_end-%s" % (rW2 + 2, NAME))
    a("s_mov_b32 s%d, 0x20000" % (rW2 + 3))
    a("s_lshr_b32 s52, s2, 3")
    a("s_lshl_b32 s52, s52, 12")
    a("s_lshl_b32 s49, s%d, 10" % sWAVE)
    a("s_add_u32 s52, s52, s49")
    a("v_lshlrev_b32 v63, 4, v%d" % vL)
    a.vmem("buffer_load_dword v%d, v63, s[%d:%d], s52 offen" % (vPL, rW2, rW2 + 3), "pf")
    if CFG.tlb:
        a("s_lshl_b32 s49, s%d, 1" % sWAVE)
        a("s_cmp_eq_u32 s%d, 1" % sWAVE)
        a("s_cselect_b32 s60, s%d, s%d" % (sW2, sWS)); a("s_cselect_b32 s61, s%d, s%d" % (sW2 + 1, sWS + 1))
        a("s_mov_b32 s%d, %d" % (rWO + 2, PART_OFF + 5 * PSL)); a("s_cmov_b32 s%d, %d" % (rWO + 2, 4608 * 1152))
        a("s_cmp_eq_u32 s%d, 2" % sWAVE)
        a("s_cmov_b32 s60, s%d" % sWO); a("s_cmov_b32 s61, s%d" % (sWO + 1)); a("s_cmov_b32 s%d, %d" % (rWO + 2, 576 * 1152))
        a("s_cmp_eq_u32 s%d, 3" % sWAVE)
        a("s_cmov_b32 s60, s%d" % sOUT); a("s_cmov_b32 s61, s%d" % (sOUT + 1)); a("s_cmov_b32 s%d, %d" % (rWO + 2, 2048 * 1152))
        a("s_mov_b32 s%d, s60" % rWO)
        a("s_and_b32 s%d, s61, 0xffff" % (rWO + 1))
        a("s_mov_b32 s%d, 0x20000" % (rWO + 3))
        a("v_lshlrev_b32 v63, %d, v%d" % (CFG.tlb, vL))
        a("s_lshl_b32 s52, s2, 7")
        a.vmem("buffer_load_dword v%d, v63, s[%d:%d], s52 offen %s" % (vPL, rWO, rWO + 3, SC), "pf")

HEADER = """
; Kernarg (8-byte pointers): 0 x | 8 wqkv | 16 wo | 24 (unused) | 32 w1 | 40 w3 | 48 w2 | 56 out | 64 debug | 72 workspace
; Generated by the author's own script.  One launch, 256 workgroups of 4 waves (one per CU, 512 registers, 160 KiB LDS).
;    statistics and column sums are computed once (shared between workgroups), the mean term is one extra MFMA step.
;  * workgroups 0..191: h = silu(.)*(.) for 256 tokens x 192 hidden columns; 192..255: q,k,v, k^T v exchange and o for
;    256 tokens x 4 heads.  Then the second GEMM [h | o] [w2 ; wo], split over k; every workgroup finishes its own columns.
;  * hand-offs: write-through stores, drained, then a flag word holding this launch's token (workspace epoch + 1).
"""

def build():
    a = Asm()
    a.raw(HEADER.strip("\n"))
    a.raw("; @launch grid=(256,1,1) block=(256,1,1) lds=%d" % LDS_BYTES)
    a.raw('.amdgcn_target "amdgcn-amd-amdhsa--gfx950"')
    a.raw(".text")
    kernel_begin(a, NAME)
    a("s_cmp_ge_u32 s2, 256")
    a("s_cbranch_scc1 L_end")
    a("s_load_dwordx16 s[4:19], s[0:1], 0")
    a("s_load_dwordx4 s[20:23], s[0:1], 64")
    code_prefetch(a, True)
    if CFG.stamp:
        for i in range(16): a("s_mov_b32 s%d, 0" % (84 + i))
        a("s_memtime s[100:101]" if CFG.clk else "s_memrealtime s[100:101]")
    a("v_and_b32 v%d, 63, v0" % vL)
    a("v_lshrrev_b32 v1, 6, v0")
    a("v_cmp_eq_u32 vcc, 0xc0, v0")
    a("v_readfirstlane_b32 s%d, v1" % sWAVE)
    a("v_mov_b32 v1, 0x%x" % OOB)
    a("s_lshr_b32 s%d, s2, 6" % sC)
    if CFG.afirst:
        a("s_add_u32 s%d, s%d, 3" % (sC, sC))
        a("s_and_b32 s%d, s%d, 3" % (sC, sC))
    a("v_cndmask_b32 v%d, v1, v%d, vcc" % (vFS, vL))
    a("v_and_b32 v1, 31, v0")
    a("v_lshlrev_b32 v%d, 2, v1" % vFP)
    if CFG.mapping == 0:
        a("s_and_b32 s%d, s2, 7" % sXG)
        a("s_bfe_u32 s%d, s2, 0x30003" % sI)
    elif CFG.mapping == 1:
        a("s_and_b32 s%d, s2, 3" % sXG)
        a("s_bfe_u32 s52, s2, 0x10003")
        a("s_lshl1_add_u32 s%d, s%d, s52" % (sXG, sXG))
        a("s_and_b32 s%d, s2, 4" % sI)
        a("s_bfe_u32 s52, s2, 0x20004")
        a("s_add_u32 s%d, s%d, s52" % (sI, sI))
    elif CFG.mapping == 4:
        a("s_and_b32 s%d, s2, 3" % sXG)
        a("s_bfe_u32 s52, s2, 0x10003")
        a("s_lshl1_add_u32 s%d, s%d, s52" % (sXG, sXG))
        a("s_bfe_u32 s%d, s2, 0x20004" % sI)
        a("s_bfe_u32 s52, s2, 0x10002")
        a("s_lshl1_add_u32 s%d, s%d, s52" % (sI, sI))
    a("s_mul_i32 s%d, s%d, %d" % (sROT, sC, CFG.rotc))
    a("s_add_u32 s%d, s%d, s%d" % (sROT, sROT, sI))
    if CFG.mapping != 0 and CFG.rotc:
        a("s_and_b32 s52, s%d, 1" % sXG)
        a("s_add_u32 s%d, s%d, s52" % (sROT, sROT))
    a("s_cmp_ge_u32 s%d, 9" % sROT)
    a("s_cselect_b32 s52, 9, 0")
    a("s_sub_u32 s%d, s%d, s52" % (sROT, sROT))
    a("s_lshl_b32 s52, s%d, 14" % sI)
    a("s_lshl_b32 s49, s%d, 12" % sWAVE)
    a("s_add_u32 s52, s52, s49")
    a("v_lshl_add_u32 v%d, v%d, 4, s52" % (vX, vL))
    a("s_lshl_b32 s%d, s%d, 10" % (sFI, sI))
    a("s_add_u32 s%d, s%d, 0x%x" % (sFI, sFI, FLG_OFF))
    stats_load(a)
    a("s_mov_b32 s%d, 0x%x" % (rX + 2, 2048 * 1152))
    a("s_mov_b32 s%d, 0x20000" % (rX + 3))
    a("s_waitcnt lgkmcnt(0)")
    if CFG.stamp: a("s_mov_b32 s84, s100")
    a("s_mov_b32 s%d, s%d" % (rX, sX))
    a("s_and_b32 s%d, s%d, 0xffff" % (rX + 1, sX + 1))
    stats_issue(a)
    a("s_add_u32 s60, s%d, 0x%x" % (sWS, FL(0)))
    a("s_addc_u32 s61, s%d, 0" % (sWS + 1))
    a("s_load_dword s%d, s[60:61], 0" % sTOK)
    stamp(a, 6, 1)
    srd(a, rWS, sWS, WS_BYTES)
    vm0 = list(a.vm)
    a("s_cmp_eq_u32 s%d, 3" % sC)
    a("s_cbranch_scc1 L_attn")
    path_mlp(a)
    a.label("L_final")
    stamp_out(a)
    a.label("L_end")
    a("s_endpgm")
    a.vm = vm0; a.lg = []
    a.label("L_attn")
    path_attn(a)
    a("s_branch L_final")
    a.lines += LATER
    a.label("L_code_end")
    a("s_endpgm")
    a.raw('.section .rodata,"a"')
    a.raw(kernel_desc(NAME, 512, 256))
    return a.text()

if __name__ == "__main__":
    args = sys.argv[1:]
    out = "parallel_sum__linear_attn_block__glu_gated_swiglu__prompt.s"
    for x in args:
        if x == "--stamp": CFG.stamp = True
        elif x == "-v": VERB = True
        elif x == "--sc1": SC = "sc1"
        elif x == "--dsc1": DFL = "sc1"
        elif x == "--dnt": DFL = "nt"
        elif x == "--osc": OSC = " sc1"
        elif x == "--ont": OSC = " nt"
        elif "=" in x:
            k, v = x.split("="); assert hasattr(CFG, k), k; setattr(CFG, k, float(v) if "." in v else int(v))
        else: out = x
    txt = build()
    if CFG.abl:
        import re
        L = txt.split("\n"); i0 = next(i for i, l in enumerate(L) if "v_mfma" in l); i1 = L.index("L_final:")
        def drop(l):
            l = l.strip()
            if CFG.abl & 1 and re.match(r"v_(mul_f32|exp_f32|rcp_f32) v\d+, v\d+", l) and int(re.search(r"v(\d+)", l.split(" ")[1]).group(1)) < 128: return True
            if CFG.abl & 1 and re.match(r"v_fma_f32", l): return True
            if CFG.abl & 2 and l.startswith("ds_read_b64_tr_b16"): return True
            if CFG.abl & 4 and l.startswith("v_mfma_f32_16x16x16"): return True
            if CFG.abl & 8 and l.endswith(" lds"): return True
            if CFG.abl & 16 and l.startswith("buffer_load_dwordx4 a["): return True
            return False
        def drop2(l):
            l = l.strip()
            if CFG.abl & 32 and l.endswith("offset:1024 lds") and ("s[40:43]" in l or "s[44:47]" in l): return True
            if CFG.abl & 64 and (l.startswith("ds_write_b128 v195") or (l.startswith("ds_read_b128") and "v196" in l)): return True
            return False
        txt = "\n".join(("    s_nop 0" if drop2(l) else l) for i, l in enumerate(L) if not (i0 < i < i1 and drop(l)))
    if DFL: txt = txt.replace(" lds\n", " %s lds\n" % DFL)
    open(out, "w").write(txt)
    if CFG.stamp: open(out + ".slow", "w").write("\n".join(NSLOW))
```

```python
import sys, math
from lib import *

NAME = "parallel_sum__linear_attn_block__glu_gated_swiglu__prompt_kernel"
LOG2E = 1.4426950408889634
KSTRIDE = 131072
H_OFF = 18 * KSTRIDE
KVP_OFF = H_OFF + 164 * KSTRIDE
PART_OFF = KVP_OFF + 8 * 8 * 4 * 6 * 1024
PSL = 18 * KSTRIDE
FLG_OFF = 0x80000
ST_OFF = 0
CS_OFF = 0x10000
WS_BYTES = 268435456
OOB = 0x7f000000
LDS_BYTES = 163840
SC = "sc0 sc1"
OSC = ""
DFL = ""
def FL(line): return FLG_OFF + 128 * line
FKV, FC, FP, FO, FH = 56, 96, 128, 192, 256

sX, sWQKV, sWO, sW1, sW3, sW2, sOUT, sDBG, sWS = 4, 6, 8, 12, 14, 16, 18, 20, 22
rWS, rWA, rX, rW2, rWO = 24, 28, 36, 40, 44
sWAVE, sI, sXG, sC, sTOK = 48, 50, 51, 78, 79
sFI = 80
sXo, sWo, sXL, sOne2, sCSB, sFC, sROT = 32, 33, 34, 35, 82, 83, 81
MF = "v_mfma_f32_16x16x32_bf16"
MF16 = "v_mfma_f32_16x16x16_bf16"
WSR = "s[%d:%d]" % (rWS, rWS + 3)
XR = "s[%d:%d]" % (rX, rX + 3)
ONE2 = 0x3f803f80

VERB = False
class Cfg:
    stamp = False
    clk = 0
    mapping = 0
    split = 12
    kseq = 4
    sset = 0
    swave = 0
    pf = 4
    rotc = 0
    vmrate = 85
    epirate = 4.5
    age = 16
    window = 60
    defer = 10
    chain = 1
    slate = 0
    qord = 0
    slow = 1
    ipf = 0
    xsp = 12
    so = 1
    abar = (1, 6, 10)
    aboost = 0
    axb = 1
    cpf = 4
    afirst = 0
    af = 14
    ag = 8
    ap = 14
    da = 10
    ka = 4
    s1 = 3
    p1 = 13
    c1 = 17
    s3 = 0
    pc1 = 9
    kc1 = 5
    rsv = 30
    hgap = 0
    mid = 0
    pmid = 3
    fsat = 56
    early = 24
    findl = 5
    abl = 0
    tlb = 0
    ah = 5
    osplit = 1
    po = 5
    lean = 2
    boost = 3
    one = 0
    slp0 = 8
    slp1 = 2
    sum0 = 0
    hw = 1.0
    hrot = 2
    xlead = 2
    cs0 = 4
    cs1 = 4
    cs2 = 18
    cj1 = 8
    cj2 = 3
    pfw = 0
    pfa = 14
    pfs = 3
    init = 0
    cmode = 1
    cdel = 3
    sigd = 7
    gate1 = 35
    c00 = 16
    sig0 = 9
    p0 = 11
    k0 = 6
    gate2 = 68
    dbgwg = -1
    sbase = 0
    sstep = 2
    exs = 5
    edl = 56
    s4 = 6
    p4 = 8
    c4 = 9
    ofirst = 1
    relper = 4
    pfat = -2
CFG = Cfg()

def stamp(a, i, sset=0):
    if CFG.stamp and (sset == CFG.sset or i in (3, 15)):
        a("s_memtime s[100:101]" if CFG.clk else "s_memrealtime s[100:101]")
        a.lg0()
        a("s_mov_b32 s%d, s100" % (84 + i))
def stamp_out(a):
    if not CFG.stamp: return
    a("s_waitcnt vmcnt(0)")
    stamp(a, 15)
    l = a.newlabel("Lst")
    a("s_cmp_lg_u32 s%d, %d" % (sWAVE, CFG.swave))
    a("s_cbranch_scc1 %s" % l)
    a("s_lshl_b32 s3, s2, 6")
    a("s_add_u32 s3, s3, 0xF000000")
    a("v_mov_b32 v1, s3")
    a("s_mov_b64 exec, 1")
    for i in range(8):
        a("v_mov_b32 v2, s%d" % (84 + 2 * i))
        a("v_mov_b32 v3, s%d" % (85 + 2 * i))
        a("global_store_dwordx2 v1, v[2:3], s[%d:%d] offset:%d" % (sWS, sWS + 1, i * 8))
    if CFG.dbgwg >= 0:
        a("s_cmp_lg_u32 s2, %d" % CFG.dbgwg)
        a("s_cbranch_scc1 %s" % l)
        a("s_load_dwordx2 s[20:21], s[0:1], 64")
        a("s_waitcnt lgkmcnt(0)")
        a("v_mov_b32 v1, 0")
        for i in range(16):
            a("s_sub_u32 s3, s%d, s84" % (84 + i)) if i != 1 else a("s_mov_b32 s3, s85")
            a("v_mov_b32 v2, s3")
            a("global_store_dword v1, v2, s[20:21] offset:%d" % (4 * i))
    a.label(l)

vL, vX, vFS, vFP, vTK, vPL = 174, 175, 216, 217, 218, 219

NOPS = {"w": 2, "x": 8, "xr": 8, "csa": 2, "cs": 1, "h": 4, "w2": 2, "h2": 4, "part": 4, "ex": 8, "er": 8, "o": 12, "stf": 4}
CUR = [None]
def chk(a, tag, **over):
    k = tag if isinstance(tag, str) else tag[0]
    n = over.get(k, NOPS.get(k, 1))
    S_ = CUR[0]
    if a.cnt.get(tag, 0) < n and S_ is not None:
        if VERB: print("LATE", tag, a.cnt.get(tag, 0), file=sys.stderr)
        while a.cnt.get(tag, 0) < n:
            if k in ("x", "w", "w2", "h2"):
                assert not S_.inbar or S_.mem, ("needs space behind this barrier", tag)
                S_.refill()
                q = S_.mem
            elif k in ("h", "part"):
                S_.flush_epi(); continue
            else: q = S_.extra
            assert q, ("cannot produce", tag)
            q.pop(0)[1]()
    a.expect(tag, n)
def wvm(a, tags, **over):
    for t in tags: chk(a, t, **over)
    a.wait_vm(lambda t: t in tags)
def wlg(a, tags, **over):
    for t in tags: chk(a, t, **over)
    a.wait_lg(lambda t: t in tags)

def ityp(code):
    out = ""
    for l in code.split("\n"):
        op = l.strip().split(" ")[0]
        if not op: continue
        if op == "s_waitcnt": continue
        if op.startswith("s_"): out += "S"
        elif op.startswith(("v_exp", "v_rcp", "v_sqrt")): out += "T"
        elif op.startswith("v_"): out += "V"
        elif op.startswith("ds_read"): out += "D"
        elif op.startswith("ds_write"): out += "X"
        elif op.startswith("buffer_store_dwordx"): out += "O"
        else: out += "M"
    return out
def I(a, s, c=1):
    def fn(): a(s)
    fn.code = s
    return (ityp(s), fn)
def Q(a, code):
    out = []; ls = [l.strip() for l in code.split("\n") if l.strip()]
    i = 0
    while i < len(ls):
        grp = [ls[i]]
        if ls[i].startswith(("s_cmp", "s_bitcmp")):
            while i + 1 < len(ls) and ls[i + 1].startswith(("s_cmov", "s_cselect")):
                i += 1; grp.append(ls[i])
        out.append(I(a, "\n".join(grp), len(grp)))
        i += 1
    return out
def VM(a, fmt, tag=None, w=1.0):
    def fn(): a.vmem(fmt() if callable(fmt) else fmt, tag)
    fn.vm = w
    return (ityp(fmt), fn)
def run(fns):
    for c, fn in fns: fn()

def signal(a, soff_code, tag=None):
    return [I(a, soff_code),
            ("M", lambda: a.vmem("buffer_store_dword v%d, v%d, %s, s49 offen %s" % (vTK, vFS, WSR, SC), tag))]

LATER = []
NSLOW = []
def slow_path(a, body, name):
    ls, lb, lp = a.newlabel("Lslow"), a.newlabel("Lback"), a.newlabel("Lspin")
    a("s_cbranch_scc1 %s" % ls)
    a.label(lb)
    b = Asm()
    b.label(ls)
    b("s_mov_b32 s59, 40000")
    if CFG.stamp:
        NSLOW.append(name)
        b("s_or_b32 s85, s85, 0x%x" % (1 << (len(NSLOW) - 1)))
    b.label(lp)
    b("s_sleep %d" % CFG.slow)
    body(b)
    b("s_cbranch_scc0 %s" % lb)
    b("s_sub_u32 s59, s59, 1")
    b("s_cmp_lg_u32 s59, 0")
    b("s_cbranch_scc1 %s" % lp)
    b("s_branch %s" % lb)
    LATER.extend(b.lines)
def poll_issue(a, soff_code, tag, dst=None, off=None):
    return [I(a, soff_code),
            ("M", lambda: a.vmem("buffer_load_dword v%d, v%d, %s, s49 offen %s" % (dst or vPL, off or vFP, WSR, SC), tag))]
def poll_check(a, soff_code, tag, mask, dst=None, off=None):
    def f1():
        wvm(a, [tag])
        a("v_cmp_eq_u32 vcc, s%d, v%d" % (sTOK, dst or vPL))
    def f2():
        d = dst or vPL
        a("s_andn2_b32 s61, %s, vcc_lo" % mask)
        def body(b):
            b(soff_code)
            b("buffer_load_dword v%d, v%d, %s, s49 offen %s" % (d, off or vFP, WSR, SC))
            b("s_waitcnt vmcnt(0)")
            b("v_cmp_eq_u32 vcc, s%d, v%d" % (sTOK, d))
            b("s_andn2_b32 s61, %s, vcc_lo" % mask)
        slow_path(a, body, str(tag))
    return [("SV", f1), ("SS", f2)]
def poll_now(a, soff_code, mask):
    tag = ("poll", a.newlabel())
    run(poll_issue(a, soff_code, tag))
    run(poll_check(a, soff_code, tag, mask))

def stats_load(a):
    a("s_lshl_b32 s52, s2, 2")
    a("s_add_u32 s52, s52, s%d" % sWAVE)
    a("v_lshrrev_b32 v40, 5, v%d" % vL)
    a("v_lshl_add_u32 v40, s52, 1, v40")
    a("v_mul_u32_u24 v41, 1152, v40")
    a("v_and_b32 v42, 31, v%d" % vL)
    a("v_lshl_add_u32 v43, v42, 4, v41")
    a("v_cmp_gt_u32 vcc, 8, v42")
    a("v_mov_b32 v45, 0x%x" % OOB)
    a("v_lshlrev_b32 v40, 4, v40")
    a("v_cndmask_b32 v44, v45, v43, vcc")
    a("v_cmp_eq_u32 vcc, 0, v42")
def stats_issue(a):
    a.vmem("buffer_load_dwordx4 v[0:3], v43, %s, 0 offen" % XR, "ln")
    a.vmem("buffer_load_dwordx4 v[4:7], v43, %s, 0 offen offset:512" % XR, "ln")
    a.vmem("buffer_load_dwordx4 v[8:11], v44, %s, 0 offen offset:1024" % XR, "ln")
    a("v_cndmask_b32 v40, v45, v40, vcc")
def stats_compute(a):
    a("s_mov_b32 s49, 0x%x" % ONE2)
    a("s_waitcnt lgkmcnt(0)")
    a("s_add_u32 s%d, s%d, 1" % (sTOK, sTOK))
    a("v_mov_b32 v%d, s%d" % (vTK, sTOK))
    a("v_mov_b32 v17, s%d" % sTOK)
    a("v_mov_b32 v19, s%d" % sTOK)
    a.wait_vm(lambda t: t == "ln")
    for r in range(12):
        a("v_dot2_f32_bf16 v12, v%d, s49, %s" % (r, "0" if r == 0 else "v12"))
        a("v_dot2_f32_bf16 v13, v%d, v%d, %s" % (r, r, "0" if r == 0 else "v13"))
    a("s_mov_b32 s49, %d" % ST_OFF)
    a("s_nop 1")
    for ror in (1, 2, 4, 8):
        a("v_add_f32_dpp v12, v12, v12 row_ror:%d row_mask:0xf bank_mask:0xf" % ror)
        a("v_add_f32_dpp v13, v13, v13 row_ror:%d row_mask:0xf bank_mask:0xf" % ror)
        a("s_nop 0")
    a("v_mov_b32 v14, v12")
    a("v_mov_b32 v15, v13")
    a("s_nop 1")
    a("v_permlane16_swap_b32 v12, v14")
    a("v_permlane16_swap_b32 v13, v15")
    a("s_nop 0")
    a("v_add_f32 v12, v12, v14")
    a("v_add_f32 v13, v13, v15")
    a("v_mul_f32 v12, %s, v12" % f32(1.0 / 576))
    a("v_mul_f32 v13, %s, v13" % f32(1.0 / 576))
    a("v_fma_f32 v13, -v12, v12, v13")
    a("v_max_f32 v13, 0, v13")
    a("v_cvt_pk_bf16_f32 v13, v13, v13")
    a("v_cvt_pk_bf16_f32 v16, -v12, -v12")
    a("v_and_b32 v13, 0xffff0000, v13")
    a("v_add_f32 v13, %s, v13" % f32(1e-5))
    a("v_cvt_pk_bf16_f32 v13, v13, v13")
    a("v_and_b32 v13, 0xffff0000, v13")
    a("v_sqrt_f32 v13, v13")
    a("s_nop 0")
    a("v_cvt_pk_bf16_f32 v13, v13, v13")
    a("v_and_b32 v18, 0xffff0000, v13")
    a.vmem("buffer_store_dwordx4 v[16:19], v40, %s, s49 offen %s" % (WSR, SC), "st")

def lane_fields(a, vq, vrow, vc):
    a("v_lshrrev_b32 v%d, 4, v%d" % (vq, vL))
    a("v_bfe_u32 v%d, v%d, 2, 3" % (vrow, vL))
    a("v_and_b32 v%d, 3, v%d" % (vc, vL))

def dma_lane_off(a, vD, t0, t1, rowbytes, perm=False):
    return [I(a, "v_lshrrev_b32 v%d, 3, v%d" % (t0, vL)),
            I(a, "v_and_b32 v%d, 6, v%d" % (t1, t0)),
            I(a, "v_xor_b32 v%d, v%d, v%d" % (t1, t1, vL)),
            I(a, "v_and_b32 v%d, 7, v%d" % (t1, t1))] + \
           ([I(a, "v_and_b32 v%d, 4, v%d" % (vD, t0)), I(a, "v_add_u32 v%d, v%d, v%d" % (t0, t0, vD))] if perm else []) + [
            I(a, "v_mul_u32_u24 v%d, %d, v%d" % (t0, rowbytes, t0)),
            I(a, "v_lshl_add_u32 v%d, v%d, 4, v%d" % (vD, t1, t0))]

RA = 160
def tr_addrs(a, t0, t1, t2):
    lane_fields(a, t0, t1, t2)
    a("v_lshrrev_b32 v%d, 1, v%d" % (t0, t0))
    a("v_lshlrev_b32 v%d, 10, v%d" % (t0, t0))
    a("v_lshl_add_u32 v%d, v%d, 7, v%d" % (t0, t1, t0))
    a("v_lshl_add_u32 v%d, v%d, 3, v%d" % (t0, t2, t0))
    a("v_lshrrev_b32 v%d, 1, v%d" % (t1, t1))
    for u in range(4):
        a("v_xor_b32 v%d, %d, v%d" % (t2, u, t1))
        a("v_lshl_add_u32 v%d, v%d, 5, v%d" % (RA + u, t2, t0))
        a("v_add_u32 v%d, 0x10000, v%d" % (RA + 4 + u, RA + u))
        a("v_add_u32 v%d, 0x20000, v%d" % (RA + 8 + u, RA + u))

class XStage:
    def __init__(self, a, XO, XA, base, R, reg):
        self.a, self.XO, self.XA, self.base, self.R, self.reg = a, XO, XA, base, R, reg
    def setup_dma(self, t0, t1):
        a = self.a
        a("v_lshrrev_b32 v%d, 3, v%d" % (t0, vL))
        a("v_lshrrev_b32 v%d, 1, v%d" % (t1, t0))
        a("v_xor_b32 v%d, v%d, v%d" % (t1, t1, vL))
        a("v_and_b32 v%d, 7, v%d" % (t1, t1))
        a("s_lshl_b32 s52, s%d, 8" % sI)
        a("s_lshl_b32 s49, s%d, 6" % sWAVE)
        a("s_add_u32 s52, s52, s49")
        a("v_add_u32 v%d, s52, v%d" % (t0, t0))
        a("v_mul_u32_u24 v%d, 1152, v%d" % (t0, t0))
        a("v_lshl_add_u32 v%d, v%d, 4, v%d" % (self.XO, t1, t0))
        a("v_xor_b32 v%d, 64, v%d" % (self.XO + 1, self.XO))
        a("v_add_u32 v%d, %d, v%d" % (self.XO + 2, 2 * (8 * 1152 - 1024), self.XO))
        a("v_add_u32 v%d, %d, v%d" % (self.XO + 3, 3 * (8 * 1152 - 1024), self.XO + 1))
        a("v_add_u32 v%d, %d, v%d" % (self.XO + 1, 8 * 1152 - 1024, self.XO + 1))
        a("s_mul_i32 s%d, s%d, %d" % (sXL, sWAVE, self.R * 8192))
        a("s_add_u32 s%d, s%d, %d" % (sXL, sXL, self.base))
        a("s_lshl_b32 s%d, s%d, 7" % (sXo, sROT))
    def setup_read(self, t0, t1, t2):
        a = self.a
        a("v_and_b32 v%d, 15, v%d" % (t0, vL))
        a("v_lshrrev_b32 v%d, 1, v%d" % (t1, t0))
        a("v_lshrrev_b32 v%d, 4, v%d" % (t2, vL))
        a("v_xor_b32 v%d, v%d, v%d" % (t1, t1, t2))
        a("v_lshlrev_b32 v%d, 7, v%d" % (t0, t0))
        a("v_lshl_add_u32 v%d, v%d, 4, v%d" % (t0, t1, t0))
        a("v_add_u32 v%d, s%d, v%d" % (self.XA, sXL, t0))
        a("v_xor_b32 v%d, 64, v%d" % (self.XA + 1, self.XA))
    def dma(self, p):
        a = self.a
        fns = []
        if p >= self.R: fns.append(("S", lambda: wlg(a, [("xr", p - self.R)])))
        for hf in range(2):
            fns.append(I(a, "s_add_u32 m0, s%d, %d" % (sXL, (p % self.R) * 8192 + hf * 4096)))
            fns.append(I(a, "s_add_u32 s54, s%d, %d" % (sXo, hf * 32 * 1152)))
            for b in range(4):
                fns.append(VM(a, "buffer_load_dwordx4 v%d, %s, s54 offen offset:%d lds" % (self.XO + b, XR, b * 1024), ("x", p)))
        fns.append(I(a, "s_add_u32 s%d, s%d, 128\ns_cmp_ge_u32 s%d, 1152\ns_cmov_b32 s%d, 0" % (sXo, sXo, sXo, sXo), 3))
        return fns
    def job(self, p):
        return ("x", lambda: p < self.R or self.a.cnt.get(("xr", p - self.R), 0) == 8, lambda: self.dma(p))
    def reads(self, p):
        a = self.a
        fns = [("S", lambda: wvm(a, [("x", p)]))]
        for e in range(2):
            for tt in range(4):
                k, b = self.reg(2 * p + e, tt)
                fns.append(("D", lambda k=k, b=b, e=e, tt=tt: a.lds("ds_read_b128 %s, v%d offset:%d" % (R(k, b, 4), self.XA + e, (p % self.R) * 8192 + tt * 2048), ("xr", p))))
        return fns

class Stream:
    def __init__(self, a, kind, base):
        self.a, self.kind, self.base = a, kind, base
        self.slots = []; self.ring = []
        self.nring = 0
        self.pair = set()
        self.next_rd = 0
        self.epi = []; self.deadline = 0; self.epiP = None; self.hold = 0; self.edone = {}; self.short = False
        self.extra = []
        self.inbar = False
        CUR[0] = self
        self.vmacc = 1.0; self.vmrate = CFG.vmrate / 100.0
        self.jobs = []; self.mem = []
        self.pos = 0
    def refill(self):
        if self.mem: return
        blocked = set()
        for j, (cl, ready, make) in enumerate(self.jobs):
            if cl in blocked: continue
            if len(self.a.vm) <= 50 and ready():
                self.mem = make(); self.jobs.pop(j); return
            blocked.add(cl)
    def head(self, q):
        if q and "\n" in getattr(q[0][1], "code", "") and not getattr(q[0][1], "atom", False):
            parts = Q(self.a, q[0][1].code)
            for c, f in parts: f.atom = True
            q[0:1] = parts
        return q[0] if q else None
    def add(self, rd, mf, pair=False):
        if pair and CFG.chain: self.pair.add(len(self.slots))
        self.slots.append((rd, mf))
        self.ring.append(self.nring if rd else None)
        if rd: self.nring += 1
    def cur_ring(self, s):
        while s < len(self.slots) and self.ring[s] is None: s += 1
        return self.ring[s] if s < len(self.slots) else self.nring
    def read_limit(self, s):
        return self.cur_ring(s) + 4
    def pending_reads(self, lim):
        out = []
        while self.next_rd < len(self.slots):
            n = self.next_rd
            if self.ring[n] is None: self.next_rd += 1; continue
            if self.ring[n] > lim: break
            out += self.slots[n][0](self.kind, self.base + 4 * (self.ring[n] % 8), ("f", self.ring[n]))
            self.next_rd += 1
        return out
    def prime(self): run(self.pending_reads(self.cur_ring(self.pos) + 3))
    def set_epi(self, items, deadline, hold=0, ordered=True):
        assert not self.epi
        ops = []
        for n, it in enumerate(items):
            deps = set()
            if ordered:
                if n: deps.add(n - 1)
            else:
                rd, wr = set(it[2]), set(it[3])
                for m in range(n):
                    if (rd | wr) & set(items[m][3]) or wr & set(items[m][2]): deps.add(m)
            ops.append([it[0], it[1], deps, n])
        self.epi = ops; self.edone = {}; self.deadline = deadline; self.hold = self.pos + hold
    def epi_cost(self): return sum(2 if o[0] in "TMOX" and o[0] else len(o[0]) for o in self.epi)
    def epi_pick(self, fits, strict=True):
        if self.pos < self.hold or (strict and self.short): return None
        for o in self.epi[:CFG.window]:
            ok = True
            for d in o[2]:
                if d not in self.edone: ok = False; break
                t, at = self.edone[d]
                if (t == "T" or strict) and t in ("T", "V") and o[0] in ("T", "V") and self.a.n - at < 1: ok = False; break
            if ok and fits(o[0]): return o
        return None
    def epi_run(self, o):
        self.epi.remove(o); o[1](); self.edone[o[3]] = (o[0], self.a.n)
    def flush_epi(self):
        while self.epi:
            o = self.epi_pick(lambda t: True, False)
            if o is None: self.a("s_nop 0"); continue
            self.epi_run(o)
    def emit(self, pre=(), push=0):
        a = self.a
        s = self.pos
        rd, mf = self.slots[s]
        r = self.ring[s]
        if r is not None: a.wait_lg(lambda t: t == ("f", r) or (s in self.pair and t == ("f", r + 1)))
        frag = lambda q: R(self.kind, self.base + 4 * (q % 8), 4)
        mfmas = mf(frag(r) if r is not None else None)
        if s in self.pair:
            assert a.cnt.get(("f", r + 1), 0) == 2
            o = self.slots[s + 1][1](frag(r + 1)); mfmas = [mfmas[0], o[0], mfmas[1], o[1]]
        elif s - 1 in self.pair:
            o = self.slots[s - 1][1](frag(r - 1)); mfmas = [o[2], mfmas[2], o[3], mfmas[3]]
        n = len(mfmas)
        must = list(pre) + (self.pending_reads(self.read_limit(s)) if n == 4 else [])
        self.short = n < 4
        force = 0
        if self.epi and s >= self.hold and (n == 4 or self.deadline - s <= 1):
            left = max(self.deadline - s, 1)
            force = self.epi_cost() - int((left - 1) * CFG.epirate)
            if left * CFG.epirate < self.epi_cost(): force = math.ceil(self.epi_cost() / left)
        if n == 4: self.vmacc = min(self.vmacc + self.vmrate, 2.0)
        cost0 = self.epi_cost()
        for g, m in enumerate(mfmas):
            a(m)
            st = {"pos": 0, "vec": False, "bar": False}
            def place(t, commit=False):
                pos, vec, bar = st["pos"], st["vec"], st["bar"]
                for c in t:
                    if c == "B": pos += 2; bar = True
                    elif c == "S": pos += 1
                    elif c == "D":
                        if vec or bar: return False
                        pos = max(pos, 1) + 1; vec = True
                    elif c == "V": pos = max(pos, 1) + 1; vec = True
                    elif c == "T":
                        pos = max(pos, 1) + 2; vec = True
                    elif c == "M":
                        if pos: return False
                        pos = 3; vec = True
                    elif c == "O":
                        if pos: return False
                        pos = 2; vec = True
                    elif c == "X":
                        if vec or pos > 1: return False
                        pos = 3; vec = True
                if pos > 3: return False
                if commit: st["pos"], st["vec"], st["bar"] = pos, vec, bar
                return True
            def take(lst):
                t, f = lst.pop(0); place(t, True); f()
                if getattr(f, "vm", False): self.vmacc -= f.vm
            free_q = n == 4 and not any(t == "B" for t, f in must)
            nd = sum(1 for t, f in must if t == "D")
            want_d = nd > 0 and (nd >= n - g or g % 2 == 0 or nd > (n - g) // 2)
            def heads():
                out = []
                if not any(t == "B" for t, f in must):
                    self.refill()
                    for lst in (self.mem, self.extra):
                        h = self.head(lst)
                        if h is None: continue
                        if lst is self.mem and getattr(h[1], "vm", False) and self.vmacc < 1: continue
                        out.append(lst)
                return out
            def drop_free():
                ch = True
                while ch:
                    ch = False
                    for lst in heads():
                        if lst[0][0] == "": take(lst); ch = True
                    o = self.epi_pick(lambda t: t == "") if free_q or not must or must[0][0] != "B" else None
                    if o: self.epi_run(o); ch = True
            while must and must[0][0] == "B":
                self.inbar = True; take(must); self.inbar = False
            st["w"] = False
            if g == n - 1 and n == 4:
                nx = self.cur_ring(s + 1)
                if (("f", nx) in a.lg or (s + 1 in self.pair and ("f", nx + 1) in a.lg)) and a.cnt.get(("f", nx), 0) % 2 == 0:
                    two = a.cnt.get(("f", nx + 1), 0) == 2
                    a.wait_lg(lambda t: t == ("f", nx) or (two and t == ("f", nx + 1))); st["w"] = True
            drop_free()
            done_heavy = False
            if not want_d and not (must and must[0][0] == "V"):
                for lst in heads():
                    if lst[0][0] in ("M", "O", "X") and place(lst[0][0]): take(lst); done_heavy = True; break
                if not done_heavy:
                    o = self.epi_pick(lambda t: t in ("O", "M", "X") and place(t))
                    if o: place(o[0], True); self.epi_run(o); done_heavy = True
            if not done_heavy:
                if st["w"]: place("S", True)
                if st["pos"] == 0:
                    for lst in heads():
                        if lst[0][0] == "S" or (lst[0][0] in ("SS", "SV") and not want_d): take(lst); break
                    else:
                        o = self.epi_pick(lambda t: t == "S")
                        if o: place("S", True); self.epi_run(o)
                    drop_free()
                if must and must[0][0] == "D" and want_d and place("D"): take(must)
                elif not want_d:
                    for lst in heads():
                        if lst[0][0] == "D" and place("D"): take(lst); break
                    else:
                        o = self.epi_pick(lambda t: t == "D" and place(t))
                        if o: place("D", True); self.epi_run(o)
            while True:
                drop_free()
                if must and must[0][0] == "V" and place("V"): take(must); continue
                for lst in heads():
                    if lst[0][0] and set(lst[0][0]) <= set("SVT") and place(lst[0][0]): take(lst); break
                else:
                    o = self.epi_pick(lambda t: t == "T" and place(t)) or self.epi_pick(lambda t: t in ("V", "S") and place(t))
                    if o is None: break
                    place(o[0], True); self.epi_run(o)
            want = force * (g + 1) / n
            while self.epi and cost0 - self.epi_cost() < want:
                o = self.epi_pick(lambda t: t in ("V", "T", "S", "") or g == n - 1, False)
                if o is None: break
                self.epi_run(o)
            if g == n - 1:
                while must: must.pop(0)[1]()
                k = push
                while k > 0 and self.head(self.extra): self.extra.pop(0)[1](); k -= 1
        self.pos += 1

def tr_read(a, off_fn, u):
    def rd(kind, reg, tag):
        off = off_fn()
        return [("D", lambda h=h: a.lds("ds_read_b64_tr_b16 %s, v%d offset:%d" % (R(kind, reg + 2 * h, 2), RA + 4 * (off >> 16) + u, (off & 0xffff) + h * 2048), tag)) for h in range(2)]
    return rd

WF = 128
HRING = 10
GORDER = [2, 1, 0]
def acc2(c, tt):
    m = c >> 1
    if c & 1: return ("a", 160 + 16 * m + 4 * tt)
    return ("v", (16 * m if m < 4 else 224 + 16 * (m - 4)) + 4 * tt)
def hr(st, tt): return A(16 * (st % HRING) + 4 * tt, 4)
sPX = 56
vEW, vER, vXP, vOU = 195, 196, 192, 193
sLS = 74
TS = [4, 5, 6, 10, 11, 20]
HB = {0: 12, 1: 13, 2: 62}
WB = {0: 14, 1: 15, 2: 3}
def rot_bases(a, other):
    if CFG.hrot == 2:
        a("s_add_u32 s61, s68, s%d" % other)
        a("s_mul_i32 s60, s61, 43")
        a("s_lshr_b32 s60, s60, 7")
        a("s_mul_i32 s60, s60, 3")
        a("s_sub_u32 s61, s61, s60")
    else: a("s_mov_b32 s61, s68")
    for k in range(3):
        if CFG.hrot:
            a("s_add_u32 s52, s61, %d" % k)
            a("s_cmp_ge_u32 s52, 3")
            a("s_cselect_b32 s60, 3, 0")
            a("s_sub_u32 s52, s52, s60")
        else: a("s_mov_b32 s52, %d" % k)
        a("s_mul_i32 s60, s52, %d" % (192 * 1152))
        a("s_add_u32 s%d, s63, s60" % WB[k])
        a("s_mul_i32 s60, s52, %d" % (6 * KSTRIDE))
        a("s_add_u32 s%d, s62, s60" % HB[k])

class P2:
    def __init__(self, a, steps, VO, VS, VX, atype):
        self.a = a; self.steps = steps; self.VO = VO; self.VS = VS; self.VX = VX; self.atype = atype
        self.loc = {}
        self.free = []
        self.visible = set()
        self.cur = 0
        NS, K = len(steps), (CFG.ka if atype else CFG.kseq)
        D = CFG.da if atype else CFG.defer
        def block(s0, s1, cs):
            out = []
            for st in range(s0, s1, 2): out += [(k, c) for c in cs for k in range(st, min(st + 2, s1))]
            return out
        self.order = block(0, NS - D, range(12)) + block(NS - D, NS - K, range(4 if atype else 2, 12))
        self.seq0 = len(self.order)
        self.groups = []
        for keep, n in [((8, 10), K), ((4, 6), K)] + ([((0, 2), D)] if atype else [((2,), K), ((0,), D)]):
            self.order += block(NS - n, NS, [c + 1 for c in keep])
            e1 = len(self.order)
            self.order += block(NS - n, NS, keep)
            self.groups.append((keep, e1, len(self.order)))
        self.units = []
        for st, c in self.order:
            if (st, c >> 2) not in self.units: self.units.append((st, c >> 2))
    def setup_s(self):
        a = self.a
        srd(a, rW2, sW2, 4608 * 1152)
        srd(a, rWO, sWO, 576 * 1152)
        a("s_lshl_b32 s66, s%d, 11" % sWAVE)
    def setup_vo(self, t0, t1, half_code, sTile=sI):
        a = self.a
        return dma_lane_off(a, self.VO, t0, t1, 1152) + Q(a, """s_mul_i32 s52, s68, 384
            s_and_b32 s60, s{W}, 1
            s_mul_i32 s60, s60, {R16}
            s_add_u32 s52, s52, s60
            v_add_u32 v{VO}, s52, v{VO}
            v_add_u32 v{VO1}, {D}, v{VO}
            {HALF}
            s_lshl1_add_u32 s52, s{I}, s52
            s_mul_i32 s9, s52, 3
            s_add_u32 s9, s9, s68
            s_lshl_b32 s9, s9, 7
            s_add_u32 s9, s9, {FP}
            s_and_b32 s60, s{W}, 1
            s_lshl1_add_u32 s52, s52, s60
            s_lshl_b32 s52, s52, 12
            v_lshl_add_u32 v{VX}, v{L}, 4, s52""".format(W=sWAVE, R16=16 * 1152, VO=self.VO, VO1=self.VO + 1, D=8 * 1152 - 1024, HALF=half_code, FP=FL(FP), I=sTile, VX=self.VX, L=vL))
    def setup_special(self, t0, t1, t3):
        a = self.a
        for k in range(2):
            a("s_and_b32 s49, s%d, 1" % sWAVE)
            a("s_lshl_b32 s49, s49, 4")
            a("v_lshrrev_b32 v%d, 3, v%d" % (t0, vL))
            a("v_add3_u32 v%d, s49, v%d, %d" % (t0, t0, 8 * k))
            a("v_lshrrev_b32 v%d, 4, v%d" % (t1, t0))
            a("v_mul_u32_u24 v%d, 72, v%d" % (t1, t1))
            a("v_bfe_u32 v%d, v%d, 2, 2" % (t3, t0))
            a("v_lshl_add_u32 v%d, v%d, 4, v%d" % (t1, t3, t1))
            a("v_lshrrev_b32 v%d, 1, v%d" % (t3, t3))
            a("v_lshl_add_u32 v%d, v%d, 2, v%d" % (t1, t3, t1))
            a("v_and_b32 v%d, 3, v%d" % (t3, t0))
            a("v_add3_u32 v%d, v%d, v%d, 16" % (t1, t1, t3))
            a("v_sub_u32 v%d, v%d, v%d" % (t1, t1, t0))
            a("v_mul_u32_u24 v%d, 1152, v%d" % (t1, t1))
            a("v_add_u32 v%d, v%d, v%d" % (self.VS + k, self.VO + k, t1))
    def h_issue(self, st):
        a = self.a
        pl, row, kind = self.steps[st]
        fns = [I(a, "s_add_u32 s54, s%d, %d" % (HB[kind] if kind in HB else (7 if kind == "woa" else 64), pl * KSTRIDE))]
        for tt in range(4):
            fns.append(VM(a, "buffer_load_dwordx4 %s, v%d, %s, s54 offen offset:%d %s" % (hr(st, tt), self.VX, WSR, tt * 1024, SC), ("h2", st), CFG.hw))
        return fns
    def dma_issue(self, st, ln):
        a = self.a
        pl, row, kind = self.steps[st]
        r = rW2 if kind in HB else rWO
        vo = self.VS if kind == "wos" else self.VO
        sl = self.free.pop(0)
        self.loc[(st, ln)] = sl
        return [I(a, "s_add_u32 m0, s66, %d" % (sl * 8192)),
                I(a, "s_add_u32 s55, s%d, %d" % (WB[kind] if kind in WB else 65, row * 1152 + ([2, 0, 1][ln] if self.atype else ln) * 128))] + \
               ([I(a, "%s s55, s55, s%d" % (["s_add_u32", "s_sub_u32"][ln], sLS))] if ln < 2 and not self.atype else []) + [
                VM(a, "buffer_load_dwordx4 v%d, s[%d:%d], s55 offen lds" % (vo, r, r + 3), ("w2", st, ln)),
                VM(a, "buffer_load_dwordx4 v%d, s[%d:%d], s55 offen offset:1024 lds" % (vo + 1, r, r + 3), ("w2", st, ln))]
    def jobs(self, first, w_ok, h_ok):
        out = []; hs = set(range(first))
        for st, ln in self.units:
            if st not in hs:
                hs.add(st)
                def mk(st=st):
                    self.hpos = CUR[0].pos
                    return self.h_issue(st)
                out.append(("h2", lambda st=st: st - HRING < self.cur and h_ok(st) and CUR[0].pos >= self.hpos + CFG.hgap, mk))
            if (st, ln) in self.loc: continue
            out.append(("w2", lambda st=st: len(self.free) > self.reserve and w_ok(st), lambda st=st, ln=ln: self.dma_issue(st, ln)))
        return out
    reserve = 0
    hpos = -100
    def add_slots(self, S_):
        a = self.a
        self.s0 = len(S_.slots)
        fixed = set()
        self.first = set()
        n_ = 0
        while n_ + 1 < len(self.order):
            if self.order[n_ + 1] == (self.order[n_][0] + 1, self.order[n_][1]): self.first.add(n_); n_ += 2
            else: n_ += 1
        for n_, (st, c) in enumerate(self.order):
            def rd(kind, reg, tag, st=st, c=c):
                assert (st, c >> 2) in self.visible, (st, c)
                off = self.loc[(st, c >> 2)] * 8192
                ra = RA + 4 * (off >> 16) + (c & 3)
                out = []
                if ra not in fixed:
                    fixed.add(ra); out.append(I(a, "v_xor_b32 v%d, s%d, v%d" % (ra, sPX, ra)))
                return out + tr_read(a, lambda: off, c & 3)(kind, reg, tag)
            def mf(w, st=st, c=c):
                return ["%s %s, %s, %s, %s" % (MF, R(*acc2(c, tt), 4), w, hr(st, tt), "0" if st == 0 else R(*acc2(c, tt), 4)) for tt in range(4)]
            S_.add(rd, mf, n_ in self.first)
    def exchange(self, g, tmp):
        a = self.a
        keep = self.groups[g][0]
        send = []; recv = []; fin = []
        def adj(q, reg, cur, want):
            if cur[0] != want: q.append(I(a, "v_add_u32 v%d, 0x%x, v%d" % (reg, (want - cur[0]) & 0xffffffff, reg))); cur[0] = want
        for k, (c, tt) in enumerate([(c, tt) for c in keep for tt in range(4)]):
            off = self.scratch[k >> 1] * 8192 + (k & 1) * 4096
            adj(send, vEW, self.ew, off & ~0xffff)
            send.append(("X", lambda c=c, tt=tt, off=off: a.lds("ds_write_b128 v%d, %s offset:%d" % (vEW, R(*acc2(c + 1, tt), 4), off & 0xffff), ("ex", g))))
            adj(recv, vER, self.er, off & ~0xffff)
            recv.append(("D", lambda k=k, off=off: a.lds("ds_read_b128 %s, v%d offset:%d" % (V(tmp + 4 * k, 4), vER, off & 0xffff), ("er", g))))
        for n, c in enumerate(keep):
            for tp in range(2):
                r0 = acc2(c, 2 * tp)[1]; t = tmp + 16 * n + 8 * tp
                for i in range(8): fin.append(I(a, "v_add_f32 v%d, v%d, v%d" % (r0 + i, r0 + i, t + i)) + ([r0 + i, t + i], [r0 + i]))
                for i in range(4): fin.append(I(a, "v_cvt_pk_bf16_f32 v%d, v%d, v%d" % (r0 + i, r0 + 2 * i, r0 + 2 * i + 1)) + ([r0 + 2 * i, r0 + 2 * i + 1], [r0 + i]))
                fin.append(VM(a, "buffer_store_dwordx4 %s, v%d, %s, s%d offen offset:%d %s" % (V(r0, 4), vXP, WSR, TS[c >> 1], tp * 1024, SC), ("part", g)) + ([r0, r0 + 1, r0 + 2, r0 + 3], []))
        return send, recv, fin
    def fin_setup(self):
        a = self.a
        code = """s_mul_i32 s75, s67, 36
            s_mul_i32 s52, s68, 12
            s_lshr_b32 s60, s{W}, 1
            s_add_u32 s52, s52, s60
            s_add_u32 s75, s75, s52
            s_lshl_b32 s75, s75, 16
            s_add_u32 s75, s75, {PART}
            """.format(W=sWAVE, PART=PART_OFF)
        if self.atype:
            for m in range(6): code += "s_add_u32 s%d, s75, %d\n" % (TS[m], ([2, 0, 1][m >> 1] * 4 + 2 * (m & 1)) * 65536)
        else:
            code += "s_lshl_b32 s60, s%d, 11\ns_and_b32 s61, s67, 1\ns_lshl_b32 s61, s61, 17\n" % sLS
            for m in range(6):
                code += "s_add_u32 s%d, s75, %d\n" % (TS[m], ((m >> 1) * 4 + 2 * (m & 1)) * 65536)
                if m >> 1 < 2: code += "%s s%d, s%d, s60\n" % (["s_add_u32", "s_sub_u32"][m >> 1], TS[m], TS[m])
                code += "%s s%d, s%d, s61\n" % (["s_add_u32", "s_sub_u32"][m & 1], TS[m], TS[m])
        code += """s_mul_i32 s60, s67, {PSL}
            s_sub_u32 s73, s{T0}, s60
            s_sub_u32 s75, s73, {PART}
            s_lshr_b32 s75, s75, 11
            v_lshlrev_b32 v194, 4, v{L}
            v_sub_u32 v{XP}, v{VX}, v194
            v_lshrrev_b32 v{OU}, 6, v{XP}
            v_lshrrev_b32 v{XP}, 1, v{XP}
            v_add_u32 v{XP}, v{XP}, v194
            s_lshl_b32 s52, s{W}, 10
            v_add_u32 v{EW}, s52, v194
            v_xor_b32 v{ER}, 0x800, v{EW}
            v_and_b32 v194, 15, v{L}
            v_add_u32 v{OU}, v{OU}, v194
            v_mul_u32_u24 v{OU}, 1152, v{OU}
            v_lshrrev_b32 v194, 4, v{L}
            v_lshl_add_u32 v{OU}, v194, 3, v{OU}
            s_mov_b32 s76, 0x3f80
            s_mov_b32 s77, 0x3f800000""".format(PSL=PSL, T0=TS[0], PART=PART_OFF, L=vL, XP=vXP, VX=self.VX, OU=vOU, W=sWAVE, EW=vEW, ER=vER)
        b_ = Asm(); srd(b_, rWA, sOUT, 2048 * 1152)
        q = Q(a, code + "\n" + "\n".join(b_.lines))
        self.xl = []
        for tt in range(4):
            self.xl.append([I(a, "s_add_u32 s52, s75, %d" % (tt * 16 * 1152))] +
                           [VM(a, "buffer_load_dwordx2 %s, v%d, %s, s52 offen offset:%d" % (V(XB + 8 * n + 2 * tt, 2), vOU, XR, 64 * n), "x3") for n in range(len(self.groups[-1][0]))])
        return q
    def main(self, S_, hooks, dead0):
        a = self.a
        NG = len(self.groups)
        seen = set()
        self.ew = [0]; self.er = [0]
        def psig(k): return signal(a, "s_lshl2_add_u32 s49, s67, s9\ns_add_u32 s49, s49, %d" % (32 * k))
        N = len(self.order)
        nst = {}
        for st, c in self.order[:self.seq0]: nst[st] = nst.get(st, 0) + 1
        bars = {}; e = 0
        for st in sorted(nst):
            e += nst[st]; bars[e - 5] = st
        bars[self.seq0 + 2] = None
        if self.atype:
            for x in range(self.groups[1][2], self.groups[2][1], 8): bars[x] = None
        ev = {}
        tmp = [64, 96, 64, 80]
        t = 0
        for g, (keep, e1, e2) in enumerate(self.groups):
            n = len(keep)
            s_send = max(e1 + 2, t)
            s_bar = s_send + (CFG.exs if n == 2 else (CFG.exs + 1) // 2)
            s_fin = max(e2 + 2, s_bar + 2 * n + 1)
            ev.setdefault(s_send, []).append(("send", g)); ev.setdefault(s_bar, []).append(("recv", g)); ev.setdefault(s_fin, []).append(("fin", g))
            bars[s_send] = None; bars[s_bar] = None
            t = s_bar + 2 * n + 1
        assert max(s for s in ev if ("fin", NG - 1) not in ev[s]) < N, (ev, N)
        s_early = N - CFG.early
        if not self.atype: bars[s_early] = None
        s_mid = N - CFG.mid if CFG.mid and not self.atype else -1
        if s_mid > 0: bars[s_mid] = None
        keep = self.groups[-1][0]
        def pb(r, n):
            k = r * len(keep) + n
            return 96 + 8 * k if k < 4 else 32 + 8 * (k - 4)
        s_af = N - CFG.af if CFG.af and self.atype else -1
        if s_af > 0: bars[s_af] = None
        def ploads(r):
            q = []
            if self.atype: q.append(I(a, "s_add_u32 s58, s73, %d" % (r * PSL)))
            elif r == 0: q.append(I(a, "s_add_u32 s58, s73, %d" % (4 * PSL)))
            else: q += Q(a, "s_xor_b32 s52, s67, %d\ns_mul_i32 s52, s52, %d\ns_add_u32 s58, s73, s52" % (4 - r, PSL))
            for n in range(len(keep)):
                if n: q.append(I(a, "s_add_u32 s58, s58, %d" % (2 * 65536)))
                for tp in range(2):
                    q.append(VM(a, "buffer_load_dwordx4 %s, v%d, %s, s58 offen offset:%d %s" % (V(pb(r, n) + 4 * tp, 4), vXP, WSR, tp * 1024, SC), ("p", r)))
            return q
        last = {}
        for s, (st, c) in enumerate(self.order): last[(st, c >> 2)] = s + 1
        freed = set()
        ex = {}
        cnt = lambda g: dict(ex=4 * len(self.groups[g][0]), er=4 * len(self.groups[g][0]), part=2 * len(self.groups[g][0]))
        first_bar = min(bars)
        for s, (st, c) in enumerate(self.order):
            if st not in seen:
                seen.add(st)
                self.cur = st
                if VERB: a.cm("HS p2 step %d" % st)
                if st < 22: stamp(a, 4 + st // 2, 3)
                wvm(a, [("h2", st)])
                if s in self.first: seen.add(st + 1); wvm(a, [("h2", st + 1)])
                if st in (0, 8): stamp(a, 10 + st // 8)
            pre = []
            r = s - self.seq0
            if VERB and r > 0 and r % 10 == 0: a.cm("HS p2 tail %d" % r)
            if r >= 0 and r % 8 == 0 and r < 64: stamp(a, 4 + r // 8, 4)
            if r == -CFG.rsv: self.reserve = 4
            evs = ev.get(s, [])
            if s in bars:
                nxt = min([b for b in bars if b > s] + [N])
                lim = S_.read_limit(self.s0 + nxt - 1) - S_.ring[self.s0]
                need = []
                for st2, c2 in self.order[:lim + 1]:
                    u = (st2, c2 >> 2)
                    if u not in self.visible and u not in need: need.append(u)
                hk = hooks.get(bars[s], {})
                tags = [("w2",) + u for u in need] + hk.get("bar", [])
                lg = []; ptags = []
                aft = list(hk.get("after", []))
                dead = [u for u in last if last[u] < s and u not in freed]
                newfree = [self.loc[u] for u in dead] + (dead0 if s == first_bar else [])
                for kind, g in evs:
                    if kind == "send" and g > 0: lg.append(("er", g - 1))
                    if kind == "recv": lg.append(("ex", g)); aft += ex[g][1]
                if s == s_early and not self.atype:
                    ptags.append(("part", 0)); aft += psig(0)
                if s == s_af:
                    ptags.append(("part", 1))
                    aft += psig(1)
                if s == s_mid:
                    ptags.append(("part", 1)); aft += psig(2)
                if tags or lg or ptags or aft or (newfree and S_.jobs):
                    def bar(tags=tags, lg=lg, ptags=ptags):
                        for t_ in lg: wlg(a, [t_], **cnt(t_[1]))
                        for t_ in ptags: wvm(a, [t_], **cnt(t_[1]))
                        wvm(a, tags)
                        a("s_barrier")
                    pre.append(("B", bar))
                    self.visible.update(need); freed.update(dead); self.free += newfree
                    S_.extra += aft
            for kind, g in evs:
                if kind == "send":
                    if g == 0:
                        self.scratch = sorted(self.free[:4]); self.free = self.free[4:]; self.reserve = 0
                        assert len(self.scratch) == 4
                    ex[g] = self.exchange(g, tmp[g])
                    S_.extra += ex[g][0]
                if kind == "recv" and g >= 2: chk(a, ("part", 0), **cnt(0))
                if kind == "fin":
                    wlg(a, [("er", g)], **cnt(g))
                    S_.flush_epi()
                    S_.set_epi(ex[g][2], S_.pos + CFG.findl * len(self.groups[g][0]), 0, False)
            if r == -CFG.fsat: S_.extra += self.fin_setup()
            if r > -CFG.fsat and (r + CFG.fsat) % CFG.xsp == 0 and self.xl: S_.extra += self.xl.pop(0)
            if s_af > 0 and s == N - CFG.ag - CFG.ap: S_.extra += poll_issue(a, "s_mov_b32 s49, s9", "pla")
            if s_af > 0 and s == N - CFG.ag:
                S_.extra += poll_check(a, "s_mov_b32 s49, s9", "pla", "0xf") + ploads(0) + ploads(1) + ploads(2) + ploads(3)
            if s_mid > 0 and s == N - CFG.pmid:
                S_.extra += Q(a, "s_and_b32 s8, s67, 2\ns_lshr_b32 s8, 0xc0000, s8\ns_or_b32 s8, s8, 0x1000") + poll_issue(a, "s_mov_b32 s49, s9", "plm")
            S_.emit(pre)
        assert not S_.jobs and not S_.mem
        run(S_.extra); S_.extra = []
        S_.flush_epi()
        if VERB: a.cm("END")
        stamp(a, 12); stamp(a, 12, 4)
        CUR[0] = None
        if s_af < 0:
            wvm(a, [("part", NG - 2)], **cnt(NG - 2))
            a("s_barrier")
            run(psig(1))
        stamp(a, 13)
        done = [0, 1, 2, 3] if s_af > 0 else []
        if s_mid > 0:
            run(poll_check(a, "s_mov_b32 s49, s9", "plm", "s8"))
            done = [0, 1, 2]
            for r in done: run(ploads(r))
        vmkeep = [t_ for t_ in a.vm if t_ is not None and t_[0] == "p"]
        lw = a.newlabel("Lfw")
        if s_af < 0:
            a("s_cmp_lg_u32 s%d, 3" % sWAVE)
            a("s_cbranch_scc1 %s" % lw)
        if s_af > 0: a("s_nop 7")
        elif self.atype: spin(a, "s_mov_b32 s49, s9", "0xf", CFG.slp0)
        else:
            if s_mid > 0:
                a("s_xor_b32 s52, s67, 1")
                a("s_lshl_b32 s52, 0x100, s52")
            else:
                a("s_lshl_b32 s52, 0x100, s67")
                a("s_andn2_b32 s52, 0x1f00, s52")
            spin(a, "s_mov_b32 s49, s9", "s52", CFG.slp1)
            a("s_cmp_lg_u32 s2, 64")
            a("s_cbranch_scc1 %s" % lw)
            a("s_mov_b32 s49, 0x%x" % FL(0))
            a("buffer_store_dword v%d, v%d, %s, s49 offen" % (vTK, vFS, WSR))
        a.label(lw)
        if s_af < 0: a("s_barrier")
        stamp(a, 14)
        assert "x3" not in a.vm
        if s_af < 0: a.vm = vmkeep
        for r in range(4):
            if r not in done: run(ploads(r))
        wlg(a, [("er", NG - 1)], **cnt(NG - 1))
        for n, c in enumerate(keep):
            r0 = acc2(c, 0)[1]
            for i in range(0, 16, 2): a("v_pk_add_f32 %s, %s, %s" % (V(r0 + i, 2), V(r0 + i, 2), V(tmp[NG - 1] + 16 * n + i, 2)))
            for i in range(8):
                a("v_dot2_f32_bf16 v%d, v%d, s76, v%d" % (r0 + 2 * i, XB + 8 * n + i, r0 + 2 * i))
                a("v_dot2_f32_bf16 v%d, v%d, s77, v%d" % (r0 + 2 * i + 1, XB + 8 * n + i, r0 + 2 * i + 1))
        for r in range(4):
            a.wait_vm(lambda t_: t_ == ("p", r))
            for n, c in enumerate(keep):
                r0 = acc2(c, 0)[1]
                for i in range(8):
                    p = pb(r, n) + i
                    a("v_dot2_f32_bf16 v%d, v%d, s76, v%d" % (r0 + 2 * i, p, r0 + 2 * i))
                    a("v_dot2_f32_bf16 v%d, v%d, s77, v%d" % (r0 + 2 * i + 1, p, r0 + 2 * i + 1))
        a("s_nop 2")
        for n, c in enumerate(keep):
            r0 = acc2(c, 0)[1]
            for i in range(8): a("v_cvt_pk_bf16_f32 v%d, v%d, v%d" % (r0 + i, r0 + 2 * i, r0 + 2 * i + 1))
            for tt in range(4):
                a("s_add_u32 s52, s75, %d" % (tt * 16 * 1152))
                a("buffer_store_dwordx2 %s, v%d, s[%d:%d], s52 offen offset:%d" % (V(r0 + 2 * tt, 2), vOU, rWA, rWA + 3, 64 * n))

XB = 176

def hilo(a, v, t0, t1):
    return [I(a, "v_cvt_pk_bf16_f32 v%d, v%d, v%d" % (t0, v, v)),
            I(a, "v_and_b32 v%d, 0xffff0000, v%d" % (t0, t0)),
            I(a, "v_sub_f32 v%d, v%d, v%d" % (t1, v, t0)),
            I(a, "v_cvt_pk_bf16_f32 v%d, v%d, v%d" % (v, t0, t1))]

def stats_fetch(a, kind, base, vaddr):
    fns = [I(a, "s_mov_b32 s49, %d" % ST_OFF)]
    for tt in range(4):
        fns.append(("M", lambda tt=tt: a.vmem("buffer_load_dwordx4 %s, v%d, %s, s49 offen offset:%d %s" % (R(kind, base + 4 * tt, 4), vaddr, WSR, 256 * tt, SC), "stf")))
    return fns
def stats_check(a, kind, base, vaddr, t0):
    code = []
    for n, r in enumerate([base + 4 * tt + k for tt in range(4) for k in (1, 3)]):
        if kind == "a":
            code.append("v_accvgpr_read_b32 v%d, a%d" % (t0, r)); r = t0
        if n == 0: code.append("v_cmp_eq_u32 s[60:61], s%d, v%d" % (sTOK, r))
        else: code += ["v_cmp_eq_u32 vcc, s%d, v%d" % (sTOK, r), "s_and_b64 s[60:61], s[60:61], vcc"]
    def last():
        a("s_cmp_lg_u64 s[60:61], -1")
        def body(b):
            b("s_mov_b32 s49, %d" % ST_OFF)
            for tt in range(4):
                b("buffer_load_dwordx4 %s, v%d, %s, s49 offen offset:%d %s" % (R(kind, base + 4 * tt, 4), vaddr, WSR, 256 * tt, SC))
            b("s_waitcnt vmcnt(0)")
            b("\n".join(code))
            b("s_cmp_lg_u64 s[60:61], -1")
        slow_path(a, body, "stats")
    return [("S", lambda: wvm(a, ["stf"]))] + [I(a, c) for c in code] + [("SS", last)]
def stats_addr(a, dst):
    return [I(a, "v_and_b32 v%d, 15, v%d" % (dst, vL)),
            I(a, "s_lshl_b32 s52, s%d, 12\ns_lshl_b32 s60, s%d, 10\ns_add_u32 s52, s52, s60\nv_lshl_add_u32 v%d, v%d, 4, s52" % (sI, sWAVE, dst, dst), 4)]

def path_mlp(a):
    vD, TMP, HS, ONES, CSA, ST = 172, 176, 184, 188, 192, 200
    vCSR, vCSW, vCSL, vP2 = 220, 221, 222, 223
    def xreg(kk, tt):
        i = kk * 4 + tt
        return ("a", 4 * i) if i < 64 else ("v", 224 + 4 * (i - 64))
    def xr(kk, tt): return R(*xreg(kk, tt), 4)
    def acc(P, ti, tt): return 64 * P + 16 * ti + 4 * tt
    t0, t1, t2, t3 = 64, 65, 66, 67
    XS = XStage(a, TMP, TMP + 4, 8 * 8192, 3, xreg)
    WLIM = 576 * 9216
    loc = {}
    WT = [sWo, 4, 5, 6, 7, 10, 11, 20, 21]
    issued_at = {}; now = [0]
    free = list(range(8))
    def dma_issue(L, kk):
        sl = free.pop(0); loc[(L, kk)] = sl
        fns = [I(a, "s_add_u32 m0, s53, %d" % (sl * 8192)),
               I(a, "s_add_u32 s55, s%d, %d" % (WT[kk >> 1], (kk & 1) * 32 * 9216 + L * 128)),
               VM(a, "buffer_load_dwordx4 v%d, s[%d:%d], s55 offen lds" % (vD, rWA, rWA + 3), ("w", L, kk)),
               VM(a, "buffer_load_dwordx4 v%d, s[%d:%d], s55 offen offset:1024 lds" % (vD + 1, rWA, rWA + 3), ("w", L, kk))]
        if kk & 1 and L == 0 and kk < 17:
            o, n_ = WT[kk >> 1], WT[(kk >> 1) + 1]
            fns.append(I(a, "s_add_u32 s%d, s%d, %d\ns_cmp_ge_u32 s%d, %d\ns_cmov_b32 s%d, 0" % (n_, o, 64 * 9216, n_, WLIM, n_), 3))
        issued_at[(L, kk)] = now[0]
        return fns
    def c_issue(L, k):
        key = (10 + L, k)
        sl = free.pop(0); loc[key] = sl
        issued_at[key] = now[0]
        ld = lambda v, o: VM(a, "buffer_load_dwordx4 v%d, s[%d:%d], s55 offen%s lds" % (v, rWA, rWA + 3, o), ("w",) + key)
        if k < 2:
            return [I(a, "s_add_u32 m0, s53, %d" % (sl * 8192)), I(a, "s_add_u32 s55, s%d, %d" % (sWo, k * 32 * 9216 + L * 128)), ld(vD, ""), ld(vD + 1, " offset:1024")]
        return [I(a, "s_add_u32 m0, s53, %d" % (sl * 8192)), I(a, "s_lshr_b32 s55, s%d, 2" % sWo), I(a, "s_add_u32 s55, s55, %d" % (512 * 9216 + 128)), ld(vD, ""),
                I(a, "s_sub_u32 s55, s55, %d" % (16 * 9216 - 128)), ld(vD + 1, " offset:1024")]
    assert CFG.rotc == 0
    XS.setup_dma(t0, t1)
    run(XS.dma(0))
    a("s_cmp_ge_u32 s%d, 2" % sWAVE)
    a("s_cselect_b32 s%d, s%d, s%d" % (rWA, sW3, sW1))
    a("s_cselect_b32 s%d, s%d, s%d" % (rWA + 1, sW3 + 1, sW1 + 1))
    a("s_and_b32 s%d, s%d, 0xffff" % (rWA + 1, rWA + 1))
    a("s_mov_b32 s%d, %d" % (rWA + 2, WLIM))
    a("s_mov_b32 s%d, 0x20000" % (rWA + 3))
    a("s_mul_i32 s70, s%d, 3" % sXG)
    a("s_add_u32 s70, s70, s%d" % sC)
    run(dma_lane_off(a, vD, t0, t1, 9216, True))
    a("s_mul_i32 s52, s70, 384")
    a("s_and_b32 s49, s%d, 1" % sWAVE)
    a("s_mul_i32 s49, s49, %d" % (4 * 9216))
    a("s_add_u32 s52, s52, s49")
    a("v_add_u32 v%d, s52, v%d" % (vD, vD))
    a("v_add_u32 v%d, %d, v%d" % (vD + 1, 16 * 9216 - 1024, vD))
    a("s_lshl_b32 s53, s%d, 11" % sWAVE)
    a("s_mul_i32 s%d, s%d, %d" % (sWo, sROT, 64 * 9216))
    for kk in range(2 if CFG.lean else 4): run(dma_issue(0, kk))
    if CFG.slate: stats_issue(a)
    code_prefetch(a)
    if not CFG.lean: run(XS.dma(1))
    if CFG.init >= 1: run(c_issue(1, 0) + c_issue(1, 1) + c_issue(0, 2))
    if CFG.init >= 2: run(XS.dma(2))
    stamp(a, 4, 1)
    st_ = [(r, 32 * r, k) for r in range(1, 6) for k in range(3)]; so_ = [(0, 0, "wo"), (1, 36, "wo")][:2 - CFG.osplit]
    p2 = P2(a, st_[:12] + so_ + st_[12:] if CFG.ofirst else st_ + so_, vD, None, vCSR, False)
    XS.setup_read(t0, t1, t2)
    tr_addrs(a, t0, t1, t2)
    a("v_xor_b32 v%d, s%d, v%d" % (t2, sWAVE, t1))
    a("v_lshl_add_u32 v%d, v%d, 5, v%d" % (vCSR, t2, t0))
    a("s_mov_b32 s68, s%d" % sC)
    p2.setup_s()
    a("s_lshr_b32 s60, s%d, 1" % sWAVE)
    a("s_lshr_b32 s67, s%d, 1" % sXG)
    a("s_mul_i32 s%d, s60, 4128" % sPX)
    a("s_and_b32 s52, s67, 1")
    a("s_lshl_b32 s52, s52, 6")
    a("s_add_u32 s%d, s%d, s52" % (sPX, sPX))
    a("s_lshr_b32 s%d, s67, 1" % sLS)
    a("s_lshl_b32 s%d, s%d, 7" % (sLS, sLS))
    a("s_and_b32 s49, s%d, 6" % sXG)
    a("s_add_u32 s49, s49, s60")
    a("s_mul_i32 s62, s49, %d" % (18 * KSTRIDE))
    a("s_add_u32 s62, s62, %d" % H_OFF)
    a("s_mul_i32 s63, s49, %d" % (576 * 1152))
    a("s_mul_i32 s64, s49, %d" % (2 * KSTRIDE))
    a("s_add_u32 s64, s64, %d" % (H_OFF + 144 * KSTRIDE))
    a("s_mul_i32 s65, s49, %d" % (72 * 1152))
    a("s_mul_i32 s57, s70, %d" % (6 * KSTRIDE))
    a("s_add_u32 s57, s57, %d" % H_OFF)
    a("s_lshl_b32 s52, s%d, 7" % sXG)
    a("s_add_u32 s69, s52, s%d" % sFI)
    a("s_lshl2_add_u32 s69, s%d, s69" % sC)
    a("s_lshl_b32 s52, s49, 7")
    a("s_add_u32 s71, s52, s%d" % sFI)
    a("s_mul_i32 s%d, s70, 12288" % sCSB)
    a("s_add_u32 s%d, s%d, %d" % (sCSB, sCSB, CS_OFF))
    a("s_lshl_b32 s%d, s70, 7" % sFC)
    a("s_add_u32 s%d, s%d, 0x%x" % (sFC, sFC, FL(FC)))
    b_ = Asm(); rot_bases(b_, sI)
    late2 = Q(a, "\n".join(b_.lines))
    late = []
    L_ = lambda s, c=1: late.append(I(a, s, c))
    u0, u1 = CSA, CSA + 1
    L_("v_and_b32 v%d, 15, v%d" % (u0, vL))
    L_("v_lshlrev_b32 v%d, 4, v%d" % (u0, u0))
    L_("v_lshrrev_b32 v%d, 4, v%d" % (u1, vL))
    L_("v_lshlrev_b32 v%d, 4, v%d" % (vCSL, vL))
    L_("v_lshl_add_u32 v%d, v%d, 10, v%d" % (vCSW, u1, u0))
    L_("s_lshr_b32 s52, s%d, 1\ns_lshl_b32 s52, s52, 11\ns_and_b32 s60, s%d, 1\ns_lshl_b32 s60, s60, 3\ns_add_u32 s52, s52, s60\n"
       "s_lshr_b32 s60, s%d, 1\ns_lshl_b32 s60, s60, 8\ns_add_u32 s52, s52, s60\ns_and_b32 s60, s%d, 1\ns_lshl2_add_u32 s52, s60, s52\n"
       "v_add_u32 v%d, s52, v%d" % (sWAVE, sWAVE, sI, sI, vCSW, vCSW), 11)
    L_("v_cmp_gt_u32 vcc, 32, v%d\nv_mov_b32 v%d, 0x%x\ns_nop 0\nv_cndmask_b32 v%d, v%d, v%d, vcc" % (vL, u0, OOB, vCSW, u0, vCSW), 4)
    L_("s_cmp_eq_u32 s%d, 7\ns_cselect_b32 s%d, 0x%x, 0" % (sI, sOne2, ONE2), 2)
    CSL, ONL, ONH, ON7 = [224, 240, 248], HS, 232, 236
    for i in range(4):
        late.insert(0, I(a, "v_mov_b32 v%d, 0x%x" % (ONES + i, ONE2)))
        L_("v_mov_b32 v%d, s%d" % (ON7 + i, sOne2))
    for i in range(4):
        L_("v_cndmask_b32 v%d, 0, v%d, vcc" % (ONL + i, ONES))
        L_("v_xor_b32 v%d, v%d, v%d" % (ONH + i, ONL + i, ONES))
    run(late); run(late2)
    if CFG.lean == 1: run(XS.dma(1) + dma_issue(0, 2) + dma_issue(0, 3))
    stamp(a, 7, 1)
    stats_compute(a)
    stamp(a, 5, 1)
    run(XS.reads(0))
    a.wait_vm(lambda t: t == ("w", 0, 1))
    a("s_barrier")
    SPLIT = CFG.split
    seq = []
    for kk in range(SPLIT): seq += [("mm", 0, 0, kk), ("mm", 0, 1, kk)]
    seq += [("mm", 0, 0, kk) for kk in range(SPLIT, 18)] + [("mm", 0, 1, kk) for kk in range(SPLIT, 18)]
    for L in (1, 2):
        for P in (0, 1): seq += [("mm", L, P, kk) for kk in range(18)]
    def after(key, new): seq.insert(seq.index(key) + 1, new)
    after(("mm", 0, 0, CFG.c00), ("corr", 0, 0))
    for L in range(3): after(("mm", L, 1, 17), ("corr", L, 1))
    if CFG.cmode == 1 and CFG.cdel >= 0: after(("mm", 1, 1, CFG.cdel), ("corr", 1, 0))
    else: after(("mm", 1, 0, 17), ("corr", 1, 0))
    after(("mm", 2, 0, 17), ("corr", 2, 0))
    cs_steps = {0: [((0, 0), ONES), ((0, 1), ONES), ((0, 2), ON7), ((0, 3), ON7)],
                1: [((11, 0), ONES), ((11, 1), ONES), ((10, 2), ONL)], 2: [((12, 0), ONES), ((12, 1), ONES), ((10, 2), ONH)]}
    cs_at = {0: CFG.cs0, 1: CFG.cs1, 2: CFG.cs2}
    attach = {}
    if CFG.cmode == 1:
        CSL[1], CSL[2] = TMP, CSA
        n1 = seq.index(("corr", 0, 1)) + 1
        cs_at[1] = cs_at[2] = n1 + 1
        attach[seq[n1]] = [(1, k, (1, k), ONES, mat) for k in range(2) for mat in range(2)]
        attach[seq[n1 + 1]] = [(2, k, (2, k), ONES, mat) for k in range(2) for mat in range(2)]
        attach[seq[n1 + 2]] = [(1, 2, (10, 2), ONL, 0), (1, 2, (10, 2), ONL, 1), (2, 2, (10, 2), -ONES, 0), (2, 2, (10, 2), ONES, 1)]
    for L in range(3 if CFG.cmode == 0 else 1):
        its = [(L, k, sl, on, mat) for k, (sl, on) in enumerate(cs_steps[L]) for mat in range(2)]
        attach[seq[cs_at[L]]] = its[:4]; attach[seq[cs_at[L] + 1]] = its[4:]
    NH = len(seq)
    idx = {k: n for n, k in enumerate(seq)}
    visible = set([(0, 0), (0, 1)])
    S_ = Stream(a, "v", WF)
    first_slot = []
    csr = [0]
    def slabs_of(e):
        if e[0] == "mm": return [(e[1], e[3] & ~1), (e[1], e[3] | 1)] + [x[2] for x in attach.get(e, [])]
        return []
    for e in seq:
        first_slot.append(len(S_.slots))
        if e[0] == "mm":
            _, L, P, kk = e
            att = list(attach.get(e, []))
            for ti, kk in [(t_ + (kk & 1), k_) for t_ in (0, 2) for k_ in (kk & ~1, kk | 1)]:
                def off(L=L, kk=kk, ti=ti):
                    assert (L, kk) in visible, (L, kk)
                    return loc[(L, kk)] * 8192 + (ti >> 1) * 4096
                def mf(w, P=P, ti=ti, kk=kk):
                    return ["%s %s, %s, %s, %s" % (MF, V(acc(P, ti, tt), 4), w, xr(kk, tt), "0" if kk == 0 else V(acc(P, ti, tt), 4)) for tt in range(4)]
                S_.add(tr_read(a, off, 2 * P + (ti & 1)), mf, kk % 2 == 0)
                for _ in range(2 if kk % 2 else 0):
                    if not att: break
                    cl, k, sl, on, mat = att.pop(0); CS = CSL[cl]
                    def rd(kind, reg, tag, sl=sl, mat=mat):
                        assert sl in visible
                        out = []
                        d = loc[sl] * 8192 - csr[0]; csr[0] += d
                        if d: out.append(I(a, "v_add_u32 v%d, 0x%x, v%d" % (vCSR, d & 0xffffffff, vCSR)))
                        return out + [("D", lambda h=h: a.lds("ds_read_b64_tr_b16 %s, v%d offset:%d" % (V(reg + 2 * h, 2), vCSR, mat * 4096 + h * 2048), tag)) for h in range(2)]
                    S_.add(rd, lambda w, k=k, on=on, mat=mat, CS=CS: [("".join("v_xor_b32 v%d, v%d, v%d\n" % (ONES + i, ONES + i, ONL) for i in range(4)) + "s_nop 1\n" if on < 0 else "") + "%s %s, %s, %s, %s" % (MF, V(CS + 4 * mat, 4), V(abs(on), 4), w, "0" if k == 0 else V(CS + 4 * mat, 4))])
        elif e[0] == "corr":
            _, L, P = e
            for ti in range(4):
                S_.add(None, lambda w, P=P, ti=ti: ["%s %s, %s, %s, %s" % (MF16, V(acc(P, ti, tt), 4), V(CSA + 2 * ti, 2), V(ST + 4 * tt, 2), V(acc(P, ti, tt), 4)) for tt in range(4)])
    first_slot.append(len(S_.slots))
    p2.add_slots(S_)
    def epilogue(L, P):
        q = [I(a, "s_add_u32 s58, s57, %d" % ((2 * L + P) * KSTRIDE)) + ([], ["s58"])]
        for tt in range(4):
            rs, cc = ST + 4 * tt + 2, ST + 4 * tt + 3
            o = acc(P, 2, tt)
            gu = [(acc(P, half, tt) + i, acc(P, 2 + half, tt) + i) for half in range(2) for i in range(4)]
            for g, u in gu:
                q.append(I(a, "v_mul_f32 v%d, v%d, v%d" % (u, g, u)) + ([g, u], [u]))
                q.append(I(a, "v_mul_f32 v%d, v%d, v%d" % (g, g, rs)) + ([g], [g]))
            for g, u in gu: q.append(I(a, "v_exp_f32 v%d, v%d" % (g, g)) + ([g], [g]))
            for g, u in gu: q.append(I(a, "v_fma_f32 v%d, v%d, v%d, v%d" % (g, g, cc, cc)) + ([g], [g]))
            for g, u in gu: q.append(I(a, "v_rcp_f32 v%d, v%d" % (g, g)) + ([g], [g]))
            for g, u in gu: q.append(I(a, "v_mul_f32 v%d, v%d, v%d" % (g, g, u)) + ([g, u], [g]))
            for k in range(4):
                g = gu[2 * k][0]
                q.append(I(a, "v_cvt_pk_bf16_f32 v%d, v%d, v%d" % (o + k, g, g + 1)) + ([g, g + 1], [o + k]))
            q.append(VM(a, "buffer_store_dwordx4 %s, v%d, %s, s58 offen offset:%d %s" % (V(o, 4), vX, WSR, tt * 1024, SC), ("h", L, P)) + ([o, o + 1, o + 2, o + 3, "s58"], []))
        return q
    last_use = {}
    for n, e in enumerate(seq):
        for sl in slabs_of(e): last_use[sl] = n
    lastP = {}
    for n, e in enumerate(seq):
        if e[0] != "cs": lastP[e[1:3]] = n
    marks = set()
    def mark(m): return ("", lambda: marks.add(m))
    released = set()
    def hsig(stage): return signal(a, "s_add_u32 s49, s69, %d" % (128 * (FH + 64 * stage)))
    def hoff(stage): return "s_add_u32 s49, s71, %d" % (128 * (FH + 64 * stage))
    coff = "s_mov_b32 s49, s%d" % sFC
    def csa_load(L, P):
        return [I(a, "s_add_u32 s49, s%d, %d" % (sCSB, L * 4096 + P * 2048))] + \
               [("M", lambda k=k: a.vmem("buffer_load_dwordx4 %s, v%d, %s, s49 offen offset:%d %s" % (V(CSA + 4 * k, 4), vCSL, WSR, 1024 * k, SC), ("csa", L, P))) for k in range(2)]
    def cs_publish(L):
        CS = CSL[L]
        return [I(a, "s_mov_b32 vcc_lo, 0xffff0000\ns_mov_b32 vcc_hi, 0\nv_cndmask_b32 v%d, v%d, v%d, vcc" % (CS, CS, CS + 4), 3)] + hilo(a, CS, CS + 1, CS + 2) + \
               [I(a, "s_add_u32 s49, s%d, %d" % (sCSB, L * 4096)),
                ("M", lambda: a.vmem("buffer_store_dword v%d, v%d, %s, s49 offen %s" % (CS, vCSW, WSR, SC), ("cs", L))), mark(("pub", L))]
    ev = {}
    bar_tags = {}
    def at(n, fns): ev.setdefault(n, []).extend(fns)
    def sig_after(n, tag, fns):
        n |= 1
        bar_tags.setdefault(n, ([], []))
        bar_tags[n][0].append(tag); bar_tags[n][1].extend(fns)
    marks.add("late")
    csig = lambda L: signal(a, "s_lshl2_add_u32 s49, s%d, s%d\ns_add_u32 s49, s49, %d" % (sI, sFC, 32 * L))
    for L in range(3):
        at(cs_at[L] + 3, cs_publish(L))
        at(idx[("corr", L, 0)] + 1, csa_load(L, 1))
        if L > CFG.cmode: at(idx[("corr", L - 1, 1)] + 1, csa_load(L, 0))
    sig_after(cs_at[0] + CFG.sig0, ("cs", 0), csig(0))
    sig_after(cs_at[2] + (8 if CFG.cmode == 0 else CFG.sigd), ("cs", 2), csig(1))
    c0 = idx[("corr", 0, 0)]
    at(c0 - CFG.p0, poll_issue(a, coff, ("plc", 0)))
    at(c0 - CFG.k0, poll_check(a, coff, ("plc", 0), "0xff") + csa_load(0, 0))
    if CFG.cmode == 0:
        at(idx[("corr", 0, 1)] - 5, poll_issue(a, coff, ("plc", 1)))
        at(idx[("corr", 0, 1)], poll_check(a, coff, ("plc", 1), "0xff00"))
    else:
        at(idx[("corr", 1, 0)] - CFG.pc1, poll_issue(a, coff, ("plc", 1)))
        at(idx[("corr", 1, 0)] - CFG.kc1, poll_check(a, coff, ("plc", 1), "0xff00") + csa_load(1, 0))
    c0 = idx[("corr", 0, 0)]
    at(c0 - 12, stats_addr(a, vP2) + stats_fetch(a, "v", ST, vP2))
    fx = stats_check(a, "v", ST, vP2, None)
    for tt in range(4):
        b = ST + 4 * tt
        fx += [I(a, "v_mov_b32 v%d, v%d" % (b + 1, b)), I(a, "v_mul_f32 v%d, v%d, v%d" % (b + 3, b + 2, b + 2)), I(a, "v_rcp_f32 v%d, v%d" % (b + 2, b + 2), 2)]
    for tt in range(4): fx.append(I(a, "v_mul_f32 v%d, %s, v%d" % (ST + 4 * tt + 2, f32(-LOG2E), ST + 4 * tt + 2)))
    at(c0 - 5, fx + [mark("stats")])
    xread_at = {}
    for p in range(8, 0, -1): xread_at[p] = max(min(idx[("mm", 0, 0, 2 * p)] - CFG.xlead, xread_at.get(p + 1, 99) - 3), 0)
    for p, n in xread_at.items():
        at(n, XS.reads(p))
    mm = lambda L, P, kk: idx[("mm", L, P, kk)]
    sig_after(mm(1, 1, 2), ("h", 0, 1), hsig(0))
    sig_after(mm(2, 0, CFG.s1), ("h", 1, 0), hsig(1))
    sig_after(mm(2, 1, 2), ("h", 1, 1), hsig(2))
    at(mm(2, 0, 0) + CFG.p1, poll_issue(a, hoff(1), "pl1", vP2))
    at(mm(2, 0, 0) + CFG.c1, poll_check(a, hoff(1), "pl1", "7", vP2) + [mark("h1")])
    at(NH - 5, poll_issue(a, hoff(2), "pl2"))
    at(mm(2, 0, 6), p2.setup_vo(vCSR, vCSW, "s_and_b32 s52, s%d, 1" % sXG) + [mark("vo")])
    if CFG.pf == 1:
        pf = Q(a, """s_and_b32 s52, s{W}, 1
            s_mul_i32 s52, s52, 36
            s_mul_i32 s60, s{I}, 72
            s_add_u32 s52, s52, s60
            v_mul_u32_u24 v{P}, 43, v{L}
            v_lshrrev_b32 v{P}, 7, v{P}
            v_mul_u32_u24 v{T}, 3, v{P}
            v_sub_u32 v{T}, v{L}, v{T}
            v_add_u32 v{P}, s52, v{P}
            v_mul_u32_u24 v{P}, 1152, v{P}
            v_lshl_add_u32 v{P}, v{T}, 7, v{P}
            s_mul_i32 s52, s68, 384
            s_add_u32 s52, s52, s63""".format(W=sWAVE, I=sI, P=vP2, L=vL, T=vPL))
        pf += [VM(a, "buffer_load_dword v%d, v%d, s[%d:%d], s52 offen" % (vPL, vP2, rW2, rW2 + 3)),
               I(a, "s_add_u32 s52, s52, %d" % (18 * 1152)),
               VM(a, "buffer_load_dword v%d, v%d, s[%d:%d], s52 offen" % (vPL, vP2, rW2, rW2 + 3))]
        at(idx[("corr", 1, 0)] + 1 + CFG.pfw, pf)
    if CFG.pf == 4:
        pf = Q(a, """s_sub_u32 s52, s2, {AF}
            s_lshl2_add_u32 s52, s52, s{W}
            s_lshl_b32 s52, s52, 13
            v_lshlrev_b32 v{P}, 7, v{L}""".format(W=sWAVE, P=vP2, L=vL, AF=64 * CFG.afirst))
        pf += [VM(a, "buffer_load_dword v%d, v%d, s[%d:%d], s52 offen" % (vPL, vP2, rW2, rW2 + 3))]
        pf += Q(a, """s_cmp_lt_u32 s52, {N}
            s_cmov_b32 s52, 0x{O:x}
            s_sub_u32 s52, s52, {N}""".format(N=4608 * 1152, O=OOB))
        pf += [VM(a, "buffer_load_dword v%d, v%d, s[%d:%d], s52 offen" % (vPL, vP2, rWO, rWO + 3))]
        at((mm(1, 0, 2) if CFG.cmode == 0 else idx[("corr", 1, 0)] - CFG.kc1 + 1) + CFG.pfw, pf)
    def wjob(L, kk):
        def make():
            if VERB: print("hs", now[0], seq[now[0]], "issue W", (L, kk), file=sys.stderr)
            return dma_issue(L, kk)
        gate = 0
        if CFG.cmode == 1 and kk >= 2: gate = (0, CFG.gate1, CFG.gate2)[L]
        return ("w", lambda: len(free) > 0 and now[0] >= gate, make)
    def cjob(L, k):
        def make():
            if VERB: print("hs", now[0], seq[now[0]], "issue C", (L, k), file=sys.stderr)
            return c_issue(L, k)
        return ("w", lambda: len(free) > 0, make)
    cj = {CFG.cj1: [cjob(1, 0), cjob(1, 1), cjob(0, 2)], CFG.cj2: [cjob(2, 0), cjob(2, 1)]}
    if CFG.init >= 1: del cj[CFG.cj1]
    if CFG.cmode == 1: cj = {CFG.cj1: [wjob(1, 0), wjob(1, 1)], 9: [cjob(0, 2), wjob(2, 0), wjob(2, 1)]}
    for p in range(1 if CFG.lean == 2 else 2, 9): S_.jobs += ([XS.job(p)] if p > 2 or CFG.init < 2 else []) + [wjob(0, 2 * p), wjob(0, 2 * p + 1)] + cj.get(p, [])
    S_.jobs += cj.get(9, [])
    S_.jobs += [wjob(L, kk) for L in (1, 2) for kk in range(2 * CFG.cmode, 18)]
    hmark = lambda st: "h1" if st < 6 else ("h2" if st < 9 else ("h3" if st < 12 else ("o" if p2.steps[st][2] == "wo" else "h4")))
    S_.jobs += p2.jobs(0, lambda st: "vo" in marks,
                       lambda st: hmark(st) in marks and now[0] > mm(2, 1, min(st, 9) | 1))
    xdead = {}
    S_.prime()
    for n, e in enumerate(seq):
        pre = []
        now[0] = n
        S_.vmrate = 2.0 if n < CFG.boost else CFG.vmrate / 100.0
        if VERB: a.cm("HS %d %s" % (n, e))
        if n >= CFG.sbase and (n - CFG.sbase) % CFG.sstep == 0 and (n - CFG.sbase) // CFG.sstep < 11: stamp(a, 4 + (n - CFG.sbase) // CFG.sstep, 2)
        if e[0] == "mm" and e[1] == 0 and e[2] == 0 and e[3] % 2 == 0:
            wlg(a, [("xr", e[3] // 2)])
        if n == xread_at[8]: assert ("pub", 2 if CFG.cmode == 0 else 0) in marks
        if e[0] == "corr": assert "stats" in marks
        if n == mm(2, 0, 5): assert a.cnt.get(("w", 2, 17)) == 2
        if e[0] == "corr": wvm(a, [("csa", e[1], e[2])])
        if e[0] == "mm" and e[3] == 0 and (e[1] > 0 or e[2] == 0): stamp(a, 3 if e[1] == 0 else 3 + 2 * e[1] + e[2])
        if e == ("mm", 0, 0, 9): stamp(a, 4)
        if n % 2 == 1:
            rmax = S_.read_limit(first_slot[min(n + 2, NH)] - 1)
            need = []
            for m in range(n, NH):
                if S_.cur_ring(first_slot[m]) <= rmax:
                    need += [x for x in slabs_of(seq[m]) if x not in visible and x not in need]
            rel_ = [x for x, lu in last_use.items() if lu < n and x not in released]
            tags, aft = bar_tags.pop(n, ([], []))
            tags = list(tags)
            if S_.cur_ring(first_slot[NH]) <= rmax and not p2.visible:
                tags += [("w2",) + u for u in p2.units[:4]]; p2.visible.update(p2.units[:4])
            xrel = [p for p, m in xread_at.items() if p >= 6 and m + 3 <= n and p not in xdead]
            want_space = S_.jobs and S_.jobs[0][0] in ("w", "w2", "x") or any(j[0] in ("w", "w2") for j in S_.jobs[:3])
            if rel_ and not (need or tags or xrel) and (not want_space or (n > 40 and len(rel_) < CFG.relper)): rel_ = []
            if need or rel_ or tags or xrel:
                need += [x for x, t_ in issued_at.items() if x not in visible and x not in need and
                         (t_ + CFG.age <= n or (a.cnt.get(("w",) + x, 0) == 2 and ("w",) + x not in a.vm))]
                for x in need: assert x in loc, ("slab not issued", n, x)
                def bar(need=need, tags=tags, xrel=xrel):
                    wlg(a, [("xr", p) for p in xrel])
                    wvm(a, [("w",) + x for x in need] + tags)
                    a("s_barrier")
                pre.append(("B", bar))
                visible.update(need); released.update(rel_)
                for x in rel_: free.append(loc[x])
                for p in xrel:
                    xdead[p] = 1
                    free.extend(8 + 3 * w + p % 3 for w in range(4))
            S_.extra += aft
        S_.extra += ev.pop(n, [])
        if (2, 17) in loc:
            while free:
                p2.free.append(free.pop(0))
        ns = first_slot[n + 1] - first_slot[n]
        for k in range(ns):
            if e[0] == "mm" and e[3] == 0 and k == 0:
                assert not (S_.epi and S_.epiP == e[2]), "epilogue not finished"
            S_.emit(pre if k == 0 else (), 1 if len(S_.extra) > 20 else 0)
            if k == 1 and n > 0:
                pe = seq[n - 1]
                if pe[0] != "cs" and lastP[pe[1:3]] == n - 1:
                    assert not S_.epi
                    S_.set_epi(epilogue(pe[1], pe[2]), first_slot[mm(pe[1] + 1, pe[2], 0)] - 1 if pe[1] < 2 else first_slot[NH] - 1, 0, False)
                    S_.epiP = pe[2]
    assert not S_.epi and not ev and not bar_tags, (ev.keys(), bar_tags.keys())
    now[0] = NH
    if VERB: print("; left for phase 2:", [j[0] for j in S_.jobs], "extra", len(S_.extra), file=sys.stderr)
    stamp(a, 9)
    S_.set_epi(epilogue(2, 1), S_.pos + CFG.edl, 2, False)
    ooff = "s_add_u32 s49, s71, %d" % (128 * FO)
    hooks = {}
    def add(st, key, v): hooks.setdefault(st, {}).setdefault(key, []).extend(v)
    add(CFG.s3, "bar", [("h", 2, 0)]); add(CFG.s3, "after", hsig(3))
    add(0, "after", poll_check(a, hoff(2), "pl2", "7") + [mark("h2")])
    add(CFG.s3 + 2, "after", poll_issue(a, hoff(3), "pl3"))
    add(CFG.s4, "bar", [("h", 2, 1)]); add(CFG.s4, "after", hsig(4))
    add(CFG.s3 + 4, "after", poll_check(a, hoff(3), "pl3", "7") + [mark("h3")])
    if CFG.osplit < 2:
        add(CFG.po, "after", poll_issue(a, ooff, "plo", vP2))
        add(CFG.po + 2, "after", poll_check(a, ooff, "plo", "1", vP2) + [mark("o")])
    add(CFG.p4, "after", poll_issue(a, hoff(4), "pl4"))
    add(CFG.c4, "after", poll_check(a, hoff(4), "pl4", "7") + [mark("h4")])
    dead0 = [loc[x] for x in last_use if x not in released]
    p2.main(S_, hooks, dead0)

C0 = [0, 4, 9, 13]
def path_attn(a):
    global vL, vX, vFS, vFP, vTK, vPL
    keep = (vL, vX, vFS, vFP, vTK, vPL)
    a.cnt = {}
    RB, VO, XO, XA = 224, 230, 236, 240
    vCS0, vCS1, vCSW, vP2, u0, u1 = 250, 251, 252, 253, 254, 255
    aONE, aCS, aST, aCSA, aX = 32, 36, 52, 68, 96
    t0, t1, t2, t3, t4 = 64, 65, 66, 67, 68
    new = (244, 245, 246, 247, 248, 249)
    for o_, n_ in zip(keep[:4], new[:4]): a("v_mov_b32 v%d, v%d" % (n_, o_))
    vL, vX, vFS, vFP, vTK, vPL = new
    def xreg(kk, tt): return ("a", aX + 16 * (kk % 10) + 4 * tt)
    def xr(kk, tt): return R(*xreg(kk, tt), 4)
    def acc(T, tt): return 16 * T + 4 * tt
    XS = XStage(a, XO, XA, 98304, 2, xreg)
    WLIM = 576 * 3456
    def dma_issue(p, win):
        fns = []
        for e in range(2):
            fns += [I(a, "s_add_u32 m0, s53, %d" % (((2 * p + e) % 4) * 24576 + win * 8192)),
                    I(a, "s_add_u32 s55, s%d, %d" % (sWo, e * 32 * 3456 + win * 1152)),
                    VM(a, "buffer_load_dwordx4 v%d, s[%d:%d], s55 offen lds" % (VO, rWA, rWA + 3), ("w", p, win)),
                    VM(a, "buffer_load_dwordx4 v%d, s[%d:%d], s55 offen offset:1024 lds" % (VO + 1, rWA, rWA + 3), ("w", p, win))]
        if win == 2: fns.append(I(a, "s_add_u32 s%d, s%d, %d\ns_cmp_ge_u32 s%d, %d\ns_cmov_b32 s%d, 0" % (sWo, sWo, 64 * 3456, sWo, WLIM, sWo), 3))
        return fns
    XS.setup_dma(t0, t1)
    run(XS.dma(0))
    srd(a, rWA, sWQKV, WLIM)
    run(dma_lane_off(a, VO, t0, t1, 3456, True))
    a("s_lshr_b32 s52, s%d, 1" % sWAVE)
    a("s_add_u32 s52, s52, s%d" % sXG)
    a("s_lshl_b32 s52, s52, 7")
    a("s_and_b32 s49, s%d, 1" % sWAVE)
    a("s_mul_i32 s49, s49, %d" % (4 * 3456))
    a("s_add_u32 s52, s52, s49")
    a("v_add_u32 v%d, s52, v%d" % (VO, VO))
    a("v_add_u32 v%d, %d, v%d" % (VO + 1, 16 * 3456 - 1024, VO))
    a("s_lshl_b32 s53, s%d, 11" % sWAVE)
    a("s_mul_i32 s%d, s%d, %d" % (sWo, sROT, 64 * 3456))
    run(dma_issue(0, 0))
    if CFG.slate: stats_issue(a)
    stamp(a, 4, 1)
    XS.setup_read(t0, t1, t2)
    lane_fields(a, t0, t1, t2)
    a("v_lshrrev_b32 v%d, 1, v%d" % (t0, t0))
    a("v_lshlrev_b32 v%d, 10, v%d" % (t0, t0))
    a("v_lshl_add_u32 v%d, v%d, 7, v%d" % (t0, t1, t0))
    a("v_lshrrev_b32 v%d, 1, v%d" % (t1, t1))
    a("s_lshl_b32 s52, s%d, 1" % sXG)
    for p in range(6):
        r = RB + p
        if p < 4:
            a("v_add_u32 v%d, %d, v%d" % (t3, C0[p], t2))
        elif p == 4:
            a("v_lshrrev_b32 v%d, 1, v%d" % (t3, t2))
            a("v_lshl_add_u32 v%d, v%d, 2, v%d" % (t3, t2, t3))
            a("v_add_u32 v%d, 4, v%d" % (t3, t3))
        else:
            a("v_and_b32 v%d, 1, v%d" % (t3, t2))
            a("v_mul_u32_u24 v%d, 9, v%d" % (t3, t3))
            a("v_add_u32 v%d, 8, v%d" % (t3, t3))
        a("v_add_u32 v%d, s52, v%d" % (t3, t3))
        a("v_lshrrev_b32 v%d, 4, v%d" % (t4, t3))
        a("v_lshl_add_u32 v%d, v%d, 12, v%d" % (r, t4, t0))
        a("v_bfe_u32 v%d, v%d, 2, 2" % (t4, t3))
        a("v_xor_b32 v%d, v%d, v%d" % (t4, t4, t1))
        a("v_lshl_add_u32 v%d, v%d, 5, v%d" % (r, t4, r))
        a("v_and_b32 v%d, 3, v%d" % (t4, t3))
        a("v_lshl_add_u32 v%d, v%d, 3, v%d" % (r, t4, r))
        if p == 5:
            a("v_lshrrev_b32 v%d, 1, v%d" % (t4, t2))
            a("v_add_u32 v%d, 1, v%d" % (t4, t4))
            a("v_lshl_add_u32 v%d, v%d, 13, v%d" % (r, t4, r))
    a("s_bitcmp1_b32 s%d, 0" % sWAVE)
    a("s_cselect_b64 vcc, -1, 0")
    a("v_cndmask_b32 v%d, v%d, v%d, vcc" % (t3, RB, RB + 1))
    a("v_cndmask_b32 v%d, v%d, v%d, vcc" % (t4, RB + 2, RB + 3))
    a("v_cndmask_b32 v%d, v%d, v%d, vcc" % (vCS1, RB + 4, RB + 5))
    a("s_bitcmp1_b32 s%d, 1" % sWAVE)
    a("s_cselect_b64 vcc, -1, 0")
    a("v_cndmask_b32 v%d, v%d, v%d, vcc" % (vCS0, t3, t4))
    a("v_mov_b32 v%d, 0x%x" % (t3, ONE2))
    for i in range(4): a("v_accvgpr_write_b32 a%d, v%d" % (aONE + i, t3))
    steps = [(18 * x_, 576 * x_, k) for x_ in range(4) for k in range(3)] + [(2 * x_ + P, 36 * (2 * x_ + P), "woa") for x_ in range(4) for P in range(2 - CFG.osplit, 2)] + [(0, 0, "wos"), (1, 144, "wos")]
    p2 = P2(a, steps, 220, 197, 222, True)
    a("s_cmp_ge_u32 s%d, 3" % sI)
    a("s_cselect_b32 s4, 1, 0")
    a("s_mul_i32 s52, s4, 3")
    a("s_sub_u32 s68, s%d, s52" % sI)
    a("s_lshr_b32 s70, s%d, 1" % sWAVE)
    a("s_lshl_b32 s72, s%d, 10" % sXG)
    a("s_lshl_b32 s52, s70, 9")
    a("s_add_u32 s72, s72, s52")
    a("s_add_u32 s72, s72, 0x%x" % FLG_OFF)
    p2.setup_s()
    a("s_mul_i32 s62, s70, %d" % (72 * KSTRIDE))
    a("s_add_u32 s62, s62, %d" % H_OFF)
    a("s_mul_i32 s63, s70, %d" % (2304 * 1152))
    a("s_mul_i32 s64, s70, %d" % (2 * KSTRIDE))
    a("s_add_u32 s64, s64, %d" % (H_OFF + 160 * KSTRIDE))
    a("s_mul_i32 s65, s70, %d" % (288 * 1152))
    a("s_mul_i32 s7, s70, %d" % (8 * KSTRIDE))
    a("s_add_u32 s7, s7, %d" % (H_OFF + 144 * KSTRIDE))
    a("s_mov_b32 s67, 4")
    a("s_add_u32 s52, s%d, 24" % sXG)
    a("s_lshl_b32 s%d, s52, 7" % sFC)
    a("s_add_u32 s%d, s%d, 0x%x" % (sFC, sFC, FL(FC)))
    a("s_mov_b32 s71, 0x07070707")
    a("s_cmp_ge_u32 s%d, 6" % sI)
    a("s_cmov_b32 s62, 0x%x" % OOB)
    a("s_cmov_b32 s63, 0x%x" % OOB)
    a("s_cmov_b32 s71, 0")
    a("s_lshl_b32 s%d, s%d, 13" % (sCSB, sXG))
    a("s_add_u32 s%d, s%d, %d" % (sCSB, sCSB, CS_OFF + 24 * 12288))
    a("s_cmp_eq_u32 s%d, 7" % sI)
    a("s_cselect_b32 s%d, 0x%x, 0" % (sOne2, ONE2))
    run(dma_issue(0, 1) + dma_issue(0, 2))
    stamp(a, 7, 1)
    stats_compute(a)
    stamp(a, 5, 1)
    run(XS.reads(0))
    wvm(a, [("w", 0, 0)], w=4)
    a("s_barrier")
    TL = [(0, 0), (1, 0), (2, 0), (3, 0), (4, 0)] + [(p, 1) for p in range(4)] + [(p, 2) for p in range(4)] + [(5, 0)]
    S_ = Stream(a, "a", 0)
    visible = set([(0, 0)])
    cur = [0] * 6
    csr = [0]
    info = []
    csat = {0: (0, 0), 1: (0, 1), 5: (1, 0), 6: (1, 1), 8: (3, 0), 13: (3, 1), 9: (2, 0), 10: (2, 1)}
    for pp in range(9):
        for T in [0, 1, 2, 3, 4, 5, 6, 7, 8, 13, 9, 10, 11, 12]:
            wins = (1, 2) if T == 13 else (TL[T][1],)
            for kk in (2 * pp, 2 * pp + 1):
                def rd(kind, reg, tag, kk=kk, T=T, wins=wins):
                    for w_ in wins: assert (kk // 2, w_) in visible
                    p, win = TL[T]
                    want = ((kk % 4) // 2) * 49152
                    out = []
                    if cur[p] != want:
                        out.append(I(a, "v_add_u32 v%d, 0x%x, v%d" % (RB + p, (want - cur[p]) & 0xffffffff, RB + p))); cur[p] = want
                    return out + [("D", lambda h=h: a.lds("ds_read_b64_tr_b16 %s, v%d offset:%d" % (A(reg + 2 * h, 2), RB + p, (kk % 2) * 24576 + win * 8192 + h * 2048), tag)) for h in range(2)]
                def mf(w, kk=kk, T=T):
                    return ["%s %s, %s, %s, %s" % (MF, V(acc(T, tt), 4), w, xr(kk, tt), "0" if kk == 0 else V(acc(T, tt), 4)) for tt in range(4)]
                S_.add(rd, mf, kk % 2 == 0); info.append((pp, T, wins))
            if pp < 2 and T in csat:
                k, e = csat[T]
                wins = (k,) if k < 3 else (0, 1, 2)
                def rd(kind, reg, tag, pp=pp, k=k, e=e, wins=wins):
                    for w_ in wins: assert (pp, w_) in visible
                    out = []
                    if pp == 1 and k == 0 and e == 0:
                        out += [I(a, "v_add_u32 v%d, 49152, v%d" % (vCS0, vCS0)), I(a, "v_add_u32 v%d, 49152, v%d" % (vCS1, vCS1))]
                    return out + [("D", lambda h=h: a.lds("ds_read_b64_tr_b16 %s, v%d offset:%d" % (A(reg + 2 * h, 2), vCS0 if k < 3 else vCS1, e * 24576 + (k * 8192 if k < 3 else 0) + h * 2048), tag)) for h in range(2)]
                def mf(w, pp=pp, k=k, e=e):
                    pre = ""
                    if pp == 1 and k == 0 and e == 0:
                        pre = "v_mov_b32 v%d, s%d\n" % (vP2, sOne2) + "".join("v_accvgpr_write_b32 a%d, v%d\n" % (aONE + i, vP2) for i in range(4)) + "s_nop 1\n"
                    return [pre + "%s %s, %s, %s, %s" % (MF, A(aCS + 4 * k, 4), A(aONE, 4), w, "0" if pp + e == 0 else A(aCS + 4 * k, 4))]
                S_.add(rd, mf); info.append((pp, -1, wins))
    for T in list(range(9, 13)) + list(range(5, 9)) + [13] + list(range(5)):
        S_.add(None, lambda w, T=T: ["%s %s, %s, %s, %s" % (MF16, V(acc(T, tt), 4), A(aCSA + 2 * T, 2), A(aST + 4 * tt, 2), V(acc(T, tt), 4)) for tt in range(4)])
        info.append((9, T, ()))
    ev = {}; bt = {}
    def at(kk, fns): ev.setdefault(kk, []).extend(fns)
    w_ = [I(a, "v_lshrrev_b32 v%d, 4, v%d" % (u0, vL)),
          I(a, "v_mul_u32_u24 v%d, 9, v%d\nv_add_u32 v%d, 1, v%d\nv_lshrrev_b32 v%d, 1, v%d\nv_add_u32 v%d, s%d, v%d" % (vCSW, u0, vCSW, vCSW, vCSW, vCSW, vCSW, sWAVE, vCSW), 4),
          I(a, "s_mul_i32 s52, s%d, 9\ns_add_u32 s52, s52, 4\ns_cmp_ge_u32 s%d, 2\ns_cmov_b32 s52, 0x%x\nv_mov_b32 v%d, s52\nv_cmp_eq_u32 vcc, 3, v%d\ns_nop 1\nv_cndmask_b32 v%d, v%d, v%d, vcc"
            % (sWAVE, sWAVE, OOB >> 9, u1, u0, vCSW, vCSW, u1), 8),
          I(a, "v_and_b32 v%d, 15, v%d\nv_lshlrev_b32 v%d, 4, v%d\nv_and_b32 v%d, 1, v%d\nv_lshl_add_u32 v%d, v%d, 3, v%d\nv_lshrrev_b32 v%d, 1, v%d\nv_lshl_add_u32 v%d, v%d, 10, v%d"
            % (u0, vL, u0, u0, u1, vCSW, u0, u1, u0, vCSW, vCSW, vCSW, vCSW, u0), 6),
          I(a, "s_lshr_b32 s52, s%d, 1\ns_lshl_b32 s52, s52, 8\ns_and_b32 s60, s%d, 1\ns_lshl2_add_u32 s52, s60, s52\nv_add_u32 v%d, s52, v%d" % (sI, sI, vCSW, vCSW), 5)]
    marks = set()
    at(0, w_ + [("", lambda: marks.add(1))])
    pub = [I(a, "v_accvgpr_read_b32 v%d, a%d" % (u0, aCS))]
    for k, (lo, hi) in enumerate([("0xffff0000", "0"), ("0", "0xffff"), ("0", "0xffff0000")]):
        pub.append(I(a, "v_accvgpr_read_b32 v%d, a%d\ns_mov_b32 vcc_lo, %s\ns_mov_b32 vcc_hi, %s\nv_cndmask_b32 v%d, v%d, v%d, vcc" % (u1, aCS + 4 * (k + 1), lo, hi, u0, u0, u1), 4))
    pub += hilo(a, u0, u1, vCS0)
    pub.append(("M", lambda: a.vmem("buffer_store_dword v%d, v%d, %s, s%d offen %s" % (u0, vCSW, WSR, sCSB, SC), ("cs", 0))))
    at(6, pub)
    b_ = Asm(); rot_bases(b_, 4)
    at(10, Q(a, "\n".join(b_.lines)))
    bt[9] = ([("cs", 0)], signal(a, "s_lshl2_add_u32 s49, s%d, s%d" % (sI, sFC)))
    coff = "s_mov_b32 s49, s%d" % sFC
    at(16, poll_issue(a, coff, "plc") + stats_addr(a, vCS0) + stats_fetch(a, "a", aST, vCS0))
    ld = poll_check(a, coff, "plc", "0xff") + [I(a, "v_lshlrev_b32 v%d, 4, v%d" % (u0, vL))]
    for k in range(7):
        if k == 4: ld.append(I(a, "s_add_u32 s%d, s%d, 4096" % (sCSB, sCSB)))
        ld.append(("M", lambda k=k: a.vmem("buffer_load_dwordx4 %s, v%d, %s, s%d offen offset:%d %s" % (A(aCSA + 4 * k, 4), u0, WSR, sCSB, 1024 * (k % 4), SC), ("csa", 0))))
    ld += stats_check(a, "a", aST, vCS0, u1)
    for tt in range(4): ld.append(I(a, "v_accvgpr_mov_b32 a%d, a%d" % (aST + 4 * tt + 1, aST + 4 * tt)))
    at(20, ld)
    S_.prime()
    dead = set()
    wjob = lambda p, w_: ("w", lambda: p < 2 or (p - 2, w_) in dead, lambda: dma_issue(p, w_))
    for p in range(1, 9): S_.jobs += [XS.job(p), wjob(p, 0), wjob(p, 1), wjob(p, 2)]
    last = {}
    for s, (pp, T, wins) in enumerate(info):
        for w_ in wins: last[(pp, w_)] = s + 1
    bars = [s for s, (pp, T, wins) in enumerate(info) if pp < 9 and T in CFG.abar and info[s - 1][1] != T]
    for s, (pp, T, wins) in enumerate(info):
        pre = []
        begin = T == 0 and info[s - 1][1] != 0
        if begin and pp < 9: wlg(a, [("xr", pp)])
        if VERB and begin: a.cm("HS attn %d" % pp)
        if begin: stamp(a, 4 + pp, 6)
        if s == 0: stamp(a, 3)
        S_.vmrate = 2.0 if s < CFG.aboost else CFG.vmrate / 100.0
        if pp == 9 and T == 9:
            run(S_.extra); S_.extra = []
            wvm(a, [("csa", 0)], csa=7)
            a("s_nop 1")
        if s in bars:
            b = bars.index(s)
            nxt = bars[b + 1] if b + 1 < len(bars) else len(info)
            lim = S_.read_limit(nxt - 1)
            need = []
            for s2, (p2_, T2, w2_) in enumerate(info):
                if S_.ring[s2] is not None and S_.ring[s2] <= lim:
                    need += [(p2_, w_) for w_ in w2_ if (p2_, w_) not in visible and (p2_, w_) not in need]
            tags, aft = bt.pop(b, ([], []))
            def bar(need=need, tags=tags):
                wvm(a, [("w",) + u for u in need] + tags, w=4)
                a("s_barrier")
            pre.append(("B", bar))
            visible.update(need); dead.update(u for u in last if last[u] < s)
            S_.extra += aft
            if b % 3 == CFG.axb and pp + 1 < 9: S_.extra += XS.reads(pp + 1)
            S_.extra += ev.pop(b, [])
        S_.emit(pre)
    assert not S_.extra and not ev and not S_.jobs and not S_.mem
    if VERB: a.cm("END")
    RS = 296
    vq, vn, vI0, vI1 = 224, 225, 226, 227
    T8 = 232
    t0, t1, t2, t3 = 242, 243, 254, 255
    SCL = 250
    a("s_barrier")
    stamp(a, 4, 5)
    stamp(a, 2)
    for tt in range(4): a("v_accvgpr_read_b32 v%d, a%d" % (SCL + tt, aST + 4 * tt + 2))
    a("v_lshrrev_b32 v%d, 4, v%d" % (vq, vL))
    a("v_and_b32 v%d, 15, v%d" % (vn, vL))
    for tt in range(4): a("v_rcp_f32 v%d, v%d" % (SCL + tt, SCL + tt))
    a("s_lshl_b32 s52, s%d, 6" % sWAVE)
    a("v_add_u32 v%d, s52, v%d" % (t0, vn))
    a("v_mul_u32_u24 v%d, %d, v%d" % (t0, RS, t0))
    a("v_lshl_add_u32 v%d, v%d, 3, v%d" % (vI0, vq, t0))
    a("v_mul_u32_u24 v%d, 72, v%d" % (t1, vq))
    a("v_add3_u32 v%d, v%d, v%d, 64" % (vI1, t0, t1))
    for tt in range(4): a("v_mul_f32 v%d, %s, v%d" % (SCL + tt, f32(LOG2E), SCL + tt))
    a("s_mov_b32 s56, %s" % f32(1.0 / LOG2E))
    a("s_mov_b32 s57, s56")
    a("v_mov_b32 v228, %s" % f32(1e-6 * LOG2E))
    a("v_cmp_gt_u32 s[32:33], 2, v%d" % vq)
    def scale4(r, tt):
        b, o = SCL + (tt & 2), tt & 1
        for i in (0, 2): a("v_pk_mul_f32 v[%d:%d], v[%d:%d], v[%d:%d] op_sel:[0,%d] op_sel_hi:[1,%d]" % (r + i, r + i + 1, r + i, r + i + 1, b, b + 1, o, o))
    def phi4(r, t, keepm=None):
        for i in range(4): a("v_exp_f32_e64 v%d, v%d clamp" % (t + i, r + i))
        for i in range(4): a("v_max_f32 v%d, v%d, v228" % (t + 4 + i, r + i))
        d = r if keepm is None else t
        for i in range(0, 4, 2): a("v_pk_fma_f32 v[%d:%d], v[%d:%d], s[56:57], v[%d:%d]" % (d + i, d + i + 1, t + 4 + i, t + 5 + i, t + i, t + i + 1))
        if keepm is not None:
            for i in range(4): a("v_cndmask_b32 v%d, v%d, v%d, %s" % (r + i, r + i, t + i, keepm))
    def pack2(dst, r):
        a("v_cvt_pk_bf16_f32 v%d, v%d, v%d" % (dst, r, r + 1))
        a("v_cvt_pk_bf16_f32 v%d, v%d, v%d" % (dst + 1, r + 2, r + 3))
    h0off = "s_add_u32 s49, s72, %d" % (128 * FH)
    side = []
    def sprinkle():
        while side:
            t, f = side.pop(0); f()
            if t == "M": break
    a("v_mov_b32 v%d, 0x%x" % (t2, ONE2))
    a("v_mov_b32 v%d, 0x%x" % (t3, ONE2))
    for tt in range(4): a("ds_write_b64 v%d, v[%d:%d] offset:%d" % (t0, t2, t3, tt * 16 * RS + 288))
    for T in [13] + list(range(9, 13)) + list(range(5, 9)):
        for tt in (3, 2, 1, 0):
            r = acc(T, tt)
            if T != 13 and (T < 9 or tt % 2 == 0): sprinkle()
            scale4(r, tt)
            if 5 <= T < 9: phi4(r, T8)
            elif T == 13: phi4(r, T8, keepm="s[32:33]")
            pack2(r, r)
            if T == 13: a("ds_write_b64 v%d, v[%d:%d] offset:%d" % (vI1, r, r + 1, tt * 16 * RS))
            else:
                off = C0[(T - 5) % 4] * 8 + (144 if T >= 9 else 0)
                a("ds_write_b64 v%d, v[%d:%d] offset:%d" % (vI0, r, r + 1, tt * 16 * RS + off))
        if T == 13:
            run(p2.setup_vo(240, 241, "s_mov_b32 s52, s4", sXG))
            p2.free = list(range(10, 18))
            for u in p2.units[:8]: side += p2.dma_issue(*u)
            a("v_bfe_u32 v223, v%d, 3, 2" % vL)
            a("v_and_b32 v240, 7, v%d" % vL)
            a("v_lshlrev_b32 v240, 2, v240")
            a("v_lshl_add_u32 v223, v223, 7, v240")
            side += poll_issue(a, h0off, "pl0", 231, 223)
    run(side); side = []
    stamp(a, 5, 5)
    vM, vLf, vB2 = 229, 230, 226
    a("v_bfe_u32 v%d, v%d, 2, 4" % (t0, vL))
    a("v_mul_u32_u24 v%d, %d, v%d" % (t0, RS, t0))
    a("v_and_b32 v%d, 3, v%d" % (t2, vL))
    a("s_lshl_b32 s52, s%d, 2" % sWAVE)
    a("s_lshr_b32 s49, s%d, 1" % sWAVE)
    a("s_add_u32 s52, s52, s49")
    a("v_cmp_eq_u32 vcc, s%d, v%d" % (sWAVE, t2))
    a("v_add_u32 v%d, s52, v%d" % (t3, t2))
    a("v_lshl_add_u32 v%d, v%d, 3, v%d" % (vM, t3, t0))
    a("s_lshl_b32 s52, s52, 3")
    a("s_add_u32 s52, s52, 32")
    a("v_add_u32 v%d, s52, v%d" % (vLf, t0))
    a("v_add_u32 v%d, 144, v%d" % (t3, t0))
    a("v_cndmask_b32 v%d, v%d, v%d, vcc" % (vB2, t3, vLf))
    a("v_cmp_eq_u32 s[34:35], s%d, v%d" % (sWAVE, vq))
    a.lg0()
    a("s_barrier")
    KC = 80
    FR = 96
    for k8 in range(8):
        if k8 == 4:
            for v_ in (vM, vLf, vB2): a("v_add_u32 v%d, %d, v%d" % (v_, 128 * RS, v_))
        if k8 == 7: a.wait_lg(lambda t: t == 0)
        for f, (base, off) in enumerate([(vM, 0), (vLf, 0), (vM, 144), (vB2, 144)]):
            for rd in range(2):
                r = FR + 16 * (k8 % 7) + 4 * f + 2 * rd
                a.lds("ds_read_b64_tr_b16 v[%d:%d], v%d offset:%d" % (r, r + 1, base, (32 * (k8 % 4) + 16 * rd) * RS + off), k8)
        for kq in ([k8 - 1] if k8 else []) + ([7] if k8 == 7 else []):
            a.wait_lg(lambda t: t == kq)
            b = FR + 16 * (kq % 7)
            for ci, (fa, fb) in enumerate([(b, b + 8), (b, b + 12), (b + 4, b + 8), (b + 4, b + 12)]):
                d = KC + 4 * ci
                a("%s %s, %s, %s, %s" % (MF, V(d, 4), V(fa, 4), V(fb, 4), "0" if kq == 0 else V(d, 4)))
    stamp(a, 6, 5)
    a("s_lshl_b32 s52, s%d, 5" % sXG)
    a("s_add_u32 s52, s52, s%d" % sWAVE)
    a("s_mul_i32 s6, s52, 3072")
    a("s_add_u32 s6, s6, %d" % KVP_OFF)
    a("s_mul_i32 s52, s%d, 12288" % sI)
    a("s_add_u32 s58, s6, s52")
    a("v_lshlrev_b32 v%d, 4, v%d" % (t0, vL))
    a("s_lshl_b32 s81, s%d, 7" % sXG)
    a("s_add_u32 s81, s81, %d" % FL(FKV))
    for i in range(4): a("v_cndmask_b32 v%d, v%d, v%d, s[34:35]" % (KC + 8 + i, KC + 12 + i, KC + 8 + i))
    for ci in range(3):
        a.vmem("buffer_store_dwordx4 %s, v%d, %s, s58 offen offset:%d %s" % (V(KC + 4 * ci, 4), t0, WSR, ci * 1024, SC), "kvp")
    run(poll_check(a, h0off, "pl0", "s71", 231, 223))
    for st in range(CFG.ah): side += p2.h_issue(st)
    QF = 104
    def qphi(tt):
        for T in range(5):
            sprinkle()
            scale4(acc(T, tt), tt)
            phi4(acc(T, tt), T8)
        for h in range(4):
            if h % 2: sprinkle()
            pack2(QF + 16 * tt + 4 * h, acc(h, tt))
            pack2(QF + 16 * tt + 4 * h + 2, acc(4, tt))
    qphi(0)
    a("s_and_b32 s52, s%d, 1" % sWAVE)
    a("s_lshl_b32 s49, s52, 1")
    a("v_cmp_le_u32 s[32:33], s49, v%d" % vn)
    a("v_lshrrev_b32 v%d, 2, v%d" % (t2, vn))
    a("v_cmp_eq_u32 s[16:17], s%d, v%d" % (sWAVE, t2))
    a("v_and_b32 v%d, 3, v%d" % (t2, vn))
    a("s_add_u32 s49, s49, 2")
    a("v_cmp_gt_u32 vcc, s49, v%d" % t2)
    a("v_cmp_eq_u32 s[20:21], s%d, v%d" % (sWAVE, t2))
    a("s_and_b64 s[10:11], s[16:17], vcc")
    a("v_cmp_le_u32 s[74:75], s52, v%d" % vq)
    a("s_cmp_eq_u32 s52, 1")
    a("s_cselect_b64 s[76:77], s[34:35], 0")
    stamp(a, 7, 5)
    a.wait_vm(lambda t: t == "kvp")
    a("s_barrier")
    run(signal(a, "s_lshl2_add_u32 s49, s%d, s81" % sI))
    p2.free += list(range(10))
    for u in p2.units[8:3 * CFG.ah]: side += p2.dma_issue(*u)
    stamp(a, 8, 5)
    qphi(1)
    if CFG.qord == 0: qphi(2)
    run(poll_issue(a, "s_mov_b32 s49, s81", "plkv"))
    if CFG.qord == 1: qphi(2)
    stamp(a, 9, 5)
    run(poll_check(a, "s_mov_b32 s49, s81", "plkv", "0xff"))
    stamp(a, 5)
    stamp(a, 10, 5)
    KB = [80, 92, 168, 180, 192, 204, 0, 12]
    def ldp(i):
        a("s_add_u32 s58, s6, %d" % (i * 12288))
        for ci in range(3):
            a.vmem("buffer_load_dwordx4 %s, v%d, %s, s58 offen offset:%d %s" % (V(KB[i] + 4 * ci, 4), t0, WSR, ci * 1024, SC), ("kv", i))
    KB[6:] = [0, 16]
    for i in range(8): ldp(i)
    qphi(3)
    run(side); side = []
    for i in range(1, 8):
        a.wait_vm(lambda t: t == ("kv", i))
        if i == 1: stamp(a, 11, 5)
        d = 0 if i == 7 else 80
        for r in range(0, 12, 2): a("v_pk_add_f32 %s, %s, %s" % (V(d + r, 2), V(80 + r, 2), V(KB[i] + r, 2)))
    stamp(a, 12, 5)
    pack2(12, 0); pack2(14, 4); pack2(16, 8)
    a("v_mov_b32 v18, v16"); a("v_mov_b32 v19, v17"); a("v_mov_b32 v20, v16"); a("v_mov_b32 v21, v17")
    a("s_bitcmp1_b32 s%d, 0" % sWAVE)
    a("s_cselect_b64 vcc, -1, 0")
    a("v_permlane16_swap_b32 v18, v20")
    a("v_permlane16_swap_b32 v19, v21")
    a("v_mov_b32_dpp v22, v14 row_ror:4 row_mask:0xf bank_mask:0xf")
    a("v_mov_b32_dpp v23, v15 row_ror:4 row_mask:0xf bank_mask:0xf")
    a("v_cndmask_b32 v18, v20, v18, vcc")
    a("v_cndmask_b32 v19, v21, v19, vcc")
    a("v_cndmask_b32 v22, v14, v22, s[16:17]")
    a("v_cndmask_b32 v23, v15, v23, s[16:17]")
    a("v_mov_b32_dpp v20, v18 row_ror:4 row_mask:0xf bank_mask:0xf")
    a("v_mov_b32_dpp v21, v19 row_ror:4 row_mask:0xf bank_mask:0xf")
    a("v_cndmask_b32 v20, v18, v20, s[16:17]")
    a("v_cndmask_b32 v21, v19, v21, s[16:17]")
    for f, (m, mainr, leftr) in enumerate([(32, 12, 16), (10, 14, 18), (20, 22, 20)]):
        for k, (src, extra) in enumerate([(mainr, 74), (mainr + 1, m), (leftr, 34), (leftr + 1, 76)]):
            a("s_and_b64 vcc, s[%d:%d], s[%d:%d]" % (m, m + 1, extra, extra + 1))
            a("v_cndmask_b32 v%d, 0, v%d, vcc" % (24 + 4 * f + k, src))
    a("s_mul_i32 s52, s%d, 3072" % sWAVE)
    a("v_add_u32 v%d, 0x25000, v%d" % (t0, t0))
    a("v_add_u32 v%d, s52, v%d" % (t1, t0))
    for f in range(3):
        a("ds_write_b128 v%d, %s offset:%d" % (t1, V(24 + 4 * f, 4), f * 1024))
    a("s_waitcnt lgkmcnt(0)")
    a("s_barrier")
    AF = 168
    for i in range(12):
        a("ds_read_b128 %s, v%d offset:%d" % (V(AF + 4 * i, 4), t0, i * 1024))
    a("s_lshl_b32 s52, s%d, 1" % sXG)
    a("s_add_u32 s52, s52, 144")
    a("s_mul_i32 s58, s52, %d" % KSTRIDE)
    a("s_add_u32 s58, s58, %d" % H_OFF)
    a("s_add_u32 s59, s58, %d" % KSTRIDE)
    a("s_lshr_b32 s52, s%d, 1" % sXG)
    a("s_add_u32 s52, s52, 160")
    a("s_mul_i32 s57, s52, %d" % KSTRIDE)
    a("s_and_b32 s52, s%d, 1" % sXG)
    a("s_lshl_b32 s52, s52, 3")
    a("s_add_u32 s57, s57, s52")
    a("s_add_u32 s57, s57, %d" % H_OFF)
    a("s_mov_b32 s56, %s" % f32(LOG2E))
    a("v_cmp_eq_u32 s[32:33], 1, v%d" % vq)
    a("v_cmp_eq_u32 s[34:35], 2, v%d" % vq)
    a("v_cmp_eq_u32 s[10:11], 3, v%d" % vq)
    a("s_waitcnt lgkmcnt(0)")
    for tt in range(4):
        o = 24 * tt
        for h in range(4):
            qf = V(QF + 16 * tt + 4 * h, 4)
            a("%s %s, %s, %s, 0" % (MF, V(o + 4 * h, 4), V(AF + 12 * h, 4), qf))
            a("%s %s, %s, %s, %s" % (MF, V(o + 16, 4), V(AF + 12 * h + 4, 4), qf, "0" if h == 0 else V(o + 16, 4)))
            a("%s %s, %s, %s, %s" % (MF, V(o + 20, 4), V(AF + 12 * h + 8, 4), qf, "0" if h == 0 else V(o + 20, 4)))
    stamp(a, 13, 5)
    a("s_nop 7")
    for tt in range(4):
        o = 24 * tt
        for h in range(4): a("v_fma_f32 v%d, v%d, s56, v228" % (o + 20 + h, o + 20 + h))
        for h in range(4): a("v_rcp_f32 v%d, v%d" % (o + 20 + h, o + 20 + h))
        a("s_nop 0")
        a("v_cndmask_b32 v%d, v%d, v%d, s[32:33]" % (T8 + 8, o + 20, o + 21))
        a("v_cndmask_b32 v%d, v%d, v%d, s[34:35]" % (T8 + 8, T8 + 8, o + 22))
        a("v_cndmask_b32 v%d, v%d, v%d, s[10:11]" % (T8 + 8, T8 + 8, o + 23))
        for h in range(4):
            b, sel = o + 20 + (h & 2), h & 1
            for i in (0, 2): a("v_pk_mul_f32 v[%d:%d], v[%d:%d], v[%d:%d] op_sel:[0,%d] op_sel_hi:[1,%d]" % (o + 4 * h + i, o + 4 * h + i + 1, o + 4 * h + i, o + 4 * h + i + 1, b, b + 1, sel, sel))
        for i in (0, 2): a("v_pk_mul_f32 v[%d:%d], v[%d:%d], v[%d:%d] op_sel_hi:[1,0]" % (o + 16 + i, o + 17 + i, o + 16 + i, o + 17 + i, T8 + 8, T8 + 9))
        pack2(o, o); pack2(o + 2, o + 4)
        pack2(o + 4, o + 8); pack2(o + 6, o + 12)
        pack2(o + 8, o + 16)
        a.vmem("buffer_store_dwordx4 %s, v%d, %s, s58 offen offset:%d %s" % (V(o, 4), vX, WSR, tt * 1024, SC), "o")
        a.vmem("buffer_store_dwordx4 %s, v%d, %s, s59 offen offset:%d %s" % (V(o + 4, 4), vX, WSR, tt * 1024, SC), "o")
        a.vmem("buffer_store_dwordx2 %s, v%d, %s, s57 offen offset:%d %s" % (V(o + 8, 2), vX, WSR, tt * 1024, SC), "o")
    for o_, n_ in zip(keep[:5], new[:5]): a("v_mov_b32 v%d, v%d" % (o_, n_))
    vL, vX, vFS, vFP, vTK, vPL = keep
    p2.setup_special(176, 177, 178)
    tr_addrs(a, 176, 177, 178)
    a("s_mul_i32 s%d, s70, 4128" % sPX)
    a("s_lshl_b32 s81, s%d, 7" % sXG)
    a("s_add_u32 s81, s81, s%d" % sFI)
    a("s_mov_b32 s52, s%d" % sI)
    a("s_mov_b32 s%d, s%d" % (sI, sXG))
    a("s_mov_b32 s%d, s52" % sXG)
    osig = lambda: signal(a, "s_add_u32 s49, s81, %d" % (128 * FO))
    stamp(a, 14, 5)
    stamp(a, 6)
    lgo = a.newlabel("Lp2a")
    a("s_cmp_lt_u32 s%d, 6" % sXG)
    a("s_cbranch_scc1 %s" % lgo)
    a("s_waitcnt vmcnt(0)")
    a("s_barrier")
    keepvm = list(a.vm)
    run(osig())
    if CFG.ipf:
        a("s_sub_u32 s52, s%d, 6" % sXG)
        a("s_mul_i32 s60, s%d, 9216" % sWAVE)
        a("s_mul_i32 s54, s52, %d" % (2304 * 1152))
        a("s_add_u32 s54, s54, s60")
        a("s_mul_i32 s55, s52, %d" % (288 * 1152))
        a("s_add_u32 s55, s55, s60")
        a("v_lshlrev_b32 v0, 7, v%d" % vL)
        for base, r, rows in [(54, rW2, [576 * x_ + 192 * k for x_ in range(CFG.ah // 3, 4) for k in range(3)]), (55, rWO, [32 * k for k in range(9)])]:
            for row in rows:
                a("s_add_u32 s52, s%d, %d" % (base, row * 1152))
                a("buffer_load_dword v1, v0, s[%d:%d], s52 offen" % (r, r + 3))
    a.vm = keepvm
    a("s_branch L_final")
    a.label(lgo)
    hooks = {}
    def add(st, key, v): hooks.setdefault(st, {}).setdefault(key, []).extend(v)
    add(CFG.so, "bar", ["o"]); add(CFG.so, "after", osig())
    ooff = "s_add_u32 s49, s72, %d" % (128 * FO)
    NSA = len(steps)
    add(CFG.so + 2, "after", poll_issue(a, ooff, "plo", None, 223))
    add(CFG.so + 4, "after", poll_check(a, ooff, "plo", "0x01010101", None, 223) + [("", lambda: marks.add("o"))])
    wvm(a, [("w2",) + u for u in p2.units[:4]])
    a("s_barrier")
    p2.visible.update(p2.units[:4])
    for k_ in [k_ for k_ in a.cnt if isinstance(k_, tuple) and k_[0] == "f"]: del a.cnt[k_]
    S_ = Stream(a, "v", WF)
    p2.add_slots(S_)
    S_.prime()
    S_.jobs += p2.jobs(CFG.ah, lambda st: True, lambda st: st < 12 or "o" in marks)
    p2.main(S_, hooks, [18, 19])

def spin(a, soff_code, mask, sleep):
    lp, ld = a.newlabel("Lw"), a.newlabel("Lw")
    a(soff_code)
    a("s_mov_b32 s59, 40000")
    a.label(lp)
    a("buffer_load_dword v%d, v%d, %s, s49 offen %s" % (vPL, vFP, WSR, SC))
    a("s_waitcnt vmcnt(0)")
    a("v_cmp_eq_u32 vcc, s%d, v%d" % (sTOK, vPL))
    a("s_andn2_b32 s61, %s, vcc_lo" % mask)
    a("s_cbranch_scc0 %s" % ld)
    a("s_sleep %d" % sleep)
    a("s_sub_u32 s59, s59, 1")
    a("s_cmp_lg_u32 s59, 0")
    a("s_cbranch_scc1 %s" % lp)
    a.label(ld)

def code_prefetch(a, top=False):
    if CFG.cpf == 0 or (CFG.cpf >= 2) != top: return
    if top:
        a("s_getpc_b64 s[60:61]")
        l = a.newlabel("Lpc")
        a.label(l)
        a("s_sub_u32 s%d, s60, %s-%s" % (rW2, l, NAME))
        a("s_subb_u32 s%d, s61, 0" % (rW2 + 1))
        a("s_and_b32 s%d, s%d, 0xffff" % (rW2 + 1, rW2 + 1))
        a("s_mov_b32 s%d, L_code_end-%s" % (rW2 + 2, NAME))
        a("s_mov_b32 s%d, 0x20000" % (rW2 + 3))
        if CFG.cpf == 2:
            a("s_lshr_b32 s52, s2, 3")
            a("s_lshl_b32 s52, s52, 12")
            a("v_lshlrev_b32 v63, 4, v0")
        elif CFG.cpf == 4:
            a("s_lshr_b32 s52, s2, 4")
            a("s_lshl_b32 s52, s52, 12")
            a("s_bitcmp1_b32 s2, 3")
            a("s_cselect_b32 s49, (L_attn-%s)&0xffffff80, 0" % NAME)
            a("s_add_u32 s52, s52, s49")
            a("v_lshlrev_b32 v63, 4, v0")
        else:
            a("s_bfe_u32 s52, s2, 0x20003")
            a("s_lshl_b32 s52, s52, 15")
            a("v_lshlrev_b32 v63, 7, v0")
        a.vmem("buffer_load_dword v62, v63, s[%d:%d], s52 offen" % (rW2, rW2 + 3), "pf")
        return
    a("s_getpc_b64 s[60:61]")
    l = a.newlabel("Lpc")
    a.label(l)
    a("s_sub_u32 s%d, s60, %s-%s" % (rW2, l, NAME))
    a("s_subb_u32 s%d, s61, 0" % (rW2 + 1))
    a("s_and_b32 s%d, s%d, 0xffff" % (rW2 + 1, rW2 + 1))
    a("s_mov_b32 s%d, L_code_end-%s" % (rW2 + 2, NAME))
    a("s_mov_b32 s%d, 0x20000" % (rW2 + 3))
    a("s_lshr_b32 s52, s2, 3")
    a("s_lshl_b32 s52, s52, 12")
    a("s_lshl_b32 s49, s%d, 10" % sWAVE)
    a("s_add_u32 s52, s52, s49")
    a("v_lshlrev_b32 v63, 4, v%d" % vL)
    a.vmem("buffer_load_dword v%d, v63, s[%d:%d], s52 offen" % (vPL, rW2, rW2 + 3), "pf")
    if CFG.tlb:
        a("s_lshl_b32 s49, s%d, 1" % sWAVE)
        a("s_cmp_eq_u32 s%d, 1" % sWAVE)
        a("s_cselect_b32 s60, s%d, s%d" % (sW2, sWS)); a("s_cselect_b32 s61, s%d, s%d" % (sW2 + 1, sWS + 1))
        a("s_mov_b32 s%d, %d" % (rWO + 2, PART_OFF + 5 * PSL)); a("s_cmov_b32 s%d, %d" % (rWO + 2, 4608 * 1152))
        a("s_cmp_eq_u32 s%d, 2" % sWAVE)
        a("s_cmov_b32 s60, s%d" % sWO); a("s_cmov_b32 s61, s%d" % (sWO + 1)); a("s_cmov_b32 s%d, %d" % (rWO + 2, 576 * 1152))
        a("s_cmp_eq_u32 s%d, 3" % sWAVE)
        a("s_cmov_b32 s60, s%d" % sOUT); a("s_cmov_b32 s61, s%d" % (sOUT + 1)); a("s_cmov_b32 s%d, %d" % (rWO + 2, 2048 * 1152))
        a("s_mov_b32 s%d, s60" % rWO)
        a("s_and_b32 s%d, s61, 0xffff" % (rWO + 1))
        a("s_mov_b32 s%d, 0x20000" % (rWO + 3))
        a("v_lshlrev_b32 v63, %d, v%d" % (CFG.tlb, vL))
        a("s_lshl_b32 s52, s2, 7")
        a.vmem("buffer_load_dword v%d, v63, s[%d:%d], s52 offen %s" % (vPL, rWO, rWO + 3, SC), "pf")

HEADER = """
; Kernarg (8-byte pointers): 0 x | 8 wqkv | 16 wo | 24 (unused) | 32 w1 | 40 w3 | 48 w2 | 56 out | 64 debug | 72 workspace
; Generated by the author's own script.  One launch, 256 workgroups of 4 waves (one per CU, 512 registers, 160 KiB LDS).
;    statistics and column sums are computed once (shared between workgroups), the mean term is one extra MFMA step.
;  * workgroups 0..191: h = silu(.)*(.) for 256 tokens x 192 hidden columns; 192..255: q,k,v, k^T v exchange and o for
;    256 tokens x 4 heads.  Then the second GEMM [h | o] [w2 ; wo], split over k; every workgroup finishes its own columns.
;  * hand-offs: write-through stores, drained, then a flag word holding this launch's token (workspace epoch + 1).
"""

def build():
    a = Asm()
    a.raw(HEADER.strip("\n"))
    a.raw("; @launch grid=(256,1,1) block=(256,1,1) lds=%d" % LDS_BYTES)
    a.raw('.amdgcn_target "amdgcn-amd-amdhsa--gfx950"')
    a.raw(".text")
    kernel_begin(a, NAME)
    a("s_cmp_ge_u32 s2, 256")
    a("s_cbranch_scc1 L_end")
    a("s_load_dwordx16 s[4:19], s[0:1], 0")
    a("s_load_dwordx4 s[20:23], s[0:1], 64")
    code_prefetch(a, True)
    if CFG.stamp:
        for i in range(16): a("s_mov_b32 s%d, 0" % (84 + i))
        a("s_memtime s[100:101]" if CFG.clk else "s_memrealtime s[100:101]")
    a("v_and_b32 v%d, 63, v0" % vL)
    a("v_lshrrev_b32 v1, 6, v0")
    a("v_cmp_eq_u32 vcc, 0xc0, v0")
    a("v_readfirstlane_b32 s%d, v1" % sWAVE)
    a("v_mov_b32 v1, 0x%x" % OOB)
    a("s_lshr_b32 s%d, s2, 6" % sC)
    if CFG.afirst:
        a("s_add_u32 s%d, s%d, 3" % (sC, sC))
        a("s_and_b32 s%d, s%d, 3" % (sC, sC))
    a("v_cndmask_b32 v%d, v1, v%d, vcc" % (vFS, vL))
    a("v_and_b32 v1, 31, v0")
    a("v_lshlrev_b32 v%d, 2, v1" % vFP)
    if CFG.mapping == 0:
        a("s_and_b32 s%d, s2, 7" % sXG)
        a("s_bfe_u32 s%d, s2, 0x30003" % sI)
    elif CFG.mapping == 1:
        a("s_and_b32 s%d, s2, 3" % sXG)
        a("s_bfe_u32 s52, s2, 0x10003")
        a("s_lshl1_add_u32 s%d, s%d, s52" % (sXG, sXG))
        a("s_and_b32 s%d, s2, 4" % sI)
        a("s_bfe_u32 s52, s2, 0x20004")
        a("s_add_u32 s%d, s%d, s52" % (sI, sI))
    elif CFG.mapping == 4:
        a("s_and_b32 s%d, s2, 3" % sXG)
        a("s_bfe_u32 s52, s2, 0x10003")
        a("s_lshl1_add_u32 s%d, s%d, s52" % (sXG, sXG))
        a("s_bfe_u32 s%d, s2, 0x20004" % sI)
        a("s_bfe_u32 s52, s2, 0x10002")
        a("s_lshl1_add_u32 s%d, s%d, s52" % (sI, sI))
    a("s_mul_i32 s%d, s%d, %d" % (sROT, sC, CFG.rotc))
    a("s_add_u32 s%d, s%d, s%d" % (sROT, sROT, sI))
    if CFG.mapping != 0 and CFG.rotc:
        a("s_and_b32 s52, s%d, 1" % sXG)
        a("s_add_u32 s%d, s%d, s52" % (sROT, sROT))
    a("s_cmp_ge_u32 s%d, 9" % sROT)
    a("s_cselect_b32 s52, 9, 0")
    a("s_sub_u32 s%d, s%d, s52" % (sROT, sROT))
    a("s_lshl_b32 s52, s%d, 14" % sI)
    a("s_lshl_b32 s49, s%d, 12" % sWAVE)
    a("s_add_u32 s52, s52, s49")
    a("v_lshl_add_u32 v%d, v%d, 4, s52" % (vX, vL))
    a("s_lshl_b32 s%d, s%d, 10" % (sFI, sI))
    a("s_add_u32 s%d, s%d, 0x%x" % (sFI, sFI, FLG_OFF))
    stats_load(a)
    a("s_mov_b32 s%d, 0x%x" % (rX + 2, 2048 * 1152))
    a("s_mov_b32 s%d, 0x20000" % (rX + 3))
    a("s_waitcnt lgkmcnt(0)")
    if CFG.stamp: a("s_mov_b32 s84, s100")
    a("s_mov_b32 s%d, s%d" % (rX, sX))
    a("s_and_b32 s%d, s%d, 0xffff" % (rX + 1, sX + 1))
    if not CFG.slate: stats_issue(a)
    a("s_add_u32 s60, s%d, 0x%x" % (sWS, FL(0)))
    a("s_addc_u32 s61, s%d, 0" % (sWS + 1))
    a("s_load_dword s%d, s[60:61], 0" % sTOK)
    stamp(a, 6, 1)
    srd(a, rWS, sWS, WS_BYTES)
    vm0 = list(a.vm)
    a("s_cmp_eq_u32 s%d, 3" % sC)
    a("s_cbranch_scc1 L_attn")
    path_mlp(a)
    a.label("L_final")
    stamp_out(a)
    a.label("L_end")
    a("s_endpgm")
    a.vm = vm0; a.lg = []
    a.label("L_attn")
    path_attn(a)
    a("s_branch L_final")
    a.lines += LATER
    a.label("L_code_end")
    a("s_endpgm")
    a.raw('.section .rodata,"a"')
    a.raw(kernel_desc(NAME, 512, 256))
    return a.text()

if __name__ == "__main__":
    args = sys.argv[1:]
    out = "parallel_sum__linear_attn_block__glu_gated_swiglu__prompt.s"
    for x in args:
        if x == "--stamp": CFG.stamp = True
        elif x == "-v": VERB = True
        elif x == "--sc1": SC = "sc1"
        elif x == "--dsc1": DFL = "sc1"
        elif x == "--dnt": DFL = "nt"
        elif x == "--osc": OSC = " sc1"
        elif x == "--ont": OSC = " nt"
        elif "=" in x:
            k, v = x.split("="); assert hasattr(CFG, k), k; setattr(CFG, k, float(v) if "." in v else int(v))
        else: out = x
    txt = build()
    if CFG.abl:
        import re
        L = txt.split("\n"); i0 = next(i for i, l in enumerate(L) if "v_mfma" in l); i1 = L.index("L_final:")
        def drop(l):
            l = l.strip()
            if CFG.abl & 1 and re.match(r"v_(mul_f32|exp_f32|rcp_f32) v\d+, v\d+", l) and int(re.search(r"v(\d+)", l.split(" ")[1]).group(1)) < 128: return True
            if CFG.abl & 1 and re.match(r"v_fma_f32", l): return True
            if CFG.abl & 2 and l.startswith("ds_read_b64_tr_b16"): return True
            if CFG.abl & 4 and l.startswith("v_mfma_f32_16x16x16"): return True
            if CFG.abl & 8 and l.endswith(" lds"): return True
            if CFG.abl & 16 and l.startswith("buffer_load_dwordx4 a["): return True
            return False
        def drop2(l):
            l = l.strip()
            if CFG.abl & 32 and l.endswith("offset:1024 lds") and ("s[40:43]" in l or "s[44:47]" in l): return True
            if CFG.abl & 64 and (l.startswith("ds_write_b128 v195") or (l.startswith("ds_read_b128") and "v196" in l)): return True
            return False
        txt = "\n".join(("    s_nop 0" if drop2(l) else l) for i, l in enumerate(L) if not (i0 < i < i1 and drop(l)))
    if DFL: txt = txt.replace(" lds\n", " %s lds\n" % DFL)
    open(out, "w").write(txt)
    if CFG.stamp: open(out + ".slow", "w").write("\n".join(NSLOW))
```
